```python
import torch

def _softmax(x, axis=-1):
    return torch.softmax(x, dim=axis)
def _gelu(x):
    return torch.nn.functional.gelu(x, approximate="tanh")
def _silu(x):
    return torch.nn.functional.silu(x)
def _sigmoid(x):
    return torch.sigmoid(x)
def _layernorm(x, axis=-1, eps=1e-5):
    m = x.mean(dim=axis, keepdim=True)
    v = x.var(dim=axis, keepdim=True, unbiased=False)
    return (x - m) / torch.sqrt(v + eps)
def _scatter_add(tgt, idx, src, axis=0):
    return tgt.clone().index_add_(axis, idx, src)
def _segment_sum(src, seg, n):
    out = torch.zeros((n,) + src.shape[1:], dtype=src.dtype)
    return out.index_add_(0, seg, src)
def _pad(x, pw):
    flat = tuple(v for pair in reversed(pw) for v in pair)
    return torch.nn.functional.pad(x, flat)

kernel_name = 'parallel_sum__ssm_conv_s5__glu_gated_geglu__prompt'

def setup_inputs():

    _w = (lambda a: (lambda t: t.to(torch.bfloat16) if t.is_floating_point() else t)(torch.as_tensor(a)))
    def _A_setup():
        B, S, D = 1, 2048, 640
        P = D
        Lambda_re = -0.5 * (lambda _x: torch.exp(torch.as_tensor(_x)))((lambda *s: torch.randn(*s, dtype=torch.bfloat16) * 0.2)(P))
        Lambda_im = (lambda *s: torch.randn(*s, dtype=torch.bfloat16) * 0.4)(P) * 1.0
        B_re = (lambda *s: torch.randn(*s, dtype=torch.bfloat16) * 0.2)(P, D) * (D ** -0.5)
        B_im = (lambda *s: torch.randn(*s, dtype=torch.bfloat16) * 0.2)(P, D) * (D ** -0.5)
        C_re = (lambda *s: torch.randn(*s, dtype=torch.bfloat16) * 0.2)(D, P) * (P ** -0.5)
        C_im = (lambda *s: torch.randn(*s, dtype=torch.bfloat16) * 0.2)(D, P) * (P ** -0.5)
        log_dt = (lambda *s: torch.randn(*s, dtype=torch.bfloat16) * 0.2)(P) * 0.3 - 2.0
        Dskip = (lambda *s: torch.randn(*s, dtype=torch.bfloat16) * 0.05)(D)
        return {
            "x": _w((lambda *s: torch.randn(*s, dtype=torch.bfloat16) * 0.05)(B, S, D)),
            "Lambda_re": _w(Lambda_re),
            "Lambda_im": _w(Lambda_im),
            "B_re": _w(B_re),
            "B_im": _w(B_im),
            "C_re": _w(C_re),
            "C_im": _w(C_im),
            "log_dt": _w(log_dt),
            "Dskip": _w(Dskip),
        }
    _A_in = _A_setup()

    def _B_setup():
        B, S, Dm, Df = 1, 2048, 640, 1728
        return {
            "x": _w((lambda *s: torch.randn(*s, dtype=torch.bfloat16) * 0.05)(B, S, Dm)),
            "w_gate": _w((lambda *s: torch.randn(*s, dtype=torch.bfloat16) * 0.4)(Dm, Df) * (Dm ** -0.5)),
            "w_up": _w((lambda *s: torch.randn(*s, dtype=torch.bfloat16) * 0.4)(Dm, Df) * (Dm ** -0.5)),
            "w_down": _w((lambda *s: torch.randn(*s, dtype=torch.bfloat16) * 0.4)(Df, Dm) * (Df ** -0.5)),
        }
    _B_in = _B_setup()

    return {
        "A_x": _A_in["x"],
        "A_Lambda_re": _A_in["Lambda_re"],
        "A_Lambda_im": _A_in["Lambda_im"],
        "A_B_re": _A_in["B_re"],
        "A_B_im": _A_in["B_im"],
        "A_C_re": _A_in["C_re"],
        "A_C_im": _A_in["C_im"],
        "A_log_dt": _A_in["log_dt"],
        "A_Dskip": _A_in["Dskip"],
        "B_x": _B_in["x"],
        "B_w_gate": _B_in["w_gate"],
        "B_w_up": _B_in["w_up"],
        "B_w_down": _B_in["w_down"],
    }

def reference(A_x, A_Lambda_re, A_Lambda_im, A_B_re, A_B_im, A_C_re, A_C_im, A_log_dt, A_Dskip, B_x, B_w_gate, B_w_up, B_w_down):
    def _A_ref(x, Lambda_re, Lambda_im, B_re, B_im, C_re, C_im, log_dt, Dskip):
        Bsz, L, H = x.shape
        Lam = Lambda_re + 1j * Lambda_im
        Bmat = B_re + 1j * B_im
        Cmat = C_re + 1j * C_im
        dt = torch.exp(log_dt)
        Lam_bar = torch.exp(dt * Lam)
        B_bar = ((Lam_bar - 1.0) / Lam)[:, None] * Bmat
        Bu = torch.einsum("bld,pd->blp", x + 0j, B_bar)
        h = torch.zeros_like(Bu[:, 0, :])
        hs = []
        for t in range(L):
            h = Lam_bar[None, :] * h + Bu[:, t, :]
            hs.append(h)
        hseq = torch.stack(hs, 1)
        y = 2.0 * torch.einsum("blp,dp->bld", hseq, Cmat).real + x * Dskip[None, None, :]
        return y

    def _B_ref(x, w_gate, w_up, w_down):
        g = torch.einsum("bsd,df->bsf", x, w_gate)
        u = torch.einsum("bsd,df->bsf", x, w_up)
        h = _gelu(g) * u
        return torch.einsum("bsf,fd->bsd", h, w_down)

    x = A_x
    xn = _layernorm(x, axis=-1)
    return x + _A_ref(xn, A_Lambda_re, A_Lambda_im, A_B_re, A_B_im, A_C_re, A_C_im, A_log_dt, A_Dskip) + _B_ref(xn, B_w_gate, B_w_up, B_w_down)
```

```python
import re

TRANS = ("v_exp_f32", "v_log_f32", "v_rcp_f32", "v_rsq_f32", "v_sqrt_f32", "v_sin_f32", "v_cos_f32")
_REG = re.compile(r"^-?\|?(?:abs\()?([vas])(?:(\d+)|\[(\d+):(\d+)\])\)?\|?$")


def regs_of(tok):
    tok = tok.strip()
    if tok in ("vcc", "vcc_lo", "vcc_hi"):
        return {("s", 106), ("s", 107)}
    if tok == "m0":
        return {("s", 124)}
    if tok in ("exec", "exec_lo", "exec_hi"):
        return {("s", 126), ("s", 127)}
    m = _REG.match(tok)
    if not m:
        return set()
    f = m.group(1)
    if m.group(2) is not None:
        return {(f, int(m.group(2)))}
    return {(f, i) for i in range(int(m.group(3)), int(m.group(4)) + 1)}


def split_ops(s):
    out, depth, cur = [], 0, ""
    for ch in s:
        if ch in "[(":
            depth += 1
        if ch in "])":
            depth -= 1
        if ch == "," and depth == 0:
            out.append(cur.strip()); cur = ""
        else:
            cur += ch
    if cur.strip():
        out.append(cur.strip())
    return out


class Ins:
    def __init__(self, text):
        self.text = text
        t = text.split(";")[0].strip()
        self.is_label = t.endswith(":")
        self.is_dir = t.startswith(".")
        self.mn = "" if (self.is_label or self.is_dir or not t) else t.split()[0]
        self.w, self.r = set(), set()
        self.srcc = set()
        self.ab = set()
        if not self.mn:
            return
        rest = t[len(self.mn):].strip()
        ops = split_ops(rest)
        if ops:
            last = ops[-1].split()
            ops[-1] = last[0]
            self.mods = last[1:]
        else:
            self.mods = []
        self.ops = ops
        mn = self.mn
        R = [regs_of(o) for o in ops]
        self.valu = mn.startswith("v_") and not mn.startswith("v_mfma")
        self.mfma = mn.startswith("v_mfma")
        self.trans = mn.replace("_e32", "").replace("_e64", "") in TRANS
        self.vmem = mn.startswith(("buffer_", "global_"))
        self.ds = mn.startswith("ds_")
        self.salu = mn.startswith("s_")
        self.lds_dma = self.vmem and ("lds" in self.mods or "_lds_" in mn)
        self.dpp = any(m.startswith(("row_", "quad_perm", "wave_")) for m in self.mods)
        if self.mfma:
            self.w = R[0]; self.ab = R[1] | R[2]; self.srcc = R[3] if len(R) > 3 else set()
            self.r = self.ab | self.srcc
            self.passes = 8 if "32x32x16" in mn else 4
        elif self.valu:
            if mn.startswith("v_permlane") and "swap" in mn:
                self.w = R[0] | R[1]; self.r = R[0] | R[1]
            elif mn.startswith("v_cmp"):
                self.w = R[0]; self.r = set().union(*R[1:])
            elif mn.startswith(("v_add_co", "v_sub_co", "v_addc_co")):
                self.w = R[0] | R[1]; self.r = set().union(*R[2:])
            else:
                self.w = R[0]; self.r = set().union(*R[1:]) if len(R) > 1 else set()
                if mn.startswith(("v_fmac", "v_dot2c", "v_mov_b32_dpp")) or self.dpp:
                    self.r |= R[0]
                if mn.startswith("v_cndmask") and len(ops) == 3:
                    self.r |= regs_of("vcc")
        elif self.ds:
            if mn.startswith("ds_read"):
                self.w = R[0]; self.r = set().union(*R[1:])
            else:
                self.r = set().union(*R)
        elif self.vmem:
            if mn.startswith(("buffer_wbl2", "buffer_inv")):
                pass
            elif self.lds_dma:
                self.r = set().union(*R) | regs_of("m0")
            elif "store" in mn:
                self.r = set().union(*R)
                self.store_data = R[0] if mn.startswith("buffer_") else R[1]
            elif "atomic" in mn:
                self.r = set().union(*R)
                if "sc0" in self.mods:
                    self.w = R[0]
            else:
                self.w = R[0]; self.r = set().union(*R[1:])
        elif self.salu:
            if mn.startswith(("s_cmp", "s_cbranch", "s_branch", "s_waitcnt", "s_barrier", "s_nop", "s_endpgm",
                              "s_setprio", "s_sleep", "s_bitcmp")):
                self.r = set().union(*R) if R else set()
            else:
                self.w = R[0]; self.r = set().union(*R[1:]) if len(R) > 1 else set()

    def states(self):
        if not self.mn:
            return 0
        if self.mn == "s_nop":
            return int(self.ops[0]) + 1
        return 1


def need(prod, cons):
    n = 0
    pv = {x for x in prod.w if x[0] in "va"}
    ps = {x for x in prod.w if x[0] == "s"}
    if prod.valu:
        if cons.mfma and pv & cons.r:
            n = max(n, 2)
        if prod.trans and cons.valu and not cons.trans and pv & cons.r:
            n = max(n, 1)
        if prod.trans and cons.valu and cons.trans and pv & cons.r:
            n = max(n, 1)
        if cons.valu and cons.mn.startswith("v_permlane") and pv & cons.r:
            n = max(n, 2)
        if cons.valu and cons.mn.startswith(("v_readlane", "v_readfirstlane")) and pv & cons.r:
            n = max(n, 1)
        if cons.valu and cons.dpp and pv & cons.r:
            n = max(n, 2)
        if ps:
            if cons.valu and ps & cons.r:
                n = max(n, 2)
            if cons.vmem and ps & cons.r:
                n = max(n, 5)
            if cons.salu and ps & cons.r:
                n = max(n, 2)
            if cons.mn.startswith("s_cbranch_vcc") and ("s", 106) in ps:
                n = max(n, 2)
    if prod.valu and prod.mn.startswith("v_dot2") and cons.mn.split("_e")[0] != prod.mn.split("_e")[0]:
        if pv & (cons.r | cons.w):
            n = max(n, 3)
    if prod.mfma:
        big = {8: 12, 4: 8}[prod.passes]
        ovl = {8: 10, 4: 6}[prod.passes]
        war = {8: 7, 4: 3}[prod.passes]
        if cons.mfma:
            if prod.w & cons.ab:
                n = max(n, big)
            if prod.w & cons.srcc and not (prod.w == cons.srcc and prod.passes == cons.passes):
                n = max(n, ovl)
            if prod.w & cons.w and not (prod.w == cons.srcc):
                n = max(n, big)
        else:
            if prod.w & (cons.r | cons.w):
                n = max(n, big)
            if cons.valu and prod.srcc & cons.w:
                n = max(n, war)
    if prod.salu and ("s", 124) in prod.w and cons.vmem and cons.lds_dma:
        n = max(n, 1)
    if prod.vmem and hasattr(prod, "store_data") and ("x4" in prod.mn or "x3" in prod.mn):
        if prod.store_data & cons.w:
            n = max(n, 2)
    if prod.ds and prod.mn.startswith(("ds_write_b128", "ds_write_b96")) and cons.valu:
        if regs_of(prod.ops[1]) & cons.w:
            n = max(n, 2)
    return n


class Prog:
    def __init__(self):
        self.ins = []
        self.vq = 0
        self.vdone = 0
        self.lq = 0
        self.ldone = 0
        self.slots = 0

    def raw(self, text):
        self.ins.append(Ins(text))

    def e(self, text):
        i = Ins(text)
        self.ins.append(i)
        if i.mn:
            self.slots += 2 if (i.trans or i.mfma) else 1
        if i.mn:
            if i.vmem and not i.mn.startswith(("buffer_wbl2", "buffer_inv")):
                self.vq += 1
                return ("v", self.vq)
            if i.ds:
                self.lq += 1
                return ("l", self.lq)
        return None

    def label(self, name):
        self.ins.append(Ins(name + ":"))

    def wait(self, *toks):
        vn = max([t[1] for t in toks if t and t[0] == "v"], default=0)
        ln = max([t[1] for t in toks if t and t[0] == "l"], default=0)
        parts = []
        if vn > self.vdone:
            c = self.vq - vn
            assert c <= 63, c
            parts.append(f"vmcnt({c})"); self.vdone = vn
        if ln > self.ldone:
            c = self.lq - ln
            if c > 15:
                c = 15; ln = self.lq - 15
            parts.append(f"lgkmcnt({c})"); self.ldone = max(self.ldone, ln)
        if parts:
            self.e("s_waitcnt " + " ".join(parts))

    def wait_all(self, vm=True, lgkm=True):
        parts = []
        if vm:
            parts.append("vmcnt(0)"); self.vdone = self.vq
        if lgkm:
            parts.append("lgkmcnt(0)"); self.ldone = self.lq
        self.e("s_waitcnt " + " ".join(parts))

    def fix_hazards(self):
        out = []
        added = 0
        for c in self.ins:
            if c.mn:
                req, dist = 0, 0
                for p in reversed(out):
                    if p.is_label and getattr(p, "barrier", False):
                        break
                    if p.mn:
                        k = need(p, c)
                        if k > dist:
                            req = max(req, k - dist)
                        dist += p.states()
                        if dist >= 20:
                            break
                while req > 0:
                    k = min(req, 16)
                    out.append(Ins(f"s_nop {k-1}")); req -= k; added += 1
            out.append(c)
        self.ins = out
        return added

    def text(self):
        lines = []
        for i in self.ins:
            lines.append(i.text if (i.is_label or i.is_dir) else "    " + i.text)
        return "\n".join(lines) + "\n"
```

```python
import struct
from asmlib import Prog
from layout import *

S_W, S_MT, S_CG, S_R = 4, 5, 6, 7
SX, SS, SF, SWS, SA1, SA2 = 8, 12, 16, 20, 24, 28
S_T0, S_T1, S_T2, S_T3 = 32, 33, 34, 35
K_X, K_LRE, K_LIM, K_BRE, K_BIM, K_CRE, K_CIM, K_LDT = 36, 38, 40, 42, 44, 46, 48, 50
K_DSK, K_BX, K_WG, K_WU, K_WD, K_OUT, K_DBG, K_WS = 52, 54, 56, 58, 60, 62, 64, 66
S_KS = 68
S_KF = 73
S_W4K, S_XB, S_SB, S_SBROW, S_D1, S_D2, S_TYPE, S_EPOCH, S_MASK = 78, 79, 80, 81, 82, 83, 84, 85, 86
S_A2ROW, S_GK2, S_JOB, S_KD1, S_KD2, S_SPIN, S_J1 = 87, 88, 89, 90, 91, 92, 93
S_ST, S_STB, S_J2 = 94, 96, 97
S_HM = 98
S_M2 = 100

V_LANE, V_OF, V_TR, V_STA, V_GK1, V_SEG, V_PUB, V_XW, V_XR = 1, 2, 6, 10, 11, 12, 13, 14, 15
RAW = 16
ACC_S, ACC_D1, ACC_D2 = 16, 48, 112
V_C = 176
V_OS = 212
V_AS = 216
V_LBO = 232
V_TW = 234
V_PRE = 237
V_STAMP = 243
V_X = 244
XN = 0
FR = 160

LDS_SCR = 131072
SCR_W = 6144
XCH = LDS_SCR + 4 * SCR_W
K1_LDS = 163840

LOG2E = 1.4426950408889634
GK1 = -2.0 * 0.7978845608028654 * LOG2E
GK2 = GK1 * 0.044715


def fx(x):
    return "0x%08x" % struct.unpack("<I", struct.pack("<f", x))[0]


def srd(n):
    return f"s[{n}:{n+3}]"


class K1:
    def __init__(self, opt):
        self.opt = opt
        self.p = Prog()
        self.fill = []
        self.stage_tok = {}
        self.pre_barrier = []
        self.nbar = 0
        self.mf = 0
        self.ring = 0
        self.seen = set()
        self.slow = []
        self.after_first_barrier = None

    def stamp(self, k):
        if not self.opt.get("stamp"):
            return
        e = self.p.e
        e(f"s_memrealtime s[{S_ST}:{S_ST+1}]")
        e("s_waitcnt lgkmcnt(0)")
        self.p.ldone = self.p.lq
        e(f"v_mov_b32 v{V_STAMP}, s{S_ST}")
        e(f"buffer_store_dword v{V_STAMP}, off, {srd(SWS)}, s{S_STB} offset:{4*k}")

    def issue_stage(self, n, kind, i, arg):
        e = self.p.e
        slot = n % 8
        e(f"s_add_u32 m0, s{S_W4K}, {slot*16384}")
        if kind == "S":
            e(f"s_add_u32 s{S_T0}, s{S_SBROW}, s{S_KS+i}")
            if arg:
                e(f"s_add_u32 s{S_T0}, s{S_T0}, {arg*32*1280}")
            vo, d = V_OS, SS
        else:
            e(f"s_add_u32 s{S_T0}, s{arg}, s{S_KF+(i>>1)}")
            if i & 1:
                e(f"s_add_u32 s{S_T0}, s{S_T0}, {64*3456}")
            vo, d = V_OF, SF
        t = None
        for q in range(4):
            t = e(f"buffer_load_dwordx4 v{vo+q}, {srd(d)}, s{S_T0} offen offset:{1024*q} lds")
        self.stage_tok[n] = t

    def barrier(self, *toks):
        p = self.p
        p.wait(*toks, *self.pre_barrier)
        self.pre_barrier = []
        p.e("s_barrier")
        self.nbar += 1
        if self.after_first_barrier:
            f, self.after_first_barrier = self.after_first_barrier, None
            f()

    def pull(self, budget):
        p = self.p
        start = p.slots
        while self.fill and p.slots - start < budget:
            it = self.fill[0]
            if isinstance(it, tuple):
                if not it[1]():
                    return
                self.fill.pop(0)
                continue
            self.fill.pop(0)
            it()

    def flush(self):
        while self.fill:
            it = self.fill.pop(0)
            if isinstance(it, tuple):
                if it[0] == "bar" and not it[1]():
                    self.barrier()
                continue
            it()

    def gemm(self, frags, plan, hooks=None):
        p = self.p
        LA = 7
        toks = {}
        n = len(frags)

        def read(idx):
            fr = frags[idx]
            st = fr["stage"]
            if st not in self.seen:
                self.seen.add(st)
                self.barrier(self.stage_tok[st])
                if st in plan:
                    plan[st]()
            r = FR + 4 * (idx % 8)
            for txt in fr["reads"]:
                toks[idx] = p.e(txt.format(f0=r, f1=r + 1, f2=r + 2, f3=r + 3))
        for idx in range(LA):
            read(idx)
        grp = self.opt.get("wgrp", 4)
        for idx in range(n):
            if hooks and idx in hooks:
                hooks[idx]()
            if idx % grp == 0:
                p.wait(toks[min(idx + grp - 1, n - 1)])
            start = p.slots
            r = FR + 4 * (idx % 8)
            p.e(frags[idx]["mfma"].format(f0=r, f3=r + 3))
            self.mf += 1
            if idx + LA < n:
                read(idx + LA)
            if self.opt.get("interleave", 1):
                self.pull(self.opt.get("budget", 8) - (p.slots - start))

    def s_frags(self, st0, acc):
        out = []
        for s in range(40):
            st = st0 + s // 8
            slot = st % 8
            for mat in range(2):
                a = V_AS + 8 * (slot // 4) + (s % 8)
                off = (slot % 4) * 16384 + mat * 8192
                c = f"v[{acc+16*mat}:{acc+16*mat+15}]"
                cin = c if s else "0"
                out.append(dict(stage=st, reads=[f"ds_read_b128 a[{{f0}}:{{f3}}], v{a} offset:{off}"],
                                mfma=f"v_mfma_f32_32x32x16_bf16 {c}, a[{XN+4*s}:{XN+4*s+3}], a[{{f0}}:{{f3}}], {cin}"))
        return out

    def d_frags(self, st0, acc):
        out = []
        for s in range(40):
            st = st0 + s // 4
            slot = st % 8
            for j in range(2):
                for mat in range(2):
                    a = V_TR + 2 * (slot // 4) + j
                    off = (slot % 4) * 16384 + mat * 8192 + (s % 4) * 2048
                    r = acc + 32 * j + 16 * mat
                    c = f"v[{r}:{r+15}]"
                    cin = c if s else "0"
                    out.append(dict(stage=st, reads=[
                        f"ds_read_b64_tr_b16 a[{{f0}}:{{f1}}], v{a} offset:{off}",
                        f"ds_read_b64_tr_b16 a[{{f2}}:{{f3}}], v{a} offset:{off+512}"],
                        mfma=f"v_mfma_f32_32x32x16_bf16 {c}, a[{{f0}}:{{f3}}], a[{XN+4*s}:{XN+4*s+3}], {cin}"))
        return out

    def q(self, *texts):
        for t in texts:
            self.fill.append(lambda t=t: self.p.e(t))

    def ffn_epilogue(self, acc, s_k):
        T = V_X
        for j in range(2):
            g0, u0 = acc + 32 * j, acc + 32 * j + 16
            for half in range(2):
                for pair in range(4):
                    i = 8 * half + 2 * pair
                    ga, gb, ua, ub = g0 + i, g0 + i + 1, u0 + i, u0 + i + 1
                    ta, tb = T + 2 * (pair % 2), T + 2 * (pair % 2) + 1
                    d = T + 4 + 4 * half + pair
                    self.q(f"v_mul_f32 v{ta}, v{ga}, v{ga}", f"v_mul_f32 v{tb}, v{gb}, v{gb}",
                           f"v_fma_f32 v{ta}, v{ta}, s{S_GK2}, v{V_GK1}", f"v_fma_f32 v{tb}, v{tb}, s{S_GK2}, v{V_GK1}",
                           f"v_mul_f32 v{ta}, v{ta}, v{ga}", f"v_mul_f32 v{tb}, v{tb}, v{gb}",
                           f"v_exp_f32 v{ta}, v{ta}", f"v_exp_f32 v{tb}, v{tb}",
                           f"v_mul_f32 v{ua}, v{ua}, v{ga}", f"v_mul_f32 v{ub}, v{ub}, v{gb}",
                           f"v_add_f32 v{ta}, 1.0, v{ta}", f"v_add_f32 v{tb}, 1.0, v{tb}",
                           f"v_rcp_f32 v{ta}, v{ta}", f"v_rcp_f32 v{tb}, v{tb}",
                           f"v_mul_f32 v{ua}, v{ua}, v{ta}", f"v_mul_f32 v{ub}, v{ub}, v{tb}",
                           f"v_cvt_pk_bf16_f32 v{d}, v{ua}, v{ub}")
                d = T + 4 + 4 * half
                if j == 1 and half == 0:
                    self.q(f"s_add_u32 s{s_k}, s{s_k}, 4096")
                self.q(f"buffer_store_dwordx4 v[{d}:{d+3}], v{V_STA}, {srd(SWS)}, s{s_k} offen offset:{512*half}")

    @staticmethod
    def cmul(dr, di, ar, ai, br, bi):
        return [f"v_mul_f32 v{dr}, v{ar}, v{br}", f"v_mul_f32 v{di}, v{ar}, v{bi}",
                f"v_fma_f32 v{dr}, -v{ai}, v{bi}, v{dr}", f"v_fma_f32 v{di}, v{ai}, v{br}, v{di}"]

    def ssm_consts(self, b, praw, u):
        c = V_C + 12 * b
        lr, li, dt = praw, praw + 1, praw + 2
        L = [f"v_lshlrev_b32 v{lr}, 16, v{lr}", f"v_lshlrev_b32 v{li}, 16, v{li}", f"v_lshlrev_b32 v{dt}, 16, v{dt}",
             f"v_mul_f32 v{dt}, {fx(LOG2E)}, v{dt}", f"v_exp_f32 v{dt}, v{dt}",
             f"v_cvt_pk_bf16_f32 v{dt}, v{dt}, v{dt}", f"v_lshlrev_b32 v{dt}, 16, v{dt}",
             f"v_mul_f32 v{u}, v{dt}, v{lr}", f"v_mul_f32 v{u+1}, v{dt}, v{li}",
             f"v_mul_f32 v{u}, {fx(LOG2E)}, v{u}", f"v_mul_f32 v{u+1}, 0.15915494, v{u+1}",
             f"v_exp_f32 v{u}, v{u}", f"v_fract_f32 v{u+1}, v{u+1}",
             f"v_cos_f32 v{u+2}, v{u+1}", f"v_sin_f32 v{u+3}, v{u+1}",
             f"v_mul_f32 v{c}, v{u}, v{u+2}", f"v_mul_f32 v{c+1}, v{u}, v{u+3}",
             f"v_add_f32 v{u}, -1.0, v{c}",
             f"v_mul_f32 v{u+1}, v{lr}, v{lr}", f"v_fma_f32 v{u+1}, v{li}, v{li}, v{u+1}",
             f"v_rcp_f32 v{u+1}, v{u+1}",
             f"v_mul_f32 v{u+2}, v{u}, v{lr}", f"v_fma_f32 v{u+2}, v{c+1}, v{li}, v{u+2}",
             f"v_mul_f32 v{u+3}, v{c+1}, v{lr}", f"v_fma_f32 v{u+3}, -v{u}, v{li}, v{u+3}",
             f"v_add_f32 v{u+1}, v{u+1}, v{u+1}",
             f"v_mul_f32 v{c+2}, v{u+2}, v{u+1}", f"v_mul_f32 v{c+3}, v{u+3}, v{u+1}"]
        L += self.cmul(u, u + 1, c, c + 1, c, c + 1)
        L += self.cmul(u + 2, u + 3, u, u + 1, u, u + 1)
        L += self.cmul(u, u + 1, u + 2, u + 3, u + 2, u + 3)
        L += self.cmul(c + 4, c + 5, u, u + 1, u, u + 1)
        L += self.cmul(u, u + 1, c + 4, c + 5, c + 4, c + 5)
        L += self.cmul(u + 2, u + 3, u, u + 1, u, u + 1)
        L += self.cmul(c + 8, c + 9, u + 2, u + 3, u + 2, u + 3)
        L += self.cmul(c + 10, c + 11, c + 8, c + 9, c + 8, c + 9)
        hm, m2 = f"s[{S_HM}:{S_HM+1}]", f"s[{S_M2}:{S_M2+1}]"
        L += [f"v_cndmask_b32 v{u+4}, 1.0, v{c+4}, {hm}", f"v_cndmask_b32 v{u+5}, 0, v{c+5}, {hm}",
              f"s_bitcmp1_b32 s{S_W}, 0", f"s_cselect_b64 {m2}, -1, 0",
              f"v_cndmask_b32 v{u}, 1.0, v{u}, {m2}", f"v_cndmask_b32 v{u+1}, 0, v{u+1}, {m2}"]
        L += self.cmul(u + 6, u + 7, u + 4, u + 5, u, u + 1)
        L += [f"s_bitcmp1_b32 s{S_W}, 1", f"s_cselect_b64 {m2}, -1, 0",
              f"v_cndmask_b32 v{u+2}, 1.0, v{u+2}, {m2}", f"v_cndmask_b32 v{u+3}, 0, v{u+3}, {m2}"]
        L += self.cmul(c + 6, c + 7, u + 6, u + 7, u + 2, u + 3)
        return L

    def ex_base(self, sreg, b):
        return [f"s_add_u32 s{sreg}, s{S_SB}, {b}", f"s_mul_i32 s{sreg}, s{sreg}, {EX_BLK}",
                f"s_add_u32 s{sreg}, s{sreg}, {EX_OFF}"]

    def ssm_reduce(self, b, acc):
        p = self.p
        c = V_C + 12 * b
        T = V_X
        re, im = acc, acc + 16
        hr, hi, nr, ni = T, T + 1, T + 2, T + 3
        cur = (re, im)
        for t in range(1, 16):
            d = (hr, hi) if t % 2 else (nr, ni)
            self.q(f"v_fma_f32 v{d[0]}, -v{c+1}, v{cur[1]}, v{re+t}", f"v_fma_f32 v{d[1]}, v{c+1}, v{cur[0]}, v{im+t}",
                   f"v_fma_f32 v{d[0]}, v{c}, v{cur[0]}, v{d[0]}", f"v_fma_f32 v{d[1]}, v{c}, v{cur[1]}, v{d[1]}")
            cur = d
        st = {}

        def wr():
            t = p.e(f"ds_write_b64 v{V_XW}, v[{hr}:{hi}] offset:{2048*b}")
            self.pre_barrier.append(t)
            st["bar"] = self.nbar
        self.fill.append(wr)
        self.fill.append(("bar", lambda: self.nbar > st["bar"]))
        E = T + 4
        pr, pi = V_PRE + 2 * b, V_PRE + 2 * b + 1
        self.q(f"v_mov_b32 v{pr}, 0", f"v_mov_b32 v{pi}, 0")
        for rnd in range(2):
            def rd(rnd=rnd):
                p.e(f"ds_read_b128 v[{E}:{E+3}], v{V_XR} offset:{2048*b + 32*rnd}")
                st["t"] = p.e(f"ds_read_b128 v[{E+4}:{E+7}], v{V_XR} offset:{2048*b + 32*rnd + 16}")
            self.fill.append(rd)
            self.fill.append(lambda: p.wait(st["t"]))
            for k in range(4):
                j = 4 * rnd + k
                if j == 7:
                    break
                er, ei = E + 2 * k, E + 2 * k + 1
                self.q(f"v_cmp_lt_u32 vcc, {j}, v{V_SEG}",
                       f"v_fma_f32 v{er}, -v{c+5}, v{pi}, v{er}", f"v_fma_f32 v{ei}, v{c+5}, v{pr}, v{ei}",
                       f"v_fma_f32 v{er}, v{c+4}, v{pr}, v{er}", f"v_fma_f32 v{ei}, v{c+4}, v{pi}, v{ei}",
                       f"v_cndmask_b32 v{pr}, v{pr}, v{er}, vcc", f"v_cndmask_b32 v{pi}, v{pi}, v{ei}, vcc")
        g = E
        self.q(f"v_fma_f32 v{g}, -v{c+5}, v{pi}, v{hr}", f"v_fma_f32 v{g+2}, v{c+5}, v{pr}, v{hi}",
               f"v_fma_f32 v{g}, v{c+4}, v{pr}, v{g}", f"v_fma_f32 v{g+2}, v{c+4}, v{pi}, v{g+2}",
               f"v_mov_b32 v{g+1}, s{S_EPOCH}", f"v_mov_b32 v{g+3}, s{S_EPOCH}",
               *self.ex_base(S_T2, b),
               f"buffer_store_dwordx4 v[{g}:{g+3}], v{V_PUB}, {srd(SWS)}, s{S_T2} offen sc1")

    def lb_issue(self, i, LB, A):
        p = self.p
        p.e(f"v_add_u32 v{A}, {-1024*i & 0xffffffff:#x}, v{V_LBO}" if i else f"v_mov_b32 v{A}, v{V_LBO}")
        p.e(f"v_max_i32 v{A}, v{A}, v{V_LBO+1}")
        return p.e(f"buffer_load_dwordx4 v[{LB+4*i}:{LB+4*i+3}], v{A}, {srd(SWS)}, s{S_T3} offen sc1")

    def lb_check(self, LB, A, tag):
        p = self.p
        p.e(f"v_mov_b32 v{A}, 0")
        for i in range(8):
            p.e(f"v_xor_b32 v{A+1}, s{S_EPOCH}, v{LB+4*i+1}")
            p.e(f"v_xor_b32 v{A+2}, s{S_EPOCH}, v{LB+4*i+3}")
            p.e(f"v_or3_b32 v{A}, v{A}, v{A+1}, v{A+2}")
        p.e(f"v_cmp_ne_u32 vcc, 0, v{A}")
        p.e(f"s_cbranch_vccnz LB_SLOW_{tag}")

    def ssm_finish(self, b, acc, LB, gate_issue, gate_check, tag):
        p = self.p
        c = V_C + 12 * b
        PRE = V_PRE + 2 * b
        st = {}
        if gate_issue is not None:
            self.fill.append(("t", gate_issue))
        A = LB + 32
        self.q(*self.ex_base(S_T3, b), f"s_mov_b32 s{S_SPIN}, 0")
        for i in range(8):
            def f(i=i):
                st["t"] = self.lb_issue(i, LB, A)
            self.fill.append(f)
        if gate_check is not None:
            self.fill.append(("t", gate_check))

        def check():
            tg = tag + (getattr(self, "retag", None) or "")
            p.wait(st["t"])
            self.lb_check(LB, A, tg)
            p.label(f"LB_OK_{tg}")
            self.slow.append((tg, LB, A))
        self.fill.append(check)
        pr, pi = A, A + 1
        self.q(f"v_mov_b32 v{pr}, v{LB+28}", f"v_mov_b32 v{pi}, v{LB+30}")
        for i in range(6, -1, -1):
            er, ei = LB + 4 * i, LB + 4 * i + 2
            self.q(f"v_fma_f32 v{er}, -v{c+11}, v{pi}, v{er}", f"v_fma_f32 v{ei}, v{c+11}, v{pr}, v{ei}",
                   f"v_fma_f32 v{pr}, v{c+10}, v{pr}, v{er}", f"v_fma_f32 v{pi}, v{c+10}, v{pi}, v{ei}")
        r0, i0, r1, i1 = LB, LB + 1, LB + 2, LB + 3
        self.q(f"v_mov_b32 v{r0}, v{pr}", f"v_mov_b32 v{r1}, v{pr}", f"v_mov_b32 v{i0}, v{pi}", f"v_mov_b32 v{i1}, v{pi}",
               f"v_permlane32_swap_b32 v{r0}, v{r1}", f"v_permlane32_swap_b32 v{i0}, v{i1}",
               f"v_fma_f32 v{r0}, -v{c+9}, v{i1}, v{r0}", f"v_fma_f32 v{i0}, v{c+9}, v{r1}, v{i0}",
               f"v_fma_f32 v{r0}, v{c+8}, v{r1}, v{r0}", f"v_fma_f32 v{i0}, v{c+8}, v{i1}, v{i0}",
               f"v_fma_f32 v{PRE}, -v{c+7}, v{i0}, v{PRE}", f"v_fma_f32 v{PRE+1}, v{c+7}, v{r0}, v{PRE+1}",
               f"v_fma_f32 v{PRE}, v{c+6}, v{r0}, v{PRE}", f"v_fma_f32 v{PRE+1}, v{c+6}, v{i0}, v{PRE+1}")
        re, im = acc, acc + 16
        cur = (PRE, PRE + 1)
        for t in range(16):
            self.q(f"v_fma_f32 v{re+t}, -v{c+1}, v{cur[1]}, v{re+t}", f"v_fma_f32 v{im+t}, v{c+1}, v{cur[0]}, v{im+t}",
                   f"v_fma_f32 v{re+t}, v{c}, v{cur[0]}, v{re+t}", f"v_fma_f32 v{im+t}, v{c}, v{cur[1]}, v{im+t}")
            cur = (re + t, im + t)
            o = LB + 4 + 4 * (t % 2)
            self.q(f"v_mul_f32 v{o}, v{c+2}, v{re+t}", f"v_mul_f32 v{o+1}, v{c+2}, v{im+t}",
                   f"v_fma_f32 v{o}, -v{c+3}, v{im+t}, v{o}", f"v_fma_f32 v{o+1}, v{c+3}, v{re+t}, v{o+1}",
                   f"v_cvt_pk_bf16_f32 v{o+2}, v{o}, -v{o+1}")

            def w(t=t, o=o):
                st["w"] = p.e(f"ds_write_b32 v{V_TW}, v{o+2} offset:{144*t}")
            self.fill.append(w)
        O = LB + 12

        def rd():
            p.wait(st["w"])
            st["r"] = [p.e(f"ds_read_b128 v[{O+4*f}:{O+4*f+3}], v{V_TW+1} offset:{(f>>1)*2304 + (f&1)*64}")
                       for f in range(4)]
        self.fill.append(rd)
        self.q(f"s_add_u32 s{S_T3}, s{S_SB}, {b}", f"s_lshl_b32 s{S_T3}, s{S_T3}, 13",
               f"s_add_u32 s{S_T3}, s{S_T3}, s{S_A2ROW}", f"s_add_u32 s{S_T3}, s{S_T3}, {54*4096}",
               f"s_add_u32 s{S_T2}, s{S_T3}, 4096")
        for f in range(4):
            def stf(f=f):
                p.wait(st["r"][f])
                so = S_T2 if f & 1 else S_T3
                p.e(f"buffer_store_dwordx4 v[{O+4*f}:{O+4*f+3}], v{V_TW+2}, {srd(SWS)}, s{so} offen offset:{1024*(f>>1)}")
            self.fill.append(stf)

    def slow_paths(self):
        p = self.p
        for tag, LB, A in self.slow:
            p.label(f"LB_SLOW_{tag}")
            p.e("s_sleep 2")
            p.e(f"s_add_u32 s{S_SPIN}, s{S_SPIN}, 1")
            p.e(f"s_cmp_gt_u32 s{S_SPIN}, 100000")
            p.e(f"s_cbranch_scc1 LB_OK_{tag}")
            for i in range(8):
                self.lb_issue(i, LB, A)
            p.e("s_waitcnt vmcnt(0)")
            self.lb_check(LB, A, tag)
            p.e(f"s_branch LB_OK_{tag}")

    def mk_srd(self, d, ptr, nbytes):
        e = self.p.e
        e(f"s_mov_b32 s{d}, s{ptr}"); e(f"s_mov_b32 s{d+1}, s{ptr+1}")
        e(f"s_mov_b32 s{d+2}, {nbytes}"); e(f"s_mov_b32 s{d+3}, 0x20000")

    def prologue(self):
        p, e = self.p, self.p.e
        p.raw(".p2align 8")
        p.label("proj_kernel")
        e("s_cmp_ge_u32 s2, 256")
        e("s_cbranch_scc1 K1_END")
        e("s_load_dwordx16 s[36:51], s[0:1], 0")
        e("s_load_dwordx16 s[52:67], s[0:1], 64")
        e(f"s_getpc_b64 s[{S_T0}:{S_T1}]")
        p.label("K1_PC")
        e("v_lshrrev_b32 v2, 6, v0")
        e(f"v_and_b32 v{V_LANE}, 63, v0")
        e(f"v_readfirstlane_b32 s{S_W}, v2")
        e("s_lshr_b32 s3, s2, 3")
        e(f"s_lshl_b32 s{S_T2}, s3, 2")
        e(f"s_add_u32 s{S_T2}, s{S_T2}, s{S_W}")
        e(f"s_lshl_b32 s{S_T2}, s{S_T2}, 9")
        e(f"v_lshlrev_b32 v2, 7, v{V_LANE}")
        e(f"v_add_u32 v2, s{S_T2}, v2")
        e("v_min_u32 v2, TEXT_END-K1_PC-4, v2")
        e("s_mov_b64 exec, 15")
        e(f"global_load_dword v{V_PRE+5}, v2, s[{S_T0}:{S_T1}]")
        e("s_mov_b64 exec, -1")
        e(f"s_and_b32 s{S_T2}, s2, 7")
        e(f"s_lshr_b32 s{S_MT}, s{S_T2}, 1")
        e(f"s_lshl_b32 s{S_MT}, s{S_MT}, 2")
        e(f"s_and_b32 s{S_T3}, s3, 3")
        e(f"s_add_u32 s{S_MT}, s{S_MT}, s{S_T3}")
        e(f"s_and_b32 s{S_CG}, s{S_T2}, 1")
        e(f"s_lshl_b32 s{S_CG}, s{S_CG}, 3")
        e("s_lshr_b32 s3, s3, 2")
        e(f"s_add_u32 s{S_CG}, s{S_CG}, s3")
        if self.opt.get("k1rot", 1):
            e(f"s_add_u32 s{S_R}, s3, s{S_T3}")
            for _ in range(2):
                e(f"s_sub_u32 s{S_T2}, s{S_R}, 5")
                e(f"s_cmp_ge_u32 s{S_R}, 5")
                e(f"s_cselect_b32 s{S_R}, s{S_T2}, s{S_R}")
        else:
            e(f"s_mov_b32 s{S_R}, 0")
        for i in range(5):
            if i:
                e(f"s_add_u32 s{S_R}, s{S_R}, 1")
                e(f"s_cmp_eq_u32 s{S_R}, 5")
                e(f"s_cselect_b32 s{S_R}, 0, s{S_R}")
            e(f"s_lshl_b32 s{S_KS+i}, s{S_R}, 8")
            e(f"s_mul_i32 s{S_KF+i}, s{S_R}, {128*3456}")
        e(f"s_lshl_b32 s{S_W4K}, s{S_W}, 12")
        e(f"s_lshl_b32 s{S_XB}, s{S_MT}, 2")
        e(f"s_add_u32 s{S_XB}, s{S_XB}, s{S_W}")
        e(f"s_mul_i32 s{S_XB}, s{S_XB}, {32*1280}")
        a, xr = V_X + 4, V_X + 5
        e(f"v_lshrrev_b32 v{a}, 4, v{V_LANE}")
        e(f"v_and_b32 v{xr}, 15, v{V_LANE}")
        e(f"v_xor_b32 v{xr}, v{xr}, v{a}")
        e(f"v_lshlrev_b32 v{xr}, 4, v{xr}")
        e(f"v_mul_u32_u24 v{a}, 1280, v{a}")
        for q in range(4):
            e(f"v_xor_b32 v{V_OS+q}, {64*q}, v{xr}")
            e(f"v_add_u32 v{V_OS+q}, v{V_OS+q}, v{a}")
            e(f"v_add_u32 v{V_X+q}, {(16*(q&1) + 4*(q>>1))*1280 - 1024*q}, v{V_OS+q}")
            if q:
                e(f"v_add_u32 v{V_OS+q}, {4*q*1280 - 1024*q}, v{V_OS+q}")
        e(f"s_cmp_ge_u32 s{S_CG}, 8")
        e(f"s_cselect_b32 s{S_T2}, 1, 0")
        e(f"s_sub_u32 s{S_SB}, s{S_CG}, s{S_T2}")
        e(f"s_lshl_b32 s{S_D1}, s{S_SB}, 1")
        e(f"s_mov_b32 s{S_TYPE}, 0")
        e(f"s_cmp_eq_u32 s{S_CG}, 14")
        e(f"s_cselect_b32 s{S_TYPE}, 1, s{S_TYPE}")
        e(f"s_cmp_eq_u32 s{S_CG}, 7")
        e(f"s_cselect_b32 s{S_TYPE}, 2, s{S_TYPE}")
        e(f"s_cselect_b32 s{S_SB}, 14, s{S_SB}")
        e(f"s_cmp_eq_u32 s{S_CG}, 15")
        e(f"s_cselect_b32 s{S_TYPE}, 2, s{S_TYPE}")
        e(f"s_cselect_b32 s{S_SB}, 17, s{S_SB}")
        e(f"v_and_b32 v{V_SEG}, 31, v{V_LANE}")
        e(f"s_lshl_b32 s{S_T2}, s{S_SB}, 6")
        e(f"v_lshl_add_u32 v{V_PUB}, v{V_SEG}, 1, s{S_T2}")
        e(f"v_mov_b32 v{V_XW}, {EPOCH_OFF}")
        e("s_waitcnt lgkmcnt(0)")
        self.mk_srd(SX, K_X, X_BYTES)
        self.mk_srd(SWS, K_WS, WS_USED)
        if self.opt.get("stamp"):
            e(f"s_lshl_b32 s{S_STB}, s2, 2"); e(f"s_add_u32 s{S_STB}, s{S_STB}, s{S_W}")
            e(f"s_lshl_b32 s{S_STB}, s{S_STB}, 6"); e(f"s_add_u32 s{S_STB}, s{S_STB}, {STAMP1_OFF}")
        PR = V_AS
        t_ep = e(f"buffer_load_dword v{PR+9}, v{V_XW}, {srd(SWS)}, 0 offen sc1")
        t_par = None
        for b in range(3):
            for k, ptr in enumerate((K_LRE, K_LIM, K_LDT)):
                if b:
                    e(f"v_min_u32 v{V_XR}, {1278 - 64*b}, v{V_PUB}")
                    t_par = e(f"global_load_ushort v{PR+3*b+k}, v{V_XR}, s[{ptr}:{ptr+1}] offset:{64*b}")
                else:
                    t_par = e(f"global_load_ushort v{PR+3*b+k}, v{V_PUB}, s[{ptr}:{ptr+1}]")
        xt = {}

        def x_issue(i):
            b3 = i % 3
            for hh in range(2):
                e(f"s_add_u32 m0, s{S_W4K}, {(2 + b3 + 3*hh)*16384}")
                e(f"s_add_u32 s{S_T0}, s{S_XB}, s{S_KS+i}")
                if hh:
                    e(f"s_add_u32 s{S_T0}, s{S_T0}, 10240")
                for q in range(4):
                    xt[i] = e(f"buffer_load_dwordx4 v{V_X+q}, {srd(SX)}, s{S_T0} offen offset:{1024*q} lds")
        for i in range(3):
            x_issue(i)
        self.stamp(0)
        e(f"s_cmp_ge_u32 s{S_W}, 2")
        e(f"s_cselect_b32 s{SS}, s{K_BIM}, s{K_BRE}"); e(f"s_cselect_b32 s{SS+1}, s{K_BIM+1}, s{K_BRE+1}")
        e(f"s_cselect_b32 s{SF}, s{K_WU}, s{K_WG}"); e(f"s_cselect_b32 s{SF+1}, s{K_WU+1}, s{K_WG+1}")
        e(f"s_mov_b32 s{SS+2}, {SQ_BYTES}"); e(f"s_mov_b32 s{SS+3}, 0x20000")
        e(f"s_mov_b32 s{SF+2}, {FF_BYTES}"); e(f"s_mov_b32 s{SF+3}, 0x20000")
        e(f"s_and_b32 s{S_T2}, s{S_W}, 1")
        e(f"s_lshl_b32 s{S_SBROW}, s{S_SB}, 1")
        e(f"s_add_u32 s{S_SBROW}, s{S_SBROW}, s{S_T2}")
        e(f"s_mul_i32 s{S_SBROW}, s{S_SBROW}, {16*1280}")
        e(f"s_lshr_b32 s{S_T3}, s{S_W}, 1")
        e(f"s_lshl_b32 s{S_A2ROW}, s{S_MT}, 1")
        e(f"s_add_u32 s{S_A2ROW}, s{S_A2ROW}, s{S_T3}")
        e(f"s_mul_i32 s{S_A2ROW}, s{S_A2ROW}, {94*4096}")
        e(f"s_lshl_b32 s{S_T3}, s{S_T2}, 11")
        e(f"s_add_u32 s{S_A2ROW}, s{S_A2ROW}, s{S_T3}")
        e(f"s_lshl_b32 s{S_KD1}, s{S_D1}, 13")
        e(f"s_add_u32 s{S_KD1}, s{S_KD1}, s{S_A2ROW}")
        e(f"s_add_u32 s{S_KD2}, s{S_KD1}, 8192")
        e(f"s_lshl_b32 s{S_D1}, s{S_D1}, 7")
        e(f"s_mul_i32 s{S_T3}, s{S_T2}, {32*3456}")
        e(f"s_add_u32 s{S_D1}, s{S_D1}, s{S_T3}")
        e(f"s_add_u32 s{S_D2}, s{S_D1}, 128")
        e(f"s_cmp_eq_u32 s{S_TYPE}, 1")
        e(f"s_cselect_b32 s{S_D2}, {OOB}, s{S_D2}")
        e(f"s_mov_b32 s{S_MASK}, 0xffff0000")
        e(f"s_mov_b32 s{S_GK2}, {fx(GK2)}")
        e(f"v_mov_b32 v{V_GK1}, {fx(GK1)}")
        e(f"s_mov_b32 s{S_HM}, 0"); e(f"s_mov_b32 s{S_HM+1}, -1")
        h, c, t0, t1 = V_X + 4, V_SEG, V_X + 5, V_X + 6
        e(f"v_lshrrev_b32 v{h}, 5, v{V_LANE}")
        e(f"v_lshrrev_b32 v{t0}, 3, v{V_LANE}")
        e(f"v_mul_u32_u24 v{t0}, 3456, v{t0}")
        e(f"v_bfe_u32 v{t1}, v{V_LANE}, 4, 1")
        e(f"v_lshlrev_b32 v{t1}, 2, v{t1}")
        e(f"v_and_b32 v{V_OF}, 7, v{V_LANE}")
        e(f"v_xor_b32 v{V_OF}, v{V_OF}, v{t1}")
        e(f"v_lshl_add_u32 v{V_OF}, v{V_OF}, 4, v{t0}")
        for q in range(1, 4):
            e(f"v_add_u32 v{V_OF+q}, {q*(8*3456 - 1024)}, v{V_OF}")
        e(f"v_bfe_u32 v{t0}, v{V_LANE}, 2, 2")
        e(f"v_lshl_add_u32 v{t1}, v{h}, 3, v{t0}")
        e(f"v_lshlrev_b32 v{V_TR}, 7, v{t1}")
        e(f"v_lshrrev_b32 v{t0}, 1, v{t0}")
        e(f"v_lshl_add_u32 v{V_TR}, v{t0}, 6, v{V_TR}")
        e(f"v_bfe_u32 v{t0}, v{V_LANE}, 4, 1")
        e(f"v_lshl_add_u32 v{V_TR}, v{t0}, 5, v{V_TR}")
        e(f"v_and_b32 v{t0}, 3, v{V_LANE}")
        e(f"v_lshl_add_u32 v{V_TR}, v{t0}, 3, v{V_TR}")
        e(f"v_xor_b32 v{V_TR+1}, 64, v{V_TR}")
        e(f"v_add_u32 v{V_TR+2}, 0x10000, v{V_TR}")
        e(f"v_add_u32 v{V_TR+3}, 0x10000, v{V_TR+1}")
        e(f"v_lshrrev_b32 v{t1}, 3, v{c}")
        e(f"v_lshl_add_u32 v{t1}, v{t1}, 2, v{t0}")
        e(f"v_lshl_add_u32 v{V_STA}, v{h}, 4, v{t1}")
        e(f"v_lshlrev_b32 v{V_STA}, 4, v{V_STA}")
        e(f"v_bfe_u32 v{t0}, v{c}, 2, 1")
        e(f"v_lshl_add_u32 v{V_STA}, v{t0}, 10, v{V_STA}")
        e(f"v_lshl_add_u32 v{V_TW+2}, v{t0}, 4, v{t1}")
        e(f"v_lshlrev_b32 v{V_X+7}, 3, v{V_TW+2}")
        e(f"v_cndmask_b32 v{V_X+7}, v{V_X+7}, v{V_XW}, s[{S_HM}:{S_HM+1}]")
        e(f"v_lshlrev_b32 v{V_LBO+1}, 4, v{c}")
        e(f"v_sub_u32 v{t0}, s{S_MT}, v{h}")
        e(f"v_lshl_add_u32 v{V_LBO}, v{t0}, 9, v{V_LBO+1}")
        e(f"s_add_u32 s{S_T2}, s{S_MT}, 1")
        e(f"s_lshl_b32 s{S_T2}, s{S_T2}, 9")
        e(f"s_cmp_eq_u32 s{S_W}, 3")
        e(f"s_cselect_b32 s{S_T2}, s{S_T2}, {OOB}")
        e(f"v_add_u32 v{t0}, s{S_T2}, v{V_LBO+1}")
        e(f"v_mov_b32 v{t1}, {OOB}")
        p.wait(t_par)
        e(f"v_cndmask_b32 v{V_PUB}, v{t1}, v{t0}, s[{S_HM}:{S_HM+1}]")
        e(f"v_readfirstlane_b32 s{S_EPOCH}, v{PR+9}")
        e(f"v_lshlrev_b32 v{V_XR}, 6, v{c}")
        e(f"v_add_u32 v{V_XR}, {XCH}, v{V_XR}")
        e(f"s_mul_i32 s{S_J1}, s{S_W}, {SCR_W}")
        e(f"s_add_u32 s{S_J1}, s{S_J1}, {LDS_SCR}")
        e(f"v_mul_u32_u24 v{V_TW}, {16*144}, v{h}")
        e(f"v_lshl_add_u32 v{V_TW}, v{c}, 2, v{V_TW}")
        e(f"v_add_u32 v{V_TW}, s{S_J1}, v{V_TW}")
        e(f"v_and_b32 v{t0}, 15, v{V_LANE}")
        e(f"v_mul_u32_u24 v{t0}, 144, v{t0}")
        e(f"v_lshrrev_b32 v{t1}, 4, v{V_LANE}")
        e(f"v_lshl_add_u32 v{V_TW+1}, v{t1}, 4, v{t0}")
        e(f"v_add_u32 v{V_TW+1}, s{S_J1}, v{V_TW+1}")
        e(f"v_lshlrev_b32 v{V_TW+2}, 4, v{V_LANE}")
        e(f"s_lshl_b32 s{S_T2}, s{S_W}, 1")
        e(f"v_add_u32 v{V_SEG}, s{S_T2}, v{h}")
        e(f"v_lshl_add_u32 v{V_XW}, v{V_SEG}, 3, v{V_XR}")
        e(f"s_add_u32 s{S_EPOCH}, s{S_EPOCH}, 1")
        for b in range(3):
            if b == 1:
                e(f"s_cmp_lg_u32 s{S_TYPE}, 2")
                e("s_cbranch_scc1 K1_CONST_DONE")
            for x in self.ssm_consts(b, PR + 3 * b, RAW):
                e(x)
        p.label("K1_CONST_DONE")
        z = RAW
        e(f"v_mov_b32 v{z}, 0"); e(f"v_mov_b32 v{z+1}, s{S_EPOCH}"); e(f"v_mov_b32 v{z+2}, 0"); e(f"v_mov_b32 v{z+3}, s{S_EPOCH}")
        for b in range(3):
            for x in self.ex_base(S_T2, b):
                e(x)
            if b:
                e(f"s_cmp_eq_u32 s{S_TYPE}, 2")
                e(f"s_cselect_b32 s{S_T2}, s{S_T2}, {OOB}")
            e(f"buffer_store_dwordx4 v[{z}:{z+3}], v{V_LBO+1}, {srd(SWS)}, s{S_T2} offen sc1")
        rho15, key = V_X + 5, V_X + 6
        e(f"v_and_b32 v{rho15}, 15, v{V_LANE}")
        e(f"v_xor_b32 v{key}, v{rho15}, v{h}")
        e(f"v_lshlrev_b32 v{key}, 4, v{key}")
        e(f"v_lshl_add_u32 v{key}, v{rho15}, 8, v{key}")
        e(f"v_bfe_u32 v{rho15}, v{V_LANE}, 4, 1")
        e(f"v_mul_u32_u24 v{h}, {3*16384}, v{rho15}")
        e(f"s_add_u32 s{S_T2}, s{S_W4K}, {2*16384}")
        e(f"v_add_u32 v{h}, s{S_T2}, v{h}")
        e(f"v_lshlrev_b32 v{rho15}, 12, v{rho15}")
        for s in range(8):
            e(f"v_xor_b32 v{V_AS+s}, {32*s}, v{key}")
            e(f"v_add_u32 v{V_AS+8+s}, v{V_AS+s}, v{h}")
            e(f"v_add_u32 v{V_AS+s}, v{V_AS+s}, v{rho15}")
        sm, sq = V_PRE, V_PRE + 1
        e(f"v_mov_b32 v{sm}, 0"); e(f"v_mov_b32 v{sq}, 0")
        e(f"s_mov_b32 s{S_J2}, 0x3f803f80")

        def x_read(i):
            p.wait(xt[i])
            t = None
            for s in range(8):
                r = RAW + 32 * i + 4 * s
                t = e(f"ds_read_b128 v[{r}:{r+3}], v{V_AS+8+s} offset:{(i%3)*16384}")
            return t

        def x_stats(i):
            for k in range(32):
                r = RAW + 32 * i + k
                e(f"v_dot2c_f32_bf16 v{sm}, s{S_J2}, v{r}")
                e(f"v_dot2c_f32_bf16 v{sq}, v{r}, v{r}")
        t = x_read(0); p.wait(t); x_issue(3); x_stats(0)
        t = x_read(1); p.wait(t); x_issue(4)
        self.issue_stage(0, "S", 0, 0)
        self.issue_stage(1, "S", 1, 0)
        x_stats(1)
        t = x_read(2); p.wait(t); x_stats(2)
        t = x_read(3); p.wait(t); self.issue_stage(2, "S", 2, 0); x_stats(3)
        t = x_read(4); p.wait(t); self.issue_stage(3, "S", 3, 0); self.issue_stage(4, "S", 4, 0); x_stats(4)
        self.stamp(1)
        u = V_X + 8
        e(f"v_mov_b32 v{u}, v{sm}"); e(f"v_mov_b32 v{u+1}, v{sq}")
        e(f"v_permlane32_swap_b32 v{sm}, v{u}"); e(f"v_permlane32_swap_b32 v{sq}, v{u+1}")
        e(f"v_add_f32 v{sm}, v{sm}, v{u}"); e(f"v_add_f32 v{sq}, v{sq}, v{u+1}")
        e(f"v_mul_f32 v{sm}, {fx(1/640)}, v{sm}"); e(f"v_mul_f32 v{sq}, {fx(1/640)}, v{sq}")
        e(f"v_fma_f32 v{sq}, -v{sm}, v{sm}, v{sq}")
        e(f"v_max_f32 v{sq}, 0, v{sq}")
        e(f"v_cvt_pk_bf16_f32 v{u}, v{sq}, v{sm}")
        e(f"v_lshlrev_b32 v{sq}, 16, v{u}"); e(f"v_and_b32 v{sm}, s{S_MASK}, v{u}")
        e(f"v_add_f32 v{sq}, {fx(1e-5)}, v{sq}")
        e(f"v_cvt_pk_bf16_f32 v{sq}, v{sq}, v{sq}"); e(f"v_lshlrev_b32 v{sq}, 16, v{sq}")
        e(f"v_sqrt_f32 v{sq}, v{sq}")
        e(f"v_cvt_pk_bf16_f32 v{sq}, v{sq}, v{sq}"); e(f"v_lshlrev_b32 v{sq}, 16, v{sq}")
        e(f"v_rcp_f32 v{u}, v{sq}")
        e(f"v_mul_f32 v{u+2}, v{sm}, v{u}")
        e(f"v_mov_b32 v{u+1}, v{u}")
        e(f"v_sub_f32 v{u+2}, 0, v{u+2}")
        e(f"v_mov_b32 v{u+3}, v{u+2}")
        e(f"v_mov_b32 v{sm}, v{u}"); e(f"v_mov_b32 v{sq}, v{u+2}")
        e(f"s_lshl_b32 s{S_T2}, s{S_MT}, 2"); e(f"s_add_u32 s{S_T2}, s{S_T2}, s{S_W}")
        e(f"s_lshl_b32 s{S_T2}, s{S_T2}, 8"); e(f"s_add_u32 s{S_T2}, s{S_T2}, {STATS_OFF}")
        e(f"s_cmp_eq_u32 s{S_CG}, 0"); e(f"s_cselect_b32 s{S_T2}, s{S_T2}, {OOB}")
        e(f"v_mov_b32 v{V_X+4}, v{u}"); e(f"v_mov_b32 v{V_X+5}, v{u+2}")
        e(f"buffer_store_dwordx2 v[{V_X+4}:{V_X+5}], v{V_X+7}, {srd(SWS)}, s{S_T2} offen")
        for k in range(160):
            r = RAW + k
            t = V_X + 2 * (k % 2)
            e(f"v_lshlrev_b32 v{t}, 16, v{r}"); e(f"v_and_b32 v{t+1}, s{S_MASK}, v{r}")
            e(f"v_pk_fma_f32 v[{t}:{t+1}], v[{t}:{t+1}], v[{u}:{u+1}], v[{u+2}:{u+3}]")
            e(f"v_cvt_pk_bf16_f32 v{r}, v{t}, v{t+1}")
            e(f"v_accvgpr_write_b32 a{XN+k}, v{r}")
            if k == 23:
                self.side_issue()
        for s in range(8):
            e(f"v_add_u32 v{V_AS+8+s}, 0x10000, v{V_AS+s}")
        self.side_finish()
        self.stamp(2)

    def w2f_addr(self, dst, b16, kstep):
        e = self.p.e
        e(f"s_mul_hi_u32 s{S_T0}, s{b16}, 0x33333334")
        e(f"s_mul_i32 s{S_T1}, s{S_T0}, 5")
        e(f"s_sub_u32 s{S_T1}, s{b16}, s{S_T1}")
        e(f"s_mul_i32 s{S_T0}, s{S_T0}, 94")
        e(f"s_add_u32 s{S_T0}, s{S_T0}, s{kstep}")
        e(f"s_mul_i32 s{S_T0}, s{S_T0}, 5")
        e(f"s_add_u32 s{S_T0}, s{S_T0}, s{S_T1}")
        e(f"s_lshl_b32 s{dst}, s{S_T0}, 10")
        e(f"s_add_u32 s{dst}, s{dst}, {W2F_OFF}")

    def side_issue(self):
        p, e = self.p, self.p.e
        A = RAW + 16
        e(f"s_lshl_b32 s{S_JOB}, s2, 2"); e(f"s_add_u32 s{S_JOB}, s{S_JOB}, s{S_W}")
        e(f"s_cmp_ge_u32 s{S_JOB}, 540")
        e(f"s_cselect_b32 s{S_T2}, 540, 0")
        e(f"s_sub_u32 s{S_T2}, s{S_JOB}, s{S_T2}")
        e(f"s_mul_hi_u32 s{S_SPIN}, s{S_T2}, 0x1999999a")
        e(f"s_mul_i32 s{S_T3}, s{S_SPIN}, 10")
        e(f"s_sub_u32 s{S_J2}, s{S_T2}, s{S_T3}")
        e(f"s_sub_u32 s{S_T2}, s{S_JOB}, 540")
        e(f"s_cmp_lt_u32 s{S_T2}, 400")
        e("s_cbranch_scc1 K1_SJ_C")
        vq, vd = p.vq, p.vdone
        self.mk_srd(SA1, K_WD, FF_BYTES)
        e(f"v_lshrrev_b32 v{A}, 3, v{V_LANE}")
        e(f"v_mul_u32_u24 v{A}, 1280, v{A}")
        e(f"v_and_b32 v{A+1}, 7, v{V_LANE}")
        e(f"v_lshl_add_u32 v{A}, v{A+1}, 4, v{A}")
        for q in range(1, 4):
            e(f"v_add_u32 v{A+q}, {q*(8*1280 - 1024)}, v{A}")
        e(f"s_mul_i32 s{S_T2}, s{S_SPIN}, {32*1280}")
        e(f"s_lshl_b32 s{S_T3}, s{S_J2}, 7")
        e(f"s_add_u32 s{S_T2}, s{S_T2}, s{S_T3}")
        e(f"s_cmp_lt_u32 s{S_JOB}, 540")
        e(f"s_cselect_b32 s{S_T2}, s{S_T2}, {OOB}")
        e(f"s_mov_b32 m0, s{S_J1}")
        for q in range(4):
            e(f"buffer_load_dwordx4 v{A+q}, {srd(SA1)}, s{S_T2} offen offset:{1024*q} lds")
        e("s_branch K1_SJ_ISSUED")
        p.label("K1_SJ_C")
        p.vq, p.vdone = vq, vd
        self.mk_srd(SA1, K_CRE, SQ_BYTES)
        self.mk_srd(SA2, K_CIM, SQ_BYTES)
        e(f"v_lshrrev_b32 v{A}, 2, v{V_LANE}")
        e(f"v_mul_u32_u24 v{A}, 1280, v{A}")
        e(f"v_and_b32 v{A+1}, 3, v{V_LANE}")
        e(f"v_lshl_add_u32 v{A}, v{A+1}, 4, v{A}")
        e(f"s_mul_i32 s{S_T2}, s{S_SPIN}, {16*1280}")
        e(f"s_lshl_b32 s{S_T3}, s{S_J2}, 7")
        e(f"s_add_u32 s{S_T2}, s{S_T2}, s{S_T3}")
        for half in range(2):
            e(f"buffer_load_dwordx4 v[{RAW+8*half}:{RAW+8*half+3}], v{A}, {srd(SA1)}, s{S_T2} offen offset:{64*half}")
            self.sj_tok = e(f"buffer_load_dwordx4 v[{RAW+8*half+4}:{RAW+8*half+7}], v{A}, {srd(SA2)}, s{S_T2} offen offset:{64*half}")
        p.label("K1_SJ_ISSUED")

    def side_finish(self):
        p, e = self.p, self.p.e
        A = RAW + 16
        O = RAW + 24
        p.wait(self.sj_tok)
        e(f"s_sub_u32 s{S_T2}, s{S_JOB}, 540")
        e(f"s_cmp_lt_u32 s{S_T2}, 400")
        e("s_cbranch_scc1 K1_SF_C")
        vq, vd = p.vq, p.vdone
        e(f"v_lshrrev_b32 v{A}, 5, v{V_LANE}")
        e(f"v_lshlrev_b32 v{A}, 4, v{A}")
        e(f"v_bfe_u32 v{A+1}, v{V_LANE}, 2, 3")
        e(f"v_add_u32 v{A}, v{A}, v{A+1}")
        e(f"v_lshlrev_b32 v{A}, 7, v{A}")
        e(f"v_and_b32 v{A+1}, 3, v{V_LANE}")
        e(f"v_lshl_add_u32 v{A}, v{A+1}, 3, v{A}")
        e(f"v_add_u32 v{A}, s{S_J1}, v{A}")
        tk = []
        for cb in range(4):
            e(f"ds_read_b64_tr_b16 v[{O+4*cb}:{O+4*cb+1}], v{A} offset:{32*cb}")
            tk.append(e(f"ds_read_b64_tr_b16 v[{O+4*cb+2}:{O+4*cb+3}], v{A} offset:{32*cb + 1024}"))
        e(f"s_lshl_b32 s{S_J2}, s{S_J2}, 2")
        for cb in range(4):
            self.w2f_addr(S_T2, S_J2, S_SPIN)
            e(f"s_cmp_lt_u32 s{S_JOB}, 540")
            e(f"s_cselect_b32 s{S_T2}, s{S_T2}, {OOB}")
            e(f"s_add_u32 s{S_J2}, s{S_J2}, 1")
            p.wait(tk[cb])
            e(f"buffer_store_dwordx4 v[{O+4*cb}:{O+4*cb+3}], v{V_TW+2}, {srd(SWS)}, s{S_T2} offen")
        e("s_branch K1_SF_DONE")
        p.label("K1_SF_C")
        p.vq, p.vdone = vq, vd
        e(f"v_bfe_u32 v{A}, v{V_LANE}, 1, 1")
        e(f"v_mul_u32_u24 v{A}, 5120, v{A}")
        e(f"v_and_b32 v{A+1}, 1, v{V_LANE}")
        e(f"v_lshl_add_u32 v{A}, v{A+1}, 9, v{A}")
        e(f"v_lshrrev_b32 v{A+1}, 2, v{V_LANE}")
        e(f"v_lshl_add_u32 v{A}, v{A+1}, 4, v{A}")
        e(f"s_lshl_b32 s{S_J2}, s{S_J2}, 2")
        e(f"s_add_u32 s{S_J2}, s{S_J2}, 54")
        self.w2f_addr(S_T2, S_SPIN, S_J2)
        e(f"s_add_u32 s{S_T3}, s{S_T2}, 10240")
        e(f"s_mov_b32 s{S_T0}, 0x05040100")
        e(f"s_mov_b32 s{S_T1}, 0x07060302")
        for half in range(2):
            re, im = RAW + 8 * half, RAW + 8 * half + 4
            o = O + 8 * half
            for k in range(4):
                e(f"v_perm_b32 v{o+2*k}, v{im+k}, v{re+k}, s{S_T0}")
                e(f"v_perm_b32 v{o+2*k+1}, v{im+k}, v{re+k}, s{S_T1}")
            so = S_T3 if half else S_T2
            e(f"buffer_store_dwordx4 v[{o}:{o+3}], v{A}, {srd(SWS)}, s{so} offen")
            e(f"buffer_store_dwordx4 v[{o+4}:{o+7}], v{A}, {srd(SWS)}, s{so} offen offset:256")
        p.label("K1_SF_DONE")

    def arrive(self):
        e = self.p.e
        e(f"s_cmp_eq_u32 s{S_W}, 0")
        e(f"s_cselect_b32 s{S_J2}, 0, {OOB}")
        self.mk_srd(SA1, K_DBG, 256)
        e(f"v_mov_b32 v0, 1")
        e("s_mov_b64 exec, 1")
        self.arr_tok = e(f"buffer_atomic_add v0, off, {srd(SA1)}, s{S_J2} sc0")
        e("s_mov_b64 exec, -1")

    def finish(self, k):
        p, e = self.p, self.p.e
        self.stamp(k)
        p.wait(self.arr_tok)
        e(f"v_readfirstlane_b32 s{S_T2}, v0")
        e(f"s_cmp_eq_u32 s{S_W}, 0")
        e(f"s_cselect_b32 s{S_T2}, s{S_T2}, 0")
        e(f"s_cmp_eq_u32 s{S_T2}, 255")
        e(f"s_cselect_b32 s{S_T2}, {EPOCH_OFF}, {OOB}")
        e(f"v_mov_b32 v0, s{S_EPOCH}")
        e(f"buffer_store_dword v0, off, {srd(SWS)}, s{S_T2} sc1")
        if self.opt.get("stamp"):
            p.wait_all()
            self.stamp(k + 1)
        e("s_endpgm")

    def snapshot(self):
        p = self.p
        return (p.vq, p.vdone, p.lq, p.ldone, dict(self.stage_tok), list(self.pre_barrier), self.nbar, self.mf,
                set(self.seen), list(self.fill), getattr(self, "arr_tok", None))

    def restore(self, s):
        p = self.p
        (p.vq, p.vdone, p.lq, p.ldone, st, pb, self.nbar, self.mf, seen, fill, self.arr_tok) = s
        self.stage_tok, self.pre_barrier, self.seen, self.fill = dict(st), list(pb), set(seen), list(fill)

    def build(self):
        p, e, o = self.p, self.p.e, self.opt
        self.prologue()
        e(f"s_cmp_eq_u32 s{S_TYPE}, 2")
        e("s_cbranch_scc1 K1_TYPE_C")
        snap = self.snapshot()
        self.after_first_barrier = self.arrive
        stages = [("S", i, 0) for i in range(5)] + [("F", i, S_D1) for i in range(10)] + [("F", i, S_D2) for i in range(10)]
        plan = {n: (lambda n=n: self.issue_stage(n + 6, *stages[n + 6])) for n in range(len(stages) - 6)}
        self.issue_stage(5, *stages[5])
        frags = self.s_frags(0, ACC_S) + self.d_frags(5, ACC_D1)
        m0 = self.mf
        g1, g2 = o.get("lb_issue", 80 + 90), o.get("lb_check", 80 + 110)

        def start_ssm():
            self.stamp(3)
            self.ssm_reduce(0, ACC_S)
            self.ssm_finish(0, ACC_S, 188, lambda: self.mf - m0 >= g1, lambda: self.mf - m0 >= g2, "A")
        split = {}

        def at_d2():
            self.stamp(4)
            e(f"s_cmp_eq_u32 s{S_TYPE}, 1")
            e("s_cbranch_scc1 K1_TYPE_B_TAIL")
            split["s"] = self.snapshot()
            self.ffn_epilogue(ACC_D1, S_KD1)
        frags2 = frags + self.d_frags(15, ACC_D2)
        self.gemm(frags2, plan, {81: start_ssm, 240: at_d2})
        self.stamp(5)
        self.ffn_epilogue(ACC_D2, S_KD2)
        self.flush()
        self.finish(6)
        slow_a = list(self.slow)
        p.label("K1_TYPE_B_TAIL")
        self.restore(split["s"])
        self.b_tail = True
        p.wait_all(vm=False)
        self.mf += 1000
        self.retag = "B"
        self.ffn_epilogue(ACC_D1, S_KD1)
        self.flush()
        self.finish(6)
        p.label("K1_TYPE_C")
        self.restore(snap)
        self.retag = None
        self.after_first_barrier = self.arrive
        stages = [("S", i % 5, i // 5) for i in range(15)]
        plan = {n: (lambda n=n: self.issue_stage(n + 6, *stages[n + 6])) for n in range(len(stages) - 6)}
        self.issue_stage(5, *stages[5])
        frags = self.s_frags(0, 16) + self.s_frags(5, 48) + self.s_frags(10, 80)
        m0 = self.mf

        def c1():
            self.stamp(3)
            self.ssm_reduce(0, 16)

        def c2():
            self.stamp(4)
            self.ssm_reduce(1, 48)
            self.ssm_finish(0, 16, 112, None, lambda: self.mf - m0 >= 215, "C0")
        self.gemm(frags, plan, {81: c1, 161: c2})
        self.stamp(5)
        self.mf += 1000
        self.flush()
        self.ssm_reduce(2, 80)
        self.ssm_finish(1, 48, 112, None, None, "C1")
        self.ssm_finish(2, 80, 112, None, None, "C2")
        self.flush()
        self.finish(6)
        self.slow_paths()
        p.label("K1_END")
        e("s_endpgm")
        p.fix_hazards()
        return p


K1_DESC = """
.amdhsa_kernel proj_kernel
  .amdhsa_next_free_vgpr 512
  .amdhsa_next_free_sgpr 102
  .amdhsa_accum_offset 256
  .amdhsa_group_segment_fixed_size 0
  .amdhsa_kernarg_size 128
  .amdhsa_user_sgpr_count 2
  .amdhsa_user_sgpr_kernarg_segment_ptr 1
  .amdhsa_system_sgpr_workgroup_id_x 1
  .amdhsa_float_denorm_mode_32 3
.end_amdhsa_kernel
"""
```

```python
from asmlib import Prog
from layout import *


def gen_k2(opt):
    p = Prog()
    e = p.e
    p.raw(".p2align 8")
    p.label("gemm2_kernel")
    e("s_cmp_ge_u32 s2, 256")
    e("s_cbranch_scc1 K2_END")
    e("s_load_dwordx2 s[36:37], s[0:1], 0")
    e("s_load_dwordx2 s[52:53], s[0:1], 64")
    e("s_load_dwordx2 s[62:63], s[0:1], 104")
    e("s_load_dwordx2 s[66:67], s[0:1], 120")
    if opt.get("stamp"):
        e("s_memrealtime s[70:71]")
    e("v_lshrrev_b32 v1, 6, v0")
    e("v_and_b32 v2, 63, v0")
    e("v_readfirstlane_b32 s4, v1")
    e("v_lshlrev_b32 v3, 4, v2")
    e("v_add_u32 v4, 0x1000, v3")
    e("s_and_b32 s5, s2, 7")
    e("s_lshr_b32 s6, s2, 3")
    e("s_lshr_b32 s7, s5, 1")
    e("s_lshl_b32 s7, s7, 3")
    e("s_and_b32 s28, s6, 7")
    e("s_add_u32 s7, s7, s28")
    e("s_and_b32 s5, s5, 1")
    e("s_lshl_b32 s5, s5, 2")
    e("s_lshr_b32 s29, s6, 3")
    e("s_add_u32 s5, s5, s29")
    e("s_mul_i32 s30, s4, 24")
    e("s_cmp_eq_u32 s4, 3")
    e("s_cselect_b32 s31, 1, 0")
    e("s_sub_u32 s30, s30, s31")
    e("s_lshr_b32 s31, s4, 1")
    e("s_sub_u32 s31, 24, s31")
    if opt.get("k2rot", 1):
        e("s_lshl_b32 s32, s29, 1")
        e("s_add_u32 s32, s32, s28")
        e("s_and_b32 s32, s32, 7")
        e("s_mul_i32 s32, s32, 3")
    else:
        e("s_mov_b32 s32, 0")
    e("s_mul_i32 s33, s7, 94")
    e("s_add_u32 s33, s33, s30")
    e("s_lshl_b32 s33, s33, 12")
    e("s_mul_i32 s34, s5, 94")
    e("s_add_u32 s34, s34, s30")
    e("s_mul_i32 s34, s34, 5120")
    e(f"s_add_u32 s34, s34, {W2F_OFF}")
    e("s_mov_b32 s35, 0")
    e(f"s_mov_b32 s27, {OOB}")
    e("s_waitcnt lgkmcnt(0)")
    e("s_mov_b32 s20, s66")
    e("s_mov_b32 s21, s67")
    e(f"s_mov_b32 s22, {WS_USED}")
    e("s_mov_b32 s23, 0x20000")

    BUF = 16

    def addr_step():
        e("s_lshl_b32 s24, s32, 12")
        e("s_add_u32 s24, s24, s33")
        e("s_mul_i32 s25, s32, 5120")
        e("s_add_u32 s25, s25, s34")
        e("s_cmp_lt_u32 s35, s31")
        e("s_cselect_b32 s24, s24, s27")
        e("s_cselect_b32 s25, s25, s27")
        e("s_add_u32 s35, s35, 1")
        e("s_add_u32 s32, s32, 1")
        e("s_cmp_eq_u32 s32, s31")
        e("s_cselect_b32 s32, 0, s32")

    def loads(b):
        base = BUF + 36 * b
        out = []
        for f in range(4):
            out.append(f"buffer_load_dwordx4 v[{base+4*f}:{base+4*f+3}], v3, s[20:23], s24 offen offset:{1024*f}")
        for f in range(5):
            r = base + 16 + 4 * f
            if f < 4:
                out.append(f"buffer_load_dwordx4 v[{r}:{r+3}], v3, s[20:23], s25 offen offset:{1024*f}")
            else:
                out.append(f"buffer_load_dwordx4 v[{r}:{r+3}], v4, s[20:23], s25 offen")
        return out

    for b in range(3):
        addr_step()
        for l in loads(b):
            e(l)
    for i in range(80):
        e(f"v_accvgpr_write_b32 a{i}, 0")
    e("s_mov_b32 s26, 6")
    p.raw(".p2align 6")
    p.label("K2_LOOP")
    for b in range(4):
        base = BUF + 36 * b
        addr_step()
        e("s_waitcnt vmcnt(18)")
        ld = loads((b + 3) % 4)
        k = 0
        for cb in range(5):
            for rb in range(4):
                acc = (cb * 4 + rb) * 4
                wr = base + 16 + 4 * cb
                ar = base + 4 * rb
                e(f"v_mfma_f32_16x16x32_bf16 a[{acc}:{acc+3}], v[{wr}:{wr+3}], v[{ar}:{ar+3}], a[{acc}:{acc+3}]")
                k += 1
                if k % 2 == 0 and ld:
                    e(ld.pop(0))
        assert not ld
    e("s_sub_u32 s26, s26, 1")
    e("s_cmp_lg_u32 s26, 0")
    e("s_cbranch_scc1 K2_LOOP")
    p.vq = p.vdone = 0
    e("s_mov_b32 s8, s36"); e("s_mov_b32 s9, s37"); e(f"s_mov_b32 s10, {X_BYTES}"); e("s_mov_b32 s11, 0x20000")
    e("s_mov_b32 s12, s52"); e("s_mov_b32 s13, s53"); e("s_mov_b32 s14, 1280"); e("s_mov_b32 s15, 0x20000")
    e("s_mov_b32 s16, s62"); e("s_mov_b32 s17, s63"); e(f"s_mov_b32 s18, {OUT_BYTES}"); e("s_mov_b32 s19, 0x20000")
    e("s_lshl_b32 s28, s7, 6")
    e("s_lshl_b32 s29, s4, 4")
    e("s_add_u32 s28, s28, s29")
    e("s_mul_i32 s29, s5, 160")
    e("s_mul_i32 s30, s28, 1280")
    e("s_add_u32 s30, s30, s29")
    e("s_lshl_b32 s31, s30, 1")
    e("s_lshl_b32 s33, s28, 3")
    e(f"s_add_u32 s33, s33, {STATS_OFF}")
    e("s_mul_i32 s34, s4, 5376")
    e("s_mov_b32 s35, 0xcccd")
    e("s_waitcnt vmcnt(0)")
    XR, DR, SR, OA, LA = 160, 170, 180, 190, 195
    toks = []
    for i in range(5):
        e(f"v_add_u32 v5, {64*i}, v2")
        e("v_mul_lo_u32 v6, v5, s35")
        e("v_lshrrev_b32 v6, 20, v6")
        e("v_mul_u32_u24 v7, 20, v6")
        e("v_sub_u32 v7, v5, v7")
        e("v_lshlrev_b32 v8, 3, v7")
        e("v_mul_u32_u24 v9, 1280, v6")
        e("v_add_u32 v9, v9, v8")
        e(f"v_lshlrev_b32 v{OA+i}, 1, v9")
        e("v_lshlrev_b32 v10, 3, v6")
        e("v_mul_u32_u24 v11, 336, v6")
        e("v_lshl_add_u32 v11, v7, 4, v11")
        e(f"v_add_u32 v{LA+i}, s34, v11")
        t1 = e(f"buffer_load_dwordx2 v[{XR+2*i}:{XR+2*i+1}], v9, s[8:11], s30 offen")
        t2 = e(f"buffer_load_dwordx2 v[{DR+2*i}:{DR+2*i+1}], v8, s[12:15], s29 offen")
        t3 = e(f"buffer_load_dwordx2 v[{SR+2*i}:{SR+2*i+1}], v10, s[20:23], s33 offen")
        toks.append(t3)
    e("v_and_b32 v5, 15, v2")
    e("v_mul_u32_u24 v5, 336, v5")
    e("v_lshrrev_b32 v6, 4, v2")
    e("v_lshl_add_u32 v5, v6, 4, v5")
    e("s_mul_i32 s35, s4, 21504")
    e("v_add_u32 v5, s35, v5")
    for cb in range(5):
        for rb in range(4):
            acc = (cb * 4 + rb) * 4
            e(f"ds_write_b128 v5, a[{acc}:{acc+3}] offset:{rb*5376 + cb*64}")
    e("s_waitcnt lgkmcnt(0)")
    p.ldone = p.lq
    e("s_barrier")
    e("s_mov_b32 s35, 0xffff0000")
    rd = []
    for i in range(5):
        tk = []
        for wv in range(4):
            r = 16 + 16 * i + 4 * wv
            tk.append(e(f"ds_read_b128 v[{r}:{r+3}], v{LA+i} offset:{wv*21504}"))
        rd.append(tk)
    for i in range(5):
        p.wait(toks[i])
        x0, d0, s0 = XR + 2 * i, DR + 2 * i, SR + 2 * i
        e(f"v_lshlrev_b32 v100, 16, v{x0}"); e(f"v_and_b32 v101, s35, v{x0}")
        e(f"v_lshlrev_b32 v102, 16, v{x0+1}"); e(f"v_and_b32 v103, s35, v{x0+1}")
        e(f"v_lshlrev_b32 v104, 16, v{d0}"); e(f"v_and_b32 v105, s35, v{d0}")
        e(f"v_lshlrev_b32 v106, 16, v{d0+1}"); e(f"v_and_b32 v107, s35, v{d0+1}")
        for k in range(4):
            e(f"v_fma_f32 v{108+k}, v{100+k}, v{s0}, v{s0+1}")
        e("v_cvt_pk_bf16_f32 v112, v108, v109"); e("v_cvt_pk_bf16_f32 v113, v110, v111")
        e("v_lshlrev_b32 v108, 16, v112"); e("v_and_b32 v109, s35, v112")
        e("v_lshlrev_b32 v110, 16, v113"); e("v_and_b32 v111, s35, v113")
        for k in range(4):
            e(f"v_mul_f32 v{108+k}, v{108+k}, v{104+k}")
        e("v_cvt_pk_bf16_f32 v112, v108, v109"); e("v_cvt_pk_bf16_f32 v113, v110, v111")
        e("v_lshlrev_b32 v108, 16, v112"); e("v_and_b32 v109, s35, v112")
        e("v_lshlrev_b32 v110, 16, v113"); e("v_and_b32 v111, s35, v113")
        for k in range(4):
            e(f"v_add_f32 v{100+k}, v{100+k}, v{108+k}")
        p.wait(rd[i][3])
        r = 16 + 16 * i
        for k in range(4):
            e(f"v_add_f32 v{r+k}, v{r+k}, v{r+4+k}")
            e(f"v_add_f32 v{r+8+k}, v{r+8+k}, v{r+12+k}")
        for k in range(4):
            e(f"v_add_f32 v{r+k}, v{r+k}, v{r+8+k}")
        for k in range(4):
            e(f"v_add_f32 v{r+k}, v{r+k}, v{100+k}")
        e(f"buffer_store_dwordx4 v[{r}:{r+3}], v{OA+i}, s[16:19], s31 offen")
    if opt.get("stamp"):
        e("s_memrealtime s[72:73]")
        e("s_waitcnt vmcnt(0) lgkmcnt(0)")
        e("s_memrealtime s[74:75]")
        e("s_lshl_b32 s28, s2, 2"); e("s_add_u32 s28, s28, s4"); e("s_lshl_b32 s28, s28, 6")
        e(f"s_add_u32 s28, s28, {STAMP2_OFF}")
        e("s_waitcnt lgkmcnt(0)")
        e("v_mov_b32 v5, 0")
        for k, sr in enumerate((70, 72, 74)):
            e(f"v_mov_b32 v6, s{sr}")
            e(f"buffer_store_dword v6, v5, s[20:23], s28 offen offset:{4*k}")
    p.label("K2_END")
    e("s_endpgm")
    n = p.fix_hazards()
    return p


K2_LDS = 4 * 21504
K2_DESC = """
.amdhsa_kernel gemm2_kernel
  .amdhsa_next_free_vgpr 280
  .amdhsa_next_free_sgpr 80
  .amdhsa_accum_offset 200
  .amdhsa_group_segment_fixed_size 0
  .amdhsa_kernarg_size 128
  .amdhsa_user_sgpr_count 2
  .amdhsa_user_sgpr_kernarg_segment_ptr 1
  .amdhsa_system_sgpr_workgroup_id_x 1
  .amdhsa_float_denorm_mode_32 3
.end_amdhsa_kernel
"""
```

```python
X_BYTES = 2048 * 640 * 2
OUT_BYTES = 2048 * 640 * 4
SQ_BYTES = 640 * 640 * 2
FF_BYTES = 640 * 1728 * 2
A2_OFF = 0
A2_BYTES = 32 * 94 * 4096
W2F_OFF = 0x00C00000
W2F_BYTES = 8 * 94 * 5120
STATS_OFF = 0x01000000
EX_OFF = 0x01010000
EX_BLK = 17 * 512
EPOCH_OFF = 0x01040000
STAMP1_OFF = 0x01050000
STAMP2_OFF = 0x01070000
WS_USED = 0x01090000
OOB = 0x40000000
PART_OFF = 0x01100000
FLAG_OFF = 0x01600000
WS_USED = 0x01620000
JF_OFF = 0x01041000
DONE_OFF = 0x01048000
```

```python
import sys, json
from k1 import K1, K1_DESC, K1_LDS
from k2 import gen_k2, K2_DESC, K2_LDS

NAME = "parallel_sum__ssm_conv_s5__glu_gated_geglu__prompt"


def build(opt):
    ref = open(f"cdna_kernels/{NAME}.s.ref").read().splitlines()
    head = [l for l in ref if l.startswith(";") and "@launch" not in l and "Override launch" not in l
            and "grid=ceil" not in l]
    out = "\n".join(head[:17]) + "\n"
    out += f"; @launch kernel=proj_kernel grid=(256,1,1) block=(256,1,1) lds={K1_LDS}\n"
    out += f"; @launch kernel=gemm2_kernel grid=(256,1,1) block=(256,1,1) lds={K2_LDS}\n"
    out += '.amdgcn_target "amdgcn-amd-amdhsa--gfx950"\n.text\n'
    out += ".globl proj_kernel\n.type proj_kernel,@function\n.globl gemm2_kernel\n.type gemm2_kernel,@function\n"
    out += K1(opt).build().text()
    out += gen_k2(opt).text()
    out += "TEXT_END:\n"
    out += '.section .rodata,"a"\n.p2align 6' + K1_DESC + ".p2align 6" + K2_DESC
    return out


if __name__ == "__main__":
    path = sys.argv[1]
    opt = json.loads(sys.argv[2]) if len(sys.argv) > 2 else {}
    open(path, "w").write(build(opt))
    print("wrote", path)
```

```python
import struct
from asmlib import Prog
from layout import *

S_W, S_MT, S_CG, S_R = 4, 5, 6, 7
SX, SS, SF, SWS, SA1, SA2 = 8, 12, 16, 20, 24, 28
S_T0, S_T1, S_T2, S_T3 = 32, 33, 34, 35
K_X, K_LRE, K_LIM, K_BRE, K_BIM, K_CRE, K_CIM, K_LDT = 36, 38, 40, 42, 44, 46, 48, 50
K_DSK, K_BX, K_WG, K_WU, K_WD, K_OUT, K_DBG, K_WS = 52, 54, 56, 58, 60, 62, 64, 66
S_KS = 68
S_KF = 73
S_W4K, S_XB, S_SB, S_SBROW, S_D1, S_D2, S_TYPE, S_EPOCH, S_MASK = 78, 79, 80, 81, 82, 83, 84, 85, 86
S_A2ROW, S_GK2, S_JOB, S_KD1, S_KD2, S_SPIN, S_J1 = 87, 88, 89, 90, 91, 92, 93
S_J2 = 3
STAMP_REGS = [96, 54, 62, 52, 36, 38, 40, 50, 66, 42, 44, 56, 58]
S_HM = 98
S_M2 = 100

V_LANE, V_OF, V_TR, V_STA, V_GK1, V_SEG, V_PUB, V_XW, V_XR = 1, 2, 6, 10, 11, 12, 13, 14, 15
RAW = 16
ACC_S, ACC_D1, ACC_D2 = 16, 48, 112
V_C = 176
V_OS = 212
V_AS = 216
V_LBO = 232
V_TW = 234
V_PRE = 237
V_STAMP = 243
V_X = 244
XN = 0
FR = 160

LDS_SCR = 131072
SCR_W = 6144
XCH = LDS_SCR + 4 * SCR_W
K1_LDS = 163840

LOG2E = 1.4426950408889634
GK1 = -2.0 * 0.7978845608028654 * LOG2E
GK2 = GK1 * 0.044715


def fx(x):
    return "0x%08x" % struct.unpack("<I", struct.pack("<f", x))[0]


def srd(n):
    return f"s[{n}:{n+3}]"


class K1:
    def __init__(self, opt):
        self.opt = opt
        self.p = Prog()
        self.fill = []
        self.stage_tok = {}
        self.pre_barrier = []
        self.nbar = 0
        self.mf = 0
        self.ring = 0
        self.seen = set()
        self.slow = []
        self.after_first_barrier = None
        self.wt = opt.get('wt', '')
        self.wtc = opt.get('wtc', '')

    def stamp(self, k):
        if not self.opt.get("stamp"):
            return
        r = STAMP_REGS[k]
        self.p.e(f"s_memtime s[{r}:{r+1}]")

    def stamp_out(self, n):
        if not self.opt.get("stamp"):
            return
        p, e = self.p, self.p.e
        self.stamp(n)
        p.wait_all()
        self.stamp(n + 1)
        e(f"s_memrealtime s[{S_M2}:{S_M2+1}]")
        e(f"s_lshl_b32 s{S_T0}, s2, 2"); e(f"s_add_u32 s{S_T0}, s{S_T0}, s{S_W}")
        e(f"s_lshl_b32 s{S_T0}, s{S_T0}, 6"); e(f"s_add_u32 s{S_T0}, s{S_T0}, {STAMP1_OFF}")
        e("s_waitcnt lgkmcnt(0)")
        for k, r in enumerate(STAMP_REGS[:n + 2]):
            e(f"v_mov_b32 v{V_STAMP}, s{r}")
            e(f"buffer_store_dword v{V_STAMP}, off, {srd(SWS)}, s{S_T0} offset:{4*k}")
        for k, r in ((14, 94), (15, S_M2)):
            e(f"v_mov_b32 v{V_STAMP}, s{r}")
            e(f"buffer_store_dword v{V_STAMP}, off, {srd(SWS)}, s{S_T0} offset:{4*k}")

    def issue_stage(self, n, kind, i, arg):
        e = self.p.e
        slot = n % 8
        e(f"s_add_u32 m0, s{S_W4K}, {slot*16384}")
        if kind == "S":
            e(f"s_add_u32 s{S_T0}, s{S_SBROW}, s{S_KS+i}")
            if arg:
                e(f"s_add_u32 s{S_T0}, s{S_T0}, {arg*32*1280}")
            vo, d = V_OS, SS
        else:
            e(f"s_add_u32 s{S_T0}, s{arg}, s{S_KF+(i>>1)}")
            if i & 1:
                e(f"s_add_u32 s{S_T0}, s{S_T0}, {64*3456}")
            vo, d = V_OF, SF
        t = None
        for q in range(4):
            t = e(f"buffer_load_dwordx4 v{vo+q}, {srd(d)}, s{S_T0} offen offset:{1024*q} lds")
        self.stage_tok[n] = t

    def barrier(self, *toks):
        p = self.p
        p.wait(*toks, *self.pre_barrier)
        self.pre_barrier = []
        p.e("s_barrier")
        self.nbar += 1
        if self.after_first_barrier:
            f, self.after_first_barrier = self.after_first_barrier, None
            f()

    def pull(self, budget):
        p = self.p
        start = p.slots
        while self.fill and p.slots - start < budget:
            it = self.fill[0]
            if isinstance(it, tuple):
                if not it[1]():
                    return
                self.fill.pop(0)
                continue
            self.fill.pop(0)
            it()

    def flush(self):
        while self.fill:
            it = self.fill.pop(0)
            if isinstance(it, tuple):
                if it[0] == "bar" and not it[1]():
                    self.barrier()
                continue
            it()

    def gemm(self, frags, plan, hooks=None):
        p = self.p
        LA = 7
        toks = {}
        n = len(frags)

        def read(idx):
            fr = frags[idx]
            st = fr["stage"]
            if st not in self.seen:
                self.seen.add(st)
                self.barrier(self.stage_tok[st])
                if st in plan:
                    plan[st]()
            r = FR + 4 * (idx % 8)
            for txt in fr["reads"]:
                toks[idx] = p.e(txt.format(f0=r, f1=r + 1, f2=r + 2, f3=r + 3))
        for idx in range(LA):
            read(idx)
        grp = self.opt.get("wgrp", 4)
        for idx in range(n):
            if hooks and idx in hooks:
                hooks[idx]()
            if idx % grp == 0:
                p.wait(toks[min(idx + grp - 1, n - 1)])
            start = p.slots
            r = FR + 4 * (idx % 8)
            p.e(frags[idx]["mfma"].format(f0=r, f3=r + 3))
            self.mf += 1
            if idx + LA < n:
                read(idx + LA)
            if self.opt.get("interleave", 1):
                self.pull(self.opt.get("budget", 8) - (p.slots - start))

    def s_frags(self, st0, acc):
        out = []
        for s in range(40):
            st = st0 + s // 8
            slot = st % 8
            for mat in range(2):
                a = V_AS + 8 * (slot // 4) + (s % 8)
                off = (slot % 4) * 16384 + mat * 8192
                c = f"v[{acc+16*mat}:{acc+16*mat+15}]"
                cin = c if s else "0"
                out.append(dict(stage=st, reads=[f"ds_read_b128 a[{{f0}}:{{f3}}], v{a} offset:{off}"],
                                mfma=f"v_mfma_f32_32x32x16_bf16 {c}, a[{XN+4*s}:{XN+4*s+3}], a[{{f0}}:{{f3}}], {cin}"))
        return out

    def d_frags(self, st0, acc):
        out = []
        for s in range(40):
            st = st0 + s // 4
            slot = st % 8
            for j in range(2):
                for mat in range(2):
                    a = V_TR + 2 * (slot // 4) + j
                    off = (slot % 4) * 16384 + mat * 8192 + (s % 4) * 2048
                    r = acc + 32 * j + 16 * mat
                    c = f"v[{r}:{r+15}]"
                    cin = c if s else "0"
                    out.append(dict(stage=st, reads=[
                        f"ds_read_b64_tr_b16 a[{{f0}}:{{f1}}], v{a} offset:{off}",
                        f"ds_read_b64_tr_b16 a[{{f2}}:{{f3}}], v{a} offset:{off+512}"],
                        mfma=f"v_mfma_f32_32x32x16_bf16 {c}, a[{{f0}}:{{f3}}], a[{XN+4*s}:{XN+4*s+3}], {cin}"))
        return out

    def q(self, *texts):
        for t in texts:
            self.fill.append(lambda t=t: self.p.e(t))

    def ffn_epilogue(self, acc, s_k):
        T = V_X
        for j in range(2):
            g0, u0 = acc + 32 * j, acc + 32 * j + 16
            for half in range(2):
                for pair in range(4):
                    i = 8 * half + 2 * pair
                    ga, gb, ua, ub = g0 + i, g0 + i + 1, u0 + i, u0 + i + 1
                    ta, tb = T + 2 * (pair % 2), T + 2 * (pair % 2) + 1
                    d = T + 4 + 4 * half + pair
                    self.q(f"v_mul_f32 v{ta}, v{ga}, v{ga}", f"v_mul_f32 v{tb}, v{gb}, v{gb}",
                           f"v_fma_f32 v{ta}, v{ta}, s{S_GK2}, v{V_GK1}", f"v_fma_f32 v{tb}, v{tb}, s{S_GK2}, v{V_GK1}",
                           f"v_mul_f32 v{ta}, v{ta}, v{ga}", f"v_mul_f32 v{tb}, v{tb}, v{gb}",
                           f"v_exp_f32 v{ta}, v{ta}", f"v_exp_f32 v{tb}, v{tb}",
                           f"v_mul_f32 v{ua}, v{ua}, v{ga}", f"v_mul_f32 v{ub}, v{ub}, v{gb}",
                           f"v_add_f32 v{ta}, 1.0, v{ta}", f"v_add_f32 v{tb}, 1.0, v{tb}",
                           f"v_rcp_f32 v{ta}, v{ta}", f"v_rcp_f32 v{tb}, v{tb}",
                           f"v_mul_f32 v{ua}, v{ua}, v{ta}", f"v_mul_f32 v{ub}, v{ub}, v{tb}",
                           f"v_cvt_pk_bf16_f32 v{d}, v{ua}, v{ub}")
                d = T + 4 + 4 * half
                if j == 1 and half == 0:
                    self.q(f"s_add_u32 s{s_k}, s{s_k}, 4096")
                self.q(f"buffer_store_dwordx4 v[{d}:{d+3}], v{V_STA}, {srd(SWS)}, s{s_k} offen offset:{512*half}{self.wt}")

    @staticmethod
    def cmul(dr, di, ar, ai, br, bi):
        return [f"v_mul_f32 v{dr}, v{ar}, v{br}", f"v_mul_f32 v{di}, v{ar}, v{bi}",
                f"v_fma_f32 v{dr}, -v{ai}, v{bi}, v{dr}", f"v_fma_f32 v{di}, v{ai}, v{br}, v{di}"]

    def ssm_consts(self, b, praw, u):
        c = V_C + 12 * b
        lr, li, dt = praw, praw + 1, praw + 2
        L = [f"v_lshlrev_b32 v{lr}, 16, v{lr}", f"v_lshlrev_b32 v{li}, 16, v{li}", f"v_lshlrev_b32 v{dt}, 16, v{dt}",
             f"v_mul_f32 v{dt}, {fx(LOG2E)}, v{dt}", f"v_exp_f32 v{dt}, v{dt}",
             f"v_cvt_pk_bf16_f32 v{dt}, v{dt}, v{dt}", f"v_lshlrev_b32 v{dt}, 16, v{dt}",
             f"v_mul_f32 v{u}, v{dt}, v{lr}", f"v_mul_f32 v{u+1}, v{dt}, v{li}",
             f"v_mul_f32 v{u}, {fx(LOG2E)}, v{u}", f"v_mul_f32 v{u+1}, 0.15915494, v{u+1}",
             f"v_exp_f32 v{u}, v{u}", f"v_fract_f32 v{u+1}, v{u+1}",
             f"v_cos_f32 v{u+2}, v{u+1}", f"v_sin_f32 v{u+3}, v{u+1}",
             f"v_mul_f32 v{c}, v{u}, v{u+2}", f"v_mul_f32 v{c+1}, v{u}, v{u+3}",
             f"v_add_f32 v{u}, -1.0, v{c}",
             f"v_mul_f32 v{u+1}, v{lr}, v{lr}", f"v_fma_f32 v{u+1}, v{li}, v{li}, v{u+1}",
             f"v_rcp_f32 v{u+1}, v{u+1}",
             f"v_mul_f32 v{u+2}, v{u}, v{lr}", f"v_fma_f32 v{u+2}, v{c+1}, v{li}, v{u+2}",
             f"v_mul_f32 v{u+3}, v{c+1}, v{lr}", f"v_fma_f32 v{u+3}, -v{u}, v{li}, v{u+3}",
             f"v_add_f32 v{u+1}, v{u+1}, v{u+1}",
             f"v_mul_f32 v{c+2}, v{u+2}, v{u+1}", f"v_mul_f32 v{c+3}, v{u+3}, v{u+1}"]
        L += self.cmul(u, u + 1, c, c + 1, c, c + 1)
        L += self.cmul(u + 2, u + 3, u, u + 1, u, u + 1)
        L += self.cmul(u, u + 1, u + 2, u + 3, u + 2, u + 3)
        L += self.cmul(c + 4, c + 5, u, u + 1, u, u + 1)
        L += self.cmul(u, u + 1, c + 4, c + 5, c + 4, c + 5)
        L += self.cmul(u + 2, u + 3, u, u + 1, u, u + 1)
        L += self.cmul(c + 8, c + 9, u + 2, u + 3, u + 2, u + 3)
        L += self.cmul(c + 10, c + 11, c + 8, c + 9, c + 8, c + 9)
        hm, m2 = f"s[{S_HM}:{S_HM+1}]", f"s[{S_M2}:{S_M2+1}]"
        L += [f"v_cndmask_b32 v{u+4}, 1.0, v{c+4}, {hm}", f"v_cndmask_b32 v{u+5}, 0, v{c+5}, {hm}",
              f"s_bitcmp1_b32 s{S_W}, 0", f"s_cselect_b64 {m2}, -1, 0",
              f"v_cndmask_b32 v{u}, 1.0, v{u}, {m2}", f"v_cndmask_b32 v{u+1}, 0, v{u+1}, {m2}"]
        L += self.cmul(u + 6, u + 7, u + 4, u + 5, u, u + 1)
        L += [f"s_bitcmp1_b32 s{S_W}, 1", f"s_cselect_b64 {m2}, -1, 0",
              f"v_cndmask_b32 v{u+2}, 1.0, v{u+2}, {m2}", f"v_cndmask_b32 v{u+3}, 0, v{u+3}, {m2}"]
        L += self.cmul(c + 6, c + 7, u + 6, u + 7, u + 2, u + 3)
        return L

    def ex_base(self, sreg, b):
        return [f"s_add_u32 s{sreg}, s{S_SB}, {b}", f"s_mul_i32 s{sreg}, s{sreg}, {EX_BLK}",
                f"s_add_u32 s{sreg}, s{sreg}, {EX_OFF}"]

    def ssm_reduce(self, b, acc):
        p = self.p
        c = V_C + 12 * b
        T = V_X
        re, im = acc, acc + 16
        hr, hi, nr, ni = T, T + 1, T + 2, T + 3
        cur = (re, im)
        for t in range(1, 16):
            d = (hr, hi) if t % 2 else (nr, ni)
            self.q(f"v_fma_f32 v{d[0]}, -v{c+1}, v{cur[1]}, v{re+t}", f"v_fma_f32 v{d[1]}, v{c+1}, v{cur[0]}, v{im+t}",
                   f"v_fma_f32 v{d[0]}, v{c}, v{cur[0]}, v{d[0]}", f"v_fma_f32 v{d[1]}, v{c}, v{cur[1]}, v{d[1]}")
            cur = d
        st = {}

        def wr():
            t = p.e(f"ds_write_b64 v{V_XW}, v[{hr}:{hi}] offset:{2048*b}")
            self.pre_barrier.append(t)
            st["bar"] = self.nbar
        self.fill.append(wr)
        self.fill.append(("bar", lambda: self.nbar > st["bar"]))
        E = T + 4
        pr, pi = V_PRE + 2 * b, V_PRE + 2 * b + 1
        self.q(f"v_mov_b32 v{pr}, 0", f"v_mov_b32 v{pi}, 0")
        for rnd in range(2):
            def rd(rnd=rnd):
                p.e(f"ds_read_b128 v[{E}:{E+3}], v{V_XR} offset:{2048*b + 32*rnd}")
                st["t"] = p.e(f"ds_read_b128 v[{E+4}:{E+7}], v{V_XR} offset:{2048*b + 32*rnd + 16}")
            self.fill.append(rd)
            self.fill.append(lambda: p.wait(st["t"]))
            for k in range(4):
                j = 4 * rnd + k
                if j == 7:
                    break
                er, ei = E + 2 * k, E + 2 * k + 1
                self.q(f"v_cmp_lt_u32 vcc, {j}, v{V_SEG}",
                       f"v_fma_f32 v{er}, -v{c+5}, v{pi}, v{er}", f"v_fma_f32 v{ei}, v{c+5}, v{pr}, v{ei}",
                       f"v_fma_f32 v{er}, v{c+4}, v{pr}, v{er}", f"v_fma_f32 v{ei}, v{c+4}, v{pi}, v{ei}",
                       f"v_cndmask_b32 v{pr}, v{pr}, v{er}, vcc", f"v_cndmask_b32 v{pi}, v{pi}, v{ei}, vcc")
        g = E
        self.q(f"v_fma_f32 v{g}, -v{c+5}, v{pi}, v{hr}", f"v_fma_f32 v{g+2}, v{c+5}, v{pr}, v{hi}",
               f"v_fma_f32 v{g}, v{c+4}, v{pr}, v{g}", f"v_fma_f32 v{g+2}, v{c+4}, v{pi}, v{g+2}",
               f"v_mov_b32 v{g+1}, s{S_EPOCH}", f"v_mov_b32 v{g+3}, s{S_EPOCH}",
               *self.ex_base(S_T2, b),
               f"buffer_store_dwordx4 v[{g}:{g+3}], v{V_PUB}, {srd(SWS)}, s{S_T2} offen sc1")

    def lb_issue(self, i, LB, A):
        p = self.p
        p.e(f"v_add_u32 v{A}, {-1024*i & 0xffffffff:#x}, v{V_LBO}" if i else f"v_mov_b32 v{A}, v{V_LBO}")
        p.e(f"v_max_i32 v{A}, v{A}, v{V_LBO+1}")
        return p.e(f"buffer_load_dwordx4 v[{LB+4*i}:{LB+4*i+3}], v{A}, {srd(SWS)}, s{S_T3} offen sc1")

    def lb_check(self, LB, A, tag):
        p = self.p
        p.e(f"v_mov_b32 v{A}, 0")
        for i in range(8):
            p.e(f"v_xor_b32 v{A+1}, s{S_EPOCH}, v{LB+4*i+1}")
            p.e(f"v_xor_b32 v{A+2}, s{S_EPOCH}, v{LB+4*i+3}")
            p.e(f"v_or3_b32 v{A}, v{A}, v{A+1}, v{A+2}")
        p.e(f"v_cmp_ne_u32 vcc, 0, v{A}")
        p.e(f"s_cbranch_vccnz LB_SLOW_{tag}")

    def ssm_finish(self, b, acc, LB, gate_issue, gate_check, tag):
        p = self.p
        c = V_C + 12 * b
        PRE = V_PRE + 2 * b
        st = {}
        if gate_issue is not None:
            self.fill.append(("t", gate_issue))
        A = LB + 32
        self.q(*self.ex_base(S_T3, b), f"s_mov_b32 s{S_SPIN}, 0")
        for i in range(8):
            def f(i=i):
                st["t"] = self.lb_issue(i, LB, A)
            self.fill.append(f)
        if gate_check is not None:
            self.fill.append(("t", gate_check))

        def check():
            tg = tag + (getattr(self, "retag", None) or "")
            p.wait(st["t"])
            self.lb_check(LB, A, tg)
            p.label(f"LB_OK_{tg}")
            self.slow.append((tg, LB, A))
        self.fill.append(check)
        pr, pi = A, A + 1
        self.q(f"v_mov_b32 v{pr}, v{LB+28}", f"v_mov_b32 v{pi}, v{LB+30}")
        for i in range(6, -1, -1):
            er, ei = LB + 4 * i, LB + 4 * i + 2
            self.q(f"v_fma_f32 v{er}, -v{c+11}, v{pi}, v{er}", f"v_fma_f32 v{ei}, v{c+11}, v{pr}, v{ei}",
                   f"v_fma_f32 v{pr}, v{c+10}, v{pr}, v{er}", f"v_fma_f32 v{pi}, v{c+10}, v{pi}, v{ei}")
        r0, i0, r1, i1 = LB, LB + 1, LB + 2, LB + 3
        self.q(f"v_mov_b32 v{r0}, v{pr}", f"v_mov_b32 v{r1}, v{pr}", f"v_mov_b32 v{i0}, v{pi}", f"v_mov_b32 v{i1}, v{pi}",
               f"v_permlane32_swap_b32 v{r0}, v{r1}", f"v_permlane32_swap_b32 v{i0}, v{i1}",
               f"v_fma_f32 v{r0}, -v{c+9}, v{i1}, v{r0}", f"v_fma_f32 v{i0}, v{c+9}, v{r1}, v{i0}",
               f"v_fma_f32 v{r0}, v{c+8}, v{r1}, v{r0}", f"v_fma_f32 v{i0}, v{c+8}, v{i1}, v{i0}",
               f"v_fma_f32 v{PRE}, -v{c+7}, v{i0}, v{PRE}", f"v_fma_f32 v{PRE+1}, v{c+7}, v{r0}, v{PRE+1}",
               f"v_fma_f32 v{PRE}, v{c+6}, v{r0}, v{PRE}", f"v_fma_f32 v{PRE+1}, v{c+6}, v{i0}, v{PRE+1}")
        re, im = acc, acc + 16
        cur = (PRE, PRE + 1)
        for t in range(16):
            self.q(f"v_fma_f32 v{re+t}, -v{c+1}, v{cur[1]}, v{re+t}", f"v_fma_f32 v{im+t}, v{c+1}, v{cur[0]}, v{im+t}",
                   f"v_fma_f32 v{re+t}, v{c}, v{cur[0]}, v{re+t}", f"v_fma_f32 v{im+t}, v{c}, v{cur[1]}, v{im+t}")
            cur = (re + t, im + t)
            o = LB + 4 + 4 * (t % 2)
            self.q(f"v_mul_f32 v{o}, v{c+2}, v{re+t}", f"v_mul_f32 v{o+1}, v{c+2}, v{im+t}",
                   f"v_fma_f32 v{o}, -v{c+3}, v{im+t}, v{o}", f"v_fma_f32 v{o+1}, v{c+3}, v{re+t}, v{o+1}",
                   f"v_cvt_pk_bf16_f32 v{o+2}, v{o}, -v{o+1}")

            def w(t=t, o=o):
                st["w"] = p.e(f"ds_write_b32 v{V_TW}, v{o+2} offset:{144*t}")
            self.fill.append(w)
        O = LB + 12

        def rd():
            p.wait(st["w"])
            st["r"] = [p.e(f"ds_read_b128 v[{O+4*f}:{O+4*f+3}], v{V_TW+1} offset:{(f>>1)*2304 + (f&1)*64}")
                       for f in range(4)]
        self.fill.append(rd)
        self.q(f"s_add_u32 s{S_T3}, s{S_SB}, {b}", f"s_lshl_b32 s{S_T3}, s{S_T3}, 13",
               f"s_add_u32 s{S_T3}, s{S_T3}, s{S_A2ROW}", f"s_add_u32 s{S_T3}, s{S_T3}, {54*4096}",
               f"s_add_u32 s{S_T2}, s{S_T3}, 4096")
        for f in range(4):
            def stf(f=f):
                p.wait(st["r"][f])
                so = S_T2 if f & 1 else S_T3
                p.e(f"buffer_store_dwordx4 v[{O+4*f}:{O+4*f+3}], v{V_TW+2}, {srd(SWS)}, s{so} offen offset:{1024*(f>>1)}{self.wt}")
            self.fill.append(stf)

    def slow_paths(self):
        p = self.p
        for tag, LB, A in self.slow:
            p.label(f"LB_SLOW_{tag}")
            p.e("s_sleep 2")
            p.e(f"s_add_u32 s{S_SPIN}, s{S_SPIN}, 1")
            p.e(f"s_cmp_gt_u32 s{S_SPIN}, 100000")
            p.e(f"s_cbranch_scc1 LB_OK_{tag}")
            for i in range(8):
                self.lb_issue(i, LB, A)
            p.e("s_waitcnt vmcnt(0)")
            self.lb_check(LB, A, tag)
            p.e(f"s_branch LB_OK_{tag}")

    def mk_srd(self, d, ptr, nbytes):
        e = self.p.e
        e(f"s_mov_b32 s{d}, s{ptr}"); e(f"s_mov_b32 s{d+1}, s{ptr+1}")
        e(f"s_mov_b32 s{d+2}, {nbytes}"); e(f"s_mov_b32 s{d+3}, 0x20000")

    def prologue(self):
        p, e = self.p, self.p.e
        p.raw(".p2align 8")
        p.label("proj_kernel")
        e("s_cmp_ge_u32 s2, 256")
        e("s_cbranch_scc1 K1_END")
        if self.opt.get("stamp"):
            e("s_memrealtime s[94:95]")
            self.stamp(0)
        e("s_load_dwordx16 s[36:51], s[0:1], 0")
        e("s_load_dwordx16 s[52:67], s[0:1], 64")
        e(f"s_getpc_b64 s[{S_T0}:{S_T1}]")
        p.label("K1_PC")
        e("v_lshrrev_b32 v2, 6, v0")
        e(f"v_and_b32 v{V_LANE}, 63, v0")
        e(f"v_readfirstlane_b32 s{S_W}, v2")
        e("s_lshr_b32 s3, s2, 3")
        e(f"s_lshl_b32 s{S_T2}, s3, 2")
        e(f"s_add_u32 s{S_T2}, s{S_T2}, s{S_W}")
        e(f"s_lshl_b32 s{S_T2}, s{S_T2}, 9")
        e(f"v_lshlrev_b32 v2, 7, v{V_LANE}")
        e(f"v_add_u32 v2, s{S_T2}, v2")
        e("v_min_u32 v2, TEXT_END-K1_PC-4, v2")
        e("s_mov_b64 exec, 15")
        e(f"global_load_dword v{V_PRE+5}, v2, s[{S_T0}:{S_T1}]")
        e("s_mov_b64 exec, -1")
        e(f"s_and_b32 s{S_T2}, s2, 7")
        e(f"s_lshr_b32 s{S_MT}, s{S_T2}, 1")
        e(f"s_lshl_b32 s{S_MT}, s{S_MT}, 2")
        e(f"s_and_b32 s{S_T3}, s3, 3")
        e(f"s_add_u32 s{S_MT}, s{S_MT}, s{S_T3}")
        e(f"s_and_b32 s{S_CG}, s{S_T2}, 1")
        e(f"s_lshl_b32 s{S_CG}, s{S_CG}, 3")
        e("s_lshr_b32 s3, s3, 2")
        e(f"s_add_u32 s{S_CG}, s{S_CG}, s3")
        if self.opt.get("k1rot", 1):
            e(f"s_add_u32 s{S_R}, s3, s{S_T3}")
            for _ in range(2):
                e(f"s_sub_u32 s{S_T2}, s{S_R}, 5")
                e(f"s_cmp_ge_u32 s{S_R}, 5")
                e(f"s_cselect_b32 s{S_R}, s{S_T2}, s{S_R}")
        else:
            e(f"s_mov_b32 s{S_R}, 0")
        for i in range(5):
            if i:
                e(f"s_add_u32 s{S_R}, s{S_R}, 1")
                e(f"s_cmp_eq_u32 s{S_R}, 5")
                e(f"s_cselect_b32 s{S_R}, 0, s{S_R}")
            e(f"s_lshl_b32 s{S_KS+i}, s{S_R}, 8")
            e(f"s_mul_i32 s{S_KF+i}, s{S_R}, {128*3456}")
        e(f"s_lshl_b32 s{S_W4K}, s{S_W}, 12")
        e(f"s_lshl_b32 s{S_XB}, s{S_MT}, 2")
        e(f"s_add_u32 s{S_XB}, s{S_XB}, s{S_W}")
        e(f"s_mul_i32 s{S_XB}, s{S_XB}, {32*1280}")
        a, xr = V_X + 4, V_X + 5
        e(f"v_lshrrev_b32 v{a}, 4, v{V_LANE}")
        e(f"v_and_b32 v{xr}, 15, v{V_LANE}")
        e(f"v_xor_b32 v{xr}, v{xr}, v{a}")
        e(f"v_lshlrev_b32 v{xr}, 4, v{xr}")
        e(f"v_mul_u32_u24 v{a}, 1280, v{a}")
        for q in range(4):
            e(f"v_xor_b32 v{V_OS+q}, {64*q}, v{xr}")
            e(f"v_add_u32 v{V_OS+q}, v{V_OS+q}, v{a}")
            e(f"v_add_u32 v{V_X+q}, {(16*(q&1) + 4*(q>>1))*1280 - 1024*q}, v{V_OS+q}")
            if q:
                e(f"v_add_u32 v{V_OS+q}, {4*q*1280 - 1024*q}, v{V_OS+q}")
        e(f"s_cmp_ge_u32 s{S_CG}, 8")
        e(f"s_cselect_b32 s{S_T2}, 1, 0")
        e(f"s_sub_u32 s{S_SB}, s{S_CG}, s{S_T2}")
        e(f"s_lshl_b32 s{S_D1}, s{S_SB}, 1")
        e(f"s_mov_b32 s{S_TYPE}, 0")
        e(f"s_cmp_eq_u32 s{S_CG}, 14")
        e(f"s_cselect_b32 s{S_TYPE}, 1, s{S_TYPE}")
        e(f"s_cmp_eq_u32 s{S_CG}, 7")
        e(f"s_cselect_b32 s{S_TYPE}, 2, s{S_TYPE}")
        e(f"s_cselect_b32 s{S_SB}, 14, s{S_SB}")
        e(f"s_cmp_eq_u32 s{S_CG}, 15")
        e(f"s_cselect_b32 s{S_TYPE}, 2, s{S_TYPE}")
        e(f"s_cselect_b32 s{S_SB}, 17, s{S_SB}")
        e(f"v_and_b32 v{V_SEG}, 31, v{V_LANE}")
        e(f"s_lshl_b32 s{S_T2}, s{S_SB}, 6")
        e(f"v_lshl_add_u32 v{V_PUB}, v{V_SEG}, 1, s{S_T2}")
        e(f"v_mov_b32 v{V_XW}, {EPOCH_OFF}")
        e("s_waitcnt lgkmcnt(0)")
        self.mk_srd(SX, K_X, X_BYTES)
        self.mk_srd(SWS, K_WS, WS_USED)
        PR = V_AS
        t_ep = e(f"buffer_load_dword v{PR+9}, v{V_XW}, {srd(SWS)}, 0 offen sc1")
        t_par = None
        for b in range(3):
            for k, ptr in enumerate((K_LRE, K_LIM, K_LDT)):
                if b:
                    e(f"v_min_u32 v{V_XR}, {1278 - 64*b}, v{V_PUB}")
                    t_par = e(f"global_load_ushort v{PR+3*b+k}, v{V_XR}, s[{ptr}:{ptr+1}] offset:{64*b}")
                else:
                    t_par = e(f"global_load_ushort v{PR+3*b+k}, v{V_PUB}, s[{ptr}:{ptr+1}]")
        xt = {}

        def x_issue(i):
            b3 = i % 3
            for hh in range(2):
                e(f"s_add_u32 m0, s{S_W4K}, {(2 + b3 + 3*hh)*16384}")
                e(f"s_add_u32 s{S_T0}, s{S_XB}, s{S_KS+i}")
                if hh:
                    e(f"s_add_u32 s{S_T0}, s{S_T0}, 10240")
                for q in range(4):
                    xt[i] = e(f"buffer_load_dwordx4 v{V_X+q}, {srd(SX)}, s{S_T0} offen offset:{1024*q} lds")
        for i in range(3):
            x_issue(i)
        self.stamp(1)
        e(f"s_cmp_ge_u32 s{S_W}, 2")
        e(f"s_cselect_b32 s{SS}, s{K_BIM}, s{K_BRE}"); e(f"s_cselect_b32 s{SS+1}, s{K_BIM+1}, s{K_BRE+1}")
        e(f"s_cselect_b32 s{SF}, s{K_WU}, s{K_WG}"); e(f"s_cselect_b32 s{SF+1}, s{K_WU+1}, s{K_WG+1}")
        e(f"s_mov_b32 s{SS+2}, {SQ_BYTES}"); e(f"s_mov_b32 s{SS+3}, 0x20000")
        e(f"s_mov_b32 s{SF+2}, {FF_BYTES}"); e(f"s_mov_b32 s{SF+3}, 0x20000")
        e(f"s_and_b32 s{S_T2}, s{S_W}, 1")
        e(f"s_lshl_b32 s{S_SBROW}, s{S_SB}, 1")
        e(f"s_add_u32 s{S_SBROW}, s{S_SBROW}, s{S_T2}")
        e(f"s_mul_i32 s{S_SBROW}, s{S_SBROW}, {16*1280}")
        e(f"s_lshr_b32 s{S_T3}, s{S_W}, 1")
        e(f"s_lshl_b32 s{S_A2ROW}, s{S_MT}, 1")
        e(f"s_add_u32 s{S_A2ROW}, s{S_A2ROW}, s{S_T3}")
        e(f"s_mul_i32 s{S_A2ROW}, s{S_A2ROW}, {94*4096}")
        e(f"s_lshl_b32 s{S_T3}, s{S_T2}, 11")
        e(f"s_add_u32 s{S_A2ROW}, s{S_A2ROW}, s{S_T3}")
        e(f"s_lshl_b32 s{S_KD1}, s{S_D1}, 13")
        e(f"s_add_u32 s{S_KD1}, s{S_KD1}, s{S_A2ROW}")
        e(f"s_add_u32 s{S_KD2}, s{S_KD1}, 8192")
        e(f"s_lshl_b32 s{S_D1}, s{S_D1}, 7")
        e(f"s_mul_i32 s{S_T3}, s{S_T2}, {32*3456}")
        e(f"s_add_u32 s{S_D1}, s{S_D1}, s{S_T3}")
        e(f"s_add_u32 s{S_D2}, s{S_D1}, 128")
        e(f"s_cmp_eq_u32 s{S_TYPE}, 1")
        e(f"s_cselect_b32 s{S_D2}, {OOB}, s{S_D2}")
        e(f"s_mov_b32 s{S_MASK}, 0xffff0000")
        e(f"s_mov_b32 s{S_GK2}, {fx(GK2)}")
        e(f"v_mov_b32 v{V_GK1}, {fx(GK1)}")
        e(f"s_mov_b32 s{S_HM}, 0"); e(f"s_mov_b32 s{S_HM+1}, -1")
        h, c, t0, t1 = V_X + 4, V_SEG, V_X + 5, V_X + 6
        e(f"v_lshrrev_b32 v{h}, 5, v{V_LANE}")
        e(f"v_lshrrev_b32 v{t0}, 3, v{V_LANE}")
        e(f"v_mul_u32_u24 v{t0}, 3456, v{t0}")
        e(f"v_bfe_u32 v{t1}, v{V_LANE}, 4, 1")
        e(f"v_lshlrev_b32 v{t1}, 2, v{t1}")
        e(f"v_and_b32 v{V_OF}, 7, v{V_LANE}")
        e(f"v_xor_b32 v{V_OF}, v{V_OF}, v{t1}")
        e(f"v_lshl_add_u32 v{V_OF}, v{V_OF}, 4, v{t0}")
        for q in range(1, 4):
            e(f"v_add_u32 v{V_OF+q}, {q*(8*3456 - 1024)}, v{V_OF}")
        e(f"v_bfe_u32 v{t0}, v{V_LANE}, 2, 2")
        e(f"v_lshl_add_u32 v{t1}, v{h}, 3, v{t0}")
        e(f"v_lshlrev_b32 v{V_TR}, 7, v{t1}")
        e(f"v_lshrrev_b32 v{t0}, 1, v{t0}")
        e(f"v_lshl_add_u32 v{V_TR}, v{t0}, 6, v{V_TR}")
        e(f"v_bfe_u32 v{t0}, v{V_LANE}, 4, 1")
        e(f"v_lshl_add_u32 v{V_TR}, v{t0}, 5, v{V_TR}")
        e(f"v_and_b32 v{t0}, 3, v{V_LANE}")
        e(f"v_lshl_add_u32 v{V_TR}, v{t0}, 3, v{V_TR}")
        e(f"v_xor_b32 v{V_TR+1}, 64, v{V_TR}")
        e(f"v_add_u32 v{V_TR+2}, 0x10000, v{V_TR}")
        e(f"v_add_u32 v{V_TR+3}, 0x10000, v{V_TR+1}")
        e(f"v_lshrrev_b32 v{t1}, 3, v{c}")
        e(f"v_lshl_add_u32 v{t1}, v{t1}, 2, v{t0}")
        e(f"v_lshl_add_u32 v{V_STA}, v{h}, 4, v{t1}")
        e(f"v_lshlrev_b32 v{V_STA}, 4, v{V_STA}")
        e(f"v_bfe_u32 v{t0}, v{c}, 2, 1")
        e(f"v_lshl_add_u32 v{V_STA}, v{t0}, 10, v{V_STA}")
        e(f"v_lshl_add_u32 v{V_TW+2}, v{t0}, 4, v{t1}")
        e(f"v_lshlrev_b32 v{V_X+7}, 3, v{V_TW+2}")
        e(f"v_cndmask_b32 v{V_X+7}, v{V_X+7}, v{V_XW}, s[{S_HM}:{S_HM+1}]")
        e(f"v_lshlrev_b32 v{V_LBO+1}, 4, v{c}")
        e(f"v_sub_u32 v{t0}, s{S_MT}, v{h}")
        e(f"v_lshl_add_u32 v{V_LBO}, v{t0}, 9, v{V_LBO+1}")
        e(f"s_add_u32 s{S_T2}, s{S_MT}, 1")
        e(f"s_lshl_b32 s{S_T2}, s{S_T2}, 9")
        e(f"s_cmp_eq_u32 s{S_W}, 3")
        e(f"s_cselect_b32 s{S_T2}, s{S_T2}, {OOB}")
        e(f"v_add_u32 v{t0}, s{S_T2}, v{V_LBO+1}")
        e(f"v_mov_b32 v{t1}, {OOB}")
        p.wait(t_par)
        e(f"v_cndmask_b32 v{V_PUB}, v{t1}, v{t0}, s[{S_HM}:{S_HM+1}]")
        e(f"v_readfirstlane_b32 s{S_EPOCH}, v{PR+9}")
        e(f"v_lshlrev_b32 v{V_XR}, 6, v{c}")
        e(f"v_add_u32 v{V_XR}, {XCH}, v{V_XR}")
        e(f"s_mul_i32 s{S_J1}, s{S_W}, {SCR_W}")
        e(f"s_add_u32 s{S_J1}, s{S_J1}, {LDS_SCR}")
        e(f"v_mul_u32_u24 v{V_TW}, {16*144}, v{h}")
        e(f"v_lshl_add_u32 v{V_TW}, v{c}, 2, v{V_TW}")
        e(f"v_add_u32 v{V_TW}, s{S_J1}, v{V_TW}")
        e(f"v_and_b32 v{t0}, 15, v{V_LANE}")
        e(f"v_mul_u32_u24 v{t0}, 144, v{t0}")
        e(f"v_lshrrev_b32 v{t1}, 4, v{V_LANE}")
        e(f"v_lshl_add_u32 v{V_TW+1}, v{t1}, 4, v{t0}")
        e(f"v_add_u32 v{V_TW+1}, s{S_J1}, v{V_TW+1}")
        e(f"v_lshlrev_b32 v{V_TW+2}, 4, v{V_LANE}")
        e(f"s_lshl_b32 s{S_T2}, s{S_W}, 1")
        e(f"v_add_u32 v{V_SEG}, s{S_T2}, v{h}")
        e(f"v_lshl_add_u32 v{V_XW}, v{V_SEG}, 3, v{V_XR}")
        e(f"s_add_u32 s{S_EPOCH}, s{S_EPOCH}, 1")
        for b in range(3):
            if b == 1:
                e(f"s_cmp_lg_u32 s{S_TYPE}, 2")
                e("s_cbranch_scc1 K1_CONST_DONE")
            for x in self.ssm_consts(b, PR + 3 * b, RAW):
                e(x)
        p.label("K1_CONST_DONE")
        z = RAW
        e(f"v_mov_b32 v{z}, 0"); e(f"v_mov_b32 v{z+1}, s{S_EPOCH}"); e(f"v_mov_b32 v{z+2}, 0"); e(f"v_mov_b32 v{z+3}, s{S_EPOCH}")
        for b in range(3):
            for x in self.ex_base(S_T2, b):
                e(x)
            if b:
                e(f"s_cmp_eq_u32 s{S_TYPE}, 2")
                e(f"s_cselect_b32 s{S_T2}, s{S_T2}, {OOB}")
            e(f"buffer_store_dwordx4 v[{z}:{z+3}], v{V_LBO+1}, {srd(SWS)}, s{S_T2} offen sc1")
        rho15, key = V_X + 5, V_X + 6
        e(f"v_and_b32 v{rho15}, 15, v{V_LANE}")
        e(f"v_xor_b32 v{key}, v{rho15}, v{h}")
        e(f"v_lshlrev_b32 v{key}, 4, v{key}")
        e(f"v_lshl_add_u32 v{key}, v{rho15}, 8, v{key}")
        e(f"v_bfe_u32 v{rho15}, v{V_LANE}, 4, 1")
        e(f"v_mul_u32_u24 v{h}, {3*16384}, v{rho15}")
        e(f"s_add_u32 s{S_T2}, s{S_W4K}, {2*16384}")
        e(f"v_add_u32 v{h}, s{S_T2}, v{h}")
        e(f"v_lshlrev_b32 v{rho15}, 12, v{rho15}")
        for s in range(8):
            e(f"v_xor_b32 v{V_AS+s}, {32*s}, v{key}")
            e(f"v_add_u32 v{V_AS+8+s}, v{V_AS+s}, v{h}")
            e(f"v_add_u32 v{V_AS+s}, v{V_AS+s}, v{rho15}")
        sm, sq = V_PRE, V_PRE + 1
        e(f"v_mov_b32 v{sm}, 0"); e(f"v_mov_b32 v{sq}, 0")
        e(f"s_mov_b32 s{S_J2}, 0x3f803f80")

        def x_read(i):
            p.wait(xt[i])
            t = None
            for s in range(8):
                r = RAW + 32 * i + 4 * s
                t = e(f"ds_read_b128 v[{r}:{r+3}], v{V_AS+8+s} offset:{(i%3)*16384}")
            return t

        def x_stats(i):
            for k in range(32):
                r = RAW + 32 * i + k
                e(f"v_dot2c_f32_bf16 v{sm}, s{S_J2}, v{r}")
                e(f"v_dot2c_f32_bf16 v{sq}, v{r}, v{r}")
        t = x_read(0); p.wait(t); x_issue(3); x_stats(0)
        t = x_read(1); p.wait(t); x_issue(4)
        self.issue_stage(0, "S", 0, 0)
        self.issue_stage(1, "S", 1, 0)
        x_stats(1)
        t = x_read(2); p.wait(t); x_stats(2)
        t = x_read(3); p.wait(t); self.issue_stage(2, "S", 2, 0); x_stats(3)
        t = x_read(4); p.wait(t); self.issue_stage(3, "S", 3, 0); self.issue_stage(4, "S", 4, 0); x_stats(4)
        self.stamp(2)
        u = V_X + 8
        e(f"v_mov_b32 v{u}, v{sm}"); e(f"v_mov_b32 v{u+1}, v{sq}")
        e(f"v_permlane32_swap_b32 v{sm}, v{u}"); e(f"v_permlane32_swap_b32 v{sq}, v{u+1}")
        e(f"v_add_f32 v{sm}, v{sm}, v{u}"); e(f"v_add_f32 v{sq}, v{sq}, v{u+1}")
        e(f"v_mul_f32 v{sm}, {fx(1/640)}, v{sm}"); e(f"v_mul_f32 v{sq}, {fx(1/640)}, v{sq}")
        e(f"v_fma_f32 v{sq}, -v{sm}, v{sm}, v{sq}")
        e(f"v_max_f32 v{sq}, 0, v{sq}")
        e(f"v_cvt_pk_bf16_f32 v{u}, v{sq}, v{sm}")
        e(f"v_lshlrev_b32 v{sq}, 16, v{u}"); e(f"v_and_b32 v{sm}, s{S_MASK}, v{u}")
        e(f"v_add_f32 v{sq}, {fx(1e-5)}, v{sq}")
        e(f"v_cvt_pk_bf16_f32 v{sq}, v{sq}, v{sq}"); e(f"v_lshlrev_b32 v{sq}, 16, v{sq}")
        e(f"v_sqrt_f32 v{sq}, v{sq}")
        e(f"v_cvt_pk_bf16_f32 v{sq}, v{sq}, v{sq}"); e(f"v_lshlrev_b32 v{sq}, 16, v{sq}")
        e(f"v_rcp_f32 v{u}, v{sq}")
        e(f"v_mul_f32 v{u+2}, v{sm}, v{u}")
        e(f"v_mov_b32 v{u+1}, v{u}")
        e(f"v_sub_f32 v{u+2}, 0, v{u+2}")
        e(f"v_mov_b32 v{u+3}, v{u+2}")
        e(f"v_mov_b32 v{sm}, v{u}"); e(f"v_mov_b32 v{sq}, v{u+2}")
        e(f"s_lshl_b32 s{S_T2}, s{S_MT}, 2"); e(f"s_add_u32 s{S_T2}, s{S_T2}, s{S_W}")
        e(f"s_lshl_b32 s{S_T2}, s{S_T2}, 8"); e(f"s_add_u32 s{S_T2}, s{S_T2}, {STATS_OFF}")
        e(f"s_cmp_eq_u32 s{S_CG}, 0"); e(f"s_cselect_b32 s{S_T2}, s{S_T2}, {OOB}")
        e(f"v_mov_b32 v{V_X+4}, v{u}"); e(f"v_mov_b32 v{V_X+5}, v{u+2}")
        e(f"buffer_store_dwordx2 v[{V_X+4}:{V_X+5}], v{V_X+7}, {srd(SWS)}, s{S_T2} offen")
        for k in range(160):
            r = RAW + k
            t = V_X + 2 * (k % 2)
            e(f"v_lshlrev_b32 v{t}, 16, v{r}"); e(f"v_and_b32 v{t+1}, s{S_MASK}, v{r}")
            e(f"v_pk_fma_f32 v[{t}:{t+1}], v[{t}:{t+1}], v[{u}:{u+1}], v[{u+2}:{u+3}]")
            e(f"v_cvt_pk_bf16_f32 v{r}, v{t}, v{t+1}")
            e(f"v_accvgpr_write_b32 a{XN+k}, v{r}")
            if k == 23:
                self.side_issue()
        for s in range(8):
            e(f"v_add_u32 v{V_AS+8+s}, 0x10000, v{V_AS+s}")
        self.stamp(3)
        self.side_finish()
        self.stamp(4)

    def w2f_addr(self, dst, b16, kstep):
        e = self.p.e
        e(f"s_mul_hi_u32 s{S_T0}, s{b16}, 0x33333334")
        e(f"s_mul_i32 s{S_T1}, s{S_T0}, 5")
        e(f"s_sub_u32 s{S_T1}, s{b16}, s{S_T1}")
        e(f"s_mul_i32 s{S_T0}, s{S_T0}, 94")
        e(f"s_add_u32 s{S_T0}, s{S_T0}, s{kstep}")
        e(f"s_mul_i32 s{S_T0}, s{S_T0}, 5")
        e(f"s_add_u32 s{S_T0}, s{S_T0}, s{S_T1}")
        e(f"s_lshl_b32 s{dst}, s{S_T0}, 10")
        e(f"s_add_u32 s{dst}, s{dst}, {W2F_OFF}")

    def side_issue(self):
        p, e = self.p, self.p.e
        A = RAW + 16
        e(f"s_lshl_b32 s{S_JOB}, s2, 2"); e(f"s_add_u32 s{S_JOB}, s{S_JOB}, s{S_W}")
        e(f"s_cmp_ge_u32 s{S_JOB}, 540")
        e(f"s_cselect_b32 s{S_T2}, 540, 0")
        e(f"s_sub_u32 s{S_T2}, s{S_JOB}, s{S_T2}")
        e(f"s_mul_hi_u32 s{S_SPIN}, s{S_T2}, 0x1999999a")
        e(f"s_mul_i32 s{S_T3}, s{S_SPIN}, 10")
        e(f"s_sub_u32 s{S_J2}, s{S_T2}, s{S_T3}")
        e(f"s_sub_u32 s{S_T2}, s{S_JOB}, 540")
        e(f"s_cmp_lt_u32 s{S_T2}, 400")
        e("s_cbranch_scc1 K1_SJ_C")
        vq, vd = p.vq, p.vdone
        self.mk_srd(SA1, K_WD, FF_BYTES)
        e(f"v_lshrrev_b32 v{A}, 3, v{V_LANE}")
        e(f"v_mul_u32_u24 v{A}, 1280, v{A}")
        e(f"v_and_b32 v{A+1}, 7, v{V_LANE}")
        e(f"v_lshl_add_u32 v{A}, v{A+1}, 4, v{A}")
        for q in range(1, 4):
            e(f"v_add_u32 v{A+q}, {q*(8*1280 - 1024)}, v{A}")
        e(f"s_mul_i32 s{S_T2}, s{S_SPIN}, {32*1280}")
        e(f"s_lshl_b32 s{S_T3}, s{S_J2}, 7")
        e(f"s_add_u32 s{S_T2}, s{S_T2}, s{S_T3}")
        e(f"s_cmp_lt_u32 s{S_JOB}, 540")
        e(f"s_cselect_b32 s{S_T2}, s{S_T2}, {OOB}")
        e(f"s_mov_b32 m0, s{S_J1}")
        for q in range(4):
            e(f"buffer_load_dwordx4 v{A+q}, {srd(SA1)}, s{S_T2} offen offset:{1024*q} lds")
        e("s_branch K1_SJ_ISSUED")
        p.label("K1_SJ_C")
        p.vq, p.vdone = vq, vd
        self.mk_srd(SA1, K_CRE, SQ_BYTES)
        self.mk_srd(SA2, K_CIM, SQ_BYTES)
        e(f"v_lshrrev_b32 v{A}, 2, v{V_LANE}")
        e(f"v_mul_u32_u24 v{A}, 1280, v{A}")
        e(f"v_and_b32 v{A+1}, 3, v{V_LANE}")
        e(f"v_lshl_add_u32 v{A}, v{A+1}, 4, v{A}")
        e(f"s_mul_i32 s{S_T2}, s{S_SPIN}, {16*1280}")
        e(f"s_lshl_b32 s{S_T3}, s{S_J2}, 7")
        e(f"s_add_u32 s{S_T2}, s{S_T2}, s{S_T3}")
        for half in range(2):
            e(f"buffer_load_dwordx4 v[{RAW+8*half}:{RAW+8*half+3}], v{A}, {srd(SA1)}, s{S_T2} offen offset:{64*half}")
            self.sj_tok = e(f"buffer_load_dwordx4 v[{RAW+8*half+4}:{RAW+8*half+7}], v{A}, {srd(SA2)}, s{S_T2} offen offset:{64*half}")
        p.label("K1_SJ_ISSUED")

    def side_finish(self):
        p, e = self.p, self.p.e
        A = RAW + 16
        O = RAW + 24
        p.wait(self.sj_tok)
        e(f"s_sub_u32 s{S_T2}, s{S_JOB}, 540")
        e(f"s_cmp_lt_u32 s{S_T2}, 400")
        e("s_cbranch_scc1 K1_SF_C")
        vq, vd = p.vq, p.vdone
        e(f"v_lshrrev_b32 v{A}, 5, v{V_LANE}")
        e(f"v_lshlrev_b32 v{A}, 4, v{A}")
        e(f"v_bfe_u32 v{A+1}, v{V_LANE}, 2, 3")
        e(f"v_add_u32 v{A}, v{A}, v{A+1}")
        e(f"v_lshlrev_b32 v{A}, 7, v{A}")
        e(f"v_and_b32 v{A+1}, 3, v{V_LANE}")
        e(f"v_lshl_add_u32 v{A}, v{A+1}, 3, v{A}")
        e(f"v_add_u32 v{A}, s{S_J1}, v{A}")
        tk = []
        for cb in range(4):
            e(f"ds_read_b64_tr_b16 v[{O+4*cb}:{O+4*cb+1}], v{A} offset:{32*cb}")
            tk.append(e(f"ds_read_b64_tr_b16 v[{O+4*cb+2}:{O+4*cb+3}], v{A} offset:{32*cb + 1024}"))
        e(f"s_lshl_b32 s{S_J2}, s{S_J2}, 2")
        for cb in range(4):
            self.w2f_addr(S_T2, S_J2, S_SPIN)
            e(f"s_cmp_lt_u32 s{S_JOB}, 540")
            e(f"s_cselect_b32 s{S_T2}, s{S_T2}, {OOB}")
            e(f"s_add_u32 s{S_J2}, s{S_J2}, 1")
            p.wait(tk[cb])
            e(f"buffer_store_dwordx4 v[{O+4*cb}:{O+4*cb+3}], v{V_TW+2}, {srd(SWS)}, s{S_T2} offen{self.wt}")
        e("s_branch K1_SF_DONE")
        p.label("K1_SF_C")
        p.vq, p.vdone = vq, vd
        e(f"v_bfe_u32 v{A}, v{V_LANE}, 1, 1")
        e(f"v_mul_u32_u24 v{A}, 5120, v{A}")
        e(f"v_and_b32 v{A+1}, 1, v{V_LANE}")
        e(f"v_lshl_add_u32 v{A}, v{A+1}, 9, v{A}")
        e(f"v_lshrrev_b32 v{A+1}, 2, v{V_LANE}")
        e(f"v_lshl_add_u32 v{A}, v{A+1}, 4, v{A}")
        e(f"s_lshl_b32 s{S_J2}, s{S_J2}, 2")
        e(f"s_add_u32 s{S_J2}, s{S_J2}, 54")
        self.w2f_addr(S_T2, S_SPIN, S_J2)
        e(f"s_add_u32 s{S_T3}, s{S_T2}, 10240")
        e(f"s_mov_b32 s{S_T0}, 0x05040100")
        e(f"s_mov_b32 s{S_T1}, 0x07060302")
        for half in range(2):
            re, im = RAW + 8 * half, RAW + 8 * half + 4
            o = O + 8 * half
            for k in range(4):
                e(f"v_perm_b32 v{o+2*k}, v{im+k}, v{re+k}, s{S_T0}")
                e(f"v_perm_b32 v{o+2*k+1}, v{im+k}, v{re+k}, s{S_T1}")
            so = S_T3 if half else S_T2
            e(f"buffer_store_dwordx4 v[{o}:{o+3}], v{A}, {srd(SWS)}, s{so} offen{self.wtc}")
            e(f"buffer_store_dwordx4 v[{o+4}:{o+7}], v{A}, {srd(SWS)}, s{so} offen offset:256{self.wtc}")
        p.label("K1_SF_DONE")

    def arrive(self):
        e = self.p.e
        e(f"s_cmp_eq_u32 s{S_W}, 0")
        e(f"s_cselect_b32 s{S_J2}, 0, {OOB}")
        self.mk_srd(SA1, K_DBG, 256)
        e(f"v_mov_b32 v0, 1")
        e("s_mov_b64 exec, 1")
        self.arr_tok = e(f"buffer_atomic_add v0, off, {srd(SA1)}, s{S_J2} sc0")
        e("s_mov_b64 exec, -1")

    def finish(self, k):
        p, e = self.p, self.p.e
        p.wait(self.arr_tok)
        e(f"v_readfirstlane_b32 s{S_T2}, v0")
        e(f"s_cmp_eq_u32 s{S_W}, 0")
        e(f"s_cselect_b32 s{S_T2}, s{S_T2}, 0")
        e(f"s_cmp_eq_u32 s{S_T2}, 255")
        e(f"s_cselect_b32 s{S_T2}, {EPOCH_OFF}, {OOB}")
        e(f"v_mov_b32 v0, s{S_EPOCH}")
        e(f"buffer_store_dword v0, off, {srd(SWS)}, s{S_T2} sc1")
        self.stamp_out(k)
        e("s_endpgm")

    def snapshot(self):
        p = self.p
        return (p.vq, p.vdone, p.lq, p.ldone, dict(self.stage_tok), list(self.pre_barrier), self.nbar, self.mf,
                set(self.seen), list(self.fill), getattr(self, "arr_tok", None))

    def restore(self, s):
        p = self.p
        (p.vq, p.vdone, p.lq, p.ldone, st, pb, self.nbar, self.mf, seen, fill, self.arr_tok) = s
        self.stage_tok, self.pre_barrier, self.seen, self.fill = dict(st), list(pb), set(seen), list(fill)

    def build(self):
        p, e, o = self.p, self.p.e, self.opt
        self.prologue()
        e(f"s_cmp_eq_u32 s{S_TYPE}, 2")
        e("s_cbranch_scc1 K1_TYPE_C")
        snap = self.snapshot()
        self.after_first_barrier = self.arrive
        stages = [("S", i, 0) for i in range(5)] + [("F", i, S_D1) for i in range(10)] + [("F", i, S_D2) for i in range(10)]
        plan = {n: (lambda n=n: self.issue_stage(n + 6, *stages[n + 6])) for n in range(len(stages) - 6)}
        self.issue_stage(5, *stages[5])
        frags = self.s_frags(0, ACC_S) + self.d_frags(5, ACC_D1)
        m0 = self.mf
        g1, g2 = o.get("lb_issue", 80 + 90), o.get("lb_check", 80 + 110)

        def start_ssm():
            self.stamp(5)
            self.ssm_reduce(0, ACC_S)
            self.ssm_finish(0, ACC_S, 188, lambda: self.mf - m0 >= g1, lambda: self.mf - m0 >= g2, "A")
        split = {}

        def at_d2():
            self.stamp(6)
            e(f"s_cmp_eq_u32 s{S_TYPE}, 1")
            e("s_cbranch_scc1 K1_TYPE_B_TAIL")
            split["s"] = self.snapshot()
            self.ffn_epilogue(ACC_D1, S_KD1)
        frags2 = frags + self.d_frags(15, ACC_D2)
        self.gemm(frags2, plan, {81: start_ssm, 240: at_d2})
        self.stamp(7)
        self.ffn_epilogue(ACC_D2, S_KD2)
        self.flush()
        self.finish(8)
        slow_a = list(self.slow)
        p.label("K1_TYPE_B_TAIL")
        self.restore(split["s"])
        self.b_tail = True
        self.stamp(7)
        p.wait_all(vm=False)
        self.mf += 1000
        self.retag = "B"
        self.ffn_epilogue(ACC_D1, S_KD1)
        self.flush()
        self.finish(8)
        p.label("K1_TYPE_C")
        self.restore(snap)
        self.retag = None
        self.after_first_barrier = self.arrive
        stages = [("S", i % 5, i // 5) for i in range(15)]
        plan = {n: (lambda n=n: self.issue_stage(n + 6, *stages[n + 6])) for n in range(len(stages) - 6)}
        self.issue_stage(5, *stages[5])
        frags = self.s_frags(0, 16) + self.s_frags(5, 48) + self.s_frags(10, 80)
        m0 = self.mf

        def c1():
            self.stamp(5)
            self.ssm_reduce(0, 16)

        def c2():
            self.stamp(6)
            self.ssm_reduce(1, 48)
            self.ssm_finish(0, 16, 112, None, lambda: self.mf - m0 >= 215, "C0")
        self.gemm(frags, plan, {81: c1, 161: c2})
        self.stamp(7)
        self.mf += 1000
        self.flush()
        self.ssm_reduce(2, 80)
        self.ssm_finish(1, 48, 112, None, None, "C1")
        self.ssm_finish(2, 80, 112, None, None, "C2")
        self.flush()
        self.finish(8)
        self.slow_paths()
        p.label("K1_END")
        e("s_endpgm")
        p.fix_hazards()
        return p


K1_DESC = """
.amdhsa_kernel proj_kernel
  .amdhsa_next_free_vgpr 512
  .amdhsa_next_free_sgpr 102
  .amdhsa_accum_offset 256
  .amdhsa_group_segment_fixed_size 0
  .amdhsa_kernarg_size 128
  .amdhsa_user_sgpr_count 2
  .amdhsa_user_sgpr_kernarg_segment_ptr 1
  .amdhsa_system_sgpr_workgroup_id_x 1
  .amdhsa_float_denorm_mode_32 3
.end_amdhsa_kernel
"""
```

```python
from asmlib import Prog
from layout import *


def gen_k2(opt):
    p = Prog()
    e = p.e
    p.raw(".p2align 8")
    p.label("gemm2_kernel")
    e("s_cmp_ge_u32 s2, 256")
    e("s_cbranch_scc1 K2_END")
    e("s_load_dwordx2 s[36:37], s[0:1], 0")
    e("s_load_dwordx2 s[52:53], s[0:1], 64")
    e("s_load_dwordx2 s[62:63], s[0:1], 104")
    e("s_load_dwordx2 s[66:67], s[0:1], 120")
    if opt.get("stamp"):
        e("s_memrealtime s[70:71]")
        e("s_memtime s[76:77]")
    e("v_lshrrev_b32 v1, 6, v0")
    e("v_and_b32 v2, 63, v0")
    e("v_readfirstlane_b32 s4, v1")
    e("v_lshlrev_b32 v3, 4, v2")
    e("v_add_u32 v4, 0x1000, v3")
    e("s_and_b32 s5, s2, 7")
    e("s_lshr_b32 s6, s2, 3")
    e("s_lshr_b32 s7, s5, 1")
    e("s_lshl_b32 s7, s7, 3")
    e("s_and_b32 s28, s6, 7")
    e("s_add_u32 s7, s7, s28")
    e("s_and_b32 s5, s5, 1")
    e("s_lshl_b32 s5, s5, 2")
    e("s_lshr_b32 s29, s6, 3")
    e("s_add_u32 s5, s5, s29")
    e("s_mul_i32 s30, s4, 24")
    e("s_cmp_eq_u32 s4, 3")
    e("s_cselect_b32 s31, 1, 0")
    e("s_sub_u32 s30, s30, s31")
    e("s_lshr_b32 s31, s4, 1")
    e("s_sub_u32 s31, 24, s31")
    if opt.get("k2rot", 0):
        e("s_lshl_b32 s32, s29, 1")
        e("s_add_u32 s32, s32, s28")
        e("s_and_b32 s32, s32, 7")
        e(f"s_mul_i32 s32, s32, {opt.get('k2rot', 1)}")
    else:
        e("s_mov_b32 s32, 0")
    e("s_mul_i32 s33, s7, 94")
    e("s_add_u32 s33, s33, s30")
    e("s_lshl_b32 s33, s33, 12")
    e("s_mul_i32 s34, s5, 94")
    e("s_add_u32 s34, s34, s30")
    e("s_mul_i32 s34, s34, 5120")
    e(f"s_add_u32 s34, s34, {W2F_OFF}")
    e("s_mov_b32 s35, 0")
    e(f"s_mov_b32 s27, {OOB}")
    e("s_waitcnt lgkmcnt(0)")
    e("s_mov_b32 s20, s66")
    e("s_mov_b32 s21, s67")
    e(f"s_mov_b32 s22, {WS_USED}")
    e("s_mov_b32 s23, 0x20000")

    BUF = 16

    def addr_step():
        e("s_lshl_b32 s24, s32, 12")
        e("s_add_u32 s24, s24, s33")
        e("s_mul_i32 s25, s32, 5120")
        e("s_add_u32 s25, s25, s34")
        e("s_cmp_lt_u32 s35, s31")
        e("s_cselect_b32 s24, s24, s27")
        e("s_cselect_b32 s25, s25, s27")
        e("s_add_u32 s35, s35, 1")
        e("s_add_u32 s32, s32, 1")
        e("s_cmp_eq_u32 s32, s31")
        e("s_cselect_b32 s32, 0, s32")

    def loads(b):
        base = BUF + 36 * b
        out = []
        for f in range(4):
            out.append(f"buffer_load_dwordx4 v[{base+4*f}:{base+4*f+3}], v3, s[20:23], s24 offen offset:{1024*f}")
        for f in range(5):
            r = base + 16 + 4 * f
            if f < 4:
                out.append(f"buffer_load_dwordx4 v[{r}:{r+3}], v3, s[20:23], s25 offen offset:{1024*f}")
            else:
                out.append(f"buffer_load_dwordx4 v[{r}:{r+3}], v4, s[20:23], s25 offen")
        return out

    for b in range(3):
        addr_step()
        for l in loads(b):
            e(l)
    for i in range(80):
        e(f"v_accvgpr_write_b32 a{i}, 0")
    e("s_mov_b32 s26, 6")
    p.raw(".p2align 6")
    p.label("K2_LOOP")
    for b in range(4):
        base = BUF + 36 * b
        addr_step()
        e("s_waitcnt vmcnt(18)")
        ld = loads((b + 3) % 4)
        k = 0
        for cb in range(5):
            for rb in range(4):
                acc = (cb * 4 + rb) * 4
                wr = base + 16 + 4 * cb
                ar = base + 4 * rb
                e(f"v_mfma_f32_16x16x32_bf16 a[{acc}:{acc+3}], v[{wr}:{wr+3}], v[{ar}:{ar+3}], a[{acc}:{acc+3}]")
                k += 1
                if k % 2 == 0 and ld:
                    e(ld.pop(0))
        assert not ld
    e("s_sub_u32 s26, s26, 1")
    e("s_cmp_lg_u32 s26, 0")
    e("s_cbranch_scc1 K2_LOOP")
    p.vq = p.vdone = 0
    if opt.get("stamp"):
        e("s_memtime s[78:79]")
    e("s_mov_b32 s8, s36"); e("s_mov_b32 s9, s37"); e(f"s_mov_b32 s10, {X_BYTES}"); e("s_mov_b32 s11, 0x20000")
    e("s_mov_b32 s12, s52"); e("s_mov_b32 s13, s53"); e("s_mov_b32 s14, 1280"); e("s_mov_b32 s15, 0x20000")
    e("s_mov_b32 s16, s62"); e("s_mov_b32 s17, s63"); e(f"s_mov_b32 s18, {OUT_BYTES}"); e("s_mov_b32 s19, 0x20000")
    e("s_lshl_b32 s28, s7, 6")
    e("s_lshl_b32 s29, s4, 4")
    e("s_add_u32 s28, s28, s29")
    e("s_mul_i32 s29, s5, 160")
    e("s_mul_i32 s30, s28, 1280")
    e("s_add_u32 s30, s30, s29")
    e("s_lshl_b32 s31, s30, 1")
    e("s_lshl_b32 s33, s28, 3")
    e(f"s_add_u32 s33, s33, {STATS_OFF}")
    e("s_mul_i32 s34, s4, 5376")
    e("s_mov_b32 s35, 0xcccd")
    e("s_waitcnt vmcnt(0)")
    XR, DR, SR, OA, LA = 160, 170, 180, 190, 195
    toks = []
    for i in range(5):
        e(f"v_add_u32 v5, {64*i}, v2")
        e("v_mul_lo_u32 v6, v5, s35")
        e("v_lshrrev_b32 v6, 20, v6")
        e("v_mul_u32_u24 v7, 20, v6")
        e("v_sub_u32 v7, v5, v7")
        e("v_lshlrev_b32 v8, 3, v7")
        e("v_mul_u32_u24 v9, 1280, v6")
        e("v_add_u32 v9, v9, v8")
        e(f"v_lshlrev_b32 v{OA+i}, 1, v9")
        e("v_lshlrev_b32 v10, 3, v6")
        e("v_mul_u32_u24 v11, 336, v6")
        e("v_lshl_add_u32 v11, v7, 4, v11")
        e(f"v_add_u32 v{LA+i}, s34, v11")
        t1 = e(f"buffer_load_dwordx2 v[{XR+2*i}:{XR+2*i+1}], v9, s[8:11], s30 offen")
        t2 = e(f"buffer_load_dwordx2 v[{DR+2*i}:{DR+2*i+1}], v8, s[12:15], s29 offen")
        t3 = e(f"buffer_load_dwordx2 v[{SR+2*i}:{SR+2*i+1}], v10, s[20:23], s33 offen")
        toks.append(t3)
    e("v_and_b32 v5, 15, v2")
    e("v_mul_u32_u24 v5, 336, v5")
    e("v_lshrrev_b32 v6, 4, v2")
    e("v_lshl_add_u32 v5, v6, 4, v5")
    e("s_mul_i32 s35, s4, 21504")
    e("v_add_u32 v5, s35, v5")
    for cb in range(5):
        for rb in range(4):
            acc = (cb * 4 + rb) * 4
            e(f"ds_write_b128 v5, a[{acc}:{acc+3}] offset:{rb*5376 + cb*64}")
    e("s_waitcnt lgkmcnt(0)")
    p.ldone = p.lq
    e("s_barrier")
    e("s_mov_b32 s35, 0xffff0000")
    rd = []
    for i in range(5):
        tk = []
        for wv in range(4):
            r = 16 + 16 * i + 4 * wv
            tk.append(e(f"ds_read_b128 v[{r}:{r+3}], v{LA+i} offset:{wv*21504}"))
        rd.append(tk)
    for i in range(5):
        p.wait(toks[i])
        x0, d0, s0 = XR + 2 * i, DR + 2 * i, SR + 2 * i
        e(f"v_lshlrev_b32 v100, 16, v{x0}"); e(f"v_and_b32 v101, s35, v{x0}")
        e(f"v_lshlrev_b32 v102, 16, v{x0+1}"); e(f"v_and_b32 v103, s35, v{x0+1}")
        e(f"v_lshlrev_b32 v104, 16, v{d0}"); e(f"v_and_b32 v105, s35, v{d0}")
        e(f"v_lshlrev_b32 v106, 16, v{d0+1}"); e(f"v_and_b32 v107, s35, v{d0+1}")
        for k in range(4):
            e(f"v_fma_f32 v{108+k}, v{100+k}, v{s0}, v{s0+1}")
        e("v_cvt_pk_bf16_f32 v112, v108, v109"); e("v_cvt_pk_bf16_f32 v113, v110, v111")
        e("v_lshlrev_b32 v108, 16, v112"); e("v_and_b32 v109, s35, v112")
        e("v_lshlrev_b32 v110, 16, v113"); e("v_and_b32 v111, s35, v113")
        for k in range(4):
            e(f"v_mul_f32 v{108+k}, v{108+k}, v{104+k}")
        e("v_cvt_pk_bf16_f32 v112, v108, v109"); e("v_cvt_pk_bf16_f32 v113, v110, v111")
        e("v_lshlrev_b32 v108, 16, v112"); e("v_and_b32 v109, s35, v112")
        e("v_lshlrev_b32 v110, 16, v113"); e("v_and_b32 v111, s35, v113")
        for k in range(4):
            e(f"v_add_f32 v{100+k}, v{100+k}, v{108+k}")
        p.wait(rd[i][3])
        r = 16 + 16 * i
        for k in range(4):
            e(f"v_add_f32 v{r+k}, v{r+k}, v{r+4+k}")
            e(f"v_add_f32 v{r+8+k}, v{r+8+k}, v{r+12+k}")
        for k in range(4):
            e(f"v_add_f32 v{r+k}, v{r+k}, v{r+8+k}")
        for k in range(4):
            e(f"v_add_f32 v{r+k}, v{r+k}, v{100+k}")
        e(f"buffer_store_dwordx4 v[{r}:{r+3}], v{OA+i}, s[16:19], s31 offen")
    if opt.get("stamp"):
        e("s_memtime s[72:73]")
        e("s_waitcnt vmcnt(0) lgkmcnt(0)")
        e("s_memrealtime s[74:75]")
        e("s_lshl_b32 s28, s2, 2"); e("s_add_u32 s28, s28, s4"); e("s_lshl_b32 s28, s28, 6")
        e(f"s_add_u32 s28, s28, {STAMP2_OFF}")
        e("s_waitcnt lgkmcnt(0)")
        e("v_mov_b32 v5, 0")
        for k, sr in enumerate((70, 74, 76, 78, 72)):
            e(f"v_mov_b32 v6, s{sr}")
            e(f"buffer_store_dword v6, v5, s[20:23], s28 offen offset:{4*k}")
    p.label("K2_END")
    e("s_endpgm")
    n = p.fix_hazards()
    return p


K2_LDS = 4 * 21504
K2_DESC = """
.amdhsa_kernel gemm2_kernel
  .amdhsa_next_free_vgpr 280
  .amdhsa_next_free_sgpr 80
  .amdhsa_accum_offset 200
  .amdhsa_group_segment_fixed_size 0
  .amdhsa_kernarg_size 128
  .amdhsa_user_sgpr_count 2
  .amdhsa_user_sgpr_kernarg_segment_ptr 1
  .amdhsa_system_sgpr_workgroup_id_x 1
  .amdhsa_float_denorm_mode_32 3
.end_amdhsa_kernel
"""
```

```python
import sys, json
from asmlib import align_pass
from k1 import K1, K1_DESC, K1_LDS
from k2 import gen_k2, K2_DESC, K2_LDS

NAME = "parallel_sum__ssm_conv_s5__glu_gated_geglu__prompt"


def build(opt):
    ref = open(f"cdna_kernels/{NAME}.s.ref").read().splitlines()
    head = [l for l in ref if l.startswith(";") and "@launch" not in l and "Override launch" not in l
            and "grid=ceil" not in l]
    out = "\n".join(head[:17]) + "\n"
    if opt.get("dummy") == "pre":
        out += "; @launch kernel=dummy_kernel grid=(256,1,1) block=(256,1,1) lds=0\n"
    out += f"; @launch kernel=proj_kernel grid=(256,1,1) block=(256,1,1) lds={K1_LDS}\n"
    out += f"; @launch kernel=gemm2_kernel grid=(256,1,1) block=(256,1,1) lds={K2_LDS}\n"
    if opt.get("dummy") == "post":
        out += "; @launch kernel=dummy_kernel grid=(256,1,1) block=(256,1,1) lds=0\n"
    out += '.amdgcn_target "amdgcn-amd-amdhsa--gfx950"\n.text\n'
    out += ".globl proj_kernel\n.type proj_kernel,@function\n.globl gemm2_kernel\n.type gemm2_kernel,@function\n"
    out += K1(opt).build().text()
    out += gen_k2(opt).text()
    if opt.get("dummy"):
        out += ".p2align 8\n.globl dummy_kernel\n.type dummy_kernel,@function\ndummy_kernel:\n    s_endpgm\n"
    out += "TEXT_END:\n"
    out += '.section .rodata,"a"\n.p2align 6' + K1_DESC + ".p2align 6" + K2_DESC
    if opt.get("dummy"):
        out += ".p2align 6" + K2_DESC.replace("gemm2_kernel", "dummy_kernel").replace("vgpr 280", "vgpr 8").replace("offset 200", "offset 8")
    if opt.get('align', 1):
        out = align_pass(out)
    return out


if __name__ == "__main__":
    path = sys.argv[1]
    opt = json.loads(sys.argv[2]) if len(sys.argv) > 2 else {}
    open(path, "w").write(build(opt))
    print("wrote", path)
```

```python
from asmlib import Prog
from layout import *


def gen_k2(opt):
    p = Prog()
    e = p.e
    p.raw(".p2align 8")
    p.label("gemm2_kernel")
    e("s_cmp_ge_u32 s2, 256")
    e("s_cbranch_scc1 K2_END")
    e("s_load_dwordx2 s[36:37], s[0:1], 0")
    e("s_load_dwordx2 s[52:53], s[0:1], 64")
    e("s_load_dwordx2 s[62:63], s[0:1], 104")
    e("s_load_dwordx2 s[66:67], s[0:1], 120")
    if opt.get("stamp"):
        e("s_memrealtime s[70:71]")
        e("s_memtime s[76:77]")
    e("v_lshrrev_b32 v1, 6, v0")
    e("v_and_b32 v2, 63, v0")
    e("v_readfirstlane_b32 s4, v1")
    e("v_lshlrev_b32 v3, 4, v2")
    e("v_add_u32 v4, 0x1000, v3")
    e("s_and_b32 s5, s2, 7")
    e("s_lshr_b32 s6, s2, 3")
    e("s_lshr_b32 s7, s5, 1")
    e("s_lshl_b32 s7, s7, 3")
    e("s_and_b32 s28, s6, 7")
    e("s_add_u32 s7, s7, s28")
    e("s_and_b32 s5, s5, 1")
    e("s_lshl_b32 s5, s5, 2")
    e("s_lshr_b32 s29, s6, 3")
    e("s_add_u32 s5, s5, s29")
    e("s_mul_i32 s30, s4, 24")
    e("s_cmp_eq_u32 s4, 3")
    e("s_cselect_b32 s31, 1, 0")
    e("s_sub_u32 s30, s30, s31")
    e("s_lshr_b32 s31, s4, 1")
    e("s_sub_u32 s31, 24, s31")
    if opt.get("k2rot", 0):
        e("s_lshl_b32 s32, s29, 1")
        e("s_add_u32 s32, s32, s28")
        e("s_and_b32 s32, s32, 7")
        e(f"s_mul_i32 s32, s32, {opt.get('k2rot', 1)}")
    else:
        e("s_mov_b32 s32, 0")
    e("s_mul_i32 s33, s7, 94")
    e("s_add_u32 s33, s33, s30")
    e("s_lshl_b32 s33, s33, 12")
    e("s_mul_i32 s34, s5, 94")
    e("s_add_u32 s34, s34, s30")
    e("s_mul_i32 s34, s34, 5120")
    e(f"s_add_u32 s34, s34, {W2F_OFF}")
    e("s_mov_b32 s35, 0")
    e(f"s_mov_b32 s27, {OOB}")
    e("s_waitcnt lgkmcnt(0)")
    e("s_mov_b32 s20, s66")
    e("s_mov_b32 s21, s67")
    e(f"s_mov_b32 s22, {WS_USED}")
    e("s_mov_b32 s23, 0x20000")

    BUF = 16

    def addr_step():
        e("s_lshl_b32 s24, s32, 12")
        e("s_add_u32 s24, s24, s33")
        e("s_mul_i32 s25, s32, 5120")
        e("s_add_u32 s25, s25, s34")
        e("s_cmp_lt_u32 s35, s31")
        e("s_cselect_b32 s24, s24, s27")
        e("s_cselect_b32 s25, s25, s27")
        e("s_add_u32 s35, s35, 1")
        e("s_add_u32 s32, s32, 1")
        e("s_cmp_eq_u32 s32, s31")
        e("s_cselect_b32 s32, 0, s32")

    def loads(b):
        base = BUF + 36 * b
        out = []
        for f in range(4):
            out.append(f"buffer_load_dwordx4 v[{base+4*f}:{base+4*f+3}], v3, s[20:23], s24 offen offset:{1024*f}")
        for f in range(5):
            r = base + 16 + 4 * f
            if f < 4:
                out.append(f"buffer_load_dwordx4 v[{r}:{r+3}], v3, s[20:23], s25 offen offset:{1024*f}")
            else:
                out.append(f"buffer_load_dwordx4 v[{r}:{r+3}], v4, s[20:23], s25 offen")
        return out

    for b in range(3):
        addr_step()
        for l in loads(b):
            e(l)
    for i in range(80):
        e(f"v_accvgpr_write_b32 a{i}, 0")
    e("s_mov_b32 s26, 6")
    p.raw(".p2align 6")
    p.label("K2_LOOP")
    for b in range(4):
        base = BUF + 36 * b
        addr_step()
        e("s_waitcnt vmcnt(18)")
        ld = loads((b + 3) % 4)
        k = 0
        for cb in range(5):
            for rb in range(4):
                acc = (cb * 4 + rb) * 4
                wr = base + 16 + 4 * cb
                ar = base + 4 * rb
                e(f"v_mfma_f32_16x16x32_bf16 a[{acc}:{acc+3}], v[{wr}:{wr+3}], v[{ar}:{ar+3}], a[{acc}:{acc+3}]")
                k += 1
                if k % 2 == 0 and ld:
                    e(ld.pop(0))
        assert not ld
    e("s_sub_u32 s26, s26, 1")
    e("s_cmp_lg_u32 s26, 0")
    e("s_cbranch_scc1 K2_LOOP")
    p.vq = p.vdone = 0
    if opt.get("stamp"):
        e("s_memtime s[78:79]")
    e("s_mov_b32 s8, s36"); e("s_mov_b32 s9, s37"); e(f"s_mov_b32 s10, {X_BYTES}"); e("s_mov_b32 s11, 0x20000")
    e("s_mov_b32 s12, s52"); e("s_mov_b32 s13, s53"); e("s_mov_b32 s14, 1280"); e("s_mov_b32 s15, 0x20000")
    e("s_mov_b32 s16, s62"); e("s_mov_b32 s17, s63"); e(f"s_mov_b32 s18, {OUT_BYTES}"); e("s_mov_b32 s19, 0x20000")
    e("s_lshl_b32 s28, s7, 6")
    e("s_lshl_b32 s29, s4, 4")
    e("s_add_u32 s28, s28, s29")
    e("s_mul_i32 s29, s5, 160")
    e("s_mul_i32 s30, s28, 1280")
    e("s_add_u32 s30, s30, s29")
    e("s_lshl_b32 s31, s30, 1")
    e("s_lshl_b32 s33, s28, 3")
    e(f"s_add_u32 s33, s33, {STATS_OFF}")
    e("s_mul_i32 s34, s4, 5376")
    e("s_mov_b32 s35, 0xcccd")
    e("s_waitcnt vmcnt(0)")
    XR, DR, SR, OA, LA = 160, 170, 180, 190, 195
    toks = []
    for i in range(5):
        e(f"v_add_u32 v5, {64*i}, v2")
        e("v_mul_lo_u32 v6, v5, s35")
        e("v_lshrrev_b32 v6, 20, v6")
        e("v_mul_u32_u24 v7, 20, v6")
        e("v_sub_u32 v7, v5, v7")
        e("v_lshlrev_b32 v8, 3, v7")
        e("v_mul_u32_u24 v9, 1280, v6")
        e("v_add_u32 v9, v9, v8")
        e(f"v_lshlrev_b32 v{OA+i}, 1, v9")
        e("v_lshlrev_b32 v10, 3, v6")
        e("v_mul_u32_u24 v11, 336, v6")
        e("v_lshl_add_u32 v11, v7, 4, v11")
        e(f"v_add_u32 v{LA+i}, s34, v11")
        t1 = e(f"buffer_load_dwordx2 v[{XR+2*i}:{XR+2*i+1}], v9, s[8:11], s30 offen")
        t2 = e(f"buffer_load_dwordx2 v[{DR+2*i}:{DR+2*i+1}], v8, s[12:15], s29 offen")
        t3 = e(f"buffer_load_dwordx2 v[{SR+2*i}:{SR+2*i+1}], v10, s[20:23], s33 offen")
        toks.append(t3)
    e("v_and_b32 v5, 15, v2")
    e("v_mul_u32_u24 v5, 336, v5")
    e("v_lshrrev_b32 v6, 4, v2")
    e("v_lshl_add_u32 v5, v6, 4, v5")
    e("s_mul_i32 s35, s4, 21504")
    e("v_add_u32 v5, s35, v5")
    for cb in range(5):
        for rb in range(4):
            acc = (cb * 4 + rb) * 4
            e(f"ds_write_b128 v5, a[{acc}:{acc+3}] offset:{rb*5376 + cb*64}")
    e("s_waitcnt lgkmcnt(0)")
    p.ldone = p.lq
    e("s_barrier")
    e("s_mov_b32 s35, 0xffff0000")
    rd = []
    for i in range(5):
        tk = []
        for wv in range(4):
            r = 16 + 16 * i + 4 * wv
            tk.append(e(f"ds_read_b128 v[{r}:{r+3}], v{LA+i} offset:{wv*21504}"))
        rd.append(tk)
    for i in range(5):
        p.wait(toks[i])
        x0, d0, s0 = XR + 2 * i, DR + 2 * i, SR + 2 * i
        e(f"v_lshlrev_b32 v100, 16, v{x0}"); e(f"v_and_b32 v101, s35, v{x0}")
        e(f"v_lshlrev_b32 v102, 16, v{x0+1}"); e(f"v_and_b32 v103, s35, v{x0+1}")
        e(f"v_lshlrev_b32 v104, 16, v{d0}"); e(f"v_and_b32 v105, s35, v{d0}")
        e(f"v_lshlrev_b32 v106, 16, v{d0+1}"); e(f"v_and_b32 v107, s35, v{d0+1}")
        for k in range(4):
            e(f"v_fma_f32 v{108+k}, v{100+k}, v{s0}, v{s0+1}")
        e("v_cvt_pk_bf16_f32 v112, v108, v109"); e("v_cvt_pk_bf16_f32 v113, v110, v111")
        e("v_lshlrev_b32 v108, 16, v112"); e("v_and_b32 v109, s35, v112")
        e("v_lshlrev_b32 v110, 16, v113"); e("v_and_b32 v111, s35, v113")
        for k in range(4):
            e(f"v_mul_f32 v{108+k}, v{108+k}, v{104+k}")
        e("v_cvt_pk_bf16_f32 v112, v108, v109"); e("v_cvt_pk_bf16_f32 v113, v110, v111")
        e("v_lshlrev_b32 v108, 16, v112"); e("v_and_b32 v109, s35, v112")
        e("v_lshlrev_b32 v110, 16, v113"); e("v_and_b32 v111, s35, v113")
        for k in range(4):
            e(f"v_add_f32 v{100+k}, v{100+k}, v{108+k}")
        p.wait(rd[i][3])
        r = 16 + 16 * i
        for k in range(4):
            e(f"v_add_f32 v{r+k}, v{r+k}, v{r+4+k}")
            e(f"v_add_f32 v{r+8+k}, v{r+8+k}, v{r+12+k}")
        for k in range(4):
            e(f"v_add_f32 v{r+k}, v{r+k}, v{r+8+k}")
        for k in range(4):
            e(f"v_add_f32 v{r+k}, v{r+k}, v{100+k}")
        e(f"buffer_store_dwordx4 v[{r}:{r+3}], v{OA+i}, s[16:19], s31 offen")
    if opt.get("stamp"):
        e("s_memtime s[72:73]")
        e("s_waitcnt vmcnt(0) lgkmcnt(0)")
        e("s_memrealtime s[74:75]")
        e("s_lshl_b32 s28, s2, 2"); e("s_add_u32 s28, s28, s4"); e("s_lshl_b32 s28, s28, 6")
        e(f"s_add_u32 s28, s28, {STAMP2_OFF}")
        e("s_waitcnt lgkmcnt(0)")
        e("v_mov_b32 v5, 0")
        for k, sr in enumerate((70, 74, 76, 78, 72)):
            e(f"v_mov_b32 v6, s{sr}")
            e(f"buffer_store_dword v6, v5, s[20:23], s28 offen offset:{4*k}")
    if opt.get("dbgstamp"):
        e("s_load_dwordx2 s[64:65], s[0:1], 112")
        e(f"v_mov_b32 v5, {STAMP1_OFF + 56}")
        e(f"v_lshl_add_u32 v5, v2, 8, v5")
        e("buffer_load_dword v8, v5, s[20:23], 0 offen sc1")
        e("buffer_load_dword v9, v5, s[20:23], 0 offen offset:4 sc1")
        e("s_waitcnt vmcnt(0) lgkmcnt(0)")
        e("v_readfirstlane_b32 s40, v8")
        e("s_mov_b32 s12, s64"); e("s_mov_b32 s13, s65"); e("s_mov_b32 s14, 256"); e("s_mov_b32 s15, 0x20000")
        e("v_subrev_u32 v9, s40, v9")
        e("s_sub_u32 s41, s74, s40"); e("s_sub_u32 s42, s70, s40")
        e("v_mov_b32 v6, s41"); e("v_mov_b32 v7, s42")
        e("buffer_atomic_umax v9, off, s[12:15], 0 offset:8")
        e("s_mov_b64 exec, 1")
        e("buffer_atomic_umax v6, off, s[12:15], 0")
        e("buffer_atomic_umax v7, off, s[12:15], 0 offset:4")
        e("s_waitcnt vmcnt(0)")
    p.label("K2_END")
    e("s_endpgm")
    n = p.fix_hazards()
    return p


K2_LDS = 4 * 21504
K2_DESC = """
.amdhsa_kernel gemm2_kernel
  .amdhsa_next_free_vgpr 280
  .amdhsa_next_free_sgpr 80
  .amdhsa_accum_offset 200
  .amdhsa_group_segment_fixed_size 0
  .amdhsa_kernarg_size 128
  .amdhsa_user_sgpr_count 2
  .amdhsa_user_sgpr_kernarg_segment_ptr 1
  .amdhsa_system_sgpr_workgroup_id_x 1
  .amdhsa_float_denorm_mode_32 3
.end_amdhsa_kernel
"""
```

```python
import re

TRANS = ("v_exp_f32", "v_log_f32", "v_rcp_f32", "v_rsq_f32", "v_sqrt_f32", "v_sin_f32", "v_cos_f32")
_REG = re.compile(r"^-?\|?(?:abs\()?([vas])(?:(\d+)|\[(\d+):(\d+)\])\)?\|?$")


def regs_of(tok):
    tok = tok.strip()
    if tok in ("vcc", "vcc_lo", "vcc_hi"):
        return {("s", 106), ("s", 107)}
    if tok == "m0":
        return {("s", 124)}
    if tok in ("exec", "exec_lo", "exec_hi"):
        return {("s", 126), ("s", 127)}
    m = _REG.match(tok)
    if not m:
        return set()
    f = m.group(1)
    if m.group(2) is not None:
        return {(f, int(m.group(2)))}
    return {(f, i) for i in range(int(m.group(3)), int(m.group(4)) + 1)}


def split_ops(s):
    out, depth, cur = [], 0, ""
    for ch in s:
        if ch in "[(":
            depth += 1
        if ch in "])":
            depth -= 1
        if ch == "," and depth == 0:
            out.append(cur.strip()); cur = ""
        else:
            cur += ch
    if cur.strip():
        out.append(cur.strip())
    return out


class Ins:
    def __init__(self, text):
        self.text = text
        t = text.split(";")[0].strip()
        self.is_label = t.endswith(":")
        self.is_dir = t.startswith(".")
        self.mn = "" if (self.is_label or self.is_dir or not t) else t.split()[0]
        self.w, self.r = set(), set()
        self.srcc = set()
        self.ab = set()
        if not self.mn:
            return
        rest = t[len(self.mn):].strip()
        ops = split_ops(rest)
        if ops:
            last = ops[-1].split()
            ops[-1] = last[0]
            self.mods = last[1:]
        else:
            self.mods = []
        self.ops = ops
        mn = self.mn
        R = [regs_of(o) for o in ops]
        self.valu = mn.startswith("v_") and not mn.startswith("v_mfma")
        self.mfma = mn.startswith("v_mfma")
        self.trans = mn.replace("_e32", "").replace("_e64", "") in TRANS
        self.vmem = mn.startswith(("buffer_", "global_"))
        self.ds = mn.startswith("ds_")
        self.salu = mn.startswith("s_")
        self.lds_dma = self.vmem and ("lds" in self.mods or "_lds_" in mn)
        self.dpp = any(m.startswith(("row_", "quad_perm", "wave_")) for m in self.mods)
        if self.mfma:
            self.w = R[0]; self.ab = R[1] | R[2]; self.srcc = R[3] if len(R) > 3 else set()
            self.r = self.ab | self.srcc
            self.passes = 8 if "32x32x16" in mn else 4
        elif self.valu:
            if mn.startswith("v_permlane") and "swap" in mn:
                self.w = R[0] | R[1]; self.r = R[0] | R[1]
            elif mn.startswith("v_cmp"):
                self.w = R[0]; self.r = set().union(*R[1:])
            elif mn.startswith(("v_add_co", "v_sub_co", "v_addc_co")):
                self.w = R[0] | R[1]; self.r = set().union(*R[2:])
            else:
                self.w = R[0]; self.r = set().union(*R[1:]) if len(R) > 1 else set()
                if mn.startswith(("v_fmac", "v_dot2c", "v_mov_b32_dpp")) or self.dpp:
                    self.r |= R[0]
                if mn.startswith("v_cndmask") and len(ops) == 3:
                    self.r |= regs_of("vcc")
        elif self.ds:
            if mn.startswith("ds_read"):
                self.w = R[0]; self.r = set().union(*R[1:])
            else:
                self.r = set().union(*R)
        elif self.vmem:
            if mn.startswith(("buffer_wbl2", "buffer_inv")):
                pass
            elif self.lds_dma:
                self.r = set().union(*R) | regs_of("m0")
            elif "store" in mn:
                self.r = set().union(*R)
                self.store_data = R[0] if mn.startswith("buffer_") else R[1]
            elif "atomic" in mn:
                self.r = set().union(*R)
                if "sc0" in self.mods:
                    self.w = R[0]
            else:
                self.w = R[0]; self.r = set().union(*R[1:])
        elif self.salu:
            if mn.startswith(("s_cmp", "s_cbranch", "s_branch", "s_waitcnt", "s_barrier", "s_nop", "s_endpgm",
                              "s_setprio", "s_sleep", "s_bitcmp")):
                self.r = set().union(*R) if R else set()
            else:
                self.w = R[0]; self.r = set().union(*R[1:]) if len(R) > 1 else set()

    def states(self):
        if not self.mn:
            return 0
        if self.mn == "s_nop":
            return int(self.ops[0]) + 1
        return 1


def need(prod, cons):
    n = 0
    pv = {x for x in prod.w if x[0] in "va"}
    ps = {x for x in prod.w if x[0] == "s"}
    if prod.valu:
        if cons.mfma and pv & cons.r:
            n = max(n, 2)
        if prod.trans and cons.valu and not cons.trans and pv & cons.r:
            n = max(n, 1)
        if prod.trans and cons.valu and cons.trans and pv & cons.r:
            n = max(n, 1)
        if cons.valu and cons.mn.startswith("v_permlane") and pv & cons.r:
            n = max(n, 2)
        if cons.valu and cons.mn.startswith(("v_readlane", "v_readfirstlane")) and pv & cons.r:
            n = max(n, 1)
        if cons.valu and cons.dpp and pv & cons.r:
            n = max(n, 2)
        if ps:
            if cons.valu and ps & cons.r:
                n = max(n, 2)
            if cons.vmem and ps & cons.r:
                n = max(n, 5)
            if cons.salu and ps & cons.r:
                n = max(n, 2)
            if cons.mn.startswith("s_cbranch_vcc") and ("s", 106) in ps:
                n = max(n, 2)
    if prod.valu and prod.mn.startswith("v_dot2") and cons.mn.split("_e")[0] != prod.mn.split("_e")[0]:
        if pv & (cons.r | cons.w):
            n = max(n, 3)
    if prod.mfma:
        big = {8: 12, 4: 8}[prod.passes]
        ovl = {8: 10, 4: 6}[prod.passes]
        war = {8: 7, 4: 3}[prod.passes]
        if cons.mfma:
            if prod.w & cons.ab:
                n = max(n, big)
            if prod.w & cons.srcc and not (prod.w == cons.srcc and prod.passes == cons.passes):
                n = max(n, ovl)
            if prod.w & cons.w and not (prod.w == cons.srcc):
                n = max(n, big)
        else:
            if prod.w & (cons.r | cons.w):
                n = max(n, big)
            if cons.valu and prod.srcc & cons.w:
                n = max(n, war)
    if prod.salu and ("s", 124) in prod.w and cons.vmem and cons.lds_dma:
        n = max(n, 1)
    if prod.vmem and hasattr(prod, "store_data") and ("x4" in prod.mn or "x3" in prod.mn):
        if prod.store_data & cons.w:
            n = max(n, 2)
    if prod.ds and prod.mn.startswith(("ds_write_b128", "ds_write_b96")) and cons.valu:
        if regs_of(prod.ops[1]) & cons.w:
            n = max(n, 2)
    return n


def cost_of(text):
    mn = text.split()[0]
    if mn.replace("_e32", "").replace("_e64", "") in TRANS or mn.startswith("v_mfma"):
        return 2
    if mn.startswith(("buffer_", "global_")):
        return 2
    return 1


class Prog:
    def __init__(self):
        self.ins = []
        self.vq = 0
        self.vdone = 0
        self.lq = 0
        self.ldone = 0
        self.slots = 0

    def raw(self, text):
        self.ins.append(Ins(text))

    def e(self, text):
        i = Ins(text)
        self.ins.append(i)
        if i.mn:
            self.slots += cost_of(text)
        if i.mn:
            if i.vmem and not i.mn.startswith(("buffer_wbl2", "buffer_inv")):
                self.vq += 1
                return ("v", self.vq)
            if i.ds:
                self.lq += 1
                return ("l", self.lq)
        return None

    def label(self, name):
        self.ins.append(Ins(name + ":"))

    def wait(self, *toks):
        vn = max([t[1] for t in toks if t and t[0] == "v"], default=0)
        ln = max([t[1] for t in toks if t and t[0] == "l"], default=0)
        parts = []
        if vn > self.vdone:
            c = self.vq - vn
            assert c <= 63, c
            parts.append(f"vmcnt({c})"); self.vdone = vn
        if ln > self.ldone:
            c = self.lq - ln
            if c > 15:
                c = 15; ln = self.lq - 15
            parts.append(f"lgkmcnt({c})"); self.ldone = max(self.ldone, ln)
        if parts:
            self.e("s_waitcnt " + " ".join(parts))

    def wait_all(self, vm=True, lgkm=True):
        parts = []
        if vm:
            parts.append("vmcnt(0)"); self.vdone = self.vq
        if lgkm:
            parts.append("lgkmcnt(0)"); self.ldone = self.lq
        self.e("s_waitcnt " + " ".join(parts))

    def fix_hazards(self):
        out = []
        added = 0
        for c in self.ins:
            if c.mn:
                req, dist = 0, 0
                for p in reversed(out):
                    if p.is_label and getattr(p, "barrier", False):
                        break
                    if p.mn:
                        k = need(p, c)
                        if k > dist:
                            req = max(req, k - dist)
                        dist += p.states()
                        if dist >= 20:
                            break
                while req > 0:
                    k = min(req, 16)
                    out.append(Ins(f"s_nop {k-1}")); req -= k; added += 1
            out.append(c)
        self.ins = out
        return added

    def text(self):
        lines = []
        for i in self.ins:
            lines.append(i.text if (i.is_label or i.is_dir) else "    " + i.text)
        return "\n".join(lines) + "\n"


def align_pass(text):
    import subprocess, tempfile, os
    d = tempfile.mkdtemp()
    src, obj = os.path.join(d, "a.s"), os.path.join(d, "a.o")
    open(src, "w").write(text)
    subprocess.run(["clang", "-x", "assembler", "-target", "amdgcn-amd-amdhsa", "-mcpu=gfx950",
                    "-c", src, "-o", obj], check=True)
    dis = subprocess.run(["llvm-objdump", "-d", "--mcpu=gfx950", obj], capture_output=True,
                         text=True).stdout
    enc = []
    for l in dis.splitlines():
        m = re.search(r"^\s+(\S+).*//\s*([0-9A-F]{12}):((?: [0-9A-F]{8})+)", l)
        if m:
            enc.append((m.group(1), int(m.group(2), 16), 4 * len(m.group(3).split())))
    lines = text.split("\n")
    idx = []
    in_text = True
    for n, l in enumerate(lines):
        t = l.split(";")[0].strip()
        if t.startswith(".section"):
            in_text = False
        if in_text and t and not t.startswith(".") and not t.endswith(":"):
            idx.append(n)
    sizes, k = [], 0
    for n in idx:
        mn = lines[n].split()[0]
        while not enc[k][0].startswith(mn.replace("_e32", "").replace("_e64", "")):
            k += 1
        sizes.append(enc[k]); k += 1
    NOFLEX = ("v_readfirstlane", "v_dot2c", "v_permlane", "v_nop", "v_cmp")
    FMA = re.compile(r"^\s*v_fma_f32 (v\d+), ([vs]\d+), (v\d+), (v\d+)\s*$")
    FMA2 = re.compile(r"^\s*v_fma_f32 (v\d+), (v\d+), (s\d+), (v\d+)\s*$")
    PAD = 7
    opts = []
    resets = set()
    prev = -1
    for j, n in enumerate(idx):
        if any(lines[x].strip().startswith(".p2align") for x in range(prev + 1, n)):
            resets.add(j)
        prev = n
        name, _, sz = sizes[j]
        l = lines[n]
        mn = l.split()[0]
        o = [(sz, l, 0)]
        if sz == 4 and name.endswith("_e32") and not name.startswith(NOFLEX):
            o.append((8, l.replace(mn, mn + "_e64", 1), 0))
        elif sz == 4:
            o.append((8, l + "\n    s_nop 0", PAD))
        m = FMA.match(l)
        if m and m.group(1) == m.group(4):
            o.append((4, f"    v_fmac_f32 {m.group(1)}, {m.group(2)}, {m.group(3)}", 0))
        opts.append(o)
    INF = 10 ** 9
    best = [0, INF]
    back = []
    for j, o in enumerate(opts):
        if j in resets:
            st = 0 if best[0] <= best[1] else 1
            forced = st
            best = [min(best), INF]
        else:
            forced = None
        nb, bk = [INF, INF], [None, None]
        for ph in (0, 1):
            if best[ph] >= INF:
                continue
            for k, (sz, l, extra) in enumerate(o):
                glued = "s_nop" in l and sz == 8 and extra
                c = best[ph] + extra + (1 if (sz >= 8 and ph == 1 and not glued) else 0)
                np_ = (ph + sz // 4) % 2
                if c < nb[np_] or (c == nb[np_] and k == 0):
                    nb[np_], bk[np_] = c, (ph, k, forced)
        best = nb
        back.append(bk)
    ph = 0 if best[0] <= best[1] else 1
    for j in range(len(opts) - 1, -1, -1):
        pph, k, forced = back[j][ph]
        lines[idx[j]] = opts[j][k][1]
        ph = forced if forced is not None else pph
    return "\n".join(lines)
```

```python
import struct
from asmlib import Prog, cost_of
from layout import *

S_W, S_MT, S_CG, S_R = 4, 5, 6, 7
SX, SS, SF, SWS, SA1, SA2 = 8, 12, 16, 20, 24, 28
S_T0, S_T1, S_T2, S_T3 = 32, 33, 34, 35
K_X, K_LRE, K_LIM, K_BRE, K_BIM, K_CRE, K_CIM, K_LDT = 36, 38, 40, 42, 44, 46, 48, 50
K_DSK, K_BX, K_WG, K_WU, K_WD, K_OUT, K_DBG, K_WS = 52, 54, 56, 58, 60, 62, 64, 66
S_KS = 68
S_KF = 73
S_W4K, S_XB, S_SB, S_SBROW, S_D1, S_D2, S_TYPE, S_EPOCH, S_MASK = 78, 79, 80, 81, 82, 83, 84, 85, 86
S_A2ROW, S_GK2, S_JOB, S_KD1, S_KD2, S_SPIN, S_J1 = 87, 88, 89, 90, 91, 92, 93
S_J2 = 3
STAMP_REGS = [96, 54, 62, 64, 36, 38, 40, 50, 66, 42, 44, 56, 58]
S_HM = 98
S_M2 = 100

V_LANE, V_OF, V_TR, V_STA, V_GK1, V_SEG, V_PUB, V_XW, V_XR = 1, 2, 6, 10, 11, 12, 13, 14, 15
RAW = 16
ACC_S, ACC_D1, ACC_D2 = 16, 48, 112
V_C = 176
V_OS = 212
V_AS = 216
V_JC = 228
V_JW = 208
V_LBO = 232
V_TW = 234
V_PRE = 237
V_STAMP = 243
V_X = 244
XN = 0
FR = 160

LDS_SCR = 131072
SCR_W = 8192
XCH = LDS_SCR + 6144
K1_LDS = 163840

LOG2E = 1.4426950408889634
GK1 = -2.0 * 0.7978845608028654 * LOG2E
GK2 = GK1 * 0.044715


def fx(x):
    return "0x%08x" % struct.unpack("<I", struct.pack("<f", x))[0]


def srd(n):
    return f"s[{n}:{n+3}]"


class K1:
    def __init__(self, opt):
        self.opt = opt
        self.p = Prog()
        self.fill = []
        self.dq = []
        self.norm = []
        self.stage_tok = {}
        self.pre_barrier = []
        self.nbar = 0
        self.mf = 0
        self.seen = set()
        self.slow = []
        self.refused = []
        self.after_first_barrier = None
        self.wt = opt.get("wt", " sc1")

    def stamp(self, k):
        if not self.opt.get("stamp"):
            return
        r = STAMP_REGS[k]
        ins = "s_memrealtime" if self.opt.get("rt") else "s_memtime"
        self.p.e(f"{ins} s[{r}:{r+1}]")
        if self.opt.get("verbose"):
            print("stamp", k, "slots", self.p.slots, "fill left", len(self.fill))

    def stamp_out(self, n):
        if not self.opt.get("stamp"):
            return
        p, e = self.p, self.p.e
        self.stamp(n)
        p.wait_all()
        self.stamp(n + 1)
        e(f"s_memrealtime s[{S_M2}:{S_M2+1}]")
        e(f"s_lshl_b32 s{S_T0}, s2, 2"); e(f"s_add_u32 s{S_T0}, s{S_T0}, s{S_W}")
        e(f"s_lshl_b32 s{S_T0}, s{S_T0}, 6"); e(f"s_add_u32 s{S_T0}, s{S_T0}, {STAMP1_OFF}")
        e("s_waitcnt lgkmcnt(0)")
        for k, r in enumerate(STAMP_REGS[:13]):
            e(f"v_mov_b32 v{V_STAMP}, s{r}")
            e(f"buffer_store_dword v{V_STAMP}, off, {srd(SWS)}, s{S_T0} offset:{4*k}")
        for k, r in ((13, S_SPIN), (14, 94), (15, S_M2)):
            e(f"v_mov_b32 v{V_STAMP}, s{r}")
            e(f"buffer_store_dword v{V_STAMP}, off, {srd(SWS)}, s{S_T0} offset:{4*k}")

    def issue_stage(self, n, kind, i, arg):
        e = self.p.e
        slot = n % 8

        def piece(q):
            if q == 0:
                e(f"s_mov_b32 m0, s{S_J1}" if kind == "W" else f"s_add_u32 m0, s{S_W4K}, {slot*16384}")
                if kind == "S":
                    e(f"s_add_u32 s{S_T0}, s{S_SBROW}, s{S_KS+i}")
                    if arg:
                        e(f"s_add_u32 s{S_T0}, s{S_T0}, {arg*32*1280}")
                elif kind == "F":
                    e(f"s_add_u32 s{S_T0}, s{arg}, s{S_KF+(i>>1)}")
                    if i & 1:
                        e(f"s_add_u32 s{S_T0}, s{S_T0}, {64*3456}")
                else:
                    self.job_source(kind, i)
            vo, d, off = {"S": (V_OS + q, SS, q), "F": (V_OF + q, SF, q), "W": (V_JW + q, SA1, q),
                          "C": (V_JC + q % 2, SA1 if q < 2 else SA2, q % 2)}[kind]
            if kind == "C" and q == 2:
                e("s_add_u32 m0, m0, 2048")
            t = e(f"buffer_load_dwordx4 v{vo}, {srd(d)}, s{S_T0} offen offset:{1024*off} lds")
            if q == 3:
                self.stage_tok[n] = t
        for q in range(4):
            self.dq.append(lambda q=q: piece(q))

    def dma(self):
        if self.dq:
            self.dq.pop(0)()

    def barrier(self, *toks):
        p = self.p
        p.wait(*toks, *self.pre_barrier)
        self.pre_barrier = []
        p.e("s_barrier")
        self.nbar += 1
        if self.after_first_barrier:
            f, self.after_first_barrier = self.after_first_barrier, None
            f()

    def pull(self, budget):
        p = self.p
        start = p.slots
        while self.fill and p.slots - start < budget:
            it = self.fill[0]
            if isinstance(it, tuple):
                if not it[1]():
                    return
                self.fill.pop(0)
                continue
            if p.slots - start + getattr(it, "cost", 1) > budget and not (it in self.refused):
                self.refused.append(it)
                return
            self.fill.pop(0)
            it()

    def flush(self):
        while self.fill:
            it = self.fill.pop(0)
            if isinstance(it, tuple):
                if it[0] == "bar" and not it[1]():
                    self.barrier()
                continue
            it()

    def gemm(self, frags, plan, hooks=None):
        p, o = self.p, self.opt
        LA = 7
        toks = {}
        n = len(frags)

        def read(idx):
            fr = frags[idx]
            st = fr["stage"]
            if st not in self.seen:
                self.seen.add(st)
                while st not in self.stage_tok:
                    self.dma()
                self.barrier(self.stage_tok[st])
                if st in plan:
                    plan[st]()
            r = FR + 4 * (idx % 8)
            for txt in fr["reads"]:
                toks[idx] = p.e(txt.format(f0=r, f1=r + 1, f2=r + 2, f3=r + 3))
        for idx in range(LA):
            read(idx)
        grp = o.get("wgrp", 4)
        for idx in range(n):
            if hooks and idx in hooks:
                hooks[idx]()
            if idx in o.get("xstamps", []):
                self.stamp(10 + o["xstamps"].index(idx))
            if idx % grp == 0:
                p.wait(toks[min(idx + grp - 1, n - 1)])
            start = p.slots
            r = FR + 4 * (idx % 8)
            p.e(frags[idx]["mfma"].format(f0=r, f3=r + 3))
            self.mf += 1
            if idx + LA < n:
                read(idx + LA)
            dper = o.get("dper", 4)
            if idx % dper == 1 or (len(self.dq) > 4 and idx % 2 == 1):
                self.dma()
            if self.norm:
                for x in self.norm.pop(0):
                    p.e(x)
            elif o.get("interleave", 1):
                self.pull(o.get("budget", 8) - (p.slots - start) - (1 if (idx + 1) % grp == 0 else 0))

    def s_frags(self, st0, acc):
        out = []
        for s in range(40):
            st = st0 + s // 8
            slot = st % 8
            for mat in range(2):
                a = V_AS + 8 * (slot // 4) + (s % 8)
                off = (slot % 4) * 16384 + mat * 8192
                c = f"v[{acc+16*mat}:{acc+16*mat+15}]"
                cin = c if s else "0"
                out.append(dict(stage=st, reads=[f"ds_read_b128 a[{{f0}}:{{f3}}], v{a} offset:{off}"],
                                mfma=f"v_mfma_f32_32x32x16_bf16 {c}, a[{XN+4*s}:{XN+4*s+3}], a[{{f0}}:{{f3}}], {cin}"))
        return out

    def d_frags(self, st0, acc):
        out = []
        for s in range(40):
            st = st0 + s // 4
            slot = st % 8
            for j in range(2):
                for mat in range(2):
                    a = V_TR + 2 * (slot // 4) + j
                    off = (slot % 4) * 16384 + mat * 8192 + (s % 4) * 2048
                    r = acc + 32 * j + 16 * mat
                    c = f"v[{r}:{r+15}]"
                    cin = c if s else "0"
                    out.append(dict(stage=st, reads=[
                        f"ds_read_b64_tr_b16 a[{{f0}}:{{f1}}], v{a} offset:{off}",
                        f"ds_read_b64_tr_b16 a[{{f2}}:{{f3}}], v{a} offset:{off+512}"],
                        mfma=f"v_mfma_f32_32x32x16_bf16 {c}, a[{{f0}}:{{f3}}], a[{XN+4*s}:{XN+4*s+3}], {cin}"))
        return out

    def q(self, *texts):
        for t in texts:
            if isinstance(t, list):
                f = lambda t=t: [self.p.e(x) for x in t]
                f.cost = len(t)
            else:
                f = lambda t=t: self.p.e(t)
                f.cost = cost_of(t)
            self.fill.append(f)

    def lag(self, n):
        st = {}
        self.fill.append(lambda: st.__setitem__("m", self.mf))
        self.fill.append(("t", lambda: self.mf >= st["m"] + n))

    def ffn_tail(self, acc, s_k):
        e = self.p.e
        T, K = V_X, ACC_S
        e(f"v_mov_b32 v{K}, v{V_GK1}"); e(f"v_mov_b32 v{K+1}, v{V_GK1}")
        e(f"v_mov_b32 v{K+2}, s{S_GK2}"); e(f"v_mov_b32 v{K+3}, s{S_GK2}")
        e(f"v_mov_b32 v{K+4}, 1.0"); e(f"v_mov_b32 v{K+5}, 1.0")
        for j in range(2):
            g0, u0 = acc + 32 * j, acc + 32 * j + 16
            for half in range(2):
                prs = [(g0 + 8 * half + 2 * k, u0 + 8 * half + 2 * k, K + 6 + 2 * k) for k in range(4)]
                pr = lambda r: f"v[{r}:{r+1}]"
                for g, u, t in prs:
                    e(f"v_pk_mul_f32 {pr(t)}, {pr(g)}, {pr(g)}")
                for g, u, t in prs:
                    e(f"v_pk_fma_f32 {pr(t)}, {pr(t)}, {pr(K+2)}, {pr(K)}")
                for g, u, t in prs:
                    e(f"v_pk_mul_f32 {pr(t)}, {pr(t)}, {pr(g)}")
                for g, u, t in prs:
                    e(f"v_exp_f32 v{t}, v{t}")
                    e(f"v_pk_mul_f32 {pr(u)}, {pr(u)}, {pr(g)}")
                    e(f"v_exp_f32 v{t+1}, v{t+1}")
                for g, u, t in prs:
                    e(f"v_pk_add_f32 {pr(t)}, {pr(t)}, {pr(K+4)}")
                d = T + 4 + 4 * half
                for k, (g, u, t) in enumerate(prs):
                    e(f"v_rcp_f32 v{t}, v{t}")
                    if k:
                        g1, u1, t1 = prs[k - 1]
                        e(f"v_pk_mul_f32 {pr(u1)}, {pr(u1)}, {pr(t1)}")
                    e(f"v_rcp_f32 v{t+1}, v{t+1}")
                    if k:
                        e(f"v_cvt_pk_bf16_f32 v{d+k-1}, v{u1}, v{u1+1}")
                if j == 1 and half == 0:
                    e(f"s_add_u32 s{s_k}, s{s_k}, 4096")
                g1, u1, t1 = prs[3]
                e(f"v_pk_mul_f32 {pr(u1)}, {pr(u1)}, {pr(t1)}")
                e(f"v_cvt_pk_bf16_f32 v{d+3}, v{u1}, v{u1+1}")
                e(f"buffer_store_dwordx4 v[{d}:{d+3}], v{V_STA}, {srd(SWS)}, s{s_k} offen offset:{512*half}{self.wt}")

    def ffn_epilogue(self, acc, s_k):
        T = V_X
        for j in range(2):
            g0, u0 = acc + 32 * j, acc + 32 * j + 16
            for half in range(2):
                for pair in range(4):
                    i = 8 * half + 2 * pair
                    ga, gb, ua, ub = g0 + i, g0 + i + 1, u0 + i, u0 + i + 1
                    ta, tb = T + 2 * (pair % 2), T + 2 * (pair % 2) + 1
                    d = T + 4 + 4 * half + pair
                    self.q(f"v_mul_f32 v{ta}, v{ga}, v{ga}", f"v_mul_f32 v{tb}, v{gb}, v{gb}",
                           f"v_fma_f32 v{ta}, v{ta}, s{S_GK2}, v{V_GK1}", f"v_fma_f32 v{tb}, v{tb}, s{S_GK2}, v{V_GK1}",
                           f"v_mul_f32 v{ta}, v{ta}, v{ga}", f"v_mul_f32 v{tb}, v{tb}, v{gb}",
                           f"v_exp_f32 v{ta}, v{ta}", f"v_exp_f32 v{tb}, v{tb}",
                           f"v_mul_f32 v{ua}, v{ua}, v{ga}", f"v_mul_f32 v{ub}, v{ub}, v{gb}",
                           f"v_add_f32 v{ta}, 1.0, v{ta}", f"v_add_f32 v{tb}, 1.0, v{tb}",
                           f"v_rcp_f32 v{ta}, v{ta}", f"v_rcp_f32 v{tb}, v{tb}",
                           f"v_mul_f32 v{ua}, v{ua}, v{ta}", f"v_mul_f32 v{ub}, v{ub}, v{tb}",
                           f"v_cvt_pk_bf16_f32 v{d}, v{ua}, v{ub}")
                d = T + 4 + 4 * half
                if j == 1 and half == 0:
                    self.q(f"s_add_u32 s{s_k}, s{s_k}, 4096")
                self.q(f"buffer_store_dwordx4 v[{d}:{d+3}], v{V_STA}, {srd(SWS)}, s{s_k} offen offset:{512*half}{self.wt}")

    @staticmethod
    def cmul(dr, di, ar, ai, br, bi):
        return [f"v_mul_f32 v{dr}, v{ar}, v{br}", f"v_mul_f32 v{di}, v{ar}, v{bi}",
                f"v_fma_f32 v{dr}, -v{ai}, v{bi}, v{dr}", f"v_fma_f32 v{di}, v{ai}, v{br}, v{di}"]

    def ssm_consts(self, b, praw, u):
        c = V_C + 12 * b
        lr, li, dt = praw, praw + 1, praw + 2
        L = [f"v_lshlrev_b32 v{lr}, 16, v{lr}", f"v_lshlrev_b32 v{li}, 16, v{li}", f"v_lshlrev_b32 v{dt}, 16, v{dt}",
             f"v_mul_f32 v{dt}, {fx(LOG2E)}, v{dt}", f"v_exp_f32 v{dt}, v{dt}",
             f"v_cvt_pk_bf16_f32 v{dt}, v{dt}, v{dt}", f"v_lshlrev_b32 v{dt}, 16, v{dt}",
             f"v_mul_f32 v{u}, v{dt}, v{lr}", f"v_mul_f32 v{u+1}, v{dt}, v{li}",
             f"v_mul_f32 v{u}, {fx(LOG2E)}, v{u}", f"v_mul_f32 v{u+1}, 0.15915494, v{u+1}",
             f"v_exp_f32 v{u}, v{u}", f"v_fract_f32 v{u+1}, v{u+1}",
             f"v_cos_f32 v{u+2}, v{u+1}", f"v_sin_f32 v{u+3}, v{u+1}",
             f"v_mul_f32 v{c}, v{u}, v{u+2}", f"v_mul_f32 v{c+1}, v{u}, v{u+3}",
             f"v_add_f32 v{u}, -1.0, v{c}",
             f"v_mul_f32 v{u+1}, v{lr}, v{lr}", f"v_fma_f32 v{u+1}, v{li}, v{li}, v{u+1}",
             f"v_rcp_f32 v{u+1}, v{u+1}",
             f"v_mul_f32 v{u+2}, v{u}, v{lr}", f"v_fma_f32 v{u+2}, v{c+1}, v{li}, v{u+2}",
             f"v_mul_f32 v{u+3}, v{c+1}, v{lr}", f"v_fma_f32 v{u+3}, -v{u}, v{li}, v{u+3}",
             f"v_add_f32 v{u+1}, v{u+1}, v{u+1}",
             f"v_mul_f32 v{c+2}, v{u+2}, v{u+1}", f"v_mul_f32 v{c+3}, v{u+3}, v{u+1}"]
        L += self.cmul(u, u + 1, c, c + 1, c, c + 1)
        L += self.cmul(u + 2, u + 3, u, u + 1, u, u + 1)
        L += self.cmul(u, u + 1, u + 2, u + 3, u + 2, u + 3)
        L += self.cmul(c + 4, c + 5, u, u + 1, u, u + 1)
        L += self.cmul(u, u + 1, c + 4, c + 5, c + 4, c + 5)
        L += self.cmul(u + 2, u + 3, u, u + 1, u, u + 1)
        L += self.cmul(c + 8, c + 9, u + 2, u + 3, u + 2, u + 3)
        L += self.cmul(c + 10, c + 11, c + 8, c + 9, c + 8, c + 9)
        hm, m2 = f"s[{S_HM}:{S_HM+1}]", f"s[{S_M2}:{S_M2+1}]"
        L += [f"v_cndmask_b32 v{u+4}, 1.0, v{c+4}, {hm}", f"v_cndmask_b32 v{u+5}, 0, v{c+5}, {hm}",
              [f"s_bitcmp1_b32 s{S_W}, 0", f"s_cselect_b64 {m2}, -1, 0"],
              f"v_cndmask_b32 v{u}, 1.0, v{u}, {m2}", f"v_cndmask_b32 v{u+1}, 0, v{u+1}, {m2}"]
        L += self.cmul(u + 6, u + 7, u + 4, u + 5, u, u + 1)
        L += [[f"s_bitcmp1_b32 s{S_W}, 1", f"s_cselect_b64 {m2}, -1, 0"],
              f"v_cndmask_b32 v{u+2}, 1.0, v{u+2}, {m2}", f"v_cndmask_b32 v{u+3}, 0, v{u+3}, {m2}"]
        L += self.cmul(c + 6, c + 7, u + 6, u + 7, u + 2, u + 3)
        return L

    def ex_base(self, sreg, b):
        return [f"s_add_u32 s{sreg}, s{S_SB}, {b}", f"s_mul_i32 s{sreg}, s{sreg}, {EX_BLK}",
                f"s_add_u32 s{sreg}, s{sreg}, {EX_OFF}"]

    def ssm_reduce(self, b, acc, X):
        p = self.p
        c = V_C + 12 * b
        T = V_X
        re, im = acc, acc + 16
        hr, hi, nr, ni = T, T + 1, T + 2, T + 3
        cur = (re, im)
        for t in range(1, 16):
            d = (hr, hi) if t % 2 else (nr, ni)
            self.q(f"v_fma_f32 v{d[0]}, -v{c+1}, v{cur[1]}, v{re+t}", f"v_fma_f32 v{d[1]}, v{c+1}, v{cur[0]}, v{im+t}",
                   f"v_fma_f32 v{d[0]}, v{c}, v{cur[0]}, v{d[0]}", f"v_fma_f32 v{d[1]}, v{c}, v{cur[1]}, v{d[1]}")
            cur = d
        st = {}

        def wr():
            st["wr"] = p.e(f"ds_write_b64 v{V_XW}, v[{hr}:{hi}] offset:{SCR_W*b}")
        self.fill.append(wr)
        self.lag(4)

        def arm():
            self.pre_barrier.append(st["wr"])
            st["bar"] = self.nbar
        self.fill.append(arm)
        self.fill.append(("bar", lambda: self.nbar > st["bar"]))
        E = X
        pr, pi = V_PRE + 2 * b, V_PRE + 2 * b + 1

        def rd():
            for k in range(4):
                st["t"] = p.e(f"ds_read_b128 v[{E+4*k}:{E+4*k+3}], v{V_XR} offset:{SCR_W*b + 16*k}")
        self.fill.append(rd)
        self.q(f"v_mov_b32 v{pr}, 0", f"v_mov_b32 v{pi}, 0")
        self.lag(5)
        self.fill.append(lambda: p.wait(st["t"]))
        for j in range(7):
            er, ei = E + 2 * j, E + 2 * j + 1
            self.q(f"v_cmp_lt_u32 vcc, {j}, v{V_SEG}",
                   f"v_fma_f32 v{er}, -v{c+5}, v{pi}, v{er}", f"v_fma_f32 v{ei}, v{c+5}, v{pr}, v{ei}",
                   f"v_fma_f32 v{er}, v{c+4}, v{pr}, v{er}", f"v_fma_f32 v{ei}, v{c+4}, v{pi}, v{ei}",
                   f"v_cndmask_b32 v{pr}, v{pr}, v{er}, vcc", f"v_cndmask_b32 v{pi}, v{pi}, v{ei}, vcc")
        g = T + 4
        self.q(f"v_fma_f32 v{g}, -v{c+5}, v{pi}, v{hr}", f"v_fma_f32 v{g+2}, v{c+5}, v{pr}, v{hi}",
               f"v_fma_f32 v{g}, v{c+4}, v{pr}, v{g}", f"v_fma_f32 v{g+2}, v{c+4}, v{pi}, v{g+2}",
               f"v_mov_b32 v{g+1}, s{S_EPOCH}", f"v_mov_b32 v{g+3}, s{S_EPOCH}",
               *self.ex_base(S_T2, b),
               f"buffer_store_dwordx4 v[{g}:{g+3}], v{V_PUB}, {srd(SWS)}, s{S_T2} offen sc1")

    def lb_issue(self, i, LB, A):
        p = self.p
        p.e(f"v_add_u32 v{A}, {-1024*i & 0xffffffff:#x}, v{V_LBO}" if i else f"v_mov_b32 v{A}, v{V_LBO}")
        p.e(f"v_max_i32 v{A}, v{A}, v{V_LBO+1}")
        return p.e(f"buffer_load_dwordx4 v[{LB+4*i}:{LB+4*i+3}], v{A}, {srd(SWS)}, s{S_T3} offen sc1")

    def lb_mix(self, LB, A):
        L = [f"v_mov_b32 v{A+1}, s{S_EPOCH}"]
        for i in range(8):
            d = A if i == 0 else A + 2 + i % 2
            L.append(f"v_bitop3_b32 v{d}, v{LB+4*i+1}, v{LB+4*i+3}, v{A+1} bitop3:0x7e")
            if i and i % 2 == 0:
                L.append(f"v_or3_b32 v{A}, v{A}, v{A+2}, v{A+3}")
        L.append(f"v_or_b32 v{A}, v{A}, v{A+3}")
        return L

    def lb_check(self, LB, A, tag):
        p = self.p
        for x in self.lb_mix(LB, A):
            p.e(x)
        p.e(f"v_cmp_ne_u32 vcc, 0, v{A}")
        p.e(f"s_cbranch_vccnz LB_SLOW_{tag}")

    def ssm_finish(self, b, acc, LB, gate_issue, gate_check, tag):
        p = self.p
        c = V_C + 12 * b
        PRE = V_PRE + 2 * b
        st = {}
        if gate_issue is not None:
            self.fill.append(("t", gate_issue))
        A = LB + 32
        self.q(*self.ex_base(S_T3, b), f"s_mov_b32 s{S_SPIN}, 0")
        for i in range(8):
            def f(i=i):
                st["t"] = self.lb_issue(i, LB, A)
            self.fill.append(f)
        if gate_check is not None:
            self.fill.append(("t", gate_check))

        self.fill.append(lambda: p.wait(st["t"]))
        self.q(*self.lb_mix(LB, A))

        def check():
            p.e(f"v_cmp_ne_u32 vcc, 0, v{A}")
            p.e(f"s_cbranch_vccnz LB_SLOW_{tag}")
            p.label(f"LB_OK_{tag}")
            self.slow.append((tag, LB, A))
        self.fill.append(check)
        pr, pi = A, A + 1
        self.q(f"v_mov_b32 v{pr}, v{LB+28}", f"v_mov_b32 v{pi}, v{LB+30}")
        for i in range(6, -1, -1):
            er, ei = LB + 4 * i, LB + 4 * i + 2
            self.q(f"v_fma_f32 v{er}, -v{c+11}, v{pi}, v{er}", f"v_fma_f32 v{ei}, v{c+11}, v{pr}, v{ei}",
                   f"v_fma_f32 v{pr}, v{c+10}, v{pr}, v{er}", f"v_fma_f32 v{pi}, v{c+10}, v{pi}, v{ei}")
        r0, i0, r1, i1 = LB, LB + 1, LB + 2, LB + 3
        self.q(f"v_mov_b32 v{r0}, v{pr}", f"v_mov_b32 v{r1}, v{pr}", f"v_mov_b32 v{i0}, v{pi}", f"v_mov_b32 v{i1}, v{pi}",
               f"v_permlane32_swap_b32 v{r0}, v{r1}", f"v_permlane32_swap_b32 v{i0}, v{i1}",
               f"v_fma_f32 v{r0}, -v{c+9}, v{i1}, v{r0}", f"v_fma_f32 v{i0}, v{c+9}, v{r1}, v{i0}",
               f"v_fma_f32 v{r0}, v{c+8}, v{r1}, v{r0}", f"v_fma_f32 v{i0}, v{c+8}, v{i1}, v{i0}",
               f"v_fma_f32 v{PRE}, -v{c+7}, v{i0}, v{PRE}", f"v_fma_f32 v{PRE+1}, v{c+7}, v{r0}, v{PRE+1}",
               f"v_fma_f32 v{PRE}, v{c+6}, v{r0}, v{PRE}", f"v_fma_f32 v{PRE+1}, v{c+6}, v{i0}, v{PRE+1}")
        re, im = acc, acc + 16
        cur = (PRE, PRE + 1)
        for t in range(16):
            self.q(f"v_fma_f32 v{re+t}, -v{c+1}, v{cur[1]}, v{re+t}", f"v_fma_f32 v{im+t}, v{c+1}, v{cur[0]}, v{im+t}",
                   f"v_fma_f32 v{re+t}, v{c}, v{cur[0]}, v{re+t}", f"v_fma_f32 v{im+t}, v{c}, v{cur[1]}, v{im+t}")
            cur = (re + t, im + t)
            o = LB + 4 + 4 * (t % 2)
            self.q(f"v_mul_f32 v{o}, v{c+2}, v{re+t}", f"v_mul_f32 v{o+1}, v{c+2}, v{im+t}",
                   f"v_fma_f32 v{o}, -v{c+3}, v{im+t}, v{o}", f"v_fma_f32 v{o+1}, v{c+3}, v{re+t}, v{o+1}",
                   f"v_cvt_pk_bf16_f32 v{o+2}, v{o}, -v{o+1}")

            def w(t=t, o=o):
                st["w"] = p.e(f"ds_write_b32 v{V_TW}, v{o+2} offset:{144*t}")
            self.fill.append(w)
        O = LB + 12
        self.lag(4)

        def rd():
            p.wait(st["w"])
            st["r"] = [p.e(f"ds_read_b128 v[{O+4*f}:{O+4*f+3}], v{V_TW+1} offset:{(f>>1)*2304 + (f&1)*64}")
                       for f in range(4)]
        self.fill.append(rd)
        self.q(f"s_add_u32 s{S_T3}, s{S_SB}, {b}", f"s_lshl_b32 s{S_T3}, s{S_T3}, 13",
               f"s_add_u32 s{S_T3}, s{S_T3}, s{S_A2ROW}", f"s_add_u32 s{S_T3}, s{S_T3}, {54*4096}",
               f"s_add_u32 s{S_T2}, s{S_T3}, 4096")
        self.lag(5)
        for f in range(4):
            def stf(f=f):
                p.wait(st["r"][f])
                so = S_T2 if f & 1 else S_T3
                p.e(f"buffer_store_dwordx4 v[{O+4*f}:{O+4*f+3}], v{V_TW+2}, {srd(SWS)}, s{so} offen offset:{1024*(f>>1)}{self.wt}")
            self.fill.append(stf)

    def slow_paths(self):
        p = self.p
        for tag, LB, A in self.slow:
            p.label(f"LB_SLOW_{tag}")
            p.e("s_sleep 2")
            p.e(f"s_add_u32 s{S_SPIN}, s{S_SPIN}, 1")
            p.e(f"s_cmp_gt_u32 s{S_SPIN}, 100000")
            p.e(f"s_cbranch_scc1 LB_OK_{tag}")
            for i in range(8):
                self.lb_issue(i, LB, A)
            p.e("s_waitcnt vmcnt(0)")
            self.lb_check(LB, A, tag)
            p.e(f"s_branch LB_OK_{tag}")

    def mk_srd(self, d, ptr, nbytes):
        return [f"s_mov_b32 s{d}, s{ptr}", f"s_mov_b32 s{d+1}, s{ptr+1}",
                f"s_mov_b32 s{d+2}, {nbytes}", f"s_mov_b32 s{d+3}, 0x20000"]

    def prologue(self):
        p, e, q, o = self.p, self.p.e, self.q, self.opt
        hm = f"s[{S_HM}:{S_HM+1}]"
        p.raw(".p2align 8")
        p.label("proj_kernel")
        e("s_cmp_ge_u32 s2, 256")
        e("s_cbranch_scc1 K1_END")
        if o.get("stamp"):
            e("s_memrealtime s[94:95]")
            self.stamp(0)
        e("s_load_dwordx16 s[36:51], s[0:1], 0")
        e("s_load_dwordx16 s[52:67], s[0:1], 64")
        e(f"s_getpc_b64 s[{S_T0}:{S_T1}]")
        p.label("K1_PC")
        e("v_lshrrev_b32 v2, 6, v0")
        e(f"v_and_b32 v{V_LANE}, 63, v0")
        e(f"v_readfirstlane_b32 s{S_W}, v2")
        e("s_lshr_b32 s3, s2, 3")
        e(f"s_lshl_b32 s{S_T2}, s3, 2")
        e(f"s_add_u32 s{S_T2}, s{S_T2}, s{S_W}")
        e(f"s_mul_i32 s{S_T2}, s{S_T2}, 640")
        e(f"v_lshlrev_b32 v2, 7, v{V_LANE}")
        e(f"v_add_u32 v2, s{S_T2}, v2")
        e("v_min_u32 v2, TEXT_END-K1_PC-4, v2")
        e("s_mov_b64 exec, 31")
        e(f"global_load_dword v{V_PRE+5}, v2, s[{S_T0}:{S_T1}]")
        e("s_mov_b64 exec, -1")
        e(f"s_and_b32 s{S_T2}, s2, 7")
        e(f"s_lshr_b32 s{S_MT}, s{S_T2}, 1")
        e(f"s_lshl_b32 s{S_MT}, s{S_MT}, 2")
        e(f"s_and_b32 s{S_T3}, s3, 3")
        e(f"s_add_u32 s{S_MT}, s{S_MT}, s{S_T3}")
        e(f"s_and_b32 s{S_CG}, s{S_T2}, 1")
        e(f"s_lshl_b32 s{S_CG}, s{S_CG}, 3")
        e("s_lshr_b32 s3, s3, 2")
        e(f"s_add_u32 s{S_CG}, s{S_CG}, s3")
        e(f"s_add_u32 s{S_R}, s3, s{S_T3}")
        for _ in range(2):
            e(f"s_sub_u32 s{S_T2}, s{S_R}, 5")
            e(f"s_cmp_ge_u32 s{S_R}, 5")
            e(f"s_cselect_b32 s{S_R}, s{S_T2}, s{S_R}")
        e(f"s_lshl_b32 s{S_KS}, s{S_R}, 8")
        for i in range(1, 5):
            e(f"s_add_u32 s{S_KS+i}, s{S_KS+i-1}, 256")
            e(f"s_cmp_eq_u32 s{S_KS+i}, 1280")
            e(f"s_cselect_b32 s{S_KS+i}, 0, s{S_KS+i}")
        e(f"s_lshl_b32 s{S_W4K}, s{S_W}, 12")
        e(f"s_lshl_b32 s{S_XB}, s{S_MT}, 2")
        e(f"s_add_u32 s{S_XB}, s{S_XB}, s{S_W}")
        e(f"s_mul_i32 s{S_XB}, s{S_XB}, {32*1280}")
        a, xr = V_X + 4, V_X + 5
        e(f"v_lshrrev_b32 v{a}, 4, v{V_LANE}")
        e(f"v_and_b32 v{xr}, 15, v{V_LANE}")
        e(f"v_xor_b32 v{xr}, v{xr}, v{a}")
        e(f"v_lshlrev_b32 v{xr}, 4, v{xr}")
        e(f"v_mul_u32_u24 v{a}, 1280, v{a}")
        for k in range(4):
            e(f"v_xor_b32 v{V_OS+k}, {64*k}, v{xr}")
            e(f"v_add_u32 v{V_OS+k}, v{V_OS+k}, v{a}")
            e(f"v_add_u32 v{V_X+k}, {(16*(k&1) + 4*(k>>1))*1280 - 1024*k}, v{V_OS+k}")
        e(f"s_cmp_ge_u32 s{S_CG}, 8")
        e(f"s_cselect_b32 s{S_T2}, 1, 0")
        e(f"s_sub_u32 s{S_SB}, s{S_CG}, s{S_T2}")
        e(f"s_lshl_b32 s{S_D1}, s{S_SB}, 1")
        e(f"s_mov_b32 s{S_TYPE}, 0")
        e(f"s_cmp_eq_u32 s{S_CG}, 14")
        e(f"s_cselect_b32 s{S_TYPE}, 1, s{S_TYPE}")
        e(f"s_cmp_eq_u32 s{S_CG}, 7")
        e(f"s_cselect_b32 s{S_TYPE}, 2, s{S_TYPE}")
        e(f"s_cselect_b32 s{S_SB}, 14, s{S_SB}")
        e(f"s_cmp_eq_u32 s{S_CG}, 15")
        e(f"s_cselect_b32 s{S_TYPE}, 2, s{S_TYPE}")
        e(f"s_cselect_b32 s{S_SB}, 17, s{S_SB}")
        e(f"v_and_b32 v{V_SEG}, 31, v{V_LANE}")
        e(f"s_lshl_b32 s{S_T2}, s{S_SB}, 6")
        e(f"v_lshl_add_u32 v{V_PUB}, v{V_SEG}, 1, s{S_T2}")
        e(f"v_min_u32 v{V_XR}, {1278 - 128}, v{V_PUB}")
        e(f"v_mov_b32 v{V_XW}, {EPOCH_OFF}")
        e(f"s_lshl_b32 s{S_J1}, s{S_W}, 13")
        e(f"s_add_u32 s{S_J1}, s{S_J1}, {LDS_SCR}")
        e("s_waitcnt lgkmcnt(0)")
        for x in self.mk_srd(SX, K_X, X_BYTES):
            e(x)
        xt = {}
        cnt = {"n": 0}

        def x_piece(i, u):
            if u % 4 == 0:
                hh = u // 4
                if i < 4:
                    e(f"s_add_u32 m0, s{S_W4K}, {(i + 4*hh)*16384}")
                elif hh:
                    e(f"s_add_u32 m0, s{S_J1}, 4096")
                else:
                    e(f"s_mov_b32 m0, s{S_J1}")
                e(f"s_add_u32 s{S_T0}, s{S_XB}, s{S_KS+i}")
                if hh:
                    e(f"s_add_u32 s{S_T0}, s{S_T0}, 10240")
            xt[i, u] = e(f"buffer_load_dwordx4 v{V_X+u%4}, {srd(SX)}, s{S_T0} offen offset:{1024*(u%4)} lds")
            cnt["n"] += 1
        xq = [(i, u) for i in range(5) for u in range(8)]
        for _ in range(o.get("x_first", 4)):
            x_piece(*xq.pop(0))
        for x in self.mk_srd(SWS, K_WS, WS_USED):
            e(x)
        EP = V_PRE + 4
        e(f"s_lshl_b32 s{S_T2}, s{S_CG}, 7")
        e(f"buffer_load_dword v{EP}, v{V_XW}, {srd(SWS)}, s{S_T2} offen sc1")
        t_par = None
        for b in range(3):
            for k, ptr in enumerate((K_LRE, K_LIM, K_LDT)):
                va = V_XR if b else V_PUB
                t_par = e(f"global_load_ushort v{V_C+12*b+6+k}, v{va}, s[{ptr}:{ptr+1}] offset:{64*b}")
        if o.get("wpre", 1) >= 2:
            n2 = o.get("wpre_after", 0)
            for _ in range(n2):
                x_piece(*xq.pop(0))
            self.w_prefetch_early()
        for _ in range(o.get("x_second", 4) - o.get("wpre_after", 0)):
            x_piece(*xq.pop(0))
        self.stamp(1)
        for k in range(1, 4):
            q(f"v_add_u32 v{V_OS+k}, {4*k*1280 - 1024*k}, v{V_OS+k}")
        h, c, t0, t1 = V_X + 4, V_SEG, V_X + 5, V_X + 6
        q(f"s_mov_b32 s{S_HM}, 0", f"s_mov_b32 s{S_HM+1}, -1", f"s_mov_b32 s{S_MASK}, 0xffff0000",
          f"v_lshrrev_b32 v{h}, 5, v{V_LANE}")
        q(f"v_and_b32 v{t0}, 15, v{V_LANE}", f"v_xor_b32 v{t1}, v{t0}, v{h}", f"v_lshlrev_b32 v{t1}, 4, v{t1}",
          f"v_lshl_add_u32 v{t1}, v{t0}, 8, v{t1}", f"v_bfe_u32 v{t0}, v{V_LANE}, 4, 1",
          f"v_lshlrev_b32 v{V_X+8}, 16, v{t0}", f"v_add_u32 v{V_X+8}, s{S_W4K}, v{V_X+8}",
          f"v_lshlrev_b32 v{t0}, 12, v{t0}")
        for s in range(8):
            q(f"v_xor_b32 v{V_AS+s}, {32*s}, v{t1}", f"v_add_u32 v{V_AS+8+s}, v{V_AS+s}, v{V_X+8}",
              f"v_add_u32 v{V_AS+s}, v{V_AS+s}, v{t0}")
        sm, sq = V_PRE, V_PRE + 1
        q(f"v_mov_b32 v{sm}, 0", f"v_mov_b32 v{sq}, 0", f"s_mov_b32 s{S_J2}, 0x3f803f80")
        q([f"s_cmp_ge_u32 s{S_W}, 2",
           f"s_cselect_b32 s{SS}, s{K_BIM}, s{K_BRE}", f"s_cselect_b32 s{SS+1}, s{K_BIM+1}, s{K_BRE+1}",
           f"s_cselect_b32 s{SF}, s{K_WU}, s{K_WG}", f"s_cselect_b32 s{SF+1}, s{K_WU+1}, s{K_WG+1}"],
          f"s_mov_b32 s{SS+2}, {SQ_BYTES}", f"s_mov_b32 s{SS+3}, 0x20000",
          f"s_mov_b32 s{SF+2}, {FF_BYTES}", f"s_mov_b32 s{SF+3}, 0x20000")
        for i in range(5):
            q(f"s_mul_i32 s{S_KF+i}, s{S_KS+i}, {128*3456//256}")
        q(f"s_and_b32 s{S_T2}, s{S_W}, 1",
          f"s_lshl_b32 s{S_SBROW}, s{S_SB}, 1", f"s_add_u32 s{S_SBROW}, s{S_SBROW}, s{S_T2}",
          f"s_mul_i32 s{S_SBROW}, s{S_SBROW}, {16*1280}",
          f"s_lshr_b32 s{S_T3}, s{S_W}, 1",
          f"s_lshl_b32 s{S_A2ROW}, s{S_MT}, 1", f"s_add_u32 s{S_A2ROW}, s{S_A2ROW}, s{S_T3}",
          f"s_mul_i32 s{S_A2ROW}, s{S_A2ROW}, {94*4096}",
          f"s_lshl_b32 s{S_T3}, s{S_T2}, 11", f"s_add_u32 s{S_A2ROW}, s{S_A2ROW}, s{S_T3}",
          f"s_lshl_b32 s{S_KD1}, s{S_D1}, 13", f"s_add_u32 s{S_KD1}, s{S_KD1}, s{S_A2ROW}",
          f"s_add_u32 s{S_KD2}, s{S_KD1}, 8192",
          f"s_lshl_b32 s{S_D1}, s{S_D1}, 7", f"s_mul_i32 s{S_T3}, s{S_T2}, {32*3456}",
          f"s_add_u32 s{S_D1}, s{S_D1}, s{S_T3}", f"s_add_u32 s{S_D2}, s{S_D1}, 128",
          f"s_mov_b32 s{S_GK2}, {fx(GK2)}", f"v_mov_b32 v{V_GK1}, {fx(GK1)}")
        q(f"v_lshrrev_b32 v{t0}, 3, v{V_LANE}", f"v_mul_u32_u24 v{t0}, 3456, v{t0}",
          f"v_bfe_u32 v{t1}, v{V_LANE}, 4, 1", f"v_lshlrev_b32 v{t1}, 2, v{t1}",
          f"v_and_b32 v{V_OF}, 7, v{V_LANE}", f"v_xor_b32 v{V_OF}, v{V_OF}, v{t1}",
          f"v_lshl_add_u32 v{V_OF}, v{V_OF}, 4, v{t0}")
        for k in range(1, 4):
            q(f"v_add_u32 v{V_OF+k}, {k*(8*3456 - 1024)}, v{V_OF}")
        q(f"v_bfe_u32 v{t0}, v{V_LANE}, 2, 2", f"v_lshl_add_u32 v{t1}, v{h}, 3, v{t0}",
          f"v_lshlrev_b32 v{V_TR}, 7, v{t1}", f"v_lshrrev_b32 v{t0}, 1, v{t0}",
          f"v_lshl_add_u32 v{V_TR}, v{t0}, 6, v{V_TR}", f"v_bfe_u32 v{t0}, v{V_LANE}, 4, 1",
          f"v_lshl_add_u32 v{V_TR}, v{t0}, 5, v{V_TR}", f"v_and_b32 v{t0}, 3, v{V_LANE}",
          f"v_lshl_add_u32 v{V_TR}, v{t0}, 3, v{V_TR}", f"v_xor_b32 v{V_TR+1}, 64, v{V_TR}",
          f"v_add_u32 v{V_TR+2}, 0x10000, v{V_TR}", f"v_add_u32 v{V_TR+3}, 0x10000, v{V_TR+1}")
        q(f"v_lshrrev_b32 v{t1}, 3, v{c}", f"v_lshl_add_u32 v{t1}, v{t1}, 2, v{t0}",
          f"v_lshl_add_u32 v{V_STA}, v{h}, 4, v{t1}", f"v_lshlrev_b32 v{V_STA}, 4, v{V_STA}",
          f"v_bfe_u32 v{t0}, v{c}, 2, 1", f"v_lshl_add_u32 v{V_STA}, v{t0}, 10, v{V_STA}",
          f"v_lshl_add_u32 v{V_X+7}, v{t0}, 4, v{t1}", f"v_lshlrev_b32 v{V_X+7}, 3, v{V_X+7}",
          f"v_cndmask_b32 v{V_X+7}, v{V_X+7}, v{V_XW}, {hm}")
        q(f"v_lshlrev_b32 v{V_LBO+1}, 4, v{c}", f"v_sub_u32 v{t0}, s{S_MT}, v{h}",
          f"v_lshl_add_u32 v{V_LBO}, v{t0}, 9, v{V_LBO+1}",
          f"s_add_u32 s{S_T2}, s{S_MT}, 1", f"s_lshl_b32 s{S_T2}, s{S_T2}, 9",
          [f"s_cmp_eq_u32 s{S_W}, 3", f"s_cselect_b32 s{S_T2}, s{S_T2}, {OOB}"], f"v_add_u32 v{t0}, s{S_T2}, v{V_LBO+1}",
          f"v_mov_b32 v{t1}, {OOB}", f"v_cndmask_b32 v{V_PUB}, v{t1}, v{t0}, {hm}",
          f"v_lshlrev_b32 v{V_XR}, 6, v{c}", f"v_add_u32 v{V_XR}, {XCH}, v{V_XR}",
          f"v_mul_u32_u24 v{V_TW}, {16*144}, v{h}", f"v_lshl_add_u32 v{V_TW}, v{c}, 2, v{V_TW}",
          f"v_add_u32 v{V_TW}, s{S_J1}, v{V_TW}",
          f"v_and_b32 v{t0}, 15, v{V_LANE}", f"v_mul_u32_u24 v{t0}, 144, v{t0}",
          f"v_lshrrev_b32 v{t1}, 4, v{V_LANE}", f"v_lshl_add_u32 v{V_TW+1}, v{t1}, 4, v{t0}",
          f"v_add_u32 v{V_TW+1}, s{S_J1}, v{V_TW+1}", f"v_lshlrev_b32 v{V_TW+2}, 4, v{V_LANE}",
          f"s_lshl_b32 s{S_T2}, s{S_W}, 1", f"v_add_u32 v{V_SEG}, s{S_T2}, v{h}",
          f"v_lshl_add_u32 v{V_XW}, v{V_SEG}, 3, v{V_XR}")
        self.fill.append(lambda: p.wait(t_par))
        U = RAW + 152
        q(f"v_readfirstlane_b32 s{S_EPOCH}, v{EP}")
        q(*self.ssm_consts(0, V_C + 6, U))
        q(f"s_add_u32 s{S_EPOCH}, s{S_EPOCH}, 1")
        self.zero_row(0, U)
        rd = {}

        def x_read(i, half):
            def f():
                p.wait(xt[i, 7])
                for s in range(4 * half, 4 * half + 4):
                    r = RAW + 32 * i + 4 * s
                    rd[i, s] = e(f"ds_read_b128 v[{r}:{r+3}], v{V_AS+8+s} offset:{i*16384 if i < 4 else 0}")
            return f
        lag = o.get("x_lag", 9)
        for i in range(5):
            self.fill.append(("t", lambda i=i: cnt["n"] >= min(40, 8 * i + 8 + lag)))
            if i == 4:
                for s in range(8):
                    q(f"v_add_u32 v{V_AS+8+s}, s{S_J1}, v{V_AS+s}")
            self.fill.append(x_read(i, 0))
            self.fill.append(x_read(i, 1))
            for s in range(8):
                self.fill.append(lambda i=i, s=s: p.wait(rd[i, s]))
                for k in range(4):
                    r = RAW + 32 * i + 4 * s + k
                    q(f"v_dot2c_f32_bf16 v{sm}, s{S_J2}, v{r}", f"v_dot2c_f32_bf16 v{sq}, v{r}, v{r}")
            if i < 4:
                self.fill.append(lambda i=i: self.issue_stage(i, "S", i, 0))
            if i == 3:
                self.fill.append(lambda: self.issue_stage(4, "S", 4, 0))
        self.pull(o.get("pre_slots", 150))
        while xq:
            x_piece(*xq.pop(0))
            self.pull(o.get("x_gap", 14))
        while self.fill:
            self.dma()
            self.pull(o.get("x_gap", 14))
        self.stamp(2)
        u = V_X + 8
        e(f"v_mov_b32 v{u}, v{sm}"); e(f"v_mov_b32 v{u+1}, v{sq}")
        e(f"v_permlane32_swap_b32 v{sm}, v{u}"); e(f"v_permlane32_swap_b32 v{sq}, v{u+1}")
        e(f"v_add_f32 v{sm}, v{sm}, v{u}"); e(f"v_add_f32 v{sq}, v{sq}, v{u+1}")
        e(f"v_mul_f32 v{sm}, {fx(1/640)}, v{sm}"); e(f"v_mul_f32 v{sq}, {fx(1/640)}, v{sq}")
        e(f"v_fma_f32 v{sq}, -v{sm}, v{sm}, v{sq}")
        e(f"v_max_f32 v{sq}, 0, v{sq}")
        e(f"v_cvt_pk_bf16_f32 v{u}, v{sq}, v{sm}")
        e(f"v_lshlrev_b32 v{sq}, 16, v{u}"); e(f"v_and_b32 v{sm}, s{S_MASK}, v{u}")
        e(f"v_add_f32 v{sq}, {fx(1e-5)}, v{sq}")
        e(f"v_cvt_pk_bf16_f32 v{sq}, v{sq}, v{sq}"); e(f"v_lshlrev_b32 v{sq}, 16, v{sq}")
        e(f"v_sqrt_f32 v{sq}, v{sq}")
        e(f"s_lshl_b32 s{S_T2}, s{S_MT}, 2"); e(f"s_add_u32 s{S_T2}, s{S_T2}, s{S_W}")
        e(f"v_cvt_pk_bf16_f32 v{sq}, v{sq}, v{sq}"); e(f"v_lshlrev_b32 v{sq}, 16, v{sq}")
        e(f"v_rcp_f32 v{u}, v{sq}")
        e(f"s_lshl_b32 s{S_T2}, s{S_T2}, 8"); e(f"s_add_u32 s{S_T2}, s{S_T2}, {STATS_OFF}")
        e(f"v_mul_f32 v{u+2}, -v{sm}, v{u}")
        e(f"v_mov_b32 v{u+1}, v{u}")
        e(f"v_mov_b32 v{u+3}, v{u+2}")
        e(f"s_cmp_eq_u32 s{S_CG}, 0"); e(f"s_cselect_b32 s{S_T2}, s{S_T2}, {OOB}")
        e(f"v_mov_b32 v{V_X+4}, v{u}"); e(f"v_mov_b32 v{V_X+5}, v{u+2}")
        e(f"buffer_store_dwordx2 v[{V_X+4}:{V_X+5}], v{V_X+7}, {srd(SWS)}, s{S_T2} offen{self.wt}")
        npre = o.get("npre", 8)
        for k in range(4 * npre):
            r = RAW + k
            t = V_X + 2 * (k % 2)
            e(f"v_lshlrev_b32 v{t}, 16, v{r}"); e(f"v_and_b32 v{t+1}, s{S_MASK}, v{r}")
            e(f"v_pk_fma_f32 v[{t}:{t+1}], v[{t}:{t+1}], v[{u}:{u+1}], v[{u+2}:{u+3}]")
            e(f"v_cvt_pk_bf16_f32 v{r}, v{t}, v{t+1}")
            e(f"v_accvgpr_write_b32 a{XN+k}, v{r}")
            if k % 4 == 3:
                self.dma()
        done = []
        for k in range(4 * npre, 160, 2):
            t = V_X + 4 * ((k // 2) % 2)
            grp = done
            for i in range(2):
                grp = grp + [f"v_lshlrev_b32 v{t+2*i}, 16, v{RAW+k+i}", f"v_and_b32 v{t+2*i+1}, s{S_MASK}, v{RAW+k+i}"]
            for i in range(2):
                grp.append(f"v_pk_fma_f32 v[{t+2*i}:{t+2*i+1}], v[{t+2*i}:{t+2*i+1}], v[{u}:{u+1}], v[{u+2}:{u+3}]")
            self.norm.append(grp)
            done = [f"v_cvt_pk_bf16_f32 v{RAW+k+i}, v{t+2*i}, v{t+2*i+1}" for i in range(2)]
            done += [f"v_accvgpr_write_b32 a{XN+k+i}, v{RAW+k+i}" for i in range(2)]
        if done:
            self.norm.append(done)
        for s in range(8):
            e(f"v_add_u32 v{V_AS+8+s}, 0x10000, v{V_AS+s}")
        self.stamp(3)

    def zero_row(self, b, z):
        self.q(f"v_mov_b32 v{z}, 0", f"v_mov_b32 v{z+1}, s{S_EPOCH}", f"v_mov_b32 v{z+2}, 0", f"v_mov_b32 v{z+3}, s{S_EPOCH}",
               *self.ex_base(S_T2, b),
               f"buffer_store_dwordx4 v[{z}:{z+3}], v{V_LBO+1}, {srd(SWS)}, s{S_T2} offen sc1")

    def job_setup(self, kind):
        def q(*texts):
            for t in texts:
                self.p.e(t)
        vo = V_JW if kind == "W" else V_JC
        q(f"v_lshrrev_b32 v{vo}, 3, v{V_LANE}", f"v_mul_u32_u24 v{vo}, 1280, v{vo}",
          f"v_and_b32 v{vo+1}, 7, v{V_LANE}", f"v_lshl_add_u32 v{vo}, v{vo+1}, 4, v{vo}")
        if kind == "W":
            for k in range(1, 4):
                q(f"v_add_u32 v{vo+k}, {k*(8*1280 - 1024)}, v{vo}")
            q(*self.mk_srd(SA1, K_WD, FF_BYTES),
              f"s_lshl_b32 s{S_JOB}, s{S_SB}, 4", f"s_add_u32 s{S_JOB}, s{S_JOB}, s{S_MT}")
        else:
            q(f"v_add_u32 v{vo+1}, {8*1280 - 1024}, v{vo}")
            q(*self.mk_srd(SA1, K_CRE, SQ_BYTES), *self.mk_srd(SA2, K_CIM, SQ_BYTES),
              f"s_mov_b32 s{S_JOB}, s{S_MT}")
        q(f"s_lshl_b32 s{S_JOB}, s{S_JOB}, 2", f"s_add_u32 s{S_JOB}, s{S_JOB}, s{S_W}")

    def job_index(self, kind, i):
        e = self.p.e
        e(f"s_add_u32 s{S_J2}, s{S_JOB}, {64 * i}")
        e(f"s_mul_hi_u32 s{S_T1}, s{S_J2}, 0x1999999a")
        e(f"s_mul_i32 s{S_R}, s{S_T1}, 10")
        e(f"s_sub_u32 s{S_R}, s{S_J2}, s{S_R}")

    def job_source(self, kind, i):
        e = self.p.e
        self.job_index(kind, i)
        e(f"s_mul_i32 s{S_T0}, s{S_T1}, {(32 if kind == 'W' else 16) * 1280}")
        e(f"s_lshl_b32 s{S_XB}, s{S_R}, 7")
        e(f"s_add_u32 s{S_T0}, s{S_T0}, s{S_XB}")
        e(f"s_cmp_lt_u32 s{S_J2}, {540 if kind == 'W' else 400}")
        e(f"s_cselect_b32 s{S_T0}, s{S_T0}, {OOB}")

    def w_job(self, R):
        p, q = self.p, self.q
        st = {}
        D = R + 4
        q(f"v_lshrrev_b32 v{R}, 5, v{V_LANE}", f"v_lshlrev_b32 v{R}, 4, v{R}",
          f"v_bfe_u32 v{R+1}, v{V_LANE}, 2, 3", f"v_add_u32 v{R}, v{R}, v{R+1}",
          f"v_lshlrev_b32 v{R}, 7, v{R}", f"v_and_b32 v{R+1}, 3, v{V_LANE}",
          f"v_lshl_add_u32 v{R}, v{R+1}, 3, v{R}", f"v_add_u32 v{R}, s{S_J1}, v{R}")
        ad, cb = S_JOB, S_R
        q(f"s_lshl_b32 s{cb}, s{cb}, 2", f"s_mul_hi_u32 s{ad}, s{cb}, 0x33333334", f"s_mul_i32 s{S_XB}, s{ad}, 5",
          f"s_sub_u32 s{cb}, s{cb}, s{S_XB}", f"s_mul_i32 s{ad}, s{ad}, 94", f"s_add_u32 s{ad}, s{ad}, s{S_T1}",
          f"s_mul_i32 s{ad}, s{ad}, 5", f"s_add_u32 s{ad}, s{ad}, s{cb}", f"s_lshl_b32 s{ad}, s{ad}, 10",
          f"s_add_u32 s{ad}, s{ad}, {W2F_OFF}",
          [f"s_cmp_lt_u32 s{S_J2}, 540", f"s_cselect_b32 s{ad}, s{ad}, {OOB}"])
        self.fill.append(("t", lambda: 100 in self.stage_tok and p.vdone >= self.stage_tok[100][1]))
        for f in range(4):
            def rd(f=f):
                p.wait(self.stage_tok[100])
                p.e(f"ds_read_b64_tr_b16 v[{D+4*f}:{D+4*f+1}], v{R} offset:{32*f}")
                st[f] = p.e(f"ds_read_b64_tr_b16 v[{D+4*f+2}:{D+4*f+3}], v{R} offset:{32*f + 1024}")
            rd.cost = 2
            self.fill.append(rd)
        self.lag(5)
        for f in range(4):
            self.fill.append(lambda f=f: p.wait(st[f]))
            q(f"buffer_store_dwordx4 v[{D+4*f}:{D+4*f+3}], v{V_TW+2}, {srd(SWS)}, s{ad} offen{self.wt}")
            if f < 3:
                q([f"s_cmp_eq_u32 s{cb}, {4 - f}", f"s_cselect_b32 s{S_XB}, {93*5120}, 0"],
                  f"s_add_u32 s{ad}, s{ad}, s{S_XB}", f"s_add_u32 s{ad}, s{ad}, 1024")

    def w2f_addr(self, dst, b16, kstep):
        e = self.p.e
        e(f"s_mul_hi_u32 s{S_D1}, s{b16}, 0x33333334")
        e(f"s_mul_i32 s{S_D2}, s{S_D1}, 5")
        e(f"s_sub_u32 s{S_D2}, s{b16}, s{S_D2}")
        e(f"s_mul_i32 s{S_D1}, s{S_D1}, 94")
        e(f"s_add_u32 s{S_D1}, s{S_D1}, s{kstep}")
        e(f"s_mul_i32 s{S_D1}, s{S_D1}, 5")
        e(f"s_add_u32 s{S_D1}, s{S_D1}, s{S_D2}")
        e(f"s_lshl_b32 s{dst}, s{S_D1}, 10")
        e(f"s_add_u32 s{dst}, s{dst}, {W2F_OFF}")

    def job_finish(self, kind, rounds, R):
        p, e = self.p, self.p.e
        while self.dq:
            self.dma()
        if kind == "W":
            e(f"v_lshrrev_b32 v{R}, 5, v{V_LANE}"); e(f"v_lshlrev_b32 v{R}, 4, v{R}")
            e(f"v_bfe_u32 v{R+1}, v{V_LANE}, 2, 3"); e(f"v_add_u32 v{R}, v{R}, v{R+1}")
            e(f"v_lshlrev_b32 v{R}, 7, v{R}"); e(f"v_and_b32 v{R+1}, 3, v{V_LANE}")
            e(f"v_lshl_add_u32 v{R}, v{R+1}, 3, v{R}")
        else:
            e(f"v_and_b32 v{R}, 15, v{V_LANE}"); e(f"v_lshlrev_b32 v{R}, 7, v{R}")
            e(f"v_lshrrev_b32 v{R+1}, 4, v{V_LANE}"); e(f"v_lshl_add_u32 v{R}, v{R+1}, 3, v{R}")
            e(f"s_mov_b32 s{S_KS}, 0x05040100"); e(f"s_mov_b32 s{S_KS+1}, 0x07060302")
        e(f"v_add_u32 v{R}, s{S_W4K}, v{R}")
        e(f"v_add_u32 v{R+1}, 0x10000, v{R}")
        for i in range(rounds):
            n = 15 + i
            slot = n % 8
            va, off = R + slot // 4, (slot % 4) * 16384
            D = R + 4 + 32 * (i % 2)
            p.wait(self.stage_tok[n])
            tk = []
            for f in range(4):
                if kind == "W":
                    e(f"ds_read_b64_tr_b16 v[{D+4*f}:{D+4*f+1}], v{va} offset:{off + 32*f}")
                    tk.append(e(f"ds_read_b64_tr_b16 v[{D+4*f+2}:{D+4*f+3}], v{va} offset:{off + 32*f + 1024}"))
                else:
                    e(f"ds_read_b64 v[{D+16+4*f}:{D+16+4*f+1}], v{va} offset:{off + 32*f}")
                    tk.append(e(f"ds_read_b64 v[{D+16+4*f+2}:{D+16+4*f+3}], v{va} offset:{off + 32*f + 2048}"))
            self.job_index(kind, i)
            e(f"s_lshl_b32 s{S_R}, s{S_R}, 2")
            if kind == "C":
                e(f"s_add_u32 s{S_R}, s{S_R}, 54")
                self.w2f_addr(S_T0, S_T1, S_R)
                e(f"s_cmp_lt_u32 s{S_J2}, 400")
                e(f"s_cselect_b32 s{S_T0}, s{S_T0}, {OOB}")
            for f in range(4):
                if kind == "W":
                    self.w2f_addr(S_T0, S_KD2, S_T1)
                    e(f"s_cmp_lt_u32 s{S_J2}, 540")
                    e(f"s_cselect_b32 s{S_T0}, s{S_T0}, {OOB}")
                    e(f"s_add_u32 s{S_KD2}, s{S_KD2}, 1")
                    p.wait(tk[f])
                else:
                    p.wait(tk[f])
                    re, im = D + 16 + 4 * f, D + 16 + 4 * f + 2
                    for k in range(2):
                        e(f"v_perm_b32 v{D+4*f+2*k}, v{im+k}, v{re+k}, s{S_KS}")
                        e(f"v_perm_b32 v{D+4*f+2*k+1}, v{im+k}, v{re+k}, s{S_KS+1}")
                e(f"buffer_store_dwordx4 v[{D+4*f}:{D+4*f+3}], v{V_TW+2}, {srd(SWS)}, s{S_T0} offen{self.wt}")
                if kind == "C" and f < 3:
                    e(f"s_add_u32 s{S_T0}, s{S_T0}, 5120")

    def w_prefetch(self):
        e = self.p.e
        t = V_PRE + 2
        e(f"v_lshrrev_b32 v{t}, 1, v{V_LANE}")
        e(f"v_mul_u32_u24 v{t}, 3456, v{t}")
        e(f"v_and_b32 v{t+1}, 1, v{V_LANE}")
        e(f"v_lshl_add_u32 v{t}, v{t+1}, 7, v{t}")
        e(f"s_and_b32 s{S_T2}, s{S_W}, 1")
        e(f"s_mul_i32 s{S_T2}, s{S_T2}, {-12*3456 & 0xffffffff:#x}")
        e(f"s_mul_i32 s{S_T3}, s{S_MT}, {40*3456}")
        e(f"s_add_u32 s{S_T2}, s{S_T2}, s{S_T3}")
        e(f"s_add_u32 s{S_T2}, s{S_T2}, s{S_D1}")
        e("s_mov_b32 exec_hi, 0xff")
        e(f"buffer_load_dword v{t+1}, v{t}, {srd(SF)}, s{S_T2} offen")
        e("s_mov_b64 exec, -1")

    def w_prefetch_early(self):
        e = self.p.e
        b = S_M2
        e(f"s_cmp_ge_u32 s{S_W}, 2")
        e(f"s_cselect_b32 s{b}, s{K_WU}, s{K_WG}"); e(f"s_cselect_b32 s{b+1}, s{K_WU+1}, s{K_WG+1}")
        e(f"s_and_b32 s{S_T2}, s{S_W}, 1")
        e(f"s_lshl_b32 s{S_T3}, s{S_MT}, 1")
        e(f"s_add_u32 s{S_T2}, s{S_T2}, s{S_T3}")
        e(f"s_mul_i32 s{S_T2}, s{S_T2}, {20*3456}")
        e(f"s_min_u32 s{S_T3}, s{S_D1}, 25")
        e(f"s_lshl_b32 s{S_T3}, s{S_T3}, 7")
        e(f"s_add_u32 s{S_T2}, s{S_T2}, s{S_T3}")
        e(f"s_add_u32 s{b}, s{b}, s{S_T2}"); e(f"s_addc_u32 s{b+1}, s{b+1}, 0")
        if self.opt["wpre"] == 2:
            t = V_PRE + 2
            e(f"v_lshrrev_b32 v{t}, 1, v{V_LANE}")
            e(f"v_mul_u32_u24 v{t}, 3456, v{t}")
            e(f"v_and_b32 v{t+1}, 1, v{V_LANE}")
            e(f"v_lshl_add_u32 v{t}, v{t+1}, 7, v{t}")
            e("s_mov_b32 exec_hi, 0xff")
            e(f"global_load_dword v{t+1}, v{t}, s[{b}:{b+1}]")
            e("s_mov_b64 exec, -1")
        else:
            for k in range(self.opt.get("wpre_n", 20)):
                e(f"s_load_dword s{S_SPIN}, s[{b}:{b+1}], {3456*(k % 20) + 128*(k // 20)}")

    def warm_k2(self):
        if not self.opt.get("warm_k2", 1):
            return
        e = self.p.e
        e(f"s_getpc_b64 s[{S_T0}:{S_T1}]")
        self.p.label("K1_PC2")
        e(f"s_add_u32 s{S_T0}, s{S_T0}, gemm2_kernel-K1_PC2")
        e(f"s_addc_u32 s{S_T1}, s{S_T1}, 0")
        e(f"s_lshr_b32 s{S_T2}, s2, 3")
        e(f"s_lshl_b32 s{S_T2}, s{S_T2}, 2")
        e(f"s_add_u32 s{S_T2}, s{S_T2}, s{S_W}")
        e(f"s_lshl_b32 s{S_T2}, s{S_T2}, 7")
        e(f"s_min_u32 s{S_T3}, s{S_T2}, TEXT_END-gemm2_kernel-4")
        e(f"s_min_u32 s{S_T2}, s{S_T2}, 1276")
        e(f"v_mov_b32 v{V_PRE}, s{S_T3}")
        e(f"v_mov_b32 v{V_PRE+1}, s{S_T2}")
        e("s_mov_b64 exec, 1")
        e(f"global_load_dword v{V_PRE+2}, v{V_PRE}, s[{S_T0}:{S_T1}]")
        e(f"global_load_dword v{V_PRE+3}, v{V_PRE+1}, s[{K_DSK}:{K_DSK+1}]")
        e("s_mov_b64 exec, -1")

    def finish(self, k):
        p, e = self.p, self.p.e
        e(f"s_lshl_b32 s{S_T2}, s{S_CG}, 7")
        e(f"s_add_u32 s{S_T2}, s{S_T2}, {EPOCH_OFF}")
        e(f"s_cmp_eq_u32 s{S_MT}, 15")
        e(f"s_cselect_b32 s{S_T2}, s{S_T2}, {OOB}")
        e(f"v_mov_b32 v0, s{S_EPOCH}")
        e(f"buffer_store_dword v0, off, {srd(SWS)}, s{S_T2} sc1")
        self.spin_out = True
        self.stamp_out(k)
        e("s_endpgm")

    def snapshot(self):
        p = self.p
        return (p.vq, p.vdone, p.lq, p.ldone, dict(self.stage_tok), list(self.pre_barrier), self.nbar, self.mf,
                set(self.seen), list(self.fill), list(self.dq), list(self.norm))

    def restore(self, s):
        p = self.p
        (p.vq, p.vdone, p.lq, p.ldone, st, pb, self.nbar, self.mf, seen, fill, dq, norm) = s
        self.stage_tok, self.pre_barrier, self.seen = dict(st), list(pb), set(seen)
        self.fill, self.dq, self.norm = list(fill), list(dq), list(norm)

    def run(self, stages, frags, hooks, wjob=False):
        plan = {n: (lambda n=n: self.issue_stage(n + 6, *stages[n + 6])) for n in range(len(stages) - 6)}
        if stages[5][0] == "F" and self.opt.get("wpre", 1) == 1:
            self.dq.append(self.w_prefetch)
        self.issue_stage(5, *stages[5])
        if wjob:
            self.job_setup("W")
            self.issue_stage(100, "W", 0, 0)
        self.gemm(frags, plan, hooks)
        return plan

    def build(self):
        p, e, o = self.p, self.p.e, self.opt
        self.prologue()
        e(f"s_cmp_eq_u32 s{S_TYPE}, 2")
        e("s_cbranch_scc1 K1_TYPE_C")
        e(f"s_cmp_eq_u32 s{S_TYPE}, 1")
        e("s_cbranch_scc1 K1_TYPE_B")
        snap = self.snapshot()
        g1, g2 = o.get("lb_issue", 80 + 80), o.get("lb_check", 80 + 100)
        head = [("S", i, 0) for i in range(5)] + [("F", i, S_D1) for i in range(10)]
        for typ in "AB":
            if typ == "B":
                p.label("K1_TYPE_B")
                self.restore(snap)
            m0 = self.mf

            def start_ssm(typ=typ, m0=m0):
                self.stamp(4)
                if typ == "B":
                    self.job_setup("C")
                self.ssm_reduce(0, ACC_S, 188)
                if typ == "A":
                    self.w_job(188)
                self.ssm_finish(0, ACC_S, 188, lambda: self.mf - m0 >= g1, lambda: self.mf - m0 >= g2, typ)

            def at_d2():
                self.stamp(5)
                self.ffn_epilogue(ACC_D1, S_KD1)
            frags = self.s_frags(0, ACC_S) + self.d_frags(5, ACC_D1)
            if typ == "A":
                self.run(head + [("F", i, S_D2) for i in range(10)], frags + self.d_frags(15, ACC_D2),
                         {81: start_ssm, 240: at_d2}, True)
                self.stamp(6)
                self.flush()
                self.warm_k2()
                self.ffn_tail(ACC_D2, S_KD2)
                self.stamp(7)
            else:
                stages = head + [("C", i, 0) for i in range(7)]
                self.run(stages[:21], frags, {81: start_ssm})
                self.stamp(5)
                self.mf += 1000
                self.barrier()
                self.issue_stage(21, *stages[21])
                while self.dq:
                    self.dma()
                self.flush()
                self.ffn_tail(ACC_D1, S_KD1)
                self.stamp(6)
                self.job_finish("C", 7, ACC_D2 - 4)
                self.stamp(7)
            self.finish(8)
        p.label("K1_TYPE_C")
        self.restore(snap)
        stages = [("S", i % 5, i // 5) for i in range(15)]
        frags = self.s_frags(0, 16) + self.s_frags(5, 48) + self.s_frags(10, 80)
        m0 = self.mf

        def c1():
            self.stamp(4)
            self.ssm_reduce(0, 16, 152)
            for b in (1, 2):
                self.q(*self.ssm_consts(b, V_C + 12 * b + 6, 112))
                self.zero_row(b, 112)

        def c2():
            self.stamp(5)
            self.ssm_reduce(1, 48, 152)
            self.ssm_finish(0, 16, 112, None, lambda: self.mf - m0 >= 215, "C0")
        self.run(stages, frags, {81: c1, 161: c2})
        self.stamp(6)
        self.mf += 1000
        self.flush()
        self.ssm_reduce(2, 80, 152)
        self.ssm_finish(1, 48, 112, None, None, "C1")
        self.flush()
        self.stamp(7)
        self.ssm_finish(2, 80, 112, None, None, "C2")
        self.flush()
        self.finish(8)
        self.slow_paths()
        p.label("K1_END")
        e("s_endpgm")
        p.fix_hazards()
        return p


K1_DESC = """
.amdhsa_kernel proj_kernel
  .amdhsa_next_free_vgpr 512
  .amdhsa_next_free_sgpr 102
  .amdhsa_accum_offset 256
  .amdhsa_group_segment_fixed_size 0
  .amdhsa_kernarg_size 128
  .amdhsa_user_sgpr_count 2
  .amdhsa_user_sgpr_kernarg_segment_ptr 1
  .amdhsa_system_sgpr_workgroup_id_x 1
  .amdhsa_float_denorm_mode_32 3
.end_amdhsa_kernel
"""
```

```python
from asmlib import Prog
from layout import *

S_W, S_CT, S_RT1, S_RT2 = 4, 5, 6, 7
SX, SD, SO, SWS = 8, 12, 16, 20
S_A, S_B, S_T0, S_T1, S_TAG, S_OOB, S_MASK, S_SPIN = 24, 25, 26, 27, 28, 29, 30, 31
S_XO, S_OO, S_PO, S_PI, S_A2, S_LA, S_N = 32, 33, 34, 35, 38, 39, 40
S_A0 = 41
S_TG = 44
V_L16, V_L16B, V_WA = 3, 4, 5
ACC1, ACC2, RING = 16, 96, 176
V_OA, V_LA, V_T = 240, 245, 250
PARK = 4 * 21504
STG = PARK + 4 * 5120


def srd(n):
    return f"s[{n}:{n+3}]"


def gen_k2(opt):
    p = Prog()
    e = p.e
    fill = []
    VIA_LDS = tuple(opt.get("k2_lds", ()))
    NS = opt.get("k2_ns", 5)
    PD = NS - 1

    def slot(g, f):
        k = g % NS
        return f"v[{RING+16*k+4*f}:{RING+16*k+4*f+3}]" if k < 4 else f"a[{240+4*f}:{243+4*f}]"

    def q(*texts):
        for t in texts:
            if isinstance(t, list):
                fill.append(lambda t=t: [e(x) for x in t])
            elif callable(t):
                fill.append(t)
            else:
                fill.append(lambda t=t: e(t))

    def pull(budget):
        start = p.slots
        while fill and p.slots - start < budget:
            it = fill[0]
            if isinstance(it, tuple):
                if not it[0]():
                    return
                fill.pop(0)
                continue
            fill.pop(0)
            it()

    def mk_srd(d, ptr, n):
        return [f"s_mov_b32 s{d}, s{ptr}", f"s_mov_b32 s{d+1}, s{ptr+1}", f"s_mov_b32 s{d+2}, {n}",
                f"s_mov_b32 s{d+3}, 0x20000"]

    p.raw(".p2align 8")
    p.label("gemm2_kernel")
    e("s_cmp_ge_u32 s2, 256")
    e("s_cbranch_scc1 K2_END")
    e("s_load_dwordx2 s[66:67], s[0:1], 120")
    e("s_load_dwordx2 s[36:37], s[0:1], 0")
    e("s_load_dwordx2 s[52:53], s[0:1], 64")
    e("s_load_dwordx2 s[62:63], s[0:1], 104")
    if opt.get("stamp"):
        e("s_memrealtime s[70:71]")
        e("s_memtime s[76:77]")
    e("v_lshrrev_b32 v1, 6, v0")
    e("v_and_b32 v2, 63, v0")
    e(f"v_readfirstlane_b32 s{S_W}, v1")
    e(f"v_lshlrev_b32 v{V_L16}, 4, v2")
    e(f"v_add_u32 v{V_L16B}, 0x1000, v{V_L16}")
    e("s_lshr_b32 s3, s2, 3")
    e(f"s_lshr_b32 s{S_CT}, s3, 2")
    e(f"s_and_b32 s{S_T0}, s2, 6")
    e(f"s_lshl_b32 s{S_T0}, s{S_T0}, 1")
    e(f"s_and_b32 s{S_T1}, s3, 3")
    e(f"s_add_u32 s{S_T0}, s{S_T0}, s{S_T1}")
    e(f"s_lshl_b32 s{S_T0}, s{S_T0}, 1")
    e(f"s_and_b32 s{S_T1}, s2, 1")
    e(f"s_add_u32 s{S_RT2}, s{S_T0}, s{S_T1}")
    e(f"s_xor_b32 s{S_RT1}, s{S_RT2}, 1")
    e(f"s_mul_i32 s{S_T1}, s{S_T1}, 47")
    e(f"s_mul_i32 s{S_T0}, s{S_W}, 12")
    e(f"s_add_u32 s{S_N}, s{S_T0}, s{S_T1}")
    e(f"s_mul_i32 s{S_A}, s{S_RT1}, 94")
    e(f"s_add_u32 s{S_A}, s{S_A}, s{S_N}")
    e(f"s_lshl_b32 s{S_A}, s{S_A}, 12")
    e(f"s_mul_i32 s{S_B}, s{S_CT}, 94")
    e(f"s_add_u32 s{S_B}, s{S_B}, s{S_N}")
    e(f"s_mul_i32 s{S_B}, s{S_B}, 5120")
    e(f"s_add_u32 s{S_B}, s{S_B}, {W2F_OFF}")
    e(f"s_mov_b32 s{S_OOB}, {OOB}")
    e("s_waitcnt lgkmcnt(0)")
    for x in mk_srd(SWS, 66, WS_USED):
        e(x)

    tok = {}

    def loads(g):
        i = g % 12
        r = RING + 16 * (g % 4)
        out = []

        def pre():
            base = S_A2 if g in VIA_LDS else S_A
            if g >= 12:
                e(f"s_add_u32 s{base}, s{S_A0}, {4096*(g - 12)}")
            elif g:
                e(f"s_add_u32 s{S_A}, s{S_A}, 4096")
                e(f"s_add_u32 s{S_B}, s{S_B}, 5120")
            if g in VIA_LDS:
                e(f"s_add_u32 m0, s{S_LA}, {4096*(g % 3)}")
            if i == 11:
                e(f"s_cmp_eq_u32 s{S_W}, 3")
                e(f"s_cselect_b32 s{base}, s{S_OOB}, s{base}")
                if g < 12:
                    e(f"s_cselect_b32 s{S_B}, s{S_OOB}, s{S_B}")

        def ld(text, first):
            def f():
                if first:
                    pre()
                tok[g] = e(text)
            return f
        for f in range(4):
            if g in VIA_LDS:
                out.append(ld(f"buffer_load_dwordx4 v{V_L16}, {srd(SWS)}, s{S_A2} offen offset:{1024*f} lds", f == 0))
            else:
                out.append(ld(f"buffer_load_dwordx4 {slot(g, f)}, v{V_L16}, {srd(SWS)}, s{S_A} offen offset:{1024*f}", f == 0))
        if g < 12:
            for f in range(5):
                a = 20 * i + 4 * f
                va, off = (V_L16, 1024 * f) if f < 4 else (V_L16B, 0)
                out.append(ld(f"buffer_load_dwordx4 a[{a}:{a+3}], v{va}, {srd(SWS)}, s{S_B} offen offset:{off}", False))
        return out

    def from_lds(g):
        r = RING + 16 * (g % 4)
        out = []
        va, base = 14, 4096 * (g % 3)
        for f in range(4):
            def rd(f=f):
                p.wait(tok[g])
                t = e(f"ds_read_b128 {slot(g, f)}, v{va} offset:{base + 1024*f}")
                if f == 3:
                    tok[g] = t
            out.append(rd)
        return out

    early = opt.get("k2_early", 1)
    for g in range(early):
        for f in loads(g):
            f()
    st = {}
    XR, DR, SR, T = ACC2, ACC2 + 10, ACC2 + 20, ACC2 + 32
    q(f"v_mov_b32 v{V_T}, {EPOCH_OFF}",
      lambda: st.__setitem__("tag", e(f"buffer_load_dword v{V_T+1}, v{V_T}, {srd(SWS)}, 0 offen sc1")))
    q(*mk_srd(SX, 36, X_BYTES), *mk_srd(SD, 52, 1280), *mk_srd(SO, 62, OUT_BYTES))
    q(f"s_lshl_b32 s{S_T0}, s{S_RT2}, 6", f"s_lshl_b32 s{S_T1}, s{S_W}, 4", f"s_add_u32 s{S_T0}, s{S_T0}, s{S_T1}",
      f"s_mul_i32 s{S_T1}, s{S_CT}, 160", f"s_mul_i32 s{S_XO}, s{S_T0}, 1280", f"s_add_u32 s{S_XO}, s{S_XO}, s{S_T1}",
      f"s_lshl_b32 s{S_OO}, s{S_XO}, 1", f"s_lshl_b32 s{S_T0}, s{S_T0}, 3", f"s_add_u32 s{S_T0}, s{S_T0}, {STATS_OFF}",
      f"s_mul_i32 s{S_PO}, s{S_W}, 5376", f"s_mov_b32 s{S_MASK}, 0xcccd")
    q(f"s_mul_i32 s{S_LA}, s{S_W}, 5120", f"s_add_u32 s{S_LA}, s{S_LA}, {PARK}", f"s_mov_b32 m0, s{S_LA}")
    for k in range(3):
        q(f"v_add_u32 v6, {64*k}, v2", f"v_mul_lo_u32 v7, v6, s{S_MASK}", "v_lshrrev_b32 v7, 19, v7",
          "v_mul_u32_u24 v8, 1120, v7", "v_lshl_add_u32 v8, v6, 4, v8")
        if k:
            q(f"v_add_u32 v8, {-1024*k & 0xffffffff:#x}, v8")
        if k == 2:
            q("s_mov_b32 exec_hi, 0")
        q(f"buffer_load_dwordx4 v8, {srd(SX)}, s{S_XO} offen offset:{1024*k} lds")
    q(f"s_add_u32 m0, s{S_LA}, 3072", "s_mov_b32 exec_lo, 0x3ff",
      f"buffer_load_dwordx4 v{V_L16}, {srd(SD)}, s{S_T1} offen lds",
      f"s_add_u32 m0, s{S_LA}, 3328", "s_mov_b32 exec_lo, 0xff",
      lambda: st.__setitem__("res", e(f"buffer_load_dwordx4 v{V_L16}, {srd(SWS)}, s{S_T0} offen lds")),
      "s_mov_b64 exec, -1")
    pull(10000)
    for g in range(early, PD):
        for f in loads(g):
            f()
    q(f"v_lshlrev_b32 v10, 3, v2", f"v_add_u32 v10, s{S_LA}, v10")
    for i in range(5):
        q(f"v_add_u32 v6, {64*i}, v2", f"v_mul_lo_u32 v7, v6, s{S_MASK}", "v_lshrrev_b32 v7, 20, v7",
          "v_mul_u32_u24 v8, 20, v7", "v_sub_u32 v8, v6, v8",
          "v_mul_u32_u24 v9, 2560, v7", f"v_lshl_add_u32 v{V_OA+i}, v8, 4, v9",
          "v_mul_u32_u24 v12, 336, v7", "v_lshl_add_u32 v12, v8, 4, v12",
          f"v_add_u32 v{V_LA+i}, s{S_PO}, v12",
          f"v_lshl_add_u32 v9, v8, 3, s{S_LA}", f"v_lshl_add_u32 v11, v7, 3, s{S_LA}",
          lambda: p.wait(st["res"]),
          f"ds_read_b64 v[{XR+2*i}:{XR+2*i+1}], v10 offset:{512*i}",
          f"ds_read_b64 v[{DR+2*i}:{DR+2*i+1}], v9 offset:3072",
          lambda i=i: st.__setitem__(("res", i), e(f"ds_read_b64 v[{SR+2*i}:{SR+2*i+1}], v11 offset:3328")))
    q(f"v_and_b32 v{V_WA}, 15, v2", f"v_mul_u32_u24 v{V_WA}, 336, v{V_WA}", "v_lshrrev_b32 v6, 4, v2",
      f"v_lshl_add_u32 v{V_WA}, v6, 4, v{V_WA}", f"s_mul_i32 s{S_MASK}, s{S_W}, 21504",
      f"v_add_u32 v{V_WA}, s{S_MASK}, v{V_WA}", f"s_mul_i32 s{S_A0}, s{S_RT2}, 94", f"s_add_u32 s{S_A0}, s{S_A0}, s{S_N}", f"s_lshl_b32 s{S_A0}, s{S_A0}, 12",
      f"v_add_u32 v13, s{S_LA}, v{V_L16}", f"s_mov_b32 s{S_MASK}, 0xffff0000",
      "s_lshl_b32 s3, s2, 2", f"s_add_u32 s3, s3, s{S_W}",
      f"s_mul_i32 s{S_PO}, s3, 5120", f"s_add_u32 s{S_PO}, s{S_PO}, {PART_OFF}",
      f"s_mul_i32 s{S_LA}, s{S_W}, 12288", f"s_add_u32 s{S_LA}, s{S_LA}, {STG}", f"v_add_u32 v14, s{S_LA}, v{V_L16}",
      "s_xor_b32 s3, s3, 4",
      f"s_mul_i32 s{S_PI}, s3, 5120", f"s_add_u32 s{S_PI}, s{S_PI}, {PART_OFF}",
      f"s_mov_b32 s{S_SPIN}, 0", f"v_mov_b32 v{V_T}, 0xff")
    cur = {"g": 0}
    fill.append((lambda: cur["g"] >= opt.get("k2_res", 3),))
    q(lambda: p.wait(st["tag"]), f"v_readfirstlane_b32 s{S_TG}, v{V_T+1}")
    for k in range(1, 4):
        q(f"s_lshr_b32 s{S_TG+k}, s{S_TG}, {8*k}", f"s_add_u32 s{S_TG+k}, s{S_TG+k}, s{S_TG}")
    for i in range(5):
        x0, d0, s0 = XR + 2 * i, DR + 2 * i, SR + 2 * i
        M = f"s{S_MASK}"
        q(lambda: p.wait(st["res", 4]))
        q(f"v_lshlrev_b32 v{T}, 16, v{x0}", f"v_and_b32 v{T+1}, {M}, v{x0}",
          f"v_lshlrev_b32 v{T+2}, 16, v{x0+1}", f"v_and_b32 v{T+3}, {M}, v{x0+1}",
          f"v_lshlrev_b32 v{T+4}, 16, v{d0}", f"v_and_b32 v{T+5}, {M}, v{d0}",
          f"v_lshlrev_b32 v{T+6}, 16, v{d0+1}", f"v_and_b32 v{T+7}, {M}, v{d0+1}")
        q(*[f"v_fma_f32 v{T+8+k}, v{T+k}, v{s0}, v{s0+1}" for k in range(4)])
        for rnd in range(2):
            q(f"v_cvt_pk_bf16_f32 v{T+12}, v{T+8}, v{T+9}", f"v_cvt_pk_bf16_f32 v{T+13}, v{T+10}, v{T+11}",
              f"v_lshlrev_b32 v{T+8}, 16, v{T+12}", f"v_and_b32 v{T+9}, {M}, v{T+12}",
              f"v_lshlrev_b32 v{T+10}, 16, v{T+13}", f"v_and_b32 v{T+11}, {M}, v{T+13}")
            if rnd == 0:
                q(*[f"v_mul_f32 v{T+8+k}, v{T+8+k}, v{T+4+k}" for k in range(4)])
        o = T + 16 + 4 * (i % 2)
        q(*[f"v_add_f32 v{o+k}, v{T+k}, v{T+8+k}" for k in range(4)])
        q(f"ds_write_b128 v13, v[{o}:{o+3}] offset:{1024*i}")

    def tile_to_lds(acc):
        return [f"ds_write_b128 v{V_WA}, v[{acc+(cb*4+rb)*4}:{acc+(cb*4+rb)*4+3}] offset:{rb*5376 + cb*64}"
                for cb in range(5) for rb in range(4)]

    def barrier():
        p.wait_all(vm=False)
        e("s_barrier")

    def part_loads():
        for i in range(5):
            r = ACC1 + 16 * i + 8
            va, off = (V_L16, 1024 * i) if i < 4 else (V_L16B, 0)
            st["pi"] = e(f"buffer_load_dwordx4 v[{r}:{r+3}], v{va}, {srd(SWS)}, s{S_PI} offen offset:{off} sc1")

    def part_check():
        for i in range(5):
            for k in range(4):
                r = ACC1 + 16 * i + 8 + k
                if i + k == 0:
                    e(f"v_xor_b32 v{V_T+1}, s{S_TG}, v{r}")
                else:
                    e(f"v_bitop3_b32 v{V_T+1}, v{V_T+1}, v{r}, s{S_TG+k} bitop3:0xf6")
        e(f"v_and_b32 v{V_T+1}, v{V_T}, v{V_T+1}")
        e(f"v_cmp_ne_u32 vcc, 0, v{V_T+1}")
        e("s_cbranch_vccnz K2_SLOW")

    def lag(n):
        mark = {}
        q(lambda: mark.__setitem__("m", cnt["m"]))
        fill.append((lambda: cnt["m"] >= mark["m"] + n or cur["g"] > 90,))

    def first_tile_done():
        for x in tile_to_lds(ACC1):
            q(x)
            lag(opt.get("k2_wlag", 2))
        lag(opt.get("k2_blag", 4))
        q(barrier)
        for i in range(5):
            for wv in range(4):
                r = ACC1 + 16 * i + 4 * wv
                q(lambda i=i, r=r, wv=wv: st.__setitem__(("rd", i), e(
                    f"ds_read_b128 v[{r}:{r+3}], v{V_LA+i} offset:{wv*21504}")))
        for i in range(5):
            r = ACC1 + 16 * i
            q(lambda i=i: p.wait(st["rd", i]))
            for k in range(4):
                q(f"v_add_f32 v{r+k}, v{r+k}, v{r+4+k}", f"v_add_f32 v{r+8+k}, v{r+8+k}, v{r+12+k}")
            q(*[f"v_add_f32 v{r+k}, v{r+k}, v{r+8+k}" for k in range(4)])
            q(*[f"v_bfi_b32 v{r+k}, v{V_T}, s{S_TG+k}, v{r+k}" for k in range(4)])
            va, off = (V_L16, 1024 * i) if i < 4 else (V_L16B, 0)
            q(f"buffer_store_dwordx4 v[{r}:{r+3}], v{va}, {srd(SWS)}, s{S_PO} offen offset:{off} sc1")
            lag(opt.get("k2_slag", 0))
        q("s_barrier")
        for i in range(5):
            r = ACC1 + 16 * i + 4
            q(lambda i=i, r=r: st.__setitem__("pk", e(f"ds_read_b128 v[{r}:{r+3}], v13 offset:{1024*i}")))
        fill.append((lambda: cur["g"] >= opt.get("k2_poll", 98) and cnt["m"] >= opt.get("k2_pollm", 440),))
        q(part_loads)

    ld = []
    F = opt.get("k2_fuse", 3)
    cnt = {"m": 0}

    def mfma(g, cb, rb):
        acc = ACC1 if g < 12 else ACC2
        i, r = g % 12, RING + 16 * (g % 4)
        c = f"v[{acc+(cb*4+rb)*4}:{acc+(cb*4+rb)*4+3}]"
        start = p.slots
        e(f"v_mfma_f32_16x16x32_bf16 {c}, a[{20*i+4*cb}:{20*i+4*cb+3}], {slot(g, rb)}, {c if i else 0}")
        cnt["m"] += 1
        if cnt["m"] % 2 == 0 and ld:
            ld.pop(0)()
        return start

    when = {15: opt.get("k2_w15", 11), 16: opt.get("k2_w16", 12), 17: opt.get("k2_w17", 13), 21: 15, 22: 16, 23: 17}
    for g in range(24 - F):
        cur["g"] = g
        if g + 1 in VIA_LDS:
            ld.extend(from_lds(g + 1))
        if g + PD < 24 and g + PD not in VIA_LDS:
            ld.extend(loads(g + PD))
        for g2 in VIA_LDS:
            if when[g2] == g:
                ld.extend(loads(g2))
        if g == 23 - F:
            for g2 in range(g + 2, min(g + 4, 24)):
                if g2 in VIA_LDS:
                    ld.extend(from_lds(g2))
        if g == 11:
            pull(10000)
        if g == 12:
            if opt.get("stamp"):
                e("s_memtime s[78:79]")
            first_tile_done()
        p.wait(tok[g])
        if opt.get("stamp") and g in opt.get("k2x", []):
            r_ = 82 + 2 * opt["k2x"].index(g)
            e(f"s_memtime s[{r_}:{r_+1}]")
        for cb in range(5):
            for rb in range(4):
                start = mfma(g, cb, rb)
                pull((opt.get("k2_b1", 6) if g < 12 else opt.get("k2_b2", 4)) - (p.slots - start))
        while ld:
            ld.pop(0)()
    cur["g"] = 98
    wr = []
    tl = tile_to_lds(ACC2)
    for cb in range(5):
        n = 0
        for g in range(24 - F, 24):
            p.wait(tok[g])
            for rb in range(4):
                start = mfma(g, cb, rb)
                n += 1
                if wr and n > 2 and (n - 3) % max(1, F - 1) == 0:
                    e(wr.pop(0))
                pull(opt.get("k2_b2", 4) - (p.slots - start))
        for x in wr:
            e(x)
        wr = tl[4 * cb:4 * cb + 4]
    if opt.get("stamp"):
        e("s_memtime s[80:81]")
    pull(10000)
    assert not fill
    for x in wr:
        e(x)
    p.wait(st["pi"], st["pk"])
    part_check()
    p.label("K2_OK")
    e(f"s_mov_b32 s{S_MASK}, 0xffffff00")
    for i in range(5):
        s = ACC1 + 16 * i
        for k in range(4):
            e(f"v_and_b32 v{s+8+k}, s{S_MASK}, v{s+8+k}")
        for k in range(0, 4, 2):
            e(f"v_pk_add_f32 v[{s+k}:{s+k+1}], v[{s+4+k}:{s+5+k}], v[{s+8+k}:{s+9+k}]")
    barrier()
    rd = {}
    for i in range(5):
        for wv in range(4):
            r = ACC2 + 16 * i + 4 * wv
            rd[i] = e(f"ds_read_b128 v[{r}:{r+3}], v{V_LA+i} offset:{wv*21504}")
    for i in range(5):
        r, s = ACC2 + 16 * i, ACC1 + 16 * i
        p.wait(rd[i])
        for k in range(0, 4, 2):
            e(f"v_pk_add_f32 v[{r+k}:{r+k+1}], v[{r+k}:{r+k+1}], v[{r+4+k}:{r+5+k}]")
            e(f"v_pk_add_f32 v[{r+8+k}:{r+9+k}], v[{r+8+k}:{r+9+k}], v[{r+12+k}:{r+13+k}]")
            e(f"v_pk_add_f32 v[{s+k}:{s+k+1}], v[{s+k}:{s+k+1}], v[{r+k}:{r+k+1}]")
        for k in range(0, 4, 2):
            e(f"v_pk_add_f32 v[{s+k}:{s+k+1}], v[{s+k}:{s+k+1}], v[{r+8+k}:{r+9+k}]")
        e(f"buffer_store_dwordx4 v[{s}:{s+3}], v{V_OA+i}, {srd(SO)}, s{S_OO} offen{opt.get('owt', '')}")
    if opt.get("stamp"):
        e("s_memtime s[72:73]")
        e("s_waitcnt vmcnt(0) lgkmcnt(0)")
        e("s_memrealtime s[74:75]")
        e(f"s_lshl_b32 s3, s2, 2"); e(f"s_add_u32 s3, s3, s{S_W}"); e("s_lshl_b32 s3, s3, 6")
        e(f"s_add_u32 s3, s3, {STAMP2_OFF}")
        e("s_waitcnt lgkmcnt(0)")
        for k, sr in enumerate((70, 74, 76, 78, 80, 72, S_SPIN, 82, 84, 86, 88, 90, 92)):
            e(f"v_mov_b32 v6, s{sr}")
            e(f"buffer_store_dword v6, off, {srd(SWS)}, s3 offset:{4*k}")
    p.label("K2_END")
    e("s_endpgm")
    p.label("K2_SLOW")
    e("s_sleep 2")
    e(f"s_add_u32 s{S_SPIN}, s{S_SPIN}, 1")
    e(f"s_cmp_gt_u32 s{S_SPIN}, {0 if opt.get('nopub') else 100000}")
    e("s_cbranch_scc1 K2_OK")
    part_loads()
    e("s_waitcnt vmcnt(0)")
    part_check()
    e("s_branch K2_OK")
    p.fix_hazards()
    return p


K2_LDS = STG + 4 * 12288
K2_DESC = """
.amdhsa_kernel gemm2_kernel
  .amdhsa_next_free_vgpr 512
  .amdhsa_next_free_sgpr 96
  .amdhsa_accum_offset 256
  .amdhsa_group_segment_fixed_size 0
  .amdhsa_kernarg_size 128
  .amdhsa_user_sgpr_count 2
  .amdhsa_user_sgpr_kernarg_segment_ptr 1
  .amdhsa_system_sgpr_workgroup_id_x 1
  .amdhsa_float_denorm_mode_32 3
.end_amdhsa_kernel
"""
```

```python
from k1 import *

NAME = "parallel_sum__ssm_conv_s5__glu_gated_geglu__prompt_kernel"
S_WB = 28
S_A, S_OOB, S_XO, S_OO, S_PO, S_PI, S_N, S_A0, S_TG, S_DN, S_DIV = 68, 69, 70, 71, 72, 73, 74, 75, 76, 80, 81
SD, SO = SS, SF
V_L16, V_L16B, V_WA, V_PK = 3, 4, 5, 13
ACC1, ACC2, RING = 16, 96, 176
V_OA, V_LA, V_T = 240, 245, 250
WMAP = [192 + 4 * k for k in range(16)] + [4 * k for k in range(40)] + [160 + 4 * k for k in range(4)]
SLOT5 = 176


class Fused(K1):
    def __init__(self, opt):
        super().__init__(opt)
        self.name = NAME
        self.fused = True
        self.polls = []
        self.vjc = V_JW

    def stats_to_lds(self):
        e = self.p.e
        e(f"ds_write2_b32 v0, v{V_X+8}, v{V_X+10} offset1:1")
        e(f"v_add_u32 v0, 0x1000, v{V_TW+2}")

    def jf_store(self, tmp):
        t = S_WB + 1
        return [[f"s_lshl_b32 s{t}, s2, 2", f"s_add_u32 s{t}, s{t}, {JF_OFF}", f"s_cmp_eq_u32 s{S_W}, 0",
                 f"s_cselect_b32 s{t}, s{t}, {OOB}"], f"v_mov_b32 v{tmp}, s{S_EPOCH}",
                ["s_mov_b64 exec, 1", f"buffer_store_dword v{tmp}, off, {srd(SWS)}, s{t} sc1", "s_mov_b64 exec, -1"]]

    def jf_later(self, tmp, delay):
        def raise_flag():
            for x in self.jf_store(tmp):
                for y in (x if isinstance(x, list) else [x]):
                    self.p.e(y)

        def arm():
            self.pre_barrier.append(self.job_store)
            self.on_barrier.append(raise_flag)
        self.timers.append((self.mf + delay, arm))

    def a_job_setup(self):
        e = self.p.e
        vo = self.vjc
        e(f"v_lshrrev_b32 v{vo}, 3, v{V_LANE}"); e(f"v_mul_u32_u24 v{vo}, 1280, v{vo}")
        e(f"v_and_b32 v{vo+1}, 7, v{V_LANE}"); e(f"v_lshl_add_u32 v{vo}, v{vo+1}, 4, v{vo}")
        e(f"v_add_u32 v{vo+1}, {8*1280 - 1024}, v{vo}")
        e(f"s_lshl_b32 s{S_JOB}, s{S_SB}, 4"); e(f"s_add_u32 s{S_JOB}, s{S_JOB}, s{S_MT}")
        e(f"s_lshl_b32 s{S_JOB}, s{S_JOB}, 2"); e(f"s_add_u32 s{S_JOB}, s{S_JOB}, s{S_W}")
        e(f"s_cmp_ge_u32 s{S_JOB}, 540")
        e(f"s_cselect_b32 s{S_J2}, 1, 0")
        e(f"s_cselect_b32 s{SA1}, s{K_CRE}, s{K_WD}"); e(f"s_cselect_b32 s{SA1+1}, s{K_CRE+1}, s{K_WD+1}")
        e(f"s_cselect_b32 s{SA2}, s{K_CIM}, s{K_WD}"); e(f"s_cselect_b32 s{SA2+1}, s{K_CIM+1}, s{K_WD+1}")
        e(f"s_cselect_b32 s{S_XB}, 0, {16*1280}")
        e(f"s_cselect_b32 s{S_T2}, 540, 0")
        e(f"s_cselect_b32 s{SA1+2}, {SQ_BYTES}, s{SF+2}")
        e(f"s_mov_b32 s{SA2+2}, s{SA1+2}")
        e(f"s_mov_b32 s{SA1+3}, 0x20000"); e(f"s_mov_b32 s{SA2+3}, 0x20000")
        e(f"s_sub_u32 s{S_JOB}, s{S_JOB}, s{S_T2}")
        e(f"s_mul_hi_u32 s{S_T1}, s{S_JOB}, 0x1999999a")
        e(f"s_mul_i32 s{S_R}, s{S_T1}, 10"); e(f"s_sub_u32 s{S_R}, s{S_JOB}, s{S_R}")
        e(f"s_add_u32 s{S_T2}, s{S_XB}, {16*1280}")
        e(f"s_mul_i32 s{S_JOB}, s{S_T1}, s{S_T2}")
        e(f"s_lshl_b32 s{S_T2}, s{S_R}, 7"); e(f"s_add_u32 s{S_JOB}, s{S_JOB}, s{S_T2}")

    def a_job(self, is_c, m0):
        p, q = self.p, self.q
        R, st = 188, {}
        D, X = R + 4, 224
        ad, cb, ks = S_JOB, (S_T1 if is_c else S_R), (S_R if is_c else S_T1)

        def at(k):
            self.fill.append(("t", lambda: self.mf - m0 >= k))
        if is_c:
            q(f"v_and_b32 v{R}, 15, v{V_LANE}", f"v_lshlrev_b32 v{R}, 7, v{R}",
              f"v_lshrrev_b32 v{R+1}, 4, v{V_LANE}", f"v_lshl_add_u32 v{R}, v{R+1}, 3, v{R}")
        else:
            q(f"v_lshrrev_b32 v{R}, 5, v{V_LANE}", f"v_lshlrev_b32 v{R}, 4, v{R}",
              f"v_bfe_u32 v{R+1}, v{V_LANE}, 2, 3", f"v_add_u32 v{R}, v{R}, v{R+1}",
              f"v_lshlrev_b32 v{R}, 7, v{R}", f"v_and_b32 v{R+1}, 3, v{V_LANE}",
              f"v_lshl_add_u32 v{R}, v{R+1}, 3, v{R}")
        q(f"v_add_u32 v{R}, s{S_J1}, v{R}")
        land = [(RAW + 96 + 4 * f) if is_c else (D + 4 * f) for f in range(4)]
        for f in range(4):
            at(68 + f // 2)

            def rd(f=f):
                p.wait(self.stage_tok[100])
                op, o2 = ("ds_read_b64", 2048) if is_c else ("ds_read_b64_tr_b16", 1024)
                p.e(f"{op} v[{land[f]}:{land[f]+1}], v{R} offset:{32*f}")
                st[f] = p.e(f"{op} v[{land[f]+2}:{land[f]+3}], v{R} offset:{32*f + o2}")
            rd.cost = 2
            self.fill.append(rd)
        q(f"s_lshl_b32 s{S_R}, s{S_R}, 2")
        if is_c:
            q(f"s_add_u32 s{S_R}, s{S_R}, 54", f"s_mov_b32 s{S_T2}, 0x05040100", f"s_mov_b32 s{S_T3}, 0x07060302")
        q(f"s_mul_hi_u32 s{ad}, s{cb}, 0x33333334", f"s_mul_i32 s{S_XB}, s{ad}, 5",
          f"s_sub_u32 s{cb}, s{cb}, s{S_XB}", f"s_mul_i32 s{ad}, s{ad}, 94", f"s_add_u32 s{ad}, s{ad}, s{ks}",
          f"s_mul_i32 s{ad}, s{ad}, 5", f"s_add_u32 s{ad}, s{ad}, s{cb}", f"s_lshl_b32 s{ad}, s{ad}, 10",
          f"s_add_u32 s{ad}, s{ad}, {W2F_OFF}")
        at(74)
        self.fill.append(lambda: p.wait(st[3]))
        for f in range(4):
            if is_c:
                re, im = land[f], land[f] + 2
                for k in range(2):
                    q(f"v_perm_b32 v{D+4*f+2*k}, v{im+k}, v{re+k}, s{S_T2}",
                      f"v_perm_b32 v{D+4*f+2*k+1}, v{im+k}, v{re+k}, s{S_T3}")
            at(76 + 2 * f)
            self.fill.append(lambda f=f: setattr(self, "job_store", p.e(
                f"buffer_store_dwordx4 v[{D+4*f}:{D+4*f+3}], v{V_TW+2}, {srd(SWS)}, s{ad} offen{self.wt}")))
            if f < 3 and is_c:
                q(f"s_add_u32 s{ad}, s{ad}, 5120")
            elif f < 3:
                q([f"s_cmp_eq_u32 s{cb}, {4 - f}", f"s_cselect_b32 s{S_XB}, {93*5120}, 0"],
                  f"s_add_u32 s{ad}, s{ad}, s{S_XB}", f"s_add_u32 s{ad}, s{ad}, 1024")

    def jf_load(self, R):
        e = self.p.e
        e(f"s_mov_b32 s{S_WB+1}, {JF_OFF}")
        self.jf_tok = e(f"buffer_load_dwordx4 v[{R}:{R+3}], v{V_TW+2}, {srd(SWS)}, s{S_WB+1} offen sc1")

    def all_equal(self, R, n, label):
        e = self.p.e
        e(f"v_xor_b32 v{R}, s{S_EPOCH}, v{R}")
        for k in range(1, n):
            e(f"v_bitop3_b32 v{R}, v{R}, v{R+k}, s{S_EPOCH} bitop3:0xf6")
        e(f"v_cmp_ne_u32 vcc, 0, v{R}")
        e(f"s_cbranch_vccnz {label}")

    def jf_check(self, R, tag, first, per):
        p, e = self.p, self.p.e
        e(f"s_mov_b32 s{S_WB+2}, 0")
        p.wait(self.jf_tok)
        self.all_equal(R, 4, f"JF_SLOW_{tag}")
        p.label(f"JF_OK_{tag}")
        self.polls.append((tag, R))
        e(f"s_lshr_b32 s{S_WB}, s{S_CG}, 3")
        e(f"s_mul_i32 s{S_WB}, s{S_WB}, 47")
        e(f"s_mul_i32 s{S_WB+1}, s{S_W}, 12")
        e(f"s_add_u32 s{S_WB+3}, s{S_WB}, s{S_WB+1}")
        e(f"s_and_b32 s{S_WB}, s{S_CG}, 7")
        e(f"s_mul_i32 s{S_WB}, s{S_WB}, 94")
        e(f"s_add_u32 s{S_WB}, s{S_WB}, s{S_WB+3}")
        e(f"s_mul_i32 s{S_WB}, s{S_WB}, 5120")
        e(f"s_add_u32 s{S_WB}, s{S_WB}, {W2F_OFF}")

        def ld(n):
            i, cb = divmod(n, 5)
            if cb == 0 and i:
                e(f"s_add_u32 s{S_WB}, s{S_WB}, 5120")
                if i == 11:
                    e(f"s_cmp_eq_u32 s{S_W}, 3")
                    e(f"s_cselect_b32 s{S_WB}, {OOB}, s{S_WB}")
            va, off = (V_TW + 2, 1024 * cb) if cb < 4 else (0, 0)
            e(f"buffer_load_dwordx4 a[{WMAP[n]}:{WMAP[n]+3}], v{va}, {srd(SWS)}, s{S_WB} offen offset:{off} sc1")
        self.wq = [lambda n=n: ld(n) for n in range(60)]
        self.wfrom, self.wper = first, per

    def poll_paths(self):
        p, e = self.p, self.p.e
        for tag, R in self.polls:
            p.label(f"JF_SLOW_{tag}")
            e("s_sleep 16")
            e(f"s_add_u32 s{S_WB+2}, s{S_WB+2}, 1")
            e(f"s_cmp_gt_u32 s{S_WB+2}, 20000")
            e(f"s_cbranch_scc1 JF_OK_{tag}")
            e(f"buffer_load_dwordx4 v[{R}:{R+3}], v{V_TW+2}, {srd(SWS)}, s{S_WB+1} offen sc1")
            e("s_waitcnt vmcnt(0)")
            self.all_equal(R, 4, f"JF_SLOW_{tag}")
            e(f"s_branch JF_OK_{tag}")

    def c_jobs(self):
        p, e = self.p, self.p.e
        R = ACC_D2 - 4
        e(f"v_and_b32 v{R}, 15, v{V_LANE}"); e(f"v_lshlrev_b32 v{R}, 7, v{R}")
        e(f"v_lshrrev_b32 v{R+1}, 4, v{V_LANE}"); e(f"v_lshl_add_u32 v{R}, v{R+1}, 3, v{R}")
        e(f"s_mov_b32 s{S_KS}, 0x05040100"); e(f"s_mov_b32 s{S_KS+1}, 0x07060302")
        e(f"v_add_u32 v{R}, s{S_W4K}, v{R}")
        e(f"v_add_u32 v{R+1}, 0x10000, v{R}")
        ad, t1, t2 = S_KS + 2, S_KS + 3, S_KS + 4
        for i in range(2):
            n = 5 + i
            slot = n % 8
            va, off = R + slot // 4, (slot % 4) * 16384
            D = R + 4 + 32 * (i % 2)
            while n not in self.stage_tok:
                self.dma()
            p.wait(self.stage_tok[n])
            tk = []
            for f in range(4):
                e(f"ds_read_b64 v[{D+16+4*f}:{D+16+4*f+1}], v{va} offset:{off + 32*f}")
                tk.append(e(f"ds_read_b64 v[{D+16+4*f+2}:{D+16+4*f+3}], v{va} offset:{off + 32*f + 2048}"))
            self.job_index("C", i)
            e(f"s_lshl_b32 s{S_R}, s{S_R}, 2"); e(f"s_add_u32 s{S_R}, s{S_R}, 54")
            e(f"s_mul_hi_u32 s{t1}, s{S_T1}, 0x33333334"); e(f"s_mul_i32 s{t2}, s{t1}, 5")
            e(f"s_sub_u32 s{t2}, s{S_T1}, s{t2}"); e(f"s_mul_i32 s{t1}, s{t1}, 94")
            e(f"s_add_u32 s{t1}, s{t1}, s{S_R}"); e(f"s_mul_i32 s{t1}, s{t1}, 5")
            e(f"s_add_u32 s{t1}, s{t1}, s{t2}"); e(f"s_lshl_b32 s{ad}, s{t1}, 10")
            e(f"s_add_u32 s{ad}, s{ad}, {W2F_OFF}")
            e(f"s_cmp_lt_u32 s{S_J2}, 400"); e(f"s_cselect_b32 s{ad}, s{ad}, {OOB}")
            for f in range(4):
                p.wait(tk[f])
                re, im = D + 16 + 4 * f, D + 16 + 4 * f + 2
                for k in range(2):
                    e(f"v_perm_b32 v{D+4*f+2*k}, v{im+k}, v{re+k}, s{S_KS}")
                    e(f"v_perm_b32 v{D+4*f+2*k+1}, v{im+k}, v{re+k}, s{S_KS+1}")
                self.job_store = e(f"buffer_store_dwordx4 v[{D+4*f}:{D+4*f+3}], v{V_TW+2}, {srd(SWS)}, s{ad} offen{self.wt}")
                if f < 3:
                    e(f"s_add_u32 s{ad}, s{ad}, 5120")
            self.issue_stage(13 + i, "F", 6 + i, S_D1)

    def phase2_head(self, k):
        p, e = self.p, self.p.e
        self.stamp(k)
        for _ in range(min(len(self.wq), self.opt.get("head_w", 6))):
            self.wq.pop(0)()
        for x in self.mk_srd(SD, K_DSK, 1280) + self.mk_srd(SO, K_OUT, OUT_BYTES):
            e(x)
        e(f"v_mov_b32 v{V_L16}, v{V_TW+2}"); e(f"v_mov_b32 v{V_L16B}, v0")
        e(f"s_mov_b32 s{S_N}, s{S_WB+3}")
        e(f"s_lshr_b32 s{S_T2}, s{S_CG}, 3")
        e(f"s_lshl_b32 s{S_T3}, s{S_MT}, 1")
        e(f"s_add_u32 s{S_T3}, s{S_T3}, s{S_T2}")
        e(f"s_mul_i32 s{S_A0}, s{S_T3}, 94"); e(f"s_add_u32 s{S_A0}, s{S_A0}, s{S_N}"); e(f"s_lshl_b32 s{S_A0}, s{S_A0}, 12")
        e(f"s_xor_b32 s{S_A}, s{S_T3}, 1")
        e(f"s_mul_i32 s{S_A}, s{S_A}, 94"); e(f"s_add_u32 s{S_A}, s{S_A}, s{S_N}"); e(f"s_lshl_b32 s{S_A}, s{S_A}, 12")
        e(f"s_lshl_b32 s{S_T3}, s{S_T3}, 6"); e(f"s_lshl_b32 s{S_T0}, s{S_W}, 4"); e(f"s_add_u32 s{S_T3}, s{S_T3}, s{S_T0}")
        e(f"s_and_b32 s{S_T1}, s{S_CG}, 7"); e(f"s_mul_i32 s{S_T1}, s{S_T1}, 160")
        e(f"s_mul_i32 s{S_XO}, s{S_T3}, 1280"); e(f"s_add_u32 s{S_XO}, s{S_XO}, s{S_T1}")
        e(f"s_lshl_b32 s{S_OO}, s{S_XO}, 1")
        e(f"s_mov_b32 s{S_DIV}, 0xcccd"); e(f"s_mov_b32 m0, s{S_J1}")
        for j in range(3):
            e(f"v_add_u32 v6, {64*j}, v{V_LANE}"); e(f"v_mul_lo_u32 v7, v6, s{S_DIV}"); e("v_lshrrev_b32 v7, 19, v7")
            e("v_mul_u32_u24 v8, 1120, v7"); e("v_lshl_add_u32 v8, v6, 4, v8")
            if j:
                e(f"v_add_u32 v8, {-1024*j & 0xffffffff:#x}, v8")
            if j == 2:
                e("s_mov_b32 exec_hi, 0")
            e(f"buffer_load_dwordx4 v8, {srd(SX)}, s{S_XO} offen offset:{1024*j} lds")
        e(f"s_add_u32 m0, s{S_J1}, 3072"); e("s_mov_b32 exec_lo, 0x3ff")
        t_res = e(f"buffer_load_dwordx4 v{V_L16}, {srd(SD)}, s{S_T1} offen lds")
        e("s_mov_b64 exec, -1")
        e(f"s_lshl_b32 s{S_DN}, s{S_MT}, 11"); e(f"s_add_u32 s{S_DN}, s{S_DN}, {DONE_OFF}")
        e(f"s_lshl_b32 s{S_T0}, s{S_CG}, 7"); e(f"s_add_u32 s{S_T0}, s{S_T0}, s{S_DN}")
        e(f"s_cmp_eq_u32 s{S_W}, 0"); e(f"s_cselect_b32 s{S_T0}, s{S_T0}, {OOB}")
        e(f"v_mov_b32 v{V_T}, s{S_EPOCH}")
        self.barrier(self.last_store)
        e("s_mov_b64 exec, 1")
        e(f"buffer_store_dword v{V_T}, off, {srd(SWS)}, s{S_T0} sc1")
        e("s_mov_b64 exec, -1")
        while self.wq:
            self.wq.pop(0)()
        self.stamp(k + 1)
        e(f"s_and_b32 s{S_T3}, s{S_T3}, 127"); e(f"s_lshl_b32 s{S_T3}, s{S_T3}, 3"); e(f"s_add_u32 s{S_T3}, s{S_T3}, {STL}")
        e(f"s_mul_i32 s{S_T2}, s{S_W}, 5376")
        e(f"v_lshlrev_b32 v10, 3, v{V_LANE}"); e(f"v_add_u32 v10, s{S_J1}, v10")
        XR, DR, SR, T = ACC2, ACC2 + 10, ACC2 + 20, ACC2 + 32
        AD = ACC2 + 60
        for i in range(5):
            e(f"v_add_u32 v6, {64*i}, v{V_LANE}"); e(f"v_mul_lo_u32 v7, v6, s{S_DIV}"); e("v_lshrrev_b32 v7, 20, v7")
            e("v_mul_u32_u24 v8, 20, v7"); e("v_sub_u32 v8, v6, v8")
            e("v_mul_u32_u24 v9, 2560, v7"); e(f"v_lshl_add_u32 v{V_OA+i}, v8, 4, v9")
            e("v_mul_u32_u24 v12, 336, v7"); e("v_lshl_add_u32 v12, v8, 4, v12")
            e(f"v_add_u32 v{V_LA+i}, s{S_T2}, v12")
            e(f"v_lshl_add_u32 v{AD+i}, v8, 3, s{S_J1}"); e(f"v_lshl_add_u32 v11, v7, 3, s{S_T3}")
            e(f"ds_read_b64 v[{SR+2*i}:{SR+2*i+1}], v11")
        e(f"v_and_b32 v{V_WA}, 15, v{V_LANE}"); e(f"v_mul_u32_u24 v{V_WA}, 336, v{V_WA}")
        e(f"v_lshrrev_b32 v6, 4, v{V_LANE}"); e(f"v_lshl_add_u32 v{V_WA}, v6, 4, v{V_WA}")
        e(f"s_mul_i32 s{S_T2}, s{S_W}, 21504"); e(f"v_add_u32 v{V_WA}, s{S_T2}, v{V_WA}")
        e(f"v_add_u32 v{V_PK}, s{S_J1}, v{V_L16}")
        e("s_lshl_b32 s3, s2, 2"); e(f"s_add_u32 s3, s3, s{S_W}")
        e(f"s_mul_i32 s{S_PO}, s3, 5120"); e(f"s_add_u32 s{S_PO}, s{S_PO}, {PART_OFF}")
        e("s_xor_b32 s3, s3, 4")
        e(f"s_mul_i32 s{S_PI}, s3, 5120"); e(f"s_add_u32 s{S_PI}, s{S_PI}, {PART_OFF}")
        e(f"s_mov_b32 s{S_SPIN}, 0"); e(f"v_mov_b32 v{V_T}, 0xff"); e(f"s_mov_b32 s{S_OOB}, {OOB}")
        e(f"s_mov_b32 s{S_TG}, s{S_EPOCH}")
        for j in range(1, 4):
            e(f"s_lshr_b32 s{S_TG+j}, s{S_TG}, {8*j}"); e(f"s_add_u32 s{S_TG+j}, s{S_TG+j}, s{S_TG}")
        e(f"v_and_b32 v2, 15, v{V_LANE}")
        e("v_lshlrev_b32 v2, 7, v2")
        p.wait(t_res)
        t = None
        for i in range(5):
            e(f"ds_read_b64 v[{XR+2*i}:{XR+2*i+1}], v10 offset:{512*i}")
            t = e(f"ds_read_b64 v[{DR+2*i}:{DR+2*i+1}], v{AD+i} offset:3072")
        p.wait(t)
        M = f"s{S_MASK}"
        for i in range(5):
            x0, d0, s0 = XR + 2 * i, DR + 2 * i, SR + 2 * i
            for j, r in enumerate((x0, x0 + 1, d0, d0 + 1)):
                e(f"v_lshlrev_b32 v{T+2*j}, 16, v{r}"); e(f"v_and_b32 v{T+2*j+1}, {M}, v{r}")
            for j in range(4):
                e(f"v_fma_f32 v{T+8+j}, v{T+j}, v{s0}, v{s0+1}")
            for rnd in range(2):
                e(f"v_cvt_pk_bf16_f32 v{T+12}, v{T+8}, v{T+9}"); e(f"v_cvt_pk_bf16_f32 v{T+13}, v{T+10}, v{T+11}")
                e(f"v_lshlrev_b32 v{T+8}, 16, v{T+12}"); e(f"v_and_b32 v{T+9}, {M}, v{T+12}")
                e(f"v_lshlrev_b32 v{T+10}, 16, v{T+13}"); e(f"v_and_b32 v{T+11}, {M}, v{T+13}")
                if rnd == 0:
                    for j in (0, 2):
                        e(f"v_pk_mul_f32 v[{T+8+j}:{T+9+j}], v[{T+8+j}:{T+9+j}], v[{T+4+j}:{T+5+j}]")
            o = T + 16 + 4 * (i % 2)
            for j in (0, 2):
                e(f"v_pk_add_f32 v[{o+j}:{o+j+1}], v[{T+j}:{T+j+1}], v[{T+8+j}:{T+9+j}]")
            e(f"ds_write_b128 v{V_PK}, v[{o}:{o+3}] offset:{1024*i}")
        e("s_branch K2_START")

    def phase2(self):
        p, e, opt = self.p, self.p.e, self.opt
        fill, tok, st, ld = [], {}, {}, []
        cur, cnt = {"g": 0}, {"m": 0}
        NS, F = 5, opt.get("k2_fuse", 3)
        PD = NS - 1

        def slot(g, f):
            k = g % NS
            return f"v[{RING+16*k+4*f}:{RING+16*k+4*f+3}]" if k < 4 else f"a[{SLOT5+4*f}:{SLOT5+3+4*f}]"

        def q(*texts):
            for t in texts:
                fill.append(t if callable(t) else (lambda t=t: e(t)))

        def pull(budget):
            start = p.slots
            while fill and p.slots - start < budget:
                it = fill[0]
                if isinstance(it, tuple):
                    if not it[0]():
                        return
                    fill.pop(0)
                    continue
                fill.pop(0)
                it()

        def lag(n):
            mark = {}
            q(lambda: mark.__setitem__("m", cnt["m"]))
            fill.append((lambda: cnt["m"] >= mark["m"] + n or cur["g"] > 98,))

        def loads(g):
            def one(f):
                if f == 0:
                    if g >= 12:
                        e(f"s_add_u32 s{S_A}, s{S_A0}, {4096*(g - 12)}")
                    elif g:
                        e(f"s_add_u32 s{S_A}, s{S_A}, 4096")
                    if g % 12 == 11:
                        e(f"s_cmp_eq_u32 s{S_W}, 3")
                        e(f"s_cselect_b32 s{S_A}, s{S_OOB}, s{S_A}")
                tok[g] = e(f"buffer_load_dwordx4 {slot(g, f)}, v{V_L16}, {srd(SWS)}, s{S_A} offen offset:{1024*f} sc1")
            return [lambda f=f: one(f) for f in range(4)]

        def tile_to_lds(acc):
            return [f"ds_write_b128 v{V_WA}, v[{acc+(cb*4+rb)*4}:{acc+(cb*4+rb)*4+3}] offset:{rb*5376 + cb*64}"
                    for cb in range(5) for rb in range(4)]

        def barrier():
            p.wait_all(vm=False)
            e("s_barrier")

        def part_loads():
            for i in range(5):
                r = ACC1 + 16 * i + 8
                va, off = (V_L16, 1024 * i) if i < 4 else (V_L16B, 0)
                st["pi"] = e(f"buffer_load_dwordx4 v[{r}:{r+3}], v{va}, {srd(SWS)}, s{S_PI} offen offset:{off} sc1")

        def part_check():
            for i in range(5):
                for k in range(4):
                    r = ACC1 + 16 * i + 8 + k
                    if i + k == 0:
                        e(f"v_xor_b32 v{V_T+1}, s{S_TG}, v{r}")
                    else:
                        e(f"v_bitop3_b32 v{V_T+1}, v{V_T+1}, v{r}, s{S_TG+k} bitop3:0xf6")
            e(f"v_and_b32 v{V_T+1}, v{V_T}, v{V_T+1}")
            e(f"v_cmp_ne_u32 vcc, 0, v{V_T+1}")
            e("s_cbranch_vccnz K2_SLOW")

        def first_tile_done():
            for x in tile_to_lds(ACC1):
                q(x)
                lag(opt.get("k2_wlag", 2))
            lag(opt.get("k2_blag", 4))
            q(barrier)
            for i in range(5):
                for wv in range(4):
                    r = ACC1 + 16 * i + 4 * wv
                    q(lambda i=i, r=r, wv=wv: st.__setitem__(("rd", i), e(
                        f"ds_read_b128 v[{r}:{r+3}], v{V_LA+i} offset:{wv*21504}")))
            for i in range(5):
                r = ACC1 + 16 * i
                q(lambda i=i: p.wait(st["rd", i]))
                for k in range(4):
                    q(f"v_add_f32 v{r+k}, v{r+k}, v{r+4+k}", f"v_add_f32 v{r+8+k}, v{r+8+k}, v{r+12+k}")
                q(*[f"v_add_f32 v{r+k}, v{r+k}, v{r+8+k}" for k in range(4)])
                q(*[f"v_bfi_b32 v{r+k}, v{V_T}, s{S_TG+k}, v{r+k}" for k in range(4)])
                va, off = (V_L16, 1024 * i) if i < 4 else (V_L16B, 0)
                q(f"buffer_store_dwordx4 v[{r}:{r+3}], v{va}, {srd(SWS)}, s{S_PO} offen offset:{off} sc1")
            q("s_barrier")
            for i in range(5):
                r = ACC1 + 16 * i + 4
                q(lambda i=i, r=r: st.__setitem__("pk", e(f"ds_read_b128 v[{r}:{r+3}], v{V_PK} offset:{1024*i}")))
            fill.append((lambda: cnt["m"] >= opt.get("k2_pollm", 440),))
            q(part_loads)

        def mfma(g, cb, rb):
            acc = ACC1 if g < 12 else ACC2
            i = g % 12
            w = WMAP[5 * i + cb]
            c = f"v[{acc+(cb*4+rb)*4}:{acc+(cb*4+rb)*4+3}]"
            start = p.slots
            e(f"v_mfma_f32_16x16x32_bf16 {c}, a[{w}:{w+3}], {slot(g, rb)}, {c if i else 0}")
            cnt["m"] += 1
            if cnt["m"] % 4 == 2 and ld:
                ld.pop(0)()
            return start

        p.label("K2_START")
        e(f"s_cmp_lg_u32 s{S_W}, 0")
        e("s_cbranch_scc1 K2_GO")
        e("s_mov_b64 exec, 0xffff")
        p.label("K2_RETRY")
        e(f"buffer_load_dword v15, v2, {srd(SWS)}, s{S_DN} offen sc1")
        e(f"s_add_u32 s{S_SPIN}, s{S_SPIN}, 1")
        e("s_waitcnt vmcnt(0)")
        e(f"v_cmp_ne_u32 vcc, s{S_EPOCH}, v15")
        e("s_cbranch_vccz K2_SEEN")
        e(f"s_sleep {opt.get('done_sleep', 3)}")
        e(f"s_cmp_lt_u32 s{S_SPIN}, 100000")
        e("s_cbranch_scc1 K2_RETRY")
        p.label("K2_SEEN")
        e("s_mov_b64 exec, -1")
        p.label("K2_GO")
        p.vq = p.vdone = p.lq = p.ldone = 0
        p.wait_all(vm=False)
        e("s_barrier")
        self.stamp(10)
        if opt.get("stamp"):
            e(f"s_mov_b32 s{S_WB}, s{S_SPIN}")
        e(f"s_mov_b32 s{S_SPIN}, 0")
        for g in range(PD):
            for f in loads(g):
                f()
        for g in range(24 - F):
            cur["g"] = g
            if g + PD < 24:
                ld.extend(loads(g + PD))
            if g == 12:
                self.stamp(11)
                first_tile_done()
            p.wait(tok[g])
            for cb in range(5):
                for rb in range(4):
                    start = mfma(g, cb, rb)
                    pull(opt.get("k2_b2", 4) - (p.slots - start))
            while ld:
                ld.pop(0)()
        cur["g"] = 98
        wr, tl = [], tile_to_lds(ACC2)
        for cb in range(5):
            n = 0
            for g in range(24 - F, 24):
                p.wait(tok[g])
                for rb in range(4):
                    start = mfma(g, cb, rb)
                    n += 1
                    if wr and n > 2 and (n - 3) % max(1, F - 1) == 0:
                        e(wr.pop(0))
                    pull(opt.get("k2_b2", 4) - (p.slots - start))
            for x in wr:
                e(x)
            wr = tl[4 * cb:4 * cb + 4]
        cur["g"] = 99
        self.stamp(12)
        pull(10000)
        assert not fill
        for x in wr:
            e(x)
        p.wait(st["pi"], st["pk"])
        part_check()
        p.label("K2_OK")
        e(f"s_mov_b32 s{S_DIV}, 0xffffff00")
        for i in range(5):
            s = ACC1 + 16 * i
            for k in range(4):
                e(f"v_and_b32 v{s+8+k}, s{S_DIV}, v{s+8+k}")
            for k in range(0, 4, 2):
                e(f"v_pk_add_f32 v[{s+k}:{s+k+1}], v[{s+4+k}:{s+5+k}], v[{s+8+k}:{s+9+k}]")
        barrier()
        rd = {}
        for i in range(5):
            for wv in range(4):
                r = ACC2 + 16 * i + 4 * wv
                rd[i] = e(f"ds_read_b128 v[{r}:{r+3}], v{V_LA+i} offset:{wv*21504}")
        for i in range(5):
            r, s = ACC2 + 16 * i, ACC1 + 16 * i
            p.wait(rd[i])
            for k in range(0, 4, 2):
                e(f"v_pk_add_f32 v[{r+k}:{r+k+1}], v[{r+k}:{r+k+1}], v[{r+4+k}:{r+5+k}]")
                e(f"v_pk_add_f32 v[{r+8+k}:{r+9+k}], v[{r+8+k}:{r+9+k}], v[{r+12+k}:{r+13+k}]")
                e(f"v_pk_add_f32 v[{s+k}:{s+k+1}], v[{s+k}:{s+k+1}], v[{r+k}:{r+k+1}]")
            for k in range(0, 4, 2):
                e(f"v_pk_add_f32 v[{s+k}:{s+k+1}], v[{s+k}:{s+k+1}], v[{r+8+k}:{r+9+k}]")
            e(f"buffer_store_dwordx4 v[{s}:{s+3}], v{V_OA+i}, {srd(SO)}, s{S_OO} offen{opt.get('owt', ' sc1')}")
        e(f"s_or_b32 s{S_T0}, s2, s{S_W}")
        e(f"s_cmp_eq_u32 s{S_T0}, 0")
        e(f"s_cselect_b32 s{S_T0}, {EPOCH_OFF}, s{S_OOB}")
        e(f"s_cmp_gt_u32 s{S_WB+2}, 20000")
        e(f"s_cselect_b32 s{S_T0}, s{S_OOB}, s{S_T0}")
        e(f"v_mov_b32 v{V_T}, s{S_EPOCH}")
        e("s_mov_b64 exec, 1")
        e(f"buffer_store_dword v{V_T}, off, {srd(SWS)}, s{S_T0} sc1")
        e("s_mov_b64 exec, -1")
        if opt.get("stamp"):
            e(f"s_memtime s[{SA1}:{SA1+1}]")
            p.wait_all()
            e(f"s_memtime s[{SA1+2}:{SA1+3}]")
            e(f"s_memrealtime s[{S_M2}:{S_M2+1}]")
            e(f"s_lshl_b32 s{S_T0}, s2, 2"); e(f"s_add_u32 s{S_T0}, s{S_T0}, s{S_W}")
            e(f"s_lshl_b32 s{S_T0}, s{S_T0}, 7"); e(f"s_add_u32 s{S_T0}, s{S_T0}, {STAMP1_OFF}")
            e("s_waitcnt lgkmcnt(0)")
            for k, r in enumerate(STAMP_REGS + [SA1, SA1 + 2, 94, S_M2, S_WB, S_SPIN, S_WB + 2]):
                e(f"v_mov_b32 v6, s{r}")
                e(f"buffer_store_dword v6, off, {srd(SWS)}, s{S_T0} offset:{4*k}")
        p.label("K1_END")
        e("s_endpgm")
        p.label("K2_SLOW")
        e("s_sleep 2")
        e(f"s_add_u32 s{S_SPIN}, s{S_SPIN}, 1")
        e(f"s_cmp_gt_u32 s{S_SPIN}, 100000")
        e("s_cbranch_scc1 K2_OK")
        part_loads()
        e("s_waitcnt vmcnt(0)")
        part_check()
        e("s_branch K2_OK")

    def build(self):
        p, e, o = self.p, self.p.e, self.opt
        self.prologue()
        e(f"s_cmp_eq_u32 s{S_TYPE}, 2")
        e("s_cbranch_scc1 K1_TYPE_C")
        e(f"s_cmp_eq_u32 s{S_TYPE}, 1")
        e("s_cbranch_scc1 K1_TYPE_B")
        snap = self.snapshot()
        g1, g2 = o.get("lb_issue", 200), o.get("lb_check", 225)
        m0 = self.mf

        def a1():
            self.stamp(4)
            self.stats_to_lds()
            self.jf_later(224, o.get("jf_delay", 40))
            self.ssm_reduce(0, ACC_S, 188)
            self.ssm_finish(0, ACC_S, 188, lambda: self.mf - m0 >= g1, lambda: self.mf - m0 >= g2, "A")

        def a2():
            self.stamp(5)
            self.ffn_epilogue(ACC_D1, S_KD1)
        j1 = o.get("jf_at", 240)
        stages = [("S", i, 0) for i in range(5)] + [("F", i, S_D1) for i in range(10)] + [("F", i, S_D2) for i in range(10)]
        self.fork = (65, 84, lambda: (e(f"s_cmp_eq_u32 s{S_J2}, 1"), e("s_cbranch_scc1 FORK_ALT")),
                     lambda: self.a_job(False, m0), lambda: self.a_job(True, m0))
        self.run(stages, self.s_frags(0, ACC_S) + self.d_frags(5, ACC_D1) + self.d_frags(15, ACC_D2),
                 {84: a1, 240: a2, j1 - 23: lambda: self.jf_load(224), j1 + 1: lambda: self.jf_check(224, "A", 240, 4)}, True)
        self.stamp(6)
        self.flush()
        self.tail_w = True
        self.ffn_tail(ACC_D2, S_KD2)
        self.stamp(7)
        self.phase2_head(8)
        p.label("K1_TYPE_B")
        self.restore(snap)
        self.job_setup("C")
        stages = [("S", i, 0) for i in range(5)] + [("C", 0, 0), ("C", 1, 0)] + [("F", i, S_D1) for i in range(4)]
        self.run(stages, self.s_frags(0, ACC_S), {})
        self.stamp(4)
        self.stats_to_lds()
        self.barrier()
        self.issue_stage(11, "F", 4, S_D1)
        self.issue_stage(12, "F", 5, S_D1)
        self.mf += 1000
        self.c_jobs()
        self.stamp(5)
        m0 = self.mf
        self.jf_later(224, 24)
        self.ssm_reduce(0, ACC_S, 188)
        self.ssm_finish(0, ACC_S, 188, lambda: self.mf - m0 >= g1 - 90, lambda: self.mf - m0 >= g2 - 90, "B")
        plan = {n: (lambda n=n: self.issue_stage(n + 6, "F", n - 1, S_D1)) for n in (9, 10)}
        jb = o.get("jf_b", 140)
        self.gemm(self.d_frags(7, ACC_D1), plan,
                  {jb - 23: lambda: self.jf_load(224), jb + 1: lambda: self.jf_check(224, "B", 0, 4)})
        self.stamp(6)
        self.mf += 1000
        self.flush(16)
        self.ffn_tail(ACC_D1, S_KD1)
        self.stamp(7)
        self.phase2_head(8)
        p.label("K1_TYPE_C")
        self.restore(snap)
        stages = [("S", i % 5, i // 5) for i in range(15)]
        m0 = self.mf

        def c1():
            self.stamp(4)
            self.stats_to_lds()
            self.q(*self.jf_store(152))
            self.ssm_reduce(0, 16, 152)
            for b in (1, 2):
                self.q(*self.ssm_consts(b, V_C + 12 * b + 6, 112))
                self.zero_row(b, 112)

        def c2():
            self.stamp(5)
            self.ssm_reduce(1, 48, 152)
            self.ssm_finish(0, 16, 112, None, lambda: self.mf - m0 >= 215, "C0")
        self.run(stages, self.s_frags(0, 16) + self.s_frags(5, 48) + self.s_frags(10, 80),
                 {81: c1, 161: c2, 215: lambda: self.jf_load(168)})
        self.stamp(6)
        self.jf_check(168, "C", 0, 1)
        self.mf += 1000
        we = o.get("c_wevery", 16)
        self.flush(we)
        self.ssm_reduce(2, 80, 152)
        self.ssm_finish(1, 48, 112, None, None, "C1")
        self.flush(we)
        self.stamp(7)
        self.ssm_finish(2, 80, 112, None, None, "C2")
        self.flush(o.get("c_wevery2", 0))
        self.phase2_head(8)
        self.slow_paths()
        self.poll_paths()
        self.phase2()
        p.fix_hazards()
        return p


DESC = K1_DESC.replace("proj_kernel", NAME)
```

```python
import struct
from asmlib import Prog, cost_of
from layout import *

S_W, S_MT, S_CG, S_R = 4, 5, 6, 7
SX, SS, SF, SWS, SA1, SA2 = 8, 12, 16, 20, 24, 28
S_T0, S_T1, S_T2, S_T3 = 32, 33, 34, 35
K_X, K_LRE, K_LIM, K_BRE, K_BIM, K_CRE, K_CIM, K_LDT = 36, 38, 40, 42, 44, 46, 48, 50
K_DSK, K_BX, K_WG, K_WU, K_WD, K_OUT, K_DBG, K_WS = 52, 54, 56, 58, 60, 62, 64, 66
S_KS = 68
S_KF = 73
S_W4K, S_XB, S_SB, S_SBROW, S_D1, S_D2, S_TYPE, S_EPOCH, S_MASK = 78, 79, 80, 81, 82, 83, 84, 85, 86
S_A2ROW, S_GK2, S_JOB, S_KD1, S_KD2, S_SPIN, S_J1 = 87, 88, 89, 90, 91, 92, 93
S_J2 = 3
STAMP_REGS = [96, 54, 64, 36, 38, 40, 50, 66, 42, 44, 56, 58, 46]
S_HM = 98
S_M2 = 100

V_LANE, V_OF, V_TR, V_STA, V_GK1, V_SEG, V_PUB, V_XW, V_XR = 1, 2, 6, 10, 11, 12, 13, 14, 15
RAW = 16
ACC_S, ACC_D1, ACC_D2 = 16, 48, 112
V_C = 176
V_OS = 212
V_AS = 216
V_JC = 228
V_JW = 208
V_LBO = 232
V_TW = 234
V_PRE = 237
V_STAMP = 243
V_X = 244
XN = 0
FR = 160

LDS_SCR = 131072
SCR_W = 8192
XCH = LDS_SCR + 6144
STL = LDS_SCR + 3 * SCR_W + 6144
K1_LDS = 163840

LOG2E = 1.4426950408889634
GK1 = -2.0 * 0.7978845608028654 * LOG2E
GK2 = GK1 * 0.044715


def fx(x):
    return "0x%08x" % struct.unpack("<I", struct.pack("<f", x))[0]


def srd(n):
    return f"s[{n}:{n+3}]"


class K1:
    def __init__(self, opt):
        self.opt = opt
        self.p = Prog()
        self.fill = []
        self.dq = []
        self.norm = []
        self.stage_tok = {}
        self.pre_barrier = []
        self.nbar = 0
        self.mf = 0
        self.seen = set()
        self.slow = []
        self.refused = []
        self.after_first_barrier = None
        self.wt = opt.get("wt", " sc1")
        self.name = "proj_kernel"
        self.fused = False
        self.wq = []
        self.last_store = None
        self.vgap = 0
        self.on_barrier = []
        self.timers = []
        self.fork = None
        self.vjc = V_JC

    def stamp(self, k):
        if not self.opt.get("stamp"):
            return
        r = STAMP_REGS[k]
        ins = "s_memrealtime" if self.opt.get("rt") else "s_memtime"
        self.p.e(f"{ins} s[{r}:{r+1}]")
        if self.opt.get("verbose"):
            print("stamp", k, "slots", self.p.slots, "fill left", len(self.fill))

    def stamp_out(self, n):
        if not self.opt.get("stamp"):
            return
        p, e = self.p, self.p.e
        self.stamp(n)
        p.wait_all()
        self.stamp(n + 1)
        e(f"s_memrealtime s[{S_M2}:{S_M2+1}]")
        e(f"s_lshl_b32 s{S_T0}, s2, 2"); e(f"s_add_u32 s{S_T0}, s{S_T0}, s{S_W}")
        e(f"s_lshl_b32 s{S_T0}, s{S_T0}, 6"); e(f"s_add_u32 s{S_T0}, s{S_T0}, {STAMP1_OFF}")
        e("s_waitcnt lgkmcnt(0)")
        for k, r in enumerate(STAMP_REGS[:13]):
            e(f"v_mov_b32 v{V_STAMP}, s{r}")
            e(f"buffer_store_dword v{V_STAMP}, off, {srd(SWS)}, s{S_T0} offset:{4*k}")
        for k, r in ((13, S_SPIN), (14, 94), (15, S_M2)):
            e(f"v_mov_b32 v{V_STAMP}, s{r}")
            e(f"buffer_store_dword v{V_STAMP}, off, {srd(SWS)}, s{S_T0} offset:{4*k}")

    def issue_stage(self, n, kind, i, arg):
        e = self.p.e
        slot = n % 8

        def piece(q):
            if q == 0:
                e(f"s_mov_b32 m0, s{S_J1}" if kind in "WJ" else f"s_add_u32 m0, s{S_W4K}, {slot*16384}")
                if kind == "S":
                    e(f"s_add_u32 s{S_T0}, s{S_SBROW}, s{S_KS+i}")
                    if arg:
                        e(f"s_add_u32 s{S_T0}, s{S_T0}, {arg*32*1280}")
                elif kind == "F":
                    e(f"s_add_u32 s{S_T0}, s{arg}, s{S_KF+(i>>1)}")
                    if i & 1:
                        e(f"s_add_u32 s{S_T0}, s{S_T0}, {64*3456}")
                elif kind == "J":
                    e(f"s_mov_b32 s{S_T0}, s{S_JOB}")
                else:
                    self.job_source(kind, i)
            vo, d, off = {"S": (V_OS + q, SS, q), "F": (V_OF + q, SF, q), "W": (V_JW + q, SA1, q),
                          "C": (self.vjc + q % 2, SA1 if q < 2 else SA2, q % 2),
                          "J": (self.vjc + q % 2, SA1 if q < 2 else SA2, q % 2)}[kind]
            if kind in "CJ" and q == 2:
                e("s_add_u32 m0, m0, 2048")
                if kind == "J":
                    e(f"s_add_u32 s{S_T0}, s{S_T0}, s{S_XB}")
            t = e(f"buffer_load_dwordx4 v{vo}, {srd(d)}, s{S_T0} offen offset:{1024*off} lds")
            if q == 3:
                self.stage_tok[n] = t
        for q in range(4):
            self.dq.append(lambda q=q: piece(q))

    def dma(self):
        if self.dq:
            self.dq.pop(0)()

    def barrier(self, *toks):
        p = self.p
        p.wait(*toks, *self.pre_barrier)
        self.pre_barrier = []
        p.e("s_barrier")
        self.nbar += 1
        cbs, self.on_barrier = self.on_barrier, []
        for f in cbs:
            f()
        if self.after_first_barrier:
            f, self.after_first_barrier = self.after_first_barrier, None
            f()

    def pull(self, budget):
        p = self.p
        start = p.slots
        while self.fill and p.slots - start < budget:
            it = self.fill[0]
            if isinstance(it, tuple):
                if not it[1]():
                    return
                self.fill.pop(0)
                continue
            if p.slots - start + getattr(it, "cost", 1) > budget and not (it in self.refused):
                self.refused.append(it)
                return
            self.fill.pop(0)
            it()

    def flush(self, wevery=0):
        mark = self.p.slots
        while self.fill:
            if wevery and self.wq and self.p.slots - mark >= wevery:
                self.wq.pop(0)()
                mark = self.p.slots
            it = self.fill.pop(0)
            if isinstance(it, tuple):
                if it[0] == "bar" and not it[1]():
                    self.barrier()
                continue
            it()

    def gemm(self, frags, plan, hooks=None):
        p, o = self.p, self.opt
        LA = 7
        toks = {}
        n = len(frags)

        def read(idx):
            fr = frags[idx]
            st = fr["stage"]
            if st not in self.seen:
                self.seen.add(st)
                while st not in self.stage_tok:
                    self.dma()
                self.barrier(self.stage_tok[st])
                if st in plan:
                    plan[st]()
            r = FR + 4 * (idx % 8)
            for txt in fr["reads"]:
                toks[idx] = p.e(txt.format(f0=r, f1=r + 1, f2=r + 2, f3=r + 3))
        for idx in range(LA):
            read(idx)
        grp = o.get("wgrp", 4)
        def step(idx):
            if hooks and idx in hooks:
                hooks[idx]()
            for tm in [t for t in self.timers if t[0] <= self.mf]:
                self.timers.remove(tm)
                tm[1]()
            if idx in o.get("xstamps", []):
                self.stamp(10 + o["xstamps"].index(idx))
            if idx % grp == 0:
                p.wait(toks[min(idx + grp - 1, n - 1)])
            start = p.slots
            r = FR + 4 * (idx % 8)
            p.e(frags[idx]["mfma"].format(f0=r, f3=r + 3))
            self.mf += 1
            if idx + LA < n:
                read(idx + LA)
            dper = o.get("dper", 4)
            if self.dq and (idx % dper == 1 or (len(self.dq) > 4 and idx % 2 == 1)):
                self.dma()
                self.vgap = idx
            elif self.wq and idx - self.vgap >= (o.get("wpace1", 2) if self.dq else o.get("wpace2", 3)):
                n_w = 60 - len(self.wq)
                if n_w < 16 + (idx + 1 - self.wfrom) // self.wper:
                    self.wq.pop(0)()
                    self.vgap = idx
            if self.norm:
                for x in self.norm.pop(0):
                    p.e(x)
            elif o.get("interleave", 1):
                self.pull(o.get("budget", 8) - (p.slots - start) - (1 if (idx + 1) % grp == 0 else 0))


        idx = 0
        while idx < n:
            if self.fork and idx == self.fork[0]:
                a, b, pre, var1, var2 = self.fork
                self.fork = None
                pre()
                snap, tk = self.snapshot(), dict(toks)
                var1()
                for i in range(a, b):
                    step(i)
                assert not self.fill
                p.e("s_branch FORK_JOIN")
                end1, tk1 = self.snapshot(), dict(toks)
                p.label("FORK_ALT")
                self.restore(snap)
                toks.clear(); toks.update(tk)
                var2()
                for i in range(a, b):
                    step(i)
                assert not self.fill
                end2 = self.snapshot()
                assert end1[:5] == end2[:5] and tk1 == toks, (end1[:4], end2[:4])
                p.label("FORK_JOIN")
                idx = b
            else:
                step(idx)
                idx += 1

    def s_frags(self, st0, acc):
        out = []
        for s in range(40):
            st = st0 + s // 8
            slot = st % 8
            for mat in range(2):
                a = V_AS + 8 * (slot // 4) + (s % 8)
                off = (slot % 4) * 16384 + mat * 8192
                c = f"v[{acc+16*mat}:{acc+16*mat+15}]"
                cin = c if s else "0"
                out.append(dict(stage=st, reads=[f"ds_read_b128 a[{{f0}}:{{f3}}], v{a} offset:{off}"],
                                mfma=f"v_mfma_f32_32x32x16_bf16 {c}, a[{XN+4*s}:{XN+4*s+3}], a[{{f0}}:{{f3}}], {cin}"))
        return out

    def d_frags(self, st0, acc):
        out = []
        for s in range(40):
            st = st0 + s // 4
            slot = st % 8
            for j in range(2):
                for mat in range(2):
                    a = V_TR + 2 * (slot // 4) + j
                    off = (slot % 4) * 16384 + mat * 8192 + (s % 4) * 2048
                    r = acc + 32 * j + 16 * mat
                    c = f"v[{r}:{r+15}]"
                    cin = c if s else "0"
                    out.append(dict(stage=st, reads=[
                        f"ds_read_b64_tr_b16 a[{{f0}}:{{f1}}], v{a} offset:{off}",
                        f"ds_read_b64_tr_b16 a[{{f2}}:{{f3}}], v{a} offset:{off+512}"],
                        mfma=f"v_mfma_f32_32x32x16_bf16 {c}, a[{{f0}}:{{f3}}], a[{XN+4*s}:{XN+4*s+3}], {cin}"))
        return out

    def q(self, *texts):
        for t in texts:
            if isinstance(t, list):
                f = lambda t=t: [self.p.e(x) for x in t]
                f.cost = len(t)
            else:
                f = lambda t=t: self.p.e(t)
                f.cost = cost_of(t)
            self.fill.append(f)

    def lag(self, n):
        st = {}
        self.fill.append(lambda: st.__setitem__("m", self.mf))
        self.fill.append(("t", lambda: self.mf >= st["m"] + n))

    def ffn_tail(self, acc, s_k):
        e = self.p.e
        T, K = V_X, ACC_S
        e(f"v_mov_b32 v{K}, v{V_GK1}"); e(f"v_mov_b32 v{K+1}, v{V_GK1}")
        e(f"v_mov_b32 v{K+2}, s{S_GK2}"); e(f"v_mov_b32 v{K+3}, s{S_GK2}")
        e(f"v_mov_b32 v{K+4}, 1.0"); e(f"v_mov_b32 v{K+5}, 1.0")
        for j in range(2):
            g0, u0 = acc + 32 * j, acc + 32 * j + 16
            for half in range(2):
                prs = [(g0 + 8 * half + 2 * k, u0 + 8 * half + 2 * k, K + 6 + 2 * k) for k in range(4)]
                pr = lambda r: f"v[{r}:{r+1}]"
                for g, u, t in prs:
                    e(f"v_pk_mul_f32 {pr(t)}, {pr(g)}, {pr(g)}")
                for g, u, t in prs:
                    e(f"v_pk_fma_f32 {pr(t)}, {pr(t)}, {pr(K+2)}, {pr(K)}")
                for g, u, t in prs:
                    e(f"v_pk_mul_f32 {pr(t)}, {pr(t)}, {pr(g)}")
                for g, u, t in prs:
                    e(f"v_exp_f32 v{t}, v{t}")
                    e(f"v_pk_mul_f32 {pr(u)}, {pr(u)}, {pr(g)}")
                    e(f"v_exp_f32 v{t+1}, v{t+1}")
                for g, u, t in prs:
                    e(f"v_pk_add_f32 {pr(t)}, {pr(t)}, {pr(K+4)}")
                d = T + 4 + 4 * half
                for k, (g, u, t) in enumerate(prs):
                    e(f"v_rcp_f32 v{t}, v{t}")
                    if k:
                        g1, u1, t1 = prs[k - 1]
                        e(f"v_pk_mul_f32 {pr(u1)}, {pr(u1)}, {pr(t1)}")
                    e(f"v_rcp_f32 v{t+1}, v{t+1}")
                    if k:
                        e(f"v_cvt_pk_bf16_f32 v{d+k-1}, v{u1}, v{u1+1}")
                if j == 1 and half == 0:
                    e(f"s_add_u32 s{s_k}, s{s_k}, 4096")
                g1, u1, t1 = prs[3]
                e(f"v_pk_mul_f32 {pr(u1)}, {pr(u1)}, {pr(t1)}")
                e(f"v_cvt_pk_bf16_f32 v{d+3}, v{u1}, v{u1+1}")
                self.last_store = e(f"buffer_store_dwordx4 v[{d}:{d+3}], v{V_STA}, {srd(SWS)}, s{s_k} offen offset:{512*half}{self.wt}")

    def ffn_epilogue(self, acc, s_k):
        T = V_X
        for j in range(2):
            g0, u0 = acc + 32 * j, acc + 32 * j + 16
            for half in range(2):
                for pair in range(4):
                    i = 8 * half + 2 * pair
                    ga, gb, ua, ub = g0 + i, g0 + i + 1, u0 + i, u0 + i + 1
                    ta, tb = T + 2 * (pair % 2), T + 2 * (pair % 2) + 1
                    d = T + 4 + 4 * half + pair
                    self.q(f"v_mul_f32 v{ta}, v{ga}, v{ga}", f"v_mul_f32 v{tb}, v{gb}, v{gb}",
                           f"v_fma_f32 v{ta}, v{ta}, s{S_GK2}, v{V_GK1}", f"v_fma_f32 v{tb}, v{tb}, s{S_GK2}, v{V_GK1}",
                           f"v_mul_f32 v{ta}, v{ta}, v{ga}", f"v_mul_f32 v{tb}, v{tb}, v{gb}",
                           f"v_exp_f32 v{ta}, v{ta}", f"v_exp_f32 v{tb}, v{tb}",
                           f"v_mul_f32 v{ua}, v{ua}, v{ga}", f"v_mul_f32 v{ub}, v{ub}, v{gb}",
                           f"v_add_f32 v{ta}, 1.0, v{ta}", f"v_add_f32 v{tb}, 1.0, v{tb}",
                           f"v_rcp_f32 v{ta}, v{ta}", f"v_rcp_f32 v{tb}, v{tb}",
                           f"v_mul_f32 v{ua}, v{ua}, v{ta}", f"v_mul_f32 v{ub}, v{ub}, v{tb}",
                           f"v_cvt_pk_bf16_f32 v{d}, v{ua}, v{ub}")
                d = T + 4 + 4 * half
                if j == 1 and half == 0:
                    self.q(f"s_add_u32 s{s_k}, s{s_k}, 4096")
                self.q(f"buffer_store_dwordx4 v[{d}:{d+3}], v{V_STA}, {srd(SWS)}, s{s_k} offen offset:{512*half}{self.wt}")

    @staticmethod
    def cmul(dr, di, ar, ai, br, bi):
        return [f"v_mul_f32 v{dr}, v{ar}, v{br}", f"v_mul_f32 v{di}, v{ar}, v{bi}",
                f"v_fma_f32 v{dr}, -v{ai}, v{bi}, v{dr}", f"v_fma_f32 v{di}, v{ai}, v{br}, v{di}"]

    def ssm_consts(self, b, praw, u):
        c = V_C + 12 * b
        lr, li, dt = praw, praw + 1, praw + 2
        L = [f"v_lshlrev_b32 v{lr}, 16, v{lr}", f"v_lshlrev_b32 v{li}, 16, v{li}", f"v_lshlrev_b32 v{dt}, 16, v{dt}",
             f"v_mul_f32 v{dt}, {fx(LOG2E)}, v{dt}", f"v_exp_f32 v{dt}, v{dt}",
             f"v_cvt_pk_bf16_f32 v{dt}, v{dt}, v{dt}", f"v_lshlrev_b32 v{dt}, 16, v{dt}",
             f"v_mul_f32 v{u}, v{dt}, v{lr}", f"v_mul_f32 v{u+1}, v{dt}, v{li}",
             f"v_mul_f32 v{u}, {fx(LOG2E)}, v{u}", f"v_mul_f32 v{u+1}, 0.15915494, v{u+1}",
             f"v_exp_f32 v{u}, v{u}", f"v_fract_f32 v{u+1}, v{u+1}",
             f"v_cos_f32 v{u+2}, v{u+1}", f"v_sin_f32 v{u+3}, v{u+1}",
             f"v_mul_f32 v{c}, v{u}, v{u+2}", f"v_mul_f32 v{c+1}, v{u}, v{u+3}",
             f"v_add_f32 v{u}, -1.0, v{c}",
             f"v_mul_f32 v{u+1}, v{lr}, v{lr}", f"v_fma_f32 v{u+1}, v{li}, v{li}, v{u+1}",
             f"v_rcp_f32 v{u+1}, v{u+1}",
             f"v_mul_f32 v{u+2}, v{u}, v{lr}", f"v_fma_f32 v{u+2}, v{c+1}, v{li}, v{u+2}",
             f"v_mul_f32 v{u+3}, v{c+1}, v{lr}", f"v_fma_f32 v{u+3}, -v{u}, v{li}, v{u+3}",
             f"v_add_f32 v{u+1}, v{u+1}, v{u+1}",
             f"v_mul_f32 v{c+2}, v{u+2}, v{u+1}", f"v_mul_f32 v{c+3}, v{u+3}, v{u+1}"]
        L += self.cmul(u, u + 1, c, c + 1, c, c + 1)
        L += self.cmul(u + 2, u + 3, u, u + 1, u, u + 1)
        L += self.cmul(u, u + 1, u + 2, u + 3, u + 2, u + 3)
        L += self.cmul(c + 4, c + 5, u, u + 1, u, u + 1)
        L += self.cmul(u, u + 1, c + 4, c + 5, c + 4, c + 5)
        L += self.cmul(u + 2, u + 3, u, u + 1, u, u + 1)
        L += self.cmul(c + 8, c + 9, u + 2, u + 3, u + 2, u + 3)
        L += self.cmul(c + 10, c + 11, c + 8, c + 9, c + 8, c + 9)
        hm, m2 = f"s[{S_HM}:{S_HM+1}]", f"s[{S_M2}:{S_M2+1}]"
        L += [f"v_cndmask_b32 v{u+4}, 1.0, v{c+4}, {hm}", f"v_cndmask_b32 v{u+5}, 0, v{c+5}, {hm}",
              [f"s_bitcmp1_b32 s{S_W}, 0", f"s_cselect_b64 {m2}, -1, 0"],
              f"v_cndmask_b32 v{u}, 1.0, v{u}, {m2}", f"v_cndmask_b32 v{u+1}, 0, v{u+1}, {m2}"]
        L += self.cmul(u + 6, u + 7, u + 4, u + 5, u, u + 1)
        L += [[f"s_bitcmp1_b32 s{S_W}, 1", f"s_cselect_b64 {m2}, -1, 0"],
              f"v_cndmask_b32 v{u+2}, 1.0, v{u+2}, {m2}", f"v_cndmask_b32 v{u+3}, 0, v{u+3}, {m2}"]
        L += self.cmul(c + 6, c + 7, u + 6, u + 7, u + 2, u + 3)
        return L

    def ex_base(self, sreg, b):
        return [f"s_add_u32 s{sreg}, s{S_SB}, {b}", f"s_mul_i32 s{sreg}, s{sreg}, {EX_BLK}",
                f"s_add_u32 s{sreg}, s{sreg}, {EX_OFF}"]

    def ssm_reduce(self, b, acc, X):
        p = self.p
        c = V_C + 12 * b
        T = V_X
        re, im = acc, acc + 16
        hr, hi, nr, ni = T, T + 1, T + 2, T + 3
        cur = (re, im)
        for t in range(1, 16):
            d = (hr, hi) if t % 2 else (nr, ni)
            self.q(f"v_fma_f32 v{d[0]}, -v{c+1}, v{cur[1]}, v{re+t}", f"v_fma_f32 v{d[1]}, v{c+1}, v{cur[0]}, v{im+t}",
                   f"v_fma_f32 v{d[0]}, v{c}, v{cur[0]}, v{d[0]}", f"v_fma_f32 v{d[1]}, v{c}, v{cur[1]}, v{d[1]}")
            cur = d
        st = {}

        def wr():
            st["wr"] = p.e(f"ds_write_b64 v{V_XW}, v[{hr}:{hi}] offset:{SCR_W*b}")
        self.fill.append(wr)
        self.lag(4)

        def arm():
            self.pre_barrier.append(st["wr"])
            st["bar"] = self.nbar
        self.fill.append(arm)
        self.fill.append(("bar", lambda: self.nbar > st["bar"]))
        E = X
        pr, pi = V_PRE + 2 * b, V_PRE + 2 * b + 1

        def rd():
            for k in range(4):
                st["t"] = p.e(f"ds_read_b128 v[{E+4*k}:{E+4*k+3}], v{V_XR} offset:{SCR_W*b + 16*k}")
        self.fill.append(rd)
        self.q(f"v_mov_b32 v{pr}, 0", f"v_mov_b32 v{pi}, 0")
        self.lag(5)
        self.fill.append(lambda: p.wait(st["t"]))
        for j in range(7):
            er, ei = E + 2 * j, E + 2 * j + 1
            self.q(f"v_cmp_lt_u32 vcc, {j}, v{V_SEG}",
                   f"v_fma_f32 v{er}, -v{c+5}, v{pi}, v{er}", f"v_fma_f32 v{ei}, v{c+5}, v{pr}, v{ei}",
                   f"v_fma_f32 v{er}, v{c+4}, v{pr}, v{er}", f"v_fma_f32 v{ei}, v{c+4}, v{pi}, v{ei}",
                   f"v_cndmask_b32 v{pr}, v{pr}, v{er}, vcc", f"v_cndmask_b32 v{pi}, v{pi}, v{ei}, vcc")
        g = T + 4
        self.q(f"v_fma_f32 v{g}, -v{c+5}, v{pi}, v{hr}", f"v_fma_f32 v{g+2}, v{c+5}, v{pr}, v{hi}",
               f"v_fma_f32 v{g}, v{c+4}, v{pr}, v{g}", f"v_fma_f32 v{g+2}, v{c+4}, v{pi}, v{g+2}",
               f"v_mov_b32 v{g+1}, s{S_EPOCH}", f"v_mov_b32 v{g+3}, s{S_EPOCH}",
               *self.ex_base(S_T2, b),
               f"buffer_store_dwordx4 v[{g}:{g+3}], v{V_PUB}, {srd(SWS)}, s{S_T2} offen sc1")

    def lb_issue(self, i, LB, A):
        p = self.p
        p.e(f"v_add_u32 v{A}, {-1024*i & 0xffffffff:#x}, v{V_LBO}" if i else f"v_mov_b32 v{A}, v{V_LBO}")
        p.e(f"v_max_i32 v{A}, v{A}, v{V_LBO+1}")
        return p.e(f"buffer_load_dwordx4 v[{LB+4*i}:{LB+4*i+3}], v{A}, {srd(SWS)}, s{S_T3} offen sc1")

    def lb_mix(self, LB, A):
        L = [f"v_mov_b32 v{A+1}, s{S_EPOCH}"]
        for i in range(8):
            d = A if i == 0 else A + 2 + i % 2
            L.append(f"v_bitop3_b32 v{d}, v{LB+4*i+1}, v{LB+4*i+3}, v{A+1} bitop3:0x7e")
            if i and i % 2 == 0:
                L.append(f"v_or3_b32 v{A}, v{A}, v{A+2}, v{A+3}")
        L.append(f"v_or_b32 v{A}, v{A}, v{A+3}")
        return L

    def lb_check(self, LB, A, tag):
        p = self.p
        for x in self.lb_mix(LB, A):
            p.e(x)
        p.e(f"v_cmp_ne_u32 vcc, 0, v{A}")
        p.e(f"s_cbranch_vccnz LB_SLOW_{tag}")

    def ssm_finish(self, b, acc, LB, gate_issue, gate_check, tag):
        p = self.p
        c = V_C + 12 * b
        PRE = V_PRE + 2 * b
        st = {}
        if gate_issue is not None:
            self.fill.append(("t", gate_issue))
        A = LB + 32
        self.q(*self.ex_base(S_T3, b), f"s_mov_b32 s{S_SPIN}, 0")
        for i in range(8):
            def f(i=i):
                st["t"] = self.lb_issue(i, LB, A)
            self.fill.append(f)
        if gate_check is not None:
            self.fill.append(("t", gate_check))

        self.fill.append(lambda: p.wait(st["t"]))
        self.q(*self.lb_mix(LB, A))

        def check():
            p.e(f"v_cmp_ne_u32 vcc, 0, v{A}")
            p.e(f"s_cbranch_vccnz LB_SLOW_{tag}")
            p.label(f"LB_OK_{tag}")
            self.slow.append((tag, LB, A))
        self.fill.append(check)
        pr, pi = A, A + 1
        self.q(f"v_mov_b32 v{pr}, v{LB+28}", f"v_mov_b32 v{pi}, v{LB+30}")
        for i in range(6, -1, -1):
            er, ei = LB + 4 * i, LB + 4 * i + 2
            self.q(f"v_fma_f32 v{er}, -v{c+11}, v{pi}, v{er}", f"v_fma_f32 v{ei}, v{c+11}, v{pr}, v{ei}",
                   f"v_fma_f32 v{pr}, v{c+10}, v{pr}, v{er}", f"v_fma_f32 v{pi}, v{c+10}, v{pi}, v{ei}")
        r0, i0, r1, i1 = LB, LB + 1, LB + 2, LB + 3
        self.q(f"v_mov_b32 v{r0}, v{pr}", f"v_mov_b32 v{r1}, v{pr}", f"v_mov_b32 v{i0}, v{pi}", f"v_mov_b32 v{i1}, v{pi}",
               f"v_permlane32_swap_b32 v{r0}, v{r1}", f"v_permlane32_swap_b32 v{i0}, v{i1}",
               f"v_fma_f32 v{r0}, -v{c+9}, v{i1}, v{r0}", f"v_fma_f32 v{i0}, v{c+9}, v{r1}, v{i0}",
               f"v_fma_f32 v{r0}, v{c+8}, v{r1}, v{r0}", f"v_fma_f32 v{i0}, v{c+8}, v{i1}, v{i0}",
               f"v_fma_f32 v{PRE}, -v{c+7}, v{i0}, v{PRE}", f"v_fma_f32 v{PRE+1}, v{c+7}, v{r0}, v{PRE+1}",
               f"v_fma_f32 v{PRE}, v{c+6}, v{r0}, v{PRE}", f"v_fma_f32 v{PRE+1}, v{c+6}, v{i0}, v{PRE+1}")
        re, im = acc, acc + 16
        cur = (PRE, PRE + 1)
        for t in range(16):
            self.q(f"v_fma_f32 v{re+t}, -v{c+1}, v{cur[1]}, v{re+t}", f"v_fma_f32 v{im+t}, v{c+1}, v{cur[0]}, v{im+t}",
                   f"v_fma_f32 v{re+t}, v{c}, v{cur[0]}, v{re+t}", f"v_fma_f32 v{im+t}, v{c}, v{cur[1]}, v{im+t}")
            cur = (re + t, im + t)
            o = LB + 4 + 4 * (t % 2)
            self.q(f"v_mul_f32 v{o}, v{c+2}, v{re+t}", f"v_mul_f32 v{o+1}, v{c+2}, v{im+t}",
                   f"v_fma_f32 v{o}, -v{c+3}, v{im+t}, v{o}", f"v_fma_f32 v{o+1}, v{c+3}, v{re+t}, v{o+1}",
                   f"v_cvt_pk_bf16_f32 v{o+2}, v{o}, -v{o+1}")

            def w(t=t, o=o):
                st["w"] = p.e(f"ds_write_b32 v{V_TW}, v{o+2} offset:{144*t}")
            self.fill.append(w)
        O = LB + 12
        self.lag(4)

        def rd():
            p.wait(st["w"])
            st["r"] = [p.e(f"ds_read_b128 v[{O+4*f}:{O+4*f+3}], v{V_TW+1} offset:{(f>>1)*2304 + (f&1)*64}")
                       for f in range(4)]
        self.fill.append(rd)
        self.q(f"s_add_u32 s{S_T3}, s{S_SB}, {b}", f"s_lshl_b32 s{S_T3}, s{S_T3}, 13",
               f"s_add_u32 s{S_T3}, s{S_T3}, s{S_A2ROW}", f"s_add_u32 s{S_T3}, s{S_T3}, {54*4096}",
               f"s_add_u32 s{S_T2}, s{S_T3}, 4096")
        self.lag(5)
        for f in range(4):
            def stf(f=f):
                p.wait(st["r"][f])
                so = S_T2 if f & 1 else S_T3
                self.last_store = p.e(f"buffer_store_dwordx4 v[{O+4*f}:{O+4*f+3}], v{V_TW+2}, {srd(SWS)}, s{so} offen offset:{1024*(f>>1)}{self.wt}")
            self.fill.append(stf)

    def slow_paths(self):
        p = self.p
        for tag, LB, A in self.slow:
            p.label(f"LB_SLOW_{tag}")
            p.e("s_sleep 2")
            p.e(f"s_add_u32 s{S_SPIN}, s{S_SPIN}, 1")
            p.e(f"s_cmp_gt_u32 s{S_SPIN}, 100000")
            p.e(f"s_cbranch_scc1 LB_OK_{tag}")
            for i in range(8):
                self.lb_issue(i, LB, A)
            p.e("s_waitcnt vmcnt(0)")
            self.lb_check(LB, A, tag)
            p.e(f"s_branch LB_OK_{tag}")

    def mk_srd(self, d, ptr, nbytes):
        return [f"s_mov_b32 s{d}, s{ptr}", f"s_mov_b32 s{d+1}, s{ptr+1}",
                f"s_mov_b32 s{d+2}, {nbytes}", f"s_mov_b32 s{d+3}, 0x20000"]

    def prologue(self):
        p, e, q, o = self.p, self.p.e, self.q, self.opt
        hm = f"s[{S_HM}:{S_HM+1}]"
        p.raw(".p2align 8")
        p.label(self.name)
        e("s_cmp_ge_u32 s2, 256")
        e("s_cbranch_scc1 K1_END")
        if o.get("stamp"):
            e("s_memrealtime s[94:95]")
            self.stamp(0)
        e("s_load_dwordx16 s[36:51], s[0:1], 0")
        e("s_load_dwordx16 s[52:67], s[0:1], 64")
        e(f"s_getpc_b64 s[{S_T0}:{S_T1}]")
        p.label("K1_PC")
        e("v_lshrrev_b32 v2, 6, v0")
        e(f"v_and_b32 v{V_LANE}, 63, v0")
        e(f"v_readfirstlane_b32 s{S_W}, v2")
        e("s_lshr_b32 s3, s2, 3")
        e(f"s_lshl_b32 s{S_T2}, s3, 2")
        e(f"s_add_u32 s{S_T2}, s{S_T2}, s{S_W}")
        e(f"s_mul_i32 s{S_T2}, s{S_T2}, 640")
        e(f"v_lshlrev_b32 v2, 7, v{V_LANE}")
        e(f"v_add_u32 v2, s{S_T2}, v2")
        e("v_min_u32 v2, TEXT_END-K1_PC-4, v2")
        e("s_mov_b64 exec, 31")
        e(f"global_load_dword v{V_PRE+5}, v2, s[{S_T0}:{S_T1}]")
        e("s_mov_b64 exec, -1")
        e(f"s_and_b32 s{S_T2}, s2, 7")
        e(f"s_lshr_b32 s{S_MT}, s{S_T2}, 1")
        e(f"s_lshl_b32 s{S_MT}, s{S_MT}, 2")
        e(f"s_and_b32 s{S_T3}, s3, 3")
        e(f"s_add_u32 s{S_MT}, s{S_MT}, s{S_T3}")
        e(f"s_and_b32 s{S_CG}, s{S_T2}, 1")
        e(f"s_lshl_b32 s{S_CG}, s{S_CG}, 3")
        e("s_lshr_b32 s3, s3, 2")
        e(f"s_add_u32 s{S_CG}, s{S_CG}, s3")
        e(f"s_add_u32 s{S_R}, s3, s{S_T3}")
        for _ in range(2):
            e(f"s_sub_u32 s{S_T2}, s{S_R}, 5")
            e(f"s_cmp_ge_u32 s{S_R}, 5")
            e(f"s_cselect_b32 s{S_R}, s{S_T2}, s{S_R}")
        e(f"s_lshl_b32 s{S_KS}, s{S_R}, 8")
        for i in range(1, 5):
            e(f"s_add_u32 s{S_KS+i}, s{S_KS+i-1}, 256")
            e(f"s_cmp_eq_u32 s{S_KS+i}, 1280")
            e(f"s_cselect_b32 s{S_KS+i}, 0, s{S_KS+i}")
        e(f"s_lshl_b32 s{S_W4K}, s{S_W}, 12")
        e(f"s_lshl_b32 s{S_XB}, s{S_MT}, 2")
        e(f"s_add_u32 s{S_XB}, s{S_XB}, s{S_W}")
        e(f"s_mul_i32 s{S_XB}, s{S_XB}, {32*1280}")
        a, xr = V_X + 4, V_X + 5
        e(f"v_lshrrev_b32 v{a}, 4, v{V_LANE}")
        e(f"v_and_b32 v{xr}, 15, v{V_LANE}")
        e(f"v_xor_b32 v{xr}, v{xr}, v{a}")
        e(f"v_lshlrev_b32 v{xr}, 4, v{xr}")
        e(f"v_mul_u32_u24 v{a}, 1280, v{a}")
        for k in range(4):
            e(f"v_xor_b32 v{V_OS+k}, {64*k}, v{xr}")
            e(f"v_add_u32 v{V_OS+k}, v{V_OS+k}, v{a}")
            e(f"v_add_u32 v{V_X+k}, {(16*(k&1) + 4*(k>>1))*1280 - 1024*k}, v{V_OS+k}")
        e(f"s_cmp_ge_u32 s{S_CG}, 8")
        e(f"s_cselect_b32 s{S_T2}, 1, 0")
        e(f"s_sub_u32 s{S_SB}, s{S_CG}, s{S_T2}")
        e(f"s_lshl_b32 s{S_D1}, s{S_SB}, 1")
        e(f"s_mov_b32 s{S_TYPE}, 0")
        e(f"s_cmp_eq_u32 s{S_CG}, 14")
        e(f"s_cselect_b32 s{S_TYPE}, 1, s{S_TYPE}")
        e(f"s_cmp_eq_u32 s{S_CG}, 7")
        e(f"s_cselect_b32 s{S_TYPE}, 2, s{S_TYPE}")
        e(f"s_cselect_b32 s{S_SB}, 14, s{S_SB}")
        e(f"s_cmp_eq_u32 s{S_CG}, 15")
        e(f"s_cselect_b32 s{S_TYPE}, 2, s{S_TYPE}")
        e(f"s_cselect_b32 s{S_SB}, 17, s{S_SB}")
        e(f"v_and_b32 v{V_SEG}, 31, v{V_LANE}")
        e(f"s_lshl_b32 s{S_T2}, s{S_SB}, 6")
        e(f"v_lshl_add_u32 v{V_PUB}, v{V_SEG}, 1, s{S_T2}")
        e(f"v_min_u32 v{V_XR}, {1278 - 128}, v{V_PUB}")
        e(f"v_mov_b32 v{V_XW}, {EPOCH_OFF}")
        e(f"s_lshl_b32 s{S_J1}, s{S_W}, 13")
        e(f"s_add_u32 s{S_J1}, s{S_J1}, {LDS_SCR}")
        e("s_waitcnt lgkmcnt(0)")
        for x in self.mk_srd(SX, K_X, X_BYTES):
            e(x)
        xt = {}
        cnt = {"n": 0}

        def x_piece(i, u):
            if u % 4 == 0:
                hh = u // 4
                if i < 4:
                    e(f"s_add_u32 m0, s{S_W4K}, {(i + 4*hh)*16384}")
                elif hh:
                    e(f"s_add_u32 m0, s{S_J1}, 4096")
                else:
                    e(f"s_mov_b32 m0, s{S_J1}")
                e(f"s_add_u32 s{S_T0}, s{S_XB}, s{S_KS+i}")
                if hh:
                    e(f"s_add_u32 s{S_T0}, s{S_T0}, 10240")
            xt[i, u] = e(f"buffer_load_dwordx4 v{V_X+u%4}, {srd(SX)}, s{S_T0} offen offset:{1024*(u%4)} lds")
            cnt["n"] += 1
        xq = [(i, u) for i in range(5) for u in range(8)]
        for _ in range(o.get("x_first", 4)):
            x_piece(*xq.pop(0))
        for x in self.mk_srd(SWS, K_WS, WS_USED):
            e(x)
        EP = V_PRE + 4
        e(f"s_mov_b32 s{S_T2}, 0" if self.fused else f"s_lshl_b32 s{S_T2}, s{S_CG}, 7")
        e(f"buffer_load_dword v{EP}, v{V_XW}, {srd(SWS)}, s{S_T2} offen sc1")
        t_par = None
        for b in range(3):
            for k, ptr in enumerate((K_LRE, K_LIM, K_LDT)):
                va = V_XR if b else V_PUB
                t_par = e(f"global_load_ushort v{V_C+12*b+6+k}, v{va}, s[{ptr}:{ptr+1}] offset:{64*b}")
        if o.get("wpre", 1) >= 2:
            n2 = o.get("wpre_after", 0)
            for _ in range(n2):
                x_piece(*xq.pop(0))
            self.w_prefetch_early()
        for _ in range(o.get("x_second", 4) - o.get("wpre_after", 0)):
            x_piece(*xq.pop(0))
        self.stamp(1)
        for k in range(1, 4):
            q(f"v_add_u32 v{V_OS+k}, {4*k*1280 - 1024*k}, v{V_OS+k}")
        h, c, t0, t1 = V_X + 4, V_SEG, V_X + 5, V_X + 6
        q(f"s_mov_b32 s{S_HM}, 0", f"s_mov_b32 s{S_HM+1}, -1", f"s_mov_b32 s{S_MASK}, 0xffff0000",
          f"v_lshrrev_b32 v{h}, 5, v{V_LANE}")
        q(f"v_and_b32 v{t0}, 15, v{V_LANE}", f"v_xor_b32 v{t1}, v{t0}, v{h}", f"v_lshlrev_b32 v{t1}, 4, v{t1}",
          f"v_lshl_add_u32 v{t1}, v{t0}, 8, v{t1}", f"v_bfe_u32 v{t0}, v{V_LANE}, 4, 1",
          f"v_lshlrev_b32 v{V_X+8}, 16, v{t0}", f"v_add_u32 v{V_X+8}, s{S_W4K}, v{V_X+8}",
          f"v_lshlrev_b32 v{t0}, 12, v{t0}")
        for s in range(8):
            q(f"v_xor_b32 v{V_AS+s}, {32*s}, v{t1}", f"v_add_u32 v{V_AS+8+s}, v{V_AS+s}, v{V_X+8}",
              f"v_add_u32 v{V_AS+s}, v{V_AS+s}, v{t0}")
        sm, sq = V_PRE, V_PRE + 1
        q(f"v_mov_b32 v{sm}, 0", f"v_mov_b32 v{sq}, 0", f"s_mov_b32 s{S_J2}, 0x3f803f80")
        q([f"s_cmp_ge_u32 s{S_W}, 2",
           f"s_cselect_b32 s{SS}, s{K_BIM}, s{K_BRE}", f"s_cselect_b32 s{SS+1}, s{K_BIM+1}, s{K_BRE+1}",
           f"s_cselect_b32 s{SF}, s{K_WU}, s{K_WG}", f"s_cselect_b32 s{SF+1}, s{K_WU+1}, s{K_WG+1}"],
          f"s_mov_b32 s{SS+2}, {SQ_BYTES}", f"s_mov_b32 s{SS+3}, 0x20000",
          f"s_mov_b32 s{SF+2}, {FF_BYTES}", f"s_mov_b32 s{SF+3}, 0x20000")
        for i in range(5):
            q(f"s_mul_i32 s{S_KF+i}, s{S_KS+i}, {128*3456//256}")
        q(f"s_and_b32 s{S_T2}, s{S_W}, 1",
          f"s_lshl_b32 s{S_SBROW}, s{S_SB}, 1", f"s_add_u32 s{S_SBROW}, s{S_SBROW}, s{S_T2}",
          f"s_mul_i32 s{S_SBROW}, s{S_SBROW}, {16*1280}",
          f"s_lshr_b32 s{S_T3}, s{S_W}, 1",
          f"s_lshl_b32 s{S_A2ROW}, s{S_MT}, 1", f"s_add_u32 s{S_A2ROW}, s{S_A2ROW}, s{S_T3}",
          f"s_mul_i32 s{S_A2ROW}, s{S_A2ROW}, {94*4096}",
          f"s_lshl_b32 s{S_T3}, s{S_T2}, 11", f"s_add_u32 s{S_A2ROW}, s{S_A2ROW}, s{S_T3}",
          f"s_lshl_b32 s{S_KD1}, s{S_D1}, 13", f"s_add_u32 s{S_KD1}, s{S_KD1}, s{S_A2ROW}",
          f"s_add_u32 s{S_KD2}, s{S_KD1}, 8192",
          f"s_lshl_b32 s{S_D1}, s{S_D1}, 7", f"s_mul_i32 s{S_T3}, s{S_T2}, {32*3456}",
          f"s_add_u32 s{S_D1}, s{S_D1}, s{S_T3}", f"s_add_u32 s{S_D2}, s{S_D1}, 128",
          f"s_mov_b32 s{S_GK2}, {fx(GK2)}", f"v_mov_b32 v{V_GK1}, {fx(GK1)}")
        q(f"v_lshrrev_b32 v{t0}, 3, v{V_LANE}", f"v_mul_u32_u24 v{t0}, 3456, v{t0}",
          f"v_bfe_u32 v{t1}, v{V_LANE}, 4, 1", f"v_lshlrev_b32 v{t1}, 2, v{t1}",
          f"v_and_b32 v{V_OF}, 7, v{V_LANE}", f"v_xor_b32 v{V_OF}, v{V_OF}, v{t1}",
          f"v_lshl_add_u32 v{V_OF}, v{V_OF}, 4, v{t0}")
        for k in range(1, 4):
            q(f"v_add_u32 v{V_OF+k}, {k*(8*3456 - 1024)}, v{V_OF}")
        q(f"v_bfe_u32 v{t0}, v{V_LANE}, 2, 2", f"v_lshl_add_u32 v{t1}, v{h}, 3, v{t0}",
          f"v_lshlrev_b32 v{V_TR}, 7, v{t1}", f"v_lshrrev_b32 v{t0}, 1, v{t0}",
          f"v_lshl_add_u32 v{V_TR}, v{t0}, 6, v{V_TR}", f"v_bfe_u32 v{t0}, v{V_LANE}, 4, 1",
          f"v_lshl_add_u32 v{V_TR}, v{t0}, 5, v{V_TR}", f"v_and_b32 v{t0}, 3, v{V_LANE}",
          f"v_lshl_add_u32 v{V_TR}, v{t0}, 3, v{V_TR}", f"v_xor_b32 v{V_TR+1}, 64, v{V_TR}",
          f"v_add_u32 v{V_TR+2}, 0x10000, v{V_TR}", f"v_add_u32 v{V_TR+3}, 0x10000, v{V_TR+1}")
        q(f"v_lshrrev_b32 v{t1}, 3, v{c}", f"v_lshl_add_u32 v{t1}, v{t1}, 2, v{t0}",
          f"v_lshl_add_u32 v{V_STA}, v{h}, 4, v{t1}", f"v_lshlrev_b32 v{V_STA}, 4, v{V_STA}",
          f"v_bfe_u32 v{t0}, v{c}, 2, 1", f"v_lshl_add_u32 v{V_STA}, v{t0}, 10, v{V_STA}",
          f"v_lshl_add_u32 v{V_X+7}, v{t0}, 4, v{t1}", f"v_lshlrev_b32 v{V_X+7}, 3, v{V_X+7}",
          f"v_cndmask_b32 v{V_X+7}, v{V_X+7}, v{V_XW}, {hm}" if not self.fused else
          [f"s_lshl_b32 s{S_T2}, s{S_W}, 8", f"s_add_u32 s{S_T2}, s{S_T2}, {STL}", f"v_add_u32 v0, s{S_T2}, v{V_X+7}"])
        q(f"v_lshlrev_b32 v{V_LBO+1}, 4, v{c}", f"v_sub_u32 v{t0}, s{S_MT}, v{h}",
          f"v_lshl_add_u32 v{V_LBO}, v{t0}, 9, v{V_LBO+1}",
          f"s_add_u32 s{S_T2}, s{S_MT}, 1", f"s_lshl_b32 s{S_T2}, s{S_T2}, 9",
          [f"s_cmp_eq_u32 s{S_W}, 3", f"s_cselect_b32 s{S_T2}, s{S_T2}, {OOB}"], f"v_add_u32 v{t0}, s{S_T2}, v{V_LBO+1}",
          f"v_mov_b32 v{t1}, {OOB}", f"v_cndmask_b32 v{V_PUB}, v{t1}, v{t0}, {hm}",
          f"v_lshlrev_b32 v{V_XR}, 6, v{c}", f"v_add_u32 v{V_XR}, {XCH}, v{V_XR}",
          f"v_mul_u32_u24 v{V_TW}, {16*144}, v{h}", f"v_lshl_add_u32 v{V_TW}, v{c}, 2, v{V_TW}",
          f"v_add_u32 v{V_TW}, s{S_J1}, v{V_TW}",
          f"v_and_b32 v{t0}, 15, v{V_LANE}", f"v_mul_u32_u24 v{t0}, 144, v{t0}",
          f"v_lshrrev_b32 v{t1}, 4, v{V_LANE}", f"v_lshl_add_u32 v{V_TW+1}, v{t1}, 4, v{t0}",
          f"v_add_u32 v{V_TW+1}, s{S_J1}, v{V_TW+1}", f"v_lshlrev_b32 v{V_TW+2}, 4, v{V_LANE}",
          f"s_lshl_b32 s{S_T2}, s{S_W}, 1", f"v_add_u32 v{V_SEG}, s{S_T2}, v{h}",
          f"v_lshl_add_u32 v{V_XW}, v{V_SEG}, 3, v{V_XR}")
        self.fill.append(lambda: p.wait(t_par))
        U = RAW + 152
        q(f"v_readfirstlane_b32 s{S_EPOCH}, v{EP}")
        q(*self.ssm_consts(0, V_C + 6, U))
        q(f"s_add_u32 s{S_EPOCH}, s{S_EPOCH}, 1")
        self.zero_row(0, U)
        rd = {}

        def x_read(i, half):
            def f():
                p.wait(xt[i, 7])
                for s in range(4 * half, 4 * half + 4):
                    r = RAW + 32 * i + 4 * s
                    rd[i, s] = e(f"ds_read_b128 v[{r}:{r+3}], v{V_AS+8+s} offset:{i*16384 if i < 4 else 0}")
            return f
        lag = o.get("x_lag", 9)
        for i in range(5):
            self.fill.append(("t", lambda i=i: cnt["n"] >= min(40, 8 * i + 8 + lag)))
            if i == 4:
                for s in range(8):
                    q(f"v_add_u32 v{V_AS+8+s}, s{S_J1}, v{V_AS+s}")
            self.fill.append(x_read(i, 0))
            self.fill.append(x_read(i, 1))
            for s in range(8):
                self.fill.append(lambda i=i, s=s: p.wait(rd[i, s]))
                for k in range(4):
                    r = RAW + 32 * i + 4 * s + k
                    q(f"v_dot2c_f32_bf16 v{sm}, s{S_J2}, v{r}", f"v_dot2c_f32_bf16 v{sq}, v{r}, v{r}")
            if i < 4:
                self.fill.append(lambda i=i: self.issue_stage(i, "S", i, 0))
            if i == 3:
                self.fill.append(lambda: self.issue_stage(4, "S", 4, 0))
        self.pull(o.get("pre_slots", 150))
        while xq:
            x_piece(*xq.pop(0))
            self.pull(o.get("x_gap", 14))
        while self.fill:
            self.dma()
            self.pull(o.get("x_gap", 14))
        self.stamp(2)
        u = V_X + 8
        e(f"v_mov_b32 v{u}, v{sm}"); e(f"v_mov_b32 v{u+1}, v{sq}")
        e(f"v_permlane32_swap_b32 v{sm}, v{u}"); e(f"v_permlane32_swap_b32 v{sq}, v{u+1}")
        e(f"v_add_f32 v{sm}, v{sm}, v{u}"); e(f"v_add_f32 v{sq}, v{sq}, v{u+1}")
        e(f"v_mul_f32 v{sm}, {fx(1/640)}, v{sm}"); e(f"v_mul_f32 v{sq}, {fx(1/640)}, v{sq}")
        e(f"v_fma_f32 v{sq}, -v{sm}, v{sm}, v{sq}")
        e(f"v_max_f32 v{sq}, 0, v{sq}")
        e(f"v_cvt_pk_bf16_f32 v{u}, v{sq}, v{sm}")
        e(f"v_lshlrev_b32 v{sq}, 16, v{u}"); e(f"v_and_b32 v{sm}, s{S_MASK}, v{u}")
        e(f"v_add_f32 v{sq}, {fx(1e-5)}, v{sq}")
        e(f"v_cvt_pk_bf16_f32 v{sq}, v{sq}, v{sq}"); e(f"v_lshlrev_b32 v{sq}, 16, v{sq}")
        e(f"v_sqrt_f32 v{sq}, v{sq}")
        e(f"s_lshl_b32 s{S_T2}, s{S_MT}, 2"); e(f"s_add_u32 s{S_T2}, s{S_T2}, s{S_W}")
        e(f"v_cvt_pk_bf16_f32 v{sq}, v{sq}, v{sq}"); e(f"v_lshlrev_b32 v{sq}, 16, v{sq}")
        e(f"v_rcp_f32 v{u}, v{sq}")
        e(f"s_lshl_b32 s{S_T2}, s{S_T2}, 8"); e(f"s_add_u32 s{S_T2}, s{S_T2}, {STATS_OFF}")
        e(f"v_mul_f32 v{u+2}, -v{sm}, v{u}")
        e(f"v_mov_b32 v{u+1}, v{u}")
        e(f"v_mov_b32 v{u+3}, v{u+2}")
        e(f"s_cmp_eq_u32 s{S_CG}, 0"); e(f"s_cselect_b32 s{S_T2}, s{S_T2}, {OOB}")
        if not self.fused:
            e(f"v_mov_b32 v{V_X+4}, v{u}"); e(f"v_mov_b32 v{V_X+5}, v{u+2}")
            e(f"buffer_store_dwordx2 v[{V_X+4}:{V_X+5}], v{V_X+7}, {srd(SWS)}, s{S_T2} offen{self.wt}")
        npre = o.get("npre", 8)
        for k in range(4 * npre):
            r = RAW + k
            t = V_X + 2 * (k % 2)
            e(f"v_lshlrev_b32 v{t}, 16, v{r}"); e(f"v_and_b32 v{t+1}, s{S_MASK}, v{r}")
            e(f"v_pk_fma_f32 v[{t}:{t+1}], v[{t}:{t+1}], v[{u}:{u+1}], v[{u+2}:{u+3}]")
            e(f"v_cvt_pk_bf16_f32 v{r}, v{t}, v{t+1}")
            e(f"v_accvgpr_write_b32 a{XN+k}, v{r}")
            if k % 4 == 3:
                self.dma()
        done = []
        for k in range(4 * npre, 160, 2):
            t = V_X + 4 * ((k // 2) % 2)
            grp = done
            for i in range(2):
                grp = grp + [f"v_lshlrev_b32 v{t+2*i}, 16, v{RAW+k+i}", f"v_and_b32 v{t+2*i+1}, s{S_MASK}, v{RAW+k+i}"]
            for i in range(2):
                grp.append(f"v_pk_fma_f32 v[{t+2*i}:{t+2*i+1}], v[{t+2*i}:{t+2*i+1}], v[{u}:{u+1}], v[{u+2}:{u+3}]")
            self.norm.append(grp)
            done = [f"v_cvt_pk_bf16_f32 v{RAW+k+i}, v{t+2*i}, v{t+2*i+1}" for i in range(2)]
            done += [f"v_accvgpr_write_b32 a{XN+k+i}, v{RAW+k+i}" for i in range(2)]
        if done:
            self.norm.append(done)
        for s in range(8):
            e(f"v_add_u32 v{V_AS+8+s}, 0x10000, v{V_AS+s}")
        self.stamp(3)

    def zero_row(self, b, z):
        self.q(f"v_mov_b32 v{z}, 0", f"v_mov_b32 v{z+1}, s{S_EPOCH}", f"v_mov_b32 v{z+2}, 0", f"v_mov_b32 v{z+3}, s{S_EPOCH}",
               *self.ex_base(S_T2, b),
               f"buffer_store_dwordx4 v[{z}:{z+3}], v{V_LBO+1}, {srd(SWS)}, s{S_T2} offen sc1")

    def job_setup(self, kind):
        def q(*texts):
            for t in texts:
                self.p.e(t)
        vo = V_JW if kind == "W" else self.vjc
        q(f"v_lshrrev_b32 v{vo}, 3, v{V_LANE}", f"v_mul_u32_u24 v{vo}, 1280, v{vo}",
          f"v_and_b32 v{vo+1}, 7, v{V_LANE}", f"v_lshl_add_u32 v{vo}, v{vo+1}, 4, v{vo}")
        if kind == "W":
            for k in range(1, 4):
                q(f"v_add_u32 v{vo+k}, {k*(8*1280 - 1024)}, v{vo}")
            q(*self.mk_srd(SA1, K_WD, FF_BYTES),
              f"s_lshl_b32 s{S_JOB}, s{S_SB}, 4", f"s_add_u32 s{S_JOB}, s{S_JOB}, s{S_MT}")
        else:
            q(f"v_add_u32 v{vo+1}, {8*1280 - 1024}, v{vo}")
            q(*self.mk_srd(SA1, K_CRE, SQ_BYTES), *self.mk_srd(SA2, K_CIM, SQ_BYTES),
              f"s_mov_b32 s{S_JOB}, s{S_MT}")
        q(f"s_lshl_b32 s{S_JOB}, s{S_JOB}, 2", f"s_add_u32 s{S_JOB}, s{S_JOB}, s{S_W}")

    def job_index(self, kind, i):
        e = self.p.e
        e(f"s_add_u32 s{S_J2}, s{S_JOB}, {64 * i + (292 if self.fused else 0)}")
        e(f"s_mul_hi_u32 s{S_T1}, s{S_J2}, 0x1999999a")
        e(f"s_mul_i32 s{S_R}, s{S_T1}, 10")
        e(f"s_sub_u32 s{S_R}, s{S_J2}, s{S_R}")

    def job_source(self, kind, i):
        e = self.p.e
        self.job_index(kind, i)
        e(f"s_mul_i32 s{S_T0}, s{S_T1}, {(32 if kind == 'W' else 16) * 1280}")
        e(f"s_lshl_b32 s{S_XB}, s{S_R}, 7")
        e(f"s_add_u32 s{S_T0}, s{S_T0}, s{S_XB}")
        e(f"s_cmp_lt_u32 s{S_J2}, {540 if kind == 'W' else 400}")
        e(f"s_cselect_b32 s{S_T0}, s{S_T0}, {OOB}")

    def w_job(self, R):
        p, q = self.p, self.q
        st = {}
        D = R + 4
        q(f"v_lshrrev_b32 v{R}, 5, v{V_LANE}", f"v_lshlrev_b32 v{R}, 4, v{R}",
          f"v_bfe_u32 v{R+1}, v{V_LANE}, 2, 3", f"v_add_u32 v{R}, v{R}, v{R+1}",
          f"v_lshlrev_b32 v{R}, 7, v{R}", f"v_and_b32 v{R+1}, 3, v{V_LANE}",
          f"v_lshl_add_u32 v{R}, v{R+1}, 3, v{R}", f"v_add_u32 v{R}, s{S_J1}, v{R}")
        ad, cb = S_JOB, S_R
        q(f"s_lshl_b32 s{cb}, s{cb}, 2", f"s_mul_hi_u32 s{ad}, s{cb}, 0x33333334", f"s_mul_i32 s{S_XB}, s{ad}, 5",
          f"s_sub_u32 s{cb}, s{cb}, s{S_XB}", f"s_mul_i32 s{ad}, s{ad}, 94", f"s_add_u32 s{ad}, s{ad}, s{S_T1}",
          f"s_mul_i32 s{ad}, s{ad}, 5", f"s_add_u32 s{ad}, s{ad}, s{cb}", f"s_lshl_b32 s{ad}, s{ad}, 10",
          f"s_add_u32 s{ad}, s{ad}, {W2F_OFF}",
          [f"s_cmp_lt_u32 s{S_J2}, 540", f"s_cselect_b32 s{ad}, s{ad}, {OOB}"])
        self.fill.append(("t", lambda: 100 in self.stage_tok and p.vdone >= self.stage_tok[100][1]))
        for f in range(4):
            def rd(f=f):
                p.wait(self.stage_tok[100])
                p.e(f"ds_read_b64_tr_b16 v[{D+4*f}:{D+4*f+1}], v{R} offset:{32*f}")
                st[f] = p.e(f"ds_read_b64_tr_b16 v[{D+4*f+2}:{D+4*f+3}], v{R} offset:{32*f + 1024}")
            rd.cost = 2
            self.fill.append(rd)
        self.lag(5)
        for f in range(4):
            self.fill.append(lambda f=f: p.wait(st[f]))
            self.fill.append(lambda f=f: setattr(self, "job_store", p.e(
                f"buffer_store_dwordx4 v[{D+4*f}:{D+4*f+3}], v{V_TW+2}, {srd(SWS)}, s{ad} offen{self.wt}")))
            if f < 3:
                q([f"s_cmp_eq_u32 s{cb}, {4 - f}", f"s_cselect_b32 s{S_XB}, {93*5120}, 0"],
                  f"s_add_u32 s{ad}, s{ad}, s{S_XB}", f"s_add_u32 s{ad}, s{ad}, 1024")

    def w2f_addr(self, dst, b16, kstep):
        e = self.p.e
        e(f"s_mul_hi_u32 s{S_D1}, s{b16}, 0x33333334")
        e(f"s_mul_i32 s{S_D2}, s{S_D1}, 5")
        e(f"s_sub_u32 s{S_D2}, s{b16}, s{S_D2}")
        e(f"s_mul_i32 s{S_D1}, s{S_D1}, 94")
        e(f"s_add_u32 s{S_D1}, s{S_D1}, s{kstep}")
        e(f"s_mul_i32 s{S_D1}, s{S_D1}, 5")
        e(f"s_add_u32 s{S_D1}, s{S_D1}, s{S_D2}")
        e(f"s_lshl_b32 s{dst}, s{S_D1}, 10")
        e(f"s_add_u32 s{dst}, s{dst}, {W2F_OFF}")

    def job_finish(self, kind, rounds, R):
        p, e = self.p, self.p.e
        while self.dq:
            self.dma()
        if kind == "W":
            e(f"v_lshrrev_b32 v{R}, 5, v{V_LANE}"); e(f"v_lshlrev_b32 v{R}, 4, v{R}")
            e(f"v_bfe_u32 v{R+1}, v{V_LANE}, 2, 3"); e(f"v_add_u32 v{R}, v{R}, v{R+1}")
            e(f"v_lshlrev_b32 v{R}, 7, v{R}"); e(f"v_and_b32 v{R+1}, 3, v{V_LANE}")
            e(f"v_lshl_add_u32 v{R}, v{R+1}, 3, v{R}")
        else:
            e(f"v_and_b32 v{R}, 15, v{V_LANE}"); e(f"v_lshlrev_b32 v{R}, 7, v{R}")
            e(f"v_lshrrev_b32 v{R+1}, 4, v{V_LANE}"); e(f"v_lshl_add_u32 v{R}, v{R+1}, 3, v{R}")
            e(f"s_mov_b32 s{S_KS}, 0x05040100"); e(f"s_mov_b32 s{S_KS+1}, 0x07060302")
        e(f"v_add_u32 v{R}, s{S_W4K}, v{R}")
        e(f"v_add_u32 v{R+1}, 0x10000, v{R}")
        for i in range(rounds):
            n = 15 + i
            slot = n % 8
            va, off = R + slot // 4, (slot % 4) * 16384
            D = R + 4 + 32 * (i % 2)
            p.wait(self.stage_tok[n])
            tk = []
            for f in range(4):
                if kind == "W":
                    e(f"ds_read_b64_tr_b16 v[{D+4*f}:{D+4*f+1}], v{va} offset:{off + 32*f}")
                    tk.append(e(f"ds_read_b64_tr_b16 v[{D+4*f+2}:{D+4*f+3}], v{va} offset:{off + 32*f + 1024}"))
                else:
                    e(f"ds_read_b64 v[{D+16+4*f}:{D+16+4*f+1}], v{va} offset:{off + 32*f}")
                    tk.append(e(f"ds_read_b64 v[{D+16+4*f+2}:{D+16+4*f+3}], v{va} offset:{off + 32*f + 2048}"))
            self.job_index(kind, i)
            e(f"s_lshl_b32 s{S_R}, s{S_R}, 2")
            if kind == "C":
                e(f"s_add_u32 s{S_R}, s{S_R}, 54")
                self.w2f_addr(S_T0, S_T1, S_R)
                e(f"s_cmp_lt_u32 s{S_J2}, 400")
                e(f"s_cselect_b32 s{S_T0}, s{S_T0}, {OOB}")
            for f in range(4):
                if kind == "W":
                    self.w2f_addr(S_T0, S_KD2, S_T1)
                    e(f"s_cmp_lt_u32 s{S_J2}, 540")
                    e(f"s_cselect_b32 s{S_T0}, s{S_T0}, {OOB}")
                    e(f"s_add_u32 s{S_KD2}, s{S_KD2}, 1")
                    p.wait(tk[f])
                else:
                    p.wait(tk[f])
                    re, im = D + 16 + 4 * f, D + 16 + 4 * f + 2
                    for k in range(2):
                        e(f"v_perm_b32 v{D+4*f+2*k}, v{im+k}, v{re+k}, s{S_KS}")
                        e(f"v_perm_b32 v{D+4*f+2*k+1}, v{im+k}, v{re+k}, s{S_KS+1}")
                e(f"buffer_store_dwordx4 v[{D+4*f}:{D+4*f+3}], v{V_TW+2}, {srd(SWS)}, s{S_T0} offen{self.wt}")
                if kind == "C" and f < 3:
                    e(f"s_add_u32 s{S_T0}, s{S_T0}, 5120")

    def w_prefetch(self):
        e = self.p.e
        t = V_PRE + 2
        e(f"v_lshrrev_b32 v{t}, 1, v{V_LANE}")
        e(f"v_mul_u32_u24 v{t}, 3456, v{t}")
        e(f"v_and_b32 v{t+1}, 1, v{V_LANE}")
        e(f"v_lshl_add_u32 v{t}, v{t+1}, 7, v{t}")
        e(f"s_and_b32 s{S_T2}, s{S_W}, 1")
        e(f"s_mul_i32 s{S_T2}, s{S_T2}, {-12*3456 & 0xffffffff:#x}")
        e(f"s_mul_i32 s{S_T3}, s{S_MT}, {40*3456}")
        e(f"s_add_u32 s{S_T2}, s{S_T2}, s{S_T3}")
        e(f"s_add_u32 s{S_T2}, s{S_T2}, s{S_D1}")
        e("s_mov_b32 exec_hi, 0xff")
        e(f"buffer_load_dword v{t+1}, v{t}, {srd(SF)}, s{S_T2} offen")
        e("s_mov_b64 exec, -1")

    def w_prefetch_early(self):
        e = self.p.e
        b = S_M2
        e(f"s_cmp_ge_u32 s{S_W}, 2")
        e(f"s_cselect_b32 s{b}, s{K_WU}, s{K_WG}"); e(f"s_cselect_b32 s{b+1}, s{K_WU+1}, s{K_WG+1}")
        e(f"s_and_b32 s{S_T2}, s{S_W}, 1")
        e(f"s_lshl_b32 s{S_T3}, s{S_MT}, 1")
        e(f"s_add_u32 s{S_T2}, s{S_T2}, s{S_T3}")
        e(f"s_mul_i32 s{S_T2}, s{S_T2}, {20*3456}")
        e(f"s_min_u32 s{S_T3}, s{S_D1}, 25")
        e(f"s_lshl_b32 s{S_T3}, s{S_T3}, 7")
        e(f"s_add_u32 s{S_T2}, s{S_T2}, s{S_T3}")
        e(f"s_add_u32 s{b}, s{b}, s{S_T2}"); e(f"s_addc_u32 s{b+1}, s{b+1}, 0")
        if self.opt["wpre"] == 2:
            t = V_PRE + 2
            e(f"v_lshrrev_b32 v{t}, 1, v{V_LANE}")
            e(f"v_mul_u32_u24 v{t}, 3456, v{t}")
            e(f"v_and_b32 v{t+1}, 1, v{V_LANE}")
            e(f"v_lshl_add_u32 v{t}, v{t+1}, 7, v{t}")
            e("s_mov_b32 exec_hi, 0xff")
            e(f"global_load_dword v{t+1}, v{t}, s[{b}:{b+1}]")
            e("s_mov_b64 exec, -1")
        else:
            for k in range(self.opt.get("wpre_n", 20)):
                e(f"s_load_dword s{S_SPIN}, s[{b}:{b+1}], {3456*(k % 20) + 128*(k // 20)}")

    def warm_k2(self):
        if not self.opt.get("warm_k2", 1):
            return
        e = self.p.e
        e(f"s_getpc_b64 s[{S_T0}:{S_T1}]")
        self.p.label("K1_PC2")
        e(f"s_add_u32 s{S_T0}, s{S_T0}, gemm2_kernel-K1_PC2")
        e(f"s_addc_u32 s{S_T1}, s{S_T1}, 0")
        e(f"s_lshr_b32 s{S_T2}, s2, 3")
        e(f"s_lshl_b32 s{S_T2}, s{S_T2}, 2")
        e(f"s_add_u32 s{S_T2}, s{S_T2}, s{S_W}")
        e(f"s_lshl_b32 s{S_T2}, s{S_T2}, 7")
        e(f"s_min_u32 s{S_T3}, s{S_T2}, TEXT_END-gemm2_kernel-4")
        e(f"s_min_u32 s{S_T2}, s{S_T2}, 1276")
        e(f"v_mov_b32 v{V_PRE}, s{S_T3}")
        e(f"v_mov_b32 v{V_PRE+1}, s{S_T2}")
        e("s_mov_b64 exec, 1")
        e(f"global_load_dword v{V_PRE+2}, v{V_PRE}, s[{S_T0}:{S_T1}]")
        e(f"global_load_dword v{V_PRE+3}, v{V_PRE+1}, s[{K_DSK}:{K_DSK+1}]")
        e("s_mov_b64 exec, -1")

    def finish(self, k):
        p, e = self.p, self.p.e
        e(f"s_lshl_b32 s{S_T2}, s{S_CG}, 7")
        e(f"s_add_u32 s{S_T2}, s{S_T2}, {EPOCH_OFF}")
        e(f"s_cmp_eq_u32 s{S_MT}, 15")
        e(f"s_cselect_b32 s{S_T2}, s{S_T2}, {OOB}")
        e(f"v_mov_b32 v0, s{S_EPOCH}")
        e(f"buffer_store_dword v0, off, {srd(SWS)}, s{S_T2} sc1")
        self.spin_out = True
        self.stamp_out(k)
        e("s_endpgm")

    def snapshot(self):
        p = self.p
        return (p.vq, p.vdone, p.lq, p.ldone, dict(self.stage_tok), list(self.pre_barrier), self.nbar, self.mf,
                set(self.seen), list(self.fill), list(self.dq), list(self.norm), self.vgap)

    def restore(self, s):
        p = self.p
        (p.vq, p.vdone, p.lq, p.ldone, st, pb, self.nbar, self.mf, seen, fill, dq, norm, self.vgap) = s
        self.stage_tok, self.pre_barrier, self.seen = dict(st), list(pb), set(seen)
        self.fill, self.dq, self.norm = list(fill), list(dq), list(norm)

    def run(self, stages, frags, hooks, wjob=False):
        plan = {n: (lambda n=n: self.issue_stage(n + 6, *stages[n + 6])) for n in range(len(stages) - 6)}
        if stages[5][0] == "F" and self.opt.get("wpre", 1) == 1:
            self.dq.append(self.w_prefetch)
        self.issue_stage(5, *stages[5])
        if wjob and self.fused:
            self.a_job_setup()
            self.issue_stage(100, "J", 0, 0)
        elif wjob:
            self.job_setup("W")
            self.issue_stage(100, "W", 0, 0)
        self.gemm(frags, plan, hooks)
        return plan

    def build(self):
        p, e, o = self.p, self.p.e, self.opt
        self.prologue()
        e(f"s_cmp_eq_u32 s{S_TYPE}, 2")
        e("s_cbranch_scc1 K1_TYPE_C")
        e(f"s_cmp_eq_u32 s{S_TYPE}, 1")
        e("s_cbranch_scc1 K1_TYPE_B")
        snap = self.snapshot()
        g1, g2 = o.get("lb_issue", 80 + 80), o.get("lb_check", 80 + 100)
        head = [("S", i, 0) for i in range(5)] + [("F", i, S_D1) for i in range(10)]
        for typ in "AB":
            if typ == "B":
                p.label("K1_TYPE_B")
                self.restore(snap)
            m0 = self.mf

            def start_ssm(typ=typ, m0=m0):
                self.stamp(4)
                if typ == "B":
                    self.job_setup("C")
                self.ssm_reduce(0, ACC_S, 188)
                if typ == "A":
                    self.w_job(188)
                self.ssm_finish(0, ACC_S, 188, lambda: self.mf - m0 >= g1, lambda: self.mf - m0 >= g2, typ)

            def at_d2():
                self.stamp(5)
                self.ffn_epilogue(ACC_D1, S_KD1)
            frags = self.s_frags(0, ACC_S) + self.d_frags(5, ACC_D1)
            if typ == "A":
                self.run(head + [("F", i, S_D2) for i in range(10)], frags + self.d_frags(15, ACC_D2),
                         {81: start_ssm, 240: at_d2}, True)
                self.stamp(6)
                self.flush()
                self.warm_k2()
                self.ffn_tail(ACC_D2, S_KD2)
                self.stamp(7)
            else:
                stages = head + [("C", i, 0) for i in range(7)]
                self.run(stages[:21], frags, {81: start_ssm})
                self.stamp(5)
                self.mf += 1000
                self.barrier()
                self.issue_stage(21, *stages[21])
                while self.dq:
                    self.dma()
                self.flush()
                self.ffn_tail(ACC_D1, S_KD1)
                self.stamp(6)
                self.job_finish("C", 7, ACC_D2 - 4)
                self.stamp(7)
            self.finish(8)
        p.label("K1_TYPE_C")
        self.restore(snap)
        stages = [("S", i % 5, i // 5) for i in range(15)]
        frags = self.s_frags(0, 16) + self.s_frags(5, 48) + self.s_frags(10, 80)
        m0 = self.mf

        def c1():
            self.stamp(4)
            self.ssm_reduce(0, 16, 152)
            for b in (1, 2):
                self.q(*self.ssm_consts(b, V_C + 12 * b + 6, 112))
                self.zero_row(b, 112)

        def c2():
            self.stamp(5)
            self.ssm_reduce(1, 48, 152)
            self.ssm_finish(0, 16, 112, None, lambda: self.mf - m0 >= 215, "C0")
        self.run(stages, frags, {81: c1, 161: c2})
        self.stamp(6)
        self.mf += 1000
        self.flush()
        self.ssm_reduce(2, 80, 152)
        self.ssm_finish(1, 48, 112, None, None, "C1")
        self.flush()
        self.stamp(7)
        self.ssm_finish(2, 80, 112, None, None, "C2")
        self.flush()
        self.finish(8)
        self.slow_paths()
        p.label("K1_END")
        e("s_endpgm")
        p.fix_hazards()
        return p


K1_DESC = """
.amdhsa_kernel proj_kernel
  .amdhsa_next_free_vgpr 512
  .amdhsa_next_free_sgpr 102
  .amdhsa_accum_offset 256
  .amdhsa_group_segment_fixed_size 0
  .amdhsa_kernarg_size 128
  .amdhsa_user_sgpr_count 2
  .amdhsa_user_sgpr_kernarg_segment_ptr 1
  .amdhsa_system_sgpr_workgroup_id_x 1
  .amdhsa_float_denorm_mode_32 3
.end_amdhsa_kernel
"""
```

```python
import sys, json
from asmlib import align_pass
from k1 import K1, K1_DESC, K1_LDS
from k2 import gen_k2, K2_DESC, K2_LDS

NAME = "parallel_sum__ssm_conv_s5__glu_gated_geglu__prompt"


def build_fused(opt):
    from fused import Fused, DESC, NAME as KN
    ref = open(f"cdna_kernels/{NAME}.s.ref").read().splitlines()
    head = [l for l in ref if l.startswith(";") and "@launch" not in l and "Override launch" not in l
            and "grid=ceil" not in l]
    out = "\n".join(head[:17]) + "\n"
    out += f"; @launch grid=(256,1,1) block=(256,1,1) lds={K1_LDS}\n"
    out += '.amdgcn_target "amdgcn-amd-amdhsa--gfx950"\n.text\n'
    out += f".globl {KN}\n.type {KN},@function\n"
    out += Fused(opt).build().text()
    out += "TEXT_END:\n"
    out += '.section .rodata,"a"\n.p2align 6' + DESC
    return align_pass(out) if opt.get("align", 1) else out


def build(opt):
    if opt.get("fused"):
        return build_fused(opt)
    ref = open(f"cdna_kernels/{NAME}.s.ref").read().splitlines()
    head = [l for l in ref if l.startswith(";") and "@launch" not in l and "Override launch" not in l
            and "grid=ceil" not in l]
    out = "\n".join(head[:17]) + "\n"
    if opt.get("dummy") == "pre":
        out += "; @launch kernel=dummy_kernel grid=(256,1,1) block=(256,1,1) lds=0\n"
    out += f"; @launch kernel=proj_kernel grid=(256,1,1) block=(256,1,1) lds={K1_LDS}\n"
    out += f"; @launch kernel=gemm2_kernel grid=(256,1,1) block=(256,1,1) lds={K2_LDS}\n"
    if opt.get("dummy") == "post":
        out += "; @launch kernel=dummy_kernel grid=(256,1,1) block=(256,1,1) lds=0\n"
    out += '.amdgcn_target "amdgcn-amd-amdhsa--gfx950"\n.text\n'
    out += ".globl proj_kernel\n.type proj_kernel,@function\n.globl gemm2_kernel\n.type gemm2_kernel,@function\n"
    out += K1(opt).build().text()
    out += gen_k2(opt).text()
    if opt.get("dummy"):
        out += ".p2align 8\n.globl dummy_kernel\n.type dummy_kernel,@function\ndummy_kernel:\n    s_endpgm\n"
    out += "TEXT_END:\n"
    out += '.section .rodata,"a"\n.p2align 6' + K1_DESC + ".p2align 6" + K2_DESC
    if opt.get("dummy"):
        out += ".p2align 6" + K2_DESC.replace("gemm2_kernel", "dummy_kernel").replace("vgpr 280", "vgpr 8").replace("offset 200", "offset 8")
    if opt.get('align', 1):
        out = align_pass(out)
    return out


if __name__ == "__main__":
    path = sys.argv[1]
    opt = json.loads(sys.argv[2]) if len(sys.argv) > 2 else {}
    open(path, "w").write(build(opt))
    print("wrote", path)
```

```python
from k1 import *

NAME = "parallel_sum__ssm_conv_s5__glu_gated_geglu__prompt_kernel"
S_WB = 28
S_D2X, S_R2 = 100, 101
S_A, S_OOB, S_XO, S_OO, S_PO, S_PI, S_N, S_A0, S_TG, S_DN, S_DIV = 68, 69, 70, 71, 72, 73, 74, 75, 76, 80, 81
S_A1 = 82
SD, SO = SS, SF
V_L16, V_L16B, V_WA, V_PK = 3, 4, 5, 13
ACC1, ACC2, RING = 16, 96, 176
V_OA, V_LA, V_T = 240, 245, 250
WMAP = [192 + 4 * k for k in range(16)] + [4 * k for k in range(40)] + [160 + 4 * k for k in range(4)]
SLOT5 = 176
S_TB, S_WB0 = 24, 26
ORDERS = {"k0": [0, 1, 4, 5, 8, 9, 2, 3, 6, 7, 10, 11], "w0": [1, 2, 7, 8, 9, 10, 11, 0, 3, 4, 5, 6],
          "nat": list(range(12)), "w3": [0, 1, 2, 5, 6, 7, 8, 3, 4, 9, 10, 11]}


def nib(name, half):
    return sum(v << (4 * k) for k, v in enumerate(ORDERS[name][8 * half:8 * half + 8]))


def rel(dst, i):
    return f"s_bfe_u32 s{dst}, s{S_TB + i // 8}, {(4 << 16) | (4 * (i % 8)):#x}"


def slot(g, f):
    k = g % 5
    return f"v[{RING+16*k+4*f}:{RING+16*k+4*f+3}]" if k < 4 else f"a[{SLOT5+4*f}:{SLOT5+3+4*f}]"


class Fused(K1):
    def __init__(self, opt):
        super().__init__(opt)
        self.name = NAME
        self.fused = True
        self.polls = []
        self.heads = []
        self.JA = RAW + 140

    def stats_to_lds(self):
        e = self.p.e
        e(f"ds_write2_b32 v0, v{V_X+8}, v{V_X+10} offset1:1")
        e(f"v_add_u32 v0, 0x1000, v{V_TW+2}")
        T = V_X
        for x in (f"v_mov_b32 v{T+4}, 0", f"v_min_u32 v{T+5}, 6, v{V_SEG}", f"v_sub_u32 v{T+5}, v{T+5}, v{V_SEG}",
                  f"v_lshl_add_u32 v{T+5}, v{T+5}, 3, v{V_XR}", f"ds_write2_b32 v{T+5}, v{T+4}, v{T+4} offset1:1"):
            e(x)

    def flag_store(self, tmp, base, hi, lo):
        t = S_WB + 1
        return [[f"s_lshl_b32 s{t}, s{hi}, 4", f"s_add_u32 s{t}, s{t}, s{lo}", f"s_lshl_b32 s{t}, s{t}, 7",
                 f"s_add_u32 s{t}, s{t}, {base}", f"s_cmp_eq_u32 s{S_W}, 0", f"s_cselect_b32 s{t}, s{t}, {OOB}"],
                f"v_mov_b32 v{tmp}, s{S_EPOCH}",
                ["s_mov_b64 exec, 1", f"buffer_store_dword v{tmp}, off, {srd(SWS)}, s{t} sc1", "s_mov_b64 exec, -1"]]

    def flag_later(self, tmp, delay, tok, base, hi, lo):
        def raise_flag():
            for x in self.flag_store(tmp, base, hi, lo):
                for y in (x if isinstance(x, list) else [x]):
                    self.p.e(y)

        def arm():
            self.pre_barrier.append(tok())
            self.on_barrier.append(raise_flag)
        if delay is None:
            self.lazy.append((tok(), raise_flag))
        else:
            self.timers.append((self.mf + delay, arm))

    def a_job_setup(self):
        e, o = self.p.e, self.opt
        u, t, t2, ct = S_R, S_T2, S_T3, S_T1
        A = self.JA
        e(f"s_lshl_b32 s{u}, s{S_MT}, 2"); e(f"s_add_u32 s{u}, s{u}, s{S_W}")
        e(f"s_and_b32 s{ct}, s{S_CG}, 7")
        e(f"s_cmp_ge_u32 s{S_CG}, 8"); e(f"s_cselect_b32 s{t}, 7, 64"); e(f"s_cselect_b32 s{t2}, 47, 0")
        e(f"s_cselect_b32 s{S_JOB}, 57, 47")
        e(f"s_cmp_lt_u32 s{u}, s{S_JOB}"); e(f"s_cselect_b32 s{S_D2X}, 0, {OOB}")
        e(f"s_cmp_ge_u32 s{u}, s{t}"); e(f"s_cselect_b32 s{S_J2}, 1, 0")
        e("s_cbranch_scc1 JOB_C")
        for x in self.mk_srd(SA1, K_WD, FF_BYTES) + self.mk_srd(SA2, K_WD, FF_BYTES):
            e(x)
        e(f"s_add_u32 s{u}, s{u}, s{t2}")
        e(f"s_mul_i32 s{S_R2}, s{u}, {32*1280}"); e(f"s_mul_i32 s{t}, s{ct}, 160")
        e(f"s_add_u32 s{S_R2}, s{S_R2}, s{t}")
        e(f"s_mul_i32 s{S_JOB}, s{ct}, 94"); e(f"s_add_u32 s{S_JOB}, s{S_JOB}, s{u}")
        e(f"s_mul_i32 s{S_JOB}, s{S_JOB}, 5120")
        e(f"s_mov_b32 s{t}, 0xcccd")
        for q in range(5):
            e(f"v_add_u32 v{A+5}, {64*q}, v{V_LANE}"); e(f"v_mul_lo_u32 v{A+q}, v{A+5}, s{t}")
            e(f"v_lshrrev_b32 v{A+q}, 19, v{A+q}"); e(f"v_mul_u32_u24 v{A+q}, 1120, v{A+q}")
            e(f"v_lshl_add_u32 v{A+q}, v{A+5}, 4, v{A+q}")
        e("s_branch JOB_LD")
        self.p.label("JOB_C")
        for x in self.mk_srd(SA1, K_CRE, SQ_BYTES) + self.mk_srd(SA2, K_CIM, SQ_BYTES):
            e(x)
        e(f"s_sub_u32 s{u}, s{u}, 7")
        e(f"s_mul_hi_u32 s{t}, s{u}, 0x1999999a"); e(f"s_mul_i32 s{t2}, s{t}, 10"); e(f"s_sub_u32 s{u}, s{u}, s{t2}")
        e(f"s_mul_i32 s{t2}, s{ct}, 5"); e(f"s_add_u32 s{t2}, s{t2}, s{t}")
        e(f"s_mul_i32 s{S_R2}, s{t2}, {16*1280}"); e(f"s_lshl_b32 s{t2}, s{u}, 7")
        e(f"s_add_u32 s{S_R2}, s{S_R2}, s{t2}")
        e(f"s_mul_i32 s{S_JOB}, s{ct}, 94"); e(f"s_lshl_b32 s{u}, s{u}, 2"); e(f"s_add_u32 s{S_JOB}, s{S_JOB}, s{u}")
        e(f"s_add_u32 s{S_JOB}, s{S_JOB}, 54"); e(f"s_mul_i32 s{S_JOB}, s{S_JOB}, 5")
        e(f"s_add_u32 s{S_JOB}, s{S_JOB}, s{t}"); e(f"s_lshl_b32 s{S_JOB}, s{S_JOB}, 10")
        e(f"v_lshrrev_b32 v{A}, 3, v{V_LANE}"); e(f"v_mul_u32_u24 v{A}, 1280, v{A}")
        e(f"v_and_b32 v{A+1}, 7, v{V_LANE}"); e(f"v_lshl_add_u32 v{A}, v{A+1}, 4, v{A}")
        e(f"v_add_u32 v{A+1}, {8*1280}, v{A}"); e(f"v_mov_b32 v{A+2}, v{A}"); e(f"v_mov_b32 v{A+3}, v{A+1}")
        e(f"v_mov_b32 v{A+4}, {OOB}")
        self.p.label("JOB_LD")
        e(f"s_add_u32 s{S_JOB}, s{S_JOB}, {W2F_OFF}")
        e(f"s_or_b32 s{S_JOB}, s{S_JOB}, s{S_D2X}"); e(f"s_or_b32 s{S_R}, s{S_R2}, s{S_D2X}")
        self.job_ld = [lambda q=q: setattr(self, "job_tok", e(
            f"buffer_load_dwordx4 a[{192+4*q}:{195+4*q}], v{A+q}, {srd(SA1 if q < 2 else SA2)}, s{S_R} offen"))
            for q in range(5)]
        if o.get("job_dq"):
            self.dq.extend(self.job_ld)
        elif not o.get("job_late"):
            for f in self.job_ld:
                f()

    def a_job(self, is_c, m0, R, L):
        p, q = self.p, self.q
        st = {}
        D = R + 2

        def at(k):
            self.fill.append(("t", lambda: self.mf - m0 >= k + self.opt.get("fork_at", 65)))
        if is_c:
            q(f"v_and_b32 v{R}, 15, v{V_LANE}", f"v_lshlrev_b32 v{R}, 7, v{R}",
              f"v_lshrrev_b32 v{R+1}, 4, v{V_LANE}", f"v_lshl_add_u32 v{R}, v{R+1}, 3, v{R}")
        else:
            q(f"v_lshrrev_b32 v{R}, 5, v{V_LANE}", f"v_lshlrev_b32 v{R}, 4, v{R}",
              f"v_bfe_u32 v{R+1}, v{V_LANE}, 2, 3", f"v_add_u32 v{R}, v{R}, v{R+1}",
              f"v_mul_u32_u24 v{R}, 160, v{R}", f"v_and_b32 v{R+1}, 3, v{V_LANE}",
              f"v_lshl_add_u32 v{R}, v{R+1}, 3, v{R}")
        q(f"v_add_u32 v{R}, s{S_J1}, v{R}", f"v_add_u32 v{R+1}, s{S_J1}, v{V_TW+2}")
        at(2)
        self.fill.append(lambda: p.wait(self.job_tok))
        for f in range(5):
            at(2 + f // 2)
            self.fill.append(lambda f=f: st.__setitem__("w", p.e(
                f"ds_write_b128 v{R+1}, a[{192+4*f}:{195+4*f}] offset:{1024*f}")))
        land = [(L if is_c else D) + 4 * f for f in range(5)]
        for f in range(5):
            at(7 + f // 2)

            def rd(f=f):
                p.wait(st["w"])
                op, o2 = ("ds_read_b64", 2048) if is_c else ("ds_read_b64_tr_b16", 1280)
                p.e(f"{op} v[{land[f]}:{land[f]+1}], v{R} offset:{32*f}")
                st[f] = p.e(f"{op} v[{land[f]+2}:{land[f]+3}], v{R} offset:{32*f + o2}")
            rd.cost = 2
            self.fill.append(rd)
        if is_c:
            q(f"s_mov_b32 s{S_T2}, 0x05040100", f"s_mov_b32 s{S_T3}, 0x07060302")
        at(12)
        self.fill.append(lambda: p.wait(st[4]))
        for f in range(5):
            if is_c and f < 4:
                re, im = land[f], land[f] + 2
                for k in range(2):
                    q(f"v_perm_b32 v{D+4*f+2*k}, v{im+k}, v{re+k}, s{S_T2}",
                      f"v_perm_b32 v{D+4*f+2*k+1}, v{im+k}, v{re+k}, s{S_T3}")
            at(14 + 2 * f)
            self.fill.append(lambda f=f: setattr(self, "job_store", p.e(
                f"buffer_store_dwordx4 v[{D+4*f}:{D+4*f+3}], v{V_TW+2}, {srd(SWS)}, s{S_JOB} offen{self.wt}")))
            if f < 4:
                q(f"s_add_u32 s{S_JOB}, s{S_JOB}, {(5120 if f < 3 else OOB) if is_c else 1024}")

    def fork_job(self, tag, m0, R, L):
        e, fa = self.p.e, self.opt.get("fork_at", 65)
        self.fork = (fa, fa + 24, lambda: (e(f"s_cmp_eq_u32 s{S_J2}, 1"), e(f"s_cbranch_scc1 FORK_ALT_{tag}")),
                     lambda: self.a_job(False, m0, R, L), lambda: self.a_job(True, m0, R, L), tag)
        return fa + 24

    def jf_load(self, R):
        e = self.p.e
        e(f"s_lshl_b32 s{S_WB+1}, s{S_CG}, 11")
        e(f"s_add_u32 s{S_WB+1}, s{S_WB+1}, {JF_OFF}")
        e(f"v_and_b32 v{R+1}, 15, v{V_LANE}")
        e(f"v_lshlrev_b32 v{R+1}, 7, v{R+1}")
        self.jf_tok = self.flag_load(R)

    def flag_load(self, R):
        e = self.p.e
        e(f"v_mov_b32 v{R}, s{S_EPOCH}")
        e("s_mov_b64 exec, 0xffff")
        t = e(f"buffer_load_dword v{R}, v{R+1}, {srd(SWS)}, s{S_WB+1} offen sc1")
        e("s_mov_b64 exec, -1")
        return t

    def all_equal(self, R, n, label):
        e = self.p.e
        e(f"v_xor_b32 v{R}, s{S_EPOCH}, v{R}")
        for k in range(1, n):
            e(f"v_bitop3_b32 v{R}, v{R}, v{R+k}, s{S_EPOCH} bitop3:0xf6")
        e(f"v_cmp_ne_u32 vcc, 0, v{R}")
        e(f"s_cbranch_vccnz {label}")

    def jf_check(self, R, tag, first, per):
        p, e = self.p, self.p.e
        e(f"s_mov_b32 s{S_WB+2}, 0")
        p.wait(self.jf_tok)
        e(f"v_cmp_ne_u32 vcc, s{S_EPOCH}, v{R}")
        e(f"s_cbranch_vccnz JF_SLOW_{tag}")
        p.label(f"JF_OK_{tag}")
        self.polls.append((tag, R))
        e(f"s_lshr_b32 s{S_WB}, s{S_CG}, 3")
        e(f"s_mul_i32 s{S_WB}, s{S_WB}, 47")
        e(f"s_mul_i32 s{S_WB+1}, s{S_W}, 12")
        e(f"s_add_u32 s{S_WB+3}, s{S_WB}, s{S_WB+1}")
        e(f"s_and_b32 s{S_WB}, s{S_CG}, 7")
        e(f"s_mul_i32 s{S_WB}, s{S_WB}, 94")
        e(f"s_add_u32 s{S_WB}, s{S_WB}, s{S_WB+3}")
        e(f"s_mul_i32 s{S_WB}, s{S_WB}, 5120")
        e(f"s_add_u32 s{S_WB0}, s{S_WB}, {W2F_OFF}")
        for h in range(2):
            e(f"s_mov_b32 s{S_TB+h}, {nib('nat', h):#x}")
        for cond, name in ((f"s_cmp_eq_u32 s{S_W}, 0", "w0"), (f"s_cmp_eq_u32 s{S_W}, 3", "w3"), (f"s_cmp_lt_u32 s{S_CG}, 8", "k0")):
            e(cond)
            for h in range(2):
                e(f"s_cselect_b32 s{S_TB+h}, {nib(name, h):#x}, s{S_TB+h}")

        def ld(n):
            i, cb = divmod(n, 5)
            if cb == 0:
                e(rel(S_WB, i))
                e(f"s_mul_i32 s{S_WB}, s{S_WB}, 5120")
                e(f"s_add_u32 s{S_WB}, s{S_WB}, s{S_WB0}")
                if i == 11:
                    e(f"s_cmp_eq_u32 s{S_W}, 3")
                    e(f"s_cselect_b32 s{S_WB}, {OOB}, s{S_WB}")
            va, off = ((V_L16 if n >= 60 - self.opt.get("w_keep", 12) else V_TW + 2), 1024 * cb) if cb < 4 else (0, 0)
            e(f"buffer_load_dwordx4 a[{WMAP[n]}:{WMAP[n]+3}], v{va}, {srd(SWS)}, s{S_WB} offen offset:{off} sc1")
        self.wq = [lambda n=n: ld(n) for n in range(60)]
        self.wfrom, self.wper = first, per

    def fire_timers(self):
        for tm in self.timers:
            tm[1]()
        self.timers = []
        for tok, f in self.lazy:
            self.pre_barrier.append(tok)
            self.on_barrier.append(f)
        self.lazy = []
        if self.on_barrier:
            self.barrier()

    def poll_paths(self):
        p, e = self.p, self.p.e
        for tag in self.heads:
            p.label(f"K2_EARLY_SLOW_{tag}")
            e(f"s_sleep {self.opt.get('done_sleep', 8)}")
            e(f"s_add_u32 s{S_SPIN}, s{S_SPIN}, 1")
            e(f"s_cmp_gt_u32 s{S_SPIN}, 100000")
            e(f"s_cbranch_scc1 K2_EARLY_OK_{tag}")
            self.early_load()
            e("s_waitcnt vmcnt(0)")
            e(f"v_cmp_ne_u32 vcc, s{S_EPOCH}, v15")
            e(f"s_cbranch_vccnz K2_EARLY_SLOW_{tag}")
            e(f"s_branch K2_EARLY_OK_{tag}")
        for tag, R in self.polls:
            p.label(f"JF_SLOW_{tag}")
            e("s_sleep 6")
            e(f"s_add_u32 s{S_WB+2}, s{S_WB+2}, 1")
            e(f"s_cmp_gt_u32 s{S_WB+2}, 20000")
            e(f"s_cbranch_scc1 JF_OK_{tag}")
            self.flag_load(R)
            e("s_waitcnt vmcnt(0)")
            e(f"v_cmp_ne_u32 vcc, s{S_EPOCH}, v{R}")
            e(f"s_cbranch_vccnz JF_SLOW_{tag}")
            e(f"s_branch JF_OK_{tag}")

    def w_some(self, n):
        while n > 0 and len(self.wq) > self.opt.get("w_keep", 12):
            self.wq.pop(0)()
            n -= 1

    def a_load(self, g, t, i, f):
        e = self.p.e
        if f == 0:
            e(rel(S_A, i))
            e(f"s_lshl_b32 s{S_A}, s{S_A}, 12")
            e(f"s_add_u32 s{S_A}, s{S_A}, s{S_A0 if t else S_A1}")
            if i == 11:
                e(f"s_cmp_eq_u32 s{S_W}, 3")
                e(f"s_cselect_b32 s{S_A}, s{S_OOB}, s{S_A}")
        return e(f"buffer_load_dwordx4 {slot(g, f)}, v{V_L16}, {srd(SWS)}, s{S_A} offen offset:{1024*f} sc1")

    def early_load(self):
        e = self.p.e
        e(f"v_mov_b32 v15, s{S_EPOCH}")
        e("s_mov_b64 exec, 0xbfff")
        t = e(f"buffer_load_dword v15, v2, {srd(SWS)}, s{S_DIV+2} offen sc1")
        e("s_mov_b64 exec, -1")
        return t

    def phase2_head(self, k, tag):
        p, e = self.p, self.p.e
        self.stamp(k)
        e(f"s_lshl_b32 s{S_DN}, s{S_MT}, 11"); e(f"s_add_u32 s{S_DN}, s{S_DN}, {DONE_OFF}")
        e(f"s_add_u32 s{S_DIV+2}, s{S_DN}, {DONE1_OFF - DONE_OFF}")
        e(f"v_and_b32 v2, 15, v{V_LANE}"); e("v_lshlrev_b32 v2, 7, v2")
        e(f"s_mov_b32 s{S_SPIN}, 0")
        if tag != "B":
            t_early = self.early_load()
        self.w_some(self.opt.get("head_w", 4))
        for x in self.mk_srd(SD, K_DSK, 1280) + self.mk_srd(SO, K_OUT, OUT_BYTES):
            e(x)
        e(f"v_mov_b32 v{V_L16}, v{V_TW+2}"); e(f"v_mov_b32 v{V_L16B}, v0")
        e(f"s_mov_b32 s{S_N}, s{S_WB+3}")
        e(f"s_lshr_b32 s{S_T2}, s{S_CG}, 3")
        e(f"s_lshl_b32 s{S_T3}, s{S_MT}, 1")
        e(f"s_add_u32 s{S_T3}, s{S_T3}, s{S_T2}")
        e(f"s_mul_i32 s{S_A0}, s{S_T3}, 94"); e(f"s_add_u32 s{S_A0}, s{S_A0}, s{S_N}"); e(f"s_lshl_b32 s{S_A0}, s{S_A0}, 12")
        e(f"s_xor_b32 s{S_A1}, s{S_T3}, 1")
        e(f"s_mul_i32 s{S_A1}, s{S_A1}, 94"); e(f"s_add_u32 s{S_A1}, s{S_A1}, s{S_N}"); e(f"s_lshl_b32 s{S_A1}, s{S_A1}, 12")
        e(f"s_lshl_b32 s{S_T3}, s{S_T3}, 6"); e(f"s_lshl_b32 s{S_T0}, s{S_W}, 4"); e(f"s_add_u32 s{S_T3}, s{S_T3}, s{S_T0}")
        e(f"s_and_b32 s{S_T1}, s{S_CG}, 7"); e(f"s_mul_i32 s{S_T1}, s{S_T1}, 160")
        e(f"s_mul_i32 s{S_XO}, s{S_T3}, 1280"); e(f"s_add_u32 s{S_XO}, s{S_XO}, s{S_T1}")
        e(f"s_lshl_b32 s{S_OO}, s{S_XO}, 1")
        e(f"s_mov_b32 s{S_DIV}, 0xcccd"); e(f"s_mov_b32 m0, s{S_J1}")
        for j in range(3):
            e(f"v_add_u32 v6, {64*j}, v{V_LANE}"); e(f"v_mul_lo_u32 v7, v6, s{S_DIV}"); e("v_lshrrev_b32 v7, 19, v7")
            e("v_mul_u32_u24 v8, 1120, v7"); e("v_lshl_add_u32 v8, v6, 4, v8")
            if j:
                e(f"v_add_u32 v8, {-1024*j & 0xffffffff:#x}, v8")
            if j == 2:
                e("s_mov_b32 exec_hi, 0")
            e(f"buffer_load_dwordx4 v8, {srd(SX)}, s{S_XO} offen offset:{1024*j} lds")
        e(f"s_add_u32 m0, s{S_J1}, 3072"); e("s_mov_b32 exec_lo, 0x3ff")
        t_res = e(f"buffer_load_dwordx4 v{V_L16}, {srd(SD)}, s{S_T1} offen lds")
        e("s_mov_b64 exec, -1")
        e(f"s_lshl_b32 s{S_T0}, s{S_CG}, 7"); e(f"s_add_u32 s{S_T0}, s{S_T0}, s{S_DN}")
        e(f"s_cmp_eq_u32 s{S_W}, 0"); e(f"s_cselect_b32 s{S_T0}, s{S_T0}, {OOB}")
        e(f"v_mov_b32 v{V_T}, s{S_EPOCH}")
        self.barrier(self.last_store)
        e("s_mov_b64 exec, 1")
        e(f"buffer_store_dword v{V_T}, off, {srd(SWS)}, s{S_T0} sc1")
        e("s_mov_b64 exec, -1")
        self.stamp(k + 1)
        self.w_some(60)
        if tag == "B":
            t_early = self.early_load()
        e(f"s_mov_b32 s{S_OOB}, {OOB}")
        p.wait(t_early)
        e(f"v_cmp_ne_u32 vcc, s{S_EPOCH}, v15")
        e(f"s_cbranch_vccnz K2_EARLY_SLOW_{tag}")
        p.label(f"K2_EARLY_OK_{tag}")
        self.heads.append(tag)
        p.wait(t_res)
        for g in range(4):
            for f in range(4):
                self.a_load(g, 0, g, f)
        self.w_rest = list(self.wq)
        e(f"s_and_b32 s{S_T3}, s{S_T3}, 127"); e(f"s_lshl_b32 s{S_T3}, s{S_T3}, 3"); e(f"s_add_u32 s{S_T3}, s{S_T3}, {STL}")
        e(f"s_mul_i32 s{S_T2}, s{S_W}, 5376")
        e(f"v_lshlrev_b32 v10, 3, v{V_LANE}"); e(f"v_add_u32 v10, s{S_J1}, v10")
        XR, DR, SR, T = ACC2, ACC2 + 10, ACC2 + 20, ACC2 + 32
        AD = ACC2 + 60
        for i in range(5):
            e(f"v_add_u32 v6, {64*i}, v{V_LANE}"); e(f"v_mul_lo_u32 v7, v6, s{S_DIV}"); e("v_lshrrev_b32 v7, 20, v7")
            e("v_mul_u32_u24 v8, 20, v7"); e("v_sub_u32 v8, v6, v8")
            e("v_mul_u32_u24 v9, 2560, v7"); e(f"v_lshl_add_u32 v{V_OA+i}, v8, 4, v9")
            e("v_mul_u32_u24 v12, 336, v7"); e("v_lshl_add_u32 v12, v8, 4, v12")
            e(f"v_add_u32 v{V_LA+i}, s{S_T2}, v12")
            e(f"v_lshl_add_u32 v{AD+i}, v8, 3, s{S_J1}"); e(f"v_lshl_add_u32 v11, v7, 3, s{S_T3}")
            e(f"ds_read_b64 v[{SR+2*i}:{SR+2*i+1}], v11")
        e(f"v_and_b32 v{V_WA}, 15, v{V_LANE}"); e(f"v_mul_u32_u24 v{V_WA}, 336, v{V_WA}")
        e(f"v_lshrrev_b32 v6, 4, v{V_LANE}"); e(f"v_lshl_add_u32 v{V_WA}, v6, 4, v{V_WA}")
        e(f"s_mul_i32 s{S_T2}, s{S_W}, 21504"); e(f"v_add_u32 v{V_WA}, s{S_T2}, v{V_WA}")
        e(f"v_add_u32 v{V_PK}, s{S_J1}, v{V_L16}")
        e("s_lshl_b32 s3, s2, 2"); e(f"s_add_u32 s3, s3, s{S_W}")
        e(f"s_mul_i32 s{S_PO}, s3, 5120"); e(f"s_add_u32 s{S_PO}, s{S_PO}, {PART_OFF}")
        e("s_xor_b32 s3, s3, 4")
        e(f"s_mul_i32 s{S_PI}, s3, 5120"); e(f"s_add_u32 s{S_PI}, s{S_PI}, {PART_OFF}")
        e(f"v_mov_b32 v{V_T}, 0xff")
        e(f"s_mov_b32 s{S_TG}, s{S_EPOCH}")
        for j in range(1, 4):
            e(f"s_lshr_b32 s{S_TG+j}, s{S_TG}, {8*j}"); e(f"s_add_u32 s{S_TG+j}, s{S_TG+j}, s{S_TG}")
        t = None
        for i in range(5):
            e(f"ds_read_b64 v[{XR+2*i}:{XR+2*i+1}], v10 offset:{512*i}")
            t = e(f"ds_read_b64 v[{DR+2*i}:{DR+2*i+1}], v{AD+i} offset:3072")
        p.wait(t)
        M = f"s{S_MASK}"
        for i in range(5):
            x0, d0, s0 = XR + 2 * i, DR + 2 * i, SR + 2 * i
            for j, r in enumerate((x0, x0 + 1, d0, d0 + 1)):
                e(f"v_lshlrev_b32 v{T+2*j}, 16, v{r}"); e(f"v_and_b32 v{T+2*j+1}, {M}, v{r}")
            for j in range(4):
                e(f"v_fma_f32 v{T+8+j}, v{T+j}, v{s0}, v{s0+1}")
            for rnd in range(2):
                e(f"v_cvt_pk_bf16_f32 v{T+12}, v{T+8}, v{T+9}"); e(f"v_cvt_pk_bf16_f32 v{T+13}, v{T+10}, v{T+11}")
                e(f"v_lshlrev_b32 v{T+8}, 16, v{T+12}"); e(f"v_and_b32 v{T+9}, {M}, v{T+12}")
                e(f"v_lshlrev_b32 v{T+10}, 16, v{T+13}"); e(f"v_and_b32 v{T+11}, {M}, v{T+13}")
                if rnd == 0:
                    for j in (0, 2):
                        e(f"v_pk_mul_f32 v[{T+8+j}:{T+9+j}], v[{T+8+j}:{T+9+j}], v[{T+4+j}:{T+5+j}]")
            o = T + 16 + 4 * (i % 2)
            for j in (0, 2):
                e(f"v_pk_add_f32 v[{o+j}:{o+j+1}], v[{T+j}:{T+j+1}], v[{T+8+j}:{T+9+j}]")
            e(f"ds_write_b128 v{V_PK}, v[{o}:{o+3}] offset:{1024*i}")
        e("s_branch K2_START")

    def phase2(self):
        p, e, opt = self.p, self.p.e, self.opt
        fill, tok, st, ld = [], {}, {}, []
        cur, cnt = {"g": 0}, {"m": 0}
        NS, F = 5, opt.get("k2_fuse", 3)
        PD = NS - 1

        def q(*texts):
            for t in texts:
                fill.append(t if callable(t) else (lambda t=t: e(t)))

        def pull(budget):
            start = p.slots
            while fill and p.slots - start < budget:
                it = fill[0]
                if isinstance(it, tuple):
                    if not it[0]():
                        return
                    fill.pop(0)
                    continue
                fill.pop(0)
                it()

        def lag(n):
            mark = {}
            q(lambda: mark.__setitem__("m", cnt["m"]))
            fill.append((lambda: cnt["m"] >= mark["m"] + n or cur["g"] > 98,))

        J = opt.get("k2_j", 2)
        steps = [(0, i) for i in range(6)] + [(1, i) for i in range(J)] + [(0, i) for i in range(6, 12)] + \
                [(1, i) for i in range(J, 12)]
        G1 = 12 + J
        GL = 6 + J

        def loads(g):
            t, i = steps[g]

            return [lambda f=f: tok.__setitem__(g, self.a_load(g, t, i, f)) for f in range(4)]

        def done_load():
            e(f"v_mov_b32 v15, s{S_EPOCH}")
            e("s_mov_b64 exec, 0xffff")
            st["dn"] = e(f"buffer_load_dword v15, v2, {srd(SWS)}, s{S_DN} offen sc1")
            e("s_mov_b64 exec, -1")

        def done_check():
            e(f"v_cmp_ne_u32 vcc, s{S_EPOCH}, v15")
            e("s_cbranch_vccnz K2_LATE_SLOW")

        def tile_to_lds(acc):
            return [f"ds_write_b128 v{V_WA}, v[{acc+(cb*4+rb)*4}:{acc+(cb*4+rb)*4+3}] offset:{rb*5376 + cb*64}"
                    for cb in range(5) for rb in range(4)]

        def barrier():
            p.wait_all(vm=False)
            e("s_barrier")

        def part_loads():
            for i in range(5):
                r = ACC1 + 16 * i + 8
                va, off = (V_L16, 1024 * i) if i < 4 else (V_L16B, 0)
                st["pi"] = e(f"buffer_load_dwordx4 v[{r}:{r+3}], v{va}, {srd(SWS)}, s{S_PI} offen offset:{off} sc1")

        def part_check():
            for i in range(5):
                for k in range(4):
                    r = ACC1 + 16 * i + 8 + k
                    if i + k == 0:
                        e(f"v_xor_b32 v{V_T+1}, s{S_TG}, v{r}")
                    else:
                        e(f"v_bitop3_b32 v{V_T+1}, v{V_T+1}, v{r}, s{S_TG+k} bitop3:0xf6")
            e(f"v_and_b32 v{V_T+1}, v{V_T}, v{V_T+1}")
            e(f"v_cmp_ne_u32 vcc, 0, v{V_T+1}")
            e("s_cbranch_vccnz K2_SLOW")

        def first_tile_done():
            for x in tile_to_lds(ACC1):
                q(x)
                lag(opt.get("k2_wlag", 2))
            lag(opt.get("k2_blag", 4))
            q(barrier)
            for i in range(5):
                for wv in range(4):
                    r = ACC1 + 16 * i + 4 * wv
                    q(lambda i=i, r=r, wv=wv: st.__setitem__(("rd", i), e(
                        f"ds_read_b128 v[{r}:{r+3}], v{V_LA+i} offset:{wv*21504}")))
            for i in range(5):
                r = ACC1 + 16 * i
                q(lambda i=i: p.wait(st["rd", i]))
                for k in range(4):
                    q(f"v_add_f32 v{r+k}, v{r+k}, v{r+4+k}", f"v_add_f32 v{r+8+k}, v{r+8+k}, v{r+12+k}")
                q(*[f"v_add_f32 v{r+k}, v{r+k}, v{r+8+k}" for k in range(4)])
                q(*[f"v_bfi_b32 v{r+k}, v{V_T}, s{S_TG+k}, v{r+k}" for k in range(4)])
                va, off = (V_L16, 1024 * i) if i < 4 else (V_L16B, 0)
                q(f"buffer_store_dwordx4 v[{r}:{r+3}], v{va}, {srd(SWS)}, s{S_PO} offen offset:{off} sc1")
            q("s_barrier")
            for i in range(5):
                r = ACC1 + 16 * i + 4
                q(lambda i=i, r=r: st.__setitem__("pk", e(f"ds_read_b128 v[{r}:{r+3}], v{V_PK} offset:{1024*i}")))
            fill.append((lambda: cnt["m"] >= opt.get("k2_pollm", 440),))
            q(part_loads)

        def mfma(g, cb, rb):
            t, i = steps[g]
            acc = ACC2 if t else ACC1
            w = WMAP[5 * i + cb]
            c = f"v[{acc+(cb*4+rb)*4}:{acc+(cb*4+rb)*4+3}]"
            start = p.slots
            e(f"v_mfma_f32_16x16x32_bf16 {c}, a[{w}:{w+3}], {slot(g, rb)}, {c if i else 0}")
            cnt["m"] += 1
            if cnt["m"] % 4 == 2 and ld:
                ld.pop(0)()
            elif cnt["m"] % 4 == 0 and wrest:
                wrest.pop(0)()
            return start

        p.label("K2_START")
        p.vq, p.vdone, p.lq, p.ldone = 16, 0, 5, 0
        for g in range(4):
            tok[g] = ("v", 4 * g + 4)
        self.stamp(10)
        if opt.get("stamp"):
            e(f"s_mov_b32 s{S_WB+2}, s{S_SPIN}")
        e(f"s_mov_b32 s{S_SPIN}, 0")
        e(f"s_mov_b32 s{S_WB+1}, 0")
        wrest = list(self.w_rest)
        for g in range(24 - F):
            cur["g"] = g
            if g + PD + opt.get("k2_dlead", 2) == GL:
                done_load()
            if g == G1:
                self.stamp(11)
                first_tile_done()
            p.wait(tok[g])
            if g + PD == GL:
                p.wait(st["dn"])
                done_check()
                p.label("K2_LATE_OK")
            if g + PD < 24:
                ld.extend(loads(g + PD))
            for cb in range(5):
                for rb in range(4):
                    start = mfma(g, cb, rb)
                    pull(opt.get("k2_b2", 4) - (p.slots - start))
            while ld:
                ld.pop(0)()
        cur["g"] = 98
        wr, tl = [], tile_to_lds(ACC2)
        for cb in range(5):
            n = 0
            for g in range(24 - F, 24):
                p.wait(tok[g])
                for rb in range(4):
                    start = mfma(g, cb, rb)
                    n += 1
                    if wr and n > 2 and (n - 3) % max(1, F - 1) == 0:
                        e(wr.pop(0))
                    pull(opt.get("k2_b2", 4) - (p.slots - start))
            for x in wr:
                e(x)
            wr = tl[4 * cb:4 * cb + 4]
        cur["g"] = 99
        self.stamp(12)
        pull(10000)
        assert not fill
        for x in wr:
            e(x)
        p.wait(st["pi"], st["pk"])
        part_check()
        p.label("K2_OK")
        e(f"s_mov_b32 s{S_DIV}, 0xffffff00")
        for i in range(5):
            s = ACC1 + 16 * i
            for k in range(4):
                e(f"v_and_b32 v{s+8+k}, s{S_DIV}, v{s+8+k}")
            for k in range(0, 4, 2):
                e(f"v_pk_add_f32 v[{s+k}:{s+k+1}], v[{s+4+k}:{s+5+k}], v[{s+8+k}:{s+9+k}]")
        barrier()
        rd = {}
        for i in range(5):
            for wv in range(4):
                r = ACC2 + 16 * i + 4 * wv
                rd[i] = e(f"ds_read_b128 v[{r}:{r+3}], v{V_LA+i} offset:{wv*21504}")
        for i in range(5):
            r, s = ACC2 + 16 * i, ACC1 + 16 * i
            p.wait(rd[i])
            for k in range(0, 4, 2):
                e(f"v_pk_add_f32 v[{r+k}:{r+k+1}], v[{r+k}:{r+k+1}], v[{r+4+k}:{r+5+k}]")
                e(f"v_pk_add_f32 v[{r+8+k}:{r+9+k}], v[{r+8+k}:{r+9+k}], v[{r+12+k}:{r+13+k}]")
                e(f"v_pk_add_f32 v[{s+k}:{s+k+1}], v[{s+k}:{s+k+1}], v[{r+k}:{r+k+1}]")
            for k in range(0, 4, 2):
                e(f"v_pk_add_f32 v[{s+k}:{s+k+1}], v[{s+k}:{s+k+1}], v[{r+8+k}:{r+9+k}]")
            e(f"buffer_store_dwordx4 v[{s}:{s+3}], v{V_OA+i}, {srd(SO)}, s{S_OO} offen{opt.get('owt', ' sc1')}")
        e(f"s_or_b32 s{S_T0}, s2, s{S_W}")
        e(f"s_cmp_eq_u32 s{S_T0}, 0")
        e(f"s_cselect_b32 s{S_T0}, {EPOCH_OFF}, s{S_OOB}")
        e(f"v_mov_b32 v{V_T}, s{S_EPOCH}")
        e("s_mov_b64 exec, 1")
        e(f"buffer_store_dword v{V_T}, off, {srd(SWS)}, s{S_T0} sc1")
        e("s_mov_b64 exec, -1")
        if opt.get("stamp"):
            tm = "s_memrealtime" if opt.get("rt") else "s_memtime"
            e(f"{tm} s[{SA1}:{SA1+1}]")
            p.wait_all()
            e(f"{tm} s[{SA1+2}:{SA1+3}]")
            e(f"s_memrealtime s[{S_M2}:{S_M2+1}]")
            e(f"s_lshl_b32 s{S_T0}, s2, 2"); e(f"s_add_u32 s{S_T0}, s{S_T0}, s{S_W}")
            e(f"s_lshl_b32 s{S_T0}, s{S_T0}, 7"); e(f"s_add_u32 s{S_T0}, s{S_T0}, {STAMP1_OFF}")
            e("s_waitcnt lgkmcnt(0)")
            for k, r in enumerate(STAMP_REGS + [SA1, SA1 + 2, 94, S_M2, S_WB + 2, S_SPIN, S_WB + 1]):
                e(f"v_mov_b32 v6, s{r}")
                e(f"buffer_store_dword v6, off, {srd(SWS)}, s{S_T0} offset:{4*k}")
        p.label("K1_END")
        e("s_endpgm")
        p.label("K2_LATE_SLOW")
        e(f"s_sleep {opt.get('done_sleep', 8)}")
        e(f"s_add_u32 s{S_WB+1}, s{S_WB+1}, 1")
        e(f"s_cmp_gt_u32 s{S_WB+1}, 100000")
        e("s_cbranch_scc1 K2_LATE_OK")
        done_load()
        e("s_waitcnt vmcnt(0)")
        done_check()
        e("s_branch K2_LATE_OK")
        p.label("K2_SLOW")
        e("s_sleep 2")
        e(f"s_add_u32 s{S_SPIN}, s{S_SPIN}, 1")
        e(f"s_cmp_gt_u32 s{S_SPIN}, 100000")
        e("s_cbranch_scc1 K2_OK")
        part_loads()
        e("s_waitcnt vmcnt(0)")
        part_check()
        e("s_branch K2_OK")

    def build(self):
        p, e, o = self.p, self.p.e, self.opt
        self.prologue()
        e(f"s_cmp_eq_u32 s{S_TYPE}, 2")
        e("s_cbranch_scc1 K1_TYPE_C")
        e(f"s_cmp_eq_u32 s{S_TYPE}, 1")
        e("s_cbranch_scc1 K1_TYPE_B")
        snap = self.snapshot()
        g1, g2 = o.get("lb_issue", 200), o.get("lb_check", 225)
        fa = o.get("fork_at", 65)
        late = o.get("job_late")
        jf = lambda tmp: self.flag_later(tmp, o.get("jf_delay"), lambda: self.job_store, JF_OFF, S_CG, S_MT)
        d1 = lambda tmp, dl: self.flag_later(tmp, dl, lambda t=self.last_store: t, DONE1_OFF, S_MT, S_CG)
        head = [("S", i, 0) for i in range(5)] + [("F", i, S_D1) for i in range(10)]
        for typ in "AB":
            if typ == "B":
                p.label("K1_TYPE_B")
                self.restore(snap)
            m0 = self.mf
            fb = self.fork_job(typ, m0, 188, RAW + 132 if fa >= 65 else 48)

            def a1():
                self.stamp(4)
                if fa == 65:
                    self.stats_to_lds()
                self.ssm_reduce(0, ACC_S, 188, True)

            def a1b(typ=typ, m0=m0):
                if fa == 65:
                    a1()
                self.q_done = False
                self.ssm_pre(0, ACC_S, ACC_D2)
                self.ssm_finish(0, ACC_S, 188, lambda: self.mf - m0 >= g1, lambda: self.mf - m0 >= g2, typ, ACC_D2)

            def a2():
                while not self.q_done:
                    it = self.fill.pop(0)
                    if not isinstance(it, tuple):
                        it()
                self.stamp(5)
                self.ffn_epilogue(ACC_D1, S_KD1)
                self.fill.append(lambda: d1(226, o.get("d1_delay")))
            hooks = {fb: lambda a1b=a1b: (jf(224), a1b())}
            if fb < 70:
                hooks = {fb: lambda: jf(V_PRE + 5), 81: lambda a1=a1, a1b=a1b: (a1(), a1b()), 70: self.stats_to_lds}
            elif fa != 65:
                hooks[81] = a1
                hooks[70] = self.stats_to_lds
            if late:
                for q5, at in enumerate(late):
                    hooks[at] = self.job_ld[q5]
            frags = self.s_frags(0, ACC_S) + self.d_frags(5, ACC_D1)
            if typ == "A":
                j1 = o.get("jf_at", 240)
                hooks.update({240: a2, j1 - 23: lambda: self.jf_load(224), j1 + 1: lambda: self.jf_check(224, "A", 240, 4)})
                self.run(head + [("F", i, S_D2) for i in range(10)], frags + self.d_frags(15, ACC_D2), hooks)
                self.stamp(6)
                self.flush()
                if o.get("d1_at_end", 1):
                    self.fire_timers()
                tw = o.get("tail_w", 3)
                self.ffn_tail(ACC_D2, S_KD2, {(0, 0): lambda: self.w_some(tw), (0, 1): lambda: self.w_some(tw),
                                              (1, 0): self.fire_timers})
            else:
                self.run(head, frags, hooks)
                self.stamp(5)
                self.mf += 1000
                self.fire_timers()
                self.flush()
                self.stamp(6)
                self.jf_load(224)
                self.ffn_tail(ACC_D1, S_KD1)
                self.jf_check(224, "B", 0, 1)
            self.stamp(7)
            self.phase2_head(8, typ)
        p.label("K1_TYPE_C")
        self.restore(snap)
        stages = [("S", i % 5, i // 5) for i in range(15)]
        m0 = self.mf
        self.opt = dict(o, fork_at=o.get("fork_at_c", 65))
        fb = self.fork_job("C", m0, 112, 136)
        assert fb > 81

        def c1():
            self.stamp(4)
            self.stats_to_lds()
            jf(168)
            self.ssm_reduce(0, 16, 152)
            for b in (1, 2):
                self.q(*self.ssm_consts(b, V_C + 12 * b + 6, 112))
                self.zero_row(b, 112)

        def c2():
            self.stamp(5)
            self.ssm_reduce(1, 48, 152)
            self.ssm_finish(0, 16, 112, None, lambda: self.mf - m0 >= 215, "C0")
        hooks = {fb: c1, 161: c2, 215: lambda: self.jf_load(168)}
        if late:
            for q5 in range(5):
                hooks[4 + 10 * q5] = self.job_ld[q5]
        self.run(stages, self.s_frags(0, 16) + self.s_frags(5, 48) + self.s_frags(10, 80), hooks)
        self.stamp(6)
        self.jf_check(168, "C", 0, 1)
        self.mf += 1000
        we = o.get("c_wevery", 16)
        self.flush(we)
        self.ssm_reduce(2, 80, 152)
        self.ssm_finish(1, 48, 112, None, None, "C1")
        self.flush(we)
        self.stamp(7)
        d1(168, 0)
        self.ssm_finish(2, 80, 112, None, None, "C2")
        self.fill.insert(o.get("c_d1_at", 60), self.fire_timers)
        self.flush(o.get("c_wevery2", 0))
        self.phase2_head(8, "C")
        self.slow_paths()
        self.poll_paths()
        self.phase2()
        p.fix_hazards()
        return p


DESC = K1_DESC.replace("proj_kernel", NAME)
```

```python
import struct
from asmlib import Prog, cost_of
from layout import *

S_W, S_MT, S_CG, S_R = 4, 5, 6, 7
SX, SS, SF, SWS, SA1, SA2 = 8, 12, 16, 20, 24, 28
S_T0, S_T1, S_T2, S_T3 = 32, 33, 34, 35
K_X, K_LRE, K_LIM, K_BRE, K_BIM, K_CRE, K_CIM, K_LDT = 36, 38, 40, 42, 44, 46, 48, 50
K_DSK, K_BX, K_WG, K_WU, K_WD, K_OUT, K_DBG, K_WS = 52, 54, 56, 58, 60, 62, 64, 66
S_KS = 68
S_KF = 73
S_W4K, S_XB, S_SB, S_SBROW, S_D1, S_D2, S_TYPE, S_EPOCH, S_MASK = 78, 79, 80, 81, 82, 83, 84, 85, 86
S_A2ROW, S_GK2, S_JOB, S_KD1, S_KD2, S_SPIN, S_J1 = 87, 88, 89, 90, 91, 92, 93
S_J2 = 3
STAMP_REGS = [96, 54, 64, 36, 38, 40, 50, 66, 42, 44, 56, 58, 46]
S_HM = 98
S_M2 = 100

V_LANE, V_OF, V_TR, V_STA, V_GK1, V_SEG, V_PUB, V_XW, V_XR = 1, 2, 6, 10, 11, 12, 13, 14, 15
RAW = 16
ACC_S, ACC_D1, ACC_D2 = 16, 48, 112
V_C = 176
V_OS = 212
V_AS = 216
V_JC = 228
V_JW = 208
V_LBO = 232
V_TW = 234
V_PRE = 237
V_STAMP = 243
V_X = 244
XN = 0
FR = 160

LDS_SCR = 131072
SCR_W = 8192
XCH = LDS_SCR + 6144
STL = LDS_SCR + 3 * SCR_W + 6144
K1_LDS = 163840

LOG2E = 1.4426950408889634
GK1 = -2.0 * 0.7978845608028654 * LOG2E
GK2 = GK1 * 0.044715


def fx(x):
    return "0x%08x" % struct.unpack("<I", struct.pack("<f", x))[0]


def srd(n):
    return f"s[{n}:{n+3}]"


class K1:
    def __init__(self, opt):
        self.opt = opt
        self.p = Prog()
        self.fill = []
        self.dq = []
        self.norm = []
        self.stage_tok = {}
        self.pre_barrier = []
        self.nbar = 0
        self.mf = 0
        self.seen = set()
        self.slow = []
        self.refused = []
        self.after_first_barrier = None
        self.wt = opt.get("wt", " sc1")
        self.name = "proj_kernel"
        self.fused = False
        self.wq = []
        self.last_store = None
        self.vgap = 0
        self.on_barrier = []
        self.timers = []
        self.lazy = []
        self.in_fork = False
        self.fork = None
        self.vjc = V_JC

    def stamp(self, k, x=False):
        if not self.opt.get("stamp") or (k >= 10 and not x and self.opt.get("xstamps")):
            return
        r = STAMP_REGS[k]
        ins = "s_memrealtime" if self.opt.get("rt") else "s_memtime"
        self.p.e(f"{ins} s[{r}:{r+1}]")
        if self.opt.get("verbose"):
            print("stamp", k, "slots", self.p.slots, "fill left", len(self.fill))

    def stamp_out(self, n):
        if not self.opt.get("stamp"):
            return
        p, e = self.p, self.p.e
        self.stamp(n)
        p.wait_all()
        self.stamp(n + 1)
        e(f"s_memrealtime s[{S_M2}:{S_M2+1}]")
        e(f"s_lshl_b32 s{S_T0}, s2, 2"); e(f"s_add_u32 s{S_T0}, s{S_T0}, s{S_W}")
        e(f"s_lshl_b32 s{S_T0}, s{S_T0}, 6"); e(f"s_add_u32 s{S_T0}, s{S_T0}, {STAMP1_OFF}")
        e("s_waitcnt lgkmcnt(0)")
        for k, r in enumerate(STAMP_REGS[:13]):
            e(f"v_mov_b32 v{V_STAMP}, s{r}")
            e(f"buffer_store_dword v{V_STAMP}, off, {srd(SWS)}, s{S_T0} offset:{4*k}")
        for k, r in ((13, S_SPIN), (14, 94), (15, S_M2)):
            e(f"v_mov_b32 v{V_STAMP}, s{r}")
            e(f"buffer_store_dword v{V_STAMP}, off, {srd(SWS)}, s{S_T0} offset:{4*k}")

    def issue_stage(self, n, kind, i, arg):
        e = self.p.e
        slot = n % 8

        def piece(q):
            if q == 0:
                e(f"s_mov_b32 m0, s{S_J1}" if kind in "WJ" else f"s_add_u32 m0, s{S_W4K}, {slot*16384}")
                if kind == "S":
                    e(f"s_add_u32 s{S_T0}, s{S_SBROW}, s{S_KS+i}")
                    if arg:
                        e(f"s_add_u32 s{S_T0}, s{S_T0}, {arg*32*1280}")
                elif kind == "F":
                    e(f"s_add_u32 s{S_T0}, s{arg}, s{S_KF+(i>>1)}")
                    if i & 1:
                        e(f"s_add_u32 s{S_T0}, s{S_T0}, {64*3456}")
                elif kind == "J":
                    e(f"s_mov_b32 s{S_T0}, s{S_JOB}")
                else:
                    self.job_source(kind, i)
            vo, d, off = {"S": (V_OS + q, SS, q), "F": (V_OF + q, SF, q), "W": (V_JW + q, SA1, q),
                          "C": (self.vjc + q % 2, SA1 if q < 2 else SA2, q % 2),
                          "J": (self.vjc + q % 2, SA1 if q < 2 else SA2, q % 2)}[kind]
            if kind in "CJ" and q == 2:
                e("s_add_u32 m0, m0, 2048")
                if kind == "J":
                    e(f"s_add_u32 s{S_T0}, s{S_T0}, s{S_XB}")
            t = e(f"buffer_load_dwordx4 v{vo}, {srd(d)}, s{S_T0} offen offset:{1024*off} lds")
            if q == 3:
                self.stage_tok[n] = t
        for q in range(4):
            self.dq.append(lambda q=q: piece(q))

    def dma(self):
        if self.dq:
            self.dq.pop(0)()

    def barrier(self, *toks):
        p = self.p
        p.wait(*toks, *self.pre_barrier)
        self.pre_barrier = []
        for it in [x for x in self.lazy if x[0][1] <= p.vdone]:
            self.lazy.remove(it)
            self.on_barrier.append(it[1])
        p.e("s_barrier")
        self.nbar += 1
        cbs, self.on_barrier = self.on_barrier, []
        for f in cbs:
            f()
        if self.after_first_barrier:
            f, self.after_first_barrier = self.after_first_barrier, None
            f()

    def pull(self, budget):
        p = self.p
        start = p.slots
        while self.fill and p.slots - start < budget:
            it = self.fill[0]
            if isinstance(it, tuple):
                if not it[1]():
                    return
                self.fill.pop(0)
                continue
            if p.slots - start + getattr(it, "cost", 1) > budget and not (it in self.refused):
                self.refused.append(it)
                return
            self.fill.pop(0)
            it()

    def flush(self, wevery=0):
        mark = self.p.slots
        while self.fill:
            if wevery and len(self.wq) > self.opt.get("w_keep", 12) and self.p.slots - mark >= wevery:
                self.wq.pop(0)()
                mark = self.p.slots
            it = self.fill.pop(0)
            if isinstance(it, tuple):
                if it[0] == "bar" and not it[1]():
                    self.barrier()
                continue
            it()

    def gemm(self, frags, plan, hooks=None):
        p, o = self.p, self.opt
        LA = 7
        toks = {}
        n = len(frags)

        def read(idx):
            fr = frags[idx]
            st = fr["stage"]
            if st not in self.seen:
                self.seen.add(st)
                while st not in self.stage_tok:
                    self.dma()
                self.barrier(self.stage_tok[st])
                if st in plan:
                    plan[st]()
            r = FR + 4 * (idx % 8)
            for txt in fr["reads"]:
                toks[idx] = p.e(txt.format(f0=r, f1=r + 1, f2=r + 2, f3=r + 3))
        for idx in range(LA):
            read(idx)
        grp = o.get("wgrp", 4)
        def step(idx):
            if hooks and idx in hooks:
                hooks[idx]()
            for tm in [t for t in self.timers if t[0] <= self.mf]:
                self.timers.remove(tm)
                tm[1]()
            if idx in o.get("xstamps", []):
                self.stamp(10 + o["xstamps"].index(idx), True)
            if idx % grp == 0:
                p.wait(toks[min(idx + grp - 1, n - 1)])
            start = p.slots
            r = FR + 4 * (idx % 8)
            p.e(frags[idx]["mfma"].format(f0=r, f3=r + 3))
            self.mf += 1
            if idx + LA < n:
                read(idx + LA)
            dper = o.get("dper", 4)
            if self.dq and (idx % dper == 1 or (len(self.dq) > 4 and idx % 2 == 1)):
                self.dma()
                self.vgap = idx
            elif len(self.wq) > o.get("w_keep", 12) and idx - self.vgap >= (o.get("wpace1", 2) if self.dq else o.get("wpace2", 3)):
                n_w = 60 - len(self.wq)
                if n_w < 16 + (idx + 1 - self.wfrom) // self.wper:
                    self.wq.pop(0)()
                    self.vgap = idx
            if self.norm:
                if self.in_fork:
                    self.pull(o.get("fork_bud", 4))
                for x in self.norm.pop(0):
                    p.e(x)
            elif o.get("interleave", 1):
                bud = o.get("budget", 8)
                for lo, hi, v in o.get("boost", []):
                    if lo <= idx < hi:
                        bud = v
                self.pull(bud - (p.slots - start) - (1 if (idx + 1) % grp == 0 else 0))


        idx = 0
        while idx < n:
            if self.fork and idx == self.fork[0]:
                a, b, pre, var1, var2, tag = self.fork
                self.fork = None
                pre()
                assert not self.fill
                snap, tk = self.snapshot(), dict(toks)
                self.in_fork = True
                var1()
                for i in range(a, b):
                    step(i)
                assert not self.fill
                p.e(f"s_branch FORK_JOIN_{tag}")
                end1, tk1 = self.snapshot(), dict(toks)
                p.label(f"FORK_ALT_{tag}")
                self.restore(snap)
                toks.clear(); toks.update(tk)
                var2()
                for i in range(a, b):
                    step(i)
                assert not self.fill
                end2 = self.snapshot()
                assert end1[:5] == end2[:5] and all(tk1[k] == toks[k] for k in toks if k >= b)
                p.label(f"FORK_JOIN_{tag}")
                self.in_fork = False
                idx = b
            else:
                step(idx)
                idx += 1

    def s_frags(self, st0, acc):
        out = []
        for s in range(40):
            st = st0 + s // 8
            slot = st % 8
            for mat in range(2):
                a = V_AS + 8 * (slot // 4) + (s % 8)
                off = (slot % 4) * 16384 + mat * 8192
                c = f"v[{acc+16*mat}:{acc+16*mat+15}]"
                cin = c if s else "0"
                out.append(dict(stage=st, reads=[f"ds_read_b128 a[{{f0}}:{{f3}}], v{a} offset:{off}"],
                                mfma=f"v_mfma_f32_32x32x16_bf16 {c}, a[{XN+4*s}:{XN+4*s+3}], a[{{f0}}:{{f3}}], {cin}"))
        return out

    def d_frags(self, st0, acc):
        out = []
        for s in range(40):
            st = st0 + s // 4
            slot = st % 8
            for j in range(2):
                for mat in range(2):
                    a = V_TR + 2 * (slot // 4) + j
                    off = (slot % 4) * 16384 + mat * 8192 + (s % 4) * 2048
                    r = acc + 32 * j + 16 * mat
                    c = f"v[{r}:{r+15}]"
                    cin = c if s else "0"
                    out.append(dict(stage=st, reads=[
                        f"ds_read_b64_tr_b16 a[{{f0}}:{{f1}}], v{a} offset:{off}",
                        f"ds_read_b64_tr_b16 a[{{f2}}:{{f3}}], v{a} offset:{off+512}"],
                        mfma=f"v_mfma_f32_32x32x16_bf16 {c}, a[{{f0}}:{{f3}}], a[{XN+4*s}:{XN+4*s+3}], {cin}"))
        return out

    def q(self, *texts):
        for t in texts:
            if isinstance(t, list):
                f = lambda t=t: [self.p.e(x) for x in t]
                f.cost = len(t)
            else:
                f = lambda t=t: self.p.e(t)
                f.cost = cost_of(t)
            self.fill.append(f)

    def lag(self, n):
        st = {}
        self.fill.append(lambda: st.__setitem__("m", self.mf))
        self.fill.append(("t", lambda: self.mf >= st["m"] + n))

    def ffn_tail(self, acc, s_k, mid=None):
        e = self.p.e
        T, K = V_X, ACC_S
        e(f"v_mov_b32 v{K}, v{V_GK1}"); e(f"v_mov_b32 v{K+1}, v{V_GK1}")
        e(f"v_mov_b32 v{K+2}, s{S_GK2}"); e(f"v_mov_b32 v{K+3}, s{S_GK2}")
        e(f"v_mov_b32 v{K+4}, 1.0"); e(f"v_mov_b32 v{K+5}, 1.0")
        for j in range(2):
            g0, u0 = acc + 32 * j, acc + 32 * j + 16
            for half in range(2):
                prs = [(g0 + 8 * half + 2 * k, u0 + 8 * half + 2 * k, K + 6 + 2 * k) for k in range(4)]
                pr = lambda r: f"v[{r}:{r+1}]"
                for g, u, t in prs:
                    e(f"v_pk_mul_f32 {pr(t)}, {pr(g)}, {pr(g)}")
                for g, u, t in prs:
                    e(f"v_pk_fma_f32 {pr(t)}, {pr(t)}, {pr(K+2)}, {pr(K)}")
                for g, u, t in prs:
                    e(f"v_pk_mul_f32 {pr(t)}, {pr(t)}, {pr(g)}")
                for g, u, t in prs:
                    e(f"v_exp_f32 v{t}, v{t}")
                    e(f"v_pk_mul_f32 {pr(u)}, {pr(u)}, {pr(g)}")
                    e(f"v_exp_f32 v{t+1}, v{t+1}")
                for g, u, t in prs:
                    e(f"v_pk_add_f32 {pr(t)}, {pr(t)}, {pr(K+4)}")
                d = T + 4 + 4 * half
                for k, (g, u, t) in enumerate(prs):
                    e(f"v_rcp_f32 v{t}, v{t}")
                    if k:
                        g1, u1, t1 = prs[k - 1]
                        e(f"v_pk_mul_f32 {pr(u1)}, {pr(u1)}, {pr(t1)}")
                    e(f"v_rcp_f32 v{t+1}, v{t+1}")
                    if k:
                        e(f"v_cvt_pk_bf16_f32 v{d+k-1}, v{u1}, v{u1+1}")
                if j == 1 and half == 0:
                    e(f"s_add_u32 s{s_k}, s{s_k}, 4096")
                if mid and (j, half) in mid:
                    mid[j, half]()
                g1, u1, t1 = prs[3]
                e(f"v_pk_mul_f32 {pr(u1)}, {pr(u1)}, {pr(t1)}")
                e(f"v_cvt_pk_bf16_f32 v{d+3}, v{u1}, v{u1+1}")
                self.last_store = e(f"buffer_store_dwordx4 v[{d}:{d+3}], v{V_STA}, {srd(SWS)}, s{s_k} offen offset:{512*half}{self.wt}")

    def ffn_epilogue(self, acc, s_k):
        T = V_X
        for j in range(2):
            g0, u0 = acc + 32 * j, acc + 32 * j + 16
            for half in range(2):
                for pair in range(4):
                    i = 8 * half + 2 * pair
                    ga, gb, ua, ub = g0 + i, g0 + i + 1, u0 + i, u0 + i + 1
                    ta, tb = T + 2 * (pair % 2), T + 2 * (pair % 2) + 1
                    d = T + 4 + 4 * half + pair
                    self.q(f"v_mul_f32 v{ta}, v{ga}, v{ga}", f"v_mul_f32 v{tb}, v{gb}, v{gb}",
                           f"v_fma_f32 v{ta}, v{ta}, s{S_GK2}, v{V_GK1}", f"v_fma_f32 v{tb}, v{tb}, s{S_GK2}, v{V_GK1}",
                           f"v_mul_f32 v{ta}, v{ta}, v{ga}", f"v_mul_f32 v{tb}, v{tb}, v{gb}",
                           f"v_exp_f32 v{ta}, v{ta}", f"v_exp_f32 v{tb}, v{tb}",
                           f"v_mul_f32 v{ua}, v{ua}, v{ga}", f"v_mul_f32 v{ub}, v{ub}, v{gb}",
                           f"v_add_f32 v{ta}, 1.0, v{ta}", f"v_add_f32 v{tb}, 1.0, v{tb}",
                           f"v_rcp_f32 v{ta}, v{ta}", f"v_rcp_f32 v{tb}, v{tb}",
                           f"v_mul_f32 v{ua}, v{ua}, v{ta}", f"v_mul_f32 v{ub}, v{ub}, v{tb}",
                           f"v_cvt_pk_bf16_f32 v{d}, v{ua}, v{ub}")
                d = T + 4 + 4 * half
                if j == 1 and half == 0:
                    self.q(f"s_add_u32 s{s_k}, s{s_k}, 4096")
                f = lambda d=d, half=half: setattr(self, "last_store", self.p.e(
                    f"buffer_store_dwordx4 v[{d}:{d+3}], v{V_STA}, {srd(SWS)}, s{s_k} offen offset:{512*half}{self.wt}"))
                f.cost = 2
                self.fill.append(f)

    @staticmethod
    def cmul(dr, di, ar, ai, br, bi):
        return [f"v_mul_f32 v{dr}, v{ar}, v{br}", f"v_mul_f32 v{di}, v{ar}, v{bi}",
                f"v_fma_f32 v{dr}, -v{ai}, v{bi}, v{dr}", f"v_fma_f32 v{di}, v{ai}, v{br}, v{di}"]

    def ssm_consts(self, b, praw, u):
        c = V_C + 12 * b
        lr, li, dt = praw, praw + 1, praw + 2
        L = [f"v_lshlrev_b32 v{lr}, 16, v{lr}", f"v_lshlrev_b32 v{li}, 16, v{li}", f"v_lshlrev_b32 v{dt}, 16, v{dt}",
             f"v_mul_f32 v{dt}, {fx(LOG2E)}, v{dt}", f"v_exp_f32 v{dt}, v{dt}",
             f"v_cvt_pk_bf16_f32 v{dt}, v{dt}, v{dt}", f"v_lshlrev_b32 v{dt}, 16, v{dt}",
             f"v_mul_f32 v{u}, v{dt}, v{lr}", f"v_mul_f32 v{u+1}, v{dt}, v{li}",
             f"v_mul_f32 v{u}, {fx(LOG2E)}, v{u}", f"v_mul_f32 v{u+1}, 0.15915494, v{u+1}",
             f"v_exp_f32 v{u}, v{u}", f"v_fract_f32 v{u+1}, v{u+1}",
             f"v_cos_f32 v{u+2}, v{u+1}", f"v_sin_f32 v{u+3}, v{u+1}",
             f"v_mul_f32 v{c}, v{u}, v{u+2}", f"v_mul_f32 v{c+1}, v{u}, v{u+3}",
             f"v_add_f32 v{u}, -1.0, v{c}",
             f"v_mul_f32 v{u+1}, v{lr}, v{lr}", f"v_fma_f32 v{u+1}, v{li}, v{li}, v{u+1}",
             f"v_rcp_f32 v{u+1}, v{u+1}",
             f"v_mul_f32 v{u+2}, v{u}, v{lr}", f"v_fma_f32 v{u+2}, v{c+1}, v{li}, v{u+2}",
             f"v_mul_f32 v{u+3}, v{c+1}, v{lr}", f"v_fma_f32 v{u+3}, -v{u}, v{li}, v{u+3}",
             f"v_add_f32 v{u+1}, v{u+1}, v{u+1}",
             f"v_mul_f32 v{c+2}, v{u+2}, v{u+1}", f"v_mul_f32 v{c+3}, v{u+3}, v{u+1}"]
        L += self.cmul(u, u + 1, c, c + 1, c, c + 1)
        L += self.cmul(u + 2, u + 3, u, u + 1, u, u + 1)
        L += self.cmul(u, u + 1, u + 2, u + 3, u + 2, u + 3)
        L += self.cmul(c + 4, c + 5, u, u + 1, u, u + 1)
        L += self.cmul(u, u + 1, c + 4, c + 5, c + 4, c + 5)
        L += self.cmul(u + 2, u + 3, u, u + 1, u, u + 1)
        L += self.cmul(c + 8, c + 9, u + 2, u + 3, u + 2, u + 3)
        L += self.cmul(c + 10, c + 11, c + 8, c + 9, c + 8, c + 9)
        hm, m2 = f"s[{S_HM}:{S_HM+1}]", f"s[{S_M2}:{S_M2+1}]"
        L += [f"v_cndmask_b32 v{u+4}, 1.0, v{c+4}, {hm}", f"v_cndmask_b32 v{u+5}, 0, v{c+5}, {hm}",
              [f"s_bitcmp1_b32 s{S_W}, 0", f"s_cselect_b64 {m2}, -1, 0"],
              f"v_cndmask_b32 v{u}, 1.0, v{u}, {m2}", f"v_cndmask_b32 v{u+1}, 0, v{u+1}, {m2}"]
        L += self.cmul(u + 6, u + 7, u + 4, u + 5, u, u + 1)
        L += [[f"s_bitcmp1_b32 s{S_W}, 1", f"s_cselect_b64 {m2}, -1, 0"],
              f"v_cndmask_b32 v{u+2}, 1.0, v{u+2}, {m2}", f"v_cndmask_b32 v{u+3}, 0, v{u+3}, {m2}"]
        L += self.cmul(c + 6, c + 7, u + 6, u + 7, u + 2, u + 3)
        return L

    def ex_base(self, sreg, b):
        return [f"s_add_u32 s{sreg}, s{S_SB}, {b}", f"s_mul_i32 s{sreg}, s{sreg}, {EX_BLK}",
                f"s_add_u32 s{sreg}, s{sreg}, {EX_OFF}"]

    def ssm_reduce(self, b, acc, X, keep=False):
        p = self.p
        c = V_C + 12 * b
        T = V_X
        re, im = acc, acc + 16
        cur = (re, im)
        if b == 0 and not self.fused:
            self.q(f"v_mov_b32 v{T+4}, 0", f"v_min_u32 v{T+5}, 6, v{V_SEG}", f"v_sub_u32 v{T+5}, v{T+5}, v{V_SEG}",
                   f"v_lshl_add_u32 v{T+5}, v{T+5}, 3, v{V_XR}", f"ds_write2_b32 v{T+5}, v{T+4}, v{T+4} offset1:1")
        for t in range(1, 16):
            d = (re + t, im + t) if keep else ((T, T + 1) if t % 2 else (T + 2, T + 3))
            self.q(f"v_fma_f32 v{d[0]}, -v{c+1}, v{cur[1]}, v{re+t}", f"v_fma_f32 v{d[1]}, v{c+1}, v{cur[0]}, v{im+t}",
                   f"v_fma_f32 v{d[0]}, v{c}, v{cur[0]}, v{d[0]}", f"v_fma_f32 v{d[1]}, v{c}, v{cur[1]}, v{d[1]}")
            cur = d
        hr, hi = cur
        st = {}

        def wr():
            st["wr"] = p.e(f"ds_write2_b32 v{V_XR}, v{hr}, v{hi} offset0:14 offset1:15")
        self.fill.append(wr)
        self.lag(self.opt.get("xlag", 3))

        def arm():
            self.pre_barrier.append(st["wr"])
            st["bar"] = self.nbar
        self.fill.append(arm)
        self.fill.append(("bar", lambda: self.nbar > st["bar"]))
        E = X
        pr, pi = V_PRE + 2 * b, V_PRE + 2 * b + 1

        def rd():
            for k in range(3):
                p.e(f"ds_read2_b64 v[{E+4*k}:{E+4*k+3}], v{V_XR} offset0:{2*k} offset1:{2*k+1}")
            st["t"] = p.e(f"ds_read_b64 v[{E+12}:{E+13}], v{V_XR} offset:48")
        rd.cost = 4
        self.fill.append(rd)
        g = T + 4
        self.q(f"v_mov_b32 v{g+1}, s{S_EPOCH}", f"v_mov_b32 v{g+3}, s{S_EPOCH}", *self.ex_base(S_T2, b))
        self.lag(4)
        self.fill.append(lambda: p.wait(st["t"]))
        cur = (E, E + 1)
        for j in range(1, 7):
            er, ei = E + 2 * j, E + 2 * j + 1
            d = (pr, pi) if j == 6 else (er, ei)
            self.q(f"v_fma_f32 v{er}, -v{c+5}, v{cur[1]}, v{er}", f"v_fma_f32 v{ei}, v{c+5}, v{cur[0]}, v{ei}",
                   f"v_fma_f32 v{d[0]}, v{c+4}, v{cur[0]}, v{er}", f"v_fma_f32 v{d[1]}, v{c+4}, v{cur[1]}, v{ei}")
            cur = d
        self.q(f"v_fma_f32 v{g}, -v{c+5}, v{pi}, v{hr}", f"v_fma_f32 v{g+2}, v{c+5}, v{pr}, v{hi}",
               f"v_fma_f32 v{g}, v{c+4}, v{pr}, v{g}", f"v_fma_f32 v{g+2}, v{c+4}, v{pi}, v{g+2}",
               f"buffer_store_dwordx4 v[{g}:{g+3}], v{V_PUB}, {srd(SWS)}, s{S_T2} offen sc1")

    def ssm_pre(self, b, acc, Q):
        c = V_C + 12 * b
        T = V_X
        re, im = acc, acc + 16
        self.q(*self.cmul(Q, Q + 16, c + 2, c + 3, c, c + 1))
        for t in range(16):
            o = T + 2 * (t % 2)
            self.q(f"v_mul_f32 v{o}, v{c+3}, v{im+t}", f"v_mul_f32 v{o+1}, v{c+3}, v{re+t}",
                   f"v_fma_f32 v{re+t}, v{c+2}, v{re+t}, -v{o}", f"v_fma_f32 v{im+t}, v{c+2}, v{im+t}, v{o+1}")
            if t < 15:
                self.q(*self.cmul(Q + t + 1, Q + 17 + t, Q + t, Q + 16 + t, c, c + 1))

    def lb_issue(self, i, LB, A):
        p = self.p
        p.e(f"v_add_u32 v{A}, {-1024*i & 0xffffffff:#x}, v{V_LBO}" if i else f"v_mov_b32 v{A}, v{V_LBO}")
        p.e(f"v_max_i32 v{A}, v{A}, v{V_LBO+1}")
        if self.opt.get("dbg_nolb"):
            p.e(f"v_mov_b32 v{A}, v{V_LBO+1}")
        return p.e(f"buffer_load_dwordx4 v[{LB+4*i}:{LB+4*i+3}], v{A}, {srd(SWS)}, s{S_T3} offen sc1")

    def lb_mix(self, LB, A):
        L = [f"v_mov_b32 v{A+1}, s{S_EPOCH}"]
        for i in range(8):
            d = A if i == 0 else A + 2 + i % 2
            L.append(f"v_bitop3_b32 v{d}, v{LB+4*i+1}, v{LB+4*i+3}, v{A+1} bitop3:0x7e")
            if i and i % 2 == 0:
                L.append(f"v_or3_b32 v{A}, v{A}, v{A+2}, v{A+3}")
        L.append(f"v_or_b32 v{A}, v{A}, v{A+3}")
        return L

    def lb_check(self, LB, A, tag):
        p = self.p
        for x in self.lb_mix(LB, A):
            p.e(x)
        p.e(f"v_cmp_ne_u32 vcc, 0, v{A}")
        p.e(f"s_cbranch_vccnz LB_SLOW_{tag}")

    def ssm_finish(self, b, acc, LB, gate_issue, gate_check, tag, Q=None, between=None):
        p = self.p
        c = V_C + 12 * b
        PRE = V_PRE + 2 * b
        st = {}
        if gate_issue is not None:
            self.fill.append(("t", gate_issue))
        A = LB + 32
        self.q(*self.ex_base(S_T3, b), f"s_mov_b32 s{S_SPIN}, 0")
        for i in range(8):
            def f(i=i):
                st["t"] = self.lb_issue(i, LB, A)
            self.fill.append(f)
        if between:
            between()
        if gate_check is not None:
            self.fill.append(("t", gate_check))

        self.fill.append(lambda: p.wait(st["t"]))
        self.q(*self.lb_mix(LB, A))

        def check():
            p.e(f"v_cmp_ne_u32 vcc, 0, v{A}")
            p.e(f"s_cbranch_vccnz LB_SLOW_{tag}")
            p.label(f"LB_OK_{tag}")
            self.slow.append((tag, LB, A))
        self.fill.append(check)
        pr, pi = A, A + 1
        self.q(f"v_mov_b32 v{pr}, v{LB+28}", f"v_mov_b32 v{pi}, v{LB+30}")
        for i in range(6, -1, -1):
            er, ei = LB + 4 * i, LB + 4 * i + 2
            self.q(f"v_fma_f32 v{er}, -v{c+11}, v{pi}, v{er}", f"v_fma_f32 v{ei}, v{c+11}, v{pr}, v{ei}",
                   f"v_fma_f32 v{pr}, v{c+10}, v{pr}, v{er}", f"v_fma_f32 v{pi}, v{c+10}, v{pi}, v{ei}")
        r0, i0, r1, i1 = LB, LB + 1, LB + 2, LB + 3
        self.q(f"v_mov_b32 v{r0}, v{pr}", f"v_mov_b32 v{r1}, v{pr}", f"v_mov_b32 v{i0}, v{pi}", f"v_mov_b32 v{i1}, v{pi}",
               f"v_permlane32_swap_b32 v{r0}, v{r1}", f"v_permlane32_swap_b32 v{i0}, v{i1}",
               f"v_fma_f32 v{r0}, -v{c+9}, v{i1}, v{r0}", f"v_fma_f32 v{i0}, v{c+9}, v{r1}, v{i0}",
               f"v_fma_f32 v{r0}, v{c+8}, v{r1}, v{r0}", f"v_fma_f32 v{i0}, v{c+8}, v{i1}, v{i0}",
               f"v_fma_f32 v{PRE}, -v{c+7}, v{i0}, v{PRE}", f"v_fma_f32 v{PRE+1}, v{c+7}, v{r0}, v{PRE+1}",
               f"v_fma_f32 v{PRE}, v{c+6}, v{r0}, v{PRE}", f"v_fma_f32 v{PRE+1}, v{c+6}, v{i0}, v{PRE+1}")
        re, im = acc, acc + 16
        cur = (PRE, PRE + 1)
        for t in range(16):
            o = LB + 4 + 4 * (t % 2)
            if Q is not None:
                qr, qi = Q + t, Q + 16 + t
                self.q(f"v_fma_f32 v{re+t}, v{qr}, v{PRE}, v{re+t}", f"v_fma_f32 v{im+t}, v{qr}, v{PRE+1}, v{im+t}",
                       f"v_fma_f32 v{re+t}, -v{qi}, v{PRE+1}, v{re+t}", f"v_fma_f32 v{im+t}, v{qi}, v{PRE}, v{im+t}",
                       f"v_cvt_pk_bf16_f32 v{o+2}, v{re+t}, -v{im+t}")
                if t == 15:
                    self.fill.append(lambda: setattr(self, "q_done", True))
            else:
                self.q(f"v_fma_f32 v{re+t}, -v{c+1}, v{cur[1]}, v{re+t}", f"v_fma_f32 v{im+t}, v{c+1}, v{cur[0]}, v{im+t}",
                       f"v_fma_f32 v{re+t}, v{c}, v{cur[0]}, v{re+t}", f"v_fma_f32 v{im+t}, v{c}, v{cur[1]}, v{im+t}")
                cur = (re + t, im + t)
                self.q(f"v_mul_f32 v{o}, v{c+2}, v{re+t}", f"v_mul_f32 v{o+1}, v{c+2}, v{im+t}",
                       f"v_fma_f32 v{o}, -v{c+3}, v{im+t}, v{o}", f"v_fma_f32 v{o+1}, v{c+3}, v{re+t}, v{o+1}",
                       f"v_cvt_pk_bf16_f32 v{o+2}, v{o}, -v{o+1}")

            def w(t=t, o=o):
                st["w"] = p.e(f"ds_write_b32 v{V_TW}, v{o+2} offset:{144*t}")
            self.fill.append(w)
        O = LB + 12
        self.lag(4)

        def rd():
            p.wait(st["w"])
            st["r"] = [p.e(f"ds_read_b128 v[{O+4*f}:{O+4*f+3}], v{V_TW+1} offset:{(f>>1)*2304 + (f&1)*64}")
                       for f in range(4)]
        self.fill.append(rd)
        self.q(f"s_add_u32 s{S_T3}, s{S_SB}, {b}", f"s_lshl_b32 s{S_T3}, s{S_T3}, 13",
               f"s_add_u32 s{S_T3}, s{S_T3}, s{S_A2ROW}", f"s_add_u32 s{S_T3}, s{S_T3}, {54*4096}",
               f"s_add_u32 s{S_T2}, s{S_T3}, 4096")
        self.lag(5)
        for f in range(4):
            def stf(f=f):
                p.wait(st["r"][f])
                so = S_T2 if f & 1 else S_T3
                self.last_store = p.e(f"buffer_store_dwordx4 v[{O+4*f}:{O+4*f+3}], v{V_TW+2}, {srd(SWS)}, s{so} offen offset:{1024*(f>>1)}{self.wt}")
            self.fill.append(stf)

    def slow_paths(self):
        p = self.p
        for tag, LB, A in self.slow:
            p.label(f"LB_SLOW_{tag}")
            p.e("s_sleep 2")
            p.e(f"s_add_u32 s{S_SPIN}, s{S_SPIN}, 1")
            p.e(f"s_cmp_gt_u32 s{S_SPIN}, 100000")
            p.e(f"s_cbranch_scc1 LB_OK_{tag}")
            for i in range(8):
                self.lb_issue(i, LB, A)
            p.e("s_waitcnt vmcnt(0)")
            self.lb_check(LB, A, tag)
            p.e(f"s_branch LB_OK_{tag}")

    def mk_srd(self, d, ptr, nbytes):
        return [f"s_mov_b32 s{d}, s{ptr}", f"s_mov_b32 s{d+1}, s{ptr+1}",
                f"s_mov_b32 s{d+2}, {nbytes}", f"s_mov_b32 s{d+3}, 0x20000"]

    def prologue(self):
        p, e, q, o = self.p, self.p.e, self.q, self.opt
        hm = f"s[{S_HM}:{S_HM+1}]"
        p.raw(".p2align 8")
        p.label(self.name)
        e("s_cmp_ge_u32 s2, 256")
        e("s_cbranch_scc1 K1_END")
        if o.get("stamp"):
            e("s_memrealtime s[94:95]")
            self.stamp(0)
        e("s_load_dwordx16 s[36:51], s[0:1], 0")
        e("s_load_dwordx16 s[52:67], s[0:1], 64")
        e(f"s_getpc_b64 s[{S_T0}:{S_T1}]")
        p.label("K1_PC")
        e("v_lshrrev_b32 v2, 6, v0")
        e(f"v_and_b32 v{V_LANE}, 63, v0")
        e(f"v_readfirstlane_b32 s{S_W}, v2")
        e("s_lshr_b32 s3, s2, 3")
        e(f"s_lshl_b32 s{S_T2}, s3, 2")
        e(f"s_add_u32 s{S_T2}, s{S_T2}, s{S_W}")
        e(f"s_mul_i32 s{S_T2}, s{S_T2}, 640")
        e(f"v_lshlrev_b32 v2, 7, v{V_LANE}")
        e(f"v_add_u32 v2, s{S_T2}, v2")
        e("v_min_u32 v2, TEXT_END-K1_PC-4, v2")
        e("s_mov_b64 exec, 31")
        e(f"global_load_dword v{V_PRE+5}, v2, s[{S_T0}:{S_T1}]")
        e("s_mov_b64 exec, -1")
        e(f"s_and_b32 s{S_T2}, s2, 7")
        e(f"s_lshr_b32 s{S_MT}, s{S_T2}, 1")
        e(f"s_lshl_b32 s{S_MT}, s{S_MT}, 2")
        e(f"s_and_b32 s{S_T3}, s3, 3")
        e(f"s_add_u32 s{S_MT}, s{S_MT}, s{S_T3}")
        e(f"s_and_b32 s{S_CG}, s{S_T2}, 1")
        e(f"s_lshl_b32 s{S_CG}, s{S_CG}, 3")
        e("s_lshr_b32 s3, s3, 2")
        e(f"s_add_u32 s{S_CG}, s{S_CG}, s3")
        e(f"s_add_u32 s{S_R}, s3, s{S_T3}")
        if o.get("rot_x"):
            e(f"s_lshr_b32 s{S_T2}, s{S_MT}, 2")
            e(f"s_add_u32 s{S_R}, s{S_R}, s{S_T2}")
        for _ in range(3 if o.get("rot_x") else 2):
            e(f"s_sub_u32 s{S_T2}, s{S_R}, 5")
            e(f"s_cmp_ge_u32 s{S_R}, 5")
            e(f"s_cselect_b32 s{S_R}, s{S_T2}, s{S_R}")
        e(f"s_lshl_b32 s{S_KS}, s{S_R}, 8")
        for i in range(1, 5):
            e(f"s_add_u32 s{S_KS+i}, s{S_KS+i-1}, 256")
            e(f"s_cmp_eq_u32 s{S_KS+i}, 1280")
            e(f"s_cselect_b32 s{S_KS+i}, 0, s{S_KS+i}")
        e(f"s_lshl_b32 s{S_W4K}, s{S_W}, 12")
        e(f"s_lshl_b32 s{S_XB}, s{S_MT}, 2")
        e(f"s_add_u32 s{S_XB}, s{S_XB}, s{S_W}")
        e(f"s_mul_i32 s{S_XB}, s{S_XB}, {32*1280}")
        a, xr = V_X + 4, V_X + 5
        e(f"v_lshrrev_b32 v{a}, 4, v{V_LANE}")
        e(f"v_and_b32 v{xr}, 15, v{V_LANE}")
        e(f"v_xor_b32 v{xr}, v{xr}, v{a}")
        e(f"v_lshlrev_b32 v{xr}, 4, v{xr}")
        e(f"v_mul_u32_u24 v{a}, 1280, v{a}")
        for k in range(4):
            e(f"v_xor_b32 v{V_OS+k}, {64*k}, v{xr}")
            e(f"v_add_u32 v{V_OS+k}, v{V_OS+k}, v{a}")
            e(f"v_add_u32 v{V_X+k}, {(16*(k&1) + 4*(k>>1))*1280 - 1024*k}, v{V_OS+k}")
        e(f"s_cmp_ge_u32 s{S_CG}, 8")
        e(f"s_cselect_b32 s{S_T2}, 1, 0")
        e(f"s_sub_u32 s{S_SB}, s{S_CG}, s{S_T2}")
        e(f"s_lshl_b32 s{S_D1}, s{S_SB}, 1")
        e(f"s_mov_b32 s{S_TYPE}, 0")
        e(f"s_cmp_eq_u32 s{S_CG}, 14")
        e(f"s_cselect_b32 s{S_TYPE}, 1, s{S_TYPE}")
        e(f"s_cmp_eq_u32 s{S_CG}, 7")
        e(f"s_cselect_b32 s{S_TYPE}, 2, s{S_TYPE}")
        e(f"s_cselect_b32 s{S_SB}, 14, s{S_SB}")
        e(f"s_cmp_eq_u32 s{S_CG}, 15")
        e(f"s_cselect_b32 s{S_TYPE}, 2, s{S_TYPE}")
        e(f"s_cselect_b32 s{S_SB}, 17, s{S_SB}")
        e(f"v_and_b32 v{V_SEG}, 31, v{V_LANE}")
        e(f"s_lshl_b32 s{S_T2}, s{S_SB}, 6")
        e(f"v_lshl_add_u32 v{V_PUB}, v{V_SEG}, 1, s{S_T2}")
        e(f"v_min_u32 v{V_XR}, {1278 - 128}, v{V_PUB}")
        e(f"v_mov_b32 v{V_XW}, {EPOCH_OFF}")
        e(f"s_lshl_b32 s{S_J1}, s{S_W}, 13")
        e(f"s_add_u32 s{S_J1}, s{S_J1}, {LDS_SCR}")
        e("s_waitcnt lgkmcnt(0)")
        for x in self.mk_srd(SX, K_X, X_BYTES):
            e(x)
        xt = {}
        cnt = {"n": 0}

        def x_piece(i, u):
            if u % 4 == 0:
                hh = u // 4
                if i < 4:
                    e(f"s_add_u32 m0, s{S_W4K}, {(i + 4*hh)*16384}")
                elif hh:
                    e(f"s_add_u32 m0, s{S_J1}, 4096")
                else:
                    e(f"s_mov_b32 m0, s{S_J1}")
                e(f"s_add_u32 s{S_T0}, s{S_XB}, s{S_KS+i}")
                if hh:
                    e(f"s_add_u32 s{S_T0}, s{S_T0}, 10240")
            xt[i, u] = e(f"buffer_load_dwordx4 v{V_X+u%4}, {srd(SX)}, s{S_T0} offen offset:{1024*(u%4)} lds")
            cnt["n"] += 1
        xq = [(i, u) for i in range(5) for u in range(8)]
        for _ in range(o.get("x_first", 4)):
            x_piece(*xq.pop(0))
        for x in self.mk_srd(SWS, K_WS, WS_USED):
            e(x)
        EP = V_PRE + 4
        e(f"s_mov_b32 s{S_T2}, 0" if self.fused else f"s_lshl_b32 s{S_T2}, s{S_CG}, 7")
        e(f"buffer_load_dword v{EP}, v{V_XW}, {srd(SWS)}, s{S_T2} offen sc1")
        t_par = None
        for b in range(3):
            for k, ptr in enumerate((K_LRE, K_LIM, K_LDT)):
                va = V_XR if b else V_PUB
                t_par = e(f"global_load_ushort v{V_C+12*b+6+k}, v{va}, s[{ptr}:{ptr+1}] offset:{64*b}")
        if self.fused:
            for _ in range(o.get("job_after", 4)):
                x_piece(*xq.pop(0))
            if o.get("job_dq") != 2 and o.get("job_mode") != "dma":
                self.a_job_setup()
        if o.get("wpre", 1) >= 2:
            n2 = o.get("wpre_after", 0)
            for _ in range(n2):
                x_piece(*xq.pop(0))
            self.w_prefetch_early()
        for _ in range(o.get("x_second", 4) - o.get("wpre_after", 0) - (o.get("job_after", 4) if self.fused else 0)):
            x_piece(*xq.pop(0))
        if o.get("touch", 1) == 2:
            e(f"s_cmp_lg_u32 s{S_W}, 3")
            e("s_cbranch_scc1 K1_NOTOUCH")
            e(f"s_lshl_b32 s{S_T2}, s2, 7")
            e(f"s_add_u32 s{S_T3}, s{S_T2}, {1 << 21}")
            for ptr, both in ((K_BRE, 0), (K_BIM, 0), (K_WG, 1), (K_WU, 1), (K_WD, 1), (K_CRE, 0), (K_CIM, 0), (K_OUT, 1)):
                e(f"s_load_dword s95, s[{ptr}:{ptr+1}], s{S_T2}")
                if both:
                    e(f"s_load_dword s95, s[{ptr}:{ptr+1}], s{S_T3}")
            p.label("K1_NOTOUCH")
            e(f"s_cmp_lg_u32 s{S_W}, 2")
            e("s_cbranch_scc1 K1_NOTOUCH2")
            e(f"s_lshl_b32 s{S_T2}, s2, 7")
            for pg in range(12):
                e(f"s_load_dword s95, s[{K_WS}:{K_WS+1}], s{S_T2}")
                e(f"s_add_u32 s{S_T2}, s{S_T2}, {1 << 21}")
            e(f"s_load_dword s95, s[{K_DSK}:{K_DSK+1}], 0")
            e(f"s_mov_b32 s{S_T2}, {1 << 22}")
            e(f"s_load_dword s95, s[{K_OUT}:{K_OUT+1}], s{S_T2}")
            p.label("K1_NOTOUCH2")
        if o.get("touch", 1) == 1:
            for ptr, offs in ((K_BRE, [0]), (K_BIM, [0]), (K_WG, [0, 1 << 21]), (K_WU, [0, 1 << 21]), (K_WD, [0, 1 << 21]),
                              (K_CRE, [0]), (K_CIM, [0]), (K_X, [1 << 21])):
                for off in offs:
                    if off:
                        e(f"s_mov_b32 s{S_T2}, {off}")
                    e(f"s_load_dword s95, s[{ptr}:{ptr+1}], " + (f"s{S_T2}" if off else "0"))
        self.stamp(1)
        for k in range(1, 4):
            q(f"v_add_u32 v{V_OS+k}, {4*k*1280 - 1024*k}, v{V_OS+k}")
        h, c, t0, t1 = V_X + 4, V_SEG, V_X + 5, V_X + 6
        q(f"s_mov_b32 s{S_HM}, 0", f"s_mov_b32 s{S_HM+1}, -1", f"s_mov_b32 s{S_MASK}, 0xffff0000",
          f"v_lshrrev_b32 v{h}, 5, v{V_LANE}")
        q(f"v_and_b32 v{t0}, 15, v{V_LANE}", f"v_xor_b32 v{t1}, v{t0}, v{h}", f"v_lshlrev_b32 v{t1}, 4, v{t1}",
          f"v_lshl_add_u32 v{t1}, v{t0}, 8, v{t1}", f"v_bfe_u32 v{t0}, v{V_LANE}, 4, 1",
          f"v_lshlrev_b32 v{V_X+8}, 16, v{t0}", f"v_add_u32 v{V_X+8}, s{S_W4K}, v{V_X+8}",
          f"v_lshlrev_b32 v{t0}, 12, v{t0}")
        for s in range(8):
            q(f"v_xor_b32 v{V_AS+s}, {32*s}, v{t1}", f"v_add_u32 v{V_AS+8+s}, v{V_AS+s}, v{V_X+8}",
              f"v_add_u32 v{V_AS+s}, v{V_AS+s}, v{t0}")
        sm, sq = V_PRE, V_PRE + 1
        q(f"v_mov_b32 v{sm}, 0", f"v_mov_b32 v{sq}, 0", f"s_mov_b32 s{S_SPIN}, 0x3f803f80")
        q([f"s_cmp_ge_u32 s{S_W}, 2",
           f"s_cselect_b32 s{SS}, s{K_BIM}, s{K_BRE}", f"s_cselect_b32 s{SS+1}, s{K_BIM+1}, s{K_BRE+1}",
           f"s_cselect_b32 s{SF}, s{K_WU}, s{K_WG}", f"s_cselect_b32 s{SF+1}, s{K_WU+1}, s{K_WG+1}"],
          f"s_mov_b32 s{SS+2}, {SQ_BYTES}", f"s_mov_b32 s{SS+3}, 0x20000",
          f"s_mov_b32 s{SF+2}, {FF_BYTES}", f"s_mov_b32 s{SF+3}, 0x20000")
        for i in range(5):
            q(f"s_mul_i32 s{S_KF+i}, s{S_KS+i}, {128*3456//256}")
        q(f"s_and_b32 s{S_T2}, s{S_W}, 1",
          f"s_lshl_b32 s{S_SBROW}, s{S_SB}, 1", f"s_add_u32 s{S_SBROW}, s{S_SBROW}, s{S_T2}",
          f"s_mul_i32 s{S_SBROW}, s{S_SBROW}, {16*1280}",
          f"s_lshr_b32 s{S_T3}, s{S_W}, 1",
          f"s_lshl_b32 s{S_A2ROW}, s{S_MT}, 1", f"s_add_u32 s{S_A2ROW}, s{S_A2ROW}, s{S_T3}",
          f"s_mul_i32 s{S_A2ROW}, s{S_A2ROW}, {94*4096}",
          f"s_lshl_b32 s{S_T3}, s{S_T2}, 11", f"s_add_u32 s{S_A2ROW}, s{S_A2ROW}, s{S_T3}",
          f"s_lshl_b32 s{S_KD1}, s{S_D1}, 13", f"s_add_u32 s{S_KD1}, s{S_KD1}, s{S_A2ROW}",
          f"s_add_u32 s{S_KD2}, s{S_KD1}, 8192",
          f"s_lshl_b32 s{S_D1}, s{S_D1}, 7", f"s_mul_i32 s{S_T3}, s{S_T2}, {32*3456}",
          f"s_add_u32 s{S_D1}, s{S_D1}, s{S_T3}", f"s_add_u32 s{S_D2}, s{S_D1}, 128",
          f"s_mov_b32 s{S_GK2}, {fx(GK2)}", f"v_mov_b32 v{V_GK1}, {fx(GK1)}")
        if o.get("touch", 1) == 1:
            ws, out = f"s[{K_WS}:{K_WS+1}]", f"s[{K_OUT}:{K_OUT+1}]"
            q(f"s_mul_i32 s{S_T2}, s{S_MT}, {2*94*4096}", f"s_load_dword s95, {ws}, s{S_T2}",
              f"s_add_u32 s{S_T2}, s{S_T2}, {2*94*4096 - 4}", f"s_load_dword s95, {ws}, s{S_T2}")
            for off in (W2F_OFF, W2F_OFF + (1 << 21)):
                q(f"s_mov_b32 s{S_T2}, {off}", f"s_load_dword s95, {ws}, s{S_T2}")
            q(f"s_mul_i32 s{S_T2}, s2, {4*5120}", f"s_add_u32 s{S_T2}, s{S_T2}, {PART_OFF}", f"s_load_dword s95, {ws}, s{S_T2}",
              f"s_mul_i32 s{S_T2}, s{S_MT}, {128*2560}", f"s_load_dword s95, {out}, s{S_T2}",
              f"s_add_u32 s{S_T2}, s{S_T2}, {128*2560 - 4}", f"s_load_dword s95, {out}, s{S_T2}",
              f"s_load_dword s95, s[{K_DSK}:{K_DSK+1}], 0")
        q(f"v_lshrrev_b32 v{t0}, 3, v{V_LANE}", f"v_mul_u32_u24 v{t0}, 3456, v{t0}",
          f"v_bfe_u32 v{t1}, v{V_LANE}, 4, 1", f"v_lshlrev_b32 v{t1}, 2, v{t1}",
          f"v_and_b32 v{V_OF}, 7, v{V_LANE}", f"v_xor_b32 v{V_OF}, v{V_OF}, v{t1}",
          f"v_lshl_add_u32 v{V_OF}, v{V_OF}, 4, v{t0}")
        for k in range(1, 4):
            q(f"v_add_u32 v{V_OF+k}, {k*(8*3456 - 1024)}, v{V_OF}")
        q(f"v_bfe_u32 v{t0}, v{V_LANE}, 2, 2", f"v_lshl_add_u32 v{t1}, v{h}, 3, v{t0}",
          f"v_lshlrev_b32 v{V_TR}, 7, v{t1}", f"v_lshrrev_b32 v{t0}, 1, v{t0}",
          f"v_lshl_add_u32 v{V_TR}, v{t0}, 6, v{V_TR}", f"v_bfe_u32 v{t0}, v{V_LANE}, 4, 1",
          f"v_lshl_add_u32 v{V_TR}, v{t0}, 5, v{V_TR}", f"v_and_b32 v{t0}, 3, v{V_LANE}",
          f"v_lshl_add_u32 v{V_TR}, v{t0}, 3, v{V_TR}", f"v_xor_b32 v{V_TR+1}, 64, v{V_TR}",
          f"v_add_u32 v{V_TR+2}, 0x10000, v{V_TR}", f"v_add_u32 v{V_TR+3}, 0x10000, v{V_TR+1}")
        q(f"v_lshrrev_b32 v{t1}, 3, v{c}", f"v_lshl_add_u32 v{t1}, v{t1}, 2, v{t0}",
          f"v_lshl_add_u32 v{V_STA}, v{h}, 4, v{t1}", f"v_lshlrev_b32 v{V_STA}, 4, v{V_STA}",
          f"v_bfe_u32 v{t0}, v{c}, 2, 1", f"v_lshl_add_u32 v{V_STA}, v{t0}, 10, v{V_STA}",
          f"v_lshl_add_u32 v{V_X+7}, v{t0}, 4, v{t1}", f"v_lshlrev_b32 v{V_X+7}, 3, v{V_X+7}",
          f"v_cndmask_b32 v{V_X+7}, v{V_X+7}, v{V_XW}, {hm}" if not self.fused else
          [f"s_lshl_b32 s{S_T2}, s{S_W}, 8", f"s_add_u32 s{S_T2}, s{S_T2}, {STL}", f"v_add_u32 v0, s{S_T2}, v{V_X+7}"])
        q(f"v_lshlrev_b32 v{V_LBO+1}, 4, v{c}", f"v_sub_u32 v{t0}, s{S_MT}, v{h}",
          f"v_lshl_add_u32 v{V_LBO}, v{t0}, 9, v{V_LBO+1}",
          f"s_add_u32 s{S_T2}, s{S_MT}, 1", f"s_lshl_b32 s{S_T2}, s{S_T2}, 9",
          [f"s_cmp_eq_u32 s{S_W}, 3", f"s_cselect_b32 s{S_T2}, s{S_T2}, {OOB}"], f"v_add_u32 v{t0}, s{S_T2}, v{V_LBO+1}",
          f"v_mov_b32 v{t1}, {OOB}", f"v_cndmask_b32 v{V_PUB}, v{t1}, v{t0}, {hm}",
          f"v_and_b32 v{V_XR}, 15, v{c}", f"v_mul_u32_u24 v{V_XR}, 120, v{V_XR}", f"v_lshrrev_b32 v{t0}, 4, v{c}",
          f"v_lshl_add_u32 v{V_XR}, v{t0}, 13, v{V_XR}", f"v_add_u32 v{V_XR}, {XCH}, v{V_XR}",
          f"v_mul_u32_u24 v{V_TW}, {16*144}, v{h}", f"v_lshl_add_u32 v{V_TW}, v{c}, 2, v{V_TW}",
          f"v_add_u32 v{V_TW}, s{S_J1}, v{V_TW}",
          f"v_and_b32 v{t0}, 15, v{V_LANE}", f"v_mul_u32_u24 v{t0}, 144, v{t0}",
          f"v_lshrrev_b32 v{t1}, 4, v{V_LANE}", f"v_lshl_add_u32 v{V_TW+1}, v{t1}, 4, v{t0}",
          f"v_add_u32 v{V_TW+1}, s{S_J1}, v{V_TW+1}", f"v_lshlrev_b32 v{V_TW+2}, 4, v{V_LANE}",
          f"s_lshl_b32 s{S_T2}, s{S_W}, 1", f"v_add_u32 v{V_SEG}, s{S_T2}, v{h}",
          f"v_lshl_add_u32 v{V_XR}, v{V_SEG}, 3, v{V_XR}")
        self.fill.append(lambda: p.wait(t_par))
        U = RAW + 152
        q(f"v_readfirstlane_b32 s{S_EPOCH}, v{EP}")
        if o.get("job_dq") == 2:
            self.fill.append(self.a_job_setup)
        q(*self.ssm_consts(0, V_C + 6, U))
        q(f"s_add_u32 s{S_EPOCH}, s{S_EPOCH}, 1")
        self.zero_row(0, U)
        rd = {}

        def x_read(i, half):
            def f():
                p.wait(xt[i, 7])
                for s in range(4 * half, 4 * half + 4):
                    r = RAW + 32 * i + 4 * s
                    rd[i, s] = e(f"ds_read_b128 v[{r}:{r+3}], v{V_AS+8+s} offset:{i*16384 if i < 4 else 0}")
            return f
        lag = o.get("x_lag", 9)
        for i in range(5):
            self.fill.append(("t", lambda i=i: cnt["n"] >= min(40, 8 * i + 8 + lag)))
            if i == 4:
                if o.get("job_dq"):
                    self.fill.append(("t", lambda: hasattr(self, "job_tok") and not any(f in self.dq for f in self.job_ld)))
                for s in range(8):
                    q(f"v_add_u32 v{V_AS+8+s}, s{S_J1}, v{V_AS+s}")
            self.fill.append(x_read(i, 0))
            self.fill.append(x_read(i, 1))
            for s in range(8):
                self.fill.append(lambda i=i, s=s: p.wait(rd[i, s]))
                for k in range(4):
                    r = RAW + 32 * i + 4 * s + k
                    q(f"v_dot2c_f32_bf16 v{sm}, s{S_SPIN}, v{r}", f"v_dot2c_f32_bf16 v{sq}, v{r}, v{r}")
            if i < 4:
                self.fill.append(lambda i=i: self.issue_stage(i, "S", i, 0))
            if i == 3:
                self.fill.append(lambda: self.issue_stage(4, "S", 4, 0))
        self.pull(o.get("pre_slots", 150))
        while xq:
            x_piece(*xq.pop(0))
            self.pull(o.get("x_gap", 14))
        while self.fill:
            self.dma()
            self.pull(o.get("x_gap", 14))
        self.stamp(2)
        u = V_X + 8
        e(f"v_mov_b32 v{u}, v{sm}"); e(f"v_mov_b32 v{u+1}, v{sq}")
        e(f"v_permlane32_swap_b32 v{sm}, v{u}"); e(f"v_permlane32_swap_b32 v{sq}, v{u+1}")
        e(f"v_add_f32 v{sm}, v{sm}, v{u}"); e(f"v_add_f32 v{sq}, v{sq}, v{u+1}")
        e(f"v_mul_f32 v{sm}, {fx(1/640)}, v{sm}"); e(f"v_mul_f32 v{sq}, {fx(1/640)}, v{sq}")
        e(f"v_fma_f32 v{sq}, -v{sm}, v{sm}, v{sq}")
        e(f"v_max_f32 v{sq}, 0, v{sq}")
        e(f"v_cvt_pk_bf16_f32 v{u}, v{sq}, v{sm}")
        e(f"v_lshlrev_b32 v{sq}, 16, v{u}"); e(f"v_and_b32 v{sm}, s{S_MASK}, v{u}")
        e(f"v_add_f32 v{sq}, {fx(1e-5)}, v{sq}")
        e(f"v_cvt_pk_bf16_f32 v{sq}, v{sq}, v{sq}"); e(f"v_lshlrev_b32 v{sq}, 16, v{sq}")
        e(f"v_sqrt_f32 v{sq}, v{sq}")
        e(f"s_lshl_b32 s{S_T2}, s{S_MT}, 2"); e(f"s_add_u32 s{S_T2}, s{S_T2}, s{S_W}")
        e(f"v_cvt_pk_bf16_f32 v{sq}, v{sq}, v{sq}"); e(f"v_lshlrev_b32 v{sq}, 16, v{sq}")
        e(f"v_rcp_f32 v{u}, v{sq}")
        e(f"s_lshl_b32 s{S_T2}, s{S_T2}, 8"); e(f"s_add_u32 s{S_T2}, s{S_T2}, {STATS_OFF}")
        e(f"v_mul_f32 v{u+2}, -v{sm}, v{u}")
        e(f"v_mov_b32 v{u+1}, v{u}")
        e(f"v_mov_b32 v{u+3}, v{u+2}")
        e(f"s_cmp_eq_u32 s{S_CG}, 0"); e(f"s_cselect_b32 s{S_T2}, s{S_T2}, {OOB}")
        if not self.fused:
            e(f"v_mov_b32 v{V_X+4}, v{u}"); e(f"v_mov_b32 v{V_X+5}, v{u+2}")
            e(f"buffer_store_dwordx2 v[{V_X+4}:{V_X+5}], v{V_X+7}, {srd(SWS)}, s{S_T2} offen{self.wt}")
        npre = o.get("npre", 8)
        for k in range(4 * npre):
            r = RAW + k
            t = V_X + 2 * (k % 2)
            e(f"v_lshlrev_b32 v{t}, 16, v{r}"); e(f"v_and_b32 v{t+1}, s{S_MASK}, v{r}")
            e(f"v_pk_fma_f32 v[{t}:{t+1}], v[{t}:{t+1}], v[{u}:{u+1}], v[{u+2}:{u+3}]")
            e(f"v_cvt_pk_bf16_f32 v{r}, v{t}, v{t+1}")
            e(f"v_accvgpr_write_b32 a{XN+k}, v{r}")
            if k % 4 == 3:
                self.dma()
        done = []
        for k in range(4 * npre, 160, 2):
            t = V_X + 4 * ((k // 2) % 2)
            grp = done
            for i in range(2):
                grp = grp + [f"v_lshlrev_b32 v{t+2*i}, 16, v{RAW+k+i}", f"v_and_b32 v{t+2*i+1}, s{S_MASK}, v{RAW+k+i}"]
            for i in range(2):
                grp.append(f"v_pk_fma_f32 v[{t+2*i}:{t+2*i+1}], v[{t+2*i}:{t+2*i+1}], v[{u}:{u+1}], v[{u+2}:{u+3}]")
            self.norm.append(grp)
            done = [f"v_cvt_pk_bf16_f32 v{RAW+k+i}, v{t+2*i}, v{t+2*i+1}" for i in range(2)]
            done += [f"v_accvgpr_write_b32 a{XN+k+i}, v{RAW+k+i}" for i in range(2)]
        if done:
            self.norm.append(done)
        for s in range(8):
            e(f"v_add_u32 v{V_AS+8+s}, 0x10000, v{V_AS+s}")
        self.stamp(3)

    def zero_row(self, b, z):
        self.q(f"v_mov_b32 v{z}, 0", f"v_mov_b32 v{z+1}, s{S_EPOCH}", f"v_mov_b32 v{z+2}, 0", f"v_mov_b32 v{z+3}, s{S_EPOCH}",
               *self.ex_base(S_T2, b),
               f"buffer_store_dwordx4 v[{z}:{z+3}], v{V_LBO+1}, {srd(SWS)}, s{S_T2} offen sc1")

    def job_setup(self, kind):
        def q(*texts):
            for t in texts:
                self.p.e(t)
        vo = V_JW if kind == "W" else self.vjc
        q(f"v_lshrrev_b32 v{vo}, 3, v{V_LANE}", f"v_mul_u32_u24 v{vo}, 1280, v{vo}",
          f"v_and_b32 v{vo+1}, 7, v{V_LANE}", f"v_lshl_add_u32 v{vo}, v{vo+1}, 4, v{vo}")
        if kind == "W":
            for k in range(1, 4):
                q(f"v_add_u32 v{vo+k}, {k*(8*1280 - 1024)}, v{vo}")
            q(*self.mk_srd(SA1, K_WD, FF_BYTES),
              f"s_lshl_b32 s{S_JOB}, s{S_SB}, 4", f"s_add_u32 s{S_JOB}, s{S_JOB}, s{S_MT}")
        else:
            q(f"v_add_u32 v{vo+1}, {8*1280 - 1024}, v{vo}")
            q(*self.mk_srd(SA1, K_CRE, SQ_BYTES), *self.mk_srd(SA2, K_CIM, SQ_BYTES),
              f"s_mov_b32 s{S_JOB}, s{S_MT}")
        q(f"s_lshl_b32 s{S_JOB}, s{S_JOB}, 2", f"s_add_u32 s{S_JOB}, s{S_JOB}, s{S_W}")

    def job_index(self, kind, i):
        e = self.p.e
        e(f"s_add_u32 s{S_J2}, s{S_JOB}, {64 * i + (292 if self.fused else 0)}")
        e(f"s_mul_hi_u32 s{S_T1}, s{S_J2}, 0x1999999a")
        e(f"s_mul_i32 s{S_R}, s{S_T1}, 10")
        e(f"s_sub_u32 s{S_R}, s{S_J2}, s{S_R}")

    def job_source(self, kind, i):
        e = self.p.e
        self.job_index(kind, i)
        e(f"s_mul_i32 s{S_T0}, s{S_T1}, {(32 if kind == 'W' else 16) * 1280}")
        e(f"s_lshl_b32 s{S_XB}, s{S_R}, 7")
        e(f"s_add_u32 s{S_T0}, s{S_T0}, s{S_XB}")
        e(f"s_cmp_lt_u32 s{S_J2}, {540 if kind == 'W' else 400}")
        e(f"s_cselect_b32 s{S_T0}, s{S_T0}, {OOB}")

    def w_job(self, R):
        p, q = self.p, self.q
        st = {}
        D = R + 4
        q(f"v_lshrrev_b32 v{R}, 5, v{V_LANE}", f"v_lshlrev_b32 v{R}, 4, v{R}",
          f"v_bfe_u32 v{R+1}, v{V_LANE}, 2, 3", f"v_add_u32 v{R}, v{R}, v{R+1}",
          f"v_lshlrev_b32 v{R}, 7, v{R}", f"v_and_b32 v{R+1}, 3, v{V_LANE}",
          f"v_lshl_add_u32 v{R}, v{R+1}, 3, v{R}", f"v_add_u32 v{R}, s{S_J1}, v{R}")
        ad, cb = S_JOB, S_R
        q(f"s_lshl_b32 s{cb}, s{cb}, 2", f"s_mul_hi_u32 s{ad}, s{cb}, 0x33333334", f"s_mul_i32 s{S_XB}, s{ad}, 5",
          f"s_sub_u32 s{cb}, s{cb}, s{S_XB}", f"s_mul_i32 s{ad}, s{ad}, 94", f"s_add_u32 s{ad}, s{ad}, s{S_T1}",
          f"s_mul_i32 s{ad}, s{ad}, 5", f"s_add_u32 s{ad}, s{ad}, s{cb}", f"s_lshl_b32 s{ad}, s{ad}, 10",
          f"s_add_u32 s{ad}, s{ad}, {W2F_OFF}",
          [f"s_cmp_lt_u32 s{S_J2}, 540", f"s_cselect_b32 s{ad}, s{ad}, {OOB}"])
        self.fill.append(("t", lambda: 100 in self.stage_tok and p.vdone >= self.stage_tok[100][1]))
        for f in range(4):
            def rd(f=f):
                p.wait(self.stage_tok[100])
                p.e(f"ds_read_b64_tr_b16 v[{D+4*f}:{D+4*f+1}], v{R} offset:{32*f}")
                st[f] = p.e(f"ds_read_b64_tr_b16 v[{D+4*f+2}:{D+4*f+3}], v{R} offset:{32*f + 1024}")
            rd.cost = 2
            self.fill.append(rd)
        self.lag(5)
        for f in range(4):
            self.fill.append(lambda f=f: p.wait(st[f]))
            self.fill.append(lambda f=f: setattr(self, "job_store", p.e(
                f"buffer_store_dwordx4 v[{D+4*f}:{D+4*f+3}], v{V_TW+2}, {srd(SWS)}, s{ad} offen{self.wt}")))
            if f < 3:
                q([f"s_cmp_eq_u32 s{cb}, {4 - f}", f"s_cselect_b32 s{S_XB}, {93*5120}, 0"],
                  f"s_add_u32 s{ad}, s{ad}, s{S_XB}", f"s_add_u32 s{ad}, s{ad}, 1024")

    def w2f_addr(self, dst, b16, kstep):
        e = self.p.e
        e(f"s_mul_hi_u32 s{S_D1}, s{b16}, 0x33333334")
        e(f"s_mul_i32 s{S_D2}, s{S_D1}, 5")
        e(f"s_sub_u32 s{S_D2}, s{b16}, s{S_D2}")
        e(f"s_mul_i32 s{S_D1}, s{S_D1}, 94")
        e(f"s_add_u32 s{S_D1}, s{S_D1}, s{kstep}")
        e(f"s_mul_i32 s{S_D1}, s{S_D1}, 5")
        e(f"s_add_u32 s{S_D1}, s{S_D1}, s{S_D2}")
        e(f"s_lshl_b32 s{dst}, s{S_D1}, 10")
        e(f"s_add_u32 s{dst}, s{dst}, {W2F_OFF}")

    def job_finish(self, kind, rounds, R):
        p, e = self.p, self.p.e
        while self.dq:
            self.dma()
        if kind == "W":
            e(f"v_lshrrev_b32 v{R}, 5, v{V_LANE}"); e(f"v_lshlrev_b32 v{R}, 4, v{R}")
            e(f"v_bfe_u32 v{R+1}, v{V_LANE}, 2, 3"); e(f"v_add_u32 v{R}, v{R}, v{R+1}")
            e(f"v_lshlrev_b32 v{R}, 7, v{R}"); e(f"v_and_b32 v{R+1}, 3, v{V_LANE}")
            e(f"v_lshl_add_u32 v{R}, v{R+1}, 3, v{R}")
        else:
            e(f"v_and_b32 v{R}, 15, v{V_LANE}"); e(f"v_lshlrev_b32 v{R}, 7, v{R}")
            e(f"v_lshrrev_b32 v{R+1}, 4, v{V_LANE}"); e(f"v_lshl_add_u32 v{R}, v{R+1}, 3, v{R}")
            e(f"s_mov_b32 s{S_KS}, 0x05040100"); e(f"s_mov_b32 s{S_KS+1}, 0x07060302")
        e(f"v_add_u32 v{R}, s{S_W4K}, v{R}")
        e(f"v_add_u32 v{R+1}, 0x10000, v{R}")
        for i in range(rounds):
            n = 15 + i
            slot = n % 8
            va, off = R + slot // 4, (slot % 4) * 16384
            D = R + 4 + 32 * (i % 2)
            p.wait(self.stage_tok[n])
            tk = []
            for f in range(4):
                if kind == "W":
                    e(f"ds_read_b64_tr_b16 v[{D+4*f}:{D+4*f+1}], v{va} offset:{off + 32*f}")
                    tk.append(e(f"ds_read_b64_tr_b16 v[{D+4*f+2}:{D+4*f+3}], v{va} offset:{off + 32*f + 1024}"))
                else:
                    e(f"ds_read_b64 v[{D+16+4*f}:{D+16+4*f+1}], v{va} offset:{off + 32*f}")
                    tk.append(e(f"ds_read_b64 v[{D+16+4*f+2}:{D+16+4*f+3}], v{va} offset:{off + 32*f + 2048}"))
            self.job_index(kind, i)
            e(f"s_lshl_b32 s{S_R}, s{S_R}, 2")
            if kind == "C":
                e(f"s_add_u32 s{S_R}, s{S_R}, 54")
                self.w2f_addr(S_T0, S_T1, S_R)
                e(f"s_cmp_lt_u32 s{S_J2}, 400")
                e(f"s_cselect_b32 s{S_T0}, s{S_T0}, {OOB}")
            for f in range(4):
                if kind == "W":
                    self.w2f_addr(S_T0, S_KD2, S_T1)
                    e(f"s_cmp_lt_u32 s{S_J2}, 540")
                    e(f"s_cselect_b32 s{S_T0}, s{S_T0}, {OOB}")
                    e(f"s_add_u32 s{S_KD2}, s{S_KD2}, 1")
                    p.wait(tk[f])
                else:
                    p.wait(tk[f])
                    re, im = D + 16 + 4 * f, D + 16 + 4 * f + 2
                    for k in range(2):
                        e(f"v_perm_b32 v{D+4*f+2*k}, v{im+k}, v{re+k}, s{S_KS}")
                        e(f"v_perm_b32 v{D+4*f+2*k+1}, v{im+k}, v{re+k}, s{S_KS+1}")
                e(f"buffer_store_dwordx4 v[{D+4*f}:{D+4*f+3}], v{V_TW+2}, {srd(SWS)}, s{S_T0} offen{self.wt}")
                if kind == "C" and f < 3:
                    e(f"s_add_u32 s{S_T0}, s{S_T0}, 5120")

    def w_prefetch(self):
        e = self.p.e
        t = V_PRE + 2
        e(f"v_lshrrev_b32 v{t}, 1, v{V_LANE}")
        e(f"v_mul_u32_u24 v{t}, 3456, v{t}")
        e(f"v_and_b32 v{t+1}, 1, v{V_LANE}")
        e(f"v_lshl_add_u32 v{t}, v{t+1}, 7, v{t}")
        e(f"s_and_b32 s{S_T2}, s{S_W}, 1")
        e(f"s_mul_i32 s{S_T2}, s{S_T2}, {-12*3456 & 0xffffffff:#x}")
        e(f"s_mul_i32 s{S_T3}, s{S_MT}, {40*3456}")
        e(f"s_add_u32 s{S_T2}, s{S_T2}, s{S_T3}")
        e(f"s_add_u32 s{S_T2}, s{S_T2}, s{S_D1}")
        e("s_mov_b32 exec_hi, 0xff")
        e(f"buffer_load_dword v{t+1}, v{t}, {srd(SF)}, s{S_T2} offen")
        e("s_mov_b64 exec, -1")

    def w_prefetch_early(self):
        e = self.p.e
        b = S_M2
        e(f"s_cmp_ge_u32 s{S_W}, 2")
        e(f"s_cselect_b32 s{b}, s{K_WU}, s{K_WG}"); e(f"s_cselect_b32 s{b+1}, s{K_WU+1}, s{K_WG+1}")
        e(f"s_and_b32 s{S_T2}, s{S_W}, 1")
        e(f"s_lshl_b32 s{S_T3}, s{S_MT}, 1")
        e(f"s_add_u32 s{S_T2}, s{S_T2}, s{S_T3}")
        e(f"s_mul_i32 s{S_T2}, s{S_T2}, {20*3456}")
        e(f"s_min_u32 s{S_T3}, s{S_D1}, 25")
        e(f"s_lshl_b32 s{S_T3}, s{S_T3}, 7")
        e(f"s_add_u32 s{S_T2}, s{S_T2}, s{S_T3}")
        e(f"s_add_u32 s{b}, s{b}, s{S_T2}"); e(f"s_addc_u32 s{b+1}, s{b+1}, 0")
        if self.opt["wpre"] == 2:
            t = V_PRE + 2
            e(f"v_lshrrev_b32 v{t}, 1, v{V_LANE}")
            e(f"v_mul_u32_u24 v{t}, 3456, v{t}")
            e(f"v_and_b32 v{t+1}, 1, v{V_LANE}")
            e(f"v_lshl_add_u32 v{t}, v{t+1}, 7, v{t}")
            e("s_mov_b32 exec_hi, 0xff")
            e(f"global_load_dword v{t+1}, v{t}, s[{b}:{b+1}]")
            e("s_mov_b64 exec, -1")
        else:
            for k in range(self.opt.get("wpre_n", 20)):
                e(f"s_load_dword s{S_SPIN}, s[{b}:{b+1}], {3456*(k % 20) + 128*(k // 20)}")

    def warm_k2(self):
        if not self.opt.get("warm_k2", 1):
            return
        e = self.p.e
        e(f"s_getpc_b64 s[{S_T0}:{S_T1}]")
        self.p.label("K1_PC2")
        e(f"s_add_u32 s{S_T0}, s{S_T0}, gemm2_kernel-K1_PC2")
        e(f"s_addc_u32 s{S_T1}, s{S_T1}, 0")
        e(f"s_lshr_b32 s{S_T2}, s2, 3")
        e(f"s_lshl_b32 s{S_T2}, s{S_T2}, 2")
        e(f"s_add_u32 s{S_T2}, s{S_T2}, s{S_W}")
        e(f"s_lshl_b32 s{S_T2}, s{S_T2}, 7")
        e(f"s_min_u32 s{S_T3}, s{S_T2}, TEXT_END-gemm2_kernel-4")
        e(f"s_min_u32 s{S_T2}, s{S_T2}, 1276")
        e(f"v_mov_b32 v{V_PRE}, s{S_T3}")
        e(f"v_mov_b32 v{V_PRE+1}, s{S_T2}")
        e("s_mov_b64 exec, 1")
        e(f"global_load_dword v{V_PRE+2}, v{V_PRE}, s[{S_T0}:{S_T1}]")
        e(f"global_load_dword v{V_PRE+3}, v{V_PRE+1}, s[{K_DSK}:{K_DSK+1}]")
        e("s_mov_b64 exec, -1")

    def finish(self, k):
        p, e = self.p, self.p.e
        e(f"s_lshl_b32 s{S_T2}, s{S_CG}, 7")
        e(f"s_add_u32 s{S_T2}, s{S_T2}, {EPOCH_OFF}")
        e(f"s_cmp_eq_u32 s{S_MT}, 15")
        e(f"s_cselect_b32 s{S_T2}, s{S_T2}, {OOB}")
        e(f"v_mov_b32 v0, s{S_EPOCH}")
        e(f"buffer_store_dword v0, off, {srd(SWS)}, s{S_T2} sc1")
        self.spin_out = True
        self.stamp_out(k)
        e("s_endpgm")

    def snapshot(self):
        p = self.p
        return (p.vq, p.vdone, p.lq, p.ldone, dict(self.stage_tok), list(self.pre_barrier), self.nbar, self.mf,
                set(self.seen), list(self.fill), list(self.dq), list(self.norm), self.vgap)

    def restore(self, s):
        p = self.p
        (p.vq, p.vdone, p.lq, p.ldone, st, pb, self.nbar, self.mf, seen, fill, dq, norm, self.vgap) = s
        self.stage_tok, self.pre_barrier, self.seen = dict(st), list(pb), set(seen)
        self.fill, self.dq, self.norm = list(fill), list(dq), list(norm)

    def run(self, stages, frags, hooks, wjob=False):
        plan = {n: (lambda n=n: self.issue_stage(n + 6, *stages[n + 6])) for n in range(len(stages) - 6)}
        if stages[5][0] == "F" and self.opt.get("wpre", 1) == 1:
            self.dq.append(self.w_prefetch)
        self.issue_stage(5, *stages[5])
        if self.fused and self.opt.get("job_mode") == "dma":
            self.dq.extend(self.job_ld)
        if wjob and not self.fused:
            self.job_setup("W")
            self.issue_stage(100, "W", 0, 0)
        self.gemm(frags, plan, hooks)
        return plan

    def build(self):
        p, e, o = self.p, self.p.e, self.opt
        self.prologue()
        e(f"s_cmp_eq_u32 s{S_TYPE}, 2")
        e("s_cbranch_scc1 K1_TYPE_C")
        e(f"s_cmp_eq_u32 s{S_TYPE}, 1")
        e("s_cbranch_scc1 K1_TYPE_B")
        snap = self.snapshot()
        g1, g2 = o.get("lb_issue", 80 + 80), o.get("lb_check", 80 + 100)
        head = [("S", i, 0) for i in range(5)] + [("F", i, S_D1) for i in range(10)]
        for typ in "AB":
            if typ == "B":
                p.label("K1_TYPE_B")
                self.restore(snap)
            m0 = self.mf

            def start_ssm(typ=typ, m0=m0):
                self.stamp(4)
                if typ == "B":
                    self.job_setup("C")
                self.ssm_reduce(0, ACC_S, 188)
                if typ == "A":
                    self.w_job(188)
                self.ssm_finish(0, ACC_S, 188, lambda: self.mf - m0 >= g1, lambda: self.mf - m0 >= g2, typ)

            def at_d2():
                self.stamp(5)
                self.ffn_epilogue(ACC_D1, S_KD1)
            frags = self.s_frags(0, ACC_S) + self.d_frags(5, ACC_D1)
            if typ == "A":
                self.run(head + [("F", i, S_D2) for i in range(10)], frags + self.d_frags(15, ACC_D2),
                         {81: start_ssm, 240: at_d2}, True)
                self.stamp(6)
                self.flush()
                self.warm_k2()
                self.ffn_tail(ACC_D2, S_KD2)
                self.stamp(7)
            else:
                stages = head + [("C", i, 0) for i in range(7)]
                self.run(stages[:21], frags, {81: start_ssm})
                self.stamp(5)
                self.mf += 1000
                self.barrier()
                self.issue_stage(21, *stages[21])
                while self.dq:
                    self.dma()
                self.flush()
                self.ffn_tail(ACC_D1, S_KD1)
                self.stamp(6)
                self.job_finish("C", 7, ACC_D2 - 4)
                self.stamp(7)
            self.finish(8)
        p.label("K1_TYPE_C")
        self.restore(snap)
        stages = [("S", i % 5, i // 5) for i in range(15)]
        frags = self.s_frags(0, 16) + self.s_frags(5, 48) + self.s_frags(10, 80)
        m0 = self.mf

        def c1():
            self.stamp(4)
            self.ssm_reduce(0, 16, 152)
            for b in (1, 2):
                self.q(*self.ssm_consts(b, V_C + 12 * b + 6, 112))
                self.zero_row(b, 112)

        def c2():
            self.stamp(5)
            self.ssm_reduce(1, 48, 152)
            self.ssm_finish(0, 16, 112, None, lambda: self.mf - m0 >= 215, "C0")
        self.run(stages, frags, {81: c1, 161: c2})
        self.stamp(6)
        self.mf += 1000
        self.flush()
        self.ssm_reduce(2, 80, 152)
        self.ssm_finish(1, 48, 112, None, None, "C1")
        self.flush()
        self.stamp(7)
        self.ssm_finish(2, 80, 112, None, None, "C2")
        self.flush()
        self.finish(8)
        self.slow_paths()
        p.label("K1_END")
        e("s_endpgm")
        p.fix_hazards()
        return p


K1_DESC = """
.amdhsa_kernel proj_kernel
  .amdhsa_next_free_vgpr 512
  .amdhsa_next_free_sgpr 102
  .amdhsa_accum_offset 256
  .amdhsa_group_segment_fixed_size 0
  .amdhsa_kernarg_size 128
  .amdhsa_user_sgpr_count 2
  .amdhsa_user_sgpr_kernarg_segment_ptr 1
  .amdhsa_system_sgpr_workgroup_id_x 1
  .amdhsa_float_denorm_mode_32 3
.end_amdhsa_kernel
"""
```

```python
X_BYTES = 2048 * 640 * 2
OUT_BYTES = 2048 * 640 * 4
SQ_BYTES = 640 * 640 * 2
FF_BYTES = 640 * 1728 * 2
A2_OFF = 0
A2_BYTES = 32 * 94 * 4096
W2F_OFF = 0x00C00000
W2F_BYTES = 8 * 94 * 5120
STATS_OFF = 0x01000000
EX_OFF = 0x01010000
EX_BLK = 17 * 512
EPOCH_OFF = 0x01040000
STAMP1_OFF = 0x01050000
STAMP2_OFF = 0x01070000
WS_USED = 0x01090000
OOB = 0x40000000
PART_OFF = 0x01100000
FLAG_OFF = 0x01600000
WS_USED = 0x01720000
JF_OFF = 0x01700000
DONE_OFF = 0x01048000
DONE1_OFF = 0x01708000
PART3_OFF = 0x01800000
WS_USED3 = 0x02400000
```

```python
from k1 import *

NAME = "parallel_sum__ssm_conv_s5__glu_gated_geglu__prompt_kernel"
S_WB = 28
S_D2X, S_R2 = 100, 101
S_A, S_OOB, S_XO, S_OO, S_PO, S_PI, S_N, S_A0, S_TG, S_DN, S_DIV = 68, 69, 70, 71, 72, 73, 74, 75, 76, 80, 81
S_A1 = 82
SD, SO = SS, SF
V_L16, V_L16B, V_WA, V_PK = 3, 4, 5, 13
ACC1, ACC2, RING = 16, 96, 176
V_OA, V_LA, V_T = 240, 245, 250
WMAP = [192 + 4 * k for k in range(16)] + [4 * k for k in range(40)] + [160 + 4 * k for k in range(4)]
SLOT5 = 176
S_TB, S_WB0 = 24, 26
ORDERS = {"k0": [0, 1, 4, 5, 8, 9, 2, 3, 6, 7, 10, 11], "w0": [1, 2, 7, 8, 9, 10, 11, 0, 3, 4, 5, 6],
          "nat": list(range(12)), "w3": [0, 1, 2, 5, 6, 7, 8, 3, 4, 9, 10, 11]}


def nib(name, half):
    return sum(v << (4 * k) for k, v in enumerate(ORDERS[name][8 * half:8 * half + 8]))


def rel(dst, i):
    return f"s_bfe_u32 s{dst}, s{S_TB + i // 8}, {(4 << 16) | (4 * (i % 8)):#x}"


def slot(g, f):
    k = g % 5
    return f"v[{RING+16*k+4*f}:{RING+16*k+4*f+3}]" if k < 4 else f"a[{SLOT5+4*f}:{SLOT5+3+4*f}]"


class Fused(K1):
    def __init__(self, opt):
        super().__init__(opt)
        self.name = NAME
        self.fused = True
        self.polls = []
        self.heads = []
        self.JA = RAW + 140

    def stats_to_lds(self):
        e = self.p.e
        e(f"ds_write2_b32 v0, v{V_X+8}, v{V_X+10} offset1:1")
        e(f"v_add_u32 v0, 0x1000, v{V_TW+2}")
        T = V_X
        for x in (f"v_mov_b32 v{T+4}, 0", f"v_min_u32 v{T+5}, 6, v{V_SEG}", f"v_sub_u32 v{T+5}, v{T+5}, v{V_SEG}",
                  f"v_lshl_add_u32 v{T+5}, v{T+5}, 3, v{V_XR}", f"ds_write2_b32 v{T+5}, v{T+4}, v{T+4} offset1:1"):
            e(x)

    def flag_store(self, tmp, base, hi, lo):
        t = S_WB + 1
        return [[f"s_lshl_b32 s{t}, s{hi}, 4", f"s_add_u32 s{t}, s{t}, s{lo}", f"s_lshl_b32 s{t}, s{t}, 7",
                 f"s_add_u32 s{t}, s{t}, {base}", f"s_cmp_eq_u32 s{S_W}, 0", f"s_cselect_b32 s{t}, s{t}, {OOB}"],
                f"v_mov_b32 v{tmp}, s{S_EPOCH}",
                ["s_mov_b64 exec, 1", f"buffer_store_dword v{tmp}, off, {srd(SWS)}, s{t} sc1", "s_mov_b64 exec, -1"]]

    def flag_later(self, tmp, delay, tok, base, hi, lo):
        def raise_flag():
            for x in self.flag_store(tmp, base, hi, lo):
                for y in (x if isinstance(x, list) else [x]):
                    self.p.e(y)

        def arm():
            self.pre_barrier.append(tok())
            self.on_barrier.append(raise_flag)
        if delay is None:
            self.lazy.append((tok(), raise_flag))
        else:
            self.timers.append((self.mf + delay, arm))

    def a_job_setup(self):
        e, o = self.p.e, self.opt
        u, t, t2, ct = S_R, S_T2, S_T3, S_T1
        A = self.JA
        e(f"s_lshl_b32 s{u}, s{S_MT}, 2"); e(f"s_add_u32 s{u}, s{u}, s{S_W}")
        e(f"s_and_b32 s{ct}, s{S_CG}, 7")
        e(f"s_cmp_ge_u32 s{S_CG}, 8"); e(f"s_cselect_b32 s{t}, 7, 64"); e(f"s_cselect_b32 s{t2}, 47, 0")
        e(f"s_cselect_b32 s{S_JOB}, 57, 47")
        e(f"s_cmp_lt_u32 s{u}, s{S_JOB}"); e(f"s_cselect_b32 s{S_D2X}, 0, {OOB}")
        e(f"s_cmp_ge_u32 s{u}, s{t}"); e(f"s_cselect_b32 s{S_J2}, 1, 0")
        e("s_cbranch_scc1 JOB_C")
        for x in self.mk_srd(SA1, K_WD, FF_BYTES) + self.mk_srd(SA2, K_WD, FF_BYTES):
            e(x)
        e(f"s_add_u32 s{u}, s{u}, s{t2}")
        e(f"s_mul_i32 s{S_R2}, s{u}, {32*1280}"); e(f"s_mul_i32 s{t}, s{ct}, 160")
        e(f"s_add_u32 s{S_R2}, s{S_R2}, s{t}")
        e(f"s_mul_i32 s{S_JOB}, s{ct}, 94"); e(f"s_add_u32 s{S_JOB}, s{S_JOB}, s{u}")
        e(f"s_mul_i32 s{S_JOB}, s{S_JOB}, 5120")
        e(f"s_mov_b32 s{t}, 0xcccd")
        for q in range(5):
            e(f"v_add_u32 v{A+5}, {64*q}, v{V_LANE}"); e(f"v_mul_lo_u32 v{A+q}, v{A+5}, s{t}")
            e(f"v_lshrrev_b32 v{A+q}, 19, v{A+q}"); e(f"v_mul_u32_u24 v{A+q}, 1120, v{A+q}")
            e(f"v_lshl_add_u32 v{A+q}, v{A+5}, 4, v{A+q}")
        e("s_branch JOB_LD")
        self.p.label("JOB_C")
        for x in self.mk_srd(SA1, K_CRE, SQ_BYTES) + self.mk_srd(SA2, K_CIM, SQ_BYTES):
            e(x)
        e(f"s_sub_u32 s{u}, s{u}, 7")
        e(f"s_mul_hi_u32 s{t}, s{u}, 0x1999999a"); e(f"s_mul_i32 s{t2}, s{t}, 10"); e(f"s_sub_u32 s{u}, s{u}, s{t2}")
        e(f"s_mul_i32 s{t2}, s{ct}, 5"); e(f"s_add_u32 s{t2}, s{t2}, s{t}")
        e(f"s_mul_i32 s{S_R2}, s{t2}, {16*1280}"); e(f"s_lshl_b32 s{t2}, s{u}, 7")
        e(f"s_add_u32 s{S_R2}, s{S_R2}, s{t2}")
        e(f"s_mul_i32 s{S_JOB}, s{ct}, 94"); e(f"s_lshl_b32 s{u}, s{u}, 2"); e(f"s_add_u32 s{S_JOB}, s{S_JOB}, s{u}")
        e(f"s_add_u32 s{S_JOB}, s{S_JOB}, 54"); e(f"s_mul_i32 s{S_JOB}, s{S_JOB}, 5")
        e(f"s_add_u32 s{S_JOB}, s{S_JOB}, s{t}"); e(f"s_lshl_b32 s{S_JOB}, s{S_JOB}, 10")
        e(f"v_lshrrev_b32 v{A}, 3, v{V_LANE}"); e(f"v_mul_u32_u24 v{A}, 1280, v{A}")
        e(f"v_and_b32 v{A+1}, 7, v{V_LANE}"); e(f"v_lshl_add_u32 v{A}, v{A+1}, 4, v{A}")
        e(f"v_add_u32 v{A+1}, {8*1280}, v{A}"); e(f"v_mov_b32 v{A+2}, v{A}"); e(f"v_mov_b32 v{A+3}, v{A+1}")
        e(f"v_mov_b32 v{A+4}, {OOB}")
        self.p.label("JOB_LD")
        e(f"s_add_u32 s{S_JOB}, s{S_JOB}, {W2F_OFF}")
        e(f"s_or_b32 s{S_JOB}, s{S_JOB}, s{S_D2X}"); e(f"s_or_b32 s{S_R}, s{S_R2}, s{S_D2X}")
        if o.get("job_mode") == "dma":
            def piece(q):
                e(f"s_add_u32 m0, s{S_J1}, {1024*q}")
                self.job_tok = e(f"buffer_load_dwordx4 v{A+q}, {srd(SA1 if q < 2 else SA2)}, s{S_R} offen lds")
            self.job_ld = [lambda q=q: piece(q) for q in range(5)]
            return
        self.job_ld = [lambda q=q: setattr(self, "job_tok", e(
            f"buffer_load_dwordx4 a[{192+4*q}:{195+4*q}], v{A+q}, {srd(SA1 if q < 2 else SA2)}, s{S_R} offen"))
            for q in range(5)]
        if o.get("job_dq"):
            self.dq.extend(self.job_ld)
        elif not o.get("job_late"):
            for f in self.job_ld:
                f()

    def a_job(self, is_c, m0, R, L):
        p, q = self.p, self.q
        st = {}
        D = R + 2

        def at(k):
            self.fill.append(("t", lambda: self.mf - m0 >= k + self.opt.get("fork_at", 65)))
        if is_c:
            q(f"v_and_b32 v{R}, 15, v{V_LANE}", f"v_lshlrev_b32 v{R}, 7, v{R}",
              f"v_lshrrev_b32 v{R+1}, 4, v{V_LANE}", f"v_lshl_add_u32 v{R}, v{R+1}, 3, v{R}")
        else:
            q(f"v_lshrrev_b32 v{R}, 5, v{V_LANE}", f"v_lshlrev_b32 v{R}, 4, v{R}",
              f"v_bfe_u32 v{R+1}, v{V_LANE}, 2, 3", f"v_add_u32 v{R}, v{R}, v{R+1}",
              f"v_mul_u32_u24 v{R}, 160, v{R}", f"v_and_b32 v{R+1}, 3, v{V_LANE}",
              f"v_lshl_add_u32 v{R}, v{R+1}, 3, v{R}")
        q(f"v_add_u32 v{R}, s{S_J1}, v{R}", f"v_add_u32 v{R+1}, s{S_J1}, v{V_TW+2}")
        at(2)
        dma = self.opt.get("job_mode") == "dma"
        if dma:
            st["w"] = self.job_tok
        else:
            self.fill.append(lambda: p.wait(self.job_tok))
        for f in range(0 if dma else 5):
            at(2 + f // 2)
            self.fill.append(lambda f=f: st.__setitem__("w", p.e(
                f"ds_write_b128 v{R+1}, a[{192+4*f}:{195+4*f}] offset:{1024*f}")))
        land = [(L if is_c else D) + 4 * f for f in range(5)]
        for f in range(5):
            at((3 if dma else 7) + f // 2)

            def rd(f=f):
                p.wait(st["w"])
                op, o2 = ("ds_read_b64", 2048) if is_c else ("ds_read_b64_tr_b16", 1280)
                p.e(f"{op} v[{land[f]}:{land[f]+1}], v{R} offset:{32*f}")
                st[f] = p.e(f"{op} v[{land[f]+2}:{land[f]+3}], v{R} offset:{32*f + o2}")
            rd.cost = 2
            self.fill.append(rd)
        if is_c:
            q(f"s_mov_b32 s{S_T2}, 0x05040100", f"s_mov_b32 s{S_T3}, 0x07060302")
        at(8 if dma else 12)
        self.fill.append(lambda: p.wait(st[4]))
        for f in range(5):
            if is_c and f < 4:
                re, im = land[f], land[f] + 2
                for k in range(2):
                    q(f"v_perm_b32 v{D+4*f+2*k}, v{im+k}, v{re+k}, s{S_T2}",
                      f"v_perm_b32 v{D+4*f+2*k+1}, v{im+k}, v{re+k}, s{S_T3}")
            at((10 if dma else 14) + 2 * f)
            self.fill.append(lambda f=f: setattr(self, "job_store", p.e(
                f"buffer_store_dwordx4 v[{D+4*f}:{D+4*f+3}], v{V_TW+2}, {srd(SWS)}, s{S_JOB} offen{self.wt}")))
            if f < 4:
                q(f"s_add_u32 s{S_JOB}, s{S_JOB}, {(5120 if f < 3 else OOB) if is_c else 1024}")

    def fork_job(self, tag, m0, R, L):
        e, fa = self.p.e, self.opt.get("fork_at", 65)
        n = 20 if self.opt.get("job_mode") == "dma" else 24
        self.fork = (fa, fa + n, lambda: (e(f"s_cmp_eq_u32 s{S_J2}, 1"), e(f"s_cbranch_scc1 FORK_ALT_{tag}")),
                     lambda: self.a_job(False, m0, R, L), lambda: self.a_job(True, m0, R, L), tag)
        return fa + n

    def jf_load(self, R):
        e = self.p.e
        e(f"s_lshl_b32 s{S_WB+1}, s{S_CG}, 11")
        e(f"s_add_u32 s{S_WB+1}, s{S_WB+1}, {JF_OFF}")
        e(f"v_and_b32 v{R+1}, 15, v{V_LANE}")
        e(f"v_lshlrev_b32 v{R+1}, 7, v{R+1}")
        self.jf_tok = self.flag_load(R)

    def flag_load(self, R):
        e = self.p.e
        e(f"v_mov_b32 v{R}, s{S_EPOCH}")
        e("s_mov_b64 exec, 0xffff")
        t = e(f"buffer_load_dword v{R}, v{R+1}, {srd(SWS)}, s{S_WB+1} offen sc1")
        e("s_mov_b64 exec, -1")
        return t

    def all_equal(self, R, n, label):
        e = self.p.e
        e(f"v_xor_b32 v{R}, s{S_EPOCH}, v{R}")
        for k in range(1, n):
            e(f"v_bitop3_b32 v{R}, v{R}, v{R+k}, s{S_EPOCH} bitop3:0xf6")
        e(f"v_cmp_ne_u32 vcc, 0, v{R}")
        e(f"s_cbranch_vccnz {label}")

    def jf_check(self, R, tag, first, per):
        p, e = self.p, self.p.e
        e(f"s_mov_b32 s{S_WB+2}, 0")
        p.wait(self.jf_tok)
        e(f"v_cmp_ne_u32 vcc, s{S_EPOCH}, v{R}")
        e(f"s_cbranch_vccnz JF_SLOW_{tag}")
        p.label(f"JF_OK_{tag}")
        self.polls.append((tag, R))
        e(f"s_lshr_b32 s{S_WB}, s{S_CG}, 3")
        e(f"s_mul_i32 s{S_WB}, s{S_WB}, 47")
        e(f"s_mul_i32 s{S_WB+1}, s{S_W}, 12")
        e(f"s_add_u32 s{S_WB+3}, s{S_WB}, s{S_WB+1}")
        e(f"s_and_b32 s{S_WB}, s{S_CG}, 7")
        e(f"s_mul_i32 s{S_WB}, s{S_WB}, 94")
        e(f"s_add_u32 s{S_WB}, s{S_WB}, s{S_WB+3}")
        e(f"s_mul_i32 s{S_WB}, s{S_WB}, 5120")
        e(f"s_add_u32 s{S_WB0}, s{S_WB}, {W2F_OFF}")
        for h in range(2):
            e(f"s_mov_b32 s{S_TB+h}, {nib('nat', h):#x}")
        for cond, name in ((f"s_cmp_eq_u32 s{S_W}, 0", "w0"), (f"s_cmp_eq_u32 s{S_W}, 3", "w3"), (f"s_cmp_lt_u32 s{S_CG}, 8", "k0")):
            e(cond)
            for h in range(2):
                e(f"s_cselect_b32 s{S_TB+h}, {nib(name, h):#x}, s{S_TB+h}")

        def ld(n):
            i, cb = divmod(n, 5)
            if cb == 0:
                e(rel(S_WB, i))
                e(f"s_mul_i32 s{S_WB}, s{S_WB}, 5120")
                e(f"s_add_u32 s{S_WB}, s{S_WB}, s{S_WB0}")
                if i == 11:
                    e(f"s_cmp_eq_u32 s{S_W}, 3")
                    e(f"s_cselect_b32 s{S_WB}, {OOB}, s{S_WB}")
            va, off = ((V_L16 if n >= 60 - self.opt.get("w_keep", 12) else V_TW + 2), 1024 * cb) if cb < 4 else (0, 0)
            e(f"buffer_load_dwordx4 a[{WMAP[n]}:{WMAP[n]+3}], v{va}, {srd(SWS)}, s{S_WB} offen offset:{off} sc1")
        self.wq = [lambda n=n: ld(n) for n in range(60)]
        self.wfrom, self.wper = first, per

    def fire_timers(self):
        for tm in self.timers:
            tm[1]()
        self.timers = []
        for tok, f in self.lazy:
            self.pre_barrier.append(tok)
            self.on_barrier.append(f)
        self.lazy = []
        if self.on_barrier:
            self.barrier()

    def poll_paths(self):
        p, e = self.p, self.p.e
        for tag in self.heads:
            p.label(f"K2_EARLY_SLOW_{tag}")
            e(f"s_sleep {self.opt.get('done_sleep', 8)}")
            e(f"s_add_u32 s{S_SPIN}, s{S_SPIN}, 1")
            e(f"s_cmp_gt_u32 s{S_SPIN}, 100000")
            e(f"s_cbranch_scc1 K2_EARLY_OK_{tag}")
            self.early_load()
            e("s_waitcnt vmcnt(0)")
            e(f"v_cmp_ne_u32 vcc, s{S_EPOCH}, v15")
            e(f"s_cbranch_vccnz K2_EARLY_SLOW_{tag}")
            e(f"s_branch K2_EARLY_OK_{tag}")
        for tag, R in self.polls:
            p.label(f"JF_SLOW_{tag}")
            e("s_sleep 6")
            e(f"s_add_u32 s{S_WB+2}, s{S_WB+2}, 1")
            e(f"s_cmp_gt_u32 s{S_WB+2}, 20000")
            e(f"s_cbranch_scc1 JF_OK_{tag}")
            self.flag_load(R)
            e("s_waitcnt vmcnt(0)")
            e(f"v_cmp_ne_u32 vcc, s{S_EPOCH}, v{R}")
            e(f"s_cbranch_vccnz JF_SLOW_{tag}")
            e(f"s_branch JF_OK_{tag}")

    def w_some(self, n):
        while n > 0 and len(self.wq) > self.opt.get("w_keep", 12):
            self.wq.pop(0)()
            n -= 1

    def a_load(self, g, t, i, f):
        e = self.p.e
        if f == 0:
            e(rel(S_A, i))
            e(f"s_lshl_b32 s{S_A}, s{S_A}, 12")
            e(f"s_add_u32 s{S_A}, s{S_A}, s{S_A0 if t else S_A1}")
            if i == 11:
                e(f"s_cmp_eq_u32 s{S_W}, 3")
                e(f"s_cselect_b32 s{S_A}, s{S_OOB}, s{S_A}")
        return e(f"buffer_load_dwordx4 {slot(g, f)}, v{V_L16}, {srd(SWS)}, s{S_A} offen offset:{1024*f} sc1")

    def early_load(self):
        e = self.p.e
        e(f"v_mov_b32 v15, s{S_EPOCH}")
        e("s_mov_b64 exec, 0xbfff")
        t = e(f"buffer_load_dword v15, v2, {srd(SWS)}, s{S_DIV+2} offen sc1")
        e("s_mov_b64 exec, -1")
        return t

    def phase2_head(self, k, tag):
        p, e = self.p, self.p.e
        self.stamp(k)
        e(f"s_lshl_b32 s{S_DN}, s{S_MT}, 11"); e(f"s_add_u32 s{S_DN}, s{S_DN}, {DONE_OFF}")
        e(f"s_add_u32 s{S_DIV+2}, s{S_DN}, {DONE1_OFF - DONE_OFF}")
        e(f"v_and_b32 v2, 15, v{V_LANE}"); e("v_lshlrev_b32 v2, 7, v2")
        e(f"s_mov_b32 s{S_SPIN}, 0")
        split = self.opt.get("split", 0)
        if tag != "B" and split:
            t_early = self.early_load()
        self.w_some(self.opt.get("head_w", 4))
        for x in self.mk_srd(SD, K_DSK, 1280) + self.mk_srd(SO, K_OUT, OUT_BYTES):
            e(x)
        e(f"v_mov_b32 v{V_L16}, v{V_TW+2}"); e(f"v_mov_b32 v{V_L16B}, v0")
        e(f"s_mov_b32 s{S_N}, s{S_WB+3}")
        e(f"s_lshr_b32 s{S_T2}, s{S_CG}, 3")
        e(f"s_lshl_b32 s{S_T3}, s{S_MT}, 1")
        e(f"s_add_u32 s{S_T3}, s{S_T3}, s{S_T2}")
        e(f"s_mul_i32 s{S_A0}, s{S_T3}, 94"); e(f"s_add_u32 s{S_A0}, s{S_A0}, s{S_N}"); e(f"s_lshl_b32 s{S_A0}, s{S_A0}, 12")
        e(f"s_xor_b32 s{S_A1}, s{S_T3}, 1")
        e(f"s_mul_i32 s{S_A1}, s{S_A1}, 94"); e(f"s_add_u32 s{S_A1}, s{S_A1}, s{S_N}"); e(f"s_lshl_b32 s{S_A1}, s{S_A1}, 12")
        e(f"s_lshl_b32 s{S_T3}, s{S_T3}, 6"); e(f"s_lshl_b32 s{S_T0}, s{S_W}, 4"); e(f"s_add_u32 s{S_T3}, s{S_T3}, s{S_T0}")
        e(f"s_and_b32 s{S_T1}, s{S_CG}, 7"); e(f"s_mul_i32 s{S_T1}, s{S_T1}, 160")
        e(f"s_mul_i32 s{S_XO}, s{S_T3}, 1280"); e(f"s_add_u32 s{S_XO}, s{S_XO}, s{S_T1}")
        e(f"s_lshl_b32 s{S_OO}, s{S_XO}, 1")
        e(f"s_mov_b32 s{S_DIV}, 0xcccd"); e(f"s_mov_b32 m0, s{S_J1}")
        for j in range(3):
            e(f"v_add_u32 v6, {64*j}, v{V_LANE}"); e(f"v_mul_lo_u32 v7, v6, s{S_DIV}"); e("v_lshrrev_b32 v7, 19, v7")
            e("v_mul_u32_u24 v8, 1120, v7"); e("v_lshl_add_u32 v8, v6, 4, v8")
            if j:
                e(f"v_add_u32 v8, {-1024*j & 0xffffffff:#x}, v8")
            if j == 2:
                e("s_mov_b32 exec_hi, 0")
            e(f"buffer_load_dwordx4 v8, {srd(SX)}, s{S_XO} offen offset:{1024*j} lds")
        e(f"s_add_u32 m0, s{S_J1}, 3072"); e("s_mov_b32 exec_lo, 0x3ff")
        t_res = e(f"buffer_load_dwordx4 v{V_L16}, {srd(SD)}, s{S_T1} offen lds")
        e("s_mov_b64 exec, -1")
        e(f"s_lshl_b32 s{S_T0}, s{S_CG}, 7"); e(f"s_add_u32 s{S_T0}, s{S_T0}, s{S_DN}")
        e(f"s_cmp_eq_u32 s{S_W}, 0"); e(f"s_cselect_b32 s{S_T0}, s{S_T0}, {OOB}")
        e(f"v_mov_b32 v{V_T}, s{S_EPOCH}")
        self.barrier(self.last_store)
        e("s_mov_b64 exec, 1")
        e(f"buffer_store_dword v{V_T}, off, {srd(SWS)}, s{S_T0} sc1")
        e("s_mov_b64 exec, -1")
        self.stamp(k + 1)
        self.w_some(60)
        if tag == "B" and split:
            t_early = self.early_load()
        e(f"s_mov_b32 s{S_OOB}, {OOB}")
        if split:
            p.wait(t_early)
            e(f"v_cmp_ne_u32 vcc, s{S_EPOCH}, v15")
            e(f"s_cbranch_vccnz K2_EARLY_SLOW_{tag}")
            p.label(f"K2_EARLY_OK_{tag}")
            self.heads.append(tag)
            p.wait(t_res)
            for g in range(4):
                for f in range(4):
                    self.a_load(g, 0, g, f)
        self.w_rest = list(self.wq)
        e(f"s_and_b32 s{S_T3}, s{S_T3}, 127"); e(f"s_lshl_b32 s{S_T3}, s{S_T3}, 3"); e(f"s_add_u32 s{S_T3}, s{S_T3}, {STL}")
        e(f"s_mul_i32 s{S_T2}, s{S_W}, 5376")
        e(f"v_lshlrev_b32 v10, 3, v{V_LANE}"); e(f"v_add_u32 v10, s{S_J1}, v10")
        XR, DR, SR, T = ACC2, ACC2 + 10, ACC2 + 20, ACC2 + 32
        AD = ACC2 + 60
        for i in range(5):
            e(f"v_add_u32 v6, {64*i}, v{V_LANE}"); e(f"v_mul_lo_u32 v7, v6, s{S_DIV}"); e("v_lshrrev_b32 v7, 20, v7")
            e("v_mul_u32_u24 v8, 20, v7"); e("v_sub_u32 v8, v6, v8")
            e("v_mul_u32_u24 v9, 2560, v7"); e(f"v_lshl_add_u32 v{V_OA+i}, v8, 4, v9")
            e("v_mul_u32_u24 v12, 336, v7"); e("v_lshl_add_u32 v12, v8, 4, v12")
            e(f"v_add_u32 v{V_LA+i}, s{S_T2}, v12")
            e(f"v_lshl_add_u32 v{AD+i}, v8, 3, s{S_J1}"); e(f"v_lshl_add_u32 v11, v7, 3, s{S_T3}")
            e(f"ds_read_b64 v[{SR+2*i}:{SR+2*i+1}], v11")
        e(f"v_and_b32 v{V_WA}, 15, v{V_LANE}"); e(f"v_mul_u32_u24 v{V_WA}, 336, v{V_WA}")
        e(f"v_lshrrev_b32 v6, 4, v{V_LANE}"); e(f"v_lshl_add_u32 v{V_WA}, v6, 4, v{V_WA}")
        e(f"s_mul_i32 s{S_T2}, s{S_W}, 21504"); e(f"v_add_u32 v{V_WA}, s{S_T2}, v{V_WA}")
        e(f"v_add_u32 v{V_PK}, s{S_J1}, v{V_L16}")
        e("s_lshl_b32 s3, s2, 2"); e(f"s_add_u32 s3, s3, s{S_W}")
        e(f"s_mul_i32 s{S_PO}, s3, 5120"); e(f"s_add_u32 s{S_PO}, s{S_PO}, {PART_OFF}")
        e("s_xor_b32 s3, s3, 4")
        e(f"s_mul_i32 s{S_PI}, s3, 5120"); e(f"s_add_u32 s{S_PI}, s{S_PI}, {PART_OFF}")
        e(f"v_mov_b32 v{V_T}, 0xff")
        e(f"s_mov_b32 s{S_TG}, s{S_EPOCH}")
        for j in range(1, 4):
            e(f"s_lshr_b32 s{S_TG+j}, s{S_TG}, {8*j}"); e(f"s_add_u32 s{S_TG+j}, s{S_TG+j}, s{S_TG}")
        t = None
        p.wait(t_res)
        for i in range(5):
            e(f"ds_read_b64 v[{XR+2*i}:{XR+2*i+1}], v10 offset:{512*i}")
            t = e(f"ds_read_b64 v[{DR+2*i}:{DR+2*i+1}], v{AD+i} offset:3072")
        p.wait(t)
        M = f"s{S_MASK}"
        for i in range(5):
            x0, d0, s0 = XR + 2 * i, DR + 2 * i, SR + 2 * i
            for j, r in enumerate((x0, x0 + 1, d0, d0 + 1)):
                e(f"v_lshlrev_b32 v{T+2*j}, 16, v{r}"); e(f"v_and_b32 v{T+2*j+1}, {M}, v{r}")
            for j in range(4):
                e(f"v_fma_f32 v{T+8+j}, v{T+j}, v{s0}, v{s0+1}")
            for rnd in range(2):
                e(f"v_cvt_pk_bf16_f32 v{T+12}, v{T+8}, v{T+9}"); e(f"v_cvt_pk_bf16_f32 v{T+13}, v{T+10}, v{T+11}")
                e(f"v_lshlrev_b32 v{T+8}, 16, v{T+12}"); e(f"v_and_b32 v{T+9}, {M}, v{T+12}")
                e(f"v_lshlrev_b32 v{T+10}, 16, v{T+13}"); e(f"v_and_b32 v{T+11}, {M}, v{T+13}")
                if rnd == 0:
                    for j in (0, 2):
                        e(f"v_pk_mul_f32 v[{T+8+j}:{T+9+j}], v[{T+8+j}:{T+9+j}], v[{T+4+j}:{T+5+j}]")
            o = T + 16 + 4 * (i % 2)
            for j in (0, 2):
                e(f"v_pk_add_f32 v[{o+j}:{o+j+1}], v[{T+j}:{T+j+1}], v[{T+8+j}:{T+9+j}]")
            e(f"ds_write_b128 v{V_PK}, v[{o}:{o+3}] offset:{1024*i}")
        e("s_branch K2_START")

    def phase2(self):
        p, e, opt = self.p, self.p.e, self.opt
        fill, tok, st, ld = [], {}, {}, []
        cur, cnt = {"g": 0}, {"m": 0}
        NS, F = 5, opt.get("k2_fuse", 3)
        PD = NS - 1

        def q(*texts):
            for t in texts:
                fill.append(t if callable(t) else (lambda t=t: e(t)))

        def pull(budget):
            start = p.slots
            while fill and p.slots - start < budget:
                it = fill[0]
                if isinstance(it, tuple):
                    if not it[0]():
                        return
                    fill.pop(0)
                    continue
                fill.pop(0)
                it()

        def lag(n):
            mark = {}
            q(lambda: mark.__setitem__("m", cnt["m"]))
            fill.append((lambda: cnt["m"] >= mark["m"] + n or cur["g"] > 98,))

        J = opt.get("k2_j", 2 if opt.get("split", 0) else 0)
        steps = [(0, i) for i in range(6)] + [(1, i) for i in range(J)] + [(0, i) for i in range(6, 12)] + \
                [(1, i) for i in range(J, 12)]
        G1 = 12 + J
        GL = 6 + J

        def loads(g):
            t, i = steps[g]

            return [lambda f=f: tok.__setitem__(g, self.a_load(g, t, i, f)) for f in range(4)]

        def done_load():
            e(f"v_mov_b32 v15, s{S_EPOCH}")
            e("s_mov_b64 exec, 0xffff")
            st["dn"] = e(f"buffer_load_dword v15, v2, {srd(SWS)}, s{S_DN} offen sc1")
            e("s_mov_b64 exec, -1")

        def done_check():
            e(f"v_cmp_ne_u32 vcc, s{S_EPOCH}, v15")
            e("s_cbranch_vccnz K2_LATE_SLOW")

        def tile_to_lds(acc):
            return [f"ds_write_b128 v{V_WA}, v[{acc+(cb*4+rb)*4}:{acc+(cb*4+rb)*4+3}] offset:{rb*5376 + cb*64}"
                    for cb in range(5) for rb in range(4)]

        def barrier():
            p.wait_all(vm=False)
            e("s_barrier")

        def part_loads():
            for i in range(5):
                r = ACC1 + 16 * i + 8
                va, off = (V_L16, 1024 * i) if i < 4 else (V_L16B, 0)
                st["pi"] = e(f"buffer_load_dwordx4 v[{r}:{r+3}], v{va}, {srd(SWS)}, s{S_PI} offen offset:{off} sc1")

        def part_check():
            for i in range(5):
                for k in range(4):
                    r = ACC1 + 16 * i + 8 + k
                    if i + k == 0:
                        e(f"v_xor_b32 v{V_T+1}, s{S_TG}, v{r}")
                    else:
                        e(f"v_bitop3_b32 v{V_T+1}, v{V_T+1}, v{r}, s{S_TG+k} bitop3:0xf6")
            e(f"v_and_b32 v{V_T+1}, v{V_T}, v{V_T+1}")
            e(f"v_cmp_ne_u32 vcc, 0, v{V_T+1}")
            e("s_cbranch_vccnz K2_SLOW")

        def first_tile_done():
            for x in tile_to_lds(ACC1):
                q(x)
                lag(opt.get("k2_wlag", 2))
            lag(opt.get("k2_blag", 4))
            q(barrier)
            for i in range(5):
                for wv in range(4):
                    r = ACC1 + 16 * i + 4 * wv
                    q(lambda i=i, r=r, wv=wv: st.__setitem__(("rd", i), e(
                        f"ds_read_b128 v[{r}:{r+3}], v{V_LA+i} offset:{wv*21504}")))
            for i in range(5):
                r = ACC1 + 16 * i
                q(lambda i=i: p.wait(st["rd", i]))
                for k in range(4):
                    q(f"v_add_f32 v{r+k}, v{r+k}, v{r+4+k}", f"v_add_f32 v{r+8+k}, v{r+8+k}, v{r+12+k}")
                q(*[f"v_add_f32 v{r+k}, v{r+k}, v{r+8+k}" for k in range(4)])
                q(*[f"v_bfi_b32 v{r+k}, v{V_T}, s{S_TG+k}, v{r+k}" for k in range(4)])
                va, off = (V_L16, 1024 * i) if i < 4 else (V_L16B, 0)
                q(f"buffer_store_dwordx4 v[{r}:{r+3}], v{va}, {srd(SWS)}, s{S_PO} offen offset:{off} sc1")
            q("s_barrier")
            for i in range(5):
                r = ACC1 + 16 * i + 4
                q(lambda i=i, r=r: st.__setitem__("pk", e(f"ds_read_b128 v[{r}:{r+3}], v{V_PK} offset:{1024*i}")))
            fill.append((lambda: cnt["m"] >= opt.get("k2_pollm", 440),))
            q(part_loads)

        def mfma(g, cb, rb):
            t, i = steps[g]
            acc = ACC2 if t else ACC1
            w = WMAP[5 * i + cb]
            c = f"v[{acc+(cb*4+rb)*4}:{acc+(cb*4+rb)*4+3}]"
            start = p.slots
            e(f"v_mfma_f32_16x16x32_bf16 {c}, a[{w}:{w+3}], {slot(g, rb)}, {c if i else 0}")
            cnt["m"] += 1
            if cnt["m"] % 4 == 2 and ld:
                ld.pop(0)()
            elif cnt["m"] % 4 == 0 and wrest:
                wrest.pop(0)()
            return start

        p.label("K2_START")
        if not opt.get("split", 0):
            e(f"s_cmp_lg_u32 s{S_W}, 0")
            e("s_cbranch_scc1 K2_GO")
            e("s_mov_b64 exec, 0xffff")
            p.label("K2_RETRY")
            e(f"buffer_load_dword v15, v2, {srd(SWS)}, s{S_DN} offen sc1")
            e(f"s_add_u32 s{S_SPIN}, s{S_SPIN}, 1")
            e("s_waitcnt vmcnt(0)")
            e(f"v_cmp_ne_u32 vcc, s{S_EPOCH}, v15")
            e("s_cbranch_vccz K2_SEEN")
            e(f"s_sleep {opt.get('done_sleep', 3)}")
            e(f"s_cmp_lt_u32 s{S_SPIN}, 100000")
            e("s_cbranch_scc1 K2_RETRY")
            p.label("K2_SEEN")
            e("s_mov_b64 exec, -1")
            p.label("K2_GO")
            e("s_barrier")
            for g in range(4):
                for f in range(4):
                    self.a_load(g, 0, g, f)
        p.vq, p.vdone, p.lq, p.ldone = 16, 0, 5, 0
        for g in range(4):
            tok[g] = ("v", 4 * g + 4)
        self.stamp(10)
        if opt.get("stamp"):
            e(f"s_mov_b32 s{S_WB+2}, s{S_SPIN}")
        e(f"s_mov_b32 s{S_SPIN}, 0")
        e(f"s_mov_b32 s{S_WB+1}, 0")
        wrest = list(self.w_rest)
        for g in range(24 - F):
            cur["g"] = g
            if g + PD + opt.get("k2_dlead", 2) == GL and opt.get("split", 0):
                done_load()
            if g == G1:
                self.stamp(11)
                first_tile_done()
            p.wait(tok[g])
            if g + PD == GL and opt.get("split", 0):
                p.wait(st["dn"])
                done_check()
                p.label("K2_LATE_OK")
            if g + PD < 24:
                ld.extend(loads(g + PD))
            for cb in range(5):
                for rb in range(4):
                    start = mfma(g, cb, rb)
                    pull(opt.get("k2_b2", 4) - (p.slots - start))
            while ld:
                ld.pop(0)()
        cur["g"] = 98
        wr, tl = [], tile_to_lds(ACC2)
        for cb in range(5):
            n = 0
            for g in range(24 - F, 24):
                p.wait(tok[g])
                for rb in range(4):
                    start = mfma(g, cb, rb)
                    n += 1
                    if wr and n > 2 and (n - 3) % max(1, F - 1) == 0:
                        e(wr.pop(0))
                    pull(opt.get("k2_b2", 4) - (p.slots - start))
            for x in wr:
                e(x)
            wr = tl[4 * cb:4 * cb + 4]
        cur["g"] = 99
        self.stamp(12)
        pull(10000)
        assert not fill
        for x in wr:
            e(x)
        p.wait(st["pi"], st["pk"])
        part_check()
        p.label("K2_OK")
        e(f"s_mov_b32 s{S_DIV}, 0xffffff00")
        for i in range(5):
            s = ACC1 + 16 * i
            for k in range(4):
                e(f"v_and_b32 v{s+8+k}, s{S_DIV}, v{s+8+k}")
            for k in range(0, 4, 2):
                e(f"v_pk_add_f32 v[{s+k}:{s+k+1}], v[{s+4+k}:{s+5+k}], v[{s+8+k}:{s+9+k}]")
        barrier()
        rd = {}
        for i in range(5):
            for wv in range(4):
                r = ACC2 + 16 * i + 4 * wv
                rd[i] = e(f"ds_read_b128 v[{r}:{r+3}], v{V_LA+i} offset:{wv*21504}")
        for i in range(5):
            r, s = ACC2 + 16 * i, ACC1 + 16 * i
            p.wait(rd[i])
            for k in range(0, 4, 2):
                e(f"v_pk_add_f32 v[{r+k}:{r+k+1}], v[{r+k}:{r+k+1}], v[{r+4+k}:{r+5+k}]")
                e(f"v_pk_add_f32 v[{r+8+k}:{r+9+k}], v[{r+8+k}:{r+9+k}], v[{r+12+k}:{r+13+k}]")
                e(f"v_pk_add_f32 v[{s+k}:{s+k+1}], v[{s+k}:{s+k+1}], v[{r+k}:{r+k+1}]")
            for k in range(0, 4, 2):
                e(f"v_pk_add_f32 v[{s+k}:{s+k+1}], v[{s+k}:{s+k+1}], v[{r+8+k}:{r+9+k}]")
            e(f"buffer_store_dwordx4 v[{s}:{s+3}], v{V_OA+i}, {srd(SO)}, s{S_OO} offen{opt.get('owt', ' sc1')}")
        e(f"s_or_b32 s{S_T0}, s2, s{S_W}")
        e(f"s_cmp_eq_u32 s{S_T0}, 0")
        e(f"s_cselect_b32 s{S_T0}, {EPOCH_OFF}, s{S_OOB}")
        e(f"v_mov_b32 v{V_T}, s{S_EPOCH}")
        e("s_mov_b64 exec, 1")
        e(f"buffer_store_dword v{V_T}, off, {srd(SWS)}, s{S_T0} sc1")
        e("s_mov_b64 exec, -1")
        if opt.get("stamp"):
            tm = "s_memrealtime" if opt.get("rt") else "s_memtime"
            e(f"{tm} s[{SA1}:{SA1+1}]")
            p.wait_all()
            e(f"{tm} s[{SA1+2}:{SA1+3}]")
            e(f"s_memrealtime s[{S_M2}:{S_M2+1}]")
            e(f"s_lshl_b32 s{S_T0}, s2, 2"); e(f"s_add_u32 s{S_T0}, s{S_T0}, s{S_W}")
            e(f"s_lshl_b32 s{S_T0}, s{S_T0}, 7"); e(f"s_add_u32 s{S_T0}, s{S_T0}, {STAMP1_OFF}")
            e("s_waitcnt lgkmcnt(0)")
            for k, r in enumerate(STAMP_REGS + [SA1, SA1 + 2, 94, S_M2, S_WB + 2, S_SPIN, S_WB + 1]):
                e(f"v_mov_b32 v6, s{r}")
                e(f"buffer_store_dword v6, off, {srd(SWS)}, s{S_T0} offset:{4*k}")
        p.label("K1_END")
        e("s_endpgm")
        if not opt.get("split", 0):
            p.label("K2_LATE_OK")
        p.label("K2_LATE_SLOW")
        e(f"s_sleep {opt.get('done_sleep', 8)}")
        e(f"s_add_u32 s{S_WB+1}, s{S_WB+1}, 1")
        e(f"s_cmp_gt_u32 s{S_WB+1}, 100000")
        e("s_cbranch_scc1 K2_LATE_OK")
        done_load()
        e("s_waitcnt vmcnt(0)")
        done_check()
        e("s_branch K2_LATE_OK")
        p.label("K2_SLOW")
        e("s_sleep 2")
        e(f"s_add_u32 s{S_SPIN}, s{S_SPIN}, 1")
        e(f"s_cmp_gt_u32 s{S_SPIN}, 100000")
        e("s_cbranch_scc1 K2_OK")
        part_loads()
        e("s_waitcnt vmcnt(0)")
        part_check()
        e("s_branch K2_OK")

    def build(self):
        p, e, o = self.p, self.p.e, self.opt
        if o.get("job_mode") == "dma":
            self.JA = V_PRE
        self.prologue()
        if o.get("job_mode") == "dma":
            self.a_job_setup()
        e(f"s_cmp_eq_u32 s{S_TYPE}, 2")
        e("s_cbranch_scc1 K1_TYPE_C")
        e(f"s_cmp_eq_u32 s{S_TYPE}, 1")
        e("s_cbranch_scc1 K1_TYPE_B")
        snap = self.snapshot()
        g1, g2 = o.get("lb_issue", 200), o.get("lb_check", 225)
        fa = o.get("fork_at", 65)
        late = o.get("job_late")
        pre = bool(o.get("pre", 0))
        split = o.get("split", 0)
        jf = lambda tmp: self.flag_later(tmp, o.get("jf_delay"), lambda: self.job_store, JF_OFF, S_CG, S_MT)
        d1 = lambda tmp, dl: self.flag_later(tmp, dl, lambda t=self.last_store: t, DONE1_OFF, S_MT, S_CG)
        head = [("S", i, 0) for i in range(5)] + [("F", i, S_D1) for i in range(10)]
        for typ in "AB":
            if typ == "B":
                p.label("K1_TYPE_B")
                self.restore(snap)
            m0 = self.mf
            fb = self.fork_job(typ, m0, 188, RAW + 132 if fa >= 65 else 48)

            def a1():
                self.stamp(4)
                if fa == 65:
                    self.stats_to_lds()
                self.ssm_reduce(0, ACC_S, 188, pre)

            def a1b(typ=typ, m0=m0):
                if fa == 65:
                    a1()
                self.q_done = not pre
                if pre:
                    self.ssm_pre(0, ACC_S, ACC_D2)
                self.ssm_finish(0, ACC_S, 188, lambda: self.mf - m0 >= g1, lambda: self.mf - m0 >= g2, typ,
                                ACC_D2 if pre else None)

            def a2():
                while not self.q_done:
                    it = self.fill.pop(0)
                    if not isinstance(it, tuple):
                        it()
                self.stamp(5)
                self.ffn_epilogue(ACC_D1, S_KD1)
                if split:
                    self.fill.append(lambda: d1(226, o.get("d1_delay")))
            hooks = {fb: lambda a1b=a1b: (jf(224), a1b())}
            if fb < 70:
                hooks = {fb: lambda: jf(V_PRE + 5), 81: lambda a1=a1, a1b=a1b: (a1(), a1b()), 70: self.stats_to_lds}
            elif fa != 65:
                hooks[81] = a1
                hooks[70] = self.stats_to_lds
            if late:
                for q5, at in enumerate(late):
                    hooks[at] = self.job_ld[q5]
            frags = self.s_frags(0, ACC_S) + self.d_frags(5, ACC_D1)
            if typ == "A":
                j1 = o.get("jf_at", 240)
                hooks.update({240: a2, j1 - 23: lambda: self.jf_load(224), j1 + 1: lambda: self.jf_check(224, "A", 240, 4)})
                self.run(head + [("F", i, S_D2) for i in range(10)], frags + self.d_frags(15, ACC_D2), hooks)
                self.stamp(6)
                self.flush()
                if o.get("d1_at_end", 1):
                    self.fire_timers()
                tw = o.get("tail_w", 3)
                self.ffn_tail(ACC_D2, S_KD2, {(0, 0): lambda: self.w_some(tw), (0, 1): lambda: self.w_some(tw),
                                              (1, 0): self.fire_timers})
            else:
                self.run(head, frags, hooks)
                self.stamp(5)
                self.mf += 1000
                self.fire_timers()
                self.flush()
                self.stamp(6)
                self.jf_load(224)
                self.ffn_tail(ACC_D1, S_KD1)
                self.jf_check(224, "B", 0, 1)
            self.stamp(7)
            self.phase2_head(8, typ)
        p.label("K1_TYPE_C")
        self.restore(snap)
        stages = [("S", i % 5, i // 5) for i in range(15)]
        m0 = self.mf
        self.opt = dict(o, fork_at=o.get("fork_at_c", 65))
        fb = self.fork_job("C", m0, 112, 136)
        assert fb > 81

        def c1():
            self.stamp(4)
            self.stats_to_lds()
            jf(168)
            self.ssm_reduce(0, 16, 152)
            for b in (1, 2):
                self.q(*self.ssm_consts(b, V_C + 12 * b + 6, 112))
                self.zero_row(b, 112)

        def c2():
            self.stamp(5)
            self.ssm_reduce(1, 48, 152)
            self.ssm_finish(0, 16, 112, None, lambda: self.mf - m0 >= 215, "C0")
        hooks = {fb: c1, 161: c2, 215: lambda: self.jf_load(168)}
        if late:
            for q5 in range(5):
                hooks[4 + 10 * q5] = self.job_ld[q5]
        self.run(stages, self.s_frags(0, 16) + self.s_frags(5, 48) + self.s_frags(10, 80), hooks)
        self.stamp(6)
        self.jf_check(168, "C", 0, 1)
        self.mf += 1000
        we = o.get("c_wevery", 16)
        self.flush(we)
        self.ssm_reduce(2, 80, 152)
        self.ssm_finish(1, 48, 112, None, None, "C1")
        self.flush(we)
        self.stamp(7)
        if split:
            d1(168, 0)
        self.ssm_finish(2, 80, 112, None, None, "C2")
        if split:
            self.fill.insert(o.get("c_d1_at", 60), self.fire_timers)
        self.flush(o.get("c_wevery2", 0))
        self.phase2_head(8, "C")
        self.slow_paths()
        self.poll_paths()
        self.phase2()
        p.fix_hazards()
        return p


DESC = K1_DESC.replace("proj_kernel", NAME)
```

```python
import sys
HEAD = """; @launch kernel=k_kernel grid=(256,1,1) block=(256,1,1) lds=0
.amdgcn_target "amdgcn-amd-amdhsa--gfx950"
.text
.globl k_kernel
.p2align 8
.type k_kernel,@function
k_kernel:
"""
TAIL = """
s_endpgm
.section .rodata,"a"
.p2align 6
.amdhsa_kernel k_kernel
  .amdhsa_next_free_vgpr 32
  .amdhsa_next_free_sgpr 64
  .amdhsa_accum_offset 32
  .amdhsa_group_segment_fixed_size 0
  .amdhsa_kernarg_size 128
  .amdhsa_user_sgpr_count 2
  .amdhsa_user_sgpr_kernarg_segment_ptr 1
  .amdhsa_system_sgpr_workgroup_id_x 1
.end_amdhsa_kernel
"""
def store_times(n):
    s = """
  s_load_dwordx2 s[4:5], s[0:1], 104
  v_lshrrev_b32 v2, 6, v0
  s_lshl_b32 s3, s2, 2
  v_add_u32 v2, s3, v2
  v_lshlrev_b32 v2, 5, v2
  s_waitcnt lgkmcnt(0)
"""
    for i in range(n):
        s += f"  v_mov_b32 v3, s{20+2*i}\n  global_store_dword v2, v3, s[4:5] offset:{4*i}\n"
    s += "  s_waitcnt vmcnt(0)\n"
    return s

def stamp(i):
    return f"  s_memtime s[{20+2*i}:{21+2*i}]\n  s_waitcnt lgkmcnt(0)\n"

def body(n8, instr="v_add3_u32 v1, v1, 1, 1"):
    return f".rept {n8}\n  {instr}\n.endr\n"

def gen(kind, kb):
    n8 = kb * 128
    s = HEAD
    if kind == "A":
        s += stamp(0) + body(n8) + stamp(1) + store_times(2)
    elif kind == "A4":
        s += stamp(0) + body(n8 * 2, "v_add_u32 v1, 1, v1") + stamp(1) + store_times(2)
    elif kind == "B":
        s += stamp(0)
        s += "  s_getpc_b64 s[6:7]\n  v_lshlrev_b32 v4, 6, v0\n"
        for j in range(max(1, kb // 16)):
            s += f"  global_load_dword v{8+j}, v4, s[6:7]\n  v_add_u32 v4, 0x4000, v4\n"
        s += "  s_waitcnt vmcnt(0)\n"
        s += stamp(1) + body(n8) + stamp(2) + store_times(3)
    elif kind == "C":
        q = n8 // 4
        s += stamp(0)
        s += "  v_readfirstlane_b32 s8, v0\n  s_nop 3\n  s_lshr_b32 s8, s8, 6\n  s_mov_b32 s9, 1\n"
        s += "  s_cmp_eq_u32 s8, 1\n  s_cbranch_scc1 Q1\n  s_cmp_eq_u32 s8, 2\n  s_cbranch_scc1 Q2\n  s_cmp_eq_u32 s8, 3\n  s_cbranch_scc1 Q3\n"
        s += "Q0:\n" + body(q) + "  s_cmp_eq_u32 s9, 1\n  s_cbranch_scc1 DONE\n"
        s += "Q1:\n" + body(q) + "  s_cmp_eq_u32 s9, 1\n  s_cbranch_scc1 DONE\n"
        s += "Q2:\n" + body(q) + "  s_cmp_eq_u32 s9, 1\n  s_cbranch_scc1 DONE\n"
        s += "Q3:\n" + body(q) + "  s_cmp_eq_u32 s9, 1\n  s_cbranch_scc1 DONE\n"
        s += "  s_branch FIN\nDONE:\n" + stamp(1) + "  s_barrier\n" + stamp(2) + "  s_mov_b32 s9, 0\n  s_branch Q0\nFIN:\n"
        s += stamp(3) + store_times(4)
    elif kind == "D":
        q = n8 // 4
        s += stamp(0)
        s += "  s_getpc_b64 s[6:7]\n  v_lshlrev_b32 v4, 6, v0\n"
        for j in range(max(1, kb // 16)):
            s += f"  global_load_dword v{8+j}, v4, s[6:7]\n  v_add_u32 v4, 0x4000, v4\n"
        s += "  s_waitcnt vmcnt(0)\n"
        s += stamp(1)
        s += "  v_readfirstlane_b32 s8, v0\n  s_nop 3\n  s_lshr_b32 s8, s8, 6\n  s_mov_b32 s9, 1\n"
        s += "  s_cmp_eq_u32 s8, 1\n  s_cbranch_scc1 Q1\n  s_cmp_eq_u32 s8, 2\n  s_cbranch_scc1 Q2\n  s_cmp_eq_u32 s8, 3\n  s_cbranch_scc1 Q3\n"
        for k in range(4):
            s += f"Q{k}:\n" + body(q, "s_nop 0\n  s_nop 0") + "  s_cmp_eq_u32 s9, 1\n  s_cbranch_scc1 DONE\n"
        s += "  s_branch FIN\nDONE:\n" + stamp(2) + "  s_barrier\n" + "  s_mov_b32 s9, 0\n  s_branch Q0\nFIN:\n"
        s += stamp(3) + store_times(4)
    elif kind == "H":
        s += stamp(0)
        nl = kb * 16
        s += "  s_branch H0\n.p2align 6\n"
        for i in range(nl):
            s += f"H{i}:\n  s_branch H{i+1}\n.p2align 6\n"
        s += f"H{nl}:\n" + stamp(1) + store_times(2)
    elif kind == "H2":
        s += stamp(0)
        nl = kb * 8
        s += "  s_branch H0\n.p2align 7\n"
        for i in range(nl):
            s += f"H{i}:\n  s_branch H{i+1}\n.p2align 7\n"
        s += f"H{nl}:\n" + stamp(1) + store_times(2)
    return s + TAIL

if __name__ == "__main__":
    import hx
    for kind in ["A", "A4", "B", "C", "D", "H", "H2"]:
        p = f"ic_{kind}.s"
        open(p, "w").write(gen(kind, 16))
        hx.assemble(p)
```

```python
import sys, hx, json
from gen_ic import HEAD, TAIL, store_times, stamp
HEAD = HEAD.replace("lds=0", "lds=65536")
TAIL = TAIL.replace("next_free_vgpr 32", "next_free_vgpr 512").replace("accum_offset 32", "accum_offset 256")
def rstamp(i): return f"  s_memrealtime s[{20+2*i}:{21+2*i}]\n  s_waitcnt lgkmcnt(0)\n"
def gen(seq, reps=64, init=""):
    s = HEAD + "  s_mov_b32 s10, %d\n" % reps
    s += "  v_and_b32 v1, 63, v0\n  v_lshlrev_b32 v4, 3, v1\n  v_lshlrev_b32 v5, 4, v1\n  s_mov_b32 s12, 0x3f9d70a4\n"
    s += "  v_mul_u32_u24 v6, 0x9e3779, v0\n  v_add_u32 v6, 0x1234567, v6\n"
    s += "  s_mov_b32 s14, 0x3fff3fff\n  s_mov_b32 s15, 0x3c003c00\n  s_mov_b32 s16, 0x807f807f\n"
    for r in range(0, 192):
        s += f"  v_mul_lo_u32 v6, v6, s12\n  v_add_u32 v6, 0x3c6ef35f, v6\n  v_and_b32 v7, s16, v6\n  v_or_b32 v7, s15, v7\n  v_accvgpr_write_b32 a{r}, v7\n"
    s += "  v_lshlrev_b32 v8, 2, v0\n"
    for r in range(0, 64):
        s += f"  v_mul_lo_u32 v6, v6, s12\n  v_add_u32 v6, 0x3c6ef35f, v6\n  v_and_b32 v7, s16, v6\n  v_or_b32 v7, s15, v7\n  ds_write_b32 v8, v7 offset:{1024*r}\n"
    for r in range(16, 256):
        s += f"  v_mov_b32 v{r}, 0x3f000000\n"
    s += "  s_waitcnt lgkmcnt(0)\n  s_barrier\n"
    s += rstamp(2) + stamp(0)
    s += ".p2align 6\nL:\n"
    for ins in seq: s += "  " + ins + "\n"
    s += "  s_sub_u32 s10, s10, 1\n  s_cmp_lg_u32 s10, 0\n  s_cbranch_scc1 L\n"
    s += "  s_waitcnt lgkmcnt(0)\n" + stamp(1) + rstamp(3) + store_times(4)
    return s + TAIL
def body(shape, accf, nread, rkind, nfill, fkind, nm=32):
    seq = []
    fi = 0
    for m in range(nm):
        f = 160 + 4 * (m % 8); x = 4 * (m % 40)
        if shape == 32:
            a = (0 if accf == "a" else 48) + 16 * (m % 4)
            if accf == "a": a = 192 + 16 * (m % 4)
            mf = [f"v_mfma_f32_32x32x16_bf16 {accf}[{a}:{a+15}], a[{f}:{f+3}], a[{x}:{x+3}], {accf}[{a}:{a+15}]"]
        else:
            mf = []
            for k in range(2):
                a = (192 if accf == "a" else 48) + 4 * ((2 * m + k) % 16)
                mf.append(f"v_mfma_f32_16x16x32_bf16 {accf}[{a}:{a+3}], a[{f}:{f+3}], a[{(x+4*k)%160}:{(x+4*k)%160+3}], {accf}[{a}:{a+3}]")
        fill = []
        fr = 160 + 4 * ((m + 7) % 8)
        if nread:
            if rkind == "tr":
                fill += [f"ds_read_b64_tr_b16 a[{fr}:{fr+1}], v4 offset:{(m*1024) % 65536}", f"ds_read_b64_tr_b16 a[{fr+2}:{fr+3}], v4 offset:{(m*1024+512) % 65536}"]
            else:
                fill += [f"ds_read_b128 a[{fr}:{fr+3}], v5 offset:{(m*1024) % 65536}"]
        for j in range(nfill):
            r = 128 + (fi % 2); fi += 1
            if fkind == "dep": fill.append(f"v_fma_f32 v{r}, v{r}, v{140+fi%16}, v{160+fi%16}")
            if fkind == "ind": fill.append(f"v_fma_f32 v{128+fi%8}, v{176+fi%16}, v{140+fi%16}, v{160+fi%16}")
            if fkind == "e32": fill.append(f"v_mul_f32 v{128+fi%8}, v{176+fi%16}, v{140+fi%16}")
        w = ["s_waitcnt lgkmcnt(6)" if rkind == "tr" else "s_waitcnt lgkmcnt(3)"] if (nread and m % 4 == 0) else []
        if shape == 32:
            seq += w + mf + fill
        else:
            h = len(fill) // 2
            seq += w + [mf[0]] + fill[:h] + [mf[1]] + fill[h:]
    return seq
tests = {}
for shape in (32, 16):
    for accf in ("v", "a"):
        tests[f"s{shape}_{accf}_bare"] = body(shape, accf, 0, "", 0, "")
        tests[f"s{shape}_{accf}_tr"] = body(shape, accf, 1, "tr", 0, "")
        tests[f"s{shape}_{accf}_b128"] = body(shape, accf, 1, "b128", 0, "")
        for nf in (2, 3, 4):
            tests[f"s{shape}_{accf}_tr_{nf}dep"] = body(shape, accf, 1, "tr", nf, "dep")
        tests[f"s{shape}_{accf}_tr_3ind"] = body(shape, accf, 1, "tr", 3, "ind")
        tests[f"s{shape}_{accf}_tr_4e32"] = body(shape, accf, 1, "tr", 4, "e32")
if __name__ == "__main__":
    sys.path.insert(0, "cdna_kernels")
    from cdna_launch import address_register_problem
    for name, seq in tests.items():
        p = f"r2_{name}.s"; open(p, "w").write(gen(seq)); co = hx.assemble(p)
        r = address_register_problem(co, None, ["k_kernel"])
        if r: print(r)
```

```python
from k1 import *

NAME = "parallel_sum__ssm_conv_s5__glu_gated_geglu__prompt_kernel"
S_WB = 28
S_D2X, S_R2 = 100, 101
S_A, S_OOB, S_XO, S_OO, S_PO, S_PI, S_N, S_A0, S_TG, S_DN, S_DIV = 68, 69, 70, 71, 72, 73, 74, 75, 76, 80, 81
S_A1 = 82
SD, SO = SS, SF
V_L16, V_L16B, V_WA, V_PK = 3, 4, 5, 13
ACC1, ACC2, RING = 16, 96, 176
V_OA, V_LA, V_T = 240, 245, 250
WMAP = [192 + 4 * k for k in range(16)] + [4 * k for k in range(40)] + [160 + 4 * k for k in range(4)]
SLOT5 = 176
S_TB, S_WB0 = 24, 27
ORDERS = {"k0": [0, 1, 4, 5, 8, 9, 2, 3, 6, 7, 10, 11], "w0": [1, 2, 7, 8, 9, 10, 11, 0, 3, 4, 5, 6],
          "nat": list(range(12)), "w3": [0, 1, 2, 5, 6, 7, 8, 3, 4, 9, 10, 11]}


def nib(name, half):
    return sum(v << (4 * k) for k, v in enumerate(ORDERS[name][8 * half:8 * half + 8]))


MIXED = False


def rel(dst, i):
    if MIXED:
        return f"s_bfe_u32 s{dst}, s{S_TB + i // 4}, {(8 << 16) | (8 * (i % 4)):#x}"
    return f"s_bfe_u32 s{dst}, s{S_TB + i // 8}, {(4 << 16) | (4 * (i % 8)):#x}"


def mixed_lists():
    out = {}
    for kh in range(2):
        ffn = list(range(27 * kh, 27 * kh + 27))
        early = [k for k in ffn if k % 4 < 2]
        late = [k for k in ffn if k % 4 >= 2] + list(range(54 + 20 * kh, 74 + 20 * kh))
        assert len(early) == 14
        rest = early[12:] + late
        for w in range(4):
            n = 9 if w < 3 else 8
            out[kh, w] = early[3 * w:3 * w + 3] + rest[:n] + ([0] if w == 3 else [])
            rest = rest[n:]
        assert not rest
    return out


def slot(g, f):
    k = g % 5
    return f"v[{RING+16*k+4*f}:{RING+16*k+4*f+3}]" if k < 4 else f"a[{SLOT5+4*f}:{SLOT5+3+4*f}]"


STEPS_MIXED = [(0, i) for i in range(3)] + [(1, i) for i in range(3)] + [(0, i) for i in range(3, 12)] + \
              [(1, i) for i in range(3, 12)]


class Fused(K1):
    def __init__(self, opt):
        super().__init__(opt)
        self.name = NAME
        self.fused = True
        self.polls = []
        self.heads = []
        self.JA = RAW + 140

    def stats_to_lds(self):
        e = self.p.e
        e(f"ds_write2_b32 v0, v{V_X+8}, v{V_X+10} offset1:1")
        e(f"v_add_u32 v0, 0x1000, v{V_TW+2}")
        T = 206 if self.opt.get("order") == "DSD" and not getattr(self, "is_c", False) else V_X
        for x in (f"v_mov_b32 v{T+4}, 0", f"v_min_u32 v{T+5}, 6, v{V_SEG}", f"v_sub_u32 v{T+5}, v{T+5}, v{V_SEG}",
                  f"v_lshl_add_u32 v{T+5}, v{T+5}, 3, v{V_XR}", f"ds_write2_b32 v{T+5}, v{T+4}, v{T+4} offset1:1"):
            e(x)

    def flag_store(self, tmp, base, hi, lo):
        t = S_T1
        return [[f"s_lshl_b32 s{t}, s{hi}, 4", f"s_add_u32 s{t}, s{t}, s{lo}", f"s_lshl_b32 s{t}, s{t}, 7",
                 f"s_add_u32 s{t}, s{t}, {base}", f"s_cmp_eq_u32 s{S_W}, 0", f"s_cselect_b32 s{t}, s{t}, {OOB}"],
                f"v_mov_b32 v{tmp}, s{S_EPOCH}",
                ["s_mov_b64 exec, 1", f"buffer_store_dword v{tmp}, off, {srd(SWS)}, s{t} sc1", "s_mov_b64 exec, -1"]]

    def flag_later(self, tmp, delay, tok, base, hi, lo):
        def raise_flag():
            for x in self.flag_store(tmp, base, hi, lo):
                for y in (x if isinstance(x, list) else [x]):
                    self.p.e(y)

        def arm():
            self.pre_barrier.append(tok())
            self.on_barrier.append(raise_flag)
        if delay is None:
            self.lazy.append((tok(), raise_flag))
        else:
            self.timers.append((self.mf + delay, arm))

    def a_job_setup(self, tag=""):
        e, o = self.p.e, self.opt
        u, t, t2, ct = S_R, S_T2, S_T3, S_T1
        A = self.JA
        e(f"s_lshl_b32 s{u}, s{S_MT}, 2"); e(f"s_add_u32 s{u}, s{u}, s{S_W}")
        e(f"s_and_b32 s{ct}, s{S_CG}, 7")
        if MIXED:
            e(f"s_mov_b32 s{t}, 27"); e(f"s_mov_b32 s{S_JOB}, 52")
            e(f"s_cmp_ge_u32 s{S_CG}, 8"); e(f"s_cselect_b32 s{t2}, 27, 0")
        else:
            e(f"s_cmp_ge_u32 s{S_CG}, 8"); e(f"s_cselect_b32 s{t}, 7, 64"); e(f"s_cselect_b32 s{t2}, 47, 0")
            e(f"s_cselect_b32 s{S_JOB}, 57, 47")
        e(f"s_cmp_lt_u32 s{u}, s{S_JOB}"); e(f"s_cselect_b32 s{S_D2X}, 0, {OOB}")
        e(f"s_cmp_ge_u32 s{u}, s{t}"); e(f"s_cselect_b32 s{S_J2}, 1, 0")
        e(f"s_cbranch_scc1 JOB_C{tag}")
        for x in self.mk_srd(SA1, K_WD, FF_BYTES) + self.mk_srd(SA2, K_WD, FF_BYTES):
            e(x)
        e(f"s_add_u32 s{u}, s{u}, s{t2}")
        e(f"s_mul_i32 s{S_R2}, s{u}, {32*1280}"); e(f"s_mul_i32 s{t}, s{ct}, 160")
        e(f"s_add_u32 s{S_R2}, s{S_R2}, s{t}")
        e(f"s_mul_i32 s{S_JOB}, s{ct}, 94"); e(f"s_add_u32 s{S_JOB}, s{S_JOB}, s{u}")
        e(f"s_mul_i32 s{S_JOB}, s{S_JOB}, 5120")
        e(f"s_mov_b32 s{t}, 0xcccd")
        for q in range(5):
            e(f"v_add_u32 v{A+5}, {64*q}, v{V_LANE}"); e(f"v_mul_lo_u32 v{A+q}, v{A+5}, s{t}")
            e(f"v_lshrrev_b32 v{A+q}, 19, v{A+q}"); e(f"v_mul_u32_u24 v{A+q}, 1120, v{A+q}")
            e(f"v_lshl_add_u32 v{A+q}, v{A+5}, 4, v{A+q}")
        e(f"s_branch JOB_LD{tag}")
        self.p.label(f"JOB_C{tag}")
        for x in self.mk_srd(SA1, K_CRE, SQ_BYTES) + self.mk_srd(SA2, K_CIM, SQ_BYTES):
            e(x)
        if MIXED:
            e(f"s_sub_u32 s{u}, s{u}, 27")
            e(f"s_mul_hi_u32 s{t}, s{u}, 0x33333334"); e(f"s_mul_i32 s{t2}, s{t}, 5"); e(f"s_sub_u32 s{u}, s{u}, s{t2}")
            e(f"s_lshr_b32 s{t2}, s{S_CG}, 3"); e(f"s_mul_i32 s{t2}, s{t2}, 5"); e(f"s_add_u32 s{u}, s{u}, s{t2}")
        else:
            e(f"s_sub_u32 s{u}, s{u}, 7")
            e(f"s_mul_hi_u32 s{t}, s{u}, 0x1999999a"); e(f"s_mul_i32 s{t2}, s{t}, 10"); e(f"s_sub_u32 s{u}, s{u}, s{t2}")
        e(f"s_mul_i32 s{t2}, s{ct}, 5"); e(f"s_add_u32 s{t2}, s{t2}, s{t}")
        e(f"s_mul_i32 s{S_R2}, s{t2}, {16*1280}"); e(f"s_lshl_b32 s{t2}, s{u}, 7")
        e(f"s_add_u32 s{S_R2}, s{S_R2}, s{t2}")
        e(f"s_mul_i32 s{S_JOB}, s{ct}, 94"); e(f"s_lshl_b32 s{u}, s{u}, 2"); e(f"s_add_u32 s{S_JOB}, s{S_JOB}, s{u}")
        e(f"s_add_u32 s{S_JOB}, s{S_JOB}, 54"); e(f"s_mul_i32 s{S_JOB}, s{S_JOB}, 5")
        e(f"s_add_u32 s{S_JOB}, s{S_JOB}, s{t}"); e(f"s_lshl_b32 s{S_JOB}, s{S_JOB}, 10")
        e(f"v_lshrrev_b32 v{A}, 3, v{V_LANE}"); e(f"v_mul_u32_u24 v{A}, 1280, v{A}")
        e(f"v_and_b32 v{A+1}, 7, v{V_LANE}"); e(f"v_lshl_add_u32 v{A}, v{A+1}, 4, v{A}")
        e(f"v_add_u32 v{A+1}, {8*1280}, v{A}"); e(f"v_mov_b32 v{A+2}, v{A}"); e(f"v_mov_b32 v{A+3}, v{A+1}")
        e(f"v_mov_b32 v{A+4}, {OOB}")
        self.p.label(f"JOB_LD{tag}")
        e(f"s_add_u32 s{S_JOB}, s{S_JOB}, {W2F_OFF}")
        e(f"s_or_b32 s{S_JOB}, s{S_JOB}, s{S_D2X}"); e(f"s_or_b32 s{S_R}, s{S_R2}, s{S_D2X}")
        if o.get("job_mode") == "dma":
            def piece(q):
                e(f"s_add_u32 m0, s{S_J1}, {1024*q}")
                self.job_tok = e(f"buffer_load_dwordx4 v{A+q}, {srd(SA1 if q < 2 else SA2)}, s{S_R} offen{o.get('ntjob', '')} lds")
            self.job_ld = [lambda q=q: piece(q) for q in range(5)]
            return
        self.job_ld = [lambda q=q: setattr(self, "job_tok", e(
            f"buffer_load_dwordx4 a[{192+4*q}:{195+4*q}], v{A+q}, {srd(SA1 if q < 2 else SA2)}, s{S_R} offen"))
            for q in range(5)]
        if o.get("job_dq"):
            self.dq.extend(self.job_ld)
        elif not o.get("job_late"):
            for f in self.job_ld:
                f()

    def a_job(self, is_c, m0, R, L):
        p, q = self.p, self.q
        st = {}
        D = R + 2

        def at(k):
            self.fill.append(("t", lambda: self.mf - m0 >= k + self.opt.get("fork_at", 65)))
        if is_c:
            q(f"v_and_b32 v{R}, 15, v{V_LANE}", f"v_lshlrev_b32 v{R}, 7, v{R}",
              f"v_lshrrev_b32 v{R+1}, 4, v{V_LANE}", f"v_lshl_add_u32 v{R}, v{R+1}, 3, v{R}")
        else:
            q(f"v_lshrrev_b32 v{R}, 5, v{V_LANE}", f"v_lshlrev_b32 v{R}, 4, v{R}",
              f"v_bfe_u32 v{R+1}, v{V_LANE}, 2, 3", f"v_add_u32 v{R}, v{R}, v{R+1}",
              f"v_mul_u32_u24 v{R}, 160, v{R}", f"v_and_b32 v{R+1}, 3, v{V_LANE}",
              f"v_lshl_add_u32 v{R}, v{R+1}, 3, v{R}")
        q(f"v_add_u32 v{R}, s{S_J1}, v{R}", f"v_add_u32 v{R+1}, s{S_J1}, v{V_TW+2}")
        at(2)
        dma = self.opt.get("job_mode") == "dma"
        if dma:
            st["w"] = self.job_tok
        else:
            self.fill.append(lambda: p.wait(self.job_tok))
        for f in range(0 if dma else 5):
            at(2 + f // 2)
            self.fill.append(lambda f=f: st.__setitem__("w", p.e(
                f"ds_write_b128 v{R+1}, a[{192+4*f}:{195+4*f}] offset:{1024*f}")))
        land = [(L if is_c else D) + 4 * f for f in range(5)]
        for f in range(5):
            at((3 if dma else 7) + f // 2)

            def rd(f=f):
                p.wait(st["w"])
                op, o2 = ("ds_read_b64", 2048) if is_c else ("ds_read_b64_tr_b16", 1280)
                p.e(f"{op} v[{land[f]}:{land[f]+1}], v{R} offset:{32*f}")
                st[f] = p.e(f"{op} v[{land[f]+2}:{land[f]+3}], v{R} offset:{32*f + o2}")
            rd.cost = 2
            self.fill.append(rd)
        if is_c:
            q(f"s_mov_b32 s{S_T2}, 0x05040100", f"s_mov_b32 s{S_T3}, 0x07060302")
        at(8 if dma else 12)
        self.fill.append(lambda: p.wait(st[4]))
        for f in range(5):
            if is_c and f < 4:
                re, im = land[f], land[f] + 2
                for k in range(2):
                    q(f"v_perm_b32 v{D+4*f+2*k}, v{im+k}, v{re+k}, s{S_T2}",
                      f"v_perm_b32 v{D+4*f+2*k+1}, v{im+k}, v{re+k}, s{S_T3}")
            at((10 if dma else 14) + 2 * f)
            self.fill.append(lambda f=f: setattr(self, "job_store", p.e(
                f"buffer_store_dwordx4 v[{D+4*f}:{D+4*f+3}], v{V_TW+2}, {srd(SWS)}, s{S_JOB} offen{self.wt}")))
            if f < 4:
                q(f"s_add_u32 s{S_JOB}, s{S_JOB}, {(5120 if f < 3 else OOB) if is_c else 1024}")

    def fork_job(self, tag, m0, R, L):
        e, fa = self.p.e, self.opt.get("fork_at", 65)
        n = 20 if self.opt.get("job_mode") == "dma" else 24
        self.fork = (fa, fa + n, lambda: (e(f"s_cmp_eq_u32 s{S_J2}, 1"), e(f"s_cbranch_scc1 FORK_ALT_{tag}")),
                     lambda: self.a_job(False, m0, R, L), lambda: self.a_job(True, m0, R, L), tag)
        return fa + n

    def jf_load(self, R):
        e = self.p.e
        e(f"s_lshl_b32 s{S_WB+1}, s{S_CG}, 11")
        e(f"s_add_u32 s{S_WB+1}, s{S_WB+1}, {JF_OFF}")
        e(f"v_and_b32 v{R+1}, 15, v{V_LANE}")
        e(f"v_lshlrev_b32 v{R+1}, 7, v{R+1}")
        self.jf_tok = self.flag_load(R)

    def flag_load(self, R):
        e = self.p.e
        e(f"v_mov_b32 v{R}, s{S_EPOCH}")
        e("s_mov_b64 exec, 0xffff")
        t = e(f"buffer_load_dword v{R}, v{R+1}, {srd(SWS)}, s{S_WB+1} offen sc1")
        e("s_mov_b64 exec, -1")
        return t

    def all_equal(self, R, n, label):
        e = self.p.e
        e(f"v_xor_b32 v{R}, s{S_EPOCH}, v{R}")
        for k in range(1, n):
            e(f"v_bitop3_b32 v{R}, v{R}, v{R+k}, s{S_EPOCH} bitop3:0xf6")
        e(f"v_cmp_ne_u32 vcc, 0, v{R}")
        e(f"s_cbranch_vccnz {label}")

    def jf_check(self, R, tag, first, per):
        p, e = self.p, self.p.e
        e(f"s_mov_b32 s{S_WB+2}, 0")
        p.wait(self.jf_tok)
        e(f"v_cmp_ne_u32 vcc, s{S_EPOCH}, v{R}")
        e(f"s_cbranch_vccnz JF_SLOW_{tag}")
        p.label(f"JF_OK_{tag}")
        self.polls.append((tag, R))
        e(f"s_lshr_b32 s{S_WB}, s{S_CG}, 3")
        e(f"s_mul_i32 s{S_WB}, s{S_WB}, 47")
        e(f"s_mul_i32 s{S_WB+1}, s{S_W}, 12")
        e(f"s_add_u32 s{S_WB+3}, s{S_WB}, s{S_WB+1}")
        if MIXED:
            e(f"s_mov_b32 s{S_WB+3}, 0")
        e(f"s_and_b32 s{S_WB}, s{S_CG}, 7")
        e(f"s_mul_i32 s{S_WB}, s{S_WB}, 94")
        e(f"s_add_u32 s{S_WB}, s{S_WB}, s{S_WB+3}")
        e(f"s_mul_i32 s{S_WB}, s{S_WB}, 5120")
        e(f"s_add_u32 s{S_WB0}, s{S_WB}, {W2F_OFF}")
        if MIXED:
            L = mixed_lists()
            e(f"s_lshr_b32 s{S_WB+1}, s{S_CG}, 3"); e(f"s_lshl_b32 s{S_WB+1}, s{S_WB+1}, 2")
            e(f"s_add_u32 s{S_WB+1}, s{S_WB+1}, s{S_W}")
            for c in range(8):
                words = [sum(v << (8 * k) for k, v in enumerate(L[c // 4, c % 4][4 * h:4 * h + 4])) for h in range(3)]
                if c:
                    e(f"s_cmp_eq_u32 s{S_WB+1}, {c}")
                for h in range(3):
                    e(f"s_cselect_b32 s{S_TB+h}, {words[h]:#x}, s{S_TB+h}" if c else f"s_mov_b32 s{S_TB+h}, {words[h]:#x}")
        else:
            for h in range(2):
                e(f"s_mov_b32 s{S_TB+h}, {nib('nat', h):#x}")
            for cond, name in ((f"s_cmp_eq_u32 s{S_W}, 0", "w0"), (f"s_cmp_eq_u32 s{S_W}, 3", "w3"), (f"s_cmp_lt_u32 s{S_CG}, 8", "k0")):
                e(cond)
                for h in range(2):
                    e(f"s_cselect_b32 s{S_TB+h}, {nib(name, h):#x}, s{S_TB+h}")

        def ld(n):
            i, cb = divmod(n, 5)
            if cb == 0:
                e(rel(S_WB, i))
                e(f"s_mul_i32 s{S_WB}, s{S_WB}, 5120")
                e(f"s_add_u32 s{S_WB}, s{S_WB}, s{S_WB0}")
                if i == 11:
                    e(f"s_cmp_eq_u32 s{S_W}, 3")
                    e(f"s_cselect_b32 s{S_WB}, {OOB}, s{S_WB}")
            va, off = ((V_L16 if n >= 60 - self.opt.get("w_keep", 12) else V_TW + 2), 1024 * cb) if cb < 4 else (0, 0)
            e(f"buffer_load_dwordx4 a[{WMAP[n]}:{WMAP[n]+3}], v{va}, {srd(SWS)}, s{S_WB} offen offset:{off} sc1")
        self.wq = [lambda n=n: ld(n) for n in range(60)]
        self.wfrom, self.wper = first, per

    def fire_timers(self):
        for tm in self.timers:
            tm[1]()
        self.timers = []
        for tok, f in self.lazy:
            self.pre_barrier.append(tok)
            self.on_barrier.append(f)
        self.lazy = []
        if self.on_barrier:
            self.barrier()

    def poll_paths(self):
        p, e = self.p, self.p.e
        for tag in self.heads:
            p.label(f"K2_EARLY_SLOW_{tag}")
            e(f"s_sleep {self.opt.get('done_sleep', 8)}")
            e(f"s_add_u32 s{S_SPIN}, s{S_SPIN}, 1")
            e(f"s_cmp_gt_u32 s{S_SPIN}, 100000")
            e(f"s_cbranch_scc1 K2_EARLY_OK_{tag}")
            self.early_load()
            e("s_waitcnt vmcnt(0)")
            e(f"v_cmp_ne_u32 vcc, s{S_EPOCH}, v15")
            e(f"s_cbranch_vccnz K2_EARLY_SLOW_{tag}")
            e(f"s_branch K2_EARLY_OK_{tag}")
        for tag, R in self.polls:
            p.label(f"JF_SLOW_{tag}")
            e("s_sleep 6")
            e(f"s_add_u32 s{S_WB+2}, s{S_WB+2}, 1")
            e(f"s_cmp_gt_u32 s{S_WB+2}, 20000")
            e(f"s_cbranch_scc1 JF_OK_{tag}")
            self.flag_load(R)
            e("s_waitcnt vmcnt(0)")
            e(f"v_cmp_ne_u32 vcc, s{S_EPOCH}, v{R}")
            e(f"s_cbranch_vccnz JF_SLOW_{tag}")
            e(f"s_branch JF_OK_{tag}")

    def w_some(self, n):
        while n > 0 and len(self.wq) > self.opt.get("w_keep", 12):
            self.wq.pop(0)()
            n -= 1

    def a_load(self, g, t, i, f):
        e = self.p.e
        if f == 0:
            e(rel(S_A, i))
            e(f"s_lshl_b32 s{S_A}, s{S_A}, 12")
            e(f"s_add_u32 s{S_A}, s{S_A}, s{S_A0 if t else S_A1}")
            if i == 11:
                e(f"s_cmp_eq_u32 s{S_W}, 3")
                e(f"s_cselect_b32 s{S_A}, s{S_OOB}, s{S_A}")
        return e(f"buffer_load_dwordx4 {slot(g, f)}, v{V_L16}, {srd(SWS)}, s{S_A} offen offset:{1024*f} sc1")

    def early_load(self):
        e = self.p.e
        e(f"v_mov_b32 v15, s{S_EPOCH}")
        e("s_mov_b64 exec, 0x7f7f" if MIXED else "s_mov_b64 exec, 0xbfff")
        t = e(f"buffer_load_dword v15, v2, {srd(SWS)}, s{S_DIV+2} offen sc1")
        e("s_mov_b64 exec, -1")
        return t

    def phase2_head(self, k, tag):
        p, e = self.p, self.p.e
        self.stamp(k)
        e(f"s_lshl_b32 s{S_DN}, s{S_MT}, 11"); e(f"s_add_u32 s{S_DN}, s{S_DN}, {DONE_OFF}")
        e(f"s_add_u32 s{S_DIV+2}, s{S_DN}, {DONE1_OFF - DONE_OFF}")
        e(f"v_and_b32 v2, 15, v{V_LANE}"); e("v_lshlrev_b32 v2, 7, v2")
        e(f"s_mov_b32 s{S_SPIN}, 0")
        split = self.opt.get("split", 0)
        if (tag != "B") and split == 1:
            t_early = self.early_load()
        self.w_some(self.opt.get("head_w", 4))
        for x in self.mk_srd(SD, K_DSK, 1280) + self.mk_srd(SO, K_OUT, OUT_BYTES):
            e(x)
        e(f"v_mov_b32 v{V_L16}, v{V_TW+2}"); e(f"v_mov_b32 v{V_L16B}, v0")
        e(f"s_mov_b32 s{S_N}, s{S_WB+3}")
        e(f"s_lshr_b32 s{S_T2}, s{S_CG}, 3")
        e(f"s_lshl_b32 s{S_T3}, s{S_MT}, 1")
        e(f"s_add_u32 s{S_T3}, s{S_T3}, s{S_T2}")
        e(f"s_mul_i32 s{S_A0}, s{S_T3}, 94"); e(f"s_add_u32 s{S_A0}, s{S_A0}, s{S_N}"); e(f"s_lshl_b32 s{S_A0}, s{S_A0}, 12")
        e(f"s_xor_b32 s{S_A1}, s{S_T3}, 1")
        e(f"s_mul_i32 s{S_A1}, s{S_A1}, 94"); e(f"s_add_u32 s{S_A1}, s{S_A1}, s{S_N}"); e(f"s_lshl_b32 s{S_A1}, s{S_A1}, 12")
        e(f"s_lshl_b32 s{S_T3}, s{S_T3}, 6"); e(f"s_lshl_b32 s{S_T0}, s{S_W}, 4"); e(f"s_add_u32 s{S_T3}, s{S_T3}, s{S_T0}")
        e(f"s_and_b32 s{S_T1}, s{S_CG}, 7"); e(f"s_mul_i32 s{S_T1}, s{S_T1}, 160")
        e(f"s_mul_i32 s{S_XO}, s{S_T3}, 1280"); e(f"s_add_u32 s{S_XO}, s{S_XO}, s{S_T1}")
        e(f"s_lshl_b32 s{S_OO}, s{S_XO}, 1")
        e(f"s_mov_b32 s{S_DIV}, 0xcccd"); e(f"s_mov_b32 m0, s{S_J1}")
        for j in range(3):
            e(f"v_add_u32 v6, {64*j}, v{V_LANE}"); e(f"v_mul_lo_u32 v7, v6, s{S_DIV}"); e("v_lshrrev_b32 v7, 19, v7")
            e("v_mul_u32_u24 v8, 1120, v7"); e("v_lshl_add_u32 v8, v6, 4, v8")
            if j:
                e(f"v_add_u32 v8, {-1024*j & 0xffffffff:#x}, v8")
            if j == 2:
                e("s_mov_b32 exec_hi, 0")
            e(f"buffer_load_dwordx4 v8, {srd(SX)}, s{S_XO} offen offset:{1024*j} lds")
        e(f"s_add_u32 m0, s{S_J1}, 3072"); e("s_mov_b32 exec_lo, 0x3ff")
        t_res = e(f"buffer_load_dwordx4 v{V_L16}, {srd(SD)}, s{S_T1} offen lds")
        e("s_mov_b64 exec, -1")
        e(f"s_lshl_b32 s{S_T0}, s{S_CG}, 7"); e(f"s_add_u32 s{S_T0}, s{S_T0}, s{S_DN}")
        e(f"s_cmp_eq_u32 s{S_W}, 0"); e(f"s_cselect_b32 s{S_T0}, s{S_T0}, {OOB}")
        e(f"v_mov_b32 v{V_T}, s{S_EPOCH}")
        self.barrier(self.last_store)
        if tag != "B" and split == 2:
            t_early = self.early_load()
        e("s_mov_b64 exec, 1")
        e(f"buffer_store_dword v{V_T}, off, {srd(SWS)}, s{S_T0} sc1")
        e("s_mov_b64 exec, -1")
        self.stamp(k + 1)
        self.w_some(60)
        if tag == "B" and split:
            t_early = self.early_load()
        e(f"s_mov_b32 s{S_OOB}, {OOB}")
        def go():
            p.wait(t_early)
            e(f"v_cmp_ne_u32 vcc, s{S_EPOCH}, v15")
            e(f"s_cbranch_vccnz K2_EARLY_SLOW_{tag}")
            p.label(f"K2_EARLY_OK_{tag}")
            self.heads.append(tag)
            p.wait(t_res)
            for g in range(4):
                for f in range(4):
                    self.a_load(g, *(STEPS_MIXED[g] if MIXED else (0, g)), f)
        if split == 1:
            go()
        self.w_rest = list(self.wq)
        e(f"s_and_b32 s{S_T3}, s{S_T3}, 127"); e(f"s_lshl_b32 s{S_T3}, s{S_T3}, 3"); e(f"s_add_u32 s{S_T3}, s{S_T3}, {STL}")
        e(f"s_mul_i32 s{S_T2}, s{S_W}, 5376")
        e(f"v_lshlrev_b32 v10, 3, v{V_LANE}"); e(f"v_add_u32 v10, s{S_J1}, v10")
        XR, DR, SR, T = ACC2, ACC2 + 10, ACC2 + 20, ACC2 + 32
        AD = ACC2 + 60
        for i in range(5):
            e(f"v_add_u32 v6, {64*i}, v{V_LANE}"); e(f"v_mul_lo_u32 v7, v6, s{S_DIV}"); e("v_lshrrev_b32 v7, 20, v7")
            e("v_mul_u32_u24 v8, 20, v7"); e("v_sub_u32 v8, v6, v8")
            e("v_mul_u32_u24 v9, 2560, v7"); e(f"v_lshl_add_u32 v{V_OA+i}, v8, 4, v9")
            e("v_mul_u32_u24 v12, 336, v7"); e("v_lshl_add_u32 v12, v8, 4, v12")
            e(f"v_add_u32 v{V_LA+i}, s{S_T2}, v12")
            e(f"v_lshl_add_u32 v{AD+i}, v8, 3, s{S_J1}"); e(f"v_lshl_add_u32 v11, v7, 3, s{S_T3}")
            e(f"ds_read_b64 v[{SR+2*i}:{SR+2*i+1}], v11")
        e(f"v_and_b32 v{V_WA}, 15, v{V_LANE}"); e(f"v_mul_u32_u24 v{V_WA}, 336, v{V_WA}")
        e(f"v_lshrrev_b32 v6, 4, v{V_LANE}"); e(f"v_lshl_add_u32 v{V_WA}, v6, 4, v{V_WA}")
        e(f"s_mul_i32 s{S_T2}, s{S_W}, 21504"); e(f"v_add_u32 v{V_WA}, s{S_T2}, v{V_WA}")
        e(f"v_add_u32 v{V_PK}, s{S_J1}, v{V_L16}")
        e("s_lshl_b32 s3, s2, 2"); e(f"s_add_u32 s3, s3, s{S_W}")
        e(f"s_mul_i32 s{S_PO}, s3, 5120"); e(f"s_add_u32 s{S_PO}, s{S_PO}, {PART_OFF}")
        e("s_xor_b32 s3, s3, 4")
        e(f"s_mul_i32 s{S_PI}, s3, 5120"); e(f"s_add_u32 s{S_PI}, s{S_PI}, {PART_OFF}")
        if self.opt.get("a_pref"):
            e(f"s_and_b32 s{S_T0}, s{S_CG}, 7"); e(f"s_lshl_b32 s{S_T0}, s{S_T0}, 2"); e(f"s_add_u32 s{S_T0}, s{S_T0}, s{S_W}")
            e(f"s_mul_i32 s{S_T0}, s{S_T0}, 94")
            e(f"s_mov_b32 s{S_T1}, {94*4096 - 1504*128}")
            for j, r in ((0, 6), (1, 7)):
                e(f"v_add_u32 v{r}, s{S_T0}, v{V_LANE}")
                if j:
                    e(f"v_add_u32 v{r}, 64, v{r}")
                e(f"v_cmp_lt_u32 vcc, 1503, v{r}")
                e(f"v_lshlrev_b32 v{r}, 7, v{r}")
                e(f"v_add_u32 v8, s{S_T1}, v{r}")
                e(f"v_cndmask_b32 v{r}, v{r}, v8, vcc")
            e(f"s_lshr_b32 s{S_T0}, s{S_CG}, 3"); e(f"s_mul_i32 s{S_T0}, s{S_T0}, 47")
            e(f"s_mul_i32 s{S_T1}, s{S_MT}, 188"); e(f"s_add_u32 s{S_T0}, s{S_T0}, s{S_T1}")
            e(f"s_lshl_b32 s{S_DIV+2}, s{S_T0}, 12")
        e(f"v_mov_b32 v{V_T}, 0xff")
        e(f"s_mov_b32 s{S_TG}, s{S_EPOCH}")
        for j in range(1, 4):
            e(f"s_lshr_b32 s{S_TG+j}, s{S_TG}, {8*j}"); e(f"s_add_u32 s{S_TG+j}, s{S_TG+j}, s{S_TG}")
        t = None
        p.wait(t_res)
        for i in range(5):
            e(f"ds_read_b64 v[{XR+2*i}:{XR+2*i+1}], v10 offset:{512*i}")
            t = e(f"ds_read_b64 v[{DR+2*i}:{DR+2*i+1}], v{AD+i} offset:3072")
        p.wait(t)
        M = f"s{S_MASK}"
        for i in range(5):
            if split == 2 and i == self.opt.get("go_at", 0):
                go()
            x0, d0, s0 = XR + 2 * i, DR + 2 * i, SR + 2 * i
            for j, r in enumerate((x0, x0 + 1, d0, d0 + 1)):
                e(f"v_lshlrev_b32 v{T+2*j}, 16, v{r}"); e(f"v_and_b32 v{T+2*j+1}, {M}, v{r}")
            for j in range(4):
                e(f"v_fma_f32 v{T+8+j}, v{T+j}, v{s0}, v{s0+1}")
            for rnd in range(2):
                e(f"v_cvt_pk_bf16_f32 v{T+12}, v{T+8}, v{T+9}"); e(f"v_cvt_pk_bf16_f32 v{T+13}, v{T+10}, v{T+11}")
                e(f"v_lshlrev_b32 v{T+8}, 16, v{T+12}"); e(f"v_and_b32 v{T+9}, {M}, v{T+12}")
                e(f"v_lshlrev_b32 v{T+10}, 16, v{T+13}"); e(f"v_and_b32 v{T+11}, {M}, v{T+13}")
                if rnd == 0:
                    for j in (0, 2):
                        e(f"v_pk_mul_f32 v[{T+8+j}:{T+9+j}], v[{T+8+j}:{T+9+j}], v[{T+4+j}:{T+5+j}]")
            o = T + 16 + 4 * (i % 2)
            for j in (0, 2):
                e(f"v_pk_add_f32 v[{o+j}:{o+j+1}], v[{T+j}:{T+j+1}], v[{T+8+j}:{T+9+j}]")
            e(f"ds_write_b128 v{V_PK}, v[{o}:{o+3}] offset:{1024*i}")
        if self.opt.get("a_pref") == 2:
            e(f"buffer_load_dword v8, v6, {srd(SWS)}, s{S_DIV+2} offen sc1")
            e("s_mov_b64 exec, 0x3fffffff")
            e(f"buffer_load_dword v9, v7, {srd(SWS)}, s{S_DIV+2} offen sc1")
            e("s_mov_b64 exec, -1")
        e("s_branch K2_START")

    def phase2(self):
        p, e, opt = self.p, self.p.e, self.opt
        fill, tok, st, ld = [], {}, {}, []
        cur, cnt = {"g": 0}, {"m": 0}
        NS, F = 5, opt.get("k2_fuse", 3)
        PD = NS - 1

        def q(*texts):
            for t in texts:
                fill.append(t if callable(t) else (lambda t=t: e(t)))

        def pull(budget):
            start = p.slots
            while fill and p.slots - start < budget:
                it = fill[0]
                if isinstance(it, tuple):
                    if not it[0]():
                        return
                    fill.pop(0)
                    continue
                fill.pop(0)
                it()

        def lag(n):
            mark = {}
            q(lambda: mark.__setitem__("m", cnt["m"]))
            fill.append((lambda: cnt["m"] >= mark["m"] + n or cur["g"] > 98,))

        J = opt.get("k2_j", 2 if opt.get("split", 0) else 0)
        steps = [(0, i) for i in range(6)] + [(1, i) for i in range(J)] + [(0, i) for i in range(6, 12)] + \
                [(1, i) for i in range(J, 12)]
        G1 = 12 + J
        GL = 6 + J
        if MIXED:
            steps = STEPS_MIXED
            G1, GL = 15, 6
        HOLD = opt.get("k2_hold", 2) if MIXED else 0

        def loads(g):
            t, i = steps[g]

            return [lambda f=f: tok.__setitem__(g, self.a_load(g, t, i, f)) for f in range(4)]

        def done_load():
            e(f"v_mov_b32 v15, s{S_EPOCH}")
            e("s_mov_b64 exec, 0xffff")
            st["dn"] = e(f"buffer_load_dword v15, v2, {srd(SWS)}, s{S_DN} offen sc1")
            e("s_mov_b64 exec, -1")

        def done_check():
            e(f"v_cmp_ne_u32 vcc, s{S_EPOCH}, v15")
            e("s_cbranch_vccnz K2_LATE_SLOW")

        def tile_to_lds(acc):
            return [f"ds_write_b128 v{V_WA}, v[{acc+(cb*4+rb)*4}:{acc+(cb*4+rb)*4+3}] offset:{rb*5376 + cb*64}"
                    for cb in range(5) for rb in range(4)]

        def barrier():
            p.wait_all(vm=False)
            e("s_barrier")

        def part_loads():
            for i in range(5):
                r = ACC1 + 16 * i + 8
                va, off = (V_L16, 1024 * i) if i < 4 else (V_L16B, 0)
                st["pi"] = e(f"buffer_load_dwordx4 v[{r}:{r+3}], v{va}, {srd(SWS)}, s{S_PI} offen offset:{off} sc1")

        def part_check():
            for i in range(5):
                for k in range(4):
                    r = ACC1 + 16 * i + 8 + k
                    if i + k == 0:
                        e(f"v_xor_b32 v{V_T+1}, s{S_TG}, v{r}")
                    else:
                        e(f"v_bitop3_b32 v{V_T+1}, v{V_T+1}, v{r}, s{S_TG+k} bitop3:0xf6")
            e(f"v_and_b32 v{V_T+1}, v{V_T}, v{V_T+1}")
            e(f"v_cmp_ne_u32 vcc, 0, v{V_T+1}")
            e("s_cbranch_vccnz K2_SLOW")

        def first_tile_done():
            for x in tile_to_lds(ACC1):
                q(x)
                lag(opt.get("k2_wlag", 2))
            lag(opt.get("k2_blag", 4))
            q(barrier)
            for i in range(5):
                for wv in range(4):
                    r = ACC1 + 16 * i + 4 * wv
                    q(lambda i=i, r=r, wv=wv: st.__setitem__(("rd", i), e(
                        f"ds_read_b128 v[{r}:{r+3}], v{V_LA+i} offset:{wv*21504}")))
            for i in range(5):
                r = ACC1 + 16 * i
                q(lambda i=i: p.wait(st["rd", i]))
                for k in range(4):
                    q(f"v_add_f32 v{r+k}, v{r+k}, v{r+4+k}", f"v_add_f32 v{r+8+k}, v{r+8+k}, v{r+12+k}")
                q(*[f"v_add_f32 v{r+k}, v{r+k}, v{r+8+k}" for k in range(4)])
                q(*[f"v_bfi_b32 v{r+k}, v{V_T}, s{S_TG+k}, v{r+k}" for k in range(4)])
                va, off = (V_L16, 1024 * i) if i < 4 else (V_L16B, 0)
                q(f"buffer_store_dwordx4 v[{r}:{r+3}], v{va}, {srd(SWS)}, s{S_PO} offen offset:{off} sc1")
            q("s_barrier")
            for i in range(5):
                r = ACC1 + 16 * i + 4
                q(lambda i=i, r=r: st.__setitem__("pk", e(f"ds_read_b128 v[{r}:{r+3}], v{V_PK} offset:{1024*i}")))
            fill.append((lambda: cnt["m"] >= opt.get("k2_pollm", 440),))
            q(part_loads)

        def mfma(g, cb, rb):
            t, i = steps[g]
            acc = ACC2 if t else ACC1
            w = WMAP[5 * i + cb]
            c = f"v[{acc+(cb*4+rb)*4}:{acc+(cb*4+rb)*4+3}]"
            start = p.slots
            e(f"v_mfma_f32_16x16x32_bf16 {c}, a[{w}:{w+3}], {slot(g, rb)}, {c if i else 0}")
            cnt["m"] += 1
            if cnt["m"] % 4 == 2 and ld:
                ld.pop(0)()
            elif cnt["m"] % 4 == 0 and wrest:
                wrest.pop(0)()
            return start

        p.label("K2_START")
        if not opt.get("split", 0):
            e(f"s_cmp_lg_u32 s{S_W}, 0")
            e("s_cbranch_scc1 K2_GO")
            e("s_mov_b64 exec, 0xffff")
            p.label("K2_RETRY")
            e(f"buffer_load_dword v15, v2, {srd(SWS)}, s{S_DN} offen sc1")
            e(f"s_add_u32 s{S_SPIN}, s{S_SPIN}, 1")
            e("s_waitcnt vmcnt(0)")
            e(f"v_cmp_ne_u32 vcc, s{S_EPOCH}, v15")
            e("s_cbranch_vccz K2_SEEN")
            e(f"s_sleep {opt.get('done_sleep', 3)}")
            e(f"s_cmp_lt_u32 s{S_SPIN}, 100000")
            e("s_cbranch_scc1 K2_RETRY")
            p.label("K2_SEEN")
            e("s_mov_b64 exec, -1")
            p.label("K2_GO")
            e("s_barrier")
            assert not MIXED
            if opt.get("a_pref"):
                e(f"buffer_load_dword v8, v6, {srd(SWS)}, s{S_DIV+2} offen sc1")
                e("s_mov_b64 exec, 0x3fffffff")
                e(f"buffer_load_dword v9, v7, {srd(SWS)}, s{S_DIV+2} offen sc1")
                e("s_mov_b64 exec, -1")
            for g in range(4):
                for f in range(4):
                    self.a_load(g, 0, g, f)
        p.vq, p.vdone, p.lq, p.ldone = 16, 0, 5, 0
        for g in range(4):
            tok[g] = ("v", 4 * g + 4)
        self.stamp(10)
        if opt.get("stamp"):
            e(f"s_mov_b32 s{S_WB+2}, s{S_SPIN}")
        e(f"s_mov_b32 s{S_SPIN}, 0")
        e(f"s_mov_b32 s{S_WB+1}, 0")
        wrest = list(self.w_rest)
        for g in range(24 - F):
            cur["g"] = g
            if g + PD + opt.get("k2_dlead", 2) == GL + HOLD and opt.get("split", 0):
                done_load()
            if g == G1:
                self.stamp(11)
                first_tile_done()
            p.wait(tok[g])
            if g + PD == GL + HOLD and opt.get("split", 0):
                p.wait(st["dn"])
                done_check()
                p.label("K2_LATE_OK")
                for g2 in range(GL, GL + HOLD):
                    for f in loads(g2):
                        f()
            if g + PD < 24 and not (GL <= g + PD < GL + HOLD):
                ld.extend(loads(g + PD))
            for cb in range(5):
                for rb in range(4):
                    start = mfma(g, cb, rb)
                    pull(opt.get("k2_b2", 4) - (p.slots - start))
            while ld:
                ld.pop(0)()
        cur["g"] = 98
        wr, tl = [], tile_to_lds(ACC2)
        for cb in range(5):
            n = 0
            for g in range(24 - F, 24):
                p.wait(tok[g])
                for rb in range(4):
                    start = mfma(g, cb, rb)
                    n += 1
                    if wr and n > 2 and (n - 3) % max(1, F - 1) == 0:
                        e(wr.pop(0))
                    pull(opt.get("k2_b2", 4) - (p.slots - start))
            for x in wr:
                e(x)
            wr = tl[4 * cb:4 * cb + 4]
        cur["g"] = 99
        self.stamp(12)
        pull(10000)
        assert not fill
        for x in wr:
            e(x)
        p.wait(st["pi"], st["pk"])
        part_check()
        p.label("K2_OK")
        e(f"s_mov_b32 s{S_DIV}, 0xffffff00")
        for i in range(5):
            s = ACC1 + 16 * i
            for k in range(4):
                e(f"v_and_b32 v{s+8+k}, s{S_DIV}, v{s+8+k}")
            for k in range(0, 4, 2):
                e(f"v_pk_add_f32 v[{s+k}:{s+k+1}], v[{s+4+k}:{s+5+k}], v[{s+8+k}:{s+9+k}]")
        barrier()
        rd = {}
        for i in range(5):
            for wv in range(4):
                r = ACC2 + 16 * i + 4 * wv
                rd[i] = e(f"ds_read_b128 v[{r}:{r+3}], v{V_LA+i} offset:{wv*21504}")
        for i in range(5):
            r, s = ACC2 + 16 * i, ACC1 + 16 * i
            p.wait(rd[i])
            for k in range(0, 4, 2):
                e(f"v_pk_add_f32 v[{r+k}:{r+k+1}], v[{r+k}:{r+k+1}], v[{r+4+k}:{r+5+k}]")
                e(f"v_pk_add_f32 v[{r+8+k}:{r+9+k}], v[{r+8+k}:{r+9+k}], v[{r+12+k}:{r+13+k}]")
                e(f"v_pk_add_f32 v[{s+k}:{s+k+1}], v[{s+k}:{s+k+1}], v[{r+k}:{r+k+1}]")
            for k in range(0, 4, 2):
                e(f"v_pk_add_f32 v[{s+k}:{s+k+1}], v[{s+k}:{s+k+1}], v[{r+8+k}:{r+9+k}]")
            e(f"buffer_store_dwordx4 v[{s}:{s+3}], v{V_OA+i}, {srd(SO)}, s{S_OO} offen{opt.get('owt', ' sc1')}")
        e(f"s_or_b32 s{S_T0}, s2, s{S_W}")
        e(f"s_cmp_eq_u32 s{S_T0}, 0")
        e(f"s_cselect_b32 s{S_T0}, {EPOCH_OFF}, s{S_OOB}")
        e(f"v_mov_b32 v{V_T}, s{S_EPOCH}")
        e("s_mov_b64 exec, 1")
        e(f"buffer_store_dword v{V_T}, off, {srd(SWS)}, s{S_T0} sc1")
        e("s_mov_b64 exec, -1")
        if opt.get("stamp"):
            tm = "s_memrealtime" if opt.get("rt") else "s_memtime"
            e(f"{tm} s[{SA1}:{SA1+1}]")
            p.wait_all()
            e(f"{tm} s[{SA1+2}:{SA1+3}]")
            e(f"s_memrealtime s[{S_M2}:{S_M2+1}]")
            e(f"s_lshl_b32 s{S_T0}, s2, 2"); e(f"s_add_u32 s{S_T0}, s{S_T0}, s{S_W}")
            e(f"s_lshl_b32 s{S_T0}, s{S_T0}, 7"); e(f"s_add_u32 s{S_T0}, s{S_T0}, {STAMP1_OFF}")
            e("s_waitcnt lgkmcnt(0)")
            for k, r in enumerate(STAMP_REGS + [SA1, SA1 + 2, 94, S_M2, S_WB + 2, S_SPIN, S_WB + 1]):
                e(f"v_mov_b32 v6, s{r}")
                e(f"buffer_store_dword v6, off, {srd(SWS)}, s{S_T0} offset:{4*k}")
        p.label("K1_END")
        e("s_endpgm")
        if not opt.get("split", 0):
            p.label("K2_LATE_OK")
        p.label("K2_LATE_SLOW")
        e(f"s_sleep {opt.get('done_sleep', 8)}")
        e(f"s_add_u32 s{S_WB+1}, s{S_WB+1}, 1")
        e(f"s_cmp_gt_u32 s{S_WB+1}, 100000")
        e("s_cbranch_scc1 K2_LATE_OK")
        done_load()
        e("s_waitcnt vmcnt(0)")
        done_check()
        e("s_branch K2_LATE_OK")
        p.label("K2_SLOW")
        e("s_sleep 2")
        e(f"s_add_u32 s{S_SPIN}, s{S_SPIN}, 1")
        e(f"s_cmp_gt_u32 s{S_SPIN}, 100000")
        e("s_cbranch_scc1 K2_OK")
        part_loads()
        e("s_waitcnt vmcnt(0)")
        part_check()
        e("s_branch K2_OK")

    def build_dsd(self):
        p, e, o = self.p, self.p.e, self.opt
        global MIXED
        MIXED = bool(o.get("split"))
        self.JA = V_PRE
        self.prologue()
        e(f"s_cmp_eq_u32 s{S_TYPE}, 2")
        e("s_cbranch_scc1 K1_TYPE_C")
        snap0 = self.snapshot()
        self.prologue2("F", o.get("npre", 2))
        self.a_job_setup("AB")
        e(f"s_cmp_eq_u32 s{S_TYPE}, 1")
        e("s_cbranch_scc1 K1_TYPE_B")
        snap = self.snapshot()
        g1, g2 = o.get("lb_issue", 345), o.get("lb_check", 365)
        jf = lambda tmp: self.flag_later(tmp, None, lambda: self.job_store, JF_OFF, S_CG, S_MT)
        head = [("F", i, S_D1) for i in range(10)] + [("S", i, 0) for i in range(5)]
        for typ in "AB":
            if typ == "B":
                p.label("K1_TYPE_B")
                self.restore(snap)
            m0 = self.mf
            self.norm_every = 2
            fb = self.fork_job(typ, m0, 188, 48)

            def s0():
                self.stamp(4)
                self.epi_done = False
                self.ffn_epilogue(192, S_KD1, 48)
                self.fill.append(lambda: setattr(self, "epi_done", True))
                if MIXED:
                    self.fill.append(lambda: self.flag_later(66, None, lambda t=self.last_store: t, DONE1_OFF, S_MT, S_CG))

            def wstart():
                assert self.epi_done
                self.jf_check(64, "A", 240, 4)

            def d0(typ=typ, m0=m0):
                self.stamp(5)
                rest, self.fill = self.fill, []
                self.ssm_reduce(0, ACC_S, 188, False, 56)
                k = next(i for i, x in enumerate(self.fill) if isinstance(x, tuple) and x[0] == "bar")
                self.fill = self.fill[:k] + rest + self.fill[k:] if o.get("rest_mid", 1) else self.fill + rest
                self.ssm_finish(0, ACC_S, 188, lambda: self.mf - m0 >= g1, lambda: self.mf - m0 >= g2, typ)
            hooks = {fb: lambda: jf(210), 156: self.stats_to_lds, 161: s0}
            frags = self.d_frags(0, 192, "a") + self.s_frags(10, ACC_S)
            if typ == "A":
                j1 = o.get("jf_at", 250)
                hooks.update({241: d0, j1 - 23: lambda: self.jf_load(64), j1: wstart})
                self.run(head + [("F", i, S_D2) for i in range(10)], frags + self.d_frags(15, ACC_D2), hooks)
                self.stamp(6)
                self.mf += 1000
                tw = o.get("tail_w", 3)
                if o.get("tail_first", 1):
                    self.ffn_tail(ACC_D2, S_KD2, {(0, 0): lambda: self.w_some(tw), (0, 1): lambda: self.w_some(tw)}, 64)
                    self.flush()
                else:
                    self.flush()
                    self.ffn_tail(ACC_D2, S_KD2, {(0, 0): lambda: self.w_some(tw), (0, 1): lambda: self.w_some(tw)}, 64)
            else:
                self.run(head, frags, hooks)
                self.mf += 1000
                self.flush()
                self.fire_timers()
                self.stamp(5)
                self.ssm_reduce(0, ACC_S, 188)
                self.flush()
                self.stamp(6)
                self.jf_load(64)
                self.p.e("s_sleep 32")
                self.jf_check(64, "B", 0, 1)
                self.w_some(o.get("b_w", 30))
                self.ssm_finish(0, ACC_S, 188, None, None, "B")
                self.flush()
            self.stamp(7)
            self.phase2_head(8, typ)
        p.label("K1_TYPE_C")
        self.restore(snap0)
        self.is_c = True
        self.norm_every = 1
        self.prologue2("S", 8)
        self.a_job_setup("C")
        self.path_c(jf, None)
        self.slow_paths()
        self.poll_paths()
        self.phase2()
        p.fix_hazards()
        return p

    def build(self):
        p, e, o = self.p, self.p.e, self.opt
        if o.get("order") == "DSD":
            return self.build_dsd()
        if o.get("job_mode") == "dma":
            self.JA = V_PRE
        self.prologue()
        if o.get("job_mode") == "dma":
            self.a_job_setup()
        e(f"s_cmp_eq_u32 s{S_TYPE}, 2")
        e("s_cbranch_scc1 K1_TYPE_C")
        e(f"s_cmp_eq_u32 s{S_TYPE}, 1")
        e("s_cbranch_scc1 K1_TYPE_B")
        snap = self.snapshot()
        g1, g2 = o.get("lb_issue", 200), o.get("lb_check", 225)
        fa = o.get("fork_at", 65)
        late = o.get("job_late")
        pre = bool(o.get("pre", 0))
        split = o.get("split", 0)
        jf = lambda tmp: self.flag_later(tmp, o.get("jf_delay"), lambda: self.job_store, JF_OFF, S_CG, S_MT)
        d1 = lambda tmp, dl: self.flag_later(tmp, dl, lambda t=self.last_store: t, DONE1_OFF, S_MT, S_CG)
        head = [("S", i, 0) for i in range(5)] + [("F", i, S_D1) for i in range(10)]
        for typ in "AB":
            if typ == "B":
                p.label("K1_TYPE_B")
                self.restore(snap)
            m0 = self.mf
            fb = self.fork_job(typ, m0, 188, RAW + 132 if fa >= 65 else 48)

            def a1():
                self.stamp(4)
                if fa == 65:
                    self.stats_to_lds()
                self.ssm_reduce(0, ACC_S, 188, pre)

            def a1b(typ=typ, m0=m0):
                if fa == 65:
                    a1()
                self.q_done = not pre
                if pre:
                    self.ssm_pre(0, ACC_S, ACC_D2)
                self.ssm_finish(0, ACC_S, 188, lambda: self.mf - m0 >= g1, lambda: self.mf - m0 >= g2, typ,
                                ACC_D2 if pre else None)

            def a2():
                while not self.q_done:
                    it = self.fill.pop(0)
                    if not isinstance(it, tuple):
                        it()
                self.stamp(5)
                self.ffn_epilogue(ACC_D1, S_KD1)
                if split:
                    self.fill.append(lambda: d1(226, o.get("d1_delay")))
            hooks = {fb: lambda a1b=a1b: (jf(224), a1b())}
            if fb < 70:
                hooks = {fb: lambda: jf(V_PRE + 5), 81: lambda a1=a1, a1b=a1b: (a1(), a1b()), 70: self.stats_to_lds}
            elif fa != 65:
                hooks[81] = a1
                hooks[70] = self.stats_to_lds
            if late:
                for q5, at in enumerate(late):
                    hooks[at] = self.job_ld[q5]
            frags = self.s_frags(0, ACC_S) + self.d_frags(5, ACC_D1)
            if typ == "A":
                j1 = o.get("jf_at", 240)
                hooks.update({240: a2, j1 - 23: lambda: self.jf_load(224), j1 + 1: lambda: self.jf_check(224, "A", 240, 4)})
                self.run(head + [("F", i, S_D2) for i in range(10)], frags + self.d_frags(15, ACC_D2), hooks)
                self.stamp(6)
                self.flush()
                if o.get("d1_at_end", 1):
                    self.fire_timers()
                tw = o.get("tail_w", 3)
                self.ffn_tail(ACC_D2, S_KD2, {(0, 0): lambda: self.w_some(tw), (0, 1): lambda: self.w_some(tw),
                                              (1, 0): self.fire_timers})
            else:
                self.run(head, frags, hooks)
                self.stamp(5)
                self.mf += 1000
                self.fire_timers()
                self.flush()
                self.stamp(6)
                self.jf_load(224)
                self.ffn_tail(ACC_D1, S_KD1)
                self.jf_check(224, "B", 0, 1)
            self.stamp(7)
            self.phase2_head(8, typ)
        p.label("K1_TYPE_C")
        self.restore(snap)
        self.path_c(jf, d1)
        self.slow_paths()
        self.poll_paths()
        self.phase2()
        p.fix_hazards()
        return p

    def path_c(self, jf, d1):
        p, e, o = self.p, self.p.e, self.opt
        late, split = o.get("job_late"), o.get("split", 0) and not MIXED
        stages = [("S", i % 5, i // 5) for i in range(15)]
        m0 = self.mf
        self.opt = dict(o, fork_at=o.get("fork_at_c", 65))
        fb = self.fork_job("C", m0, 112, 136)
        assert fb > 81

        def c1():
            self.stamp(4)
            self.stats_to_lds()
            jf(168)
            self.ssm_reduce(0, 16, 152)
            for b in (1, 2):
                self.q(*self.ssm_consts(b, V_C + 12 * b + 6, 112))
                self.zero_row(b, 112)

        def c2():
            self.stamp(5)
            self.ssm_reduce(1, 48, 152)
            self.ssm_finish(0, 16, 112, None, lambda: self.mf - m0 >= 215, "C0")
        hooks = {fb: c1, 161: c2, 215: lambda: self.jf_load(168)}
        if late:
            for q5 in range(5):
                hooks[4 + 10 * q5] = self.job_ld[q5]
        self.run(stages, self.s_frags(0, 16) + self.s_frags(5, 48) + self.s_frags(10, 80), hooks)
        self.stamp(6)
        self.jf_check(168, "C", 0, 1)
        self.mf += 1000
        we = o.get("c_wevery", 16)
        self.flush(we)
        self.ssm_reduce(2, 80, 152)
        self.ssm_finish(1, 48, 112, None, None, "C1")
        self.flush(we)
        self.stamp(7)
        if split:
            d1(168, 0)
        self.ssm_finish(2, 80, 112, None, None, "C2")
        if split:
            self.fill.insert(o.get("c_d1_at", 60), self.fire_timers)
        self.flush(o.get("c_wevery2", 0))
        self.phase2_head(8, "C")


DESC = K1_DESC.replace("proj_kernel", NAME)
```

```python
import struct
from asmlib import Prog, cost_of
from layout import *

S_W, S_MT, S_CG, S_R = 4, 5, 6, 7
SX, SS, SF, SWS, SA1, SA2 = 8, 12, 16, 20, 24, 28
S_T0, S_T1, S_T2, S_T3 = 32, 33, 34, 35
K_X, K_LRE, K_LIM, K_BRE, K_BIM, K_CRE, K_CIM, K_LDT = 36, 38, 40, 42, 44, 46, 48, 50
K_DSK, K_BX, K_WG, K_WU, K_WD, K_OUT, K_DBG, K_WS = 52, 54, 56, 58, 60, 62, 64, 66
S_KS = 68
S_KF = 73
S_W4K, S_XB, S_SB, S_SBROW, S_D1, S_D2, S_TYPE, S_EPOCH, S_MASK = 78, 79, 80, 81, 82, 83, 84, 85, 86
S_A2ROW, S_GK2, S_JOB, S_KD1, S_KD2, S_SPIN, S_J1 = 87, 88, 89, 90, 91, 92, 93
S_J2 = 3
STAMP_REGS = [96, 54, 64, 36, 38, 40, 50, 66, 42, 44, 56, 58, 46]
S_HM = 98
S_M2 = 100

V_LANE, V_OF, V_TR, V_STA, V_GK1, V_SEG, V_PUB, V_XW, V_XR = 1, 2, 6, 10, 11, 12, 13, 14, 15
RAW = 16
ACC_S, ACC_D1, ACC_D2 = 16, 48, 112
V_C = 176
V_OS = 212
V_AS = 216
V_JC = 228
V_JW = 208
V_LBO = 232
V_TW = 234
V_PRE = 237
V_STAMP = 243
V_X = 244
XN = 0
FR = 160

LDS_SCR = 131072
SCR_W = 8192
XCH = LDS_SCR + 6144
STL = LDS_SCR + 3 * SCR_W + 6144
K1_LDS = 163840

LOG2E = 1.4426950408889634
GK1 = -2.0 * 0.7978845608028654 * LOG2E
GK2 = GK1 * 0.044715


def fx(x):
    return "0x%08x" % struct.unpack("<I", struct.pack("<f", x))[0]


def srd(n):
    return f"s[{n}:{n+3}]"


class K1:
    def __init__(self, opt):
        self.opt = opt
        self.p = Prog()
        self.fill = []
        self.dq = []
        self.norm = []
        self.stage_tok = {}
        self.pre_barrier = []
        self.nbar = 0
        self.mf = 0
        self.seen = set()
        self.slow = []
        self.refused = []
        self.after_first_barrier = None
        self.wt = opt.get("wt", " sc1")
        self.name = "proj_kernel"
        self.fused = False
        self.wq = []
        self.last_store = None
        self.vgap = 0
        self.on_barrier = []
        self.timers = []
        self.lazy = []
        self.in_fork = False
        self.norm_every = 1
        self.fork = None
        self.vjc = V_JC

    def stamp(self, k, x=False):
        if not self.opt.get("stamp") or (k >= 10 and not x and self.opt.get("xstamps")):
            return
        r = STAMP_REGS[k]
        ins = "s_memrealtime" if self.opt.get("rt") else "s_memtime"
        self.p.e(f"{ins} s[{r}:{r+1}]")
        if self.opt.get("verbose"):
            print("stamp", k, "slots", self.p.slots, "fill left", len(self.fill))

    def stamp_out(self, n):
        if not self.opt.get("stamp"):
            return
        p, e = self.p, self.p.e
        self.stamp(n)
        p.wait_all()
        self.stamp(n + 1)
        e(f"s_memrealtime s[{S_M2}:{S_M2+1}]")
        e(f"s_lshl_b32 s{S_T0}, s2, 2"); e(f"s_add_u32 s{S_T0}, s{S_T0}, s{S_W}")
        e(f"s_lshl_b32 s{S_T0}, s{S_T0}, 6"); e(f"s_add_u32 s{S_T0}, s{S_T0}, {STAMP1_OFF}")
        e("s_waitcnt lgkmcnt(0)")
        for k, r in enumerate(STAMP_REGS[:13]):
            e(f"v_mov_b32 v{V_STAMP}, s{r}")
            e(f"buffer_store_dword v{V_STAMP}, off, {srd(SWS)}, s{S_T0} offset:{4*k}")
        for k, r in ((13, S_SPIN), (14, 94), (15, S_M2)):
            e(f"v_mov_b32 v{V_STAMP}, s{r}")
            e(f"buffer_store_dword v{V_STAMP}, off, {srd(SWS)}, s{S_T0} offset:{4*k}")

    def issue_stage(self, n, kind, i, arg):
        e = self.p.e
        slot = n % 8

        def piece(q):
            if q == 0:
                e(f"s_mov_b32 m0, s{S_J1}" if kind in "WJ" else f"s_add_u32 m0, s{S_W4K}, {slot*16384}")
                if kind == "S":
                    e(f"s_add_u32 s{S_T0}, s{S_SBROW}, s{S_KS+i}")
                    if arg:
                        e(f"s_add_u32 s{S_T0}, s{S_T0}, {arg*32*1280}")
                elif kind == "F":
                    e(f"s_add_u32 s{S_T0}, s{arg}, s{S_KF+(i>>1)}")
                    if i & 1:
                        e(f"s_add_u32 s{S_T0}, s{S_T0}, {64*3456}")
                elif kind == "J":
                    e(f"s_mov_b32 s{S_T0}, s{S_JOB}")
                else:
                    self.job_source(kind, i)
            vo, d, off = {"S": (V_OS + q, SS, q), "F": (V_OF + q, SF, q), "W": (V_JW + q, SA1, q),
                          "C": (self.vjc + q % 2, SA1 if q < 2 else SA2, q % 2),
                          "J": (self.vjc + q % 2, SA1 if q < 2 else SA2, q % 2)}[kind]
            if kind in "CJ" and q == 2:
                e("s_add_u32 m0, m0, 2048")
                if kind == "J":
                    e(f"s_add_u32 s{S_T0}, s{S_T0}, s{S_XB}")
            t = e(f"buffer_load_dwordx4 v{vo}, {srd(d)}, s{S_T0} offen offset:{1024*off}{self.opt.get('nt' + kind, '')} lds")
            if q == 3:
                self.stage_tok[n] = t
        for q in range(4):
            self.dq.append(lambda q=q: piece(q))

    def dma(self):
        if self.dq:
            self.dq.pop(0)()

    def barrier(self, *toks):
        p = self.p
        p.wait(*toks, *self.pre_barrier)
        self.pre_barrier = []
        for it in [x for x in self.lazy if x[0][1] <= p.vdone]:
            self.lazy.remove(it)
            self.on_barrier.append(it[1])
        p.e("s_barrier")
        self.nbar += 1
        cbs, self.on_barrier = self.on_barrier, []
        for f in cbs:
            f()
        if self.after_first_barrier:
            f, self.after_first_barrier = self.after_first_barrier, None
            f()

    def pull(self, budget):
        p = self.p
        start = p.slots
        while self.fill and p.slots - start < budget:
            it = self.fill[0]
            if isinstance(it, tuple):
                if not it[1]():
                    return
                self.fill.pop(0)
                continue
            if p.slots - start + getattr(it, "cost", 1) > budget and not (it in self.refused):
                self.refused.append(it)
                return
            self.fill.pop(0)
            it()

    def flush(self, wevery=0):
        mark = self.p.slots
        while self.fill:
            if wevery and len(self.wq) > self.opt.get("w_keep", 12) and self.p.slots - mark >= wevery:
                self.wq.pop(0)()
                mark = self.p.slots
            it = self.fill.pop(0)
            if isinstance(it, tuple):
                if it[0] == "bar" and not it[1]():
                    self.barrier()
                continue
            it()

    def gemm(self, frags, plan, hooks=None):
        p, o = self.p, self.opt
        LA = 7
        toks = {}
        n = len(frags)

        def read(idx):
            fr = frags[idx]
            st = fr["stage"]
            if st not in self.seen:
                self.seen.add(st)
                while st not in self.stage_tok:
                    self.dma()
                self.barrier(self.stage_tok[st])
                if st in plan:
                    plan[st]()
            r = FR + 4 * (idx % 8)
            for txt in fr["reads"]:
                toks[idx] = p.e(txt.format(f0=r, f1=r + 1, f2=r + 2, f3=r + 3))
        for idx in range(LA):
            read(idx)
        grp = o.get("wgrp", 4)
        def step(idx):
            if hooks and idx in hooks:
                hooks[idx]()
            for tm in [t for t in self.timers if t[0] <= self.mf]:
                self.timers.remove(tm)
                tm[1]()
            if idx in o.get("xstamps", []):
                self.stamp(10 + o["xstamps"].index(idx), True)
            if idx % grp == 0:
                p.wait(toks[min(idx + grp - 1, n - 1)])
            start = p.slots
            r = FR + 4 * (idx % 8)
            p.e(frags[idx]["mfma"].format(f0=r, f3=r + 3))
            self.mf += 1
            if idx + LA < n:
                read(idx + LA)
            dper = o.get("dper", 4)
            if self.dq and (idx % dper == 1 or (len(self.dq) > 4 and idx % 2 == 1)):
                self.dma()
                self.vgap = idx
            elif len(self.wq) > o.get("w_keep", 12) and idx - self.vgap >= (o.get("wpace1", 2) if self.dq else o.get("wpace2", 3)):
                n_w = 60 - len(self.wq)
                if n_w < 16 + (idx + 1 - self.wfrom) // self.wper:
                    self.wq.pop(0)()
                    self.vgap = idx
            if self.norm and idx % self.norm_every == 0:
                if self.in_fork:
                    self.pull(o.get("fork_bud", 4))
                for x in self.norm.pop(0):
                    p.e(x)
            elif o.get("interleave", 1):
                bud = o.get("budget", 8)
                for lo, hi, v in o.get("boost", []):
                    if lo <= idx < hi:
                        bud = v
                self.pull(bud - (p.slots - start) - (1 if (idx + 1) % grp == 0 else 0))


        idx = 0
        while idx < n:
            if self.fork and idx == self.fork[0]:
                a, b, pre, var1, var2, tag = self.fork
                self.fork = None
                pre()
                assert not self.fill
                snap, tk = self.snapshot(), dict(toks)
                self.in_fork = True
                var1()
                for i in range(a, b):
                    step(i)
                assert not self.fill
                p.e(f"s_branch FORK_JOIN_{tag}")
                end1, tk1 = self.snapshot(), dict(toks)
                p.label(f"FORK_ALT_{tag}")
                self.restore(snap)
                toks.clear(); toks.update(tk)
                var2()
                for i in range(a, b):
                    step(i)
                assert not self.fill
                end2 = self.snapshot()
                assert end1[:5] == end2[:5] and all(tk1[k] == toks[k] for k in toks if k >= b)
                p.label(f"FORK_JOIN_{tag}")
                self.in_fork = False
                idx = b
            else:
                step(idx)
                idx += 1

    def s_frags(self, st0, acc):
        out = []
        for s in range(40):
            st = st0 + s // 8
            slot = st % 8
            for mat in range(2):
                a = V_AS + 8 * (slot // 4) + (s % 8)
                off = (slot % 4) * 16384 + mat * 8192
                c = f"v[{acc+16*mat}:{acc+16*mat+15}]"
                cin = c if s else "0"
                out.append(dict(stage=st, reads=[f"ds_read_b128 a[{{f0}}:{{f3}}], v{a} offset:{off}"],
                                mfma=f"v_mfma_f32_32x32x16_bf16 {c}, a[{XN+4*s}:{XN+4*s+3}], a[{{f0}}:{{f3}}], {cin}"))
        return out

    def d_frags(self, st0, acc, f="v"):
        out = []
        for s in range(40):
            st = st0 + s // 4
            slot = st % 8
            for j in range(2):
                for mat in range(2):
                    a = V_TR + 2 * (slot // 4) + j
                    off = (slot % 4) * 16384 + mat * 8192 + (s % 4) * 2048
                    r = acc + 32 * j + 16 * mat
                    c = f"{f}[{r}:{r+15}]"
                    cin = c if s else "0"
                    out.append(dict(stage=st, reads=[
                        f"ds_read_b64_tr_b16 a[{{f0}}:{{f1}}], v{a} offset:{off}",
                        f"ds_read_b64_tr_b16 a[{{f2}}:{{f3}}], v{a} offset:{off+512}"],
                        mfma=f"v_mfma_f32_32x32x16_bf16 {c}, a[{{f0}}:{{f3}}], a[{XN+4*s}:{XN+4*s+3}], {cin}"))
        return out

    def q(self, *texts):
        for t in texts:
            if isinstance(t, list):
                f = lambda t=t: [self.p.e(x) for x in t]
                f.cost = len(t)
            else:
                f = lambda t=t: self.p.e(t)
                f.cost = cost_of(t)
            self.fill.append(f)

    def lag(self, n):
        st = {}
        self.fill.append(lambda: st.__setitem__("m", self.mf))
        self.fill.append(("t", lambda: self.mf >= st["m"] + n))

    def ffn_tail(self, acc, s_k, mid=None, K=ACC_S):
        e = self.p.e
        T = V_X
        e(f"v_mov_b32 v{K}, v{V_GK1}"); e(f"v_mov_b32 v{K+1}, v{V_GK1}")
        e(f"v_mov_b32 v{K+2}, s{S_GK2}"); e(f"v_mov_b32 v{K+3}, s{S_GK2}")
        e(f"v_mov_b32 v{K+4}, 1.0"); e(f"v_mov_b32 v{K+5}, 1.0")
        for j in range(2):
            g0, u0 = acc + 32 * j, acc + 32 * j + 16
            for half in range(2):
                prs = [(g0 + 8 * half + 2 * k, u0 + 8 * half + 2 * k, K + 6 + 2 * k) for k in range(4)]
                pr = lambda r: f"v[{r}:{r+1}]"
                for g, u, t in prs:
                    e(f"v_pk_mul_f32 {pr(t)}, {pr(g)}, {pr(g)}")
                for g, u, t in prs:
                    e(f"v_pk_fma_f32 {pr(t)}, {pr(t)}, {pr(K+2)}, {pr(K)}")
                for g, u, t in prs:
                    e(f"v_pk_mul_f32 {pr(t)}, {pr(t)}, {pr(g)}")
                for g, u, t in prs:
                    e(f"v_exp_f32 v{t}, v{t}")
                    e(f"v_pk_mul_f32 {pr(u)}, {pr(u)}, {pr(g)}")
                    e(f"v_exp_f32 v{t+1}, v{t+1}")
                for g, u, t in prs:
                    e(f"v_pk_add_f32 {pr(t)}, {pr(t)}, {pr(K+4)}")
                d = T + 4 + 4 * half
                for k, (g, u, t) in enumerate(prs):
                    e(f"v_rcp_f32 v{t}, v{t}")
                    if k:
                        g1, u1, t1 = prs[k - 1]
                        e(f"v_pk_mul_f32 {pr(u1)}, {pr(u1)}, {pr(t1)}")
                    e(f"v_rcp_f32 v{t+1}, v{t+1}")
                    if k:
                        e(f"v_cvt_pk_bf16_f32 v{d+k-1}, v{u1}, v{u1+1}")
                if j == 1 and half == 0:
                    e(f"s_add_u32 s{s_k}, s{s_k}, 4096")
                if mid and (j, half) in mid:
                    mid[j, half]()
                g1, u1, t1 = prs[3]
                e(f"v_pk_mul_f32 {pr(u1)}, {pr(u1)}, {pr(t1)}")
                e(f"v_cvt_pk_bf16_f32 v{d+3}, v{u1}, v{u1+1}")
                self.last_store = e(f"buffer_store_dwordx4 v[{d}:{d+3}], v{V_STA}, {srd(SWS)}, s{s_k} offen offset:{512*half}{self.wt}")

    def ffn_epilogue(self, acc, s_k, via=None):
        T = V_X
        for j in range(2):
            g0, u0 = acc + 32 * j, acc + 32 * j + 16
            for half in range(2):
                for pair in range(4):
                    i = 8 * half + 2 * pair
                    ga, gb, ua, ub = g0 + i, g0 + i + 1, u0 + i, u0 + i + 1
                    ta, tb = T + 2 * (pair % 2), T + 2 * (pair % 2) + 1
                    d = T + 4 + 4 * half + pair
                    if via is not None:
                        x = via + 4 * (pair % 2)
                        self.q(*[f"v_accvgpr_read_b32 v{x+k}, a{r}" for k, r in enumerate((ga, gb, ua, ub))])
                        ga, gb, ua, ub = x, x + 1, x + 2, x + 3
                    self.q(f"v_mul_f32 v{ta}, v{ga}, v{ga}", f"v_mul_f32 v{tb}, v{gb}, v{gb}",
                           f"v_fma_f32 v{ta}, v{ta}, s{S_GK2}, v{V_GK1}", f"v_fma_f32 v{tb}, v{tb}, s{S_GK2}, v{V_GK1}",
                           f"v_mul_f32 v{ta}, v{ta}, v{ga}", f"v_mul_f32 v{tb}, v{tb}, v{gb}",
                           f"v_exp_f32 v{ta}, v{ta}", f"v_exp_f32 v{tb}, v{tb}",
                           f"v_mul_f32 v{ua}, v{ua}, v{ga}", f"v_mul_f32 v{ub}, v{ub}, v{gb}",
                           f"v_add_f32 v{ta}, 1.0, v{ta}", f"v_add_f32 v{tb}, 1.0, v{tb}",
                           f"v_rcp_f32 v{ta}, v{ta}", f"v_rcp_f32 v{tb}, v{tb}",
                           f"v_mul_f32 v{ua}, v{ua}, v{ta}", f"v_mul_f32 v{ub}, v{ub}, v{tb}",
                           f"v_cvt_pk_bf16_f32 v{d}, v{ua}, v{ub}")
                d = T + 4 + 4 * half
                if j == 1 and half == 0:
                    self.q(f"s_add_u32 s{s_k}, s{s_k}, 4096")
                f = lambda d=d, half=half: setattr(self, "last_store", self.p.e(
                    f"buffer_store_dwordx4 v[{d}:{d+3}], v{V_STA}, {srd(SWS)}, s{s_k} offen offset:{512*half}{self.wt}"))
                f.cost = 2
                self.fill.append(f)

    @staticmethod
    def cmul(dr, di, ar, ai, br, bi):
        return [f"v_mul_f32 v{dr}, v{ar}, v{br}", f"v_mul_f32 v{di}, v{ar}, v{bi}",
                f"v_fma_f32 v{dr}, -v{ai}, v{bi}, v{dr}", f"v_fma_f32 v{di}, v{ai}, v{br}, v{di}"]

    def ssm_consts(self, b, praw, u):
        c = V_C + 12 * b
        lr, li, dt = praw, praw + 1, praw + 2
        L = [f"v_lshlrev_b32 v{lr}, 16, v{lr}", f"v_lshlrev_b32 v{li}, 16, v{li}", f"v_lshlrev_b32 v{dt}, 16, v{dt}",
             f"v_mul_f32 v{dt}, {fx(LOG2E)}, v{dt}", f"v_exp_f32 v{dt}, v{dt}",
             f"v_cvt_pk_bf16_f32 v{dt}, v{dt}, v{dt}", f"v_lshlrev_b32 v{dt}, 16, v{dt}",
             f"v_mul_f32 v{u}, v{dt}, v{lr}", f"v_mul_f32 v{u+1}, v{dt}, v{li}",
             f"v_mul_f32 v{u}, {fx(LOG2E)}, v{u}", f"v_mul_f32 v{u+1}, 0.15915494, v{u+1}",
             f"v_exp_f32 v{u}, v{u}", f"v_fract_f32 v{u+1}, v{u+1}",
             f"v_cos_f32 v{u+2}, v{u+1}", f"v_sin_f32 v{u+3}, v{u+1}",
             f"v_mul_f32 v{c}, v{u}, v{u+2}", f"v_mul_f32 v{c+1}, v{u}, v{u+3}",
             f"v_add_f32 v{u}, -1.0, v{c}",
             f"v_mul_f32 v{u+1}, v{lr}, v{lr}", f"v_fma_f32 v{u+1}, v{li}, v{li}, v{u+1}",
             f"v_rcp_f32 v{u+1}, v{u+1}",
             f"v_mul_f32 v{u+2}, v{u}, v{lr}", f"v_fma_f32 v{u+2}, v{c+1}, v{li}, v{u+2}",
             f"v_mul_f32 v{u+3}, v{c+1}, v{lr}", f"v_fma_f32 v{u+3}, -v{u}, v{li}, v{u+3}",
             f"v_add_f32 v{u+1}, v{u+1}, v{u+1}",
             f"v_mul_f32 v{c+2}, v{u+2}, v{u+1}", f"v_mul_f32 v{c+3}, v{u+3}, v{u+1}"]
        L += self.cmul(u, u + 1, c, c + 1, c, c + 1)
        L += self.cmul(u + 2, u + 3, u, u + 1, u, u + 1)
        L += self.cmul(u, u + 1, u + 2, u + 3, u + 2, u + 3)
        L += self.cmul(c + 4, c + 5, u, u + 1, u, u + 1)
        L += self.cmul(u, u + 1, c + 4, c + 5, c + 4, c + 5)
        L += self.cmul(u + 2, u + 3, u, u + 1, u, u + 1)
        L += self.cmul(c + 8, c + 9, u + 2, u + 3, u + 2, u + 3)
        L += self.cmul(c + 10, c + 11, c + 8, c + 9, c + 8, c + 9)
        hm, m2 = f"s[{S_HM}:{S_HM+1}]", f"s[{S_M2}:{S_M2+1}]"
        L += [f"v_cndmask_b32 v{u+4}, 1.0, v{c+4}, {hm}", f"v_cndmask_b32 v{u+5}, 0, v{c+5}, {hm}",
              [f"s_bitcmp1_b32 s{S_W}, 0", f"s_cselect_b64 {m2}, -1, 0"],
              f"v_cndmask_b32 v{u}, 1.0, v{u}, {m2}", f"v_cndmask_b32 v{u+1}, 0, v{u+1}, {m2}"]
        L += self.cmul(u + 6, u + 7, u + 4, u + 5, u, u + 1)
        L += [[f"s_bitcmp1_b32 s{S_W}, 1", f"s_cselect_b64 {m2}, -1, 0"],
              f"v_cndmask_b32 v{u+2}, 1.0, v{u+2}, {m2}", f"v_cndmask_b32 v{u+3}, 0, v{u+3}, {m2}"]
        L += self.cmul(c + 6, c + 7, u + 6, u + 7, u + 2, u + 3)
        return L

    def ex_base(self, sreg, b):
        return [f"s_add_u32 s{sreg}, s{S_SB}, {b}", f"s_mul_i32 s{sreg}, s{sreg}, {EX_BLK}",
                f"s_add_u32 s{sreg}, s{sreg}, {EX_OFF}"]

    def ssm_reduce(self, b, acc, X, keep=False, T=V_X):
        p = self.p
        c = V_C + 12 * b
        re, im = acc, acc + 16
        cur = (re, im)
        if b == 0 and not self.fused:
            self.q(f"v_mov_b32 v{T+4}, 0", f"v_min_u32 v{T+5}, 6, v{V_SEG}", f"v_sub_u32 v{T+5}, v{T+5}, v{V_SEG}",
                   f"v_lshl_add_u32 v{T+5}, v{T+5}, 3, v{V_XR}", f"ds_write2_b32 v{T+5}, v{T+4}, v{T+4} offset1:1")
        for t in range(1, 16):
            d = (re + t, im + t) if keep else ((T, T + 1) if t % 2 else (T + 2, T + 3))
            self.q(f"v_fma_f32 v{d[0]}, -v{c+1}, v{cur[1]}, v{re+t}", f"v_fma_f32 v{d[1]}, v{c+1}, v{cur[0]}, v{im+t}",
                   f"v_fma_f32 v{d[0]}, v{c}, v{cur[0]}, v{d[0]}", f"v_fma_f32 v{d[1]}, v{c}, v{cur[1]}, v{d[1]}")
            cur = d
        hr, hi = cur
        st = {}

        def wr():
            st["wr"] = p.e(f"ds_write2_b32 v{V_XR}, v{hr}, v{hi} offset0:14 offset1:15")
        self.fill.append(wr)
        self.lag(self.opt.get("xlag", 3))

        def arm():
            self.pre_barrier.append(st["wr"])
            st["bar"] = self.nbar
        self.fill.append(arm)
        self.fill.append(("bar", lambda: self.nbar > st["bar"]))
        E = X
        pr, pi = V_PRE + 2 * b, V_PRE + 2 * b + 1

        def rd():
            for k in range(3):
                p.e(f"ds_read2_b64 v[{E+4*k}:{E+4*k+3}], v{V_XR} offset0:{2*k} offset1:{2*k+1}")
            st["t"] = p.e(f"ds_read_b64 v[{E+12}:{E+13}], v{V_XR} offset:48")
        rd.cost = 4
        self.fill.append(rd)
        g = T + 4
        self.q(f"v_mov_b32 v{g+1}, s{S_EPOCH}", f"v_mov_b32 v{g+3}, s{S_EPOCH}", *self.ex_base(S_T2, b))
        self.lag(4)
        self.fill.append(lambda: p.wait(st["t"]))
        cur = (E, E + 1)
        for j in range(1, 7):
            er, ei = E + 2 * j, E + 2 * j + 1
            d = (pr, pi) if j == 6 else (er, ei)
            self.q(f"v_fma_f32 v{er}, -v{c+5}, v{cur[1]}, v{er}", f"v_fma_f32 v{ei}, v{c+5}, v{cur[0]}, v{ei}",
                   f"v_fma_f32 v{d[0]}, v{c+4}, v{cur[0]}, v{er}", f"v_fma_f32 v{d[1]}, v{c+4}, v{cur[1]}, v{ei}")
            cur = d
        self.q(f"v_fma_f32 v{g}, -v{c+5}, v{pi}, v{hr}", f"v_fma_f32 v{g+2}, v{c+5}, v{pr}, v{hi}",
               f"v_fma_f32 v{g}, v{c+4}, v{pr}, v{g}", f"v_fma_f32 v{g+2}, v{c+4}, v{pi}, v{g+2}",
               f"buffer_store_dwordx4 v[{g}:{g+3}], v{V_PUB}, {srd(SWS)}, s{S_T2} offen sc1")

    def ssm_pre(self, b, acc, Q):
        c = V_C + 12 * b
        T = V_X
        re, im = acc, acc + 16
        self.q(*self.cmul(Q, Q + 16, c + 2, c + 3, c, c + 1))
        for t in range(16):
            o = T + 2 * (t % 2)
            self.q(f"v_mul_f32 v{o}, v{c+3}, v{im+t}", f"v_mul_f32 v{o+1}, v{c+3}, v{re+t}",
                   f"v_fma_f32 v{re+t}, v{c+2}, v{re+t}, -v{o}", f"v_fma_f32 v{im+t}, v{c+2}, v{im+t}, v{o+1}")
            if t < 15:
                self.q(*self.cmul(Q + t + 1, Q + 17 + t, Q + t, Q + 16 + t, c, c + 1))

    def lb_issue(self, i, LB, A):
        p = self.p
        p.e(f"v_add_u32 v{A}, {-1024*i & 0xffffffff:#x}, v{V_LBO}" if i else f"v_mov_b32 v{A}, v{V_LBO}")
        p.e(f"v_max_i32 v{A}, v{A}, v{V_LBO+1}")
        if self.opt.get("dbg_nolb"):
            p.e(f"v_mov_b32 v{A}, v{V_LBO+1}")
        return p.e(f"buffer_load_dwordx4 v[{LB+4*i}:{LB+4*i+3}], v{A}, {srd(SWS)}, s{S_T3} offen sc1")

    def lb_mix(self, LB, A):
        L = [f"v_mov_b32 v{A+1}, s{S_EPOCH}"]
        for i in range(8):
            d = A if i == 0 else A + 2 + i % 2
            L.append(f"v_bitop3_b32 v{d}, v{LB+4*i+1}, v{LB+4*i+3}, v{A+1} bitop3:0x7e")
            if i and i % 2 == 0:
                L.append(f"v_or3_b32 v{A}, v{A}, v{A+2}, v{A+3}")
        L.append(f"v_or_b32 v{A}, v{A}, v{A+3}")
        return L

    def lb_check(self, LB, A, tag):
        p = self.p
        for x in self.lb_mix(LB, A):
            p.e(x)
        p.e(f"v_cmp_ne_u32 vcc, 0, v{A}")
        p.e(f"s_cbranch_vccnz LB_SLOW_{tag}")

    def ssm_finish(self, b, acc, LB, gate_issue, gate_check, tag, Q=None, between=None):
        p = self.p
        c = V_C + 12 * b
        PRE = V_PRE + 2 * b
        st = {}
        if gate_issue is not None:
            self.fill.append(("t", gate_issue))
        A = LB + 32
        self.q(*self.ex_base(S_T3, b), f"s_mov_b32 s{S_SPIN}, 0")
        for i in range(8):
            def f(i=i):
                st["t"] = self.lb_issue(i, LB, A)
            self.fill.append(f)
        if between:
            between()
        if gate_check is not None:
            self.fill.append(("t", gate_check))

        self.fill.append(lambda: p.wait(st["t"]))
        self.q(*self.lb_mix(LB, A))

        def check():
            p.e(f"v_cmp_ne_u32 vcc, 0, v{A}")
            p.e(f"s_cbranch_vccnz LB_SLOW_{tag}")
            p.label(f"LB_OK_{tag}")
            self.slow.append((tag, LB, A))
        self.fill.append(check)
        pr, pi = A, A + 1
        self.q(f"v_mov_b32 v{pr}, v{LB+28}", f"v_mov_b32 v{pi}, v{LB+30}")
        for i in range(6, -1, -1):
            er, ei = LB + 4 * i, LB + 4 * i + 2
            self.q(f"v_fma_f32 v{er}, -v{c+11}, v{pi}, v{er}", f"v_fma_f32 v{ei}, v{c+11}, v{pr}, v{ei}",
                   f"v_fma_f32 v{pr}, v{c+10}, v{pr}, v{er}", f"v_fma_f32 v{pi}, v{c+10}, v{pi}, v{ei}")
        r0, i0, r1, i1 = LB, LB + 1, LB + 2, LB + 3
        self.q(f"v_mov_b32 v{r0}, v{pr}", f"v_mov_b32 v{r1}, v{pr}", f"v_mov_b32 v{i0}, v{pi}", f"v_mov_b32 v{i1}, v{pi}",
               f"v_permlane32_swap_b32 v{r0}, v{r1}", f"v_permlane32_swap_b32 v{i0}, v{i1}",
               f"v_fma_f32 v{r0}, -v{c+9}, v{i1}, v{r0}", f"v_fma_f32 v{i0}, v{c+9}, v{r1}, v{i0}",
               f"v_fma_f32 v{r0}, v{c+8}, v{r1}, v{r0}", f"v_fma_f32 v{i0}, v{c+8}, v{i1}, v{i0}",
               f"v_fma_f32 v{PRE}, -v{c+7}, v{i0}, v{PRE}", f"v_fma_f32 v{PRE+1}, v{c+7}, v{r0}, v{PRE+1}",
               f"v_fma_f32 v{PRE}, v{c+6}, v{r0}, v{PRE}", f"v_fma_f32 v{PRE+1}, v{c+6}, v{i0}, v{PRE+1}")
        re, im = acc, acc + 16
        cur = (PRE, PRE + 1)
        for t in range(16):
            o = LB + 4 + 4 * (t % 2)
            if Q is not None:
                qr, qi = Q + t, Q + 16 + t
                self.q(f"v_fma_f32 v{re+t}, v{qr}, v{PRE}, v{re+t}", f"v_fma_f32 v{im+t}, v{qr}, v{PRE+1}, v{im+t}",
                       f"v_fma_f32 v{re+t}, -v{qi}, v{PRE+1}, v{re+t}", f"v_fma_f32 v{im+t}, v{qi}, v{PRE}, v{im+t}",
                       f"v_cvt_pk_bf16_f32 v{o+2}, v{re+t}, -v{im+t}")
                if t == 15:
                    self.fill.append(lambda: setattr(self, "q_done", True))
            else:
                self.q(f"v_fma_f32 v{re+t}, -v{c+1}, v{cur[1]}, v{re+t}", f"v_fma_f32 v{im+t}, v{c+1}, v{cur[0]}, v{im+t}",
                       f"v_fma_f32 v{re+t}, v{c}, v{cur[0]}, v{re+t}", f"v_fma_f32 v{im+t}, v{c}, v{cur[1]}, v{im+t}")
                cur = (re + t, im + t)
                self.q(f"v_mul_f32 v{o}, v{c+2}, v{re+t}", f"v_mul_f32 v{o+1}, v{c+2}, v{im+t}",
                       f"v_fma_f32 v{o}, -v{c+3}, v{im+t}, v{o}", f"v_fma_f32 v{o+1}, v{c+3}, v{re+t}, v{o+1}",
                       f"v_cvt_pk_bf16_f32 v{o+2}, v{o}, -v{o+1}")

            def w(t=t, o=o):
                st["w"] = p.e(f"ds_write_b32 v{V_TW}, v{o+2} offset:{144*t}")
            self.fill.append(w)
        O = LB + 12
        self.lag(4)

        def rd():
            p.wait(st["w"])
            st["r"] = [p.e(f"ds_read_b128 v[{O+4*f}:{O+4*f+3}], v{V_TW+1} offset:{(f>>1)*2304 + (f&1)*64}")
                       for f in range(4)]
        self.fill.append(rd)
        self.q(f"s_add_u32 s{S_T3}, s{S_SB}, {b}", f"s_lshl_b32 s{S_T3}, s{S_T3}, 13",
               f"s_add_u32 s{S_T3}, s{S_T3}, s{S_A2ROW}", f"s_add_u32 s{S_T3}, s{S_T3}, {54*4096}",
               f"s_add_u32 s{S_T2}, s{S_T3}, 4096")
        self.lag(5)
        for f in range(4):
            def stf(f=f):
                p.wait(st["r"][f])
                so = S_T2 if f & 1 else S_T3
                self.last_store = p.e(f"buffer_store_dwordx4 v[{O+4*f}:{O+4*f+3}], v{V_TW+2}, {srd(SWS)}, s{so} offen offset:{1024*(f>>1)}{self.wt}")
            self.fill.append(stf)

    def slow_paths(self):
        p = self.p
        for tag, LB, A in self.slow:
            p.label(f"LB_SLOW_{tag}")
            p.e("s_sleep 2")
            p.e(f"s_add_u32 s{S_SPIN}, s{S_SPIN}, 1")
            p.e(f"s_cmp_gt_u32 s{S_SPIN}, 100000")
            p.e(f"s_cbranch_scc1 LB_OK_{tag}")
            for i in range(8):
                self.lb_issue(i, LB, A)
            p.e("s_waitcnt vmcnt(0)")
            self.lb_check(LB, A, tag)
            p.e(f"s_branch LB_OK_{tag}")

    def mk_srd(self, d, ptr, nbytes):
        return [f"s_mov_b32 s{d}, s{ptr}", f"s_mov_b32 s{d+1}, s{ptr+1}",
                f"s_mov_b32 s{d+2}, {nbytes}", f"s_mov_b32 s{d+3}, 0x20000"]

    def prologue(self):
        p, e, q, o = self.p, self.p.e, self.q, self.opt
        hm = f"s[{S_HM}:{S_HM+1}]"
        p.raw(".p2align 8")
        p.label(self.name)
        e("s_cmp_ge_u32 s2, 256")
        e("s_cbranch_scc1 K1_END")
        if o.get("stamp"):
            e("s_memrealtime s[94:95]")
            self.stamp(0)
        e("s_load_dwordx16 s[36:51], s[0:1], 0")
        e("s_load_dwordx16 s[52:67], s[0:1], 64")
        e(f"s_getpc_b64 s[{S_T0}:{S_T1}]")
        p.label("K1_PC")
        e("v_lshrrev_b32 v2, 6, v0")
        e(f"v_and_b32 v{V_LANE}, 63, v0")
        e(f"v_readfirstlane_b32 s{S_W}, v2")
        e("s_lshr_b32 s3, s2, 3")
        e(f"s_lshl_b32 s{S_T2}, s3, 2")
        e(f"s_add_u32 s{S_T2}, s{S_T2}, s{S_W}")
        e(f"s_mul_i32 s{S_T2}, s{S_T2}, 768")
        e(f"v_lshlrev_b32 v2, 7, v{V_LANE}")
        e(f"v_add_u32 v2, s{S_T2}, v2")
        e("v_min_u32 v2, TEXT_END-K1_PC-4, v2")
        e("s_mov_b64 exec, 63")
        e(f"global_load_dword v{V_PRE+5}, v2, s[{S_T0}:{S_T1}]")
        e("s_mov_b64 exec, -1")
        e(f"s_and_b32 s{S_T2}, s2, 7")
        e(f"s_lshr_b32 s{S_MT}, s{S_T2}, 1")
        e(f"s_lshl_b32 s{S_MT}, s{S_MT}, 2")
        e(f"s_and_b32 s{S_T3}, s3, 3")
        e(f"s_add_u32 s{S_MT}, s{S_MT}, s{S_T3}")
        e(f"s_and_b32 s{S_CG}, s{S_T2}, 1")
        e(f"s_lshl_b32 s{S_CG}, s{S_CG}, 3")
        e("s_lshr_b32 s3, s3, 2")
        e(f"s_add_u32 s{S_CG}, s{S_CG}, s3")
        e(f"s_add_u32 s{S_R}, s3, s{S_T3}")
        if o.get("rot_x"):
            e(f"s_lshr_b32 s{S_T2}, s{S_MT}, 2")
            e(f"s_add_u32 s{S_R}, s{S_R}, s{S_T2}")
        for _ in range(3 if o.get("rot_x") else 2):
            e(f"s_sub_u32 s{S_T2}, s{S_R}, 5")
            e(f"s_cmp_ge_u32 s{S_R}, 5")
            e(f"s_cselect_b32 s{S_R}, s{S_T2}, s{S_R}")
        e(f"s_lshl_b32 s{S_KS}, s{S_R}, 8")
        for i in range(1, 5):
            e(f"s_add_u32 s{S_KS+i}, s{S_KS+i-1}, 256")
            e(f"s_cmp_eq_u32 s{S_KS+i}, 1280")
            e(f"s_cselect_b32 s{S_KS+i}, 0, s{S_KS+i}")
        e(f"s_lshl_b32 s{S_W4K}, s{S_W}, 12")
        e(f"s_lshl_b32 s{S_XB}, s{S_MT}, 2")
        e(f"s_add_u32 s{S_XB}, s{S_XB}, s{S_W}")
        e(f"s_mul_i32 s{S_XB}, s{S_XB}, {32*1280}")
        a, xr = V_X + 4, V_X + 5
        e(f"v_lshrrev_b32 v{a}, 4, v{V_LANE}")
        e(f"v_and_b32 v{xr}, 15, v{V_LANE}")
        e(f"v_xor_b32 v{xr}, v{xr}, v{a}")
        e(f"v_lshlrev_b32 v{xr}, 4, v{xr}")
        e(f"v_mul_u32_u24 v{a}, 1280, v{a}")
        for k in range(4):
            e(f"v_xor_b32 v{V_OS+k}, {64*k}, v{xr}")
            e(f"v_add_u32 v{V_OS+k}, v{V_OS+k}, v{a}")
            e(f"v_add_u32 v{V_X+k}, {(16*(k&1) + 4*(k>>1))*1280 - 1024*k}, v{V_OS+k}")
        e(f"s_cmp_ge_u32 s{S_CG}, 8")
        e(f"s_cselect_b32 s{S_T2}, 1, 0")
        e(f"s_sub_u32 s{S_SB}, s{S_CG}, s{S_T2}")
        e(f"s_lshl_b32 s{S_D1}, s{S_SB}, 1")
        e(f"s_mov_b32 s{S_TYPE}, 0")
        e(f"s_cmp_eq_u32 s{S_CG}, 14")
        e(f"s_cselect_b32 s{S_TYPE}, 1, s{S_TYPE}")
        e(f"s_cmp_eq_u32 s{S_CG}, 7")
        e(f"s_cselect_b32 s{S_TYPE}, 2, s{S_TYPE}")
        e(f"s_cselect_b32 s{S_SB}, 14, s{S_SB}")
        e(f"s_cmp_eq_u32 s{S_CG}, 15")
        e(f"s_cselect_b32 s{S_TYPE}, 2, s{S_TYPE}")
        e(f"s_cselect_b32 s{S_SB}, 17, s{S_SB}")
        e(f"v_and_b32 v{V_SEG}, 31, v{V_LANE}")
        e(f"s_lshl_b32 s{S_T2}, s{S_SB}, 6")
        e(f"v_lshl_add_u32 v{V_PUB}, v{V_SEG}, 1, s{S_T2}")
        e(f"v_min_u32 v{V_XR}, {1278 - 128}, v{V_PUB}")
        e(f"v_mov_b32 v{V_XW}, {EPOCH_OFF}")
        e(f"s_lshl_b32 s{S_J1}, s{S_W}, 13")
        e(f"s_add_u32 s{S_J1}, s{S_J1}, {LDS_SCR}")
        e("s_waitcnt lgkmcnt(0)")
        for x in self.mk_srd(SX, K_X, X_BYTES):
            e(x)
        xt = {}
        cnt = {"n": 0}

        def x_piece(i, u):
            if u % 4 == 0:
                hh = u // 4
                if i < 4:
                    e(f"s_add_u32 m0, s{S_W4K}, {(i + 4*hh)*16384}")
                elif hh:
                    e(f"s_add_u32 m0, s{S_J1}, 4096")
                else:
                    e(f"s_mov_b32 m0, s{S_J1}")
                e(f"s_add_u32 s{S_T0}, s{S_XB}, s{S_KS+i}")
                if hh:
                    e(f"s_add_u32 s{S_T0}, s{S_T0}, 10240")
            xt[i, u] = e(f"buffer_load_dwordx4 v{V_X+u%4}, {srd(SX)}, s{S_T0} offen offset:{1024*(u%4)}{o.get('ntx', '')} lds")
            cnt["n"] += 1
        xq = [(i, u) for i in range(5) for u in range(8)]
        for _ in range(o.get("x_first", 4)):
            x_piece(*xq.pop(0))
        for x in self.mk_srd(SWS, K_WS, WS_USED):
            e(x)
        EP = V_PRE + 4
        e(f"s_mov_b32 s{S_T2}, 0" if self.fused else f"s_lshl_b32 s{S_T2}, s{S_CG}, 7")
        e(f"buffer_load_dword v{EP}, v{V_XW}, {srd(SWS)}, s{S_T2} offen sc1")
        t_par = None
        for b in range(3):
            for k, ptr in enumerate((K_LRE, K_LIM, K_LDT)):
                va = V_XR if b else V_PUB
                t_par = e(f"global_load_ushort v{V_C+12*b+6+k}, v{va}, s[{ptr}:{ptr+1}] offset:{64*b}")
        if self.fused:
            for _ in range(o.get("job_after", 4)):
                x_piece(*xq.pop(0))
            if o.get("job_dq") != 2 and o.get("job_mode") != "dma":
                self.a_job_setup()
        if o.get("wpre", 1) >= 2:
            n2 = o.get("wpre_after", 0)
            for _ in range(n2):
                x_piece(*xq.pop(0))
            self.w_prefetch_early()
        for _ in range(o.get("x_second", 4) - o.get("wpre_after", 0) - (o.get("job_after", 4) if self.fused else 0)):
            x_piece(*xq.pop(0))
        if o.get("touch", 1) == 2:
            e(f"s_cmp_lg_u32 s{S_W}, 3")
            e("s_cbranch_scc1 K1_NOTOUCH")
            e(f"s_lshl_b32 s{S_T2}, s2, 7")
            e(f"s_add_u32 s{S_T3}, s{S_T2}, {1 << 21}")
            for ptr, both in ((K_BRE, 0), (K_BIM, 0), (K_WG, 1), (K_WU, 1), (K_WD, 1), (K_CRE, 0), (K_CIM, 0), (K_OUT, 1)):
                e(f"s_load_dword s95, s[{ptr}:{ptr+1}], s{S_T2}")
                if both:
                    e(f"s_load_dword s95, s[{ptr}:{ptr+1}], s{S_T3}")
            p.label("K1_NOTOUCH")
            e(f"s_cmp_lg_u32 s{S_W}, 2")
            e("s_cbranch_scc1 K1_NOTOUCH2")
            e(f"s_lshl_b32 s{S_T2}, s2, 7")
            for pg in range(12):
                e(f"s_load_dword s95, s[{K_WS}:{K_WS+1}], s{S_T2}")
                e(f"s_add_u32 s{S_T2}, s{S_T2}, {1 << 21}")
            e(f"s_load_dword s95, s[{K_DSK}:{K_DSK+1}], 0")
            e(f"s_mov_b32 s{S_T2}, {1 << 22}")
            e(f"s_load_dword s95, s[{K_OUT}:{K_OUT+1}], s{S_T2}")
            p.label("K1_NOTOUCH2")
        if o.get("touch", 1) == 1:
            for ptr, offs in ((K_BRE, [0]), (K_BIM, [0]), (K_WG, [0, 1 << 21]), (K_WU, [0, 1 << 21]), (K_WD, [0, 1 << 21]),
                              (K_CRE, [0]), (K_CIM, [0]), (K_X, [1 << 21])):
                for off in offs:
                    if off:
                        e(f"s_mov_b32 s{S_T2}, {off}")
                    e(f"s_load_dword s95, s[{ptr}:{ptr+1}], " + (f"s{S_T2}" if off else "0"))
        self.stamp(1)
        self.pro = dict(xq=xq, xt=xt, cnt=cnt, x_piece=x_piece, t_par=t_par, EP=EP)
        if o.get("order") != "DSD":
            self.prologue2("S", o.get("npre", 8))

    def prologue2(self, kind, npre):
        p, e, q, o = self.p, self.p.e, self.q, self.opt
        hm = f"s[{S_HM}:{S_HM+1}]"
        xq, xt, cnt = list(self.pro["xq"]), self.pro["xt"], self.pro["cnt"]
        x_piece, t_par, EP = self.pro["x_piece"], self.pro["t_par"], self.pro["EP"]
        cnt["n"] = 40 - len(xq)
        arg = 0 if kind == "S" else S_D1
        for k in range(1, 4):
            q(f"v_add_u32 v{V_OS+k}, {4*k*1280 - 1024*k}, v{V_OS+k}")
        h, c, t0, t1 = V_X + 4, V_SEG, V_X + 5, V_X + 6
        q(f"s_mov_b32 s{S_HM}, 0", f"s_mov_b32 s{S_HM+1}, -1", f"s_mov_b32 s{S_MASK}, 0xffff0000",
          f"v_lshrrev_b32 v{h}, 5, v{V_LANE}")
        q(f"v_and_b32 v{t0}, 15, v{V_LANE}", f"v_xor_b32 v{t1}, v{t0}, v{h}", f"v_lshlrev_b32 v{t1}, 4, v{t1}",
          f"v_lshl_add_u32 v{t1}, v{t0}, 8, v{t1}", f"v_bfe_u32 v{t0}, v{V_LANE}, 4, 1",
          f"v_lshlrev_b32 v{V_X+8}, 16, v{t0}", f"v_add_u32 v{V_X+8}, s{S_W4K}, v{V_X+8}",
          f"v_lshlrev_b32 v{t0}, 12, v{t0}")
        for s in range(8):
            q(f"v_xor_b32 v{V_AS+s}, {32*s}, v{t1}", f"v_add_u32 v{V_AS+8+s}, v{V_AS+s}, v{V_X+8}",
              f"v_add_u32 v{V_AS+s}, v{V_AS+s}, v{t0}")
        sm, sq = V_PRE, V_PRE + 1
        q(f"v_mov_b32 v{sm}, 0", f"v_mov_b32 v{sq}, 0", f"s_mov_b32 s{S_SPIN}, 0x3f803f80")
        q([f"s_cmp_ge_u32 s{S_W}, 2",
           f"s_cselect_b32 s{SS}, s{K_BIM}, s{K_BRE}", f"s_cselect_b32 s{SS+1}, s{K_BIM+1}, s{K_BRE+1}",
           f"s_cselect_b32 s{SF}, s{K_WU}, s{K_WG}", f"s_cselect_b32 s{SF+1}, s{K_WU+1}, s{K_WG+1}"],
          f"s_mov_b32 s{SS+2}, {SQ_BYTES}", f"s_mov_b32 s{SS+3}, 0x20000",
          f"s_mov_b32 s{SF+2}, {FF_BYTES}", f"s_mov_b32 s{SF+3}, 0x20000")
        for i in range(5):
            q(f"s_mul_i32 s{S_KF+i}, s{S_KS+i}, {128*3456//256}")
        q(f"s_and_b32 s{S_T2}, s{S_W}, 1",
          f"s_lshl_b32 s{S_SBROW}, s{S_SB}, 1", f"s_add_u32 s{S_SBROW}, s{S_SBROW}, s{S_T2}",
          f"s_mul_i32 s{S_SBROW}, s{S_SBROW}, {16*1280}",
          f"s_lshr_b32 s{S_T3}, s{S_W}, 1",
          f"s_lshl_b32 s{S_A2ROW}, s{S_MT}, 1", f"s_add_u32 s{S_A2ROW}, s{S_A2ROW}, s{S_T3}",
          f"s_mul_i32 s{S_A2ROW}, s{S_A2ROW}, {94*4096}",
          f"s_lshl_b32 s{S_T3}, s{S_T2}, 11", f"s_add_u32 s{S_A2ROW}, s{S_A2ROW}, s{S_T3}",
          f"s_lshl_b32 s{S_KD1}, s{S_D1}, 13", f"s_add_u32 s{S_KD1}, s{S_KD1}, s{S_A2ROW}",
          f"s_add_u32 s{S_KD2}, s{S_KD1}, 8192",
          f"s_lshl_b32 s{S_D1}, s{S_D1}, 7", f"s_mul_i32 s{S_T3}, s{S_T2}, {32*3456}",
          f"s_add_u32 s{S_D1}, s{S_D1}, s{S_T3}", f"s_add_u32 s{S_D2}, s{S_D1}, 128",
          f"s_mov_b32 s{S_GK2}, {fx(GK2)}", f"v_mov_b32 v{V_GK1}, {fx(GK1)}")
        if o.get("touch", 1) == 1:
            ws, out = f"s[{K_WS}:{K_WS+1}]", f"s[{K_OUT}:{K_OUT+1}]"
            q(f"s_mul_i32 s{S_T2}, s{S_MT}, {2*94*4096}", f"s_load_dword s95, {ws}, s{S_T2}",
              f"s_add_u32 s{S_T2}, s{S_T2}, {2*94*4096 - 4}", f"s_load_dword s95, {ws}, s{S_T2}")
            for off in (W2F_OFF, W2F_OFF + (1 << 21)):
                q(f"s_mov_b32 s{S_T2}, {off}", f"s_load_dword s95, {ws}, s{S_T2}")
            q(f"s_mul_i32 s{S_T2}, s2, {4*5120}", f"s_add_u32 s{S_T2}, s{S_T2}, {PART_OFF}", f"s_load_dword s95, {ws}, s{S_T2}",
              f"s_mul_i32 s{S_T2}, s{S_MT}, {128*2560}", f"s_load_dword s95, {out}, s{S_T2}",
              f"s_add_u32 s{S_T2}, s{S_T2}, {128*2560 - 4}", f"s_load_dword s95, {out}, s{S_T2}",
              f"s_load_dword s95, s[{K_DSK}:{K_DSK+1}], 0")
        q(f"v_lshrrev_b32 v{t0}, 3, v{V_LANE}", f"v_mul_u32_u24 v{t0}, 3456, v{t0}",
          f"v_bfe_u32 v{t1}, v{V_LANE}, 4, 1", f"v_lshlrev_b32 v{t1}, 2, v{t1}",
          f"v_and_b32 v{V_OF}, 7, v{V_LANE}", f"v_xor_b32 v{V_OF}, v{V_OF}, v{t1}",
          f"v_lshl_add_u32 v{V_OF}, v{V_OF}, 4, v{t0}")
        for k in range(1, 4):
            q(f"v_add_u32 v{V_OF+k}, {k*(8*3456 - 1024)}, v{V_OF}")
        q(f"v_bfe_u32 v{t0}, v{V_LANE}, 2, 2", f"v_lshl_add_u32 v{t1}, v{h}, 3, v{t0}",
          f"v_lshlrev_b32 v{V_TR}, 7, v{t1}", f"v_lshrrev_b32 v{t0}, 1, v{t0}",
          f"v_lshl_add_u32 v{V_TR}, v{t0}, 6, v{V_TR}", f"v_bfe_u32 v{t0}, v{V_LANE}, 4, 1",
          f"v_lshl_add_u32 v{V_TR}, v{t0}, 5, v{V_TR}", f"v_and_b32 v{t0}, 3, v{V_LANE}",
          f"v_lshl_add_u32 v{V_TR}, v{t0}, 3, v{V_TR}", f"v_xor_b32 v{V_TR+1}, 64, v{V_TR}",
          f"v_add_u32 v{V_TR+2}, 0x10000, v{V_TR}", f"v_add_u32 v{V_TR+3}, 0x10000, v{V_TR+1}")
        q(f"v_lshrrev_b32 v{t1}, 3, v{c}", f"v_lshl_add_u32 v{t1}, v{t1}, 2, v{t0}",
          f"v_lshl_add_u32 v{V_STA}, v{h}, 4, v{t1}", f"v_lshlrev_b32 v{V_STA}, 4, v{V_STA}",
          f"v_bfe_u32 v{t0}, v{c}, 2, 1", f"v_lshl_add_u32 v{V_STA}, v{t0}, 10, v{V_STA}",
          f"v_lshl_add_u32 v{V_X+7}, v{t0}, 4, v{t1}", f"v_lshlrev_b32 v{V_X+7}, 3, v{V_X+7}",
          f"v_cndmask_b32 v{V_X+7}, v{V_X+7}, v{V_XW}, {hm}" if not self.fused else
          [f"s_lshl_b32 s{S_T2}, s{S_W}, 8", f"s_add_u32 s{S_T2}, s{S_T2}, {STL}", f"v_add_u32 v0, s{S_T2}, v{V_X+7}"])
        q(f"v_lshlrev_b32 v{V_LBO+1}, 4, v{c}", f"v_sub_u32 v{t0}, s{S_MT}, v{h}",
          f"v_lshl_add_u32 v{V_LBO}, v{t0}, 9, v{V_LBO+1}",
          f"s_add_u32 s{S_T2}, s{S_MT}, 1", f"s_lshl_b32 s{S_T2}, s{S_T2}, 9",
          [f"s_cmp_eq_u32 s{S_W}, 3", f"s_cselect_b32 s{S_T2}, s{S_T2}, {OOB}"], f"v_add_u32 v{t0}, s{S_T2}, v{V_LBO+1}",
          f"v_mov_b32 v{t1}, {OOB}", f"v_cndmask_b32 v{V_PUB}, v{t1}, v{t0}, {hm}",
          f"v_and_b32 v{V_XR}, 15, v{c}", f"v_mul_u32_u24 v{V_XR}, 120, v{V_XR}", f"v_lshrrev_b32 v{t0}, 4, v{c}",
          f"v_lshl_add_u32 v{V_XR}, v{t0}, 13, v{V_XR}", f"v_add_u32 v{V_XR}, {XCH}, v{V_XR}",
          f"v_mul_u32_u24 v{V_TW}, {16*144}, v{h}", f"v_lshl_add_u32 v{V_TW}, v{c}, 2, v{V_TW}",
          f"v_add_u32 v{V_TW}, s{S_J1}, v{V_TW}",
          f"v_and_b32 v{t0}, 15, v{V_LANE}", f"v_mul_u32_u24 v{t0}, 144, v{t0}",
          f"v_lshrrev_b32 v{t1}, 4, v{V_LANE}", f"v_lshl_add_u32 v{V_TW+1}, v{t1}, 4, v{t0}",
          f"v_add_u32 v{V_TW+1}, s{S_J1}, v{V_TW+1}", f"v_lshlrev_b32 v{V_TW+2}, 4, v{V_LANE}",
          f"s_lshl_b32 s{S_T2}, s{S_W}, 1", f"v_add_u32 v{V_SEG}, s{S_T2}, v{h}",
          f"v_lshl_add_u32 v{V_XR}, v{V_SEG}, 3, v{V_XR}")
        self.fill.append(lambda: p.wait(t_par))
        U = RAW + 152
        q(f"v_readfirstlane_b32 s{S_EPOCH}, v{EP}")
        if o.get("job_dq") == 2:
            self.fill.append(self.a_job_setup)
        q(*self.ssm_consts(0, V_C + 6, U))
        q(f"s_add_u32 s{S_EPOCH}, s{S_EPOCH}, 1")
        self.zero_row(0, U)
        rd = {}

        def x_read(i, half):
            def f():
                p.wait(xt[i, 7])
                for s in range(4 * half, 4 * half + 4):
                    r = RAW + 32 * i + 4 * s
                    rd[i, s] = e(f"ds_read_b128 v[{r}:{r+3}], v{V_AS+8+s} offset:{i*16384 if i < 4 else 0}")
            return f
        lag = o.get("x_lag", 9)
        for i in range(5):
            self.fill.append(("t", lambda i=i: cnt["n"] >= min(40, 8 * i + 8 + lag)))
            if i == 4:
                if o.get("job_dq"):
                    self.fill.append(("t", lambda: hasattr(self, "job_tok") and not any(f in self.dq for f in self.job_ld)))
                for s in range(8):
                    q(f"v_add_u32 v{V_AS+8+s}, s{S_J1}, v{V_AS+s}")
            self.fill.append(x_read(i, 0))
            self.fill.append(x_read(i, 1))
            for s in range(8):
                self.fill.append(lambda i=i, s=s: p.wait(rd[i, s]))
                for k in range(4 if (i == 4 or not o.get("dbg_nostats")) else 1):
                    r = RAW + 32 * i + 4 * s + k
                    q(f"v_dot2c_f32_bf16 v{sm}, s{S_SPIN}, v{r}", f"v_dot2c_f32_bf16 v{sq}, v{r}, v{r}")
            if i < 4:
                self.fill.append(lambda i=i: self.issue_stage(i, kind, i, arg))
            if i == 3:
                self.fill.append(lambda: self.issue_stage(4, kind, 4, arg))
        self.pull(o.get("pre_slots", 150))
        while xq:
            x_piece(*xq.pop(0))
            self.pull(o.get("x_gap", 14))
        while self.fill:
            self.dma()
            self.pull(o.get("x_gap", 14))
        self.stamp(2)
        u = V_X + 8
        e(f"v_mov_b32 v{u}, v{sm}"); e(f"v_mov_b32 v{u+1}, v{sq}")
        e(f"v_permlane32_swap_b32 v{sm}, v{u}"); e(f"v_permlane32_swap_b32 v{sq}, v{u+1}")
        e(f"v_add_f32 v{sm}, v{sm}, v{u}"); e(f"v_add_f32 v{sq}, v{sq}, v{u+1}")
        e(f"v_mul_f32 v{sm}, {fx(1/640)}, v{sm}"); e(f"v_mul_f32 v{sq}, {fx(1/640)}, v{sq}")
        e(f"v_fma_f32 v{sq}, -v{sm}, v{sm}, v{sq}")
        e(f"v_max_f32 v{sq}, 0, v{sq}")
        e(f"v_cvt_pk_bf16_f32 v{u}, v{sq}, v{sm}")
        e(f"v_lshlrev_b32 v{sq}, 16, v{u}"); e(f"v_and_b32 v{sm}, s{S_MASK}, v{u}")
        e(f"v_add_f32 v{sq}, {fx(1e-5)}, v{sq}")
        e(f"v_cvt_pk_bf16_f32 v{sq}, v{sq}, v{sq}"); e(f"v_lshlrev_b32 v{sq}, 16, v{sq}")
        e(f"v_sqrt_f32 v{sq}, v{sq}")
        e(f"s_lshl_b32 s{S_T2}, s{S_MT}, 2"); e(f"s_add_u32 s{S_T2}, s{S_T2}, s{S_W}")
        e(f"v_cvt_pk_bf16_f32 v{sq}, v{sq}, v{sq}"); e(f"v_lshlrev_b32 v{sq}, 16, v{sq}")
        e(f"v_rcp_f32 v{u}, v{sq}")
        e(f"s_lshl_b32 s{S_T2}, s{S_T2}, 8"); e(f"s_add_u32 s{S_T2}, s{S_T2}, {STATS_OFF}")
        e(f"v_mul_f32 v{u+2}, -v{sm}, v{u}")
        e(f"v_mov_b32 v{u+1}, v{u}")
        e(f"v_mov_b32 v{u+3}, v{u+2}")
        e(f"s_cmp_eq_u32 s{S_CG}, 0"); e(f"s_cselect_b32 s{S_T2}, s{S_T2}, {OOB}")
        if not self.fused:
            e(f"v_mov_b32 v{V_X+4}, v{u}"); e(f"v_mov_b32 v{V_X+5}, v{u+2}")
            e(f"buffer_store_dwordx2 v[{V_X+4}:{V_X+5}], v{V_X+7}, {srd(SWS)}, s{S_T2} offen{self.wt}")
        for k in range(4 * npre):
            r = RAW + k
            t = V_X + 2 * (k % 2)
            e(f"v_lshlrev_b32 v{t}, 16, v{r}"); e(f"v_and_b32 v{t+1}, s{S_MASK}, v{r}")
            e(f"v_pk_fma_f32 v[{t}:{t+1}], v[{t}:{t+1}], v[{u}:{u+1}], v[{u+2}:{u+3}]")
            e(f"v_cvt_pk_bf16_f32 v{r}, v{t}, v{t+1}")
            e(f"v_accvgpr_write_b32 a{XN+k}, v{r}")
            if k % 4 == 3:
                self.dma()
        done = []
        for k in range(4 * npre, 160, 2):
            t = V_X + 4 * ((k // 2) % 2)
            grp = done
            for i in range(2):
                grp = grp + [f"v_lshlrev_b32 v{t+2*i}, 16, v{RAW+k+i}", f"v_and_b32 v{t+2*i+1}, s{S_MASK}, v{RAW+k+i}"]
            for i in range(2):
                grp.append(f"v_pk_fma_f32 v[{t+2*i}:{t+2*i+1}], v[{t+2*i}:{t+2*i+1}], v[{u}:{u+1}], v[{u+2}:{u+3}]")
            self.norm.append(grp)
            done = [f"v_cvt_pk_bf16_f32 v{RAW+k+i}, v{t+2*i}, v{t+2*i+1}" for i in range(2)]
            done += [f"v_accvgpr_write_b32 a{XN+k+i}, v{RAW+k+i}" for i in range(2)]
        if done:
            self.norm.append(done)
        for s in range(8):
            e(f"v_add_u32 v{V_AS+8+s}, 0x10000, v{V_AS+s}")
        self.stamp(3)

    def zero_row(self, b, z):
        self.q(f"v_mov_b32 v{z}, 0", f"v_mov_b32 v{z+1}, s{S_EPOCH}", f"v_mov_b32 v{z+2}, 0", f"v_mov_b32 v{z+3}, s{S_EPOCH}",
               *self.ex_base(S_T2, b),
               f"buffer_store_dwordx4 v[{z}:{z+3}], v{V_LBO+1}, {srd(SWS)}, s{S_T2} offen sc1")

    def job_setup(self, kind):
        def q(*texts):
            for t in texts:
                self.p.e(t)
        vo = V_JW if kind == "W" else self.vjc
        q(f"v_lshrrev_b32 v{vo}, 3, v{V_LANE}", f"v_mul_u32_u24 v{vo}, 1280, v{vo}",
          f"v_and_b32 v{vo+1}, 7, v{V_LANE}", f"v_lshl_add_u32 v{vo}, v{vo+1}, 4, v{vo}")
        if kind == "W":
            for k in range(1, 4):
                q(f"v_add_u32 v{vo+k}, {k*(8*1280 - 1024)}, v{vo}")
            q(*self.mk_srd(SA1, K_WD, FF_BYTES),
              f"s_lshl_b32 s{S_JOB}, s{S_SB}, 4", f"s_add_u32 s{S_JOB}, s{S_JOB}, s{S_MT}")
        else:
            q(f"v_add_u32 v{vo+1}, {8*1280 - 1024}, v{vo}")
            q(*self.mk_srd(SA1, K_CRE, SQ_BYTES), *self.mk_srd(SA2, K_CIM, SQ_BYTES),
              f"s_mov_b32 s{S_JOB}, s{S_MT}")
        q(f"s_lshl_b32 s{S_JOB}, s{S_JOB}, 2", f"s_add_u32 s{S_JOB}, s{S_JOB}, s{S_W}")

    def job_index(self, kind, i):
        e = self.p.e
        e(f"s_add_u32 s{S_J2}, s{S_JOB}, {64 * i + (292 if self.fused else 0)}")
        e(f"s_mul_hi_u32 s{S_T1}, s{S_J2}, 0x1999999a")
        e(f"s_mul_i32 s{S_R}, s{S_T1}, 10")
        e(f"s_sub_u32 s{S_R}, s{S_J2}, s{S_R}")

    def job_source(self, kind, i):
        e = self.p.e
        self.job_index(kind, i)
        e(f"s_mul_i32 s{S_T0}, s{S_T1}, {(32 if kind == 'W' else 16) * 1280}")
        e(f"s_lshl_b32 s{S_XB}, s{S_R}, 7")
        e(f"s_add_u32 s{S_T0}, s{S_T0}, s{S_XB}")
        e(f"s_cmp_lt_u32 s{S_J2}, {540 if kind == 'W' else 400}")
        e(f"s_cselect_b32 s{S_T0}, s{S_T0}, {OOB}")

    def w_job(self, R):
        p, q = self.p, self.q
        st = {}
        D = R + 4
        q(f"v_lshrrev_b32 v{R}, 5, v{V_LANE}", f"v_lshlrev_b32 v{R}, 4, v{R}",
          f"v_bfe_u32 v{R+1}, v{V_LANE}, 2, 3", f"v_add_u32 v{R}, v{R}, v{R+1}",
          f"v_lshlrev_b32 v{R}, 7, v{R}", f"v_and_b32 v{R+1}, 3, v{V_LANE}",
          f"v_lshl_add_u32 v{R}, v{R+1}, 3, v{R}", f"v_add_u32 v{R}, s{S_J1}, v{R}")
        ad, cb = S_JOB, S_R
        q(f"s_lshl_b32 s{cb}, s{cb}, 2", f"s_mul_hi_u32 s{ad}, s{cb}, 0x33333334", f"s_mul_i32 s{S_XB}, s{ad}, 5",
          f"s_sub_u32 s{cb}, s{cb}, s{S_XB}", f"s_mul_i32 s{ad}, s{ad}, 94", f"s_add_u32 s{ad}, s{ad}, s{S_T1}",
          f"s_mul_i32 s{ad}, s{ad}, 5", f"s_add_u32 s{ad}, s{ad}, s{cb}", f"s_lshl_b32 s{ad}, s{ad}, 10",
          f"s_add_u32 s{ad}, s{ad}, {W2F_OFF}",
          [f"s_cmp_lt_u32 s{S_J2}, 540", f"s_cselect_b32 s{ad}, s{ad}, {OOB}"])
        self.fill.append(("t", lambda: 100 in self.stage_tok and p.vdone >= self.stage_tok[100][1]))
        for f in range(4):
            def rd(f=f):
                p.wait(self.stage_tok[100])
                p.e(f"ds_read_b64_tr_b16 v[{D+4*f}:{D+4*f+1}], v{R} offset:{32*f}")
                st[f] = p.e(f"ds_read_b64_tr_b16 v[{D+4*f+2}:{D+4*f+3}], v{R} offset:{32*f + 1024}")
            rd.cost = 2
            self.fill.append(rd)
        self.lag(5)
        for f in range(4):
            self.fill.append(lambda f=f: p.wait(st[f]))
            self.fill.append(lambda f=f: setattr(self, "job_store", p.e(
                f"buffer_store_dwordx4 v[{D+4*f}:{D+4*f+3}], v{V_TW+2}, {srd(SWS)}, s{ad} offen{self.wt}")))
            if f < 3:
                q([f"s_cmp_eq_u32 s{cb}, {4 - f}", f"s_cselect_b32 s{S_XB}, {93*5120}, 0"],
                  f"s_add_u32 s{ad}, s{ad}, s{S_XB}", f"s_add_u32 s{ad}, s{ad}, 1024")

    def w2f_addr(self, dst, b16, kstep):
        e = self.p.e
        e(f"s_mul_hi_u32 s{S_D1}, s{b16}, 0x33333334")
        e(f"s_mul_i32 s{S_D2}, s{S_D1}, 5")
        e(f"s_sub_u32 s{S_D2}, s{b16}, s{S_D2}")
        e(f"s_mul_i32 s{S_D1}, s{S_D1}, 94")
        e(f"s_add_u32 s{S_D1}, s{S_D1}, s{kstep}")
        e(f"s_mul_i32 s{S_D1}, s{S_D1}, 5")
        e(f"s_add_u32 s{S_D1}, s{S_D1}, s{S_D2}")
        e(f"s_lshl_b32 s{dst}, s{S_D1}, 10")
        e(f"s_add_u32 s{dst}, s{dst}, {W2F_OFF}")

    def job_finish(self, kind, rounds, R):
        p, e = self.p, self.p.e
        while self.dq:
            self.dma()
        if kind == "W":
            e(f"v_lshrrev_b32 v{R}, 5, v{V_LANE}"); e(f"v_lshlrev_b32 v{R}, 4, v{R}")
            e(f"v_bfe_u32 v{R+1}, v{V_LANE}, 2, 3"); e(f"v_add_u32 v{R}, v{R}, v{R+1}")
            e(f"v_lshlrev_b32 v{R}, 7, v{R}"); e(f"v_and_b32 v{R+1}, 3, v{V_LANE}")
            e(f"v_lshl_add_u32 v{R}, v{R+1}, 3, v{R}")
        else:
            e(f"v_and_b32 v{R}, 15, v{V_LANE}"); e(f"v_lshlrev_b32 v{R}, 7, v{R}")
            e(f"v_lshrrev_b32 v{R+1}, 4, v{V_LANE}"); e(f"v_lshl_add_u32 v{R}, v{R+1}, 3, v{R}")
            e(f"s_mov_b32 s{S_KS}, 0x05040100"); e(f"s_mov_b32 s{S_KS+1}, 0x07060302")
        e(f"v_add_u32 v{R}, s{S_W4K}, v{R}")
        e(f"v_add_u32 v{R+1}, 0x10000, v{R}")
        for i in range(rounds):
            n = 15 + i
            slot = n % 8
            va, off = R + slot // 4, (slot % 4) * 16384
            D = R + 4 + 32 * (i % 2)
            p.wait(self.stage_tok[n])
            tk = []
            for f in range(4):
                if kind == "W":
                    e(f"ds_read_b64_tr_b16 v[{D+4*f}:{D+4*f+1}], v{va} offset:{off + 32*f}")
                    tk.append(e(f"ds_read_b64_tr_b16 v[{D+4*f+2}:{D+4*f+3}], v{va} offset:{off + 32*f + 1024}"))
                else:
                    e(f"ds_read_b64 v[{D+16+4*f}:{D+16+4*f+1}], v{va} offset:{off + 32*f}")
                    tk.append(e(f"ds_read_b64 v[{D+16+4*f+2}:{D+16+4*f+3}], v{va} offset:{off + 32*f + 2048}"))
            self.job_index(kind, i)
            e(f"s_lshl_b32 s{S_R}, s{S_R}, 2")
            if kind == "C":
                e(f"s_add_u32 s{S_R}, s{S_R}, 54")
                self.w2f_addr(S_T0, S_T1, S_R)
                e(f"s_cmp_lt_u32 s{S_J2}, 400")
                e(f"s_cselect_b32 s{S_T0}, s{S_T0}, {OOB}")
            for f in range(4):
                if kind == "W":
                    self.w2f_addr(S_T0, S_KD2, S_T1)
                    e(f"s_cmp_lt_u32 s{S_J2}, 540")
                    e(f"s_cselect_b32 s{S_T0}, s{S_T0}, {OOB}")
                    e(f"s_add_u32 s{S_KD2}, s{S_KD2}, 1")
                    p.wait(tk[f])
                else:
                    p.wait(tk[f])
                    re, im = D + 16 + 4 * f, D + 16 + 4 * f + 2
                    for k in range(2):
                        e(f"v_perm_b32 v{D+4*f+2*k}, v{im+k}, v{re+k}, s{S_KS}")
                        e(f"v_perm_b32 v{D+4*f+2*k+1}, v{im+k}, v{re+k}, s{S_KS+1}")
                e(f"buffer_store_dwordx4 v[{D+4*f}:{D+4*f+3}], v{V_TW+2}, {srd(SWS)}, s{S_T0} offen{self.wt}")
                if kind == "C" and f < 3:
                    e(f"s_add_u32 s{S_T0}, s{S_T0}, 5120")

    def w_prefetch(self):
        e = self.p.e
        t = V_PRE + 2
        e(f"v_lshrrev_b32 v{t}, 1, v{V_LANE}")
        e(f"v_mul_u32_u24 v{t}, 3456, v{t}")
        e(f"v_and_b32 v{t+1}, 1, v{V_LANE}")
        e(f"v_lshl_add_u32 v{t}, v{t+1}, 7, v{t}")
        e(f"s_and_b32 s{S_T2}, s{S_W}, 1")
        e(f"s_mul_i32 s{S_T2}, s{S_T2}, {-12*3456 & 0xffffffff:#x}")
        e(f"s_mul_i32 s{S_T3}, s{S_MT}, {40*3456}")
        e(f"s_add_u32 s{S_T2}, s{S_T2}, s{S_T3}")
        e(f"s_add_u32 s{S_T2}, s{S_T2}, s{S_D1}")
        e("s_mov_b32 exec_hi, 0xff")
        e(f"buffer_load_dword v{t+1}, v{t}, {srd(SF)}, s{S_T2} offen")
        e("s_mov_b64 exec, -1")

    def w_prefetch_early(self):
        e = self.p.e
        b = S_M2
        e(f"s_cmp_ge_u32 s{S_W}, 2")
        e(f"s_cselect_b32 s{b}, s{K_WU}, s{K_WG}"); e(f"s_cselect_b32 s{b+1}, s{K_WU+1}, s{K_WG+1}")
        e(f"s_and_b32 s{S_T2}, s{S_W}, 1")
        e(f"s_lshl_b32 s{S_T3}, s{S_MT}, 1")
        e(f"s_add_u32 s{S_T2}, s{S_T2}, s{S_T3}")
        e(f"s_mul_i32 s{S_T2}, s{S_T2}, {20*3456}")
        e(f"s_min_u32 s{S_T3}, s{S_D1}, 25")
        e(f"s_lshl_b32 s{S_T3}, s{S_T3}, 7")
        e(f"s_add_u32 s{S_T2}, s{S_T2}, s{S_T3}")
        e(f"s_add_u32 s{b}, s{b}, s{S_T2}"); e(f"s_addc_u32 s{b+1}, s{b+1}, 0")
        if self.opt["wpre"] == 2:
            t = V_PRE + 2
            e(f"v_lshrrev_b32 v{t}, 1, v{V_LANE}")
            e(f"v_mul_u32_u24 v{t}, 3456, v{t}")
            e(f"v_and_b32 v{t+1}, 1, v{V_LANE}")
            e(f"v_lshl_add_u32 v{t}, v{t+1}, 7, v{t}")
            e("s_mov_b32 exec_hi, 0xff")
            e(f"global_load_dword v{t+1}, v{t}, s[{b}:{b+1}]")
            e("s_mov_b64 exec, -1")
        else:
            for k in range(self.opt.get("wpre_n", 20)):
                e(f"s_load_dword s{S_SPIN}, s[{b}:{b+1}], {3456*(k % 20) + 128*(k // 20)}")

    def warm_k2(self):
        if not self.opt.get("warm_k2", 1):
            return
        e = self.p.e
        e(f"s_getpc_b64 s[{S_T0}:{S_T1}]")
        self.p.label("K1_PC2")
        e(f"s_add_u32 s{S_T0}, s{S_T0}, gemm2_kernel-K1_PC2")
        e(f"s_addc_u32 s{S_T1}, s{S_T1}, 0")
        e(f"s_lshr_b32 s{S_T2}, s2, 3")
        e(f"s_lshl_b32 s{S_T2}, s{S_T2}, 2")
        e(f"s_add_u32 s{S_T2}, s{S_T2}, s{S_W}")
        e(f"s_lshl_b32 s{S_T2}, s{S_T2}, 7")
        e(f"s_min_u32 s{S_T3}, s{S_T2}, TEXT_END-gemm2_kernel-4")
        e(f"s_min_u32 s{S_T2}, s{S_T2}, 1276")
        e(f"v_mov_b32 v{V_PRE}, s{S_T3}")
        e(f"v_mov_b32 v{V_PRE+1}, s{S_T2}")
        e("s_mov_b64 exec, 1")
        e(f"global_load_dword v{V_PRE+2}, v{V_PRE}, s[{S_T0}:{S_T1}]")
        e(f"global_load_dword v{V_PRE+3}, v{V_PRE+1}, s[{K_DSK}:{K_DSK+1}]")
        e("s_mov_b64 exec, -1")

    def finish(self, k):
        p, e = self.p, self.p.e
        e(f"s_lshl_b32 s{S_T2}, s{S_CG}, 7")
        e(f"s_add_u32 s{S_T2}, s{S_T2}, {EPOCH_OFF}")
        e(f"s_cmp_eq_u32 s{S_MT}, 15")
        e(f"s_cselect_b32 s{S_T2}, s{S_T2}, {OOB}")
        e(f"v_mov_b32 v0, s{S_EPOCH}")
        e(f"buffer_store_dword v0, off, {srd(SWS)}, s{S_T2} sc1")
        self.spin_out = True
        self.stamp_out(k)
        e("s_endpgm")

    def snapshot(self):
        p = self.p
        return (p.vq, p.vdone, p.lq, p.ldone, dict(self.stage_tok), list(self.pre_barrier), self.nbar, self.mf,
                set(self.seen), list(self.fill), list(self.dq), list(self.norm), self.vgap)

    def restore(self, s):
        p = self.p
        (p.vq, p.vdone, p.lq, p.ldone, st, pb, self.nbar, self.mf, seen, fill, dq, norm, self.vgap) = s
        self.stage_tok, self.pre_barrier, self.seen = dict(st), list(pb), set(seen)
        self.fill, self.dq, self.norm = list(fill), list(dq), list(norm)

    def run(self, stages, frags, hooks, wjob=False):
        plan = {n: (lambda n=n: self.issue_stage(n + 6, *stages[n + 6])) for n in range(len(stages) - 6)}
        if stages[5][0] == "F" and self.opt.get("wpre", 1) == 1:
            self.dq.append(self.w_prefetch)
        self.issue_stage(5, *stages[5])
        if self.fused and self.opt.get("job_mode") == "dma":
            self.dq.extend(self.job_ld)
        if wjob and not self.fused:
            self.job_setup("W")
            self.issue_stage(100, "W", 0, 0)
        self.gemm(frags, plan, hooks)
        return plan

    def build(self):
        p, e, o = self.p, self.p.e, self.opt
        self.prologue()
        e(f"s_cmp_eq_u32 s{S_TYPE}, 2")
        e("s_cbranch_scc1 K1_TYPE_C")
        e(f"s_cmp_eq_u32 s{S_TYPE}, 1")
        e("s_cbranch_scc1 K1_TYPE_B")
        snap = self.snapshot()
        g1, g2 = o.get("lb_issue", 80 + 80), o.get("lb_check", 80 + 100)
        head = [("S", i, 0) for i in range(5)] + [("F", i, S_D1) for i in range(10)]
        for typ in "AB":
            if typ == "B":
                p.label("K1_TYPE_B")
                self.restore(snap)
            m0 = self.mf

            def start_ssm(typ=typ, m0=m0):
                self.stamp(4)
                if typ == "B":
                    self.job_setup("C")
                self.ssm_reduce(0, ACC_S, 188)
                if typ == "A":
                    self.w_job(188)
                self.ssm_finish(0, ACC_S, 188, lambda: self.mf - m0 >= g1, lambda: self.mf - m0 >= g2, typ)

            def at_d2():
                self.stamp(5)
                self.ffn_epilogue(ACC_D1, S_KD1)
            frags = self.s_frags(0, ACC_S) + self.d_frags(5, ACC_D1)
            if typ == "A":
                self.run(head + [("F", i, S_D2) for i in range(10)], frags + self.d_frags(15, ACC_D2),
                         {81: start_ssm, 240: at_d2}, True)
                self.stamp(6)
                self.flush()
                self.warm_k2()
                self.ffn_tail(ACC_D2, S_KD2)
                self.stamp(7)
            else:
                stages = head + [("C", i, 0) for i in range(7)]
                self.run(stages[:21], frags, {81: start_ssm})
                self.stamp(5)
                self.mf += 1000
                self.barrier()
                self.issue_stage(21, *stages[21])
                while self.dq:
                    self.dma()
                self.flush()
                self.ffn_tail(ACC_D1, S_KD1)
                self.stamp(6)
                self.job_finish("C", 7, ACC_D2 - 4)
                self.stamp(7)
            self.finish(8)
        p.label("K1_TYPE_C")
        self.restore(snap)
        stages = [("S", i % 5, i // 5) for i in range(15)]
        frags = self.s_frags(0, 16) + self.s_frags(5, 48) + self.s_frags(10, 80)
        m0 = self.mf

        def c1():
            self.stamp(4)
            self.ssm_reduce(0, 16, 152)
            for b in (1, 2):
                self.q(*self.ssm_consts(b, V_C + 12 * b + 6, 112))
                self.zero_row(b, 112)

        def c2():
            self.stamp(5)
            self.ssm_reduce(1, 48, 152)
            self.ssm_finish(0, 16, 112, None, lambda: self.mf - m0 >= 215, "C0")
        self.run(stages, frags, {81: c1, 161: c2})
        self.stamp(6)
        self.mf += 1000
        self.flush()
        self.ssm_reduce(2, 80, 152)
        self.ssm_finish(1, 48, 112, None, None, "C1")
        self.flush()
        self.stamp(7)
        self.ssm_finish(2, 80, 112, None, None, "C2")
        self.flush()
        self.finish(8)
        self.slow_paths()
        p.label("K1_END")
        e("s_endpgm")
        p.fix_hazards()
        return p


K1_DESC = """
.amdhsa_kernel proj_kernel
  .amdhsa_next_free_vgpr 512
  .amdhsa_next_free_sgpr 102
  .amdhsa_accum_offset 256
  .amdhsa_group_segment_fixed_size 0
  .amdhsa_kernarg_size 128
  .amdhsa_user_sgpr_count 2
  .amdhsa_user_sgpr_kernarg_segment_ptr 1
  .amdhsa_system_sgpr_workgroup_id_x 1
  .amdhsa_float_denorm_mode_32 3
.end_amdhsa_kernel
"""
```

```python
from k1 import *

NAME = "parallel_sum__ssm_conv_s5__glu_gated_geglu__prompt_kernel"
S_WB = 28
S_D2X, S_R2 = 100, 101
S_A, S_OOB, S_XO, S_OO, S_PO, S_PI, S_N, S_A0, S_TG, S_DN, S_DIV = 68, 69, 70, 71, 72, 73, 74, 75, 76, 80, 81
S_A1 = 82
SD, SO = SS, SF
V_L16, V_L16B, V_WA, V_PK = 3, 4, 5, 13
ACC1, ACC2, RING = 16, 96, 176
V_OA, V_LA, V_T = 240, 245, 250
WMAP = [192 + 4 * k for k in range(16)] + [4 * k for k in range(40)] + [160 + 4 * k for k in range(4)]
SLOT5 = 176
S_TB, S_WB0 = 24, 27
ORDERS = {"k0": [0, 1, 4, 5, 8, 9, 2, 3, 6, 7, 10, 11], "w0": [1, 2, 7, 8, 9, 10, 11, 0, 3, 4, 5, 6],
          "nat": list(range(12)), "w3": [0, 1, 2, 5, 6, 7, 8, 3, 4, 9, 10, 11]}


def nib(name, half):
    return sum(v << (4 * k) for k, v in enumerate(ORDERS[name][8 * half:8 * half + 8]))


MIXED = False


def rel(dst, i):
    if MIXED:
        return f"s_bfe_u32 s{dst}, s{S_TB + i // 4}, {(8 << 16) | (8 * (i % 4)):#x}"
    return f"s_bfe_u32 s{dst}, s{S_TB + i // 8}, {(4 << 16) | (4 * (i % 8)):#x}"


def mixed_lists():
    out = {}
    for kh in range(2):
        ffn = list(range(27 * kh, 27 * kh + 27))
        early = [k for k in ffn if k % 4 < 2]
        late = [k for k in ffn if k % 4 >= 2] + list(range(54 + 20 * kh, 74 + 20 * kh))
        assert len(early) == 14
        rest = early[12:] + late
        for w in range(4):
            n = 9 if w < 3 else 8
            out[kh, w] = early[3 * w:3 * w + 3] + rest[:n] + ([0] if w == 3 else [])
            rest = rest[n:]
        assert not rest
    return out


def slot(g, f):
    k = g % 5
    return f"v[{RING+16*k+4*f}:{RING+16*k+4*f+3}]" if k < 4 else f"a[{SLOT5+4*f}:{SLOT5+3+4*f}]"


STEPS_MIXED = [(0, i) for i in range(3)] + [(1, i) for i in range(3)] + [(0, i) for i in range(3, 12)] + \
              [(1, i) for i in range(3, 12)]


class Fused(K1):
    def __init__(self, opt):
        super().__init__(opt)
        self.name = NAME
        self.fused = True
        self.polls = []
        self.heads = []
        self.JA = RAW + 140

    def stats_to_lds(self):
        e = self.p.e
        e(f"ds_write2_b32 v0, v{V_X+8}, v{V_X+10} offset1:1")
        e(f"v_add_u32 v0, 0x1000, v{V_TW+2}")
        T = {"DSD": 206, "SD": 60}.get(self.opt.get("order"), V_X) if not getattr(self, "is_c", False) else V_X
        for x in (f"v_mov_b32 v{T+4}, 0", f"v_min_u32 v{T+5}, 6, v{V_SEG}", f"v_sub_u32 v{T+5}, v{T+5}, v{V_SEG}",
                  f"v_lshl_add_u32 v{T+5}, v{T+5}, 3, v{V_XR}", f"ds_write2_b32 v{T+5}, v{T+4}, v{T+4} offset1:1"):
            e(x)

    def flag_store(self, tmp, base, hi, lo):
        t = S_T1
        return [[f"s_lshl_b32 s{t}, s{hi}, 4", f"s_add_u32 s{t}, s{t}, s{lo}", f"s_lshl_b32 s{t}, s{t}, 7",
                 f"s_add_u32 s{t}, s{t}, {base}", f"s_cmp_eq_u32 s{S_W}, 0", f"s_cselect_b32 s{t}, s{t}, {OOB}"],
                f"v_mov_b32 v{tmp}, s{S_EPOCH}",
                ["s_mov_b64 exec, 1", f"buffer_store_dword v{tmp}, off, {srd(SWS)}, s{t} sc1", "s_mov_b64 exec, -1"]]

    def flag_later(self, tmp, delay, tok, base, hi, lo):
        def raise_flag():
            for x in self.flag_store(tmp, base, hi, lo):
                for y in (x if isinstance(x, list) else [x]):
                    self.p.e(y)

        def arm():
            self.pre_barrier.append(tok())
            self.on_barrier.append(raise_flag)
        if delay is None:
            self.lazy.append((tok(), raise_flag))
        else:
            self.timers.append((self.mf + delay, arm))

    def a_job_setup(self, tag=""):
        e, o = self.p.e, self.opt
        u, t, t2, ct = S_R, S_T2, S_T3, S_T1
        A = self.JA
        e(f"s_lshl_b32 s{u}, s{S_MT}, 2"); e(f"s_add_u32 s{u}, s{u}, s{S_W}")
        e(f"s_and_b32 s{ct}, s{S_CG}, 7")
        if MIXED:
            e(f"s_mov_b32 s{t}, 27"); e(f"s_mov_b32 s{S_JOB}, 52")
            e(f"s_cmp_ge_u32 s{S_CG}, 8"); e(f"s_cselect_b32 s{t2}, 27, 0")
        else:
            e(f"s_cmp_ge_u32 s{S_CG}, 8"); e(f"s_cselect_b32 s{t}, 7, 64"); e(f"s_cselect_b32 s{t2}, 47, 0")
            e(f"s_cselect_b32 s{S_JOB}, 57, 47")
        e(f"s_cmp_lt_u32 s{u}, s{S_JOB}"); e(f"s_cselect_b32 s{S_D2X}, 0, {OOB}")
        e(f"s_cmp_ge_u32 s{u}, s{t}"); e(f"s_cselect_b32 s{S_J2}, 1, 0")
        e(f"s_cbranch_scc1 JOB_C{tag}")
        for x in self.mk_srd(SA1, K_WD, FF_BYTES) + self.mk_srd(SA2, K_WD, FF_BYTES):
            e(x)
        e(f"s_add_u32 s{u}, s{u}, s{t2}")
        e(f"s_mul_i32 s{S_R2}, s{u}, {32*1280}"); e(f"s_mul_i32 s{t}, s{ct}, 160")
        e(f"s_add_u32 s{S_R2}, s{S_R2}, s{t}")
        e(f"s_mul_i32 s{S_JOB}, s{ct}, 94"); e(f"s_add_u32 s{S_JOB}, s{S_JOB}, s{u}")
        e(f"s_mul_i32 s{S_JOB}, s{S_JOB}, 5120")
        e(f"s_mov_b32 s{t}, 0xcccd")
        for q in range(5):
            e(f"v_add_u32 v{A+5}, {64*q}, v{V_LANE}"); e(f"v_mul_lo_u32 v{A+q}, v{A+5}, s{t}")
            e(f"v_lshrrev_b32 v{A+q}, 19, v{A+q}"); e(f"v_mul_u32_u24 v{A+q}, 1120, v{A+q}")
            e(f"v_lshl_add_u32 v{A+q}, v{A+5}, 4, v{A+q}")
        e(f"s_branch JOB_LD{tag}")
        self.p.label(f"JOB_C{tag}")
        for x in self.mk_srd(SA1, K_CRE, SQ_BYTES) + self.mk_srd(SA2, K_CIM, SQ_BYTES):
            e(x)
        if MIXED:
            e(f"s_sub_u32 s{u}, s{u}, 27")
            e(f"s_mul_hi_u32 s{t}, s{u}, 0x33333334"); e(f"s_mul_i32 s{t2}, s{t}, 5"); e(f"s_sub_u32 s{u}, s{u}, s{t2}")
            e(f"s_lshr_b32 s{t2}, s{S_CG}, 3"); e(f"s_mul_i32 s{t2}, s{t2}, 5"); e(f"s_add_u32 s{u}, s{u}, s{t2}")
        else:
            e(f"s_sub_u32 s{u}, s{u}, 7")
            e(f"s_mul_hi_u32 s{t}, s{u}, 0x1999999a"); e(f"s_mul_i32 s{t2}, s{t}, 10"); e(f"s_sub_u32 s{u}, s{u}, s{t2}")
        e(f"s_mul_i32 s{t2}, s{ct}, 5"); e(f"s_add_u32 s{t2}, s{t2}, s{t}")
        e(f"s_mul_i32 s{S_R2}, s{t2}, {16*1280}"); e(f"s_lshl_b32 s{t2}, s{u}, 7")
        e(f"s_add_u32 s{S_R2}, s{S_R2}, s{t2}")
        e(f"s_mul_i32 s{S_JOB}, s{ct}, 94"); e(f"s_lshl_b32 s{u}, s{u}, 2"); e(f"s_add_u32 s{S_JOB}, s{S_JOB}, s{u}")
        e(f"s_add_u32 s{S_JOB}, s{S_JOB}, 54"); e(f"s_mul_i32 s{S_JOB}, s{S_JOB}, 5")
        e(f"s_add_u32 s{S_JOB}, s{S_JOB}, s{t}"); e(f"s_lshl_b32 s{S_JOB}, s{S_JOB}, 10")
        e(f"v_lshrrev_b32 v{A}, 3, v{V_LANE}"); e(f"v_mul_u32_u24 v{A}, 1280, v{A}")
        e(f"v_and_b32 v{A+1}, 7, v{V_LANE}"); e(f"v_lshl_add_u32 v{A}, v{A+1}, 4, v{A}")
        e(f"v_add_u32 v{A+1}, {8*1280}, v{A}"); e(f"v_mov_b32 v{A+2}, v{A}"); e(f"v_mov_b32 v{A+3}, v{A+1}")
        e(f"v_mov_b32 v{A+4}, {OOB}")
        self.p.label(f"JOB_LD{tag}")
        e(f"s_add_u32 s{S_JOB}, s{S_JOB}, {W2F_OFF}")
        e(f"s_or_b32 s{S_JOB}, s{S_JOB}, s{S_D2X}"); e(f"s_or_b32 s{S_R}, s{S_R2}, s{S_D2X}")
        if o.get("job_mode") == "dma":
            def piece(q):
                e(f"s_add_u32 m0, s{S_J1}, {1024*q}")
                self.job_tok = e(f"buffer_load_dwordx4 v{A+q}, {srd(SA1 if q < 2 else SA2)}, s{S_R} offen{o.get('ntjob', '')} lds")
            self.job_ld = [lambda q=q: piece(q) for q in range(5)]
            return
        self.job_ld = [lambda q=q: setattr(self, "job_tok", e(
            f"buffer_load_dwordx4 a[{192+4*q}:{195+4*q}], v{A+q}, {srd(SA1 if q < 2 else SA2)}, s{S_R} offen"))
            for q in range(5)]
        if o.get("job_dq"):
            self.dq.extend(self.job_ld)
        elif not o.get("job_late"):
            for f in self.job_ld:
                f()

    def a_job(self, is_c, m0, R, L):
        p, q = self.p, self.q
        st = {}
        D = R + 2 if not self.opt.get("job_spread") else self.JD

        def at(k):
            self.fill.append(("t", lambda: self.mf - m0 >= k + self.opt.get("fork_at", 65)))
        if is_c:
            q(f"v_and_b32 v{R}, 15, v{V_LANE}", f"v_lshlrev_b32 v{R}, 7, v{R}",
              f"v_lshrrev_b32 v{R+1}, 4, v{V_LANE}", f"v_lshl_add_u32 v{R}, v{R+1}, 3, v{R}")
        else:
            q(f"v_lshrrev_b32 v{R}, 5, v{V_LANE}", f"v_lshlrev_b32 v{R}, 4, v{R}",
              f"v_bfe_u32 v{R+1}, v{V_LANE}, 2, 3", f"v_add_u32 v{R}, v{R}, v{R+1}",
              f"v_mul_u32_u24 v{R}, 160, v{R}", f"v_and_b32 v{R+1}, 3, v{V_LANE}",
              f"v_lshl_add_u32 v{R}, v{R+1}, 3, v{R}")
        q(f"v_add_u32 v{R}, s{S_J1}, v{R}", f"v_add_u32 v{R+1}, s{S_J1}, v{V_TW+2}")
        at(2)
        dma = self.opt.get("job_mode") == "dma"
        if dma:
            st["w"] = self.job_tok
        else:
            self.fill.append(lambda: p.wait(self.job_tok))
        for f in range(0 if dma else 5):
            at(2 + f // 2)
            self.fill.append(lambda f=f: st.__setitem__("w", p.e(
                f"ds_write_b128 v{R+1}, a[{192+4*f}:{195+4*f}] offset:{1024*f}")))
        land = [(L if is_c else D) + 4 * f for f in range(5)]
        for f in range(5):
            at((3 if dma else 7) + f // 2)

            def rd(f=f):
                p.wait(st["w"])
                op, o2 = ("ds_read_b64", 2048) if is_c else ("ds_read_b64_tr_b16", 1280)
                p.e(f"{op} v[{land[f]}:{land[f]+1}], v{R} offset:{32*f}")
                st[f] = p.e(f"{op} v[{land[f]+2}:{land[f]+3}], v{R} offset:{32*f + o2}")
            rd.cost = 2
            self.fill.append(rd)
        if is_c:
            q(f"s_mov_b32 s{S_T2}, 0x05040100", f"s_mov_b32 s{S_T3}, 0x07060302")
        at(8 if dma else 12)
        self.fill.append(lambda: p.wait(st[4]))
        for f in range(5):
            if is_c and f < 4:
                re, im = land[f], land[f] + 2
                for k in range(2):
                    q(f"v_perm_b32 v{D+4*f+2*k}, v{im+k}, v{re+k}, s{S_T2}",
                      f"v_perm_b32 v{D+4*f+2*k+1}, v{im+k}, v{re+k}, s{S_T3}")
            if self.opt.get("job_spread"):
                continue
            at((10 if dma else 14) + 2 * f)
            self.fill.append(lambda f=f: setattr(self, "job_store", p.e(
                f"buffer_store_dwordx4 v[{D+4*f}:{D+4*f+3}], v{V_TW+2}, {srd(SWS)}, s{S_JOB} offen{self.wt}")))
            if f < 4:
                q(f"s_add_u32 s{S_JOB}, s{S_JOB}, {(5120 if f < 3 else OOB) if is_c else 1024}")
        if self.opt.get("job_spread"):
            q(f"s_mov_b32 s{S_R}, {5120 if is_c else 1024}", f"s_mov_b32 s{S_XB}, {OOB if is_c else 1024}")

    def job_stores(self, D, then):
        e, n = self.p.e, self.opt["job_spread"]

        def one(f):
            self.job_store = e(f"buffer_store_dwordx4 v[{D+4*f}:{D+4*f+3}], v{V_TW+2}, {srd(SWS)}, s{S_JOB} offen{self.wt}")
            if f < 4:
                e(f"s_add_u32 s{S_JOB}, s{S_JOB}, s{S_R if f < 3 else S_XB}")
            else:
                then()
        for f in range(5):
            self.timers.append((self.mf + 2 + n * f, lambda f=f: one(f)))

    def fork_job(self, tag, m0, R, L):
        e, fa = self.p.e, self.opt.get("fork_at", 65)
        n = 20 if self.opt.get("job_mode") == "dma" else 24
        if self.opt.get("job_spread"):
            n = 15
        self.fork = (fa, fa + n, lambda: (e(f"s_cmp_eq_u32 s{S_J2}, 1"), e(f"s_cbranch_scc1 FORK_ALT_{tag}")),
                     lambda: self.a_job(False, m0, R, L), lambda: self.a_job(True, m0, R, L), tag)
        return fa + n

    def jf_load(self, R):
        e = self.p.e
        e(f"s_lshl_b32 s{S_WB+1}, s{S_CG}, 11")
        e(f"s_add_u32 s{S_WB+1}, s{S_WB+1}, {JF_OFF}")
        e(f"v_and_b32 v{R+1}, 15, v{V_LANE}")
        e(f"v_lshlrev_b32 v{R+1}, 7, v{R+1}")
        self.jf_tok = self.flag_load(R)

    def flag_load(self, R):
        e = self.p.e
        e(f"v_mov_b32 v{R}, s{S_EPOCH}")
        e("s_mov_b64 exec, 0xffff")
        t = e(f"buffer_load_dword v{R}, v{R+1}, {srd(SWS)}, s{S_WB+1} offen sc1")
        e("s_mov_b64 exec, -1")
        return t

    def all_equal(self, R, n, label):
        e = self.p.e
        e(f"v_xor_b32 v{R}, s{S_EPOCH}, v{R}")
        for k in range(1, n):
            e(f"v_bitop3_b32 v{R}, v{R}, v{R+k}, s{S_EPOCH} bitop3:0xf6")
        e(f"v_cmp_ne_u32 vcc, 0, v{R}")
        e(f"s_cbranch_vccnz {label}")

    def jf_check(self, R, tag, first, per):
        p, e = self.p, self.p.e
        e(f"s_mov_b32 s{S_WB+2}, 0")
        p.wait(self.jf_tok)
        e(f"v_cmp_ne_u32 vcc, s{S_EPOCH}, v{R}")
        e(f"s_cbranch_vccnz JF_SLOW_{tag}")
        p.label(f"JF_OK_{tag}")
        self.polls.append((tag, R))
        e(f"s_lshr_b32 s{S_WB}, s{S_CG}, 3")
        e(f"s_mul_i32 s{S_WB}, s{S_WB}, 47")
        e(f"s_mul_i32 s{S_WB+1}, s{S_W}, 12")
        e(f"s_add_u32 s{S_WB+3}, s{S_WB}, s{S_WB+1}")
        if MIXED:
            e(f"s_mov_b32 s{S_WB+3}, 0")
        e(f"s_and_b32 s{S_WB}, s{S_CG}, 7")
        e(f"s_mul_i32 s{S_WB}, s{S_WB}, 94")
        e(f"s_add_u32 s{S_WB}, s{S_WB}, s{S_WB+3}")
        e(f"s_mul_i32 s{S_WB}, s{S_WB}, 5120")
        e(f"s_add_u32 s{S_WB0}, s{S_WB}, {W2F_OFF}")
        if MIXED:
            L = mixed_lists()
            e(f"s_lshr_b32 s{S_WB+1}, s{S_CG}, 3"); e(f"s_lshl_b32 s{S_WB+1}, s{S_WB+1}, 2")
            e(f"s_add_u32 s{S_WB+1}, s{S_WB+1}, s{S_W}")
            for c in range(8):
                words = [sum(v << (8 * k) for k, v in enumerate(L[c // 4, c % 4][4 * h:4 * h + 4])) for h in range(3)]
                if c:
                    e(f"s_cmp_eq_u32 s{S_WB+1}, {c}")
                for h in range(3):
                    e(f"s_cselect_b32 s{S_TB+h}, {words[h]:#x}, s{S_TB+h}" if c else f"s_mov_b32 s{S_TB+h}, {words[h]:#x}")
        else:
            for h in range(2):
                e(f"s_mov_b32 s{S_TB+h}, {nib('nat', h):#x}")
            for cond, name in ((f"s_cmp_eq_u32 s{S_W}, 0", "w0"), (f"s_cmp_eq_u32 s{S_W}, 3", "w3"), (f"s_cmp_lt_u32 s{S_CG}, 8", "k0")):
                e(cond)
                for h in range(2):
                    e(f"s_cselect_b32 s{S_TB+h}, {nib(name, h):#x}, s{S_TB+h}")

        def ld(n):
            i, cb = divmod(n, 5)
            if cb == 0:
                e(rel(S_WB, i))
                e(f"s_mul_i32 s{S_WB}, s{S_WB}, 5120")
                e(f"s_add_u32 s{S_WB}, s{S_WB}, s{S_WB0}")
                if i == 11:
                    e(f"s_cmp_eq_u32 s{S_W}, 3")
                    e(f"s_cselect_b32 s{S_WB}, {OOB}, s{S_WB}")
            va, off = ((V_L16 if n >= 60 - self.opt.get("w_keep", 12) else V_TW + 2), 1024 * cb) if cb < 4 else (0, 0)
            e(f"buffer_load_dwordx4 a[{WMAP[n]}:{WMAP[n]+3}], v{va}, {srd(SWS)}, s{S_WB} offen offset:{off} sc1")
        self.wq = [lambda n=n: ld(n) for n in range(60)]
        self.wfrom, self.wper = first, per

    def fire_timers(self):
        for tm in self.timers:
            tm[1]()
        self.timers = []
        for tok, f in self.lazy:
            self.pre_barrier.append(tok)
            self.on_barrier.append(f)
        self.lazy = []
        if self.on_barrier:
            self.barrier()

    def poll_paths(self):
        p, e = self.p, self.p.e
        for tag in self.heads:
            p.label(f"K2_EARLY_SLOW_{tag}")
            e(f"s_sleep {self.opt.get('done_sleep', 8)}")
            e(f"s_add_u32 s{S_SPIN}, s{S_SPIN}, 1")
            e(f"s_cmp_gt_u32 s{S_SPIN}, 100000")
            e(f"s_cbranch_scc1 K2_EARLY_OK_{tag}")
            self.early_load()
            e("s_waitcnt vmcnt(0)")
            e(f"v_cmp_ne_u32 vcc, s{S_EPOCH}, v15")
            e(f"s_cbranch_vccnz K2_EARLY_SLOW_{tag}")
            e(f"s_branch K2_EARLY_OK_{tag}")
        for tag, R in self.polls:
            p.label(f"JF_SLOW_{tag}")
            e("s_sleep 6")
            e(f"s_add_u32 s{S_WB+2}, s{S_WB+2}, 1")
            e(f"s_cmp_gt_u32 s{S_WB+2}, 20000")
            e(f"s_cbranch_scc1 JF_OK_{tag}")
            self.flag_load(R)
            e("s_waitcnt vmcnt(0)")
            e(f"v_cmp_ne_u32 vcc, s{S_EPOCH}, v{R}")
            e(f"s_cbranch_vccnz JF_SLOW_{tag}")
            e(f"s_branch JF_OK_{tag}")

    def w_some(self, n):
        while n > 0 and len(self.wq) > self.opt.get("w_keep", 12):
            self.wq.pop(0)()
            n -= 1

    def a_load(self, g, t, i, f):
        e = self.p.e
        if f == 0:
            e(rel(S_A, i))
            e(f"s_lshl_b32 s{S_A}, s{S_A}, 12")
            e(f"s_add_u32 s{S_A}, s{S_A}, s{S_A0 if t else S_A1}")
            if i == 11:
                e(f"s_cmp_eq_u32 s{S_W}, 3")
                e(f"s_cselect_b32 s{S_A}, s{S_OOB}, s{S_A}")
        return e(f"buffer_load_dwordx4 {slot(g, f)}, v{V_L16}, {srd(SWS)}, s{S_A} offen offset:{1024*f} sc1")

    def early_load(self):
        e = self.p.e
        e(f"v_mov_b32 v15, s{S_EPOCH}")
        if self.opt.get("fast"):
            e(f"s_mov_b64 exec, s[{S_M2}:{S_M2+1}]")
        else:
            e("s_mov_b64 exec, 0x7f7f" if MIXED else "s_mov_b64 exec, 0xbfff")
        t = e(f"buffer_load_dword v15, v2, {srd(SWS)}, s{S_DIV+2} offen sc1")
        e("s_mov_b64 exec, -1")
        return t

    def head_a(self, tag):
        p, e = self.p, self.p.e
        e(f"s_lshl_b32 s{S_DN}, s{S_MT}, 11"); e(f"s_add_u32 s{S_DN}, s{S_DN}, {DONE_OFF}")
        e(f"s_add_u32 s{S_DIV+2}, s{S_DN}, {DONE1_OFF - DONE_OFF}")
        e(f"v_and_b32 v2, 15, v{V_LANE}"); e("v_lshlrev_b32 v2, 7, v2")
        e(f"s_mov_b32 s{S_SPIN}, 0")
        split = self.opt.get("split", 0)
        fast = self.opt.get("fast", 0)
        if fast:
            e(f"s_mov_b32 s{S_DIV+2}, s{S_DN}")
            e(f"s_lshl_b32 s{S_M2}, 1, s{S_CG}"); e(f"s_andn2_b32 s{S_M2}, 0xffff, s{S_M2}"); e(f"s_mov_b32 s{S_M2+1}, 0")
        if (tag != "B") and split in (1, 4) and not (tag == "A" and self.opt.get("early_mid")):
            t_early = self.early_load()
        self.w_some(self.opt.get("head_w", 4))
        for x in self.mk_srd(SD, K_DSK, 1280) + self.mk_srd(SO, K_OUT, OUT_BYTES):
            e(x)
        e(f"v_mov_b32 v{V_L16}, v{V_TW+2}"); e(f"v_mov_b32 v{V_L16B}, v0")
        e(f"s_mov_b32 s{S_N}, s{S_WB+3}")
        e(f"s_lshr_b32 s{S_T2}, s{S_CG}, 3")
        e(f"s_lshl_b32 s{S_T3}, s{S_MT}, 1")
        e(f"s_add_u32 s{S_T3}, s{S_T3}, s{S_T2}")
        e(f"s_mul_i32 s{S_A0}, s{S_T3}, 94"); e(f"s_add_u32 s{S_A0}, s{S_A0}, s{S_N}"); e(f"s_lshl_b32 s{S_A0}, s{S_A0}, 12")
        e(f"s_xor_b32 s{S_A1}, s{S_T3}, 1")
        e(f"s_mul_i32 s{S_A1}, s{S_A1}, 94"); e(f"s_add_u32 s{S_A1}, s{S_A1}, s{S_N}"); e(f"s_lshl_b32 s{S_A1}, s{S_A1}, 12")
        e(f"s_lshl_b32 s{S_T3}, s{S_T3}, 6"); e(f"s_lshl_b32 s{S_T0}, s{S_W}, 4"); e(f"s_add_u32 s{S_T3}, s{S_T3}, s{S_T0}")
        e(f"s_and_b32 s{S_T1}, s{S_CG}, 7"); e(f"s_mul_i32 s{S_T1}, s{S_T1}, 160")
        e(f"s_mul_i32 s{S_XO}, s{S_T3}, 1280"); e(f"s_add_u32 s{S_XO}, s{S_XO}, s{S_T1}")
        e(f"s_lshl_b32 s{S_OO}, s{S_XO}, 1")
        e(f"s_mov_b32 s{S_DIV}, 0xcccd"); e(f"s_mov_b32 m0, s{S_J1}")
        for j in range(3):
            e(f"v_add_u32 v6, {64*j}, v{V_LANE}"); e(f"v_mul_lo_u32 v7, v6, s{S_DIV}"); e("v_lshrrev_b32 v7, 19, v7")
            e("v_mul_u32_u24 v8, 1120, v7"); e("v_lshl_add_u32 v8, v6, 4, v8")
            if j:
                e(f"v_add_u32 v8, {-1024*j & 0xffffffff:#x}, v8")
            if j == 2:
                e("s_mov_b32 exec_hi, 0")
            e(f"buffer_load_dwordx4 v8, {srd(SX)}, s{S_XO} offen offset:{1024*j} lds")
        e(f"s_add_u32 m0, s{S_J1}, 3072"); e("s_mov_b32 exec_lo, 0x3ff")
        t_res = e(f"buffer_load_dwordx4 v{V_L16}, {srd(SD)}, s{S_T1} offen lds")
        e("s_mov_b64 exec, -1")
        self.h = dict(t_res=t_res, t_early=locals().get("t_early"))

    def phase2_head(self, k, tag):
        p, e = self.p, self.p.e
        self.stamp(k)
        split, fast = self.opt.get("split", 0), self.opt.get("fast", 0)
        if not getattr(self, "h", None):
            self.head_a(tag)
        t_res, t_early = self.h["t_res"], self.h["t_early"]
        self.h = None
        def raise_done():
            e(f"s_lshl_b32 s{S_T0}, s{S_CG}, 7"); e(f"s_add_u32 s{S_T0}, s{S_T0}, s{S_DN}")
            e(f"s_cmp_eq_u32 s{S_W}, 0"); e(f"s_cselect_b32 s{S_T0}, s{S_T0}, {OOB}")
            e(f"v_mov_b32 v14, s{S_EPOCH}")
            self.barrier(self.last_store)
            if tag != "B" and (split == 2 or fast):
                st["early"] = self.early_load()
            e("s_mov_b64 exec, 1")
            e(f"buffer_store_dword v14, off, {srd(SWS)}, s{S_T0} sc1")
            e("s_mov_b64 exec, -1")
            self.stamp(k + 1)

        def go():
            p.wait(st["early"])
            e(f"v_cmp_ne_u32 vcc, s{S_EPOCH}, v15")
            e(f"s_cbranch_vccnz K2_EARLY_SLOW_{tag}")
            p.label(f"K2_EARLY_OK_{tag}")
            self.heads.append(tag)
            p.wait(t_res)
            for g in range(4):
                for f in range(4):
                    self.a_load(g, *(STEPS_MIXED[g] if MIXED else (0, g)), f)
        st = {"early": t_early}
        e(f"s_mov_b32 s{S_OOB}, {OOB}")
        late_done = split == 4 and tag == "A"
        if not late_done:
            raise_done()
        self.w_some(60)
        if tag == "B" and (split or fast):
            st["early"] = self.early_load()
        if split in (1, 4) or fast == 1:
            go()
        if split == 4 and not late_done:
            e(f"buffer_store_dword v14, off, {srd(SWS)}, s{S_OOB} sc1")
        self.w_rest = list(self.wq)
        e(f"s_and_b32 s{S_T3}, s{S_T3}, 127"); e(f"s_lshl_b32 s{S_T3}, s{S_T3}, 3"); e(f"s_add_u32 s{S_T3}, s{S_T3}, {STL}")
        e(f"s_mul_i32 s{S_T2}, s{S_W}, 5376")
        e(f"v_lshlrev_b32 v10, 3, v{V_LANE}"); e(f"v_add_u32 v10, s{S_J1}, v10")
        XR, DR, SR, T = ACC2, ACC2 + 10, ACC2 + 20, ACC2 + 32
        AD = ACC2 + 60
        for i in range(5):
            e(f"v_add_u32 v6, {64*i}, v{V_LANE}"); e(f"v_mul_lo_u32 v7, v6, s{S_DIV}"); e("v_lshrrev_b32 v7, 20, v7")
            e("v_mul_u32_u24 v8, 20, v7"); e("v_sub_u32 v8, v6, v8")
            e("v_mul_u32_u24 v9, 2560, v7"); e(f"v_lshl_add_u32 v{V_OA+i}, v8, 4, v9")
            e("v_mul_u32_u24 v12, 336, v7"); e("v_lshl_add_u32 v12, v8, 4, v12")
            e(f"v_add_u32 v{V_LA+i}, s{S_T2}, v12")
            e(f"v_lshl_add_u32 v{AD+i}, v8, 3, s{S_J1}"); e(f"v_lshl_add_u32 v11, v7, 3, s{S_T3}")
            e(f"ds_read_b64 v[{SR+2*i}:{SR+2*i+1}], v11")
        e(f"v_and_b32 v{V_WA}, 15, v{V_LANE}"); e(f"v_mul_u32_u24 v{V_WA}, 336, v{V_WA}")
        e(f"v_lshrrev_b32 v6, 4, v{V_LANE}"); e(f"v_lshl_add_u32 v{V_WA}, v6, 4, v{V_WA}")
        e(f"s_mul_i32 s{S_T2}, s{S_W}, 21504"); e(f"v_add_u32 v{V_WA}, s{S_T2}, v{V_WA}")
        e(f"v_add_u32 v{V_PK}, s{S_J1}, v{V_L16}")
        e("s_lshl_b32 s3, s2, 2"); e(f"s_add_u32 s3, s3, s{S_W}")
        e(f"s_mul_i32 s{S_PO}, s3, 5120"); e(f"s_add_u32 s{S_PO}, s{S_PO}, {PART_OFF}")
        e("s_xor_b32 s3, s3, 4")
        e(f"s_mul_i32 s{S_PI}, s3, 5120"); e(f"s_add_u32 s{S_PI}, s{S_PI}, {PART_OFF}")
        if self.opt.get("a_pref"):
            e(f"s_and_b32 s{S_T0}, s{S_CG}, 7"); e(f"s_lshl_b32 s{S_T0}, s{S_T0}, 2"); e(f"s_add_u32 s{S_T0}, s{S_T0}, s{S_W}")
            e(f"s_mul_i32 s{S_T0}, s{S_T0}, 94")
            e(f"s_mov_b32 s{S_T1}, {94*4096 - 1504*128}")
            for j, r in ((0, 6), (1, 7)):
                e(f"v_add_u32 v{r}, s{S_T0}, v{V_LANE}")
                if j:
                    e(f"v_add_u32 v{r}, 64, v{r}")
                e(f"v_cmp_lt_u32 vcc, 1503, v{r}")
                e(f"v_lshlrev_b32 v{r}, 7, v{r}")
                e(f"v_add_u32 v8, s{S_T1}, v{r}")
                e(f"v_cndmask_b32 v{r}, v{r}, v8, vcc")
            e(f"s_lshr_b32 s{S_T0}, s{S_CG}, 3"); e(f"s_mul_i32 s{S_T0}, s{S_T0}, 47")
            e(f"s_mul_i32 s{S_T1}, s{S_MT}, 188"); e(f"s_add_u32 s{S_T0}, s{S_T0}, s{S_T1}")
            e(f"s_lshl_b32 s{S_DIV+2}, s{S_T0}, 12")
        e(f"v_mov_b32 v{V_T}, 0xff")
        e(f"s_mov_b32 s{S_TG}, s{S_EPOCH}")
        for j in range(1, 4):
            e(f"s_lshr_b32 s{S_TG+j}, s{S_TG}, {8*j}"); e(f"s_add_u32 s{S_TG+j}, s{S_TG+j}, s{S_TG}")
        t = None
        if fast == 2:
            go()
        p.wait(t_res)
        for i in range(5):
            e(f"ds_read_b64 v[{XR+2*i}:{XR+2*i+1}], v10 offset:{512*i}")
            t = e(f"ds_read_b64 v[{DR+2*i}:{DR+2*i+1}], v{AD+i} offset:3072")
        p.wait(t)
        M = f"s{S_MASK}"
        for i in range(5):
            if split == 2 and i == self.opt.get("go_at", 0):
                go()
            x0, d0, s0 = XR + 2 * i, DR + 2 * i, SR + 2 * i
            for j, r in enumerate((x0, x0 + 1, d0, d0 + 1)):
                e(f"v_lshlrev_b32 v{T+2*j}, 16, v{r}"); e(f"v_and_b32 v{T+2*j+1}, {M}, v{r}")
            for j in range(4):
                e(f"v_fma_f32 v{T+8+j}, v{T+j}, v{s0}, v{s0+1}")
            for rnd in range(2):
                e(f"v_cvt_pk_bf16_f32 v{T+12}, v{T+8}, v{T+9}"); e(f"v_cvt_pk_bf16_f32 v{T+13}, v{T+10}, v{T+11}")
                e(f"v_lshlrev_b32 v{T+8}, 16, v{T+12}"); e(f"v_and_b32 v{T+9}, {M}, v{T+12}")
                e(f"v_lshlrev_b32 v{T+10}, 16, v{T+13}"); e(f"v_and_b32 v{T+11}, {M}, v{T+13}")
                if rnd == 0:
                    for j in (0, 2):
                        e(f"v_pk_mul_f32 v[{T+8+j}:{T+9+j}], v[{T+8+j}:{T+9+j}], v[{T+4+j}:{T+5+j}]")
            o = T + 16 + 4 * (i % 2)
            for j in (0, 2):
                e(f"v_pk_add_f32 v[{o+j}:{o+j+1}], v[{T+j}:{T+j+1}], v[{T+8+j}:{T+9+j}]")
            e(f"ds_write_b128 v{V_PK}, v[{o}:{o+3}] offset:{1024*i}")
        if self.opt.get("a_pref") == 2:
            e(f"buffer_load_dword v8, v6, {srd(SWS)}, s{S_DIV+2} offen sc1")
            e("s_mov_b64 exec, 0x3fffffff")
            e(f"buffer_load_dword v9, v7, {srd(SWS)}, s{S_DIV+2} offen sc1")
            e("s_mov_b64 exec, -1")
        if late_done:
            raise_done()
        e("s_branch K2_START")

    def phase2(self):
        p, e, opt = self.p, self.p.e, self.opt
        fill, tok, st, ld = [], {}, {}, []
        cur, cnt = {"g": 0}, {"m": 0}
        NS, F = 5, opt.get("k2_fuse", 3)
        PD = NS - 1

        def q(*texts):
            for t in texts:
                fill.append(t if callable(t) else (lambda t=t: e(t)))

        def pull(budget):
            start = p.slots
            while fill and p.slots - start < budget:
                it = fill[0]
                if isinstance(it, tuple):
                    if not it[0]():
                        return
                    fill.pop(0)
                    continue
                fill.pop(0)
                it()

        def lag(n):
            mark = {}
            q(lambda: mark.__setitem__("m", cnt["m"]))
            fill.append((lambda: cnt["m"] >= mark["m"] + n or cur["g"] > 98,))

        J = opt.get("k2_j", 2 if opt.get("split", 0) else 0)
        steps = [(0, i) for i in range(6)] + [(1, i) for i in range(J)] + [(0, i) for i in range(6, 12)] + \
                [(1, i) for i in range(J, 12)]
        G1 = 12 + J
        GL = 6 + J
        if MIXED:
            steps = STEPS_MIXED
            G1, GL = 15, 6
        HOLD = opt.get("k2_hold", 2) if MIXED else 0

        def loads(g):
            t, i = steps[g]

            return [lambda f=f: tok.__setitem__(g, self.a_load(g, t, i, f)) for f in range(4)]

        def done_load():
            e(f"v_mov_b32 v15, s{S_EPOCH}")
            e("s_mov_b64 exec, 0xffff")
            st["dn"] = e(f"buffer_load_dword v15, v2, {srd(SWS)}, s{S_DN} offen sc1")
            e("s_mov_b64 exec, -1")

        def done_check():
            e(f"v_cmp_ne_u32 vcc, s{S_EPOCH}, v15")
            e("s_cbranch_vccnz K2_LATE_SLOW")

        def tile_to_lds(acc):
            return [f"ds_write_b128 v{V_WA}, v[{acc+(cb*4+rb)*4}:{acc+(cb*4+rb)*4+3}] offset:{rb*5376 + cb*64}"
                    for cb in range(5) for rb in range(4)]

        def barrier():
            p.wait_all(vm=False)
            e("s_barrier")

        def part_loads():
            for i in range(5):
                r = ACC1 + 16 * i + 8
                va, off = (V_L16, 1024 * i) if i < 4 else (V_L16B, 0)
                st["pi"] = e(f"buffer_load_dwordx4 v[{r}:{r+3}], v{va}, {srd(SWS)}, s{S_PI} offen offset:{off} sc1")

        def part_check():
            for i in range(5):
                for k in range(4):
                    r = ACC1 + 16 * i + 8 + k
                    if i + k == 0:
                        e(f"v_xor_b32 v{V_T+1}, s{S_TG}, v{r}")
                    else:
                        e(f"v_bitop3_b32 v{V_T+1}, v{V_T+1}, v{r}, s{S_TG+k} bitop3:0xf6")
            e(f"v_and_b32 v{V_T+1}, v{V_T}, v{V_T+1}")
            e(f"v_cmp_ne_u32 vcc, 0, v{V_T+1}")
            e("s_cbranch_vccnz K2_SLOW")

        def first_tile_done():
            for x in tile_to_lds(ACC1):
                q(x)
                lag(opt.get("k2_wlag", 2))
            lag(opt.get("k2_blag", 4))
            q(barrier)
            for i in range(5):
                for wv in range(4):
                    r = ACC1 + 16 * i + 4 * wv
                    q(lambda i=i, r=r, wv=wv: st.__setitem__(("rd", i), e(
                        f"ds_read_b128 v[{r}:{r+3}], v{V_LA+i} offset:{wv*21504}")))
            for i in range(5):
                r = ACC1 + 16 * i
                q(lambda i=i: p.wait(st["rd", i]))
                for k in range(4):
                    q(f"v_add_f32 v{r+k}, v{r+k}, v{r+4+k}", f"v_add_f32 v{r+8+k}, v{r+8+k}, v{r+12+k}")
                q(*[f"v_add_f32 v{r+k}, v{r+k}, v{r+8+k}" for k in range(4)])
                q(*[f"v_bfi_b32 v{r+k}, v{V_T}, s{S_TG+k}, v{r+k}" for k in range(4)])
                va, off = (V_L16, 1024 * i) if i < 4 else (V_L16B, 0)
                q(f"buffer_store_dwordx4 v[{r}:{r+3}], v{va}, {srd(SWS)}, s{S_PO} offen offset:{off} sc1")
            q("s_barrier")
            for i in range(5):
                r = ACC1 + 16 * i + 4
                q(lambda i=i, r=r: st.__setitem__("pk", e(f"ds_read_b128 v[{r}:{r+3}], v{V_PK} offset:{1024*i}")))
            fill.append((lambda: cnt["m"] >= opt.get("k2_pollm", 440),))
            q(part_loads)

        def mfma(g, cb, rb):
            t, i = steps[g]
            acc = ACC2 if t else ACC1
            w = WMAP[5 * i + cb]
            c = f"v[{acc+(cb*4+rb)*4}:{acc+(cb*4+rb)*4+3}]"
            start = p.slots
            e(f"v_mfma_f32_16x16x32_bf16 {c}, a[{w}:{w+3}], {slot(g, rb)}, {c if i else 0}")
            cnt["m"] += 1
            if cnt["m"] % 4 == 2 and ld:
                ld.pop(0)()
            elif cnt["m"] % 4 == 0 and wrest:
                wrest.pop(0)()
            return start

        p.label("K2_START")
        if not opt.get("split", 0) and not opt.get("fast", 0):
            e(f"s_cmp_lg_u32 s{S_W}, 0")
            e("s_cbranch_scc1 K2_GO")
            e("s_mov_b64 exec, 0xffff")
            p.label("K2_RETRY")
            e(f"buffer_load_dword v15, v2, {srd(SWS)}, s{S_DN} offen sc1")
            e(f"s_add_u32 s{S_SPIN}, s{S_SPIN}, 1")
            e("s_waitcnt vmcnt(0)")
            e(f"v_cmp_ne_u32 vcc, s{S_EPOCH}, v15")
            e("s_cbranch_vccz K2_SEEN")
            if opt.get("backoff"):
                e(f"s_bcnt1_i32_b64 s{S_T0}, vcc")
                e(f"s_cmp_lt_u32 s{S_T0}, {opt.get('backoff_n', 12)}")
                e("s_cbranch_scc1 K2_SHORT")
                e(f"s_sleep {opt['backoff']}")
                p.label("K2_SHORT")
            e(f"s_sleep {opt.get('done_sleep', 3)}")
            e(f"s_cmp_lt_u32 s{S_SPIN}, 100000")
            e("s_cbranch_scc1 K2_RETRY")
            p.label("K2_SEEN")
            e("s_mov_b64 exec, -1")
            p.label("K2_GO")
            e("s_barrier")
            assert not MIXED
            if opt.get("a_pref"):
                e(f"buffer_load_dword v8, v6, {srd(SWS)}, s{S_DIV+2} offen sc1")
                e("s_mov_b64 exec, 0x3fffffff")
                e(f"buffer_load_dword v9, v7, {srd(SWS)}, s{S_DIV+2} offen sc1")
                e("s_mov_b64 exec, -1")
            for g in range(4):
                for f in range(4):
                    self.a_load(g, 0, g, f)
        p.vq, p.vdone, p.lq, p.ldone = (17 if opt.get("split") == 4 else 16), 0, 5, 0
        for g in range(4):
            tok[g] = ("v", 4 * g + 4)
        self.stamp(10)
        if opt.get("stamp"):
            e(f"s_mov_b32 s{S_WB+2}, s{S_SPIN}")
        e(f"s_mov_b32 s{S_SPIN}, 0")
        e(f"s_mov_b32 s{S_WB+1}, 0")
        wrest = list(self.w_rest)
        for g in range(24 - F):
            cur["g"] = g
            if g + PD + opt.get("k2_dlead", 2) == GL + HOLD and opt.get("split", 0):
                done_load()
            if g == G1:
                self.stamp(11)
                first_tile_done()
            p.wait(tok[g])
            if g + PD == GL + HOLD and opt.get("split", 0):
                p.wait(st["dn"])
                done_check()
                p.label("K2_LATE_OK")
                for g2 in range(GL, GL + HOLD):
                    for f in loads(g2):
                        f()
            if g + PD < 24 and not (GL <= g + PD < GL + HOLD):
                ld.extend(loads(g + PD))
            for cb in range(5):
                for rb in range(4):
                    start = mfma(g, cb, rb)
                    pull(opt.get("k2_b2", 4) - (p.slots - start))
            while ld:
                ld.pop(0)()
        cur["g"] = 98
        wr, tl = [], tile_to_lds(ACC2)
        for cb in range(5):
            n = 0
            for g in range(24 - F, 24):
                p.wait(tok[g])
                for rb in range(4):
                    start = mfma(g, cb, rb)
                    n += 1
                    if wr and n > 2 and (n - 3) % max(1, F - 1) == 0:
                        e(wr.pop(0))
                    pull(opt.get("k2_b2", 4) - (p.slots - start))
            for x in wr:
                e(x)
            wr = tl[4 * cb:4 * cb + 4]
        cur["g"] = 99
        self.stamp(12)
        pull(10000)
        assert not fill
        for x in wr:
            e(x)
        p.wait(st["pi"], st["pk"])
        part_check()
        p.label("K2_OK")
        e(f"s_mov_b32 s{S_DIV}, 0xffffff00")
        for i in range(5):
            s = ACC1 + 16 * i
            for k in range(4):
                e(f"v_and_b32 v{s+8+k}, s{S_DIV}, v{s+8+k}")
            for k in range(0, 4, 2):
                e(f"v_pk_add_f32 v[{s+k}:{s+k+1}], v[{s+4+k}:{s+5+k}], v[{s+8+k}:{s+9+k}]")
        barrier()
        rd = {}
        for i in range(5):
            for wv in range(4):
                r = ACC2 + 16 * i + 4 * wv
                rd[i] = e(f"ds_read_b128 v[{r}:{r+3}], v{V_LA+i} offset:{wv*21504}")
        for i in range(5):
            r, s = ACC2 + 16 * i, ACC1 + 16 * i
            p.wait(rd[i])
            for k in range(0, 4, 2):
                e(f"v_pk_add_f32 v[{r+k}:{r+k+1}], v[{r+k}:{r+k+1}], v[{r+4+k}:{r+5+k}]")
                e(f"v_pk_add_f32 v[{r+8+k}:{r+9+k}], v[{r+8+k}:{r+9+k}], v[{r+12+k}:{r+13+k}]")
                e(f"v_pk_add_f32 v[{s+k}:{s+k+1}], v[{s+k}:{s+k+1}], v[{r+k}:{r+k+1}]")
            for k in range(0, 4, 2):
                e(f"v_pk_add_f32 v[{s+k}:{s+k+1}], v[{s+k}:{s+k+1}], v[{r+8+k}:{r+9+k}]")
            e(f"buffer_store_dwordx4 v[{s}:{s+3}], v{V_OA+i}, {srd(SO)}, s{S_OO} offen{opt.get('owt', ' sc1')}")
        e(f"s_or_b32 s{S_T0}, s2, s{S_W}")
        e(f"s_cmp_eq_u32 s{S_T0}, 0")
        e(f"s_cselect_b32 s{S_T0}, {EPOCH_OFF}, s{S_OOB}")
        e(f"v_mov_b32 v{V_T}, s{S_EPOCH}")
        e("s_mov_b64 exec, 1")
        e(f"buffer_store_dword v{V_T}, off, {srd(SWS)}, s{S_T0} sc1")
        e("s_mov_b64 exec, -1")
        if opt.get("stamp"):
            tm = "s_memrealtime" if opt.get("rt") else "s_memtime"
            e(f"{tm} s[{SA1}:{SA1+1}]")
            p.wait_all()
            e(f"{tm} s[{SA1+2}:{SA1+3}]")
            e(f"s_memrealtime s[{S_M2}:{S_M2+1}]")
            e(f"s_lshl_b32 s{S_T0}, s2, 2"); e(f"s_add_u32 s{S_T0}, s{S_T0}, s{S_W}")
            e(f"s_lshl_b32 s{S_T0}, s{S_T0}, 7"); e(f"s_add_u32 s{S_T0}, s{S_T0}, {STAMP1_OFF}")
            e("s_waitcnt lgkmcnt(0)")
            for k, r in enumerate(STAMP_REGS + [SA1, SA1 + 2, 94, S_M2, S_WB + 2, S_SPIN, S_WB + 1]):
                e(f"v_mov_b32 v6, s{r}")
                e(f"buffer_store_dword v6, off, {srd(SWS)}, s{S_T0} offset:{4*k}")
        p.label("K1_END")
        e("s_endpgm")
        if not opt.get("split", 0):
            p.label("K2_LATE_OK")
        p.label("K2_LATE_SLOW")
        e(f"s_sleep {opt.get('done_sleep', 8)}")
        e(f"s_add_u32 s{S_WB+1}, s{S_WB+1}, 1")
        e(f"s_cmp_gt_u32 s{S_WB+1}, 100000")
        e("s_cbranch_scc1 K2_LATE_OK")
        done_load()
        e("s_waitcnt vmcnt(0)")
        done_check()
        e("s_branch K2_LATE_OK")
        p.label("K2_SLOW")
        e("s_sleep 2")
        e(f"s_add_u32 s{S_SPIN}, s{S_SPIN}, 1")
        e(f"s_cmp_gt_u32 s{S_SPIN}, 100000")
        e("s_cbranch_scc1 K2_OK")
        part_loads()
        e("s_waitcnt vmcnt(0)")
        part_check()
        e("s_branch K2_OK")

    def build_dsd(self):
        p, e, o = self.p, self.p.e, self.opt
        global MIXED
        MIXED = bool(o.get("split"))
        self.JA = V_PRE
        self.prologue()
        e(f"s_cmp_eq_u32 s{S_TYPE}, 2")
        e("s_cbranch_scc1 K1_TYPE_C")
        snap0 = self.snapshot()
        self.prologue2("F", o.get("npre", 2))
        self.a_job_setup("AB")
        e(f"s_cmp_eq_u32 s{S_TYPE}, 1")
        e("s_cbranch_scc1 K1_TYPE_B")
        snap = self.snapshot()
        g1, g2 = o.get("lb_issue", 345), o.get("lb_check", 365)
        jf = lambda tmp: self.flag_later(tmp, None, lambda: self.job_store, JF_OFF, S_CG, S_MT)
        head = [("F", i, S_D1) for i in range(10)] + [("S", i, 0) for i in range(5)]
        for typ in "AB":
            if typ == "B":
                p.label("K1_TYPE_B")
                self.restore(snap)
            m0 = self.mf
            self.norm_every = 2
            fb = self.fork_job(typ, m0, 188, 48)

            def s0():
                self.stamp(4)
                self.epi_done = False
                self.ffn_epilogue(192, S_KD1, 48)
                self.fill.append(lambda: setattr(self, "epi_done", True))
                if MIXED:
                    self.fill.append(lambda: self.flag_later(66, None, lambda t=self.last_store: t, DONE1_OFF, S_MT, S_CG))

            def wstart():
                assert self.epi_done
                self.jf_check(64, "A", 240, 4)

            def d0(typ=typ, m0=m0):
                self.stamp(5)
                rest, self.fill = self.fill, []
                self.ssm_reduce(0, ACC_S, 188, False, 56)
                k = next(i for i, x in enumerate(self.fill) if isinstance(x, tuple) and x[0] == "bar")
                self.fill = self.fill[:k] + rest + self.fill[k:] if o.get("rest_mid", 1) else self.fill + rest
                self.ssm_finish(0, ACC_S, 188, lambda: self.mf - m0 >= g1, lambda: self.mf - m0 >= g2, typ)
            hooks = {fb: lambda: jf(210), 156: self.stats_to_lds, 161: s0}
            frags = self.d_frags(0, 192, "a") + self.s_frags(10, ACC_S)
            if typ == "A":
                j1 = o.get("jf_at", 250)
                hooks.update({241: d0, j1 - 23: lambda: self.jf_load(64), j1: wstart})
                self.run(head + [("F", i, S_D2) for i in range(10)], frags + self.d_frags(15, ACC_D2), hooks)
                self.stamp(6)
                self.mf += 1000
                tw = o.get("tail_w", 3)
                if o.get("tail_first", 1):
                    self.ffn_tail(ACC_D2, S_KD2, {(0, 0): lambda: self.w_some(tw), (0, 1): lambda: self.w_some(tw)}, 64)
                    self.flush()
                else:
                    self.flush()
                    self.ffn_tail(ACC_D2, S_KD2, {(0, 0): lambda: self.w_some(tw), (0, 1): lambda: self.w_some(tw)}, 64)
            else:
                self.run(head, frags, hooks)
                self.mf += 1000
                self.flush()
                self.fire_timers()
                self.stamp(5)
                self.ssm_reduce(0, ACC_S, 188)
                self.flush()
                self.stamp(6)
                self.jf_load(64)
                self.p.e("s_sleep 32")
                self.jf_check(64, "B", 0, 1)
                self.w_some(o.get("b_w", 30))
                self.ssm_finish(0, ACC_S, 188, None, None, "B")
                self.flush()
            self.stamp(7)
            self.phase2_head(8, typ)
        p.label("K1_TYPE_C")
        self.restore(snap0)
        self.is_c = True
        self.norm_every = 1
        self.prologue2("S", 8)
        self.a_job_setup("C")
        self.path_c(jf, None)
        self.slow_paths()
        self.poll_paths()
        self.phase2()
        p.fix_hazards()
        return p

    def sd_frags(self, accs):
        d = self.d_frags(0, 192, "a")
        out, win = [], 0
        for s in range(40):
            i = s // 8
            ns, nf = 3 * i + 1, 3 * i + (2 if s % 8 >= 4 else 0)
            for mat in range(2):
                c = f"v[{accs[mat]}:{accs[mat]+15}]"
                fr = dict(stage=ns, reads=[f"ds_read_b128 a[{{f0}}:{{f3}}], v{self.AS + s % 8} offset:{(ns % 4)*16384 + mat*8192}"],
                          mfma=f"v_mfma_f32_32x32x16_bf16 {c}, a[{XN+4*s}:{XN+4*s+3}], a[{{f0}}:{{f3}}], {c if s else 0}")
                if s % 8 == 0 and mat == 0:
                    fr["also"] = [nf]
                    if (ns % 8) // 4 != win:
                        win ^= 1
                        fr["pre"] = [f"v_xor_b32 v{self.AS+k}, 0x10000, v{self.AS+k}" for k in range(8)]
                out.append(fr)
            for k in range(4):
                j, mat = k // 2, k % 2
                a = V_TR + 2 * ((nf % 8) // 4) + j
                off = (nf % 4) * 16384 + mat * 8192 + (s % 4) * 2048
                out.append(dict(stage=nf, mfma=d[4 * s + k]["mfma"], reads=[
                    f"ds_read_b64_tr_b16 a[{{f0}}:{{f1}}], v{a} offset:{off}",
                    f"ds_read_b64_tr_b16 a[{{f2}}:{{f3}}], v{a} offset:{off+512}"]))
        return out

    def build_sd(self):
        p, e, o = self.p, self.p.e, self.opt
        self.JA = V_PRE
        self.prologue()
        e(f"s_cmp_eq_u32 s{S_TYPE}, 2")
        e("s_cbranch_scc1 K1_TYPE_C")
        snap0 = self.snapshot()
        self.AS, self.AX = 204, 216
        accs = (188, 216)
        head = []
        for i in range(5):
            head += [("F", 2 * i, S_D1), ("S", i, 0), ("F", 2 * i + 1, S_D1)]
        self.prologue2("SD", o.get("npre", 2), head)
        self.a_job_setup("AB")
        e(f"s_cmp_eq_u32 s{S_TYPE}, 1")
        e("s_cbranch_scc1 K1_TYPE_B")
        snap = self.snapshot()
        g1, g2 = o.get("lb_issue", 345), o.get("lb_check", 365)
        jf = lambda tmp: self.flag_later(tmp, None, lambda: self.job_store, JF_OFF, S_CG, S_MT)
        for typ in "AB":
            if typ == "B":
                p.label("K1_TYPE_B")
                self.restore(snap)
            m0 = self.mf
            fb = self.fork_job(typ, m0, 16, 40)
            stages = head + ([("F", i, S_D2) for i in range(10)] if typ == "A" else [])
            self.auto = dict(next=o.get("sd_first", 7), stages=stages)
            for n in range(5, self.auto["next"]):
                self.issue_stage(n, *stages[n])
                if n == 5:
                    self.dq.extend(self.job_ld)

            def d0(typ=typ, m0=m0):
                self.stamp(5)
                self.ssm_reduce(0, accs, 48, False, 72)
                tail = []
                if o.get("epi_mid", 1):
                    k = next(i for i, x in enumerate(self.fill) if isinstance(x, tuple) and x[0] == "bar")
                    self.fill, tail = self.fill[:k], self.fill[k:]
                n0 = len(self.fill)
                self.epi_done = False
                self.ffn_epilogue(192, S_KD1, 64)
                self.fill.append(lambda: setattr(self, "epi_done", True))
                cut = n0 + o.get("epi_cut", 42)
                self.fill = self.fill[:cut] + tail + self.fill[cut:]
                if typ == "A":
                    pos = len(self.fill)
                    self.ssm_finish(0, accs, 76, None, lambda: self.mf - m0 >= g2, typ)
                    k = next(i for i in range(pos, len(self.fill)) if isinstance(self.fill[i], tuple))
                    lb, self.fill = self.fill[pos:k], self.fill[:pos] + self.fill[k:]
                    at = max(cut + len(tail), pos - o.get("lb_lead", 84))
                    self.fill = self.fill[:at] + [("t", lambda: self.mf - m0 >= g1)] + lb + self.fill[at:]

            def wstart():
                self.jf_check(60, "A", 240, 4)
                self.wskip = 16
            hooks = {fb: lambda: jf(V_PRE + 5), 60: lambda: self.stamp(4), 234: self.stats_to_lds}
            frags = self.sd_frags(accs)
            if typ == "A":
                j1 = o.get("jf_at", 250)
                hooks.update({241: d0, j1 - 23: lambda: self.jf_load(60), j1: wstart})
                self.gemm(frags + self.d_frags(15, ACC_D2), {}, hooks)
                self.stamp(6)
                self.mf += 1000
                tw = o.get("tail_w", 3)
                self.flush()
                self.ffn_tail(ACC_D2, S_KD2, {(0, 0): lambda: self.w_some(tw), (0, 1): lambda: self.w_some(tw)})
            else:
                self.gemm(frags, {}, hooks)
                self.mf += 1000
                d0()
                self.flush()
                self.fire_timers()
                self.stamp(6)
                self.jf_load(60)
                self.p.e("s_sleep 32")
                self.jf_check(60, "B", 0, 1)
                self.w_some(o.get("b_w", 30))
                self.ssm_finish(0, accs, 76, None, None, "B")
                self.flush()
            self.auto = None
            self.wskip = 0
            self.stamp(7)
            self.phase2_head(8, typ)
        p.label("K1_TYPE_C")
        self.restore(snap0)
        self.AS, self.AX = V_AS, V_AS + 8
        self.is_c = True
        self.prologue2("S", 8)
        self.a_job_setup("C")
        self.path_c(jf, None)
        self.slow_paths()
        self.poll_paths()
        self.phase2()
        p.fix_hazards()
        return p

    def build(self):
        p, e, o = self.p, self.p.e, self.opt
        if o.get("order") == "SD":
            global WMAP
            WMAP = [4 * k for k in range(40)] + [192 + 4 * k for k in range(16)] + [160 + 4 * k for k in range(4)]
            return self.build_sd()
        if o.get("order") == "DSD":
            return self.build_dsd()
        global MIXED
        MIXED = o.get("split") == 4
        if o.get("job_mode") == "dma":
            self.JA = V_PRE
        self.prologue()
        if o.get("job_mode") == "dma":
            self.a_job_setup()
        e(f"s_cmp_eq_u32 s{S_TYPE}, 2")
        e("s_cbranch_scc1 K1_TYPE_C")
        e(f"s_cmp_eq_u32 s{S_TYPE}, 1")
        e("s_cbranch_scc1 K1_TYPE_B")
        snap = self.snapshot()
        g1, g2 = o.get("lb_issue", 200), o.get("lb_check", 225)
        fa = o.get("fork_at", 65)
        late = o.get("job_late")
        pre = bool(o.get("pre", 0))
        split = o.get("split", 0)
        jf = lambda tmp: self.flag_later(tmp, o.get("jf_delay"), lambda: self.job_store, JF_OFF, S_CG, S_MT)
        d1 = lambda tmp, dl: self.flag_later(tmp, dl, lambda t=self.last_store: t, DONE1_OFF, S_MT, S_CG)
        head = [("S", i, 0) for i in range(5)] + [("F", i, S_D1) for i in range(10)]
        for typ in "AB":
            if typ == "B":
                p.label("K1_TYPE_B")
                self.restore(snap)
            m0 = self.mf
            fb = self.fork_job(typ, m0, 188, RAW + 132 if fa >= 65 else 48)

            def a1():
                self.stamp(4)
                if fa == 65:
                    self.stats_to_lds()
                self.ssm_reduce(0, ACC_S, 188, pre)

            def a1b(typ=typ, m0=m0):
                if fa == 65:
                    a1()
                self.q_done = not pre
                if pre:
                    self.ssm_pre(0, ACC_S, ACC_D2)
                self.ssm_finish(0, ACC_S, 188, lambda: self.mf - m0 >= g1, lambda: self.mf - m0 >= g2, typ,
                                ACC_D2 if pre else None)

            def a2():
                while not self.q_done:
                    it = self.fill.pop(0)
                    if not isinstance(it, tuple):
                        it()
                self.stamp(5)
                rest = []
                if split == 4:
                    rest, self.fill = self.fill, []
                self.ffn_epilogue(ACC_D1, S_KD1)
                if split:
                    self.fill.append(lambda: d1(226, o.get("d1_delay")))
                self.fill += rest
            hooks = {fb: lambda a1b=a1b: (jf(224), a1b())}
            if o.get("job_spread"):
                self.JD = 112
                hooks = {fb: lambda: self.job_stores(112, lambda: jf(224)), fb + 1: a1b}
            if fb < 70:
                hooks = {fb: lambda: jf(V_PRE + 5), 81: lambda a1=a1, a1b=a1b: (a1(), a1b()), 70: self.stats_to_lds}
            elif fa != 65:
                hooks[81] = a1
                hooks[70] = self.stats_to_lds
            if late:
                for q5, at in enumerate(late):
                    hooks[at] = self.job_ld[q5]
            frags = self.s_frags(0, ACC_S) + self.d_frags(5, ACC_D1)
            if typ == "A":
                j1 = o.get("jf_at", 240)
                hooks.update({240: a2, j1 - 23: lambda: self.jf_load(224), j1 + 1: lambda: self.jf_check(224, "A", 240, 4)})
                self.run(head + [("F", i, S_D2) for i in range(10)], frags + self.d_frags(15, ACC_D2), hooks)
                self.stamp(6)
                if split == 4:
                    self.fire_timers()
                self.flush()
                if o.get("d1_at_end", 1):
                    self.fire_timers()
                if split == 4:
                    self.head_a("A")
                tw = o.get("tail_w", 3)
                self.ffn_tail(ACC_D2, S_KD2, {(0, 0): lambda: self.w_some(tw), (0, 1): lambda: self.w_some(tw),
                                              (1, 0): self.fire_timers,
                                              (1, o.get("early_mid", 0) - 1): lambda: self.h.__setitem__("t_early", self.early_load())})
            else:
                self.run(head, frags, hooks)
                self.stamp(5)
                self.mf += 1000
                self.fire_timers()
                self.flush()
                self.stamp(6)
                self.jf_load(224)
                self.ffn_tail(ACC_D1, S_KD1)
                if split == 4:
                    d1(226, None)
                    self.fire_timers()
                self.jf_check(224, "B", 0, 1)
            self.stamp(7)
            self.phase2_head(8, typ)
        p.label("K1_TYPE_C")
        self.restore(snap)
        self.path_c(jf, d1)
        self.slow_paths()
        self.poll_paths()
        self.phase2()
        p.fix_hazards()
        return p

    def path_c(self, jf, d1):
        p, e, o = self.p, self.p.e, self.opt
        late, split = o.get("job_late"), o.get("split", 0) and not MIXED
        stages = [("S", i % 5, i // 5) for i in range(15)]
        m0 = self.mf
        self.opt = dict(o, fork_at=o.get("fork_at_c", 65))
        fb = self.fork_job("C", m0, 112, 144 if o.get("job_spread") else 136)
        self.JD = 124
        if o.get("job_spread"):
            fb0, fb = fb, 81

        def c1():
            self.stamp(4)
            self.stats_to_lds()
            if not o.get("job_spread"):
                jf(168)
            self.ssm_reduce(0, 16, 152)
            for b in (1, 2):
                self.q(*self.ssm_consts(b, V_C + 12 * b + 6, 112))
                self.zero_row(b, 112)

        def c2():
            self.stamp(5)
            self.ssm_reduce(1, 48, 152)
            self.ssm_finish(0, 16, 112, None, lambda: self.mf - m0 >= 215, "C0")
        hooks = {fb: c1, 161: c2, 215: lambda: self.jf_load(168)}
        if o.get("job_spread"):
            hooks[fb0] = lambda: self.job_stores(124, lambda: jf(168))
        if late:
            for q5 in range(5):
                hooks[4 + 10 * q5] = self.job_ld[q5]
        self.run(stages, self.s_frags(0, 16) + self.s_frags(5, 48) + self.s_frags(10, 80), hooks)
        self.stamp(6)
        self.jf_check(168, "C", 0, 1)
        self.mf += 1000
        we = o.get("c_wevery", 16)
        self.flush(we)
        self.ssm_reduce(2, 80, 152)
        self.ssm_finish(1, 48, 112, None, None, "C1")
        self.flush(we)
        self.stamp(7)
        if split:
            d1(168, 0)
        self.ssm_finish(2, 80, 112, None, None, "C2")
        if split:
            self.fill.insert(o.get("c_d1_at", 60), self.fire_timers)
        self.flush(o.get("c_wevery2", 0))
        self.phase2_head(8, "C")


DESC = K1_DESC.replace("proj_kernel", NAME)
```

```python
import struct
from asmlib import Prog, cost_of
from layout import *

S_W, S_MT, S_CG, S_R = 4, 5, 6, 7
SX, SS, SF, SWS, SA1, SA2 = 8, 12, 16, 20, 24, 28
S_T0, S_T1, S_T2, S_T3 = 32, 33, 34, 35
K_X, K_LRE, K_LIM, K_BRE, K_BIM, K_CRE, K_CIM, K_LDT = 36, 38, 40, 42, 44, 46, 48, 50
K_DSK, K_BX, K_WG, K_WU, K_WD, K_OUT, K_DBG, K_WS = 52, 54, 56, 58, 60, 62, 64, 66
S_KS = 68
S_KF = 73
S_W4K, S_XB, S_SB, S_SBROW, S_D1, S_D2, S_TYPE, S_EPOCH, S_MASK = 78, 79, 80, 81, 82, 83, 84, 85, 86
S_A2ROW, S_GK2, S_JOB, S_KD1, S_KD2, S_SPIN, S_J1 = 87, 88, 89, 90, 91, 92, 93
S_J2 = 3
STAMP_REGS = [96, 54, 64, 36, 38, 40, 50, 66, 42, 44, 56, 58, 46]
S_HM = 98
S_M2 = 100

V_LANE, V_OF, V_TR, V_STA, V_GK1, V_SEG, V_PUB, V_XW, V_XR = 1, 2, 6, 10, 11, 12, 13, 14, 15
RAW = 16
ACC_S, ACC_D1, ACC_D2 = 16, 48, 112
V_C = 176
V_OS = 212
V_AS = 216
V_JC = 228
V_JW = 208
V_LBO = 232
V_TW = 234
V_PRE = 237
V_STAMP = 243
V_X = 244
XN = 0
FR = 160

LDS_SCR = 131072
SCR_W = 8192
XCH = LDS_SCR + 6144
STL = LDS_SCR + 3 * SCR_W + 6144
K1_LDS = 163840

LOG2E = 1.4426950408889634
GK1 = -2.0 * 0.7978845608028654 * LOG2E
GK2 = GK1 * 0.044715


def fx(x):
    return "0x%08x" % struct.unpack("<I", struct.pack("<f", x))[0]


def srd(n):
    return f"s[{n}:{n+3}]"


class K1:
    def __init__(self, opt):
        self.opt = opt
        self.p = Prog()
        self.fill = []
        self.dq = []
        self.norm = []
        self.stage_tok = {}
        self.pre_barrier = []
        self.nbar = 0
        self.mf = 0
        self.seen = set()
        self.slow = []
        self.refused = []
        self.after_first_barrier = None
        self.wt = opt.get("wt", " sc1")
        self.name = "proj_kernel"
        self.fused = False
        self.wq = []
        self.last_store = None
        self.vgap = 0
        self.on_barrier = []
        self.timers = []
        self.lazy = []
        self.in_fork = False
        self.norm_every = 1
        self.AS, self.AX = V_AS, V_AS + 8
        self.jit = []
        self.wskip = 0
        self.auto = None
        self.fork = None
        self.vjc = V_JC

    def stamp(self, k, x=False):
        if not self.opt.get("stamp") or (k >= 10 and not x and self.opt.get("xstamps")):
            return
        r = STAMP_REGS[k]
        ins = "s_memrealtime" if self.opt.get("rt") else "s_memtime"
        self.p.e(f"{ins} s[{r}:{r+1}]")
        if self.opt.get("verbose"):
            print("stamp", k, "slots", self.p.slots, "fill left", len(self.fill))

    def stamp_out(self, n):
        if not self.opt.get("stamp"):
            return
        p, e = self.p, self.p.e
        self.stamp(n)
        p.wait_all()
        self.stamp(n + 1)
        e(f"s_memrealtime s[{S_M2}:{S_M2+1}]")
        e(f"s_lshl_b32 s{S_T0}, s2, 2"); e(f"s_add_u32 s{S_T0}, s{S_T0}, s{S_W}")
        e(f"s_lshl_b32 s{S_T0}, s{S_T0}, 6"); e(f"s_add_u32 s{S_T0}, s{S_T0}, {STAMP1_OFF}")
        e("s_waitcnt lgkmcnt(0)")
        for k, r in enumerate(STAMP_REGS[:13]):
            e(f"v_mov_b32 v{V_STAMP}, s{r}")
            e(f"buffer_store_dword v{V_STAMP}, off, {srd(SWS)}, s{S_T0} offset:{4*k}")
        for k, r in ((13, S_SPIN), (14, 94), (15, S_M2)):
            e(f"v_mov_b32 v{V_STAMP}, s{r}")
            e(f"buffer_store_dword v{V_STAMP}, off, {srd(SWS)}, s{S_T0} offset:{4*k}")

    def issue_stage(self, n, kind, i, arg):
        e = self.p.e
        slot = n % 8

        def piece(q):
            if q == 0:
                e(f"s_mov_b32 m0, s{S_J1}" if kind in "WJ" else f"s_add_u32 m0, s{S_W4K}, {slot*16384}")
                if kind == "S":
                    e(f"s_add_u32 s{S_T0}, s{S_SBROW}, s{S_KS+i}")
                    if arg:
                        e(f"s_add_u32 s{S_T0}, s{S_T0}, {arg*32*1280}")
                elif kind == "F":
                    e(f"s_add_u32 s{S_T0}, s{arg}, s{S_KF+(i>>1)}")
                    if i & 1:
                        e(f"s_add_u32 s{S_T0}, s{S_T0}, {64*3456}")
                elif kind == "J":
                    e(f"s_mov_b32 s{S_T0}, s{S_JOB}")
                else:
                    self.job_source(kind, i)
            vo, d, off = {"S": (V_OS + q, SS, q), "F": (V_OF + q, SF, q), "W": (V_JW + q, SA1, q),
                          "C": (self.vjc + q % 2, SA1 if q < 2 else SA2, q % 2),
                          "J": (self.vjc + q % 2, SA1 if q < 2 else SA2, q % 2)}[kind]
            if kind in "CJ" and q == 2:
                e("s_add_u32 m0, m0, 2048")
                if kind == "J":
                    e(f"s_add_u32 s{S_T0}, s{S_T0}, s{S_XB}")
            t = e(f"buffer_load_dwordx4 v{vo}, {srd(d)}, s{S_T0} offen offset:{1024*off}{self.opt.get('nt' + kind, '')} lds")
            if q == 3:
                self.stage_tok[n] = t
        for q in range(4):
            self.dq.append(lambda q=q: piece(q))

    def dma(self):
        if self.dq:
            self.dq.pop(0)()

    def barrier(self, *toks):
        p = self.p
        p.wait(*toks, *self.pre_barrier)
        self.pre_barrier = []
        for it in [x for x in self.lazy if x[0][1] <= p.vdone]:
            self.lazy.remove(it)
            self.on_barrier.append(it[1])
        p.e("s_barrier")
        self.nbar += 1
        cbs, self.on_barrier = self.on_barrier, []
        for f in cbs:
            f()
        if self.after_first_barrier:
            f, self.after_first_barrier = self.after_first_barrier, None
            f()

    def pull(self, budget):
        p = self.p
        start = p.slots
        while self.fill and p.slots - start < budget:
            it = self.fill[0]
            if isinstance(it, tuple):
                if not it[1]():
                    return
                self.fill.pop(0)
                continue
            if p.slots - start + getattr(it, "cost", 1) > budget and not (it in self.refused):
                self.refused.append(it)
                return
            self.fill.pop(0)
            it()

    def flush(self, wevery=0):
        mark = self.p.slots
        while self.fill:
            if wevery and len(self.wq) > self.opt.get("w_keep", 12) and self.p.slots - mark >= wevery:
                self.wq.pop(0)()
                mark = self.p.slots
            it = self.fill.pop(0)
            if isinstance(it, tuple):
                if it[0] == "bar" and not it[1]():
                    self.barrier()
                continue
            it()

    def gemm(self, frags, plan, hooks=None):
        p, o = self.p, self.opt
        LA = 7
        toks = {}
        n = len(frags)
        last = {}
        for i_, fr_ in enumerate(frags):
            last[fr_["stage"]] = i_

        def read(idx):
            fr = frags[idx]
            st = fr["stage"]
            if st not in self.seen:
                grpst = [st] + fr.get("also", [])
                self.seen.update(grpst)
                while any(x not in self.stage_tok for x in grpst):
                    self.dma()
                self.barrier(*[self.stage_tok[x] for x in grpst])
                if self.auto:
                    a = self.auto
                    while a["next"] < len(a["stages"]) and last.get(a["next"] - 8, -99) <= idx - LA:
                        self.issue_stage(a["next"], *a["stages"][a["next"]])
                        a["next"] += 1
                elif st in plan:
                    plan[st]()
            for x in fr.get("pre", []):
                p.e(x)
            r = FR + 4 * (idx % 8)
            for txt in fr["reads"]:
                toks[idx] = p.e(txt.format(f0=r, f1=r + 1, f2=r + 2, f3=r + 3))
        for idx in range(LA):
            read(idx)
        grp = o.get("wgrp", 4)
        def step(idx):
            if hooks and idx in hooks:
                hooks[idx]()
            for tm in [t for t in self.timers if t[0] <= self.mf]:
                self.timers.remove(tm)
                tm[1]()
            if idx in o.get("xstamps", []):
                self.stamp(10 + o["xstamps"].index(idx), True)
            if idx % grp == 0:
                p.wait(toks[min(idx + grp - 1, n - 1)])
            start = p.slots
            r = FR + 4 * (idx % 8)
            p.e(frags[idx]["mfma"].format(f0=r, f3=r + 3))
            self.mf += 1
            if idx + LA < n:
                read(idx + LA)
            dper = o.get("dper", 4)
            if self.dq and (idx % dper == 1 or (len(self.dq) > 4 and idx % 2 == 1)):
                self.dma()
                self.vgap = idx
            elif len(self.wq) > o.get("w_keep", 12) and idx - self.vgap >= (o.get("wpace1", 2) if self.dq else o.get("wpace2", 3)):
                n_w = 60 - len(self.wq)
                if n_w < 16 - self.wskip + (idx + 1 - self.wfrom) // self.wper:
                    self.wq.pop(0)()
                    self.vgap = idx
            if self.jit:
                for _ in range(o.get("jit_rate", 4)):
                    if self.jit:
                        p.e(self.jit.pop(0))
                if self.in_fork:
                    self.pull(o.get("fork_bud", 3))
            elif self.norm and idx % self.norm_every == 0:
                if self.in_fork:
                    self.pull(o.get("fork_bud", 4))
                for x in self.norm.pop(0):
                    p.e(x)
            elif o.get("interleave", 1):
                bud = o.get("budget", 8)
                for lo, hi, v in o.get("boost", []):
                    if lo <= idx < hi:
                        bud = v
                self.pull(bud - (p.slots - start) - (1 if (idx + 1) % grp == 0 else 0))


        idx = 0
        while idx < n:
            if self.fork and idx == self.fork[0]:
                a, b, pre, var1, var2, tag = self.fork
                self.fork = None
                pre()
                assert not self.fill
                snap, tk = self.snapshot(), dict(toks)
                self.in_fork = True
                var1()
                for i in range(a, b):
                    step(i)
                assert not self.fill
                p.e(f"s_branch FORK_JOIN_{tag}")
                end1, tk1 = self.snapshot(), dict(toks)
                p.label(f"FORK_ALT_{tag}")
                self.restore(snap)
                toks.clear(); toks.update(tk)
                var2()
                for i in range(a, b):
                    step(i)
                assert not self.fill
                end2 = self.snapshot()
                assert end1[:5] == end2[:5] and all(tk1[k] == toks[k] for k in toks if k >= b)
                p.label(f"FORK_JOIN_{tag}")
                self.in_fork = False
                idx = b
            else:
                step(idx)
                idx += 1

    def s_frags(self, st0, acc):
        out = []
        for s in range(40):
            st = st0 + s // 8
            slot = st % 8
            for mat in range(2):
                a = V_AS + 8 * (slot // 4) + (s % 8)
                off = (slot % 4) * 16384 + mat * 8192
                c = f"v[{acc+16*mat}:{acc+16*mat+15}]"
                cin = c if s else "0"
                out.append(dict(stage=st, reads=[f"ds_read_b128 a[{{f0}}:{{f3}}], v{a} offset:{off}"],
                                mfma=f"v_mfma_f32_32x32x16_bf16 {c}, a[{XN+4*s}:{XN+4*s+3}], a[{{f0}}:{{f3}}], {cin}"))
        return out

    def d_frags(self, st0, acc, f="v"):
        out = []
        for s in range(40):
            st = st0 + s // 4
            slot = st % 8
            for j in range(2):
                for mat in range(2):
                    a = V_TR + 2 * (slot // 4) + j
                    off = (slot % 4) * 16384 + mat * 8192 + (s % 4) * 2048
                    r = acc + 32 * j + 16 * mat
                    c = f"{f}[{r}:{r+15}]"
                    cin = c if s else "0"
                    out.append(dict(stage=st, reads=[
                        f"ds_read_b64_tr_b16 a[{{f0}}:{{f1}}], v{a} offset:{off}",
                        f"ds_read_b64_tr_b16 a[{{f2}}:{{f3}}], v{a} offset:{off+512}"],
                        mfma=f"v_mfma_f32_32x32x16_bf16 {c}, a[{{f0}}:{{f3}}], a[{XN+4*s}:{XN+4*s+3}], {cin}"))
        return out

    def q(self, *texts):
        for t in texts:
            if isinstance(t, list):
                f = lambda t=t: [self.p.e(x) for x in t]
                f.cost = len(t)
            else:
                f = lambda t=t: self.p.e(t)
                f.cost = cost_of(t)
            self.fill.append(f)

    def lag(self, n):
        st = {}
        self.fill.append(lambda: st.__setitem__("m", self.mf))
        self.fill.append(("t", lambda: self.mf >= st["m"] + n))

    def ffn_tail(self, acc, s_k, mid=None, K=ACC_S):
        e = self.p.e
        T = V_X
        e(f"v_mov_b32 v{K}, v{V_GK1}"); e(f"v_mov_b32 v{K+1}, v{V_GK1}")
        e(f"v_mov_b32 v{K+2}, s{S_GK2}"); e(f"v_mov_b32 v{K+3}, s{S_GK2}")
        e(f"v_mov_b32 v{K+4}, 1.0"); e(f"v_mov_b32 v{K+5}, 1.0")
        for j in range(2):
            g0, u0 = acc + 32 * j, acc + 32 * j + 16
            for half in range(2):
                prs = [(g0 + 8 * half + 2 * k, u0 + 8 * half + 2 * k, K + 6 + 2 * k) for k in range(4)]
                pr = lambda r: f"v[{r}:{r+1}]"
                for g, u, t in prs:
                    e(f"v_pk_mul_f32 {pr(t)}, {pr(g)}, {pr(g)}")
                for g, u, t in prs:
                    e(f"v_pk_fma_f32 {pr(t)}, {pr(t)}, {pr(K+2)}, {pr(K)}")
                for g, u, t in prs:
                    e(f"v_pk_mul_f32 {pr(t)}, {pr(t)}, {pr(g)}")
                for g, u, t in prs:
                    e(f"v_exp_f32 v{t}, v{t}")
                    e(f"v_pk_mul_f32 {pr(u)}, {pr(u)}, {pr(g)}")
                    e(f"v_exp_f32 v{t+1}, v{t+1}")
                for g, u, t in prs:
                    e(f"v_pk_add_f32 {pr(t)}, {pr(t)}, {pr(K+4)}")
                d = T + 4 + 4 * half
                for k, (g, u, t) in enumerate(prs):
                    e(f"v_rcp_f32 v{t}, v{t}")
                    if k:
                        g1, u1, t1 = prs[k - 1]
                        e(f"v_pk_mul_f32 {pr(u1)}, {pr(u1)}, {pr(t1)}")
                    e(f"v_rcp_f32 v{t+1}, v{t+1}")
                    if k:
                        e(f"v_cvt_pk_bf16_f32 v{d+k-1}, v{u1}, v{u1+1}")
                if j == 1 and half == 0:
                    e(f"s_add_u32 s{s_k}, s{s_k}, 4096")
                if mid and (j, half) in mid:
                    mid[j, half]()
                g1, u1, t1 = prs[3]
                e(f"v_pk_mul_f32 {pr(u1)}, {pr(u1)}, {pr(t1)}")
                e(f"v_cvt_pk_bf16_f32 v{d+3}, v{u1}, v{u1+1}")
                self.last_store = e(f"buffer_store_dwordx4 v[{d}:{d+3}], v{V_STA}, {srd(SWS)}, s{s_k} offen offset:{512*half}{self.wt}")

    def ffn_epilogue(self, acc, s_k, via=None):
        T = V_X
        for j in range(2):
            g0, u0 = acc + 32 * j, acc + 32 * j + 16
            for half in range(2):
                for pair in range(4):
                    i = 8 * half + 2 * pair
                    ga, gb, ua, ub = g0 + i, g0 + i + 1, u0 + i, u0 + i + 1
                    ta, tb = T + 2 * (pair % 2), T + 2 * (pair % 2) + 1
                    d = T + 4 + 4 * half + pair
                    if via is not None:
                        x = via + 4 * (pair % 2)
                        self.q(*[f"v_accvgpr_read_b32 v{x+k}, a{r}" for k, r in enumerate((ga, gb, ua, ub))])
                        ga, gb, ua, ub = x, x + 1, x + 2, x + 3
                    self.q(f"v_mul_f32 v{ta}, v{ga}, v{ga}", f"v_mul_f32 v{tb}, v{gb}, v{gb}",
                           f"v_fma_f32 v{ta}, v{ta}, s{S_GK2}, v{V_GK1}", f"v_fma_f32 v{tb}, v{tb}, s{S_GK2}, v{V_GK1}",
                           f"v_mul_f32 v{ta}, v{ta}, v{ga}", f"v_mul_f32 v{tb}, v{tb}, v{gb}",
                           f"v_exp_f32 v{ta}, v{ta}", f"v_exp_f32 v{tb}, v{tb}",
                           f"v_mul_f32 v{ua}, v{ua}, v{ga}", f"v_mul_f32 v{ub}, v{ub}, v{gb}",
                           f"v_add_f32 v{ta}, 1.0, v{ta}", f"v_add_f32 v{tb}, 1.0, v{tb}",
                           f"v_rcp_f32 v{ta}, v{ta}", f"v_rcp_f32 v{tb}, v{tb}",
                           f"v_mul_f32 v{ua}, v{ua}, v{ta}", f"v_mul_f32 v{ub}, v{ub}, v{tb}",
                           f"v_cvt_pk_bf16_f32 v{d}, v{ua}, v{ub}")
                d = T + 4 + 4 * half
                if j == 1 and half == 0:
                    self.q(f"s_add_u32 s{s_k}, s{s_k}, 4096")
                f = lambda d=d, half=half: setattr(self, "last_store", self.p.e(
                    f"buffer_store_dwordx4 v[{d}:{d+3}], v{V_STA}, {srd(SWS)}, s{s_k} offen offset:{512*half}{self.wt}"))
                f.cost = 2
                self.fill.append(f)

    @staticmethod
    def cmul(dr, di, ar, ai, br, bi):
        return [f"v_mul_f32 v{dr}, v{ar}, v{br}", f"v_mul_f32 v{di}, v{ar}, v{bi}",
                f"v_fma_f32 v{dr}, -v{ai}, v{bi}, v{dr}", f"v_fma_f32 v{di}, v{ai}, v{br}, v{di}"]

    def ssm_consts(self, b, praw, u):
        c = V_C + 12 * b
        lr, li, dt = praw, praw + 1, praw + 2
        L = [f"v_lshlrev_b32 v{lr}, 16, v{lr}", f"v_lshlrev_b32 v{li}, 16, v{li}", f"v_lshlrev_b32 v{dt}, 16, v{dt}",
             f"v_mul_f32 v{dt}, {fx(LOG2E)}, v{dt}", f"v_exp_f32 v{dt}, v{dt}",
             f"v_cvt_pk_bf16_f32 v{dt}, v{dt}, v{dt}", f"v_lshlrev_b32 v{dt}, 16, v{dt}",
             f"v_mul_f32 v{u}, v{dt}, v{lr}", f"v_mul_f32 v{u+1}, v{dt}, v{li}",
             f"v_mul_f32 v{u}, {fx(LOG2E)}, v{u}", f"v_mul_f32 v{u+1}, 0.15915494, v{u+1}",
             f"v_exp_f32 v{u}, v{u}", f"v_fract_f32 v{u+1}, v{u+1}",
             f"v_cos_f32 v{u+2}, v{u+1}", f"v_sin_f32 v{u+3}, v{u+1}",
             f"v_mul_f32 v{c}, v{u}, v{u+2}", f"v_mul_f32 v{c+1}, v{u}, v{u+3}",
             f"v_add_f32 v{u}, -1.0, v{c}",
             f"v_mul_f32 v{u+1}, v{lr}, v{lr}", f"v_fma_f32 v{u+1}, v{li}, v{li}, v{u+1}",
             f"v_rcp_f32 v{u+1}, v{u+1}",
             f"v_mul_f32 v{u+2}, v{u}, v{lr}", f"v_fma_f32 v{u+2}, v{c+1}, v{li}, v{u+2}",
             f"v_mul_f32 v{u+3}, v{c+1}, v{lr}", f"v_fma_f32 v{u+3}, -v{u}, v{li}, v{u+3}",
             f"v_add_f32 v{u+1}, v{u+1}, v{u+1}",
             f"v_mul_f32 v{c+2}, v{u+2}, v{u+1}", f"v_mul_f32 v{c+3}, v{u+3}, v{u+1}"]
        L += self.cmul(u, u + 1, c, c + 1, c, c + 1)
        L += self.cmul(u + 2, u + 3, u, u + 1, u, u + 1)
        L += self.cmul(u, u + 1, u + 2, u + 3, u + 2, u + 3)
        L += self.cmul(c + 4, c + 5, u, u + 1, u, u + 1)
        L += self.cmul(u, u + 1, c + 4, c + 5, c + 4, c + 5)
        L += self.cmul(u + 2, u + 3, u, u + 1, u, u + 1)
        L += self.cmul(c + 8, c + 9, u + 2, u + 3, u + 2, u + 3)
        L += self.cmul(c + 10, c + 11, c + 8, c + 9, c + 8, c + 9)
        hm, m2 = f"s[{S_HM}:{S_HM+1}]", f"s[{S_M2}:{S_M2+1}]"
        L += [f"v_cndmask_b32 v{u+4}, 1.0, v{c+4}, {hm}", f"v_cndmask_b32 v{u+5}, 0, v{c+5}, {hm}",
              [f"s_bitcmp1_b32 s{S_W}, 0", f"s_cselect_b64 {m2}, -1, 0"],
              f"v_cndmask_b32 v{u}, 1.0, v{u}, {m2}", f"v_cndmask_b32 v{u+1}, 0, v{u+1}, {m2}"]
        L += self.cmul(u + 6, u + 7, u + 4, u + 5, u, u + 1)
        L += [[f"s_bitcmp1_b32 s{S_W}, 1", f"s_cselect_b64 {m2}, -1, 0"],
              f"v_cndmask_b32 v{u+2}, 1.0, v{u+2}, {m2}", f"v_cndmask_b32 v{u+3}, 0, v{u+3}, {m2}"]
        L += self.cmul(c + 6, c + 7, u + 6, u + 7, u + 2, u + 3)
        return L

    def ex_base(self, sreg, b):
        return [f"s_add_u32 s{sreg}, s{S_SB}, {b}", f"s_mul_i32 s{sreg}, s{sreg}, {EX_BLK}",
                f"s_add_u32 s{sreg}, s{sreg}, {EX_OFF}"]

    def ssm_reduce(self, b, acc, X, keep=False, T=V_X):
        p = self.p
        c = V_C + 12 * b
        re, im = acc if isinstance(acc, tuple) else (acc, acc + 16)
        cur = (re, im)
        if b == 0 and not self.fused:
            self.q(f"v_mov_b32 v{T+4}, 0", f"v_min_u32 v{T+5}, 6, v{V_SEG}", f"v_sub_u32 v{T+5}, v{T+5}, v{V_SEG}",
                   f"v_lshl_add_u32 v{T+5}, v{T+5}, 3, v{V_XR}", f"ds_write2_b32 v{T+5}, v{T+4}, v{T+4} offset1:1")
        for t in range(1, 16):
            d = (re + t, im + t) if keep else ((T, T + 1) if t % 2 else (T + 2, T + 3))
            self.q(f"v_fma_f32 v{d[0]}, -v{c+1}, v{cur[1]}, v{re+t}", f"v_fma_f32 v{d[1]}, v{c+1}, v{cur[0]}, v{im+t}",
                   f"v_fma_f32 v{d[0]}, v{c}, v{cur[0]}, v{d[0]}", f"v_fma_f32 v{d[1]}, v{c}, v{cur[1]}, v{d[1]}")
            cur = d
        hr, hi = cur
        st = {}

        def wr():
            st["wr"] = p.e(f"ds_write2_b32 v{V_XR}, v{hr}, v{hi} offset0:14 offset1:15")
        self.fill.append(wr)
        self.lag(self.opt.get("xlag", 3))

        def arm():
            self.pre_barrier.append(st["wr"])
            st["bar"] = self.nbar
        self.fill.append(arm)
        self.fill.append(("bar", lambda: self.nbar > st["bar"]))
        E = X
        pr, pi = V_PRE + 2 * b, V_PRE + 2 * b + 1

        def rd():
            for k in range(3):
                p.e(f"ds_read2_b64 v[{E+4*k}:{E+4*k+3}], v{V_XR} offset0:{2*k} offset1:{2*k+1}")
            st["t"] = p.e(f"ds_read_b64 v[{E+12}:{E+13}], v{V_XR} offset:48")
        rd.cost = 4
        self.fill.append(rd)
        g = T + 4
        self.q(f"v_mov_b32 v{g+1}, s{S_EPOCH}", f"v_mov_b32 v{g+3}, s{S_EPOCH}", *self.ex_base(S_T2, b))
        self.lag(4)
        self.fill.append(lambda: p.wait(st["t"]))
        cur = (E, E + 1)
        for j in range(1, 7):
            er, ei = E + 2 * j, E + 2 * j + 1
            d = (pr, pi) if j == 6 else (er, ei)
            self.q(f"v_fma_f32 v{er}, -v{c+5}, v{cur[1]}, v{er}", f"v_fma_f32 v{ei}, v{c+5}, v{cur[0]}, v{ei}",
                   f"v_fma_f32 v{d[0]}, v{c+4}, v{cur[0]}, v{er}", f"v_fma_f32 v{d[1]}, v{c+4}, v{cur[1]}, v{ei}")
            cur = d
        self.q(f"v_fma_f32 v{g}, -v{c+5}, v{pi}, v{hr}", f"v_fma_f32 v{g+2}, v{c+5}, v{pr}, v{hi}",
               f"v_fma_f32 v{g}, v{c+4}, v{pr}, v{g}", f"v_fma_f32 v{g+2}, v{c+4}, v{pi}, v{g+2}",
               f"buffer_store_dwordx4 v[{g}:{g+3}], v{V_PUB}, {srd(SWS)}, s{S_T2} offen sc1")

    def ssm_pre(self, b, acc, Q):
        c = V_C + 12 * b
        T = V_X
        re, im = acc if isinstance(acc, tuple) else (acc, acc + 16)
        self.q(*self.cmul(Q, Q + 16, c + 2, c + 3, c, c + 1))
        for t in range(16):
            o = T + 2 * (t % 2)
            self.q(f"v_mul_f32 v{o}, v{c+3}, v{im+t}", f"v_mul_f32 v{o+1}, v{c+3}, v{re+t}",
                   f"v_fma_f32 v{re+t}, v{c+2}, v{re+t}, -v{o}", f"v_fma_f32 v{im+t}, v{c+2}, v{im+t}, v{o+1}")
            if t < 15:
                self.q(*self.cmul(Q + t + 1, Q + 17 + t, Q + t, Q + 16 + t, c, c + 1))

    def lb_issue(self, i, LB, A):
        p = self.p
        p.e(f"v_add_u32 v{A}, {-1024*i & 0xffffffff:#x}, v{V_LBO}" if i else f"v_mov_b32 v{A}, v{V_LBO}")
        p.e(f"v_max_i32 v{A}, v{A}, v{V_LBO+1}")
        if self.opt.get("dbg_nolb"):
            p.e(f"v_mov_b32 v{A}, v{V_LBO+1}")
        return p.e(f"buffer_load_dwordx4 v[{LB+4*i}:{LB+4*i+3}], v{A}, {srd(SWS)}, s{S_T3} offen sc1")

    def lb_mix(self, LB, A):
        L = [f"v_mov_b32 v{A+1}, s{S_EPOCH}"]
        for i in range(8):
            d = A if i == 0 else A + 2 + i % 2
            L.append(f"v_bitop3_b32 v{d}, v{LB+4*i+1}, v{LB+4*i+3}, v{A+1} bitop3:0x7e")
            if i and i % 2 == 0:
                L.append(f"v_or3_b32 v{A}, v{A}, v{A+2}, v{A+3}")
        L.append(f"v_or_b32 v{A}, v{A}, v{A+3}")
        return L

    def lb_check(self, LB, A, tag):
        p = self.p
        for x in self.lb_mix(LB, A):
            p.e(x)
        p.e(f"v_cmp_ne_u32 vcc, 0, v{A}")
        p.e(f"s_cbranch_vccnz LB_SLOW_{tag}")

    def ssm_finish(self, b, acc, LB, gate_issue, gate_check, tag, Q=None, between=None):
        p = self.p
        c = V_C + 12 * b
        PRE = V_PRE + 2 * b
        st = {}
        if gate_issue is not None:
            self.fill.append(("t", gate_issue))
        A = LB + 32
        self.q(*self.ex_base(S_T3, b), f"s_mov_b32 s{S_SPIN}, 0")
        for i in range(8):
            def f(i=i):
                st["t"] = self.lb_issue(i, LB, A)
            self.fill.append(f)
        if between:
            between()
        if gate_check is not None:
            self.fill.append(("t", gate_check))

        self.fill.append(lambda: p.wait(st["t"]))
        self.q(*self.lb_mix(LB, A))

        def check():
            p.e(f"v_cmp_ne_u32 vcc, 0, v{A}")
            p.e(f"s_cbranch_vccnz LB_SLOW_{tag}")
            p.label(f"LB_OK_{tag}")
            self.slow.append((tag, LB, A))
        self.fill.append(check)
        pr, pi = A, A + 1
        self.q(f"v_mov_b32 v{pr}, v{LB+28}", f"v_mov_b32 v{pi}, v{LB+30}")
        for i in range(6, -1, -1):
            er, ei = LB + 4 * i, LB + 4 * i + 2
            self.q(f"v_fma_f32 v{er}, -v{c+11}, v{pi}, v{er}", f"v_fma_f32 v{ei}, v{c+11}, v{pr}, v{ei}",
                   f"v_fma_f32 v{pr}, v{c+10}, v{pr}, v{er}", f"v_fma_f32 v{pi}, v{c+10}, v{pi}, v{ei}")
        r0, i0, r1, i1 = LB, LB + 1, LB + 2, LB + 3
        self.q(f"v_mov_b32 v{r0}, v{pr}", f"v_mov_b32 v{r1}, v{pr}", f"v_mov_b32 v{i0}, v{pi}", f"v_mov_b32 v{i1}, v{pi}",
               f"v_permlane32_swap_b32 v{r0}, v{r1}", f"v_permlane32_swap_b32 v{i0}, v{i1}",
               f"v_fma_f32 v{r0}, -v{c+9}, v{i1}, v{r0}", f"v_fma_f32 v{i0}, v{c+9}, v{r1}, v{i0}",
               f"v_fma_f32 v{r0}, v{c+8}, v{r1}, v{r0}", f"v_fma_f32 v{i0}, v{c+8}, v{i1}, v{i0}",
               f"v_fma_f32 v{PRE}, -v{c+7}, v{i0}, v{PRE}", f"v_fma_f32 v{PRE+1}, v{c+7}, v{r0}, v{PRE+1}",
               f"v_fma_f32 v{PRE}, v{c+6}, v{r0}, v{PRE}", f"v_fma_f32 v{PRE+1}, v{c+6}, v{i0}, v{PRE+1}")
        re, im = acc if isinstance(acc, tuple) else (acc, acc + 16)
        cur = (PRE, PRE + 1)
        for t in range(16):
            o = LB + 4 + 4 * (t % 2)
            if Q is not None:
                qr, qi = Q + t, Q + 16 + t
                self.q(f"v_fma_f32 v{re+t}, v{qr}, v{PRE}, v{re+t}", f"v_fma_f32 v{im+t}, v{qr}, v{PRE+1}, v{im+t}",
                       f"v_fma_f32 v{re+t}, -v{qi}, v{PRE+1}, v{re+t}", f"v_fma_f32 v{im+t}, v{qi}, v{PRE}, v{im+t}",
                       f"v_cvt_pk_bf16_f32 v{o+2}, v{re+t}, -v{im+t}")
                if t == 15:
                    self.fill.append(lambda: setattr(self, "q_done", True))
            else:
                self.q(f"v_fma_f32 v{re+t}, -v{c+1}, v{cur[1]}, v{re+t}", f"v_fma_f32 v{im+t}, v{c+1}, v{cur[0]}, v{im+t}",
                       f"v_fma_f32 v{re+t}, v{c}, v{cur[0]}, v{re+t}", f"v_fma_f32 v{im+t}, v{c}, v{cur[1]}, v{im+t}")
                cur = (re + t, im + t)
                self.q(f"v_mul_f32 v{o}, v{c+2}, v{re+t}", f"v_mul_f32 v{o+1}, v{c+2}, v{im+t}",
                       f"v_fma_f32 v{o}, -v{c+3}, v{im+t}, v{o}", f"v_fma_f32 v{o+1}, v{c+3}, v{re+t}, v{o+1}",
                       f"v_cvt_pk_bf16_f32 v{o+2}, v{o}, -v{o+1}")

            def w(t=t, o=o):
                st["w"] = p.e(f"ds_write_b32 v{V_TW}, v{o+2} offset:{144*t}")
            self.fill.append(w)
        O = LB + 12
        self.lag(4)

        def rd():
            p.wait(st["w"])
            st["r"] = [p.e(f"ds_read_b128 v[{O+4*f}:{O+4*f+3}], v{V_TW+1} offset:{(f>>1)*2304 + (f&1)*64}")
                       for f in range(4)]
        self.fill.append(rd)
        self.q(f"s_add_u32 s{S_T3}, s{S_SB}, {b}", f"s_lshl_b32 s{S_T3}, s{S_T3}, 13",
               f"s_add_u32 s{S_T3}, s{S_T3}, s{S_A2ROW}", f"s_add_u32 s{S_T3}, s{S_T3}, {54*4096}",
               f"s_add_u32 s{S_T2}, s{S_T3}, 4096")
        self.lag(5)
        for f in range(4):
            def stf(f=f):
                p.wait(st["r"][f])
                so = S_T2 if f & 1 else S_T3
                self.last_store = p.e(f"buffer_store_dwordx4 v[{O+4*f}:{O+4*f+3}], v{V_TW+2}, {srd(SWS)}, s{so} offen offset:{1024*(f>>1)}{self.wt}")
            self.fill.append(stf)
            if f < 3 and self.opt.get("st_lag"):
                self.lag(self.opt["st_lag"])

    def slow_paths(self):
        p = self.p
        for tag, LB, A in self.slow:
            p.label(f"LB_SLOW_{tag}")
            p.e("s_sleep 2")
            p.e(f"s_add_u32 s{S_SPIN}, s{S_SPIN}, 1")
            p.e(f"s_cmp_gt_u32 s{S_SPIN}, 100000")
            p.e(f"s_cbranch_scc1 LB_OK_{tag}")
            for i in range(8):
                self.lb_issue(i, LB, A)
            p.e("s_waitcnt vmcnt(0)")
            self.lb_check(LB, A, tag)
            p.e(f"s_branch LB_OK_{tag}")

    def mk_srd(self, d, ptr, nbytes):
        return [f"s_mov_b32 s{d}, s{ptr}", f"s_mov_b32 s{d+1}, s{ptr+1}",
                f"s_mov_b32 s{d+2}, {nbytes}", f"s_mov_b32 s{d+3}, 0x20000"]

    def prologue(self):
        p, e, q, o = self.p, self.p.e, self.q, self.opt
        hm = f"s[{S_HM}:{S_HM+1}]"
        p.raw(".p2align 8")
        p.label(self.name)
        e("s_cmp_ge_u32 s2, 256")
        e("s_cbranch_scc1 K1_END")
        if o.get("badmap"):
            e("s_lshr_b32 s3, s2, 5")
            e("s_and_b32 s2, s2, 31")
            e("s_lshl_b32 s2, s2, 3")
            e("s_or_b32 s2, s2, s3")
        if o.get("stamp"):
            e("s_memrealtime s[94:95]")
            self.stamp(0)
        e("s_load_dwordx16 s[36:51], s[0:1], 0")
        e("s_load_dwordx16 s[52:67], s[0:1], 64")
        e(f"s_getpc_b64 s[{S_T0}:{S_T1}]")
        p.label("K1_PC")
        e("v_lshrrev_b32 v2, 6, v0")
        e(f"v_and_b32 v{V_LANE}, 63, v0")
        e(f"v_readfirstlane_b32 s{S_W}, v2")
        e("s_lshr_b32 s3, s2, 3")
        e(f"s_lshl_b32 s{S_T2}, s3, 2")
        e(f"s_add_u32 s{S_T2}, s{S_T2}, s{S_W}")
        e(f"s_mul_i32 s{S_T2}, s{S_T2}, 768")
        e(f"v_lshlrev_b32 v2, 7, v{V_LANE}")
        e(f"v_add_u32 v2, s{S_T2}, v2")
        e("v_min_u32 v2, TEXT_END-K1_PC-4, v2")
        e(f"s_mov_b64 exec, {o.get('cp_mask', 63)}")
        e(f"global_load_dword v{V_PRE+5}, v2, s[{S_T0}:{S_T1}]")
        e("s_mov_b64 exec, -1")
        e(f"s_and_b32 s{S_T2}, s2, 7")
        e(f"s_lshr_b32 s{S_MT}, s{S_T2}, 1")
        e(f"s_lshl_b32 s{S_MT}, s{S_MT}, 2")
        e(f"s_and_b32 s{S_T3}, s3, 3")
        e(f"s_add_u32 s{S_MT}, s{S_MT}, s{S_T3}")
        e(f"s_and_b32 s{S_CG}, s{S_T2}, 1")
        e(f"s_lshl_b32 s{S_CG}, s{S_CG}, 3")
        e("s_lshr_b32 s3, s3, 2")
        e(f"s_add_u32 s{S_CG}, s{S_CG}, s3")
        e(f"s_add_u32 s{S_R}, s3, s{S_T3}")
        if o.get("rot_x"):
            e(f"s_lshr_b32 s{S_T2}, s{S_MT}, 2")
            e(f"s_add_u32 s{S_R}, s{S_R}, s{S_T2}")
        for _ in range(3 if o.get("rot_x") else 2):
            e(f"s_sub_u32 s{S_T2}, s{S_R}, 5")
            e(f"s_cmp_ge_u32 s{S_R}, 5")
            e(f"s_cselect_b32 s{S_R}, s{S_T2}, s{S_R}")
        if o.get("norot"):
            e(f"s_mov_b32 s{S_R}, 0")
        e(f"s_lshl_b32 s{S_KS}, s{S_R}, 8")
        for i in range(1, 5):
            e(f"s_add_u32 s{S_KS+i}, s{S_KS+i-1}, 256")
            e(f"s_cmp_eq_u32 s{S_KS+i}, 1280")
            e(f"s_cselect_b32 s{S_KS+i}, 0, s{S_KS+i}")
        e(f"s_lshl_b32 s{S_W4K}, s{S_W}, 12")
        e(f"s_lshl_b32 s{S_XB}, s{S_MT}, 2")
        e(f"s_add_u32 s{S_XB}, s{S_XB}, s{S_W}")
        e(f"s_mul_i32 s{S_XB}, s{S_XB}, {32*1280}")
        a, xr = V_X + 4, V_X + 5
        e(f"v_lshrrev_b32 v{a}, 4, v{V_LANE}")
        e(f"v_and_b32 v{xr}, 15, v{V_LANE}")
        e(f"v_xor_b32 v{xr}, v{xr}, v{a}")
        e(f"v_lshlrev_b32 v{xr}, 4, v{xr}")
        e(f"v_mul_u32_u24 v{a}, 1280, v{a}")
        for k in range(4):
            e(f"v_xor_b32 v{V_OS+k}, {64*k}, v{xr}")
            e(f"v_add_u32 v{V_OS+k}, v{V_OS+k}, v{a}")
            e(f"v_add_u32 v{V_X+k}, {(16*(k&1) + 4*(k>>1))*1280 - 1024*k}, v{V_OS+k}")
        e(f"s_cmp_ge_u32 s{S_CG}, 8")
        e(f"s_cselect_b32 s{S_T2}, 1, 0")
        e(f"s_sub_u32 s{S_SB}, s{S_CG}, s{S_T2}")
        e(f"s_lshl_b32 s{S_D1}, s{S_SB}, 1")
        e(f"s_mov_b32 s{S_TYPE}, 0")
        e(f"s_cmp_eq_u32 s{S_CG}, 14")
        e(f"s_cselect_b32 s{S_TYPE}, 1, s{S_TYPE}")
        e(f"s_cmp_eq_u32 s{S_CG}, 7")
        e(f"s_cselect_b32 s{S_TYPE}, 2, s{S_TYPE}")
        e(f"s_cselect_b32 s{S_SB}, 14, s{S_SB}")
        e(f"s_cmp_eq_u32 s{S_CG}, 15")
        e(f"s_cselect_b32 s{S_TYPE}, 2, s{S_TYPE}")
        e(f"s_cselect_b32 s{S_SB}, 17, s{S_SB}")
        e(f"v_and_b32 v{V_SEG}, 31, v{V_LANE}")
        e(f"s_lshl_b32 s{S_T2}, s{S_SB}, 6")
        e(f"v_lshl_add_u32 v{V_PUB}, v{V_SEG}, 1, s{S_T2}")
        e(f"v_min_u32 v{V_XR}, {1278 - 128}, v{V_PUB}")
        e(f"v_mov_b32 v{V_XW}, {EPOCH_OFF}")
        e(f"s_lshl_b32 s{S_J1}, s{S_W}, 13")
        e(f"s_add_u32 s{S_J1}, s{S_J1}, {LDS_SCR}")
        e("s_waitcnt lgkmcnt(0)")
        for x in self.mk_srd(SX, K_X, X_BYTES):
            e(x)
        xt = {}
        cnt = {"n": 0}

        def x_piece(i, u):
            if u % 4 == 0:
                hh = u // 4
                if i < 4:
                    e(f"s_add_u32 m0, s{S_W4K}, {(i + 4*hh)*16384}")
                elif hh:
                    e(f"s_add_u32 m0, s{S_J1}, 4096")
                else:
                    e(f"s_mov_b32 m0, s{S_J1}")
                e(f"s_add_u32 s{S_T0}, s{S_XB}, s{S_KS+i}")
                if hh:
                    e(f"s_add_u32 s{S_T0}, s{S_T0}, 10240")
            xt[i, u] = e(f"buffer_load_dwordx4 v{V_X+u%4}, {srd(SX)}, s{S_T0} offen offset:{1024*(u%4)}{o.get('ntx', '')} lds")
            cnt["n"] += 1
        xq = [(i, u) for i in range(5) for u in range(8)]
        for _ in range(o.get("x_first", 4)):
            x_piece(*xq.pop(0))
        if o.get("ws_base"):
            e(f"s_add_u32 s{K_WS}, s{K_WS}, {o['ws_base']}")
            e(f"s_addc_u32 s{K_WS+1}, s{K_WS+1}, 0")
        for x in self.mk_srd(SWS, K_WS, WS_USED):
            e(x)
        EP = V_PRE + 4
        e(f"s_mov_b32 s{S_T2}, 0" if self.fused else f"s_lshl_b32 s{S_T2}, s{S_CG}, 7")
        e(f"buffer_load_dword v{EP}, v{V_XW}, {srd(SWS)}, s{S_T2} offen sc1")
        t_par = None
        for b in range(1 if o.get("order") == "SD" else 3):
            for k, ptr in enumerate((K_LRE, K_LIM, K_LDT)):
                va = V_XR if b else V_PUB
                t_par = e(f"global_load_ushort v{V_C+12*b+6+k}, v{va}, s[{ptr}:{ptr+1}] offset:{64*b}")
        if self.fused:
            for _ in range(o.get("job_after", 4)):
                x_piece(*xq.pop(0))
            if o.get("job_dq") != 2 and o.get("job_mode") != "dma":
                self.a_job_setup()
        if o.get("wpre", 1) >= 2:
            n2 = o.get("wpre_after", 0)
            for _ in range(n2):
                x_piece(*xq.pop(0))
            self.w_prefetch_early()
        for _ in range(o.get("x_second", 4) - o.get("wpre_after", 0) - (o.get("job_after", 4) if self.fused else 0)):
            x_piece(*xq.pop(0))
        if o.get("touch", 1) == 2:
            e(f"s_cmp_lg_u32 s{S_W}, 3")
            e("s_cbranch_scc1 K1_NOTOUCH")
            e(f"s_lshl_b32 s{S_T2}, s2, 7")
            e(f"s_add_u32 s{S_T3}, s{S_T2}, {1 << 21}")
            for ptr, both in ((K_BRE, 0), (K_BIM, 0), (K_WG, 1), (K_WU, 1), (K_WD, 1), (K_CRE, 0), (K_CIM, 0), (K_OUT, 1)):
                e(f"s_load_dword s95, s[{ptr}:{ptr+1}], s{S_T2}")
                if both:
                    e(f"s_load_dword s95, s[{ptr}:{ptr+1}], s{S_T3}")
            p.label("K1_NOTOUCH")
            e(f"s_cmp_lg_u32 s{S_W}, 2")
            e("s_cbranch_scc1 K1_NOTOUCH2")
            e(f"s_lshl_b32 s{S_T2}, s2, 7")
            for pg in range(12):
                e(f"s_load_dword s95, s[{K_WS}:{K_WS+1}], s{S_T2}")
                e(f"s_add_u32 s{S_T2}, s{S_T2}, {1 << 21}")
            e(f"s_load_dword s95, s[{K_DSK}:{K_DSK+1}], 0")
            e(f"s_mov_b32 s{S_T2}, {1 << 22}")
            e(f"s_load_dword s95, s[{K_OUT}:{K_OUT+1}], s{S_T2}")
            p.label("K1_NOTOUCH2")
        if o.get("touch", 1) == 1:
            for ptr, offs in ((K_BRE, [0]), (K_BIM, [0]), (K_WG, [0, 1 << 21]), (K_WU, [0, 1 << 21]), (K_WD, [0, 1 << 21]),
                              (K_CRE, [0]), (K_CIM, [0]), (K_X, [1 << 21])):
                for off in offs:
                    if off:
                        e(f"s_mov_b32 s{S_T2}, {off}")
                    e(f"s_load_dword s95, s[{ptr}:{ptr+1}], " + (f"s{S_T2}" if off else "0"))
        self.stamp(1)
        self.pro = dict(xq=xq, xt=xt, cnt=cnt, x_piece=x_piece, t_par=t_par, EP=EP)
        if o.get("order") not in ("DSD", "SD"):
            self.prologue2("S", o.get("npre", 8))

    def prologue2(self, kind, npre, stages=None):
        p, e, q, o = self.p, self.p.e, self.q, self.opt
        hm = f"s[{S_HM}:{S_HM+1}]"
        xq, xt, cnt = list(self.pro["xq"]), self.pro["xt"], self.pro["cnt"]
        x_piece, t_par, EP = self.pro["x_piece"], self.pro["t_par"], self.pro["EP"]
        cnt["n"] = 40 - len(xq)
        arg = 0 if kind == "S" else S_D1
        first = stages or [(kind, i, arg) for i in range(5)]
        if o.get("order") == "SD" and kind == "S":
            for b in (1, 2):
                for k, ptr in enumerate((K_LRE, K_LIM, K_LDT)):
                    t_par = e(f"global_load_ushort v{V_C+12*b+6+k}, v{V_XR}, s[{ptr}:{ptr+1}] offset:{64*b}")
        for k in range(1, 4):
            q(f"v_add_u32 v{V_OS+k}, {4*k*1280 - 1024*k}, v{V_OS+k}")
        h, c, t0, t1 = V_X + 4, V_SEG, V_X + 5, V_X + 6
        q(f"s_mov_b32 s{S_HM}, 0", f"s_mov_b32 s{S_HM+1}, -1", f"s_mov_b32 s{S_MASK}, 0xffff0000",
          f"v_lshrrev_b32 v{h}, 5, v{V_LANE}")
        q(f"v_and_b32 v{t0}, 15, v{V_LANE}", f"v_xor_b32 v{t1}, v{t0}, v{h}", f"v_lshlrev_b32 v{t1}, 4, v{t1}",
          f"v_lshl_add_u32 v{t1}, v{t0}, 8, v{t1}", f"v_bfe_u32 v{t0}, v{V_LANE}, 4, 1",
          f"v_lshlrev_b32 v{V_X+8}, 16, v{t0}", f"v_add_u32 v{V_X+8}, s{S_W4K}, v{V_X+8}",
          f"v_lshlrev_b32 v{t0}, 12, v{t0}")
        for s in range(8):
            q(f"v_xor_b32 v{self.AS+s}, {32*s}, v{t1}", f"v_add_u32 v{self.AX+s}, v{self.AS+s}, v{V_X+8}",
              f"v_add_u32 v{self.AS+s}, v{self.AS+s}, v{t0}")
        sm, sq = V_PRE, V_PRE + 1
        q(f"v_mov_b32 v{sm}, 0", f"v_mov_b32 v{sq}, 0", f"s_mov_b32 s{S_SPIN}, 0x3f803f80")
        q([f"s_cmp_ge_u32 s{S_W}, 2",
           f"s_cselect_b32 s{SS}, s{K_BIM}, s{K_BRE}", f"s_cselect_b32 s{SS+1}, s{K_BIM+1}, s{K_BRE+1}",
           f"s_cselect_b32 s{SF}, s{K_WU}, s{K_WG}", f"s_cselect_b32 s{SF+1}, s{K_WU+1}, s{K_WG+1}"],
          f"s_mov_b32 s{SS+2}, {SQ_BYTES}", f"s_mov_b32 s{SS+3}, 0x20000",
          f"s_mov_b32 s{SF+2}, {FF_BYTES}", f"s_mov_b32 s{SF+3}, 0x20000")
        for i in range(5):
            q(f"s_mul_i32 s{S_KF+i}, s{S_KS+i}, {128*3456//256}")
        q(f"s_and_b32 s{S_T2}, s{S_W}, 1",
          f"s_lshl_b32 s{S_SBROW}, s{S_SB}, 1", f"s_add_u32 s{S_SBROW}, s{S_SBROW}, s{S_T2}",
          f"s_mul_i32 s{S_SBROW}, s{S_SBROW}, {16*1280}",
          f"s_lshr_b32 s{S_T3}, s{S_W}, 1",
          f"s_lshl_b32 s{S_A2ROW}, s{S_MT}, 1", f"s_add_u32 s{S_A2ROW}, s{S_A2ROW}, s{S_T3}",
          f"s_mul_i32 s{S_A2ROW}, s{S_A2ROW}, {94*4096}",
          f"s_lshl_b32 s{S_T3}, s{S_T2}, 11", f"s_add_u32 s{S_A2ROW}, s{S_A2ROW}, s{S_T3}",
          f"s_lshl_b32 s{S_KD1}, s{S_D1}, 13", f"s_add_u32 s{S_KD1}, s{S_KD1}, s{S_A2ROW}",
          f"s_add_u32 s{S_KD2}, s{S_KD1}, 8192",
          f"s_lshl_b32 s{S_D1}, s{S_D1}, 7", f"s_mul_i32 s{S_T3}, s{S_T2}, {32*3456}",
          f"s_add_u32 s{S_D1}, s{S_D1}, s{S_T3}", f"s_add_u32 s{S_D2}, s{S_D1}, 128",
          f"s_mov_b32 s{S_GK2}, {fx(GK2)}", f"v_mov_b32 v{V_GK1}, {fx(GK1)}")
        if o.get("touch", 1) == 1:
            ws, out = f"s[{K_WS}:{K_WS+1}]", f"s[{K_OUT}:{K_OUT+1}]"
            q(f"s_mul_i32 s{S_T2}, s{S_MT}, {2*94*4096}", f"s_load_dword s95, {ws}, s{S_T2}",
              f"s_add_u32 s{S_T2}, s{S_T2}, {2*94*4096 - 4}", f"s_load_dword s95, {ws}, s{S_T2}")
            for off in (W2F_OFF, W2F_OFF + (1 << 21)):
                q(f"s_mov_b32 s{S_T2}, {off}", f"s_load_dword s95, {ws}, s{S_T2}")
            q(f"s_mul_i32 s{S_T2}, s2, {4*5120}", f"s_add_u32 s{S_T2}, s{S_T2}, {PART_OFF}", f"s_load_dword s95, {ws}, s{S_T2}",
              f"s_mul_i32 s{S_T2}, s{S_MT}, {128*2560}", f"s_load_dword s95, {out}, s{S_T2}",
              f"s_add_u32 s{S_T2}, s{S_T2}, {128*2560 - 4}", f"s_load_dword s95, {out}, s{S_T2}",
              f"s_load_dword s95, s[{K_DSK}:{K_DSK+1}], 0")
        q(f"v_lshrrev_b32 v{t0}, 3, v{V_LANE}", f"v_mul_u32_u24 v{t0}, 3456, v{t0}",
          f"v_bfe_u32 v{t1}, v{V_LANE}, 4, 1", f"v_lshlrev_b32 v{t1}, 2, v{t1}",
          f"v_and_b32 v{V_OF}, 7, v{V_LANE}", f"v_xor_b32 v{V_OF}, v{V_OF}, v{t1}",
          f"v_lshl_add_u32 v{V_OF}, v{V_OF}, 4, v{t0}")
        for k in range(1, 4):
            q(f"v_add_u32 v{V_OF+k}, {k*(8*3456 - 1024)}, v{V_OF}")
        q(f"v_bfe_u32 v{t0}, v{V_LANE}, 2, 2", f"v_lshl_add_u32 v{t1}, v{h}, 3, v{t0}",
          f"v_lshlrev_b32 v{V_TR}, 7, v{t1}", f"v_lshrrev_b32 v{t0}, 1, v{t0}",
          f"v_lshl_add_u32 v{V_TR}, v{t0}, 6, v{V_TR}", f"v_bfe_u32 v{t0}, v{V_LANE}, 4, 1",
          f"v_lshl_add_u32 v{V_TR}, v{t0}, 5, v{V_TR}", f"v_and_b32 v{t0}, 3, v{V_LANE}",
          f"v_lshl_add_u32 v{V_TR}, v{t0}, 3, v{V_TR}", f"v_xor_b32 v{V_TR+1}, 64, v{V_TR}",
          f"v_add_u32 v{V_TR+2}, 0x10000, v{V_TR}", f"v_add_u32 v{V_TR+3}, 0x10000, v{V_TR+1}")
        q(f"v_lshrrev_b32 v{t1}, 3, v{c}", f"v_lshl_add_u32 v{t1}, v{t1}, 2, v{t0}",
          f"v_lshl_add_u32 v{V_STA}, v{h}, 4, v{t1}", f"v_lshlrev_b32 v{V_STA}, 4, v{V_STA}",
          f"v_bfe_u32 v{t0}, v{c}, 2, 1", f"v_lshl_add_u32 v{V_STA}, v{t0}, 10, v{V_STA}",
          f"v_lshl_add_u32 v{V_X+7}, v{t0}, 4, v{t1}", f"v_lshlrev_b32 v{V_X+7}, 3, v{V_X+7}",
          f"v_cndmask_b32 v{V_X+7}, v{V_X+7}, v{V_XW}, {hm}" if not self.fused else
          [f"s_lshl_b32 s{S_T2}, s{S_W}, 8", f"s_add_u32 s{S_T2}, s{S_T2}, {STL}", f"v_add_u32 v0, s{S_T2}, v{V_X+7}"])
        q(f"v_lshlrev_b32 v{V_LBO+1}, 4, v{c}", f"v_sub_u32 v{t0}, s{S_MT}, v{h}",
          f"v_lshl_add_u32 v{V_LBO}, v{t0}, 9, v{V_LBO+1}",
          f"s_add_u32 s{S_T2}, s{S_MT}, 1", f"s_lshl_b32 s{S_T2}, s{S_T2}, 9",
          [f"s_cmp_eq_u32 s{S_W}, 3", f"s_cselect_b32 s{S_T2}, s{S_T2}, {OOB}"], f"v_add_u32 v{t0}, s{S_T2}, v{V_LBO+1}",
          f"v_mov_b32 v{t1}, {OOB}", f"v_cndmask_b32 v{V_PUB}, v{t1}, v{t0}, {hm}",
          f"v_and_b32 v{V_XR}, 15, v{c}", f"v_mul_u32_u24 v{V_XR}, 120, v{V_XR}", f"v_lshrrev_b32 v{t0}, 4, v{c}",
          f"v_lshl_add_u32 v{V_XR}, v{t0}, 13, v{V_XR}", f"v_add_u32 v{V_XR}, {XCH}, v{V_XR}",
          f"v_mul_u32_u24 v{V_TW}, {16*144}, v{h}", f"v_lshl_add_u32 v{V_TW}, v{c}, 2, v{V_TW}",
          f"v_add_u32 v{V_TW}, s{S_J1}, v{V_TW}",
          f"v_and_b32 v{t0}, 15, v{V_LANE}", f"v_mul_u32_u24 v{t0}, 144, v{t0}",
          f"v_lshrrev_b32 v{t1}, 4, v{V_LANE}", f"v_lshl_add_u32 v{V_TW+1}, v{t1}, 4, v{t0}",
          f"v_add_u32 v{V_TW+1}, s{S_J1}, v{V_TW+1}", f"v_lshlrev_b32 v{V_TW+2}, 4, v{V_LANE}",
          f"s_lshl_b32 s{S_T2}, s{S_W}, 1", f"v_add_u32 v{V_SEG}, s{S_T2}, v{h}",
          f"v_lshl_add_u32 v{V_XR}, v{V_SEG}, 3, v{V_XR}")
        self.fill.append(lambda: p.wait(t_par))
        U = RAW + 152
        q(f"v_readfirstlane_b32 s{S_EPOCH}, v{EP}")
        if o.get("job_dq") == 2:
            self.fill.append(self.a_job_setup)
        q(*self.ssm_consts(0, V_C + 6, U))
        q(f"s_add_u32 s{S_EPOCH}, s{S_EPOCH}, 1")
        self.zero_row(0, U)
        rd = {}

        def x_read(i, half):
            def f():
                p.wait(xt[i, 7])
                for s in range(4 * half, 4 * half + 4):
                    r = RAW + 32 * i + 4 * s
                    rd[i, s] = e(f"ds_read_b128 v[{r}:{r+3}], v{self.AX+s} offset:{i*16384 if i < 4 else 0}")
            return f
        lag = o.get("x_lag", 9)
        for i in range(5):
            self.fill.append(("t", lambda i=i: cnt["n"] >= min(40, 8 * i + 8 + lag)))
            if i == 4:
                if o.get("job_dq"):
                    self.fill.append(("t", lambda: hasattr(self, "job_tok") and not any(f in self.dq for f in self.job_ld)))
                for s in range(8):
                    q(f"v_add_u32 v{self.AX+s}, s{S_J1}, v{self.AS+s}")
            self.fill.append(x_read(i, 0))
            self.fill.append(x_read(i, 1))
            for s in range(8):
                self.fill.append(lambda i=i, s=s: p.wait(rd[i, s]))
                for k in range(4 if (i == 4 or not o.get("dbg_nostats")) else 1):
                    r = RAW + 32 * i + 4 * s + k
                    q(f"v_dot2c_f32_bf16 v{sm}, s{S_SPIN}, v{r}", f"v_dot2c_f32_bf16 v{sq}, v{r}, v{r}")
            if i < 4:
                self.fill.append(lambda i=i: self.issue_stage(i, *first[i]))
            if i == 3:
                self.fill.append(lambda: self.issue_stage(4, *first[4]))
        if o.get("dbg_xonly"):
            while xq:
                x_piece(*xq.pop(0))
            p.wait_all(lgkm=False)
            self.stamp(1)
        self.pull(o.get("pre_slots", 150))
        while xq:
            x_piece(*xq.pop(0))
            self.pull(o.get("x_gap", 14))
        left = o.get("pro_dma", 99)
        while self.fill:
            if left > 0 and self.dq:
                self.dma()
                left -= 1
            self.pull(o.get("x_gap2", o.get("x_gap", 14)))
        self.stamp(2)
        u = V_X + 8
        e(f"v_mov_b32 v{u}, v{sm}"); e(f"v_mov_b32 v{u+1}, v{sq}")
        e(f"v_permlane32_swap_b32 v{sm}, v{u}"); e(f"v_permlane32_swap_b32 v{sq}, v{u+1}")
        e(f"v_add_f32 v{sm}, v{sm}, v{u}"); e(f"v_add_f32 v{sq}, v{sq}, v{u+1}")
        e(f"v_mul_f32 v{sm}, {fx(1/640)}, v{sm}"); e(f"v_mul_f32 v{sq}, {fx(1/640)}, v{sq}")
        e(f"v_fma_f32 v{sq}, -v{sm}, v{sm}, v{sq}")
        e(f"v_max_f32 v{sq}, 0, v{sq}")
        e(f"v_cvt_pk_bf16_f32 v{u}, v{sq}, v{sm}")
        e(f"v_lshlrev_b32 v{sq}, 16, v{u}"); e(f"v_and_b32 v{sm}, s{S_MASK}, v{u}")
        e(f"v_add_f32 v{sq}, {fx(1e-5)}, v{sq}")
        e(f"v_cvt_pk_bf16_f32 v{sq}, v{sq}, v{sq}"); e(f"v_lshlrev_b32 v{sq}, 16, v{sq}")
        e(f"v_sqrt_f32 v{sq}, v{sq}")
        e(f"s_lshl_b32 s{S_T2}, s{S_MT}, 2"); e(f"s_add_u32 s{S_T2}, s{S_T2}, s{S_W}")
        e(f"v_cvt_pk_bf16_f32 v{sq}, v{sq}, v{sq}"); e(f"v_lshlrev_b32 v{sq}, 16, v{sq}")
        e(f"v_rcp_f32 v{u}, v{sq}")
        e(f"s_lshl_b32 s{S_T2}, s{S_T2}, 8"); e(f"s_add_u32 s{S_T2}, s{S_T2}, {STATS_OFF}")
        e(f"v_mul_f32 v{u+2}, -v{sm}, v{u}")
        e(f"v_mov_b32 v{u+1}, v{u}")
        e(f"v_mov_b32 v{u+3}, v{u+2}")
        e(f"s_cmp_eq_u32 s{S_CG}, 0"); e(f"s_cselect_b32 s{S_T2}, s{S_T2}, {OOB}")
        if not self.fused:
            e(f"v_mov_b32 v{V_X+4}, v{u}"); e(f"v_mov_b32 v{V_X+5}, v{u+2}")
            e(f"buffer_store_dwordx2 v[{V_X+4}:{V_X+5}], v{V_X+7}, {srd(SWS)}, s{S_T2} offen{self.wt}")
        for k in range(4 * npre):
            r = RAW + k
            t = V_X + 2 * (k % 2)
            e(f"v_lshlrev_b32 v{t}, 16, v{r}"); e(f"v_and_b32 v{t+1}, s{S_MASK}, v{r}")
            e(f"v_pk_fma_f32 v[{t}:{t+1}], v[{t}:{t+1}], v[{u}:{u+1}], v[{u+2}:{u+3}]")
            e(f"v_cvt_pk_bf16_f32 v{r}, v{t}, v{t+1}")
            e(f"v_accvgpr_write_b32 a{XN+k}, v{r}")
            if k % o.get("pre_dma", 4) == o.get("pre_dma", 4) - 1:
                self.dma()
        done = []
        for k in range(4 * npre, 160 if kind == "SD" else 0):
            r, t = RAW + k, V_X + 2 * (k % 2)
            self.jit += [f"v_lshlrev_b32 v{t}, 16, v{r}", f"v_and_b32 v{t+1}, s{S_MASK}, v{r}",
                         f"v_fma_f32 v{t}, v{t}, v{u}, v{u+2}", f"v_fma_f32 v{t+1}, v{t+1}, v{u}, v{u+2}",
                         f"v_cvt_pk_bf16_f32 v{r}, v{t}, v{t+1}", f"v_accvgpr_write_b32 a{XN+k}, v{r}"]
        for k in range(4 * npre, 0 if kind == "SD" else 160, 2):
            t = V_X + 4 * ((k // 2) % 2)
            grp = done
            for i in range(2):
                grp = grp + [f"v_lshlrev_b32 v{t+2*i}, 16, v{RAW+k+i}", f"v_and_b32 v{t+2*i+1}, s{S_MASK}, v{RAW+k+i}"]
            for i in range(2):
                grp.append(f"v_pk_fma_f32 v[{t+2*i}:{t+2*i+1}], v[{t+2*i}:{t+2*i+1}], v[{u}:{u+1}], v[{u+2}:{u+3}]")
            self.norm.append(grp)
            done = [f"v_cvt_pk_bf16_f32 v{RAW+k+i}, v{t+2*i}, v{t+2*i+1}" for i in range(2)]
            done += [f"v_accvgpr_write_b32 a{XN+k+i}, v{RAW+k+i}" for i in range(2)]
        if done:
            self.norm.append(done)
        if kind != "SD":
            for s in range(8):
                e(f"v_add_u32 v{V_AS+8+s}, 0x10000, v{V_AS+s}")
        self.stamp(3)

    def zero_row(self, b, z):
        self.q(f"v_mov_b32 v{z}, 0", f"v_mov_b32 v{z+1}, s{S_EPOCH}", f"v_mov_b32 v{z+2}, 0", f"v_mov_b32 v{z+3}, s{S_EPOCH}",
               *self.ex_base(S_T2, b),
               f"buffer_store_dwordx4 v[{z}:{z+3}], v{V_LBO+1}, {srd(SWS)}, s{S_T2} offen sc1")

    def job_setup(self, kind):
        def q(*texts):
            for t in texts:
                self.p.e(t)
        vo = V_JW if kind == "W" else self.vjc
        q(f"v_lshrrev_b32 v{vo}, 3, v{V_LANE}", f"v_mul_u32_u24 v{vo}, 1280, v{vo}",
          f"v_and_b32 v{vo+1}, 7, v{V_LANE}", f"v_lshl_add_u32 v{vo}, v{vo+1}, 4, v{vo}")
        if kind == "W":
            for k in range(1, 4):
                q(f"v_add_u32 v{vo+k}, {k*(8*1280 - 1024)}, v{vo}")
            q(*self.mk_srd(SA1, K_WD, FF_BYTES),
              f"s_lshl_b32 s{S_JOB}, s{S_SB}, 4", f"s_add_u32 s{S_JOB}, s{S_JOB}, s{S_MT}")
        else:
            q(f"v_add_u32 v{vo+1}, {8*1280 - 1024}, v{vo}")
            q(*self.mk_srd(SA1, K_CRE, SQ_BYTES), *self.mk_srd(SA2, K_CIM, SQ_BYTES),
              f"s_mov_b32 s{S_JOB}, s{S_MT}")
        q(f"s_lshl_b32 s{S_JOB}, s{S_JOB}, 2", f"s_add_u32 s{S_JOB}, s{S_JOB}, s{S_W}")

    def job_index(self, kind, i):
        e = self.p.e
        e(f"s_add_u32 s{S_J2}, s{S_JOB}, {64 * i + (292 if self.fused else 0)}")
        e(f"s_mul_hi_u32 s{S_T1}, s{S_J2}, 0x1999999a")
        e(f"s_mul_i32 s{S_R}, s{S_T1}, 10")
        e(f"s_sub_u32 s{S_R}, s{S_J2}, s{S_R}")

    def job_source(self, kind, i):
        e = self.p.e
        self.job_index(kind, i)
        e(f"s_mul_i32 s{S_T0}, s{S_T1}, {(32 if kind == 'W' else 16) * 1280}")
        e(f"s_lshl_b32 s{S_XB}, s{S_R}, 7")
        e(f"s_add_u32 s{S_T0}, s{S_T0}, s{S_XB}")
        e(f"s_cmp_lt_u32 s{S_J2}, {540 if kind == 'W' else 400}")
        e(f"s_cselect_b32 s{S_T0}, s{S_T0}, {OOB}")

    def w_job(self, R):
        p, q = self.p, self.q
        st = {}
        D = R + 4
        q(f"v_lshrrev_b32 v{R}, 5, v{V_LANE}", f"v_lshlrev_b32 v{R}, 4, v{R}",
          f"v_bfe_u32 v{R+1}, v{V_LANE}, 2, 3", f"v_add_u32 v{R}, v{R}, v{R+1}",
          f"v_lshlrev_b32 v{R}, 7, v{R}", f"v_and_b32 v{R+1}, 3, v{V_LANE}",
          f"v_lshl_add_u32 v{R}, v{R+1}, 3, v{R}", f"v_add_u32 v{R}, s{S_J1}, v{R}")
        ad, cb = S_JOB, S_R
        q(f"s_lshl_b32 s{cb}, s{cb}, 2", f"s_mul_hi_u32 s{ad}, s{cb}, 0x33333334", f"s_mul_i32 s{S_XB}, s{ad}, 5",
          f"s_sub_u32 s{cb}, s{cb}, s{S_XB}", f"s_mul_i32 s{ad}, s{ad}, 94", f"s_add_u32 s{ad}, s{ad}, s{S_T1}",
          f"s_mul_i32 s{ad}, s{ad}, 5", f"s_add_u32 s{ad}, s{ad}, s{cb}", f"s_lshl_b32 s{ad}, s{ad}, 10",
          f"s_add_u32 s{ad}, s{ad}, {W2F_OFF}",
          [f"s_cmp_lt_u32 s{S_J2}, 540", f"s_cselect_b32 s{ad}, s{ad}, {OOB}"])
        self.fill.append(("t", lambda: 100 in self.stage_tok and p.vdone >= self.stage_tok[100][1]))
        for f in range(4):
            def rd(f=f):
                p.wait(self.stage_tok[100])
                p.e(f"ds_read_b64_tr_b16 v[{D+4*f}:{D+4*f+1}], v{R} offset:{32*f}")
                st[f] = p.e(f"ds_read_b64_tr_b16 v[{D+4*f+2}:{D+4*f+3}], v{R} offset:{32*f + 1024}")
            rd.cost = 2
            self.fill.append(rd)
        self.lag(5)
        for f in range(4):
            self.fill.append(lambda f=f: p.wait(st[f]))
            self.fill.append(lambda f=f: setattr(self, "job_store", p.e(
                f"buffer_store_dwordx4 v[{D+4*f}:{D+4*f+3}], v{V_TW+2}, {srd(SWS)}, s{ad} offen{self.wt}")))
            if f < 3:
                q([f"s_cmp_eq_u32 s{cb}, {4 - f}", f"s_cselect_b32 s{S_XB}, {93*5120}, 0"],
                  f"s_add_u32 s{ad}, s{ad}, s{S_XB}", f"s_add_u32 s{ad}, s{ad}, 1024")

    def w2f_addr(self, dst, b16, kstep):
        e = self.p.e
        e(f"s_mul_hi_u32 s{S_D1}, s{b16}, 0x33333334")
        e(f"s_mul_i32 s{S_D2}, s{S_D1}, 5")
        e(f"s_sub_u32 s{S_D2}, s{b16}, s{S_D2}")
        e(f"s_mul_i32 s{S_D1}, s{S_D1}, 94")
        e(f"s_add_u32 s{S_D1}, s{S_D1}, s{kstep}")
        e(f"s_mul_i32 s{S_D1}, s{S_D1}, 5")
        e(f"s_add_u32 s{S_D1}, s{S_D1}, s{S_D2}")
        e(f"s_lshl_b32 s{dst}, s{S_D1}, 10")
        e(f"s_add_u32 s{dst}, s{dst}, {W2F_OFF}")

    def job_finish(self, kind, rounds, R):
        p, e = self.p, self.p.e
        while self.dq:
            self.dma()
        if kind == "W":
            e(f"v_lshrrev_b32 v{R}, 5, v{V_LANE}"); e(f"v_lshlrev_b32 v{R}, 4, v{R}")
            e(f"v_bfe_u32 v{R+1}, v{V_LANE}, 2, 3"); e(f"v_add_u32 v{R}, v{R}, v{R+1}")
            e(f"v_lshlrev_b32 v{R}, 7, v{R}"); e(f"v_and_b32 v{R+1}, 3, v{V_LANE}")
            e(f"v_lshl_add_u32 v{R}, v{R+1}, 3, v{R}")
        else:
            e(f"v_and_b32 v{R}, 15, v{V_LANE}"); e(f"v_lshlrev_b32 v{R}, 7, v{R}")
            e(f"v_lshrrev_b32 v{R+1}, 4, v{V_LANE}"); e(f"v_lshl_add_u32 v{R}, v{R+1}, 3, v{R}")
            e(f"s_mov_b32 s{S_KS}, 0x05040100"); e(f"s_mov_b32 s{S_KS+1}, 0x07060302")
        e(f"v_add_u32 v{R}, s{S_W4K}, v{R}")
        e(f"v_add_u32 v{R+1}, 0x10000, v{R}")
        for i in range(rounds):
            n = 15 + i
            slot = n % 8
            va, off = R + slot // 4, (slot % 4) * 16384
            D = R + 4 + 32 * (i % 2)
            p.wait(self.stage_tok[n])
            tk = []
            for f in range(4):
                if kind == "W":
                    e(f"ds_read_b64_tr_b16 v[{D+4*f}:{D+4*f+1}], v{va} offset:{off + 32*f}")
                    tk.append(e(f"ds_read_b64_tr_b16 v[{D+4*f+2}:{D+4*f+3}], v{va} offset:{off + 32*f + 1024}"))
                else:
                    e(f"ds_read_b64 v[{D+16+4*f}:{D+16+4*f+1}], v{va} offset:{off + 32*f}")
                    tk.append(e(f"ds_read_b64 v[{D+16+4*f+2}:{D+16+4*f+3}], v{va} offset:{off + 32*f + 2048}"))
            self.job_index(kind, i)
            e(f"s_lshl_b32 s{S_R}, s{S_R}, 2")
            if kind == "C":
                e(f"s_add_u32 s{S_R}, s{S_R}, 54")
                self.w2f_addr(S_T0, S_T1, S_R)
                e(f"s_cmp_lt_u32 s{S_J2}, 400")
                e(f"s_cselect_b32 s{S_T0}, s{S_T0}, {OOB}")
            for f in range(4):
                if kind == "W":
                    self.w2f_addr(S_T0, S_KD2, S_T1)
                    e(f"s_cmp_lt_u32 s{S_J2}, 540")
                    e(f"s_cselect_b32 s{S_T0}, s{S_T0}, {OOB}")
                    e(f"s_add_u32 s{S_KD2}, s{S_KD2}, 1")
                    p.wait(tk[f])
                else:
                    p.wait(tk[f])
                    re, im = D + 16 + 4 * f, D + 16 + 4 * f + 2
                    for k in range(2):
                        e(f"v_perm_b32 v{D+4*f+2*k}, v{im+k}, v{re+k}, s{S_KS}")
                        e(f"v_perm_b32 v{D+4*f+2*k+1}, v{im+k}, v{re+k}, s{S_KS+1}")
                e(f"buffer_store_dwordx4 v[{D+4*f}:{D+4*f+3}], v{V_TW+2}, {srd(SWS)}, s{S_T0} offen{self.wt}")
                if kind == "C" and f < 3:
                    e(f"s_add_u32 s{S_T0}, s{S_T0}, 5120")

    def w_prefetch(self):
        e = self.p.e
        t = V_PRE + 2
        e(f"v_lshrrev_b32 v{t}, 1, v{V_LANE}")
        e(f"v_mul_u32_u24 v{t}, 3456, v{t}")
        e(f"v_and_b32 v{t+1}, 1, v{V_LANE}")
        e(f"v_lshl_add_u32 v{t}, v{t+1}, 7, v{t}")
        e(f"s_and_b32 s{S_T2}, s{S_W}, 1")
        e(f"s_mul_i32 s{S_T2}, s{S_T2}, {-12*3456 & 0xffffffff:#x}")
        e(f"s_mul_i32 s{S_T3}, s{S_MT}, {40*3456}")
        e(f"s_add_u32 s{S_T2}, s{S_T2}, s{S_T3}")
        e(f"s_add_u32 s{S_T2}, s{S_T2}, s{S_D1}")
        e("s_mov_b32 exec_hi, 0xff")
        e(f"buffer_load_dword v{t+1}, v{t}, {srd(SF)}, s{S_T2} offen")
        e("s_mov_b64 exec, -1")

    def w_prefetch_early(self):
        e = self.p.e
        b = S_M2
        e(f"s_cmp_ge_u32 s{S_W}, 2")
        e(f"s_cselect_b32 s{b}, s{K_WU}, s{K_WG}"); e(f"s_cselect_b32 s{b+1}, s{K_WU+1}, s{K_WG+1}")
        e(f"s_and_b32 s{S_T2}, s{S_W}, 1")
        e(f"s_lshl_b32 s{S_T3}, s{S_MT}, 1")
        e(f"s_add_u32 s{S_T2}, s{S_T2}, s{S_T3}")
        e(f"s_mul_i32 s{S_T2}, s{S_T2}, {20*3456}")
        e(f"s_min_u32 s{S_T3}, s{S_D1}, 25")
        e(f"s_lshl_b32 s{S_T3}, s{S_T3}, 7")
        e(f"s_add_u32 s{S_T2}, s{S_T2}, s{S_T3}")
        e(f"s_add_u32 s{b}, s{b}, s{S_T2}"); e(f"s_addc_u32 s{b+1}, s{b+1}, 0")
        if self.opt["wpre"] == 2:
            t = V_PRE + 2
            e(f"v_lshrrev_b32 v{t}, 1, v{V_LANE}")
            e(f"v_mul_u32_u24 v{t}, 3456, v{t}")
            e(f"v_and_b32 v{t+1}, 1, v{V_LANE}")
            e(f"v_lshl_add_u32 v{t}, v{t+1}, 7, v{t}")
            e("s_mov_b32 exec_hi, 0xff")
            e(f"global_load_dword v{t+1}, v{t}, s[{b}:{b+1}]")
            e("s_mov_b64 exec, -1")
        else:
            for k in range(self.opt.get("wpre_n", 20)):
                e(f"s_load_dword s{S_SPIN}, s[{b}:{b+1}], {3456*(k % 20) + 128*(k // 20)}")

    def warm_k2(self):
        if not self.opt.get("warm_k2", 1):
            return
        e = self.p.e
        e(f"s_getpc_b64 s[{S_T0}:{S_T1}]")
        self.p.label("K1_PC2")
        e(f"s_add_u32 s{S_T0}, s{S_T0}, gemm2_kernel-K1_PC2")
        e(f"s_addc_u32 s{S_T1}, s{S_T1}, 0")
        e(f"s_lshr_b32 s{S_T2}, s2, 3")
        e(f"s_lshl_b32 s{S_T2}, s{S_T2}, 2")
        e(f"s_add_u32 s{S_T2}, s{S_T2}, s{S_W}")
        e(f"s_lshl_b32 s{S_T2}, s{S_T2}, 7")
        e(f"s_min_u32 s{S_T3}, s{S_T2}, TEXT_END-gemm2_kernel-4")
        e(f"s_min_u32 s{S_T2}, s{S_T2}, 1276")
        e(f"v_mov_b32 v{V_PRE}, s{S_T3}")
        e(f"v_mov_b32 v{V_PRE+1}, s{S_T2}")
        e("s_mov_b64 exec, 1")
        e(f"global_load_dword v{V_PRE+2}, v{V_PRE}, s[{S_T0}:{S_T1}]")
        e(f"global_load_dword v{V_PRE+3}, v{V_PRE+1}, s[{K_DSK}:{K_DSK+1}]")
        e("s_mov_b64 exec, -1")

    def finish(self, k):
        p, e = self.p, self.p.e
        e(f"s_lshl_b32 s{S_T2}, s{S_CG}, 7")
        e(f"s_add_u32 s{S_T2}, s{S_T2}, {EPOCH_OFF}")
        e(f"s_cmp_eq_u32 s{S_MT}, 15")
        e(f"s_cselect_b32 s{S_T2}, s{S_T2}, {OOB}")
        e(f"v_mov_b32 v0, s{S_EPOCH}")
        e(f"buffer_store_dword v0, off, {srd(SWS)}, s{S_T2} sc1")
        self.spin_out = True
        self.stamp_out(k)
        e("s_endpgm")

    def snapshot(self):
        p = self.p
        return (p.vq, p.vdone, p.lq, p.ldone, dict(self.stage_tok), list(self.pre_barrier), self.nbar, self.mf,
                set(self.seen), list(self.fill), list(self.dq), list(self.norm), self.vgap, list(self.jit),
                dict(self.auto) if self.auto else None)

    def restore(self, s):
        p = self.p
        (p.vq, p.vdone, p.lq, p.ldone, st, pb, self.nbar, self.mf, seen, fill, dq, norm, self.vgap, jit, auto) = s
        self.jit, self.auto = list(jit), (dict(auto) if auto else None)
        self.stage_tok, self.pre_barrier, self.seen = dict(st), list(pb), set(seen)
        self.fill, self.dq, self.norm = list(fill), list(dq), list(norm)

    def run(self, stages, frags, hooks, wjob=False):
        plan = {n: (lambda n=n: self.issue_stage(n + 6, *stages[n + 6])) for n in range(len(stages) - 6)}
        if stages[5][0] == "F" and self.opt.get("wpre", 1) == 1:
            self.dq.append(self.w_prefetch)
        self.issue_stage(5, *stages[5])
        if self.fused and self.opt.get("job_mode") == "dma":
            self.dq.extend(self.job_ld)
        if wjob and not self.fused:
            self.job_setup("W")
            self.issue_stage(100, "W", 0, 0)
        self.gemm(frags, plan, hooks)
        return plan

    def build(self):
        p, e, o = self.p, self.p.e, self.opt
        self.prologue()
        e(f"s_cmp_eq_u32 s{S_TYPE}, 2")
        e("s_cbranch_scc1 K1_TYPE_C")
        e(f"s_cmp_eq_u32 s{S_TYPE}, 1")
        e("s_cbranch_scc1 K1_TYPE_B")
        snap = self.snapshot()
        g1, g2 = o.get("lb_issue", 80 + 80), o.get("lb_check", 80 + 100)
        head = [("S", i, 0) for i in range(5)] + [("F", i, S_D1) for i in range(10)]
        for typ in "AB":
            if typ == "B":
                p.label("K1_TYPE_B")
                self.restore(snap)
            m0 = self.mf

            def start_ssm(typ=typ, m0=m0):
                self.stamp(4)
                if typ == "B":
                    self.job_setup("C")
                self.ssm_reduce(0, ACC_S, 188)
                if typ == "A":
                    self.w_job(188)
                self.ssm_finish(0, ACC_S, 188, lambda: self.mf - m0 >= g1, lambda: self.mf - m0 >= g2, typ)

            def at_d2():
                self.stamp(5)
                self.ffn_epilogue(ACC_D1, S_KD1)
            frags = self.s_frags(0, ACC_S) + self.d_frags(5, ACC_D1)
            if typ == "A":
                self.run(head + [("F", i, S_D2) for i in range(10)], frags + self.d_frags(15, ACC_D2),
                         {81: start_ssm, 240: at_d2}, True)
                self.stamp(6)
                self.flush()
                self.warm_k2()
                self.ffn_tail(ACC_D2, S_KD2)
                self.stamp(7)
            else:
                stages = head + [("C", i, 0) for i in range(7)]
                self.run(stages[:21], frags, {81: start_ssm})
                self.stamp(5)
                self.mf += 1000
                self.barrier()
                self.issue_stage(21, *stages[21])
                while self.dq:
                    self.dma()
                self.flush()
                self.ffn_tail(ACC_D1, S_KD1)
                self.stamp(6)
                self.job_finish("C", 7, ACC_D2 - 4)
                self.stamp(7)
            self.finish(8)
        p.label("K1_TYPE_C")
        self.restore(snap)
        stages = [("S", i % 5, i // 5) for i in range(15)]
        frags = self.s_frags(0, 16) + self.s_frags(5, 48) + self.s_frags(10, 80)
        m0 = self.mf

        def c1():
            self.stamp(4)
            self.ssm_reduce(0, 16, 152)
            for b in (1, 2):
                self.q(*self.ssm_consts(b, V_C + 12 * b + 6, 112))
                self.zero_row(b, 112)

        def c2():
            self.stamp(5)
            self.ssm_reduce(1, 48, 152)
            self.ssm_finish(0, 16, 112, None, lambda: self.mf - m0 >= 215, "C0")
        self.run(stages, frags, {81: c1, 161: c2})
        self.stamp(6)
        self.mf += 1000
        self.flush()
        self.ssm_reduce(2, 80, 152)
        self.ssm_finish(1, 48, 112, None, None, "C1")
        self.flush()
        self.stamp(7)
        self.ssm_finish(2, 80, 112, None, None, "C2")
        self.flush()
        self.finish(8)
        self.slow_paths()
        p.label("K1_END")
        e("s_endpgm")
        p.fix_hazards()
        return p


K1_DESC = """
.amdhsa_kernel proj_kernel
  .amdhsa_next_free_vgpr 512
  .amdhsa_next_free_sgpr 102
  .amdhsa_accum_offset 256
  .amdhsa_group_segment_fixed_size 0
  .amdhsa_kernarg_size 128
  .amdhsa_user_sgpr_count 2
  .amdhsa_user_sgpr_kernarg_segment_ptr 1
  .amdhsa_system_sgpr_workgroup_id_x 1
  .amdhsa_float_denorm_mode_32 3
.end_amdhsa_kernel
"""
```

```python
from k1 import *

NAME = "parallel_sum__ssm_conv_s5__glu_gated_geglu__prompt_kernel"
S_WB = 28
S_D2X, S_R2 = 100, 101
S_A, S_OOB, S_XO, S_OO, S_PO, S_PI, S_N, S_A0, S_TG, S_DN, S_DIV = 68, 69, 70, 71, 72, 73, 74, 75, 76, 80, 81
S_A1 = 82
SD, SO = SS, SF
V_L16, V_L16B, V_WA, V_PK = 3, 4, 5, 13
ACC1, ACC2, RING = 16, 96, 176
V_OA, V_LA, V_T = 240, 245, 250
WMAP = [192 + 4 * k for k in range(16)] + [4 * k for k in range(40)] + [160 + 4 * k for k in range(4)]
SLOT5 = 176
S_TB, S_WB0 = 24, 27
ORDERS = {"k0": [0, 1, 4, 5, 8, 9, 2, 3, 6, 7, 10, 11], "w0": [1, 2, 7, 8, 9, 10, 11, 0, 3, 4, 5, 6],
          "nat": list(range(12)), "w3": [0, 1, 2, 5, 6, 7, 8, 3, 4, 9, 10, 11]}


def nib(name, half):
    return sum(v << (4 * k) for k, v in enumerate(ORDERS[name][8 * half:8 * half + 8]))


MIXED = False


def rel(dst, i):
    if MIXED:
        return f"s_bfe_u32 s{dst}, s{S_TB + i // 4}, {(8 << 16) | (8 * (i % 4)):#x}"
    return f"s_bfe_u32 s{dst}, s{S_TB + i // 8}, {(4 << 16) | (4 * (i % 8)):#x}"


def mixed_lists():
    out = {}
    for kh in range(2):
        ffn = list(range(27 * kh, 27 * kh + 27))
        early = [k for k in ffn if k % 4 < 2]
        late = [k for k in ffn if k % 4 >= 2] + list(range(54 + 20 * kh, 74 + 20 * kh))
        assert len(early) == 14
        rest = early[12:] + late
        for w in range(4):
            n = 9 if w < 3 else 8
            out[kh, w] = early[3 * w:3 * w + 3] + rest[:n] + ([0] if w == 3 else [])
            rest = rest[n:]
        assert not rest
    return out


def slot(g, f):
    k = g % 5
    return f"v[{RING+16*k+4*f}:{RING+16*k+4*f+3}]" if k < 4 else f"a[{SLOT5+4*f}:{SLOT5+3+4*f}]"


STEPS_MIXED = [(0, i) for i in range(3)] + [(1, i) for i in range(3)] + [(0, i) for i in range(3, 12)] + \
              [(1, i) for i in range(3, 12)]


class Fused(K1):
    def __init__(self, opt):
        super().__init__(opt)
        self.name = NAME
        self.fused = True
        self.polls = []
        self.heads = []
        self.JA = RAW + 140

    def stats_to_lds(self):
        e = self.p.e
        e(f"ds_write2_b32 v0, v{V_X+8}, v{V_X+10} offset1:1")
        e(f"v_add_u32 v0, 0x1000, v{V_TW+2}")
        T = {"DSD": 206, "SD": 60}.get(self.opt.get("order"), V_X) if not getattr(self, "is_c", False) else V_X
        for x in (f"v_mov_b32 v{T+4}, 0", f"v_min_u32 v{T+5}, 6, v{V_SEG}", f"v_sub_u32 v{T+5}, v{T+5}, v{V_SEG}",
                  f"v_lshl_add_u32 v{T+5}, v{T+5}, 3, v{V_XR}", f"ds_write2_b32 v{T+5}, v{T+4}, v{T+4} offset1:1"):
            e(x)

    def flag_store(self, tmp, base, hi, lo):
        t = S_T1
        return [[f"s_lshl_b32 s{t}, s{hi}, 4", f"s_add_u32 s{t}, s{t}, s{lo}", f"s_lshl_b32 s{t}, s{t}, 7",
                 f"s_add_u32 s{t}, s{t}, {base}", f"s_cmp_eq_u32 s{S_W}, 0", f"s_cselect_b32 s{t}, s{t}, {OOB}"],
                f"v_mov_b32 v{tmp}, s{S_EPOCH}",
                ["s_mov_b64 exec, 1", f"buffer_store_dword v{tmp}, off, {srd(SWS)}, s{t} sc1", "s_mov_b64 exec, -1"]]

    def flag_later(self, tmp, delay, tok, base, hi, lo):
        def raise_flag():
            for x in self.flag_store(tmp, base, hi, lo):
                for y in (x if isinstance(x, list) else [x]):
                    self.p.e(y)

        def arm():
            self.pre_barrier.append(tok())
            self.on_barrier.append(raise_flag)
        if delay is None:
            self.lazy.append((tok(), raise_flag))
        else:
            self.timers.append((self.mf + delay, arm))

    def a_job_setup(self, tag=""):
        e, o = self.p.e, self.opt
        u, t, t2, ct = S_R, S_T2, S_T3, S_T1
        A = self.JA
        e(f"s_lshl_b32 s{u}, s{S_MT}, 2"); e(f"s_add_u32 s{u}, s{u}, s{S_W}")
        e(f"s_and_b32 s{ct}, s{S_CG}, 7")
        if MIXED:
            e(f"s_mov_b32 s{t}, 27"); e(f"s_mov_b32 s{S_JOB}, 52")
            e(f"s_cmp_ge_u32 s{S_CG}, 8"); e(f"s_cselect_b32 s{t2}, 27, 0")
        else:
            e(f"s_cmp_ge_u32 s{S_CG}, 8"); e(f"s_cselect_b32 s{t}, 7, 64"); e(f"s_cselect_b32 s{t2}, 47, 0")
            e(f"s_cselect_b32 s{S_JOB}, 57, 47")
        e(f"s_cmp_lt_u32 s{u}, s{S_JOB}"); e(f"s_cselect_b32 s{S_D2X}, 0, {OOB}")
        e(f"s_cmp_ge_u32 s{u}, s{t}"); e(f"s_cselect_b32 s{S_J2}, 1, 0")
        e(f"s_cbranch_scc1 JOB_C{tag}")
        for x in self.mk_srd(SA1, K_WD, FF_BYTES) + self.mk_srd(SA2, K_WD, FF_BYTES):
            e(x)
        e(f"s_add_u32 s{u}, s{u}, s{t2}")
        e(f"s_mul_i32 s{S_R2}, s{u}, {32*1280}"); e(f"s_mul_i32 s{t}, s{ct}, 160")
        e(f"s_add_u32 s{S_R2}, s{S_R2}, s{t}")
        e(f"s_mul_i32 s{S_JOB}, s{ct}, 94"); e(f"s_add_u32 s{S_JOB}, s{S_JOB}, s{u}")
        e(f"s_mul_i32 s{S_JOB}, s{S_JOB}, 5120")
        e(f"s_mov_b32 s{t}, 0xcccd")
        for q in range(5):
            e(f"v_add_u32 v{A+5}, {64*q}, v{V_LANE}"); e(f"v_mul_lo_u32 v{A+q}, v{A+5}, s{t}")
            e(f"v_lshrrev_b32 v{A+q}, 19, v{A+q}"); e(f"v_mul_u32_u24 v{A+q}, 1120, v{A+q}")
            e(f"v_lshl_add_u32 v{A+q}, v{A+5}, 4, v{A+q}")
        e(f"s_branch JOB_LD{tag}")
        self.p.label(f"JOB_C{tag}")
        for x in self.mk_srd(SA1, K_CRE, SQ_BYTES) + self.mk_srd(SA2, K_CIM, SQ_BYTES):
            e(x)
        if MIXED:
            e(f"s_sub_u32 s{u}, s{u}, 27")
            e(f"s_mul_hi_u32 s{t}, s{u}, 0x33333334"); e(f"s_mul_i32 s{t2}, s{t}, 5"); e(f"s_sub_u32 s{u}, s{u}, s{t2}")
            e(f"s_lshr_b32 s{t2}, s{S_CG}, 3"); e(f"s_mul_i32 s{t2}, s{t2}, 5"); e(f"s_add_u32 s{u}, s{u}, s{t2}")
        else:
            e(f"s_sub_u32 s{u}, s{u}, 7")
            e(f"s_mul_hi_u32 s{t}, s{u}, 0x1999999a"); e(f"s_mul_i32 s{t2}, s{t}, 10"); e(f"s_sub_u32 s{u}, s{u}, s{t2}")
        e(f"s_mul_i32 s{t2}, s{ct}, 5"); e(f"s_add_u32 s{t2}, s{t2}, s{t}")
        e(f"s_mul_i32 s{S_R2}, s{t2}, {16*1280}"); e(f"s_lshl_b32 s{t2}, s{u}, 7")
        e(f"s_add_u32 s{S_R2}, s{S_R2}, s{t2}")
        e(f"s_mul_i32 s{S_JOB}, s{ct}, 94"); e(f"s_lshl_b32 s{u}, s{u}, 2"); e(f"s_add_u32 s{S_JOB}, s{S_JOB}, s{u}")
        e(f"s_add_u32 s{S_JOB}, s{S_JOB}, 54"); e(f"s_mul_i32 s{S_JOB}, s{S_JOB}, 5")
        e(f"s_add_u32 s{S_JOB}, s{S_JOB}, s{t}"); e(f"s_lshl_b32 s{S_JOB}, s{S_JOB}, 10")
        e(f"v_lshrrev_b32 v{A}, 3, v{V_LANE}"); e(f"v_mul_u32_u24 v{A}, 1280, v{A}")
        e(f"v_and_b32 v{A+1}, 7, v{V_LANE}"); e(f"v_lshl_add_u32 v{A}, v{A+1}, 4, v{A}")
        e(f"v_add_u32 v{A+1}, {8*1280}, v{A}"); e(f"v_mov_b32 v{A+2}, v{A}"); e(f"v_mov_b32 v{A+3}, v{A+1}")
        e(f"v_mov_b32 v{A+4}, {OOB}")
        self.p.label(f"JOB_LD{tag}")
        e(f"s_add_u32 s{S_JOB}, s{S_JOB}, {W2F_OFF}")
        e(f"s_or_b32 s{S_JOB}, s{S_JOB}, s{S_D2X}"); e(f"s_or_b32 s{S_R}, s{S_R2}, s{S_D2X}")
        if o.get("job_mode") == "dma":
            def piece(q):
                e(f"s_add_u32 m0, s{S_J1}, {1024*q}")
                self.job_tok = e(f"buffer_load_dwordx4 v{A+q}, {srd(SA1 if q < 2 else SA2)}, s{S_R} offen{o.get('ntjob', '')} lds")
            self.job_ld = [lambda q=q: piece(q) for q in range(5)]
            return
        self.job_ld = [lambda q=q: setattr(self, "job_tok", e(
            f"buffer_load_dwordx4 a[{192+4*q}:{195+4*q}], v{A+q}, {srd(SA1 if q < 2 else SA2)}, s{S_R} offen"))
            for q in range(5)]
        if o.get("job_dq"):
            self.dq.extend(self.job_ld)
        elif not o.get("job_late"):
            for f in self.job_ld:
                f()

    def a_job(self, is_c, m0, R, L):
        p, q = self.p, self.q
        st = {}
        D = R + 2 if not self.opt.get("job_spread") else self.JD

        def at(k):
            self.fill.append(("t", lambda: self.mf - m0 >= k + self.opt.get("fork_at", 65)))
        if is_c:
            q(f"v_and_b32 v{R}, 15, v{V_LANE}", f"v_lshlrev_b32 v{R}, 7, v{R}",
              f"v_lshrrev_b32 v{R+1}, 4, v{V_LANE}", f"v_lshl_add_u32 v{R}, v{R+1}, 3, v{R}")
        else:
            q(f"v_lshrrev_b32 v{R}, 5, v{V_LANE}", f"v_lshlrev_b32 v{R}, 4, v{R}",
              f"v_bfe_u32 v{R+1}, v{V_LANE}, 2, 3", f"v_add_u32 v{R}, v{R}, v{R+1}",
              f"v_mul_u32_u24 v{R}, 160, v{R}", f"v_and_b32 v{R+1}, 3, v{V_LANE}",
              f"v_lshl_add_u32 v{R}, v{R+1}, 3, v{R}")
        q(f"v_add_u32 v{R}, s{S_J1}, v{R}", f"v_add_u32 v{R+1}, s{S_J1}, v{V_TW+2}")
        at(2)
        dma = self.opt.get("job_mode") == "dma"
        if dma:
            st["w"] = self.job_tok
        else:
            self.fill.append(lambda: p.wait(self.job_tok))
        for f in range(0 if dma else 5):
            at(2 + f // 2)
            self.fill.append(lambda f=f: st.__setitem__("w", p.e(
                f"ds_write_b128 v{R+1}, a[{192+4*f}:{195+4*f}] offset:{1024*f}")))
        land = [(L if is_c else D) + 4 * f for f in range(5)]
        for f in range(5):
            at((3 if dma else 7) + f // 2)

            def rd(f=f):
                p.wait(st["w"])
                op, o2 = ("ds_read_b64", 2048) if is_c else ("ds_read_b64_tr_b16", 1280)
                p.e(f"{op} v[{land[f]}:{land[f]+1}], v{R} offset:{32*f}")
                st[f] = p.e(f"{op} v[{land[f]+2}:{land[f]+3}], v{R} offset:{32*f + o2}")
            rd.cost = 2
            self.fill.append(rd)
        if is_c:
            q(f"s_mov_b32 s{S_T2}, 0x05040100", f"s_mov_b32 s{S_T3}, 0x07060302")
        at(8 if dma else 12)
        self.fill.append(lambda: p.wait(st[4]))
        for f in range(5):
            if is_c and f < 4:
                re, im = land[f], land[f] + 2
                for k in range(2):
                    q(f"v_perm_b32 v{D+4*f+2*k}, v{im+k}, v{re+k}, s{S_T2}",
                      f"v_perm_b32 v{D+4*f+2*k+1}, v{im+k}, v{re+k}, s{S_T3}")
            if self.opt.get("job_spread"):
                continue
            at((10 if dma else 14) + 2 * f)
            self.fill.append(lambda f=f: setattr(self, "job_store", p.e(
                f"buffer_store_dwordx4 v[{D+4*f}:{D+4*f+3}], v{V_TW+2}, {srd(SWS)}, s{S_JOB} offen{self.wt}")))
            if f < 4:
                q(f"s_add_u32 s{S_JOB}, s{S_JOB}, {(5120 if f < 3 else OOB) if is_c else 1024}")
        if self.opt.get("job_spread"):
            q(f"s_mov_b32 s{S_R}, {5120 if is_c else 1024}", f"s_mov_b32 s{S_XB}, {OOB if is_c else 1024}")

    def job_stores(self, D, then):
        e, n = self.p.e, self.opt["job_spread"]

        def one(f):
            self.job_store = e(f"buffer_store_dwordx4 v[{D+4*f}:{D+4*f+3}], v{V_TW+2}, {srd(SWS)}, s{S_JOB} offen{self.wt}")
            if f < 4:
                e(f"s_add_u32 s{S_JOB}, s{S_JOB}, s{S_R if f < 3 else S_XB}")
            else:
                then()
        for f in range(5):
            self.timers.append((self.mf + 2 + n * f, lambda f=f: one(f)))

    def fork_job(self, tag, m0, R, L):
        e, fa = self.p.e, self.opt.get("fork_at", 65)
        n = 20 if self.opt.get("job_mode") == "dma" else 24
        if self.opt.get("job_spread"):
            n = 15
        self.fork = (fa, fa + n, lambda: (e(f"s_cmp_eq_u32 s{S_J2}, 1"), e(f"s_cbranch_scc1 FORK_ALT_{tag}")),
                     lambda: self.a_job(False, m0, R, L), lambda: self.a_job(True, m0, R, L), tag)
        return fa + n

    def jf_load(self, R):
        e = self.p.e
        e(f"s_lshl_b32 s{S_WB+1}, s{S_CG}, 11")
        e(f"s_add_u32 s{S_WB+1}, s{S_WB+1}, {JF_OFF}")
        e(f"v_and_b32 v{R+1}, 15, v{V_LANE}")
        e(f"v_lshlrev_b32 v{R+1}, 7, v{R+1}")
        self.jf_tok = self.flag_load(R)

    def flag_load(self, R):
        e = self.p.e
        e(f"v_mov_b32 v{R}, s{S_EPOCH}")
        e("s_mov_b64 exec, 0xffff")
        t = e(f"buffer_load_dword v{R}, v{R+1}, {srd(SWS)}, s{S_WB+1} offen sc1")
        e("s_mov_b64 exec, -1")
        return t

    def all_equal(self, R, n, label):
        e = self.p.e
        e(f"v_xor_b32 v{R}, s{S_EPOCH}, v{R}")
        for k in range(1, n):
            e(f"v_bitop3_b32 v{R}, v{R}, v{R+k}, s{S_EPOCH} bitop3:0xf6")
        e(f"v_cmp_ne_u32 vcc, 0, v{R}")
        e(f"s_cbranch_vccnz {label}")

    def jf_check(self, R, tag, first, per):
        p, e = self.p, self.p.e
        e(f"s_mov_b32 s{S_WB+2}, 0")
        p.wait(self.jf_tok)
        e(f"v_cmp_ne_u32 vcc, s{S_EPOCH}, v{R}")
        e(f"s_cbranch_vccnz JF_SLOW_{tag}")
        p.label(f"JF_OK_{tag}")
        self.polls.append((tag, R))
        e(f"s_lshr_b32 s{S_WB}, s{S_CG}, 3")
        e(f"s_mul_i32 s{S_WB}, s{S_WB}, 47")
        e(f"s_mul_i32 s{S_WB+1}, s{S_W}, 12")
        e(f"s_add_u32 s{S_WB+3}, s{S_WB}, s{S_WB+1}")
        if MIXED:
            e(f"s_mov_b32 s{S_WB+3}, 0")
        e(f"s_and_b32 s{S_WB}, s{S_CG}, 7")
        e(f"s_mul_i32 s{S_WB}, s{S_WB}, 94")
        e(f"s_add_u32 s{S_WB}, s{S_WB}, s{S_WB+3}")
        e(f"s_mul_i32 s{S_WB}, s{S_WB}, 5120")
        e(f"s_add_u32 s{S_WB0}, s{S_WB}, {W2F_OFF}")
        if MIXED:
            L = mixed_lists()
            e(f"s_lshr_b32 s{S_WB+1}, s{S_CG}, 3"); e(f"s_lshl_b32 s{S_WB+1}, s{S_WB+1}, 2")
            e(f"s_add_u32 s{S_WB+1}, s{S_WB+1}, s{S_W}")
            for c in range(8):
                words = [sum(v << (8 * k) for k, v in enumerate(L[c // 4, c % 4][4 * h:4 * h + 4])) for h in range(3)]
                if c:
                    e(f"s_cmp_eq_u32 s{S_WB+1}, {c}")
                for h in range(3):
                    e(f"s_cselect_b32 s{S_TB+h}, {words[h]:#x}, s{S_TB+h}" if c else f"s_mov_b32 s{S_TB+h}, {words[h]:#x}")
        else:
            for h in range(2):
                e(f"s_mov_b32 s{S_TB+h}, {nib('nat', h):#x}")
            for cond, name in ((f"s_cmp_eq_u32 s{S_W}, 0", "w0"), (f"s_cmp_eq_u32 s{S_W}, 3", "w3"), (f"s_cmp_lt_u32 s{S_CG}, 8", "k0")):
                e(cond)
                for h in range(2):
                    e(f"s_cselect_b32 s{S_TB+h}, {nib(name, h):#x}, s{S_TB+h}")

        def ld(n):
            i, cb = divmod(n, 5)
            if cb == 0:
                e(rel(S_WB, i))
                e(f"s_mul_i32 s{S_WB}, s{S_WB}, 5120")
                e(f"s_add_u32 s{S_WB}, s{S_WB}, s{S_WB0}")
                if i == 11:
                    e(f"s_cmp_eq_u32 s{S_W}, 3")
                    e(f"s_cselect_b32 s{S_WB}, {OOB}, s{S_WB}")
            va, off = ((V_L16 if n >= 60 - self.opt.get("w_keep", 12) else V_TW + 2), 1024 * cb) if cb < 4 else (0, 0)
            e(f"buffer_load_dwordx4 a[{WMAP[n]}:{WMAP[n]+3}], v{va}, {srd(SWS)}, s{S_WB} offen offset:{off} sc1")
        self.wq = [lambda n=n: ld(n) for n in range(60)]
        self.wfrom, self.wper = first, per

    def code_touch(self, tag, start, end, tmp):
        e = self.p.e
        b = S_M2
        e(f"s_getpc_b64 s[{b}:{b+1}]")
        self.p.label(f"CT_{tag}")
        e(f"s_add_u32 s{b}, s{b}, {start}-CT_{tag}")
        e(f"s_addc_u32 s{b+1}, s{b+1}, 0")
        e(f"s_lshr_b32 s{S_T1}, s2, 3"); e(f"s_lshl_b32 s{S_T1}, s{S_T1}, 2"); e(f"s_add_u32 s{S_T1}, s{S_T1}, s{S_W}")
        e(f"s_lshl_b32 s{S_T1}, s{S_T1}, 8")
        e(f"v_lshlrev_b32 v{tmp}, 7, v{V_LANE}"); e(f"v_add_u32 v{tmp}, s{S_T1}, v{tmp}")
        e(f"v_min_u32 v{tmp}, {end}-{start}-4, v{tmp}")
        e("s_mov_b64 exec, 3")
        e(f"global_load_dword v{tmp+1}, v{tmp}, s[{b}:{b+1}]")
        e("s_mov_b64 exec, -1")

    def fire_timers(self):
        for tm in self.timers:
            tm[1]()
        self.timers = []
        for tok, f in self.lazy:
            self.pre_barrier.append(tok)
            self.on_barrier.append(f)
        self.lazy = []
        if self.on_barrier:
            self.barrier()

    def poll_paths(self):
        p, e = self.p, self.p.e
        for tag in self.heads:
            p.label(f"K2_EARLY_SLOW_{tag}")
            e(f"s_sleep {self.opt.get('done_sleep', 8)}")
            e(f"s_add_u32 s{S_SPIN}, s{S_SPIN}, 1")
            e(f"s_cmp_gt_u32 s{S_SPIN}, 100000")
            e(f"s_cbranch_scc1 K2_EARLY_OK_{tag}")
            self.early_load()
            e("s_waitcnt vmcnt(0)")
            e(f"v_cmp_ne_u32 vcc, s{S_EPOCH}, v15")
            e(f"s_cbranch_vccnz K2_EARLY_SLOW_{tag}")
            e(f"s_branch K2_EARLY_OK_{tag}")
        for tag, R in self.polls:
            p.label(f"JF_SLOW_{tag}")
            e("s_sleep 6")
            e(f"s_add_u32 s{S_WB+2}, s{S_WB+2}, 1")
            e(f"s_cmp_gt_u32 s{S_WB+2}, 20000")
            e(f"s_cbranch_scc1 JF_OK_{tag}")
            self.flag_load(R)
            e("s_waitcnt vmcnt(0)")
            e(f"v_cmp_ne_u32 vcc, s{S_EPOCH}, v{R}")
            e(f"s_cbranch_vccnz JF_SLOW_{tag}")
            e(f"s_branch JF_OK_{tag}")

    def w_some(self, n):
        while n > 0 and len(self.wq) > self.opt.get("w_keep", 12):
            self.wq.pop(0)()
            n -= 1

    def a_load(self, g, t, i, f):
        e = self.p.e
        if f == 0:
            e(rel(S_A, i))
            e(f"s_lshl_b32 s{S_A}, s{S_A}, 12")
            e(f"s_add_u32 s{S_A}, s{S_A}, s{S_A0 if t else S_A1}")
            if i == 11:
                e(f"s_cmp_eq_u32 s{S_W}, 3")
                e(f"s_cselect_b32 s{S_A}, s{S_OOB}, s{S_A}")
        return e(f"buffer_load_dwordx4 {slot(g, f)}, v{V_L16}, {srd(SWS)}, s{S_A} offen offset:{1024*f} sc1")

    def early_load(self):
        e = self.p.e
        e(f"v_mov_b32 v15, s{S_EPOCH}")
        if self.opt.get("fast"):
            e(f"s_mov_b64 exec, s[{S_M2}:{S_M2+1}]")
        else:
            e("s_mov_b64 exec, 0x7f7f" if MIXED else "s_mov_b64 exec, 0xbfff")
        t = e(f"buffer_load_dword v15, v2, {srd(SWS)}, s{S_DIV+2} offen sc1")
        e("s_mov_b64 exec, -1")
        return t

    def head_a(self, tag):
        p, e = self.p, self.p.e
        e(f"s_lshl_b32 s{S_DN}, s{S_MT}, 11"); e(f"s_add_u32 s{S_DN}, s{S_DN}, {DONE_OFF}")
        e(f"s_add_u32 s{S_DIV+2}, s{S_DN}, {DONE1_OFF - DONE_OFF}")
        e(f"v_and_b32 v2, 15, v{V_LANE}"); e("v_lshlrev_b32 v2, 7, v2")
        e(f"s_mov_b32 s{S_SPIN}, 0")
        split = self.opt.get("split", 0)
        fast = self.opt.get("fast", 0)
        if fast:
            e(f"s_mov_b32 s{S_DIV+2}, s{S_DN}")
            e(f"s_lshl_b32 s{S_M2}, 1, s{S_CG}"); e(f"s_andn2_b32 s{S_M2}, 0xffff, s{S_M2}"); e(f"s_mov_b32 s{S_M2+1}, 0")
        if (tag != "B") and split in (1, 4) and not (tag == "A" and self.opt.get("early_mid")):
            t_early = self.early_load()
        self.w_some(self.opt.get("head_w", 4))
        for x in self.mk_srd(SD, K_DSK, 1280) + self.mk_srd(SO, K_OUT, OUT_BYTES):
            e(x)
        e(f"v_mov_b32 v{V_L16}, v{V_TW+2}"); e(f"v_mov_b32 v{V_L16B}, v0")
        e(f"s_mov_b32 s{S_N}, s{S_WB+3}")
        e(f"s_lshr_b32 s{S_T2}, s{S_CG}, 3")
        e(f"s_lshl_b32 s{S_T3}, s{S_MT}, 1")
        e(f"s_add_u32 s{S_T3}, s{S_T3}, s{S_T2}")
        e(f"s_mul_i32 s{S_A0}, s{S_T3}, 94"); e(f"s_add_u32 s{S_A0}, s{S_A0}, s{S_N}"); e(f"s_lshl_b32 s{S_A0}, s{S_A0}, 12")
        e(f"s_xor_b32 s{S_A1}, s{S_T3}, 1")
        e(f"s_mul_i32 s{S_A1}, s{S_A1}, 94"); e(f"s_add_u32 s{S_A1}, s{S_A1}, s{S_N}"); e(f"s_lshl_b32 s{S_A1}, s{S_A1}, 12")
        e(f"s_lshl_b32 s{S_T3}, s{S_T3}, 6"); e(f"s_lshl_b32 s{S_T0}, s{S_W}, 4"); e(f"s_add_u32 s{S_T3}, s{S_T3}, s{S_T0}")
        e(f"s_and_b32 s{S_T1}, s{S_CG}, 7"); e(f"s_mul_i32 s{S_T1}, s{S_T1}, 160")
        e(f"s_mul_i32 s{S_XO}, s{S_T3}, 1280"); e(f"s_add_u32 s{S_XO}, s{S_XO}, s{S_T1}")
        e(f"s_lshl_b32 s{S_OO}, s{S_XO}, 1")
        e(f"s_mov_b32 s{S_DIV}, 0xcccd"); e(f"s_mov_b32 m0, s{S_J1}")
        for j in range(3):
            e(f"v_add_u32 v6, {64*j}, v{V_LANE}"); e(f"v_mul_lo_u32 v7, v6, s{S_DIV}"); e("v_lshrrev_b32 v7, 19, v7")
            e("v_mul_u32_u24 v8, 1120, v7"); e("v_lshl_add_u32 v8, v6, 4, v8")
            if j:
                e(f"v_add_u32 v8, {-1024*j & 0xffffffff:#x}, v8")
            if j == 2:
                e("s_mov_b32 exec_hi, 0")
            e(f"buffer_load_dwordx4 v8, {srd(SX)}, s{S_XO} offen offset:{1024*j} lds")
        e(f"s_add_u32 m0, s{S_J1}, 3072"); e("s_mov_b32 exec_lo, 0x3ff")
        t_res = e(f"buffer_load_dwordx4 v{V_L16}, {srd(SD)}, s{S_T1} offen lds")
        e("s_mov_b64 exec, -1")
        self.h = dict(t_res=t_res, t_early=locals().get("t_early"))

    def phase2_head(self, k, tag):
        p, e = self.p, self.p.e
        self.stamp(k)
        split, fast = self.opt.get("split", 0), self.opt.get("fast", 0)
        if not getattr(self, "h", None):
            self.head_a(tag)
        t_res, t_early = self.h["t_res"], self.h["t_early"]
        self.h = None
        def raise_done():
            e(f"s_lshl_b32 s{S_T0}, s{S_CG}, 7"); e(f"s_add_u32 s{S_T0}, s{S_T0}, s{S_DN}")
            e(f"s_cmp_eq_u32 s{S_W}, 0"); e(f"s_cselect_b32 s{S_T0}, s{S_T0}, {OOB}")
            e(f"v_mov_b32 v14, s{S_EPOCH}")
            self.barrier(self.last_store)
            if tag != "B" and (split == 2 or fast):
                st["early"] = self.early_load()
            e("s_mov_b64 exec, 1")
            e(f"buffer_store_dword v14, off, {srd(SWS)}, s{S_T0} sc1")
            e("s_mov_b64 exec, -1")
            self.stamp(k + 1)

        def go():
            p.wait(st["early"])
            e(f"v_cmp_ne_u32 vcc, s{S_EPOCH}, v15")
            e(f"s_cbranch_vccnz K2_EARLY_SLOW_{tag}")
            p.label(f"K2_EARLY_OK_{tag}")
            self.heads.append(tag)
            p.wait(t_res)
            for g in range(4):
                for f in range(4):
                    self.a_load(g, *(STEPS_MIXED[g] if MIXED else (0, g)), f)
        st = {"early": t_early}
        e(f"s_mov_b32 s{S_OOB}, {OOB}")
        late_done = split == 4 and tag == "A"
        if not late_done:
            raise_done()
        self.w_some(60)
        if tag == "B" and (split or fast):
            st["early"] = self.early_load()
        if split in (1, 4) or fast == 1:
            go()
        if split == 4 and not late_done:
            e(f"buffer_store_dword v14, off, {srd(SWS)}, s{S_OOB} sc1")
        self.w_rest = list(self.wq)
        e(f"s_and_b32 s{S_T3}, s{S_T3}, 127"); e(f"s_lshl_b32 s{S_T3}, s{S_T3}, 3"); e(f"s_add_u32 s{S_T3}, s{S_T3}, {STL}")
        e(f"s_mul_i32 s{S_T2}, s{S_W}, 5376")
        e(f"v_lshlrev_b32 v10, 3, v{V_LANE}"); e(f"v_add_u32 v10, s{S_J1}, v10")
        XR, DR, SR, T = ACC2, ACC2 + 10, ACC2 + 20, ACC2 + 32
        AD = ACC2 + 60
        for i in range(5):
            e(f"v_add_u32 v6, {64*i}, v{V_LANE}"); e(f"v_mul_lo_u32 v7, v6, s{S_DIV}"); e("v_lshrrev_b32 v7, 20, v7")
            e("v_mul_u32_u24 v8, 20, v7"); e("v_sub_u32 v8, v6, v8")
            e("v_mul_u32_u24 v9, 2560, v7"); e(f"v_lshl_add_u32 v{V_OA+i}, v8, 4, v9")
            e("v_mul_u32_u24 v12, 336, v7"); e("v_lshl_add_u32 v12, v8, 4, v12")
            e(f"v_add_u32 v{V_LA+i}, s{S_T2}, v12")
            e(f"v_lshl_add_u32 v{AD+i}, v8, 3, s{S_J1}"); e(f"v_lshl_add_u32 v11, v7, 3, s{S_T3}")
            e(f"ds_read_b64 v[{SR+2*i}:{SR+2*i+1}], v11")
        e(f"v_and_b32 v{V_WA}, 15, v{V_LANE}"); e(f"v_mul_u32_u24 v{V_WA}, 336, v{V_WA}")
        e(f"v_lshrrev_b32 v6, 4, v{V_LANE}"); e(f"v_lshl_add_u32 v{V_WA}, v6, 4, v{V_WA}")
        e(f"s_mul_i32 s{S_T2}, s{S_W}, 21504"); e(f"v_add_u32 v{V_WA}, s{S_T2}, v{V_WA}")
        e(f"v_add_u32 v{V_PK}, s{S_J1}, v{V_L16}")
        e("s_lshl_b32 s3, s2, 2"); e(f"s_add_u32 s3, s3, s{S_W}")
        e(f"s_mul_i32 s{S_PO}, s3, 5120"); e(f"s_add_u32 s{S_PO}, s{S_PO}, {PART_OFF}")
        e("s_xor_b32 s3, s3, 4")
        e(f"s_mul_i32 s{S_PI}, s3, 5120"); e(f"s_add_u32 s{S_PI}, s{S_PI}, {PART_OFF}")
        if self.opt.get("a_pref"):
            e(f"s_and_b32 s{S_T0}, s{S_CG}, 7"); e(f"s_lshl_b32 s{S_T0}, s{S_T0}, 2"); e(f"s_add_u32 s{S_T0}, s{S_T0}, s{S_W}")
            e(f"s_mul_i32 s{S_T0}, s{S_T0}, 94")
            e(f"s_mov_b32 s{S_T1}, {94*4096 - 1504*128}")
            for j, r in ((0, 6), (1, 7)):
                e(f"v_add_u32 v{r}, s{S_T0}, v{V_LANE}")
                if j:
                    e(f"v_add_u32 v{r}, 64, v{r}")
                e(f"v_cmp_lt_u32 vcc, 1503, v{r}")
                e(f"v_lshlrev_b32 v{r}, 7, v{r}")
                e(f"v_add_u32 v8, s{S_T1}, v{r}")
                e(f"v_cndmask_b32 v{r}, v{r}, v8, vcc")
            e(f"s_lshr_b32 s{S_T0}, s{S_CG}, 3"); e(f"s_mul_i32 s{S_T0}, s{S_T0}, 47")
            e(f"s_mul_i32 s{S_T1}, s{S_MT}, 188"); e(f"s_add_u32 s{S_T0}, s{S_T0}, s{S_T1}")
            e(f"s_lshl_b32 s{S_DIV+2}, s{S_T0}, 12")
        e(f"v_mov_b32 v{V_T}, 0xff")
        e(f"s_mov_b32 s{S_TG}, s{S_EPOCH}")
        for j in range(1, 4):
            e(f"s_lshr_b32 s{S_TG+j}, s{S_TG}, {8*j}"); e(f"s_add_u32 s{S_TG+j}, s{S_TG+j}, s{S_TG}")
        t = None
        if fast == 2:
            go()
        p.wait(t_res)
        for i in range(5):
            e(f"ds_read_b64 v[{XR+2*i}:{XR+2*i+1}], v10 offset:{512*i}")
            t = e(f"ds_read_b64 v[{DR+2*i}:{DR+2*i+1}], v{AD+i} offset:3072")
        p.wait(t)
        M = f"s{S_MASK}"
        for i in range(5):
            if split == 2 and i == self.opt.get("go_at", 0):
                go()
            x0, d0, s0 = XR + 2 * i, DR + 2 * i, SR + 2 * i
            for j, r in enumerate((x0, x0 + 1, d0, d0 + 1)):
                e(f"v_lshlrev_b32 v{T+2*j}, 16, v{r}"); e(f"v_and_b32 v{T+2*j+1}, {M}, v{r}")
            for j in range(4):
                e(f"v_fma_f32 v{T+8+j}, v{T+j}, v{s0}, v{s0+1}")
            for rnd in range(2):
                e(f"v_cvt_pk_bf16_f32 v{T+12}, v{T+8}, v{T+9}"); e(f"v_cvt_pk_bf16_f32 v{T+13}, v{T+10}, v{T+11}")
                e(f"v_lshlrev_b32 v{T+8}, 16, v{T+12}"); e(f"v_and_b32 v{T+9}, {M}, v{T+12}")
                e(f"v_lshlrev_b32 v{T+10}, 16, v{T+13}"); e(f"v_and_b32 v{T+11}, {M}, v{T+13}")
                if rnd == 0:
                    for j in (0, 2):
                        e(f"v_pk_mul_f32 v[{T+8+j}:{T+9+j}], v[{T+8+j}:{T+9+j}], v[{T+4+j}:{T+5+j}]")
            o = T + 16 + 4 * (i % 2)
            for j in (0, 2):
                e(f"v_pk_add_f32 v[{o+j}:{o+j+1}], v[{T+j}:{T+j+1}], v[{T+8+j}:{T+9+j}]")
            e(f"ds_write_b128 v{V_PK}, v[{o}:{o+3}] offset:{1024*i}")
        if self.opt.get("a_pref") == 2:
            e(f"buffer_load_dword v8, v6, {srd(SWS)}, s{S_DIV+2} offen sc1")
            e("s_mov_b64 exec, 0x3fffffff")
            e(f"buffer_load_dword v9, v7, {srd(SWS)}, s{S_DIV+2} offen sc1")
            e("s_mov_b64 exec, -1")
        if late_done:
            raise_done()
        e("s_branch K2_START")

    def phase2(self):
        p, e, opt = self.p, self.p.e, self.opt
        fill, tok, st, ld = [], {}, {}, []
        cur, cnt = {"g": 0}, {"m": 0}
        NS, F = 5, opt.get("k2_fuse", 3)
        PD = NS - 1

        def q(*texts):
            for t in texts:
                fill.append(t if callable(t) else (lambda t=t: e(t)))

        def pull(budget):
            start = p.slots
            while fill and p.slots - start < budget:
                it = fill[0]
                if isinstance(it, tuple):
                    if not it[0]():
                        return
                    fill.pop(0)
                    continue
                fill.pop(0)
                it()

        def lag(n):
            mark = {}
            q(lambda: mark.__setitem__("m", cnt["m"]))
            fill.append((lambda: cnt["m"] >= mark["m"] + n or cur["g"] > 98,))

        J = opt.get("k2_j", 2 if opt.get("split", 0) else 0)
        steps = [(0, i) for i in range(6)] + [(1, i) for i in range(J)] + [(0, i) for i in range(6, 12)] + \
                [(1, i) for i in range(J, 12)]
        G1 = 12 + J
        GL = 6 + J
        if MIXED:
            steps = STEPS_MIXED
            G1, GL = 15, 6
        HOLD = opt.get("k2_hold", 2) if MIXED else 0

        def loads(g):
            t, i = steps[g]

            return [lambda f=f: tok.__setitem__(g, self.a_load(g, t, i, f)) for f in range(4)]

        def done_load():
            e(f"v_mov_b32 v15, s{S_EPOCH}")
            e("s_mov_b64 exec, 0xffff")
            st["dn"] = e(f"buffer_load_dword v15, v2, {srd(SWS)}, s{S_DN} offen sc1")
            e("s_mov_b64 exec, -1")

        def done_check():
            e(f"v_cmp_ne_u32 vcc, s{S_EPOCH}, v15")
            e("s_cbranch_vccnz K2_LATE_SLOW")

        def tile_to_lds(acc):
            return [f"ds_write_b128 v{V_WA}, v[{acc+(cb*4+rb)*4}:{acc+(cb*4+rb)*4+3}] offset:{rb*5376 + cb*64}"
                    for cb in range(5) for rb in range(4)]

        def barrier():
            p.wait_all(vm=False)
            e("s_barrier")

        def part_loads():
            for i in range(5):
                r = ACC1 + 16 * i + 8
                va, off = (V_L16, 1024 * i) if i < 4 else (V_L16B, 0)
                st["pi"] = e(f"buffer_load_dwordx4 v[{r}:{r+3}], v{va}, {srd(SWS)}, s{S_PI} offen offset:{off} sc1")

        def part_check():
            for i in range(5):
                for k in range(4):
                    r = ACC1 + 16 * i + 8 + k
                    if i + k == 0:
                        e(f"v_xor_b32 v{V_T+1}, s{S_TG}, v{r}")
                    else:
                        e(f"v_bitop3_b32 v{V_T+1}, v{V_T+1}, v{r}, s{S_TG+k} bitop3:0xf6")
            e(f"v_and_b32 v{V_T+1}, v{V_T}, v{V_T+1}")
            e(f"v_cmp_ne_u32 vcc, 0, v{V_T+1}")
            e("s_cbranch_vccnz K2_SLOW")

        def first_tile_done():
            for x in tile_to_lds(ACC1):
                q(x)
                lag(opt.get("k2_wlag", 2))
            lag(opt.get("k2_blag", 4))
            q(barrier)
            for i in range(5):
                for wv in range(4):
                    r = ACC1 + 16 * i + 4 * wv
                    q(lambda i=i, r=r, wv=wv: st.__setitem__(("rd", i), e(
                        f"ds_read_b128 v[{r}:{r+3}], v{V_LA+i} offset:{wv*21504}")))
            for i in range(5):
                r = ACC1 + 16 * i
                q(lambda i=i: p.wait(st["rd", i]))
                for k in range(4):
                    q(f"v_add_f32 v{r+k}, v{r+k}, v{r+4+k}", f"v_add_f32 v{r+8+k}, v{r+8+k}, v{r+12+k}")
                q(*[f"v_add_f32 v{r+k}, v{r+k}, v{r+8+k}" for k in range(4)])
                q(*[f"v_bfi_b32 v{r+k}, v{V_T}, s{S_TG+k}, v{r+k}" for k in range(4)])
                va, off = (V_L16, 1024 * i) if i < 4 else (V_L16B, 0)
                q(f"buffer_store_dwordx4 v[{r}:{r+3}], v{va}, {srd(SWS)}, s{S_PO} offen offset:{off} sc1")
            q("s_barrier")
            for i in range(5):
                r = ACC1 + 16 * i + 4
                q(lambda i=i, r=r: st.__setitem__("pk", e(f"ds_read_b128 v[{r}:{r+3}], v{V_PK} offset:{1024*i}")))
            fill.append((lambda: cnt["m"] >= opt.get("k2_pollm", 440),))
            q(part_loads)

        def mfma(g, cb, rb):
            t, i = steps[g]
            acc = ACC2 if t else ACC1
            w = WMAP[5 * i + cb]
            c = f"v[{acc+(cb*4+rb)*4}:{acc+(cb*4+rb)*4+3}]"
            start = p.slots
            e(f"v_mfma_f32_16x16x32_bf16 {c}, a[{w}:{w+3}], {slot(g, rb)}, {c if i else 0}")
            cnt["m"] += 1
            if cnt["m"] % 4 == 2 and ld:
                ld.pop(0)()
            elif cnt["m"] % 4 == 0 and wrest:
                wrest.pop(0)()
            return start

        p.label("K2_START")
        if not opt.get("split", 0) and not opt.get("fast", 0):
            e(f"s_cmp_lg_u32 s{S_W}, 0")
            e("s_cbranch_scc1 K2_GO")
            e("s_mov_b64 exec, 0xffff")
            p.label("K2_RETRY")
            e(f"buffer_load_dword v15, v2, {srd(SWS)}, s{S_DN} offen sc1")
            e(f"s_add_u32 s{S_SPIN}, s{S_SPIN}, 1")
            e("s_waitcnt vmcnt(0)")
            e(f"v_cmp_ne_u32 vcc, s{S_EPOCH}, v15")
            e("s_cbranch_vccz K2_SEEN")
            if opt.get("backoff"):
                e(f"s_bcnt1_i32_b64 s{S_T0}, vcc")
                e(f"s_cmp_lt_u32 s{S_T0}, {opt.get('backoff_n', 12)}")
                e("s_cbranch_scc1 K2_SHORT")
                e(f"s_sleep {opt['backoff']}")
                p.label("K2_SHORT")
            e(f"s_sleep {opt.get('done_sleep', 3)}")
            e(f"s_cmp_lt_u32 s{S_SPIN}, 100000")
            e("s_cbranch_scc1 K2_RETRY")
            p.label("K2_SEEN")
            e("s_mov_b64 exec, -1")
            p.label("K2_GO")
            e("s_barrier")
            assert not MIXED
            if opt.get("a_pref"):
                e(f"buffer_load_dword v8, v6, {srd(SWS)}, s{S_DIV+2} offen sc1")
                e("s_mov_b64 exec, 0x3fffffff")
                e(f"buffer_load_dword v9, v7, {srd(SWS)}, s{S_DIV+2} offen sc1")
                e("s_mov_b64 exec, -1")
            for g in range(4):
                for f in range(4):
                    self.a_load(g, 0, g, f)
        p.vq, p.vdone, p.lq, p.ldone = (17 if opt.get("split") == 4 else 16), 0, 5, 0
        for g in range(4):
            tok[g] = ("v", 4 * g + 4)
        self.stamp(10)
        if opt.get("stamp"):
            e(f"s_mov_b32 s{S_WB+2}, s{S_SPIN}")
        e(f"s_mov_b32 s{S_SPIN}, 0")
        e(f"s_mov_b32 s{S_WB+1}, 0")
        wrest = list(self.w_rest)
        for g in range(24 - F):
            cur["g"] = g
            if g + PD + opt.get("k2_dlead", 2) == GL + HOLD and opt.get("split", 0):
                done_load()
            if g == G1:
                self.stamp(11)
                first_tile_done()
            p.wait(tok[g])
            if g + PD == GL + HOLD and opt.get("split", 0):
                p.wait(st["dn"])
                done_check()
                p.label("K2_LATE_OK")
                for g2 in range(GL, GL + HOLD):
                    for f in loads(g2):
                        f()
            if g + PD < 24 and not (GL <= g + PD < GL + HOLD):
                ld.extend(loads(g + PD))
            for cb in range(5):
                for rb in range(4):
                    start = mfma(g, cb, rb)
                    pull(opt.get("k2_b2", 4) - (p.slots - start))
            while ld:
                ld.pop(0)()
        cur["g"] = 98
        wr, tl = [], tile_to_lds(ACC2)
        for cb in range(5):
            n = 0
            for g in range(24 - F, 24):
                p.wait(tok[g])
                for rb in range(4):
                    start = mfma(g, cb, rb)
                    n += 1
                    if wr and n > 2 and (n - 3) % max(1, F - 1) == 0:
                        e(wr.pop(0))
                    pull(opt.get("k2_b2", 4) - (p.slots - start))
            for x in wr:
                e(x)
            wr = tl[4 * cb:4 * cb + 4]
        cur["g"] = 99
        self.stamp(12)
        pull(10000)
        assert not fill
        for x in wr:
            e(x)
        p.wait(st["pi"], st["pk"])
        part_check()
        p.label("K2_OK")
        e(f"s_mov_b32 s{S_DIV}, 0xffffff00")
        for i in range(5):
            s = ACC1 + 16 * i
            for k in range(4):
                e(f"v_and_b32 v{s+8+k}, s{S_DIV}, v{s+8+k}")
            for k in range(0, 4, 2):
                e(f"v_pk_add_f32 v[{s+k}:{s+k+1}], v[{s+4+k}:{s+5+k}], v[{s+8+k}:{s+9+k}]")
        barrier()
        rd = {}
        for i in range(5):
            for wv in range(4):
                r = ACC2 + 16 * i + 4 * wv
                rd[i] = e(f"ds_read_b128 v[{r}:{r+3}], v{V_LA+i} offset:{wv*21504}")
        for i in range(5):
            r, s = ACC2 + 16 * i, ACC1 + 16 * i
            p.wait(rd[i])
            for k in range(0, 4, 2):
                e(f"v_pk_add_f32 v[{r+k}:{r+k+1}], v[{r+k}:{r+k+1}], v[{r+4+k}:{r+5+k}]")
                e(f"v_pk_add_f32 v[{r+8+k}:{r+9+k}], v[{r+8+k}:{r+9+k}], v[{r+12+k}:{r+13+k}]")
                e(f"v_pk_add_f32 v[{s+k}:{s+k+1}], v[{s+k}:{s+k+1}], v[{r+k}:{r+k+1}]")
            for k in range(0, 4, 2):
                e(f"v_pk_add_f32 v[{s+k}:{s+k+1}], v[{s+k}:{s+k+1}], v[{r+8+k}:{r+9+k}]")
            e(f"buffer_store_dwordx4 v[{s}:{s+3}], v{V_OA+i}, {srd(SO)}, s{S_OO} offen{opt.get('owt', ' sc1')}")
        e(f"s_or_b32 s{S_T0}, s2, s{S_W}")
        e(f"s_cmp_eq_u32 s{S_T0}, 0")
        e(f"s_cselect_b32 s{S_T0}, {EPOCH_OFF}, s{S_OOB}")
        e(f"v_mov_b32 v{V_T}, s{S_EPOCH}")
        e("s_mov_b64 exec, 1")
        e(f"buffer_store_dword v{V_T}, off, {srd(SWS)}, s{S_T0} sc1")
        e("s_mov_b64 exec, -1")
        if opt.get("stamp"):
            tm = "s_memrealtime" if opt.get("rt") else "s_memtime"
            e(f"{tm} s[{SA1}:{SA1+1}]")
            p.wait_all()
            e(f"{tm} s[{SA1+2}:{SA1+3}]")
            e(f"s_memrealtime s[{S_M2}:{S_M2+1}]")
            e(f"s_lshl_b32 s{S_T0}, s2, 2"); e(f"s_add_u32 s{S_T0}, s{S_T0}, s{S_W}")
            e(f"s_lshl_b32 s{S_T0}, s{S_T0}, 7"); e(f"s_add_u32 s{S_T0}, s{S_T0}, {STAMP1_OFF}")
            e("s_waitcnt lgkmcnt(0)")
            for k, r in enumerate(STAMP_REGS + [SA1, SA1 + 2, 94, S_M2, S_WB + 2, S_SPIN, S_WB + 1]):
                e(f"v_mov_b32 v6, s{r}")
                e(f"buffer_store_dword v6, off, {srd(SWS)}, s{S_T0} offset:{4*k}")
        p.label("K1_END")
        e("s_endpgm")
        if not opt.get("split", 0):
            p.label("K2_LATE_OK")
        p.label("K2_LATE_SLOW")
        e(f"s_sleep {opt.get('done_sleep', 8)}")
        e(f"s_add_u32 s{S_WB+1}, s{S_WB+1}, 1")
        e(f"s_cmp_gt_u32 s{S_WB+1}, 100000")
        e("s_cbranch_scc1 K2_LATE_OK")
        done_load()
        e("s_waitcnt vmcnt(0)")
        done_check()
        e("s_branch K2_LATE_OK")
        p.label("K2_SLOW")
        e("s_sleep 2")
        e(f"s_add_u32 s{S_SPIN}, s{S_SPIN}, 1")
        e(f"s_cmp_gt_u32 s{S_SPIN}, 100000")
        e("s_cbranch_scc1 K2_OK")
        part_loads()
        e("s_waitcnt vmcnt(0)")
        part_check()
        e("s_branch K2_OK")

    def build_dsd(self):
        p, e, o = self.p, self.p.e, self.opt
        global MIXED
        MIXED = bool(o.get("split"))
        self.JA = V_PRE
        self.prologue()
        e(f"s_cmp_eq_u32 s{S_TYPE}, 2")
        e("s_cbranch_scc1 K1_TYPE_C")
        snap0 = self.snapshot()
        self.prologue2("F", o.get("npre", 2))
        self.a_job_setup("AB")
        e(f"s_cmp_eq_u32 s{S_TYPE}, 1")
        e("s_cbranch_scc1 K1_TYPE_B")
        snap = self.snapshot()
        g1, g2 = o.get("lb_issue", 345), o.get("lb_check", 365)
        jf = lambda tmp: self.flag_later(tmp, None, lambda: self.job_store, JF_OFF, S_CG, S_MT)
        head = [("F", i, S_D1) for i in range(10)] + [("S", i, 0) for i in range(5)]
        for typ in "AB":
            if typ == "B":
                p.label("K1_TYPE_B")
                self.restore(snap)
            m0 = self.mf
            self.norm_every = 2
            fb = self.fork_job(typ, m0, 188, 48)

            def s0():
                self.stamp(4)
                self.epi_done = False
                self.ffn_epilogue(192, S_KD1, 48)
                self.fill.append(lambda: setattr(self, "epi_done", True))
                if MIXED:
                    self.fill.append(lambda: self.flag_later(66, None, lambda t=self.last_store: t, DONE1_OFF, S_MT, S_CG))

            def wstart():
                assert self.epi_done
                self.jf_check(64, "A", 240, 4)

            def d0(typ=typ, m0=m0):
                self.stamp(5)
                rest, self.fill = self.fill, []
                self.ssm_reduce(0, ACC_S, 188, False, 56)
                k = next(i for i, x in enumerate(self.fill) if isinstance(x, tuple) and x[0] == "bar")
                self.fill = self.fill[:k] + rest + self.fill[k:] if o.get("rest_mid", 1) else self.fill + rest
                self.ssm_finish(0, ACC_S, 188, lambda: self.mf - m0 >= g1, lambda: self.mf - m0 >= g2, typ)
            hooks = {fb: lambda: jf(210), 156: self.stats_to_lds, 161: s0}
            frags = self.d_frags(0, 192, "a") + self.s_frags(10, ACC_S)
            if typ == "A":
                j1 = o.get("jf_at", 250)
                hooks.update({241: d0, j1 - 23: lambda: self.jf_load(64), j1: wstart})
                self.run(head + [("F", i, S_D2) for i in range(10)], frags + self.d_frags(15, ACC_D2), hooks)
                self.stamp(6)
                self.mf += 1000
                tw = o.get("tail_w", 3)
                if o.get("tail_first", 1):
                    self.ffn_tail(ACC_D2, S_KD2, {(0, 0): lambda: self.w_some(tw), (0, 1): lambda: self.w_some(tw)}, 64)
                    self.flush()
                else:
                    self.flush()
                    self.ffn_tail(ACC_D2, S_KD2, {(0, 0): lambda: self.w_some(tw), (0, 1): lambda: self.w_some(tw)}, 64)
            else:
                self.run(head, frags, hooks)
                self.mf += 1000
                self.flush()
                self.fire_timers()
                self.stamp(5)
                self.ssm_reduce(0, ACC_S, 188)
                self.flush()
                self.stamp(6)
                self.jf_load(64)
                self.p.e("s_sleep 32")
                self.jf_check(64, "B", 0, 1)
                self.w_some(o.get("b_w", 30))
                self.ssm_finish(0, ACC_S, 188, None, None, "B")
                self.flush()
            self.stamp(7)
            self.phase2_head(8, typ)
        p.label("K1_TYPE_C")
        self.restore(snap0)
        self.is_c = True
        self.norm_every = 1
        self.prologue2("S", 8)
        self.a_job_setup("C")
        self.path_c(jf, None)
        self.slow_paths()
        self.poll_paths()
        self.phase2()
        p.fix_hazards()
        return p

    def sd_frags(self, accs):
        d = self.d_frags(0, 192, "a")
        out, win = [], 0
        for s in range(40):
            i = s // 8
            ns, nf = 3 * i + 1, 3 * i + (2 if s % 8 >= 4 else 0)
            for mat in range(2):
                c = f"v[{accs[mat]}:{accs[mat]+15}]"
                fr = dict(stage=ns, reads=[f"ds_read_b128 a[{{f0}}:{{f3}}], v{self.AS + s % 8} offset:{(ns % 4)*16384 + mat*8192}"],
                          mfma=f"v_mfma_f32_32x32x16_bf16 {c}, a[{XN+4*s}:{XN+4*s+3}], a[{{f0}}:{{f3}}], {c if s else 0}")
                if s % 8 == 0 and mat == 0:
                    fr["also"] = [nf]
                    if (ns % 8) // 4 != win:
                        win ^= 1
                        fr["pre"] = [f"v_xor_b32 v{self.AS+k}, 0x10000, v{self.AS+k}" for k in range(8)]
                out.append(fr)
            for k in range(4):
                j, mat = k // 2, k % 2
                a = V_TR + 2 * ((nf % 8) // 4) + j
                off = (nf % 4) * 16384 + mat * 8192 + (s % 4) * 2048
                out.append(dict(stage=nf, mfma=d[4 * s + k]["mfma"], reads=[
                    f"ds_read_b64_tr_b16 a[{{f0}}:{{f1}}], v{a} offset:{off}",
                    f"ds_read_b64_tr_b16 a[{{f2}}:{{f3}}], v{a} offset:{off+512}"]))
        return out

    def build_sd(self):
        p, e, o = self.p, self.p.e, self.opt
        self.JA = V_PRE
        self.prologue()
        e(f"s_cmp_eq_u32 s{S_TYPE}, 2")
        e("s_cbranch_scc1 K1_TYPE_C")
        snap0 = self.snapshot()
        self.AS, self.AX = 204, 216
        accs = (188, 216)
        head = []
        for i in range(5):
            head += [("F", 2 * i, S_D1), ("S", i, 0), ("F", 2 * i + 1, S_D1)]
        self.prologue2("SD", o.get("npre", 2), head)
        self.a_job_setup("AB")
        e(f"s_cmp_eq_u32 s{S_TYPE}, 1")
        e("s_cbranch_scc1 K1_TYPE_B")
        snap = self.snapshot()
        g1, g2 = o.get("lb_issue", 345), o.get("lb_check", 365)
        jf = lambda tmp: self.flag_later(tmp, None, lambda: self.job_store, JF_OFF, S_CG, S_MT)
        for typ in "AB":
            if typ == "B":
                p.label("K1_TYPE_B")
                self.restore(snap)
            m0 = self.mf
            fb = self.fork_job(typ, m0, 16, 40)
            stages = head + ([("F", i, S_D2) for i in range(10)] if typ == "A" else [])
            self.auto = dict(next=o.get("sd_first", 7), stages=stages)
            for n in range(5, self.auto["next"]):
                self.issue_stage(n, *stages[n])
                if n == 5:
                    self.dq.extend(self.job_ld)

            def d0(typ=typ, m0=m0):
                self.stamp(5)
                self.ssm_reduce(0, accs, 48, False, 72)
                tail = []
                if o.get("epi_mid", 1):
                    k = next(i for i, x in enumerate(self.fill) if isinstance(x, tuple) and x[0] == "bar")
                    self.fill, tail = self.fill[:k], self.fill[k:]
                n0 = len(self.fill)
                self.epi_done = False
                self.ffn_epilogue(192, S_KD1, 64)
                self.fill.append(lambda: setattr(self, "epi_done", True))
                cut = n0 + o.get("epi_cut", 42)
                self.fill = self.fill[:cut] + tail + self.fill[cut:]
                if typ == "A":
                    pos = len(self.fill)
                    self.ssm_finish(0, accs, 76, None, lambda: self.mf - m0 >= g2, typ)
                    k = next(i for i in range(pos, len(self.fill)) if isinstance(self.fill[i], tuple))
                    lb, self.fill = self.fill[pos:k], self.fill[:pos] + self.fill[k:]
                    at = max(cut + len(tail), pos - o.get("lb_lead", 84))
                    self.fill = self.fill[:at] + [("t", lambda: self.mf - m0 >= g1)] + lb + self.fill[at:]

            def wstart():
                self.jf_check(60, "A", 240, 4)
                self.wskip = 16
            hooks = {fb: lambda: jf(V_PRE + 5), 60: lambda: self.stamp(4), 234: self.stats_to_lds}
            frags = self.sd_frags(accs)
            if typ == "A":
                j1 = o.get("jf_at", 250)
                hooks.update({241: d0, j1 - 23: lambda: self.jf_load(60), j1: wstart})
                self.gemm(frags + self.d_frags(15, ACC_D2), {}, hooks)
                self.stamp(6)
                self.mf += 1000
                tw = o.get("tail_w", 3)
                self.flush()
                self.ffn_tail(ACC_D2, S_KD2, {(0, 0): lambda: self.w_some(tw), (0, 1): lambda: self.w_some(tw)})
            else:
                self.gemm(frags, {}, hooks)
                self.mf += 1000
                d0()
                self.flush()
                self.fire_timers()
                self.stamp(6)
                self.jf_load(60)
                self.p.e("s_sleep 32")
                self.jf_check(60, "B", 0, 1)
                self.w_some(o.get("b_w", 30))
                self.ssm_finish(0, accs, 76, None, None, "B")
                self.flush()
            self.auto = None
            self.wskip = 0
            self.stamp(7)
            self.phase2_head(8, typ)
        p.label("K1_TYPE_C")
        self.restore(snap0)
        self.AS, self.AX = V_AS, V_AS + 8
        self.is_c = True
        self.prologue2("S", 8)
        self.a_job_setup("C")
        self.path_c(jf, None)
        self.slow_paths()
        self.poll_paths()
        self.phase2()
        p.fix_hazards()
        return p

    def build(self):
        p, e, o = self.p, self.p.e, self.opt
        if o.get("order") == "SD":
            global WMAP
            WMAP = [4 * k for k in range(40)] + [192 + 4 * k for k in range(16)] + [160 + 4 * k for k in range(4)]
            return self.build_sd()
        if o.get("order") == "DSD":
            return self.build_dsd()
        global MIXED
        MIXED = o.get("split") == 4
        if o.get("job_mode") == "dma":
            self.JA = V_PRE
        self.prologue()
        if o.get("job_mode") == "dma":
            self.a_job_setup()
        e(f"s_cmp_eq_u32 s{S_TYPE}, 2")
        e("s_cbranch_scc1 K1_TYPE_C")
        e(f"s_cmp_eq_u32 s{S_TYPE}, 1")
        e("s_cbranch_scc1 K1_TYPE_B")
        snap = self.snapshot()
        g1, g2 = o.get("lb_issue", 200), o.get("lb_check", 225)
        fa = o.get("fork_at", 65)
        late = o.get("job_late")
        pre = bool(o.get("pre", 0))
        split = o.get("split", 0)
        jf = lambda tmp: self.flag_later(tmp, o.get("jf_delay"), lambda: self.job_store, JF_OFF, S_CG, S_MT)
        d1 = lambda tmp, dl: self.flag_later(tmp, dl, lambda t=self.last_store: t, DONE1_OFF, S_MT, S_CG)
        head = [("S", i, 0) for i in range(5)] + [("F", i, S_D1) for i in range(10)]
        for typ in "AB":
            if typ == "B":
                p.label("K1_TYPE_B")
                self.restore(snap)
            m0 = self.mf
            fb = self.fork_job(typ, m0, 188, RAW + 132 if fa >= 65 else 48)

            def a1():
                self.stamp(4)
                if fa == 65:
                    self.stats_to_lds()
                self.ssm_reduce(0, ACC_S, 188, pre)

            def a1b(typ=typ, m0=m0):
                if fa == 65:
                    a1()
                self.q_done = not pre
                if pre:
                    self.ssm_pre(0, ACC_S, ACC_D2)
                self.ssm_finish(0, ACC_S, 188, lambda: self.mf - m0 >= g1, lambda: self.mf - m0 >= g2, typ,
                                ACC_D2 if pre else None)

            def a2():
                while not self.q_done:
                    it = self.fill.pop(0)
                    if not isinstance(it, tuple):
                        it()
                self.stamp(5)
                rest = []
                if split == 4:
                    rest, self.fill = self.fill, []
                self.ffn_epilogue(ACC_D1, S_KD1)
                if split:
                    self.fill.append(lambda: d1(226, o.get("d1_delay")))
                self.fill += rest
            hooks = {fb: lambda a1b=a1b: (jf(224), a1b())}
            if o.get("job_spread"):
                self.JD = 112
                hooks = {fb: lambda: self.job_stores(112, lambda: jf(224)), fb + 1: a1b}
            if fb < 70:
                hooks = {fb: lambda: jf(V_PRE + 5), 81: lambda a1=a1, a1b=a1b: (a1(), a1b()), 70: self.stats_to_lds}
            elif fa != 65:
                hooks[81] = a1
                hooks[70] = self.stats_to_lds
            if late:
                for q5, at in enumerate(late):
                    hooks[at] = self.job_ld[q5]
            frags = self.s_frags(0, ACC_S) + self.d_frags(5, ACC_D1)
            if typ == "A":
                j1 = o.get("jf_at", 240)
                if o.get("ct1"):
                    hooks[o["ct1"]] = lambda: self.code_touch("A1", "CT_A1", "K1_TYPE_B", 228)
                if o.get("ct2"):
                    hooks[o["ct2"]] = lambda: self.code_touch("A2", "K2_START", "TEXT_END", 228)
                hooks.update({240: a2, j1 - 23: lambda: self.jf_load(224), j1 + 1: lambda: self.jf_check(224, "A", 240, 4)})
                self.run(head + [("F", i, S_D2) for i in range(10)], frags + self.d_frags(15, ACC_D2), hooks)
                self.stamp(6)
                if split == 4:
                    self.fire_timers()
                self.flush()
                if o.get("d1_at_end", 1):
                    self.fire_timers()
                if split == 4:
                    self.head_a("A")
                tw = o.get("tail_w", 3)
                self.ffn_tail(ACC_D2, S_KD2, {(0, 0): lambda: self.w_some(tw), (0, 1): lambda: self.w_some(tw),
                                              (1, 0): self.fire_timers,
                                              (1, o.get("early_mid", 0) - 1): lambda: self.h.__setitem__("t_early", self.early_load())})
            else:
                self.run(head, frags, hooks)
                self.stamp(5)
                self.mf += 1000
                self.fire_timers()
                self.flush()
                self.stamp(6)
                self.jf_load(224)
                self.ffn_tail(ACC_D1, S_KD1)
                if split == 4:
                    d1(226, None)
                    self.fire_timers()
                self.jf_check(224, "B", 0, 1)
            self.stamp(7)
            self.phase2_head(8, typ)
        p.label("K1_TYPE_C")
        self.restore(snap)
        self.path_c(jf, d1)
        self.slow_paths()
        self.poll_paths()
        self.phase2()
        p.fix_hazards()
        return p

    def path_c(self, jf, d1):
        p, e, o = self.p, self.p.e, self.opt
        late, split = o.get("job_late"), o.get("split", 0) and not MIXED
        stages = [("S", i % 5, i // 5) for i in range(15)]
        m0 = self.mf
        self.opt = dict(o, fork_at=o.get("fork_at_c", 65))
        fb = self.fork_job("C", m0, 112, 144 if o.get("job_spread") else 136)
        self.JD = 124
        if o.get("job_spread"):
            fb0, fb = fb, 81

        def c1():
            self.stamp(4)
            self.stats_to_lds()
            if not o.get("job_spread"):
                jf(168)
            self.ssm_reduce(0, 16, 152)
            for b in (1, 2):
                self.q(*self.ssm_consts(b, V_C + 12 * b + 6, 112))
                self.zero_row(b, 112)

        def c2():
            self.stamp(5)
            self.ssm_reduce(1, 48, 152)
            self.ssm_finish(0, 16, 112, None, lambda: self.mf - m0 >= 215, "C0")
        hooks = {fb: c1, 161: c2, 215: lambda: self.jf_load(168)}
        if o.get("job_spread"):
            hooks[fb0] = lambda: self.job_stores(124, lambda: jf(168))
        if late:
            for q5 in range(5):
                hooks[4 + 10 * q5] = self.job_ld[q5]
        self.run(stages, self.s_frags(0, 16) + self.s_frags(5, 48) + self.s_frags(10, 80), hooks)
        self.stamp(6)
        self.jf_check(168, "C", 0, 1)
        self.mf += 1000
        we = o.get("c_wevery", 16)
        self.flush(we)
        self.ssm_reduce(2, 80, 152)
        self.ssm_finish(1, 48, 112, None, None, "C1")
        self.flush(we)
        self.stamp(7)
        if split:
            d1(168, 0)
        self.ssm_finish(2, 80, 112, None, None, "C2")
        if split:
            self.fill.insert(o.get("c_d1_at", 60), self.fire_timers)
        self.flush(o.get("c_wevery2", 0))
        self.phase2_head(8, "C")


DESC = K1_DESC.replace("proj_kernel", NAME)
```

```python
import struct
from asmlib import Prog, cost_of
from layout import *

S_W, S_MT, S_CG, S_R = 4, 5, 6, 7
SX, SS, SF, SWS, SA1, SA2 = 8, 12, 16, 20, 24, 28
S_T0, S_T1, S_T2, S_T3 = 32, 33, 34, 35
K_X, K_LRE, K_LIM, K_BRE, K_BIM, K_CRE, K_CIM, K_LDT = 36, 38, 40, 42, 44, 46, 48, 50
K_DSK, K_BX, K_WG, K_WU, K_WD, K_OUT, K_DBG, K_WS = 52, 54, 56, 58, 60, 62, 64, 66
S_KS = 68
S_KF = 73
S_W4K, S_XB, S_SB, S_SBROW, S_D1, S_D2, S_TYPE, S_EPOCH, S_MASK = 78, 79, 80, 81, 82, 83, 84, 85, 86
S_A2ROW, S_GK2, S_JOB, S_KD1, S_KD2, S_SPIN, S_J1 = 87, 88, 89, 90, 91, 92, 93
S_J2 = 3
STAMP_REGS = [96, 54, 64, 36, 38, 40, 50, 66, 42, 44, 56, 58, 46]
S_HM = 98
S_M2 = 100

V_LANE, V_OF, V_TR, V_STA, V_GK1, V_SEG, V_PUB, V_XW, V_XR = 1, 2, 6, 10, 11, 12, 13, 14, 15
RAW = 16
ACC_S, ACC_D1, ACC_D2 = 16, 48, 112
V_C = 176
V_OS = 212
V_AS = 216
V_JC = 228
V_JW = 208
V_LBO = 232
V_TW = 234
V_PRE = 237
V_STAMP = 243
V_X = 244
XN = 0
FR = 160

LDS_SCR = 131072
SCR_W = 8192
XCH = LDS_SCR + 6144
STL = LDS_SCR + 3 * SCR_W + 6144
K1_LDS = 163840

LOG2E = 1.4426950408889634
GK1 = -2.0 * 0.7978845608028654 * LOG2E
GK2 = GK1 * 0.044715


def fx(x):
    return "0x%08x" % struct.unpack("<I", struct.pack("<f", x))[0]


def srd(n):
    return f"s[{n}:{n+3}]"


class K1:
    def __init__(self, opt):
        self.opt = opt
        self.p = Prog()
        self.fill = []
        self.dq = []
        self.norm = []
        self.stage_tok = {}
        self.pre_barrier = []
        self.nbar = 0
        self.mf = 0
        self.seen = set()
        self.slow = []
        self.refused = []
        self.after_first_barrier = None
        self.wt = opt.get("wt", " sc1")
        self.name = "proj_kernel"
        self.fused = False
        self.wq = []
        self.last_store = None
        self.vgap = 0
        self.on_barrier = []
        self.timers = []
        self.lazy = []
        self.in_fork = False
        self.norm_every = 1
        self.AS, self.AX = V_AS, V_AS + 8
        self.jit = []
        self.wskip = 0
        self.auto = None
        self.fork = None
        self.vjc = V_JC

    def stamp(self, k, x=False):
        if not self.opt.get("stamp") or (k >= 10 and not x and self.opt.get("xstamps")):
            return
        r = STAMP_REGS[k]
        ins = "s_memrealtime" if self.opt.get("rt") else "s_memtime"
        self.p.e(f"{ins} s[{r}:{r+1}]")
        if self.opt.get("verbose"):
            print("stamp", k, "slots", self.p.slots, "fill left", len(self.fill))

    def stamp_out(self, n):
        if not self.opt.get("stamp"):
            return
        p, e = self.p, self.p.e
        self.stamp(n)
        p.wait_all()
        self.stamp(n + 1)
        e(f"s_memrealtime s[{S_M2}:{S_M2+1}]")
        e(f"s_lshl_b32 s{S_T0}, s2, 2"); e(f"s_add_u32 s{S_T0}, s{S_T0}, s{S_W}")
        e(f"s_lshl_b32 s{S_T0}, s{S_T0}, 6"); e(f"s_add_u32 s{S_T0}, s{S_T0}, {STAMP1_OFF}")
        e("s_waitcnt lgkmcnt(0)")
        for k, r in enumerate(STAMP_REGS[:13]):
            e(f"v_mov_b32 v{V_STAMP}, s{r}")
            e(f"buffer_store_dword v{V_STAMP}, off, {srd(SWS)}, s{S_T0} offset:{4*k}")
        for k, r in ((13, S_SPIN), (14, 94), (15, S_M2)):
            e(f"v_mov_b32 v{V_STAMP}, s{r}")
            e(f"buffer_store_dword v{V_STAMP}, off, {srd(SWS)}, s{S_T0} offset:{4*k}")

    def issue_stage(self, n, kind, i, arg):
        e = self.p.e
        slot = n % 8

        def piece(q):
            if q == 0:
                e(f"s_mov_b32 m0, s{S_J1}" if kind in "WJ" else f"s_add_u32 m0, s{S_W4K}, {slot*16384}")
                if kind == "S":
                    e(f"s_add_u32 s{S_T0}, s{S_SBROW}, s{S_KS+i}")
                    if arg:
                        e(f"s_add_u32 s{S_T0}, s{S_T0}, {arg*32*1280}")
                elif kind == "F":
                    e(f"s_add_u32 s{S_T0}, s{arg}, s{S_KF+(i>>1)}")
                    if i & 1:
                        e(f"s_add_u32 s{S_T0}, s{S_T0}, {64*3456}")
                elif kind == "J":
                    e(f"s_mov_b32 s{S_T0}, s{S_JOB}")
                else:
                    self.job_source(kind, i)
            vo, d, off = {"S": (V_OS + q, SS, q), "F": (V_OF + q, SF, q), "W": (V_JW + q, SA1, q),
                          "C": (self.vjc + q % 2, SA1 if q < 2 else SA2, q % 2),
                          "J": (self.vjc + q % 2, SA1 if q < 2 else SA2, q % 2)}[kind]
            if kind in "CJ" and q == 2:
                e("s_add_u32 m0, m0, 2048")
                if kind == "J":
                    e(f"s_add_u32 s{S_T0}, s{S_T0}, s{S_XB}")
            t = e(f"buffer_load_dwordx4 v{vo}, {srd(d)}, s{S_T0} offen offset:{1024*off}{self.opt.get('nt' + kind, '')} lds")
            if q == 3:
                self.stage_tok[n] = t
        for q in range(4):
            self.dq.append(lambda q=q: piece(q))

    def dma(self):
        if self.dq:
            self.dq.pop(0)()

    def barrier(self, *toks):
        p = self.p
        p.wait(*toks, *self.pre_barrier)
        self.pre_barrier = []
        for it in [x for x in self.lazy if x[0][1] <= p.vdone]:
            self.lazy.remove(it)
            self.on_barrier.append(it[1])
        p.e("s_barrier")
        self.nbar += 1
        cbs, self.on_barrier = self.on_barrier, []
        for f in cbs:
            f()
        if self.after_first_barrier:
            f, self.after_first_barrier = self.after_first_barrier, None
            f()

    def pull(self, budget):
        p = self.p
        start = p.slots
        while self.fill and p.slots - start < budget:
            it = self.fill[0]
            if isinstance(it, tuple):
                if not it[1]():
                    return
                self.fill.pop(0)
                continue
            if p.slots - start + getattr(it, "cost", 1) > budget and not (it in self.refused):
                self.refused.append(it)
                return
            self.fill.pop(0)
            it()

    def flush(self, wevery=0):
        mark = self.p.slots
        while self.fill:
            if wevery and len(self.wq) > self.opt.get("w_keep", 12) and self.p.slots - mark >= wevery:
                self.wq.pop(0)()
                mark = self.p.slots
            it = self.fill.pop(0)
            if isinstance(it, tuple):
                if it[0] == "bar" and not it[1]():
                    self.barrier()
                continue
            it()

    def gemm(self, frags, plan, hooks=None):
        p, o = self.p, self.opt
        LA = 7
        toks = {}
        n = len(frags)
        last = {}
        for i_, fr_ in enumerate(frags):
            last[fr_["stage"]] = i_

        def read(idx):
            fr = frags[idx]
            st = fr["stage"]
            if st not in self.seen:
                grpst = [st] + fr.get("also", [])
                self.seen.update(grpst)
                while any(x not in self.stage_tok for x in grpst):
                    self.dma()
                self.barrier(*[self.stage_tok[x] for x in grpst])
                if self.auto:
                    a = self.auto
                    while a["next"] < len(a["stages"]) and last.get(a["next"] - 8, -99) <= idx - LA:
                        self.issue_stage(a["next"], *a["stages"][a["next"]])
                        a["next"] += 1
                elif st in plan:
                    plan[st]()
            for x in fr.get("pre", []):
                p.e(x)
            r = FR + 4 * (idx % 8)
            for txt in fr["reads"]:
                toks[idx] = p.e(txt.format(f0=r, f1=r + 1, f2=r + 2, f3=r + 3))
        for idx in range(LA):
            read(idx)
        grp = o.get("wgrp", 4)
        def step(idx):
            if hooks and idx in hooks:
                hooks[idx]()
            for tm in [t for t in self.timers if t[0] <= self.mf]:
                self.timers.remove(tm)
                tm[1]()
            if idx in o.get("xstamps", []):
                self.stamp(10 + o["xstamps"].index(idx), True)
            if idx % grp == 0:
                p.wait(toks[min(idx + grp - 1, n - 1)])
            start = p.slots
            r = FR + 4 * (idx % 8)
            p.e(frags[idx]["mfma"].format(f0=r, f3=r + 3))
            self.mf += 1
            if idx + LA < n:
                read(idx + LA)
            dper = o.get("dper", 4)
            if self.dq and (idx % dper == 1 or (len(self.dq) > 4 and idx % 2 == 1)):
                self.dma()
                self.vgap = idx
            elif len(self.wq) > o.get("w_keep", 12) and idx - self.vgap >= (o.get("wpace1", 2) if self.dq else o.get("wpace2", 3)):
                n_w = 60 - len(self.wq)
                if n_w < 16 - self.wskip + (idx + 1 - self.wfrom) // self.wper:
                    self.wq.pop(0)()
                    self.vgap = idx
            if self.jit:
                for _ in range(o.get("jit_rate", 4)):
                    if self.jit:
                        p.e(self.jit.pop(0))
                if self.in_fork:
                    self.pull(o.get("fork_bud", 3))
            elif self.norm and idx % self.norm_every == 0:
                if self.in_fork:
                    self.pull(o.get("fork_bud", 4))
                for x in self.norm.pop(0):
                    p.e(x)
            elif o.get("interleave", 1):
                bud = o.get("budget", 8)
                for lo, hi, v in o.get("boost", []):
                    if lo <= idx < hi:
                        bud = v
                self.pull(bud - (p.slots - start) - (1 if (idx + 1) % grp == 0 else 0))


        idx = 0
        while idx < n:
            if self.fork and idx == self.fork[0]:
                a, b, pre, var1, var2, tag = self.fork
                self.fork = None
                pre()
                assert not self.fill
                snap, tk = self.snapshot(), dict(toks)
                self.in_fork = True
                var1()
                for i in range(a, b):
                    step(i)
                assert not self.fill
                p.e(f"s_branch FORK_JOIN_{tag}")
                end1, tk1 = self.snapshot(), dict(toks)
                p.label(f"FORK_ALT_{tag}")
                self.restore(snap)
                toks.clear(); toks.update(tk)
                var2()
                for i in range(a, b):
                    step(i)
                assert not self.fill
                end2 = self.snapshot()
                assert end1[:5] == end2[:5] and all(tk1[k] == toks[k] for k in toks if k >= b)
                p.label(f"FORK_JOIN_{tag}")
                self.in_fork = False
                idx = b
            else:
                step(idx)
                idx += 1

    def s_frags(self, st0, acc):
        out = []
        for s in range(40):
            st = st0 + s // 8
            slot = st % 8
            for mat in range(2):
                a = V_AS + 8 * (slot // 4) + (s % 8)
                off = (slot % 4) * 16384 + mat * 8192
                c = f"v[{acc+16*mat}:{acc+16*mat+15}]"
                cin = c if s else "0"
                out.append(dict(stage=st, reads=[f"ds_read_b128 a[{{f0}}:{{f3}}], v{a} offset:{off}"],
                                mfma=f"v_mfma_f32_32x32x16_bf16 {c}, a[{XN+4*s}:{XN+4*s+3}], a[{{f0}}:{{f3}}], {cin}"))
        return out

    def d_frags(self, st0, acc, f="v"):
        out = []
        for s in range(40):
            st = st0 + s // 4
            slot = st % 8
            for j in range(2):
                for mat in range(2):
                    a = V_TR + 2 * (slot // 4) + j
                    off = (slot % 4) * 16384 + mat * 8192 + (s % 4) * 2048
                    r = acc + 32 * j + 16 * mat
                    c = f"{f}[{r}:{r+15}]"
                    cin = c if s else "0"
                    out.append(dict(stage=st, reads=[
                        f"ds_read_b64_tr_b16 a[{{f0}}:{{f1}}], v{a} offset:{off}",
                        f"ds_read_b64_tr_b16 a[{{f2}}:{{f3}}], v{a} offset:{off+512}"],
                        mfma=f"v_mfma_f32_32x32x16_bf16 {c}, a[{{f0}}:{{f3}}], a[{XN+4*s}:{XN+4*s+3}], {cin}"))
        return out

    def q(self, *texts):
        for t in texts:
            if isinstance(t, list):
                f = lambda t=t: [self.p.e(x) for x in t]
                f.cost = len(t)
            else:
                f = lambda t=t: self.p.e(t)
                f.cost = cost_of(t)
            self.fill.append(f)

    def lag(self, n):
        st = {}
        self.fill.append(lambda: st.__setitem__("m", self.mf))
        self.fill.append(("t", lambda: self.mf >= st["m"] + n))

    def ffn_tail(self, acc, s_k, mid=None, K=ACC_S):
        e = self.p.e
        T = V_X
        e(f"v_mov_b32 v{K}, v{V_GK1}"); e(f"v_mov_b32 v{K+1}, v{V_GK1}")
        e(f"v_mov_b32 v{K+2}, s{S_GK2}"); e(f"v_mov_b32 v{K+3}, s{S_GK2}")
        e(f"v_mov_b32 v{K+4}, 1.0"); e(f"v_mov_b32 v{K+5}, 1.0")
        for j in range(2):
            g0, u0 = acc + 32 * j, acc + 32 * j + 16
            for half in range(2):
                prs = [(g0 + 8 * half + 2 * k, u0 + 8 * half + 2 * k, K + 6 + 2 * k) for k in range(4)]
                pr = lambda r: f"v[{r}:{r+1}]"
                for g, u, t in prs:
                    e(f"v_pk_mul_f32 {pr(t)}, {pr(g)}, {pr(g)}")
                for g, u, t in prs:
                    e(f"v_pk_fma_f32 {pr(t)}, {pr(t)}, {pr(K+2)}, {pr(K)}")
                for g, u, t in prs:
                    e(f"v_pk_mul_f32 {pr(t)}, {pr(t)}, {pr(g)}")
                for g, u, t in prs:
                    e(f"v_exp_f32 v{t}, v{t}")
                    e(f"v_pk_mul_f32 {pr(u)}, {pr(u)}, {pr(g)}")
                    e(f"v_exp_f32 v{t+1}, v{t+1}")
                for g, u, t in prs:
                    e(f"v_pk_add_f32 {pr(t)}, {pr(t)}, {pr(K+4)}")
                d = T + 4 + 4 * half
                for k, (g, u, t) in enumerate(prs):
                    e(f"v_rcp_f32 v{t}, v{t}")
                    if k:
                        g1, u1, t1 = prs[k - 1]
                        e(f"v_pk_mul_f32 {pr(u1)}, {pr(u1)}, {pr(t1)}")
                    e(f"v_rcp_f32 v{t+1}, v{t+1}")
                    if k:
                        e(f"v_cvt_pk_bf16_f32 v{d+k-1}, v{u1}, v{u1+1}")
                if j == 1 and half == 0:
                    e(f"s_add_u32 s{s_k}, s{s_k}, 4096")
                if mid and (j, half) in mid:
                    mid[j, half]()
                g1, u1, t1 = prs[3]
                e(f"v_pk_mul_f32 {pr(u1)}, {pr(u1)}, {pr(t1)}")
                e(f"v_cvt_pk_bf16_f32 v{d+3}, v{u1}, v{u1+1}")
                self.last_store = e(f"buffer_store_dwordx4 v[{d}:{d+3}], v{V_STA}, {srd(SWS)}, s{s_k} offen offset:{512*half}{self.wt}")

    def ffn_epilogue(self, acc, s_k, via=None):
        T = V_X
        for j in range(2):
            g0, u0 = acc + 32 * j, acc + 32 * j + 16
            for half in range(2):
                for pair in range(4):
                    i = 8 * half + 2 * pair
                    ga, gb, ua, ub = g0 + i, g0 + i + 1, u0 + i, u0 + i + 1
                    ta, tb = T + 2 * (pair % 2), T + 2 * (pair % 2) + 1
                    d = T + 4 + 4 * half + pair
                    if via is not None:
                        x = via + 4 * (pair % 2)
                        self.q(*[f"v_accvgpr_read_b32 v{x+k}, a{r}" for k, r in enumerate((ga, gb, ua, ub))])
                        ga, gb, ua, ub = x, x + 1, x + 2, x + 3
                    self.q(f"v_mul_f32 v{ta}, v{ga}, v{ga}", f"v_mul_f32 v{tb}, v{gb}, v{gb}",
                           f"v_fma_f32 v{ta}, v{ta}, s{S_GK2}, v{V_GK1}", f"v_fma_f32 v{tb}, v{tb}, s{S_GK2}, v{V_GK1}",
                           f"v_mul_f32 v{ta}, v{ta}, v{ga}", f"v_mul_f32 v{tb}, v{tb}, v{gb}",
                           f"v_exp_f32 v{ta}, v{ta}", f"v_exp_f32 v{tb}, v{tb}",
                           f"v_mul_f32 v{ua}, v{ua}, v{ga}", f"v_mul_f32 v{ub}, v{ub}, v{gb}",
                           f"v_add_f32 v{ta}, 1.0, v{ta}", f"v_add_f32 v{tb}, 1.0, v{tb}",
                           f"v_rcp_f32 v{ta}, v{ta}", f"v_rcp_f32 v{tb}, v{tb}",
                           f"v_mul_f32 v{ua}, v{ua}, v{ta}", f"v_mul_f32 v{ub}, v{ub}, v{tb}",
                           f"v_cvt_pk_bf16_f32 v{d}, v{ua}, v{ub}")
                d = T + 4 + 4 * half
                if j == 1 and half == 0:
                    self.q(f"s_add_u32 s{s_k}, s{s_k}, 4096")
                f = lambda d=d, half=half: setattr(self, "last_store", self.p.e(
                    f"buffer_store_dwordx4 v[{d}:{d+3}], v{V_STA}, {srd(SWS)}, s{s_k} offen offset:{512*half}{self.wt}"))
                f.cost = 2
                self.fill.append(f)

    @staticmethod
    def cmul(dr, di, ar, ai, br, bi):
        return [f"v_mul_f32 v{dr}, v{ar}, v{br}", f"v_mul_f32 v{di}, v{ar}, v{bi}",
                f"v_fma_f32 v{dr}, -v{ai}, v{bi}, v{dr}", f"v_fma_f32 v{di}, v{ai}, v{br}, v{di}"]

    def ssm_consts(self, b, praw, u):
        c = V_C + 12 * b
        lr, li, dt = praw, praw + 1, praw + 2
        L = [f"v_lshlrev_b32 v{lr}, 16, v{lr}", f"v_lshlrev_b32 v{li}, 16, v{li}", f"v_lshlrev_b32 v{dt}, 16, v{dt}",
             f"v_mul_f32 v{dt}, {fx(LOG2E)}, v{dt}", f"v_exp_f32 v{dt}, v{dt}",
             f"v_cvt_pk_bf16_f32 v{dt}, v{dt}, v{dt}", f"v_lshlrev_b32 v{dt}, 16, v{dt}",
             f"v_mul_f32 v{u}, v{dt}, v{lr}", f"v_mul_f32 v{u+1}, v{dt}, v{li}",
             f"v_mul_f32 v{u}, {fx(LOG2E)}, v{u}", f"v_mul_f32 v{u+1}, 0.15915494, v{u+1}",
             f"v_exp_f32 v{u}, v{u}", f"v_fract_f32 v{u+1}, v{u+1}",
             f"v_cos_f32 v{u+2}, v{u+1}", f"v_sin_f32 v{u+3}, v{u+1}",
             f"v_mul_f32 v{c}, v{u}, v{u+2}", f"v_mul_f32 v{c+1}, v{u}, v{u+3}",
             f"v_add_f32 v{u}, -1.0, v{c}",
             f"v_mul_f32 v{u+1}, v{lr}, v{lr}", f"v_fma_f32 v{u+1}, v{li}, v{li}, v{u+1}",
             f"v_rcp_f32 v{u+1}, v{u+1}",
             f"v_mul_f32 v{u+2}, v{u}, v{lr}", f"v_fma_f32 v{u+2}, v{c+1}, v{li}, v{u+2}",
             f"v_mul_f32 v{u+3}, v{c+1}, v{lr}", f"v_fma_f32 v{u+3}, -v{u}, v{li}, v{u+3}",
             f"v_add_f32 v{u+1}, v{u+1}, v{u+1}",
             f"v_mul_f32 v{c+2}, v{u+2}, v{u+1}", f"v_mul_f32 v{c+3}, v{u+3}, v{u+1}"]
        L += self.cmul(u, u + 1, c, c + 1, c, c + 1)
        L += self.cmul(u + 2, u + 3, u, u + 1, u, u + 1)
        L += self.cmul(u, u + 1, u + 2, u + 3, u + 2, u + 3)
        L += self.cmul(c + 4, c + 5, u, u + 1, u, u + 1)
        L += self.cmul(u, u + 1, c + 4, c + 5, c + 4, c + 5)
        L += self.cmul(u + 2, u + 3, u, u + 1, u, u + 1)
        L += self.cmul(c + 8, c + 9, u + 2, u + 3, u + 2, u + 3)
        L += self.cmul(c + 10, c + 11, c + 8, c + 9, c + 8, c + 9)
        hm, m2 = f"s[{S_HM}:{S_HM+1}]", f"s[{S_M2}:{S_M2+1}]"
        L += [f"v_cndmask_b32 v{u+4}, 1.0, v{c+4}, {hm}", f"v_cndmask_b32 v{u+5}, 0, v{c+5}, {hm}",
              [f"s_bitcmp1_b32 s{S_W}, 0", f"s_cselect_b64 {m2}, -1, 0"],
              f"v_cndmask_b32 v{u}, 1.0, v{u}, {m2}", f"v_cndmask_b32 v{u+1}, 0, v{u+1}, {m2}"]
        L += self.cmul(u + 6, u + 7, u + 4, u + 5, u, u + 1)
        L += [[f"s_bitcmp1_b32 s{S_W}, 1", f"s_cselect_b64 {m2}, -1, 0"],
              f"v_cndmask_b32 v{u+2}, 1.0, v{u+2}, {m2}", f"v_cndmask_b32 v{u+3}, 0, v{u+3}, {m2}"]
        L += self.cmul(c + 6, c + 7, u + 6, u + 7, u + 2, u + 3)
        return L

    def ex_base(self, sreg, b):
        return [f"s_add_u32 s{sreg}, s{S_SB}, {b}", f"s_mul_i32 s{sreg}, s{sreg}, {EX_BLK}",
                f"s_add_u32 s{sreg}, s{sreg}, {EX_OFF}"]

    def ssm_reduce(self, b, acc, X, keep=False, T=V_X):
        p = self.p
        c = V_C + 12 * b
        re, im = acc if isinstance(acc, tuple) else (acc, acc + 16)
        cur = (re, im)
        if b == 0 and not self.fused:
            self.q(f"v_mov_b32 v{T+4}, 0", f"v_min_u32 v{T+5}, 6, v{V_SEG}", f"v_sub_u32 v{T+5}, v{T+5}, v{V_SEG}",
                   f"v_lshl_add_u32 v{T+5}, v{T+5}, 3, v{V_XR}", f"ds_write2_b32 v{T+5}, v{T+4}, v{T+4} offset1:1")
        for t in range(1, 16):
            d = (re + t, im + t) if keep else ((T, T + 1) if t % 2 else (T + 2, T + 3))
            self.q(f"v_fma_f32 v{d[0]}, -v{c+1}, v{cur[1]}, v{re+t}", f"v_fma_f32 v{d[1]}, v{c+1}, v{cur[0]}, v{im+t}",
                   f"v_fma_f32 v{d[0]}, v{c}, v{cur[0]}, v{d[0]}", f"v_fma_f32 v{d[1]}, v{c}, v{cur[1]}, v{d[1]}")
            cur = d
        hr, hi = cur
        st = {}

        def wr():
            st["wr"] = p.e(f"ds_write2_b32 v{V_XR}, v{hr}, v{hi} offset0:14 offset1:15")
        self.fill.append(wr)
        self.lag(self.opt.get("xlag", 3))

        def arm():
            self.pre_barrier.append(st["wr"])
            st["bar"] = self.nbar
        self.fill.append(arm)
        self.fill.append(("bar", lambda: self.nbar > st["bar"]))
        E = X
        pr, pi = V_PRE + 2 * b, V_PRE + 2 * b + 1

        def rd():
            for k in range(3):
                p.e(f"ds_read2_b64 v[{E+4*k}:{E+4*k+3}], v{V_XR} offset0:{2*k} offset1:{2*k+1}")
            st["t"] = p.e(f"ds_read_b64 v[{E+12}:{E+13}], v{V_XR} offset:48")
        rd.cost = 4
        self.fill.append(rd)
        g = T + 4
        self.q(f"v_mov_b32 v{g+1}, s{S_EPOCH}", f"v_mov_b32 v{g+3}, s{S_EPOCH}", *self.ex_base(S_T2, b))
        self.lag(4)
        self.fill.append(lambda: p.wait(st["t"]))
        cur = (E, E + 1)
        for j in range(1, 7):
            er, ei = E + 2 * j, E + 2 * j + 1
            d = (pr, pi) if j == 6 else (er, ei)
            self.q(f"v_fma_f32 v{er}, -v{c+5}, v{cur[1]}, v{er}", f"v_fma_f32 v{ei}, v{c+5}, v{cur[0]}, v{ei}",
                   f"v_fma_f32 v{d[0]}, v{c+4}, v{cur[0]}, v{er}", f"v_fma_f32 v{d[1]}, v{c+4}, v{cur[1]}, v{ei}")
            cur = d
        self.q(f"v_fma_f32 v{g}, -v{c+5}, v{pi}, v{hr}", f"v_fma_f32 v{g+2}, v{c+5}, v{pr}, v{hi}",
               f"v_fma_f32 v{g}, v{c+4}, v{pr}, v{g}", f"v_fma_f32 v{g+2}, v{c+4}, v{pi}, v{g+2}",
               f"buffer_store_dwordx4 v[{g}:{g+3}], v{V_PUB}, {srd(SWS)}, s{S_T2} offen sc1")

    def ssm_pre(self, b, acc, Q):
        c = V_C + 12 * b
        T = V_X
        re, im = acc if isinstance(acc, tuple) else (acc, acc + 16)
        self.q(*self.cmul(Q, Q + 16, c + 2, c + 3, c, c + 1))
        for t in range(16):
            o = T + 2 * (t % 2)
            self.q(f"v_mul_f32 v{o}, v{c+3}, v{im+t}", f"v_mul_f32 v{o+1}, v{c+3}, v{re+t}",
                   f"v_fma_f32 v{re+t}, v{c+2}, v{re+t}, -v{o}", f"v_fma_f32 v{im+t}, v{c+2}, v{im+t}, v{o+1}")
            if t < 15:
                self.q(*self.cmul(Q + t + 1, Q + 17 + t, Q + t, Q + 16 + t, c, c + 1))

    def lb_issue(self, i, LB, A):
        p = self.p
        p.e(f"v_add_u32 v{A}, {-1024*i & 0xffffffff:#x}, v{V_LBO}" if i else f"v_mov_b32 v{A}, v{V_LBO}")
        p.e(f"v_max_i32 v{A}, v{A}, v{V_LBO+1}")
        if self.opt.get("dbg_nolb"):
            p.e(f"v_mov_b32 v{A}, v{V_LBO+1}")
        return p.e(f"buffer_load_dwordx4 v[{LB+4*i}:{LB+4*i+3}], v{A}, {srd(SWS)}, s{S_T3} offen sc1")

    def lb_mix(self, LB, A):
        L = [f"v_mov_b32 v{A+1}, s{S_EPOCH}"]
        for i in range(8):
            d = A if i == 0 else A + 2 + i % 2
            L.append(f"v_bitop3_b32 v{d}, v{LB+4*i+1}, v{LB+4*i+3}, v{A+1} bitop3:0x7e")
            if i and i % 2 == 0:
                L.append(f"v_or3_b32 v{A}, v{A}, v{A+2}, v{A+3}")
        L.append(f"v_or_b32 v{A}, v{A}, v{A+3}")
        return L

    def lb_check(self, LB, A, tag):
        p = self.p
        for x in self.lb_mix(LB, A):
            p.e(x)
        p.e(f"v_cmp_ne_u32 vcc, 0, v{A}")
        p.e(f"s_cbranch_vccnz LB_SLOW_{tag}")

    def ssm_finish(self, b, acc, LB, gate_issue, gate_check, tag, Q=None, between=None):
        p = self.p
        c = V_C + 12 * b
        PRE = V_PRE + 2 * b
        st = {}
        if gate_issue is not None:
            self.fill.append(("t", gate_issue))
        A = LB + 32
        self.q(*self.ex_base(S_T3, b), f"s_mov_b32 s{S_SPIN}, 0")
        for i in range(8):
            def f(i=i):
                st["t"] = self.lb_issue(i, LB, A)
            self.fill.append(f)
        if between:
            between()
        if gate_check is not None:
            self.fill.append(("t", gate_check))

        self.fill.append(lambda: p.wait(st["t"]))
        self.q(*self.lb_mix(LB, A))

        def check():
            p.e(f"v_cmp_ne_u32 vcc, 0, v{A}")
            p.e(f"s_cbranch_vccnz LB_SLOW_{tag}")
            p.label(f"LB_OK_{tag}")
            self.slow.append((tag, LB, A))
        self.fill.append(check)
        pr, pi = A, A + 1
        self.q(f"v_mov_b32 v{pr}, v{LB+28}", f"v_mov_b32 v{pi}, v{LB+30}")
        for i in range(6, -1, -1):
            er, ei = LB + 4 * i, LB + 4 * i + 2
            self.q(f"v_fma_f32 v{er}, -v{c+11}, v{pi}, v{er}", f"v_fma_f32 v{ei}, v{c+11}, v{pr}, v{ei}",
                   f"v_fma_f32 v{pr}, v{c+10}, v{pr}, v{er}", f"v_fma_f32 v{pi}, v{c+10}, v{pi}, v{ei}")
        r0, i0, r1, i1 = LB, LB + 1, LB + 2, LB + 3
        self.q(f"v_mov_b32 v{r0}, v{pr}", f"v_mov_b32 v{r1}, v{pr}", f"v_mov_b32 v{i0}, v{pi}", f"v_mov_b32 v{i1}, v{pi}",
               f"v_permlane32_swap_b32 v{r0}, v{r1}", f"v_permlane32_swap_b32 v{i0}, v{i1}",
               f"v_fma_f32 v{r0}, -v{c+9}, v{i1}, v{r0}", f"v_fma_f32 v{i0}, v{c+9}, v{r1}, v{i0}",
               f"v_fma_f32 v{r0}, v{c+8}, v{r1}, v{r0}", f"v_fma_f32 v{i0}, v{c+8}, v{i1}, v{i0}",
               f"v_fma_f32 v{PRE}, -v{c+7}, v{i0}, v{PRE}", f"v_fma_f32 v{PRE+1}, v{c+7}, v{r0}, v{PRE+1}",
               f"v_fma_f32 v{PRE}, v{c+6}, v{r0}, v{PRE}", f"v_fma_f32 v{PRE+1}, v{c+6}, v{i0}, v{PRE+1}")
        re, im = acc if isinstance(acc, tuple) else (acc, acc + 16)
        cur = (PRE, PRE + 1)
        for t in range(16):
            o = LB + 4 + 4 * (t % 2)
            if Q is not None:
                qr, qi = Q + t, Q + 16 + t
                self.q(f"v_fma_f32 v{re+t}, v{qr}, v{PRE}, v{re+t}", f"v_fma_f32 v{im+t}, v{qr}, v{PRE+1}, v{im+t}",
                       f"v_fma_f32 v{re+t}, -v{qi}, v{PRE+1}, v{re+t}", f"v_fma_f32 v{im+t}, v{qi}, v{PRE}, v{im+t}",
                       f"v_cvt_pk_bf16_f32 v{o+2}, v{re+t}, -v{im+t}")
                if t == 15:
                    self.fill.append(lambda: setattr(self, "q_done", True))
            else:
                self.q(f"v_fma_f32 v{re+t}, -v{c+1}, v{cur[1]}, v{re+t}", f"v_fma_f32 v{im+t}, v{c+1}, v{cur[0]}, v{im+t}",
                       f"v_fma_f32 v{re+t}, v{c}, v{cur[0]}, v{re+t}", f"v_fma_f32 v{im+t}, v{c}, v{cur[1]}, v{im+t}")
                cur = (re + t, im + t)
                self.q(f"v_mul_f32 v{o}, v{c+2}, v{re+t}", f"v_mul_f32 v{o+1}, v{c+2}, v{im+t}",
                       f"v_fma_f32 v{o}, -v{c+3}, v{im+t}, v{o}", f"v_fma_f32 v{o+1}, v{c+3}, v{re+t}, v{o+1}",
                       f"v_cvt_pk_bf16_f32 v{o+2}, v{o}, -v{o+1}")

            def w(t=t, o=o):
                st["w"] = p.e(f"ds_write_b32 v{V_TW}, v{o+2} offset:{144*t}")
            self.fill.append(w)
        O = LB + 12
        self.lag(4)

        def rd():
            p.wait(st["w"])
            st["r"] = [p.e(f"ds_read_b128 v[{O+4*f}:{O+4*f+3}], v{V_TW+1} offset:{(f>>1)*2304 + (f&1)*64}")
                       for f in range(4)]
        self.fill.append(rd)
        self.q(f"s_add_u32 s{S_T3}, s{S_SB}, {b}", f"s_lshl_b32 s{S_T3}, s{S_T3}, 13",
               f"s_add_u32 s{S_T3}, s{S_T3}, s{S_A2ROW}", f"s_add_u32 s{S_T3}, s{S_T3}, {54*4096}",
               f"s_add_u32 s{S_T2}, s{S_T3}, 4096")
        self.lag(5)
        for f in range(4):
            def stf(f=f):
                p.wait(st["r"][f])
                so = S_T2 if f & 1 else S_T3
                self.last_store = p.e(f"buffer_store_dwordx4 v[{O+4*f}:{O+4*f+3}], v{V_TW+2}, {srd(SWS)}, s{so} offen offset:{1024*(f>>1)}{self.wt}")
            self.fill.append(stf)
            if f < 3 and self.opt.get("st_lag"):
                self.lag(self.opt["st_lag"])

    def slow_paths(self):
        p = self.p
        for tag, LB, A in self.slow:
            p.label(f"LB_SLOW_{tag}")
            p.e("s_sleep 2")
            p.e(f"s_add_u32 s{S_SPIN}, s{S_SPIN}, 1")
            p.e(f"s_cmp_gt_u32 s{S_SPIN}, 100000")
            p.e(f"s_cbranch_scc1 LB_OK_{tag}")
            for i in range(8):
                self.lb_issue(i, LB, A)
            p.e("s_waitcnt vmcnt(0)")
            self.lb_check(LB, A, tag)
            p.e(f"s_branch LB_OK_{tag}")

    def mk_srd(self, d, ptr, nbytes):
        return [f"s_mov_b32 s{d}, s{ptr}", f"s_mov_b32 s{d+1}, s{ptr+1}",
                f"s_mov_b32 s{d+2}, {nbytes}", f"s_mov_b32 s{d+3}, 0x20000"]

    def prologue(self):
        p, e, q, o = self.p, self.p.e, self.q, self.opt
        hm = f"s[{S_HM}:{S_HM+1}]"
        p.raw(".p2align 8")
        p.label(self.name)
        e("s_cmp_ge_u32 s2, 256")
        e("s_cbranch_scc1 K1_END")
        if o.get("badmap"):
            e("s_lshr_b32 s3, s2, 5")
            e("s_and_b32 s2, s2, 31")
            e("s_lshl_b32 s2, s2, 3")
            e("s_or_b32 s2, s2, s3")
        if o.get("stamp"):
            e("s_memrealtime s[94:95]")
            self.stamp(0)
        e("s_load_dwordx16 s[36:51], s[0:1], 0")
        e("s_load_dwordx16 s[52:67], s[0:1], 64")
        e(f"s_getpc_b64 s[{S_T0}:{S_T1}]")
        p.label("K1_PC")
        e("v_lshrrev_b32 v2, 6, v0")
        e(f"v_and_b32 v{V_LANE}, 63, v0")
        e(f"v_readfirstlane_b32 s{S_W}, v2")
        e("s_lshr_b32 s3, s2, 3")
        e(f"s_lshl_b32 s{S_T2}, s3, 2")
        e(f"s_add_u32 s{S_T2}, s{S_T2}, s{S_W}")
        e(f"s_mul_i32 s{S_T2}, s{S_T2}, 768")
        e(f"v_lshlrev_b32 v2, 7, v{V_LANE}")
        e(f"v_add_u32 v2, s{S_T2}, v2")
        e("v_min_u32 v2, TEXT_END-K1_PC-4, v2")
        e(f"s_mov_b64 exec, {o.get('cp_mask', 63)}")
        e(f"global_load_dword v{V_PRE+5}, v2, s[{S_T0}:{S_T1}]")
        e("s_mov_b64 exec, -1")
        if o.get("cp_near"):
            e(f"v_lshlrev_b32 v2, 7, v0")
            e(f"v_and_b32 v2, {o['cp_near']*128 - 1:#x}, v2")
            e(f"s_mov_b64 exec, {(1 << min(16, o['cp_near'] // 4)) - 1}")
            e(f"v_lshlrev_b32 v3, 7, v{V_LANE}")
            e(f"s_mul_i32 s{S_T2}, s{S_W}, {o['cp_near'] // 4 * 128}")
            e(f"v_add_u32 v3, s{S_T2}, v3")
            e(f"global_load_dword v{V_PRE+4}, v3, s[{S_T0}:{S_T1}]")
            e("s_mov_b64 exec, -1")
        e(f"s_and_b32 s{S_T2}, s2, 7")
        e(f"s_lshr_b32 s{S_MT}, s{S_T2}, 1")
        e(f"s_lshl_b32 s{S_MT}, s{S_MT}, 2")
        e(f"s_and_b32 s{S_T3}, s3, 3")
        e(f"s_add_u32 s{S_MT}, s{S_MT}, s{S_T3}")
        e(f"s_and_b32 s{S_CG}, s{S_T2}, 1")
        e(f"s_lshl_b32 s{S_CG}, s{S_CG}, 3")
        e("s_lshr_b32 s3, s3, 2")
        e(f"s_add_u32 s{S_CG}, s{S_CG}, s3")
        e(f"s_add_u32 s{S_R}, s3, s{S_T3}")
        if o.get("rot_x"):
            e(f"s_lshr_b32 s{S_T2}, s{S_MT}, 2")
            e(f"s_add_u32 s{S_R}, s{S_R}, s{S_T2}")
        for _ in range(3 if o.get("rot_x") else 2):
            e(f"s_sub_u32 s{S_T2}, s{S_R}, 5")
            e(f"s_cmp_ge_u32 s{S_R}, 5")
            e(f"s_cselect_b32 s{S_R}, s{S_T2}, s{S_R}")
        if o.get("norot"):
            e(f"s_mov_b32 s{S_R}, 0")
        e(f"s_lshl_b32 s{S_KS}, s{S_R}, 8")
        for i in range(1, 5):
            e(f"s_add_u32 s{S_KS+i}, s{S_KS+i-1}, 256")
            e(f"s_cmp_eq_u32 s{S_KS+i}, 1280")
            e(f"s_cselect_b32 s{S_KS+i}, 0, s{S_KS+i}")
        e(f"s_lshl_b32 s{S_W4K}, s{S_W}, 12")
        e(f"s_lshl_b32 s{S_XB}, s{S_MT}, 2")
        e(f"s_add_u32 s{S_XB}, s{S_XB}, s{S_W}")
        e(f"s_mul_i32 s{S_XB}, s{S_XB}, {32*1280}")
        a, xr = V_X + 4, V_X + 5
        e(f"v_lshrrev_b32 v{a}, 4, v{V_LANE}")
        e(f"v_and_b32 v{xr}, 15, v{V_LANE}")
        e(f"v_xor_b32 v{xr}, v{xr}, v{a}")
        e(f"v_lshlrev_b32 v{xr}, 4, v{xr}")
        e(f"v_mul_u32_u24 v{a}, 1280, v{a}")
        for k in range(4):
            e(f"v_xor_b32 v{V_OS+k}, {64*k}, v{xr}")
            e(f"v_add_u32 v{V_OS+k}, v{V_OS+k}, v{a}")
            e(f"v_add_u32 v{V_X+k}, {(16*(k&1) + 4*(k>>1))*1280 - 1024*k}, v{V_OS+k}")
        e(f"s_cmp_ge_u32 s{S_CG}, 8")
        e(f"s_cselect_b32 s{S_T2}, 1, 0")
        e(f"s_sub_u32 s{S_SB}, s{S_CG}, s{S_T2}")
        e(f"s_lshl_b32 s{S_D1}, s{S_SB}, 1")
        e(f"s_mov_b32 s{S_TYPE}, 0")
        e(f"s_cmp_eq_u32 s{S_CG}, 14")
        e(f"s_cselect_b32 s{S_TYPE}, 1, s{S_TYPE}")
        e(f"s_cmp_eq_u32 s{S_CG}, 7")
        e(f"s_cselect_b32 s{S_TYPE}, 2, s{S_TYPE}")
        e(f"s_cselect_b32 s{S_SB}, 14, s{S_SB}")
        e(f"s_cmp_eq_u32 s{S_CG}, 15")
        e(f"s_cselect_b32 s{S_TYPE}, 2, s{S_TYPE}")
        e(f"s_cselect_b32 s{S_SB}, 17, s{S_SB}")
        e(f"v_and_b32 v{V_SEG}, 31, v{V_LANE}")
        e(f"s_lshl_b32 s{S_T2}, s{S_SB}, 6")
        e(f"v_lshl_add_u32 v{V_PUB}, v{V_SEG}, 1, s{S_T2}")
        e(f"v_min_u32 v{V_XR}, {1278 - 128}, v{V_PUB}")
        e(f"v_mov_b32 v{V_XW}, {EPOCH_OFF}")
        e(f"s_lshl_b32 s{S_J1}, s{S_W}, 13")
        e(f"s_add_u32 s{S_J1}, s{S_J1}, {LDS_SCR}")
        e("s_waitcnt lgkmcnt(0)")
        for x in self.mk_srd(SX, K_X, X_BYTES):
            e(x)
        xt = {}
        cnt = {"n": 0}

        def x_piece(i, u):
            if u % 4 == 0:
                hh = u // 4
                if i < 4:
                    e(f"s_add_u32 m0, s{S_W4K}, {(i + 4*hh)*16384}")
                elif hh:
                    e(f"s_add_u32 m0, s{S_J1}, 4096")
                else:
                    e(f"s_mov_b32 m0, s{S_J1}")
                e(f"s_add_u32 s{S_T0}, s{S_XB}, s{S_KS+i}")
                if hh:
                    e(f"s_add_u32 s{S_T0}, s{S_T0}, 10240")
            xt[i, u] = e(f"buffer_load_dwordx4 v{V_X+u%4}, {srd(SX)}, s{S_T0} offen offset:{1024*(u%4)}{o.get('ntx', '')} lds")
            cnt["n"] += 1
        xq = [(i, u) for i in range(5) for u in range(8)]
        for _ in range(o.get("x_first", 4)):
            x_piece(*xq.pop(0))
        if o.get("ws_base"):
            e(f"s_add_u32 s{K_WS}, s{K_WS}, {o['ws_base']}")
            e(f"s_addc_u32 s{K_WS+1}, s{K_WS+1}, 0")
        for x in self.mk_srd(SWS, K_WS, WS_USED):
            e(x)
        EP = V_PRE + 4
        e(f"s_mov_b32 s{S_T2}, 0" if self.fused else f"s_lshl_b32 s{S_T2}, s{S_CG}, 7")
        e(f"buffer_load_dword v{EP}, v{V_XW}, {srd(SWS)}, s{S_T2} offen sc1")
        t_par = None
        for b in range(1 if o.get("order") == "SD" else 3):
            for k, ptr in enumerate((K_LRE, K_LIM, K_LDT)):
                va = V_XR if b else V_PUB
                t_par = e(f"global_load_ushort v{V_C+12*b+6+k}, v{va}, s[{ptr}:{ptr+1}] offset:{64*b}")
        if self.fused:
            for _ in range(o.get("job_after", 4)):
                x_piece(*xq.pop(0))
            if o.get("job_dq") != 2 and o.get("job_mode") != "dma":
                self.a_job_setup()
        if o.get("wpre", 1) >= 2:
            n2 = o.get("wpre_after", 0)
            for _ in range(n2):
                x_piece(*xq.pop(0))
            self.w_prefetch_early()
        for _ in range(o.get("x_second", 4) - o.get("wpre_after", 0) - (o.get("job_after", 4) if self.fused else 0)):
            x_piece(*xq.pop(0))
        if o.get("touch", 1) == 2:
            e(f"s_cmp_lg_u32 s{S_W}, 3")
            e("s_cbranch_scc1 K1_NOTOUCH")
            e(f"s_lshl_b32 s{S_T2}, s2, 7")
            e(f"s_add_u32 s{S_T3}, s{S_T2}, {1 << 21}")
            for ptr, both in ((K_BRE, 0), (K_BIM, 0), (K_WG, 1), (K_WU, 1), (K_WD, 1), (K_CRE, 0), (K_CIM, 0), (K_OUT, 1)):
                e(f"s_load_dword s95, s[{ptr}:{ptr+1}], s{S_T2}")
                if both:
                    e(f"s_load_dword s95, s[{ptr}:{ptr+1}], s{S_T3}")
            p.label("K1_NOTOUCH")
            e(f"s_cmp_lg_u32 s{S_W}, 2")
            e("s_cbranch_scc1 K1_NOTOUCH2")
            e(f"s_lshl_b32 s{S_T2}, s2, 7")
            for pg in range(12):
                e(f"s_load_dword s95, s[{K_WS}:{K_WS+1}], s{S_T2}")
                e(f"s_add_u32 s{S_T2}, s{S_T2}, {1 << 21}")
            e(f"s_load_dword s95, s[{K_DSK}:{K_DSK+1}], 0")
            e(f"s_mov_b32 s{S_T2}, {1 << 22}")
            e(f"s_load_dword s95, s[{K_OUT}:{K_OUT+1}], s{S_T2}")
            p.label("K1_NOTOUCH2")
        if o.get("touch", 1) == 1:
            for ptr, offs in ((K_BRE, [0]), (K_BIM, [0]), (K_WG, [0, 1 << 21]), (K_WU, [0, 1 << 21]), (K_WD, [0, 1 << 21]),
                              (K_CRE, [0]), (K_CIM, [0]), (K_X, [1 << 21])):
                for off in offs:
                    if off:
                        e(f"s_mov_b32 s{S_T2}, {off}")
                    e(f"s_load_dword s95, s[{ptr}:{ptr+1}], " + (f"s{S_T2}" if off else "0"))
        self.stamp(1)
        self.pro = dict(xq=xq, xt=xt, cnt=cnt, x_piece=x_piece, t_par=t_par, EP=EP)
        if o.get("order") not in ("DSD", "SD"):
            self.prologue2("S", o.get("npre", 8))

    def prologue2(self, kind, npre, stages=None):
        p, e, q, o = self.p, self.p.e, self.q, self.opt
        hm = f"s[{S_HM}:{S_HM+1}]"
        xq, xt, cnt = list(self.pro["xq"]), self.pro["xt"], self.pro["cnt"]
        x_piece, t_par, EP = self.pro["x_piece"], self.pro["t_par"], self.pro["EP"]
        cnt["n"] = 40 - len(xq)
        arg = 0 if kind == "S" else S_D1
        first = stages or [(kind, i, arg) for i in range(5)]
        if o.get("order") == "SD" and kind == "S":
            for b in (1, 2):
                for k, ptr in enumerate((K_LRE, K_LIM, K_LDT)):
                    t_par = e(f"global_load_ushort v{V_C+12*b+6+k}, v{V_XR}, s[{ptr}:{ptr+1}] offset:{64*b}")
        for k in range(1, 4):
            q(f"v_add_u32 v{V_OS+k}, {4*k*1280 - 1024*k}, v{V_OS+k}")
        h, c, t0, t1 = V_X + 4, V_SEG, V_X + 5, V_X + 6
        q(f"s_mov_b32 s{S_HM}, 0", f"s_mov_b32 s{S_HM+1}, -1", f"s_mov_b32 s{S_MASK}, 0xffff0000",
          f"v_lshrrev_b32 v{h}, 5, v{V_LANE}")
        q(f"v_and_b32 v{t0}, 15, v{V_LANE}", f"v_xor_b32 v{t1}, v{t0}, v{h}", f"v_lshlrev_b32 v{t1}, 4, v{t1}",
          f"v_lshl_add_u32 v{t1}, v{t0}, 8, v{t1}", f"v_bfe_u32 v{t0}, v{V_LANE}, 4, 1",
          f"v_lshlrev_b32 v{V_X+8}, 16, v{t0}", f"v_add_u32 v{V_X+8}, s{S_W4K}, v{V_X+8}",
          f"v_lshlrev_b32 v{t0}, 12, v{t0}")
        for s in range(8):
            q(f"v_xor_b32 v{self.AS+s}, {32*s}, v{t1}", f"v_add_u32 v{self.AX+s}, v{self.AS+s}, v{V_X+8}",
              f"v_add_u32 v{self.AS+s}, v{self.AS+s}, v{t0}")
        sm, sq = V_PRE, V_PRE + 1
        q(f"v_mov_b32 v{sm}, 0", f"v_mov_b32 v{sq}, 0", f"s_mov_b32 s{S_SPIN}, 0x3f803f80")
        q([f"s_cmp_ge_u32 s{S_W}, 2",
           f"s_cselect_b32 s{SS}, s{K_BIM}, s{K_BRE}", f"s_cselect_b32 s{SS+1}, s{K_BIM+1}, s{K_BRE+1}",
           f"s_cselect_b32 s{SF}, s{K_WU}, s{K_WG}", f"s_cselect_b32 s{SF+1}, s{K_WU+1}, s{K_WG+1}"],
          f"s_mov_b32 s{SS+2}, {SQ_BYTES}", f"s_mov_b32 s{SS+3}, 0x20000",
          f"s_mov_b32 s{SF+2}, {FF_BYTES}", f"s_mov_b32 s{SF+3}, 0x20000")
        for i in range(5):
            q(f"s_mul_i32 s{S_KF+i}, s{S_KS+i}, {128*3456//256}")
        q(f"s_and_b32 s{S_T2}, s{S_W}, 1",
          f"s_lshl_b32 s{S_SBROW}, s{S_SB}, 1", f"s_add_u32 s{S_SBROW}, s{S_SBROW}, s{S_T2}",
          f"s_mul_i32 s{S_SBROW}, s{S_SBROW}, {16*1280}",
          f"s_lshr_b32 s{S_T3}, s{S_W}, 1",
          f"s_lshl_b32 s{S_A2ROW}, s{S_MT}, 1", f"s_add_u32 s{S_A2ROW}, s{S_A2ROW}, s{S_T3}",
          f"s_mul_i32 s{S_A2ROW}, s{S_A2ROW}, {94*4096}",
          f"s_lshl_b32 s{S_T3}, s{S_T2}, 11", f"s_add_u32 s{S_A2ROW}, s{S_A2ROW}, s{S_T3}",
          f"s_lshl_b32 s{S_KD1}, s{S_D1}, 13", f"s_add_u32 s{S_KD1}, s{S_KD1}, s{S_A2ROW}",
          f"s_add_u32 s{S_KD2}, s{S_KD1}, 8192",
          f"s_lshl_b32 s{S_D1}, s{S_D1}, 7", f"s_mul_i32 s{S_T3}, s{S_T2}, {32*3456}",
          f"s_add_u32 s{S_D1}, s{S_D1}, s{S_T3}", f"s_add_u32 s{S_D2}, s{S_D1}, 128",
          f"s_mov_b32 s{S_GK2}, {fx(GK2)}", f"v_mov_b32 v{V_GK1}, {fx(GK1)}")
        if o.get("touch", 1) == 1:
            ws, out = f"s[{K_WS}:{K_WS+1}]", f"s[{K_OUT}:{K_OUT+1}]"
            q(f"s_mul_i32 s{S_T2}, s{S_MT}, {2*94*4096}", f"s_load_dword s95, {ws}, s{S_T2}",
              f"s_add_u32 s{S_T2}, s{S_T2}, {2*94*4096 - 4}", f"s_load_dword s95, {ws}, s{S_T2}")
            for off in (W2F_OFF, W2F_OFF + (1 << 21)):
                q(f"s_mov_b32 s{S_T2}, {off}", f"s_load_dword s95, {ws}, s{S_T2}")
            q(f"s_mul_i32 s{S_T2}, s2, {4*5120}", f"s_add_u32 s{S_T2}, s{S_T2}, {PART_OFF}", f"s_load_dword s95, {ws}, s{S_T2}",
              f"s_mul_i32 s{S_T2}, s{S_MT}, {128*2560}", f"s_load_dword s95, {out}, s{S_T2}",
              f"s_add_u32 s{S_T2}, s{S_T2}, {128*2560 - 4}", f"s_load_dword s95, {out}, s{S_T2}",
              f"s_load_dword s95, s[{K_DSK}:{K_DSK+1}], 0")
        q(f"v_lshrrev_b32 v{t0}, 3, v{V_LANE}", f"v_mul_u32_u24 v{t0}, 3456, v{t0}",
          f"v_bfe_u32 v{t1}, v{V_LANE}, 4, 1", f"v_lshlrev_b32 v{t1}, 2, v{t1}",
          f"v_and_b32 v{V_OF}, 7, v{V_LANE}", f"v_xor_b32 v{V_OF}, v{V_OF}, v{t1}",
          f"v_lshl_add_u32 v{V_OF}, v{V_OF}, 4, v{t0}")
        for k in range(1, 4):
            q(f"v_add_u32 v{V_OF+k}, {k*(8*3456 - 1024)}, v{V_OF}")
        q(f"v_bfe_u32 v{t0}, v{V_LANE}, 2, 2", f"v_lshl_add_u32 v{t1}, v{h}, 3, v{t0}",
          f"v_lshlrev_b32 v{V_TR}, 7, v{t1}", f"v_lshrrev_b32 v{t0}, 1, v{t0}",
          f"v_lshl_add_u32 v{V_TR}, v{t0}, 6, v{V_TR}", f"v_bfe_u32 v{t0}, v{V_LANE}, 4, 1",
          f"v_lshl_add_u32 v{V_TR}, v{t0}, 5, v{V_TR}", f"v_and_b32 v{t0}, 3, v{V_LANE}",
          f"v_lshl_add_u32 v{V_TR}, v{t0}, 3, v{V_TR}", f"v_xor_b32 v{V_TR+1}, 64, v{V_TR}",
          f"v_add_u32 v{V_TR+2}, 0x10000, v{V_TR}", f"v_add_u32 v{V_TR+3}, 0x10000, v{V_TR+1}")
        q(f"v_lshrrev_b32 v{t1}, 3, v{c}", f"v_lshl_add_u32 v{t1}, v{t1}, 2, v{t0}",
          f"v_lshl_add_u32 v{V_STA}, v{h}, 4, v{t1}", f"v_lshlrev_b32 v{V_STA}, 4, v{V_STA}",
          f"v_bfe_u32 v{t0}, v{c}, 2, 1", f"v_lshl_add_u32 v{V_STA}, v{t0}, 10, v{V_STA}",
          f"v_lshl_add_u32 v{V_X+7}, v{t0}, 4, v{t1}", f"v_lshlrev_b32 v{V_X+7}, 3, v{V_X+7}",
          f"v_cndmask_b32 v{V_X+7}, v{V_X+7}, v{V_XW}, {hm}" if not self.fused else
          [f"s_lshl_b32 s{S_T2}, s{S_W}, 8", f"s_add_u32 s{S_T2}, s{S_T2}, {STL}", f"v_add_u32 v0, s{S_T2}, v{V_X+7}"])
        q(f"v_lshlrev_b32 v{V_LBO+1}, 4, v{c}", f"v_sub_u32 v{t0}, s{S_MT}, v{h}",
          f"v_lshl_add_u32 v{V_LBO}, v{t0}, 9, v{V_LBO+1}",
          f"s_add_u32 s{S_T2}, s{S_MT}, 1", f"s_lshl_b32 s{S_T2}, s{S_T2}, 9",
          [f"s_cmp_eq_u32 s{S_W}, 3", f"s_cselect_b32 s{S_T2}, s{S_T2}, {OOB}"], f"v_add_u32 v{t0}, s{S_T2}, v{V_LBO+1}",
          f"v_mov_b32 v{t1}, {OOB}", f"v_cndmask_b32 v{V_PUB}, v{t1}, v{t0}, {hm}",
          f"v_and_b32 v{V_XR}, 15, v{c}", f"v_mul_u32_u24 v{V_XR}, 120, v{V_XR}", f"v_lshrrev_b32 v{t0}, 4, v{c}",
          f"v_lshl_add_u32 v{V_XR}, v{t0}, 13, v{V_XR}", f"v_add_u32 v{V_XR}, {XCH}, v{V_XR}",
          f"v_mul_u32_u24 v{V_TW}, {16*144}, v{h}", f"v_lshl_add_u32 v{V_TW}, v{c}, 2, v{V_TW}",
          f"v_add_u32 v{V_TW}, s{S_J1}, v{V_TW}",
          f"v_and_b32 v{t0}, 15, v{V_LANE}", f"v_mul_u32_u24 v{t0}, 144, v{t0}",
          f"v_lshrrev_b32 v{t1}, 4, v{V_LANE}", f"v_lshl_add_u32 v{V_TW+1}, v{t1}, 4, v{t0}",
          f"v_add_u32 v{V_TW+1}, s{S_J1}, v{V_TW+1}", f"v_lshlrev_b32 v{V_TW+2}, 4, v{V_LANE}",
          f"s_lshl_b32 s{S_T2}, s{S_W}, 1", f"v_add_u32 v{V_SEG}, s{S_T2}, v{h}",
          f"v_lshl_add_u32 v{V_XR}, v{V_SEG}, 3, v{V_XR}")
        self.fill.append(lambda: p.wait(t_par))
        U = RAW + 152
        q(f"v_readfirstlane_b32 s{S_EPOCH}, v{EP}")
        if o.get("job_dq") == 2:
            self.fill.append(self.a_job_setup)
        q(*self.ssm_consts(0, V_C + 6, U))
        q(f"s_add_u32 s{S_EPOCH}, s{S_EPOCH}, 1")
        self.zero_row(0, U)
        rd = {}

        def x_read(i, half):
            def f():
                p.wait(xt[i, 7])
                for s in range(4 * half, 4 * half + 4):
                    r = RAW + 32 * i + 4 * s
                    rd[i, s] = e(f"ds_read_b128 v[{r}:{r+3}], v{self.AX+s} offset:{i*16384 if i < 4 else 0}")
            return f
        lag = o.get("x_lag", 9)
        for i in range(5):
            self.fill.append(("t", lambda i=i: cnt["n"] >= min(40, 8 * i + 8 + lag)))
            if i == 4:
                if o.get("job_dq"):
                    self.fill.append(("t", lambda: hasattr(self, "job_tok") and not any(f in self.dq for f in self.job_ld)))
                for s in range(8):
                    q(f"v_add_u32 v{self.AX+s}, s{S_J1}, v{self.AS+s}")
            self.fill.append(x_read(i, 0))
            self.fill.append(x_read(i, 1))
            for s in range(8):
                self.fill.append(lambda i=i, s=s: p.wait(rd[i, s]))
                for k in range(4 if (i == 4 or not o.get("dbg_nostats")) else 1):
                    r = RAW + 32 * i + 4 * s + k
                    q(f"v_dot2c_f32_bf16 v{sm}, s{S_SPIN}, v{r}", f"v_dot2c_f32_bf16 v{sq}, v{r}, v{r}")
            if i < 4:
                self.fill.append(lambda i=i: self.issue_stage(i, *first[i]))
            if i == 3:
                self.fill.append(lambda: self.issue_stage(4, *first[4]))
        if o.get("dbg_xonly"):
            while xq:
                x_piece(*xq.pop(0))
            p.wait_all(lgkm=False)
            self.stamp(1)
        self.pull(o.get("pre_slots", 150))
        while xq:
            x_piece(*xq.pop(0))
            self.pull(o.get("x_gap", 14))
        left = o.get("pro_dma", 99)
        while self.fill:
            if left > 0 and self.dq:
                self.dma()
                left -= 1
            self.pull(o.get("x_gap2", o.get("x_gap", 14)))
        self.stamp(2)
        u = V_X + 8
        e(f"v_mov_b32 v{u}, v{sm}"); e(f"v_mov_b32 v{u+1}, v{sq}")
        e(f"v_permlane32_swap_b32 v{sm}, v{u}"); e(f"v_permlane32_swap_b32 v{sq}, v{u+1}")
        e(f"v_add_f32 v{sm}, v{sm}, v{u}"); e(f"v_add_f32 v{sq}, v{sq}, v{u+1}")
        e(f"v_mul_f32 v{sm}, {fx(1/640)}, v{sm}"); e(f"v_mul_f32 v{sq}, {fx(1/640)}, v{sq}")
        e(f"v_fma_f32 v{sq}, -v{sm}, v{sm}, v{sq}")
        e(f"v_max_f32 v{sq}, 0, v{sq}")
        e(f"v_cvt_pk_bf16_f32 v{u}, v{sq}, v{sm}")
        e(f"v_lshlrev_b32 v{sq}, 16, v{u}"); e(f"v_and_b32 v{sm}, s{S_MASK}, v{u}")
        e(f"v_add_f32 v{sq}, {fx(1e-5)}, v{sq}")
        e(f"v_cvt_pk_bf16_f32 v{sq}, v{sq}, v{sq}"); e(f"v_lshlrev_b32 v{sq}, 16, v{sq}")
        e(f"v_sqrt_f32 v{sq}, v{sq}")
        e(f"s_lshl_b32 s{S_T2}, s{S_MT}, 2"); e(f"s_add_u32 s{S_T2}, s{S_T2}, s{S_W}")
        e(f"v_cvt_pk_bf16_f32 v{sq}, v{sq}, v{sq}"); e(f"v_lshlrev_b32 v{sq}, 16, v{sq}")
        e(f"v_rcp_f32 v{u}, v{sq}")
        e(f"s_lshl_b32 s{S_T2}, s{S_T2}, 8"); e(f"s_add_u32 s{S_T2}, s{S_T2}, {STATS_OFF}")
        e(f"v_mul_f32 v{u+2}, -v{sm}, v{u}")
        e(f"v_mov_b32 v{u+1}, v{u}")
        e(f"v_mov_b32 v{u+3}, v{u+2}")
        e(f"s_cmp_eq_u32 s{S_CG}, 0"); e(f"s_cselect_b32 s{S_T2}, s{S_T2}, {OOB}")
        if not self.fused:
            e(f"v_mov_b32 v{V_X+4}, v{u}"); e(f"v_mov_b32 v{V_X+5}, v{u+2}")
            e(f"buffer_store_dwordx2 v[{V_X+4}:{V_X+5}], v{V_X+7}, {srd(SWS)}, s{S_T2} offen{self.wt}")
        for k in range(4 * npre):
            r = RAW + k
            t = V_X + 2 * (k % 2)
            e(f"v_lshlrev_b32 v{t}, 16, v{r}"); e(f"v_and_b32 v{t+1}, s{S_MASK}, v{r}")
            e(f"v_pk_fma_f32 v[{t}:{t+1}], v[{t}:{t+1}], v[{u}:{u+1}], v[{u+2}:{u+3}]")
            e(f"v_cvt_pk_bf16_f32 v{r}, v{t}, v{t+1}")
            e(f"v_accvgpr_write_b32 a{XN+k}, v{r}")
            if k % o.get("pre_dma", 4) == o.get("pre_dma", 4) - 1:
                self.dma()
        done = []
        for k in range(4 * npre, 160 if kind == "SD" else 0):
            r, t = RAW + k, V_X + 2 * (k % 2)
            self.jit += [f"v_lshlrev_b32 v{t}, 16, v{r}", f"v_and_b32 v{t+1}, s{S_MASK}, v{r}",
                         f"v_fma_f32 v{t}, v{t}, v{u}, v{u+2}", f"v_fma_f32 v{t+1}, v{t+1}, v{u}, v{u+2}",
                         f"v_cvt_pk_bf16_f32 v{r}, v{t}, v{t+1}", f"v_accvgpr_write_b32 a{XN+k}, v{r}"]
        for k in range(4 * npre, 0 if kind == "SD" else 160, 2):
            t = V_X + 4 * ((k // 2) % 2)
            grp = done
            for i in range(2):
                grp = grp + [f"v_lshlrev_b32 v{t+2*i}, 16, v{RAW+k+i}", f"v_and_b32 v{t+2*i+1}, s{S_MASK}, v{RAW+k+i}"]
            for i in range(2):
                grp.append(f"v_pk_fma_f32 v[{t+2*i}:{t+2*i+1}], v[{t+2*i}:{t+2*i+1}], v[{u}:{u+1}], v[{u+2}:{u+3}]")
            self.norm.append(grp)
            done = [f"v_cvt_pk_bf16_f32 v{RAW+k+i}, v{t+2*i}, v{t+2*i+1}" for i in range(2)]
            done += [f"v_accvgpr_write_b32 a{XN+k+i}, v{RAW+k+i}" for i in range(2)]
        if done:
            self.norm.append(done)
        if kind != "SD":
            for s in range(8):
                e(f"v_add_u32 v{V_AS+8+s}, 0x10000, v{V_AS+s}")
        self.stamp(3)

    def zero_row(self, b, z):
        self.q(f"v_mov_b32 v{z}, 0", f"v_mov_b32 v{z+1}, s{S_EPOCH}", f"v_mov_b32 v{z+2}, 0", f"v_mov_b32 v{z+3}, s{S_EPOCH}",
               *self.ex_base(S_T2, b),
               f"buffer_store_dwordx4 v[{z}:{z+3}], v{V_LBO+1}, {srd(SWS)}, s{S_T2} offen sc1")

    def job_setup(self, kind):
        def q(*texts):
            for t in texts:
                self.p.e(t)
        vo = V_JW if kind == "W" else self.vjc
        q(f"v_lshrrev_b32 v{vo}, 3, v{V_LANE}", f"v_mul_u32_u24 v{vo}, 1280, v{vo}",
          f"v_and_b32 v{vo+1}, 7, v{V_LANE}", f"v_lshl_add_u32 v{vo}, v{vo+1}, 4, v{vo}")
        if kind == "W":
            for k in range(1, 4):
                q(f"v_add_u32 v{vo+k}, {k*(8*1280 - 1024)}, v{vo}")
            q(*self.mk_srd(SA1, K_WD, FF_BYTES),
              f"s_lshl_b32 s{S_JOB}, s{S_SB}, 4", f"s_add_u32 s{S_JOB}, s{S_JOB}, s{S_MT}")
        else:
            q(f"v_add_u32 v{vo+1}, {8*1280 - 1024}, v{vo}")
            q(*self.mk_srd(SA1, K_CRE, SQ_BYTES), *self.mk_srd(SA2, K_CIM, SQ_BYTES),
              f"s_mov_b32 s{S_JOB}, s{S_MT}")
        q(f"s_lshl_b32 s{S_JOB}, s{S_JOB}, 2", f"s_add_u32 s{S_JOB}, s{S_JOB}, s{S_W}")

    def job_index(self, kind, i):
        e = self.p.e
        e(f"s_add_u32 s{S_J2}, s{S_JOB}, {64 * i + (292 if self.fused else 0)}")
        e(f"s_mul_hi_u32 s{S_T1}, s{S_J2}, 0x1999999a")
        e(f"s_mul_i32 s{S_R}, s{S_T1}, 10")
        e(f"s_sub_u32 s{S_R}, s{S_J2}, s{S_R}")

    def job_source(self, kind, i):
        e = self.p.e
        self.job_index(kind, i)
        e(f"s_mul_i32 s{S_T0}, s{S_T1}, {(32 if kind == 'W' else 16) * 1280}")
        e(f"s_lshl_b32 s{S_XB}, s{S_R}, 7")
        e(f"s_add_u32 s{S_T0}, s{S_T0}, s{S_XB}")
        e(f"s_cmp_lt_u32 s{S_J2}, {540 if kind == 'W' else 400}")
        e(f"s_cselect_b32 s{S_T0}, s{S_T0}, {OOB}")

    def w_job(self, R):
        p, q = self.p, self.q
        st = {}
        D = R + 4
        q(f"v_lshrrev_b32 v{R}, 5, v{V_LANE}", f"v_lshlrev_b32 v{R}, 4, v{R}",
          f"v_bfe_u32 v{R+1}, v{V_LANE}, 2, 3", f"v_add_u32 v{R}, v{R}, v{R+1}",
          f"v_lshlrev_b32 v{R}, 7, v{R}", f"v_and_b32 v{R+1}, 3, v{V_LANE}",
          f"v_lshl_add_u32 v{R}, v{R+1}, 3, v{R}", f"v_add_u32 v{R}, s{S_J1}, v{R}")
        ad, cb = S_JOB, S_R
        q(f"s_lshl_b32 s{cb}, s{cb}, 2", f"s_mul_hi_u32 s{ad}, s{cb}, 0x33333334", f"s_mul_i32 s{S_XB}, s{ad}, 5",
          f"s_sub_u32 s{cb}, s{cb}, s{S_XB}", f"s_mul_i32 s{ad}, s{ad}, 94", f"s_add_u32 s{ad}, s{ad}, s{S_T1}",
          f"s_mul_i32 s{ad}, s{ad}, 5", f"s_add_u32 s{ad}, s{ad}, s{cb}", f"s_lshl_b32 s{ad}, s{ad}, 10",
          f"s_add_u32 s{ad}, s{ad}, {W2F_OFF}",
          [f"s_cmp_lt_u32 s{S_J2}, 540", f"s_cselect_b32 s{ad}, s{ad}, {OOB}"])
        self.fill.append(("t", lambda: 100 in self.stage_tok and p.vdone >= self.stage_tok[100][1]))
        for f in range(4):
            def rd(f=f):
                p.wait(self.stage_tok[100])
                p.e(f"ds_read_b64_tr_b16 v[{D+4*f}:{D+4*f+1}], v{R} offset:{32*f}")
                st[f] = p.e(f"ds_read_b64_tr_b16 v[{D+4*f+2}:{D+4*f+3}], v{R} offset:{32*f + 1024}")
            rd.cost = 2
            self.fill.append(rd)
        self.lag(5)
        for f in range(4):
            self.fill.append(lambda f=f: p.wait(st[f]))
            self.fill.append(lambda f=f: setattr(self, "job_store", p.e(
                f"buffer_store_dwordx4 v[{D+4*f}:{D+4*f+3}], v{V_TW+2}, {srd(SWS)}, s{ad} offen{self.wt}")))
            if f < 3:
                q([f"s_cmp_eq_u32 s{cb}, {4 - f}", f"s_cselect_b32 s{S_XB}, {93*5120}, 0"],
                  f"s_add_u32 s{ad}, s{ad}, s{S_XB}", f"s_add_u32 s{ad}, s{ad}, 1024")

    def w2f_addr(self, dst, b16, kstep):
        e = self.p.e
        e(f"s_mul_hi_u32 s{S_D1}, s{b16}, 0x33333334")
        e(f"s_mul_i32 s{S_D2}, s{S_D1}, 5")
        e(f"s_sub_u32 s{S_D2}, s{b16}, s{S_D2}")
        e(f"s_mul_i32 s{S_D1}, s{S_D1}, 94")
        e(f"s_add_u32 s{S_D1}, s{S_D1}, s{kstep}")
        e(f"s_mul_i32 s{S_D1}, s{S_D1}, 5")
        e(f"s_add_u32 s{S_D1}, s{S_D1}, s{S_D2}")
        e(f"s_lshl_b32 s{dst}, s{S_D1}, 10")
        e(f"s_add_u32 s{dst}, s{dst}, {W2F_OFF}")

    def job_finish(self, kind, rounds, R):
        p, e = self.p, self.p.e
        while self.dq:
            self.dma()
        if kind == "W":
            e(f"v_lshrrev_b32 v{R}, 5, v{V_LANE}"); e(f"v_lshlrev_b32 v{R}, 4, v{R}")
            e(f"v_bfe_u32 v{R+1}, v{V_LANE}, 2, 3"); e(f"v_add_u32 v{R}, v{R}, v{R+1}")
            e(f"v_lshlrev_b32 v{R}, 7, v{R}"); e(f"v_and_b32 v{R+1}, 3, v{V_LANE}")
            e(f"v_lshl_add_u32 v{R}, v{R+1}, 3, v{R}")
        else:
            e(f"v_and_b32 v{R}, 15, v{V_LANE}"); e(f"v_lshlrev_b32 v{R}, 7, v{R}")
            e(f"v_lshrrev_b32 v{R+1}, 4, v{V_LANE}"); e(f"v_lshl_add_u32 v{R}, v{R+1}, 3, v{R}")
            e(f"s_mov_b32 s{S_KS}, 0x05040100"); e(f"s_mov_b32 s{S_KS+1}, 0x07060302")
        e(f"v_add_u32 v{R}, s{S_W4K}, v{R}")
        e(f"v_add_u32 v{R+1}, 0x10000, v{R}")
        for i in range(rounds):
            n = 15 + i
            slot = n % 8
            va, off = R + slot // 4, (slot % 4) * 16384
            D = R + 4 + 32 * (i % 2)
            p.wait(self.stage_tok[n])
            tk = []
            for f in range(4):
                if kind == "W":
                    e(f"ds_read_b64_tr_b16 v[{D+4*f}:{D+4*f+1}], v{va} offset:{off + 32*f}")
                    tk.append(e(f"ds_read_b64_tr_b16 v[{D+4*f+2}:{D+4*f+3}], v{va} offset:{off + 32*f + 1024}"))
                else:
                    e(f"ds_read_b64 v[{D+16+4*f}:{D+16+4*f+1}], v{va} offset:{off + 32*f}")
                    tk.append(e(f"ds_read_b64 v[{D+16+4*f+2}:{D+16+4*f+3}], v{va} offset:{off + 32*f + 2048}"))
            self.job_index(kind, i)
            e(f"s_lshl_b32 s{S_R}, s{S_R}, 2")
            if kind == "C":
                e(f"s_add_u32 s{S_R}, s{S_R}, 54")
                self.w2f_addr(S_T0, S_T1, S_R)
                e(f"s_cmp_lt_u32 s{S_J2}, 400")
                e(f"s_cselect_b32 s{S_T0}, s{S_T0}, {OOB}")
            for f in range(4):
                if kind == "W":
                    self.w2f_addr(S_T0, S_KD2, S_T1)
                    e(f"s_cmp_lt_u32 s{S_J2}, 540")
                    e(f"s_cselect_b32 s{S_T0}, s{S_T0}, {OOB}")
                    e(f"s_add_u32 s{S_KD2}, s{S_KD2}, 1")
                    p.wait(tk[f])
                else:
                    p.wait(tk[f])
                    re, im = D + 16 + 4 * f, D + 16 + 4 * f + 2
                    for k in range(2):
                        e(f"v_perm_b32 v{D+4*f+2*k}, v{im+k}, v{re+k}, s{S_KS}")
                        e(f"v_perm_b32 v{D+4*f+2*k+1}, v{im+k}, v{re+k}, s{S_KS+1}")
                e(f"buffer_store_dwordx4 v[{D+4*f}:{D+4*f+3}], v{V_TW+2}, {srd(SWS)}, s{S_T0} offen{self.wt}")
                if kind == "C" and f < 3:
                    e(f"s_add_u32 s{S_T0}, s{S_T0}, 5120")

    def w_prefetch(self):
        e = self.p.e
        t = V_PRE + 2
        e(f"v_lshrrev_b32 v{t}, 1, v{V_LANE}")
        e(f"v_mul_u32_u24 v{t}, 3456, v{t}")
        e(f"v_and_b32 v{t+1}, 1, v{V_LANE}")
        e(f"v_lshl_add_u32 v{t}, v{t+1}, 7, v{t}")
        e(f"s_and_b32 s{S_T2}, s{S_W}, 1")
        e(f"s_mul_i32 s{S_T2}, s{S_T2}, {-12*3456 & 0xffffffff:#x}")
        e(f"s_mul_i32 s{S_T3}, s{S_MT}, {40*3456}")
        e(f"s_add_u32 s{S_T2}, s{S_T2}, s{S_T3}")
        e(f"s_add_u32 s{S_T2}, s{S_T2}, s{S_D1}")
        e("s_mov_b32 exec_hi, 0xff")
        e(f"buffer_load_dword v{t+1}, v{t}, {srd(SF)}, s{S_T2} offen")
        e("s_mov_b64 exec, -1")

    def w_prefetch_early(self):
        e = self.p.e
        b = S_M2
        e(f"s_cmp_ge_u32 s{S_W}, 2")
        e(f"s_cselect_b32 s{b}, s{K_WU}, s{K_WG}"); e(f"s_cselect_b32 s{b+1}, s{K_WU+1}, s{K_WG+1}")
        e(f"s_and_b32 s{S_T2}, s{S_W}, 1")
        e(f"s_lshl_b32 s{S_T3}, s{S_MT}, 1")
        e(f"s_add_u32 s{S_T2}, s{S_T2}, s{S_T3}")
        e(f"s_mul_i32 s{S_T2}, s{S_T2}, {20*3456}")
        e(f"s_min_u32 s{S_T3}, s{S_D1}, 25")
        e(f"s_lshl_b32 s{S_T3}, s{S_T3}, 7")
        e(f"s_add_u32 s{S_T2}, s{S_T2}, s{S_T3}")
        e(f"s_add_u32 s{b}, s{b}, s{S_T2}"); e(f"s_addc_u32 s{b+1}, s{b+1}, 0")
        if self.opt["wpre"] == 2:
            t = V_PRE + 2
            e(f"v_lshrrev_b32 v{t}, 1, v{V_LANE}")
            e(f"v_mul_u32_u24 v{t}, 3456, v{t}")
            e(f"v_and_b32 v{t+1}, 1, v{V_LANE}")
            e(f"v_lshl_add_u32 v{t}, v{t+1}, 7, v{t}")
            e("s_mov_b32 exec_hi, 0xff")
            e(f"global_load_dword v{t+1}, v{t}, s[{b}:{b+1}]")
            e("s_mov_b64 exec, -1")
        else:
            for k in range(self.opt.get("wpre_n", 20)):
                e(f"s_load_dword s{S_SPIN}, s[{b}:{b+1}], {3456*(k % 20) + 128*(k // 20)}")

    def warm_k2(self):
        if not self.opt.get("warm_k2", 1):
            return
        e = self.p.e
        e(f"s_getpc_b64 s[{S_T0}:{S_T1}]")
        self.p.label("K1_PC2")
        e(f"s_add_u32 s{S_T0}, s{S_T0}, gemm2_kernel-K1_PC2")
        e(f"s_addc_u32 s{S_T1}, s{S_T1}, 0")
        e(f"s_lshr_b32 s{S_T2}, s2, 3")
        e(f"s_lshl_b32 s{S_T2}, s{S_T2}, 2")
        e(f"s_add_u32 s{S_T2}, s{S_T2}, s{S_W}")
        e(f"s_lshl_b32 s{S_T2}, s{S_T2}, 7")
        e(f"s_min_u32 s{S_T3}, s{S_T2}, TEXT_END-gemm2_kernel-4")
        e(f"s_min_u32 s{S_T2}, s{S_T2}, 1276")
        e(f"v_mov_b32 v{V_PRE}, s{S_T3}")
        e(f"v_mov_b32 v{V_PRE+1}, s{S_T2}")
        e("s_mov_b64 exec, 1")
        e(f"global_load_dword v{V_PRE+2}, v{V_PRE}, s[{S_T0}:{S_T1}]")
        e(f"global_load_dword v{V_PRE+3}, v{V_PRE+1}, s[{K_DSK}:{K_DSK+1}]")
        e("s_mov_b64 exec, -1")

    def finish(self, k):
        p, e = self.p, self.p.e
        e(f"s_lshl_b32 s{S_T2}, s{S_CG}, 7")
        e(f"s_add_u32 s{S_T2}, s{S_T2}, {EPOCH_OFF}")
        e(f"s_cmp_eq_u32 s{S_MT}, 15")
        e(f"s_cselect_b32 s{S_T2}, s{S_T2}, {OOB}")
        e(f"v_mov_b32 v0, s{S_EPOCH}")
        e(f"buffer_store_dword v0, off, {srd(SWS)}, s{S_T2} sc1")
        self.spin_out = True
        self.stamp_out(k)
        e("s_endpgm")

    def snapshot(self):
        p = self.p
        return (p.vq, p.vdone, p.lq, p.ldone, dict(self.stage_tok), list(self.pre_barrier), self.nbar, self.mf,
                set(self.seen), list(self.fill), list(self.dq), list(self.norm), self.vgap, list(self.jit),
                dict(self.auto) if self.auto else None)

    def restore(self, s):
        p = self.p
        (p.vq, p.vdone, p.lq, p.ldone, st, pb, self.nbar, self.mf, seen, fill, dq, norm, self.vgap, jit, auto) = s
        self.jit, self.auto = list(jit), (dict(auto) if auto else None)
        self.stage_tok, self.pre_barrier, self.seen = dict(st), list(pb), set(seen)
        self.fill, self.dq, self.norm = list(fill), list(dq), list(norm)

    def run(self, stages, frags, hooks, wjob=False):
        plan = {n: (lambda n=n: self.issue_stage(n + 6, *stages[n + 6])) for n in range(len(stages) - 6)}
        if stages[5][0] == "F" and self.opt.get("wpre", 1) == 1:
            self.dq.append(self.w_prefetch)
        self.issue_stage(5, *stages[5])
        if self.fused and self.opt.get("job_mode") == "dma":
            self.dq.extend(self.job_ld)
        if wjob and not self.fused:
            self.job_setup("W")
            self.issue_stage(100, "W", 0, 0)
        self.gemm(frags, plan, hooks)
        return plan

    def build(self):
        p, e, o = self.p, self.p.e, self.opt
        self.prologue()
        e(f"s_cmp_eq_u32 s{S_TYPE}, 2")
        e("s_cbranch_scc1 K1_TYPE_C")
        e(f"s_cmp_eq_u32 s{S_TYPE}, 1")
        e("s_cbranch_scc1 K1_TYPE_B")
        snap = self.snapshot()
        g1, g2 = o.get("lb_issue", 80 + 80), o.get("lb_check", 80 + 100)
        head = [("S", i, 0) for i in range(5)] + [("F", i, S_D1) for i in range(10)]
        for typ in "AB":
            if typ == "B":
                p.label("K1_TYPE_B")
                self.restore(snap)
            m0 = self.mf

            def start_ssm(typ=typ, m0=m0):
                self.stamp(4)
                if typ == "B":
                    self.job_setup("C")
                self.ssm_reduce(0, ACC_S, 188)
                if typ == "A":
                    self.w_job(188)
                self.ssm_finish(0, ACC_S, 188, lambda: self.mf - m0 >= g1, lambda: self.mf - m0 >= g2, typ)

            def at_d2():
                self.stamp(5)
                self.ffn_epilogue(ACC_D1, S_KD1)
            frags = self.s_frags(0, ACC_S) + self.d_frags(5, ACC_D1)
            if typ == "A":
                self.run(head + [("F", i, S_D2) for i in range(10)], frags + self.d_frags(15, ACC_D2),
                         {81: start_ssm, 240: at_d2}, True)
                self.stamp(6)
                self.flush()
                self.warm_k2()
                self.ffn_tail(ACC_D2, S_KD2)
                self.stamp(7)
            else:
                stages = head + [("C", i, 0) for i in range(7)]
                self.run(stages[:21], frags, {81: start_ssm})
                self.stamp(5)
                self.mf += 1000
                self.barrier()
                self.issue_stage(21, *stages[21])
                while self.dq:
                    self.dma()
                self.flush()
                self.ffn_tail(ACC_D1, S_KD1)
                self.stamp(6)
                self.job_finish("C", 7, ACC_D2 - 4)
                self.stamp(7)
            self.finish(8)
        p.label("K1_TYPE_C")
        self.restore(snap)
        stages = [("S", i % 5, i // 5) for i in range(15)]
        frags = self.s_frags(0, 16) + self.s_frags(5, 48) + self.s_frags(10, 80)
        m0 = self.mf

        def c1():
            self.stamp(4)
            self.ssm_reduce(0, 16, 152)
            for b in (1, 2):
                self.q(*self.ssm_consts(b, V_C + 12 * b + 6, 112))
                self.zero_row(b, 112)

        def c2():
            self.stamp(5)
            self.ssm_reduce(1, 48, 152)
            self.ssm_finish(0, 16, 112, None, lambda: self.mf - m0 >= 215, "C0")
        self.run(stages, frags, {81: c1, 161: c2})
        self.stamp(6)
        self.mf += 1000
        self.flush()
        self.ssm_reduce(2, 80, 152)
        self.ssm_finish(1, 48, 112, None, None, "C1")
        self.flush()
        self.stamp(7)
        self.ssm_finish(2, 80, 112, None, None, "C2")
        self.flush()
        self.finish(8)
        self.slow_paths()
        p.label("K1_END")
        e("s_endpgm")
        p.fix_hazards()
        return p


K1_DESC = """
.amdhsa_kernel proj_kernel
  .amdhsa_next_free_vgpr 512
  .amdhsa_next_free_sgpr 102
  .amdhsa_accum_offset 256
  .amdhsa_group_segment_fixed_size 0
  .amdhsa_kernarg_size 128
  .amdhsa_user_sgpr_count 2
  .amdhsa_user_sgpr_kernarg_segment_ptr 1
  .amdhsa_system_sgpr_workgroup_id_x 1
  .amdhsa_float_denorm_mode_32 3
.end_amdhsa_kernel
"""
```

```python
from k1 import *

NAME = "parallel_sum__ssm_conv_s5__glu_gated_geglu__prompt_kernel"
S_WB = 28
S_D2X, S_R2 = 100, 101
S_A, S_OOB, S_XO, S_OO, S_PO, S_PI, S_N, S_A0, S_TG, S_DN, S_DIV = 68, 69, 70, 71, 72, 73, 74, 75, 76, 80, 81
S_A1 = 82
SD, SO = SS, SF
V_L16, V_L16B, V_WA, V_PK = 3, 4, 5, 13
ACC1, ACC2, RING = 16, 96, 176
V_OA, V_LA, V_T = 240, 245, 250
WMAP = [192 + 4 * k for k in range(16)] + [4 * k for k in range(40)] + [160 + 4 * k for k in range(4)]
SLOT5 = 176
S_TB, S_WB0 = 24, 27
ORDERS = {"k0": [0, 1, 4, 5, 8, 9, 2, 3, 6, 7, 10, 11], "w0": [1, 2, 7, 8, 9, 10, 11, 0, 3, 4, 5, 6],
          "nat": list(range(12)), "w3": [0, 1, 2, 5, 6, 7, 8, 3, 4, 9, 10, 11]}


def nib(name, half):
    return sum(v << (4 * k) for k, v in enumerate(ORDERS[name][8 * half:8 * half + 8]))


MIXED = False


def rel(dst, i):
    if MIXED:
        return f"s_bfe_u32 s{dst}, s{S_TB + i // 4}, {(8 << 16) | (8 * (i % 4)):#x}"
    return f"s_bfe_u32 s{dst}, s{S_TB + i // 8}, {(4 << 16) | (4 * (i % 8)):#x}"


def mixed_lists():
    out = {}
    for kh in range(2):
        ffn = list(range(27 * kh, 27 * kh + 27))
        early = [k for k in ffn if k % 4 < 2]
        late = [k for k in ffn if k % 4 >= 2] + list(range(54 + 20 * kh, 74 + 20 * kh))
        assert len(early) == 14
        rest = early[12:] + late
        for w in range(4):
            n = 9 if w < 3 else 8
            out[kh, w] = early[3 * w:3 * w + 3] + rest[:n] + ([0] if w == 3 else [])
            rest = rest[n:]
        assert not rest
    return out


def slot(g, f):
    k = g % 5
    return f"v[{RING+16*k+4*f}:{RING+16*k+4*f+3}]" if k < 4 else f"a[{SLOT5+4*f}:{SLOT5+3+4*f}]"


STEPS_MIXED = [(0, i) for i in range(3)] + [(1, i) for i in range(3)] + [(0, i) for i in range(3, 12)] + \
              [(1, i) for i in range(3, 12)]


class Fused(K1):
    def __init__(self, opt):
        super().__init__(opt)
        self.name = NAME
        self.fused = True
        self.polls = []
        self.heads = []
        self.JA = RAW + 140

    def stats_to_lds(self):
        e = self.p.e
        e(f"ds_write2_b32 v0, v{V_X+8}, v{V_X+10} offset1:1")
        e(f"v_add_u32 v0, 0x1000, v{V_TW+2}")
        T = {"DSD": 206, "SD": 60}.get(self.opt.get("order"), V_X) if not getattr(self, "is_c", False) else V_X
        for x in (f"v_mov_b32 v{T+4}, 0", f"v_min_u32 v{T+5}, 6, v{V_SEG}", f"v_sub_u32 v{T+5}, v{T+5}, v{V_SEG}",
                  f"v_lshl_add_u32 v{T+5}, v{T+5}, 3, v{V_XR}", f"ds_write2_b32 v{T+5}, v{T+4}, v{T+4} offset1:1"):
            e(x)

    def flag_store(self, tmp, base, hi, lo):
        t = S_T1
        return [[f"s_lshl_b32 s{t}, s{hi}, 4", f"s_add_u32 s{t}, s{t}, s{lo}", f"s_lshl_b32 s{t}, s{t}, 7",
                 f"s_add_u32 s{t}, s{t}, {base}", f"s_cmp_eq_u32 s{S_W}, 0", f"s_cselect_b32 s{t}, s{t}, {OOB}"],
                f"v_mov_b32 v{tmp}, s{S_EPOCH}",
                ["s_mov_b64 exec, 1", f"buffer_store_dword v{tmp}, off, {srd(SWS)}, s{t} sc1", "s_mov_b64 exec, -1"]]

    def flag_later(self, tmp, delay, tok, base, hi, lo):
        def raise_flag():
            for x in self.flag_store(tmp, base, hi, lo):
                for y in (x if isinstance(x, list) else [x]):
                    self.p.e(y)

        def arm():
            self.pre_barrier.append(tok())
            self.on_barrier.append(raise_flag)
        if delay is None:
            self.lazy.append((tok(), raise_flag))
        else:
            self.timers.append((self.mf + delay, arm))

    def a_job_setup(self, tag=""):
        e, o = self.p.e, self.opt
        u, t, t2, ct = S_R, S_T2, S_T3, S_T1
        A = self.JA
        e(f"s_lshl_b32 s{u}, s{S_MT}, 2"); e(f"s_add_u32 s{u}, s{u}, s{S_W}")
        e(f"s_and_b32 s{ct}, s{S_CG}, 7")
        if MIXED:
            e(f"s_mov_b32 s{t}, 27"); e(f"s_mov_b32 s{S_JOB}, 52")
            e(f"s_cmp_ge_u32 s{S_CG}, 8"); e(f"s_cselect_b32 s{t2}, 27, 0")
        else:
            e(f"s_cmp_ge_u32 s{S_CG}, 8"); e(f"s_cselect_b32 s{t}, 7, 64"); e(f"s_cselect_b32 s{t2}, 47, 0")
            e(f"s_cselect_b32 s{S_JOB}, 57, 47")
        e(f"s_cmp_lt_u32 s{u}, s{S_JOB}"); e(f"s_cselect_b32 s{S_D2X}, 0, {OOB}")
        e(f"s_cmp_ge_u32 s{u}, s{t}"); e(f"s_cselect_b32 s{S_J2}, 1, 0")
        e(f"s_cbranch_scc1 JOB_C{tag}")
        for x in self.mk_srd(SA1, K_WD, FF_BYTES) + self.mk_srd(SA2, K_WD, FF_BYTES):
            e(x)
        e(f"s_add_u32 s{u}, s{u}, s{t2}")
        e(f"s_mul_i32 s{S_R2}, s{u}, {32*1280}"); e(f"s_mul_i32 s{t}, s{ct}, 160")
        e(f"s_add_u32 s{S_R2}, s{S_R2}, s{t}")
        e(f"s_mul_i32 s{S_JOB}, s{ct}, 94"); e(f"s_add_u32 s{S_JOB}, s{S_JOB}, s{u}")
        e(f"s_mul_i32 s{S_JOB}, s{S_JOB}, 5120")
        e(f"s_mov_b32 s{t}, 0xcccd")
        for q in range(5):
            e(f"v_add_u32 v{A+5}, {64*q}, v{V_LANE}"); e(f"v_mul_lo_u32 v{A+q}, v{A+5}, s{t}")
            e(f"v_lshrrev_b32 v{A+q}, 19, v{A+q}"); e(f"v_mul_u32_u24 v{A+q}, 1120, v{A+q}")
            e(f"v_lshl_add_u32 v{A+q}, v{A+5}, 4, v{A+q}")
        e(f"s_branch JOB_LD{tag}")
        self.p.label(f"JOB_C{tag}")
        for x in self.mk_srd(SA1, K_CRE, SQ_BYTES) + self.mk_srd(SA2, K_CIM, SQ_BYTES):
            e(x)
        if MIXED:
            e(f"s_sub_u32 s{u}, s{u}, 27")
            e(f"s_mul_hi_u32 s{t}, s{u}, 0x33333334"); e(f"s_mul_i32 s{t2}, s{t}, 5"); e(f"s_sub_u32 s{u}, s{u}, s{t2}")
            e(f"s_lshr_b32 s{t2}, s{S_CG}, 3"); e(f"s_mul_i32 s{t2}, s{t2}, 5"); e(f"s_add_u32 s{u}, s{u}, s{t2}")
        else:
            e(f"s_sub_u32 s{u}, s{u}, 7")
            e(f"s_mul_hi_u32 s{t}, s{u}, 0x1999999a"); e(f"s_mul_i32 s{t2}, s{t}, 10"); e(f"s_sub_u32 s{u}, s{u}, s{t2}")
        e(f"s_mul_i32 s{t2}, s{ct}, 5"); e(f"s_add_u32 s{t2}, s{t2}, s{t}")
        e(f"s_mul_i32 s{S_R2}, s{t2}, {16*1280}"); e(f"s_lshl_b32 s{t2}, s{u}, 7")
        e(f"s_add_u32 s{S_R2}, s{S_R2}, s{t2}")
        e(f"s_mul_i32 s{S_JOB}, s{ct}, 94"); e(f"s_lshl_b32 s{u}, s{u}, 2"); e(f"s_add_u32 s{S_JOB}, s{S_JOB}, s{u}")
        e(f"s_add_u32 s{S_JOB}, s{S_JOB}, 54"); e(f"s_mul_i32 s{S_JOB}, s{S_JOB}, 5")
        e(f"s_add_u32 s{S_JOB}, s{S_JOB}, s{t}"); e(f"s_lshl_b32 s{S_JOB}, s{S_JOB}, 10")
        e(f"v_lshrrev_b32 v{A}, 3, v{V_LANE}"); e(f"v_mul_u32_u24 v{A}, 1280, v{A}")
        e(f"v_and_b32 v{A+1}, 7, v{V_LANE}"); e(f"v_lshl_add_u32 v{A}, v{A+1}, 4, v{A}")
        e(f"v_add_u32 v{A+1}, {8*1280}, v{A}"); e(f"v_mov_b32 v{A+2}, v{A}"); e(f"v_mov_b32 v{A+3}, v{A+1}")
        e(f"v_mov_b32 v{A+4}, {OOB}")
        self.p.label(f"JOB_LD{tag}")
        e(f"s_add_u32 s{S_JOB}, s{S_JOB}, {W2F_OFF}")
        e(f"s_or_b32 s{S_JOB}, s{S_JOB}, s{S_D2X}"); e(f"s_or_b32 s{S_R}, s{S_R2}, s{S_D2X}")
        if o.get("job_mode") == "dma":
            def piece(q):
                e(f"s_add_u32 m0, s{S_J1}, {1024*q}")
                self.job_tok = e(f"buffer_load_dwordx4 v{A+q}, {srd(SA1 if q < 2 else SA2)}, s{S_R} offen{o.get('ntjob', '')} lds")
            self.job_ld = [lambda q=q: piece(q) for q in range(5)]
            return
        self.job_ld = [lambda q=q: setattr(self, "job_tok", e(
            f"buffer_load_dwordx4 a[{192+4*q}:{195+4*q}], v{A+q}, {srd(SA1 if q < 2 else SA2)}, s{S_R} offen"))
            for q in range(5)]
        if o.get("job_dq"):
            self.dq.extend(self.job_ld)
        elif not o.get("job_late"):
            for f in self.job_ld:
                f()

    def a_job(self, is_c, m0, R, L):
        p, q = self.p, self.q
        st = {}
        D = R + 2 if not self.opt.get("job_spread") else self.JD

        def at(k):
            self.fill.append(("t", lambda: self.mf - m0 >= k + self.opt.get("fork_at", 65)))
        if is_c:
            q(f"v_and_b32 v{R}, 15, v{V_LANE}", f"v_lshlrev_b32 v{R}, 7, v{R}",
              f"v_lshrrev_b32 v{R+1}, 4, v{V_LANE}", f"v_lshl_add_u32 v{R}, v{R+1}, 3, v{R}")
        else:
            q(f"v_lshrrev_b32 v{R}, 5, v{V_LANE}", f"v_lshlrev_b32 v{R}, 4, v{R}",
              f"v_bfe_u32 v{R+1}, v{V_LANE}, 2, 3", f"v_add_u32 v{R}, v{R}, v{R+1}",
              f"v_mul_u32_u24 v{R}, 160, v{R}", f"v_and_b32 v{R+1}, 3, v{V_LANE}",
              f"v_lshl_add_u32 v{R}, v{R+1}, 3, v{R}")
        q(f"v_add_u32 v{R}, s{S_J1}, v{R}", f"v_add_u32 v{R+1}, s{S_J1}, v{V_TW+2}")
        at(2)
        dma = self.opt.get("job_mode") == "dma"
        if dma:
            st["w"] = self.job_tok
        else:
            self.fill.append(lambda: p.wait(self.job_tok))
        for f in range(0 if dma else 5):
            at(2 + f // 2)
            self.fill.append(lambda f=f: st.__setitem__("w", p.e(
                f"ds_write_b128 v{R+1}, a[{192+4*f}:{195+4*f}] offset:{1024*f}")))
        land = [(L if is_c else D) + 4 * f for f in range(5)]
        for f in range(5):
            at((3 if dma else 7) + f // 2)

            def rd(f=f):
                p.wait(st["w"])
                op, o2 = ("ds_read_b64", 2048) if is_c else ("ds_read_b64_tr_b16", 1280)
                p.e(f"{op} v[{land[f]}:{land[f]+1}], v{R} offset:{32*f}")
                st[f] = p.e(f"{op} v[{land[f]+2}:{land[f]+3}], v{R} offset:{32*f + o2}")
            rd.cost = 2
            self.fill.append(rd)
        if is_c:
            q(f"s_mov_b32 s{S_T2}, 0x05040100", f"s_mov_b32 s{S_T3}, 0x07060302")
        at(8 if dma else 12)
        self.fill.append(lambda: p.wait(st[4]))
        for f in range(5):
            if is_c and f < 4:
                re, im = land[f], land[f] + 2
                for k in range(2):
                    q(f"v_perm_b32 v{D+4*f+2*k}, v{im+k}, v{re+k}, s{S_T2}",
                      f"v_perm_b32 v{D+4*f+2*k+1}, v{im+k}, v{re+k}, s{S_T3}")
            if self.opt.get("job_spread"):
                continue
            at((10 if dma else 14) + 2 * f)
            self.fill.append(lambda f=f: setattr(self, "job_store", p.e(
                f"buffer_store_dwordx4 v[{D+4*f}:{D+4*f+3}], v{V_TW+2}, {srd(SWS)}, s{S_JOB} offen{self.wt}")))
            if f < 4:
                q(f"s_add_u32 s{S_JOB}, s{S_JOB}, {(5120 if f < 3 else OOB) if is_c else 1024}")
        if self.opt.get("job_spread"):
            q(f"s_mov_b32 s{S_R}, {5120 if is_c else 1024}", f"s_mov_b32 s{S_XB}, {OOB if is_c else 1024}")

    def job_stores(self, D, then):
        e, n = self.p.e, self.opt["job_spread"]

        def one(f):
            self.job_store = e(f"buffer_store_dwordx4 v[{D+4*f}:{D+4*f+3}], v{V_TW+2}, {srd(SWS)}, s{S_JOB} offen{self.wt}")
            if f < 4:
                e(f"s_add_u32 s{S_JOB}, s{S_JOB}, s{S_R if f < 3 else S_XB}")
            else:
                then()
        for f in range(5):
            self.timers.append((self.mf + 2 + n * f, lambda f=f: one(f)))

    def fork_job(self, tag, m0, R, L):
        e, fa = self.p.e, self.opt.get("fork_at", 65)
        n = 20 if self.opt.get("job_mode") == "dma" else 24
        if self.opt.get("job_spread"):
            n = 15
        self.fork = (fa, fa + n, lambda: (e(f"s_cmp_eq_u32 s{S_J2}, 1"), e(f"s_cbranch_scc1 FORK_ALT_{tag}")),
                     lambda: self.a_job(False, m0, R, L), lambda: self.a_job(True, m0, R, L), tag)
        return fa + n

    def jf_load(self, R):
        e = self.p.e
        e(f"s_lshl_b32 s{S_WB+1}, s{S_CG}, 11")
        e(f"s_add_u32 s{S_WB+1}, s{S_WB+1}, {JF_OFF}")
        e(f"v_and_b32 v{R+1}, 15, v{V_LANE}")
        e(f"v_lshlrev_b32 v{R+1}, 7, v{R+1}")
        self.jf_tok = self.flag_load(R)

    def flag_load(self, R):
        e = self.p.e
        e(f"v_mov_b32 v{R}, s{S_EPOCH}")
        e("s_mov_b64 exec, 0xffff")
        t = e(f"buffer_load_dword v{R}, v{R+1}, {srd(SWS)}, s{S_WB+1} offen sc1")
        e("s_mov_b64 exec, -1")
        return t

    def all_equal(self, R, n, label):
        e = self.p.e
        e(f"v_xor_b32 v{R}, s{S_EPOCH}, v{R}")
        for k in range(1, n):
            e(f"v_bitop3_b32 v{R}, v{R}, v{R+k}, s{S_EPOCH} bitop3:0xf6")
        e(f"v_cmp_ne_u32 vcc, 0, v{R}")
        e(f"s_cbranch_vccnz {label}")

    def jf_check(self, R, tag, first, per):
        p, e = self.p, self.p.e
        e(f"s_mov_b32 s{S_WB+2}, 0")
        p.wait(self.jf_tok)
        e(f"v_cmp_ne_u32 vcc, s{S_EPOCH}, v{R}")
        e(f"s_cbranch_vccnz JF_SLOW_{tag}")
        p.label(f"JF_OK_{tag}")
        self.polls.append((tag, R))
        e(f"s_lshr_b32 s{S_WB}, s{S_CG}, 3")
        e(f"s_mul_i32 s{S_WB}, s{S_WB}, 47")
        e(f"s_mul_i32 s{S_WB+1}, s{S_W}, 12")
        e(f"s_add_u32 s{S_WB+3}, s{S_WB}, s{S_WB+1}")
        if MIXED:
            e(f"s_mov_b32 s{S_WB+3}, 0")
        e(f"s_and_b32 s{S_WB}, s{S_CG}, 7")
        e(f"s_mul_i32 s{S_WB}, s{S_WB}, 94")
        e(f"s_add_u32 s{S_WB}, s{S_WB}, s{S_WB+3}")
        e(f"s_mul_i32 s{S_WB}, s{S_WB}, 5120")
        e(f"s_add_u32 s{S_WB0}, s{S_WB}, {W2F_OFF}")
        if MIXED:
            L = mixed_lists()
            e(f"s_lshr_b32 s{S_WB+1}, s{S_CG}, 3"); e(f"s_lshl_b32 s{S_WB+1}, s{S_WB+1}, 2")
            e(f"s_add_u32 s{S_WB+1}, s{S_WB+1}, s{S_W}")
            for c in range(8):
                words = [sum(v << (8 * k) for k, v in enumerate(L[c // 4, c % 4][4 * h:4 * h + 4])) for h in range(3)]
                if c:
                    e(f"s_cmp_eq_u32 s{S_WB+1}, {c}")
                for h in range(3):
                    e(f"s_cselect_b32 s{S_TB+h}, {words[h]:#x}, s{S_TB+h}" if c else f"s_mov_b32 s{S_TB+h}, {words[h]:#x}")
        else:
            for h in range(2):
                e(f"s_mov_b32 s{S_TB+h}, {nib('nat', h):#x}")
            for cond, name in ((f"s_cmp_eq_u32 s{S_W}, 0", "w0"), (f"s_cmp_eq_u32 s{S_W}, 3", "w3"), (f"s_cmp_lt_u32 s{S_CG}, 8", "k0")):
                e(cond)
                for h in range(2):
                    e(f"s_cselect_b32 s{S_TB+h}, {nib(name, h):#x}, s{S_TB+h}")

        def ld(n):
            i, cb = divmod(n, 5)
            if cb == 0:
                e(rel(S_WB, i))
                e(f"s_mul_i32 s{S_WB}, s{S_WB}, 5120")
                e(f"s_add_u32 s{S_WB}, s{S_WB}, s{S_WB0}")
                if i == 11:
                    e(f"s_cmp_eq_u32 s{S_W}, 3")
                    e(f"s_cselect_b32 s{S_WB}, {OOB}, s{S_WB}")
            va, off = ((V_L16 if n >= 60 - self.opt.get("w_keep", 12) else V_TW + 2), 1024 * cb) if cb < 4 else (0, 0)
            e(f"buffer_load_dwordx4 a[{WMAP[n]}:{WMAP[n]+3}], v{va}, {srd(SWS)}, s{S_WB} offen offset:{off} sc1")
        self.wq = [lambda n=n: ld(n) for n in range(60)]
        self.wfrom, self.wper = first, per

    def code_touch(self, tag, start, skip, lines, tmp):
        e = self.p.e
        b, per = S_M2, lines // 4
        e(f"s_getpc_b64 s[{b}:{b+1}]")
        self.p.label(f"CT_{tag}")
        if start is not None:
            e(f"s_add_u32 s{b}, s{b}, {start}-CT_{tag}")
            e(f"s_addc_u32 s{b+1}, s{b+1}, 0")
        e(f"s_mul_i32 s{S_T1}, s{S_W}, {per*128}")
        e(f"s_add_u32 s{S_T1}, s{S_T1}, {skip}")
        e(f"v_lshl_add_u32 v{tmp}, v{V_LANE}, 7, s{S_T1}")
        e(f"v_min_u32 v{tmp}, TEXT_END-{start or 'CT_' + tag}-4, v{tmp}")
        e(f"s_mov_b64 exec, {(1 << per) - 1:#x}")
        e(f"global_load_dword v{tmp+1}, v{tmp}, s[{b}:{b+1}]")
        e("s_mov_b64 exec, -1")

    def fire_timers(self):
        for tm in self.timers:
            tm[1]()
        self.timers = []
        for tok, f in self.lazy:
            self.pre_barrier.append(tok)
            self.on_barrier.append(f)
        self.lazy = []
        if self.on_barrier:
            self.barrier()

    def poll_paths(self):
        p, e = self.p, self.p.e
        for tag in self.heads:
            p.label(f"K2_EARLY_SLOW_{tag}")
            e(f"s_sleep {self.opt.get('done_sleep', 8)}")
            e(f"s_add_u32 s{S_SPIN}, s{S_SPIN}, 1")
            e(f"s_cmp_gt_u32 s{S_SPIN}, 100000")
            e(f"s_cbranch_scc1 K2_EARLY_OK_{tag}")
            self.early_load()
            e("s_waitcnt vmcnt(0)")
            e(f"v_cmp_ne_u32 vcc, s{S_EPOCH}, v15")
            e(f"s_cbranch_vccnz K2_EARLY_SLOW_{tag}")
            e(f"s_branch K2_EARLY_OK_{tag}")
        for tag, R in self.polls:
            p.label(f"JF_SLOW_{tag}")
            e("s_sleep 6")
            e(f"s_add_u32 s{S_WB+2}, s{S_WB+2}, 1")
            e(f"s_cmp_gt_u32 s{S_WB+2}, 20000")
            e(f"s_cbranch_scc1 JF_OK_{tag}")
            self.flag_load(R)
            e("s_waitcnt vmcnt(0)")
            e(f"v_cmp_ne_u32 vcc, s{S_EPOCH}, v{R}")
            e(f"s_cbranch_vccnz JF_SLOW_{tag}")
            e(f"s_branch JF_OK_{tag}")

    def w_some(self, n):
        while n > 0 and len(self.wq) > self.opt.get("w_keep", 12):
            self.wq.pop(0)()
            n -= 1

    def a_load(self, g, t, i, f):
        e = self.p.e
        if f == 0:
            e(rel(S_A, i))
            e(f"s_lshl_b32 s{S_A}, s{S_A}, 12")
            e(f"s_add_u32 s{S_A}, s{S_A}, s{S_A0 if t else S_A1}")
            if i == 11:
                e(f"s_cmp_eq_u32 s{S_W}, 3")
                e(f"s_cselect_b32 s{S_A}, s{S_OOB}, s{S_A}")
        return e(f"buffer_load_dwordx4 {slot(g, f)}, v{V_L16}, {srd(SWS)}, s{S_A} offen offset:{1024*f} sc1")

    def early_load(self):
        e = self.p.e
        e(f"v_mov_b32 v15, s{S_EPOCH}")
        if self.opt.get("fast"):
            e(f"s_mov_b64 exec, s[{S_M2}:{S_M2+1}]")
        else:
            e("s_mov_b64 exec, 0x7f7f" if MIXED else "s_mov_b64 exec, 0xbfff")
        t = e(f"buffer_load_dword v15, v2, {srd(SWS)}, s{S_DIV+2} offen sc1")
        e("s_mov_b64 exec, -1")
        return t

    def head_a(self, tag):
        p, e = self.p, self.p.e
        e(f"s_lshl_b32 s{S_DN}, s{S_MT}, 11"); e(f"s_add_u32 s{S_DN}, s{S_DN}, {DONE_OFF}")
        e(f"s_add_u32 s{S_DIV+2}, s{S_DN}, {DONE1_OFF - DONE_OFF}")
        e(f"v_and_b32 v2, 15, v{V_LANE}"); e("v_lshlrev_b32 v2, 7, v2")
        e(f"s_mov_b32 s{S_SPIN}, 0")
        split = self.opt.get("split", 0)
        fast = self.opt.get("fast", 0)
        if fast:
            e(f"s_mov_b32 s{S_DIV+2}, s{S_DN}")
            e(f"s_lshl_b32 s{S_M2}, 1, s{S_CG}"); e(f"s_andn2_b32 s{S_M2}, 0xffff, s{S_M2}"); e(f"s_mov_b32 s{S_M2+1}, 0")
        if (tag != "B") and split in (1, 4) and not (tag == "A" and self.opt.get("early_mid")):
            t_early = self.early_load()
        self.w_some(self.opt.get("head_w", 4))
        for x in self.mk_srd(SD, K_DSK, 1280) + self.mk_srd(SO, K_OUT, OUT_BYTES):
            e(x)
        e(f"v_mov_b32 v{V_L16}, v{V_TW+2}"); e(f"v_mov_b32 v{V_L16B}, v0")
        e(f"s_mov_b32 s{S_N}, s{S_WB+3}")
        e(f"s_lshr_b32 s{S_T2}, s{S_CG}, 3")
        e(f"s_lshl_b32 s{S_T3}, s{S_MT}, 1")
        e(f"s_add_u32 s{S_T3}, s{S_T3}, s{S_T2}")
        e(f"s_mul_i32 s{S_A0}, s{S_T3}, 94"); e(f"s_add_u32 s{S_A0}, s{S_A0}, s{S_N}"); e(f"s_lshl_b32 s{S_A0}, s{S_A0}, 12")
        e(f"s_xor_b32 s{S_A1}, s{S_T3}, 1")
        e(f"s_mul_i32 s{S_A1}, s{S_A1}, 94"); e(f"s_add_u32 s{S_A1}, s{S_A1}, s{S_N}"); e(f"s_lshl_b32 s{S_A1}, s{S_A1}, 12")
        e(f"s_lshl_b32 s{S_T3}, s{S_T3}, 6"); e(f"s_lshl_b32 s{S_T0}, s{S_W}, 4"); e(f"s_add_u32 s{S_T3}, s{S_T3}, s{S_T0}")
        e(f"s_and_b32 s{S_T1}, s{S_CG}, 7"); e(f"s_mul_i32 s{S_T1}, s{S_T1}, 160")
        e(f"s_mul_i32 s{S_XO}, s{S_T3}, 1280"); e(f"s_add_u32 s{S_XO}, s{S_XO}, s{S_T1}")
        e(f"s_lshl_b32 s{S_OO}, s{S_XO}, 1")
        e(f"s_mov_b32 s{S_DIV}, 0xcccd"); e(f"s_mov_b32 m0, s{S_J1}")
        for j in range(3):
            e(f"v_add_u32 v6, {64*j}, v{V_LANE}"); e(f"v_mul_lo_u32 v7, v6, s{S_DIV}"); e("v_lshrrev_b32 v7, 19, v7")
            e("v_mul_u32_u24 v8, 1120, v7"); e("v_lshl_add_u32 v8, v6, 4, v8")
            if j:
                e(f"v_add_u32 v8, {-1024*j & 0xffffffff:#x}, v8")
            if j == 2:
                e("s_mov_b32 exec_hi, 0")
            e(f"buffer_load_dwordx4 v8, {srd(SX)}, s{S_XO} offen offset:{1024*j} lds")
        e(f"s_add_u32 m0, s{S_J1}, 3072"); e("s_mov_b32 exec_lo, 0x3ff")
        t_res = e(f"buffer_load_dwordx4 v{V_L16}, {srd(SD)}, s{S_T1} offen lds")
        e("s_mov_b64 exec, -1")
        self.h = dict(t_res=t_res, t_early=locals().get("t_early"))

    def phase2_head(self, k, tag):
        p, e = self.p, self.p.e
        self.stamp(k)
        split, fast = self.opt.get("split", 0), self.opt.get("fast", 0)
        if not getattr(self, "h", None):
            self.head_a(tag)
        t_res, t_early = self.h["t_res"], self.h["t_early"]
        self.h = None
        def raise_done():
            e(f"s_lshl_b32 s{S_T0}, s{S_CG}, 7"); e(f"s_add_u32 s{S_T0}, s{S_T0}, s{S_DN}")
            e(f"s_cmp_eq_u32 s{S_W}, 0"); e(f"s_cselect_b32 s{S_T0}, s{S_T0}, {OOB}")
            e(f"v_mov_b32 v14, s{S_EPOCH}")
            self.barrier(self.last_store)
            if tag != "B" and (split == 2 or fast):
                st["early"] = self.early_load()
            e("s_mov_b64 exec, 1")
            e(f"buffer_store_dword v14, off, {srd(SWS)}, s{S_T0} sc1")
            e("s_mov_b64 exec, -1")
            self.stamp(k + 1)

        def go():
            p.wait(st["early"])
            e(f"v_cmp_ne_u32 vcc, s{S_EPOCH}, v15")
            e(f"s_cbranch_vccnz K2_EARLY_SLOW_{tag}")
            p.label(f"K2_EARLY_OK_{tag}")
            self.heads.append(tag)
            p.wait(t_res)
            for g in range(4):
                for f in range(4):
                    self.a_load(g, *(STEPS_MIXED[g] if MIXED else (0, g)), f)
        st = {"early": t_early}
        e(f"s_mov_b32 s{S_OOB}, {OOB}")
        late_done = split == 4 and tag == "A"
        if not late_done:
            raise_done()
        self.w_some(60)
        if tag == "B" and (split or fast):
            st["early"] = self.early_load()
        if split in (1, 4) or fast == 1:
            go()
        if split == 4 and not late_done:
            e(f"buffer_store_dword v14, off, {srd(SWS)}, s{S_OOB} sc1")
        self.w_rest = list(self.wq)
        e(f"s_and_b32 s{S_T3}, s{S_T3}, 127"); e(f"s_lshl_b32 s{S_T3}, s{S_T3}, 3"); e(f"s_add_u32 s{S_T3}, s{S_T3}, {STL}")
        e(f"s_mul_i32 s{S_T2}, s{S_W}, 5376")
        e(f"v_lshlrev_b32 v10, 3, v{V_LANE}"); e(f"v_add_u32 v10, s{S_J1}, v10")
        XR, DR, SR, T = ACC2, ACC2 + 10, ACC2 + 20, ACC2 + 32
        AD = ACC2 + 60
        for i in range(5):
            e(f"v_add_u32 v6, {64*i}, v{V_LANE}"); e(f"v_mul_lo_u32 v7, v6, s{S_DIV}"); e("v_lshrrev_b32 v7, 20, v7")
            e("v_mul_u32_u24 v8, 20, v7"); e("v_sub_u32 v8, v6, v8")
            e("v_mul_u32_u24 v9, 2560, v7"); e(f"v_lshl_add_u32 v{V_OA+i}, v8, 4, v9")
            e("v_mul_u32_u24 v12, 336, v7"); e("v_lshl_add_u32 v12, v8, 4, v12")
            e(f"v_add_u32 v{V_LA+i}, s{S_T2}, v12")
            e(f"v_lshl_add_u32 v{AD+i}, v8, 3, s{S_J1}"); e(f"v_lshl_add_u32 v11, v7, 3, s{S_T3}")
            e(f"ds_read_b64 v[{SR+2*i}:{SR+2*i+1}], v11")
        e(f"v_and_b32 v{V_WA}, 15, v{V_LANE}"); e(f"v_mul_u32_u24 v{V_WA}, 336, v{V_WA}")
        e(f"v_lshrrev_b32 v6, 4, v{V_LANE}"); e(f"v_lshl_add_u32 v{V_WA}, v6, 4, v{V_WA}")
        e(f"s_mul_i32 s{S_T2}, s{S_W}, 21504"); e(f"v_add_u32 v{V_WA}, s{S_T2}, v{V_WA}")
        e(f"v_add_u32 v{V_PK}, s{S_J1}, v{V_L16}")
        e("s_lshl_b32 s3, s2, 2"); e(f"s_add_u32 s3, s3, s{S_W}")
        e(f"s_mul_i32 s{S_PO}, s3, 5120"); e(f"s_add_u32 s{S_PO}, s{S_PO}, {PART_OFF}")
        e("s_xor_b32 s3, s3, 4")
        e(f"s_mul_i32 s{S_PI}, s3, 5120"); e(f"s_add_u32 s{S_PI}, s{S_PI}, {PART_OFF}")
        if self.opt.get("a_pref"):
            e(f"s_and_b32 s{S_T0}, s{S_CG}, 7"); e(f"s_lshl_b32 s{S_T0}, s{S_T0}, 2"); e(f"s_add_u32 s{S_T0}, s{S_T0}, s{S_W}")
            e(f"s_mul_i32 s{S_T0}, s{S_T0}, 94")
            e(f"s_mov_b32 s{S_T1}, {94*4096 - 1504*128}")
            for j, r in ((0, 6), (1, 7)):
                e(f"v_add_u32 v{r}, s{S_T0}, v{V_LANE}")
                if j:
                    e(f"v_add_u32 v{r}, 64, v{r}")
                e(f"v_cmp_lt_u32 vcc, 1503, v{r}")
                e(f"v_lshlrev_b32 v{r}, 7, v{r}")
                e(f"v_add_u32 v8, s{S_T1}, v{r}")
                e(f"v_cndmask_b32 v{r}, v{r}, v8, vcc")
            e(f"s_lshr_b32 s{S_T0}, s{S_CG}, 3"); e(f"s_mul_i32 s{S_T0}, s{S_T0}, 47")
            e(f"s_mul_i32 s{S_T1}, s{S_MT}, 188"); e(f"s_add_u32 s{S_T0}, s{S_T0}, s{S_T1}")
            e(f"s_lshl_b32 s{S_DIV+2}, s{S_T0}, 12")
        e(f"v_mov_b32 v{V_T}, 0xff")
        e(f"s_mov_b32 s{S_TG}, s{S_EPOCH}")
        for j in range(1, 4):
            e(f"s_lshr_b32 s{S_TG+j}, s{S_TG}, {8*j}"); e(f"s_add_u32 s{S_TG+j}, s{S_TG+j}, s{S_TG}")
        t = None
        if fast == 2:
            go()
        p.wait(t_res)
        for i in range(5):
            e(f"ds_read_b64 v[{XR+2*i}:{XR+2*i+1}], v10 offset:{512*i}")
            t = e(f"ds_read_b64 v[{DR+2*i}:{DR+2*i+1}], v{AD+i} offset:3072")
        p.wait(t)
        M = f"s{S_MASK}"
        for i in range(5):
            if split == 2 and i == self.opt.get("go_at", 0):
                go()
            x0, d0, s0 = XR + 2 * i, DR + 2 * i, SR + 2 * i
            for j, r in enumerate((x0, x0 + 1, d0, d0 + 1)):
                e(f"v_lshlrev_b32 v{T+2*j}, 16, v{r}"); e(f"v_and_b32 v{T+2*j+1}, {M}, v{r}")
            for j in range(4):
                e(f"v_fma_f32 v{T+8+j}, v{T+j}, v{s0}, v{s0+1}")
            for rnd in range(2):
                e(f"v_cvt_pk_bf16_f32 v{T+12}, v{T+8}, v{T+9}"); e(f"v_cvt_pk_bf16_f32 v{T+13}, v{T+10}, v{T+11}")
                e(f"v_lshlrev_b32 v{T+8}, 16, v{T+12}"); e(f"v_and_b32 v{T+9}, {M}, v{T+12}")
                e(f"v_lshlrev_b32 v{T+10}, 16, v{T+13}"); e(f"v_and_b32 v{T+11}, {M}, v{T+13}")
                if rnd == 0:
                    for j in (0, 2):
                        e(f"v_pk_mul_f32 v[{T+8+j}:{T+9+j}], v[{T+8+j}:{T+9+j}], v[{T+4+j}:{T+5+j}]")
            o = T + 16 + 4 * (i % 2)
            for j in (0, 2):
                e(f"v_pk_add_f32 v[{o+j}:{o+j+1}], v[{T+j}:{T+j+1}], v[{T+8+j}:{T+9+j}]")
            e(f"ds_write_b128 v{V_PK}, v[{o}:{o+3}] offset:{1024*i}")
        if self.opt.get("a_pref") == 2:
            e(f"buffer_load_dword v8, v6, {srd(SWS)}, s{S_DIV+2} offen sc1")
            e("s_mov_b64 exec, 0x3fffffff")
            e(f"buffer_load_dword v9, v7, {srd(SWS)}, s{S_DIV+2} offen sc1")
            e("s_mov_b64 exec, -1")
        if late_done:
            raise_done()
        e("s_branch K2_START")

    def phase2(self):
        p, e, opt = self.p, self.p.e, self.opt
        fill, tok, st, ld = [], {}, {}, []
        cur, cnt = {"g": 0}, {"m": 0}
        NS, F = 5, opt.get("k2_fuse", 3)
        PD = NS - 1

        def q(*texts):
            for t in texts:
                fill.append(t if callable(t) else (lambda t=t: e(t)))

        def pull(budget):
            start = p.slots
            while fill and p.slots - start < budget:
                it = fill[0]
                if isinstance(it, tuple):
                    if not it[0]():
                        return
                    fill.pop(0)
                    continue
                fill.pop(0)
                it()

        def lag(n):
            mark = {}
            q(lambda: mark.__setitem__("m", cnt["m"]))
            fill.append((lambda: cnt["m"] >= mark["m"] + n or cur["g"] > 98,))

        J = opt.get("k2_j", 2 if opt.get("split", 0) else 0)
        steps = [(0, i) for i in range(6)] + [(1, i) for i in range(J)] + [(0, i) for i in range(6, 12)] + \
                [(1, i) for i in range(J, 12)]
        G1 = 12 + J
        GL = 6 + J
        if MIXED:
            steps = STEPS_MIXED
            G1, GL = 15, 6
        HOLD = opt.get("k2_hold", 2) if MIXED else 0

        def loads(g):
            t, i = steps[g]

            return [lambda f=f: tok.__setitem__(g, self.a_load(g, t, i, f)) for f in range(4)]

        def done_load():
            e(f"v_mov_b32 v15, s{S_EPOCH}")
            e("s_mov_b64 exec, 0xffff")
            st["dn"] = e(f"buffer_load_dword v15, v2, {srd(SWS)}, s{S_DN} offen sc1")
            e("s_mov_b64 exec, -1")

        def done_check():
            e(f"v_cmp_ne_u32 vcc, s{S_EPOCH}, v15")
            e("s_cbranch_vccnz K2_LATE_SLOW")

        def tile_to_lds(acc):
            return [f"ds_write_b128 v{V_WA}, v[{acc+(cb*4+rb)*4}:{acc+(cb*4+rb)*4+3}] offset:{rb*5376 + cb*64}"
                    for cb in range(5) for rb in range(4)]

        def barrier():
            p.wait_all(vm=False)
            e("s_barrier")

        def part_loads():
            for i in range(5):
                r = ACC1 + 16 * i + 8
                va, off = (V_L16, 1024 * i) if i < 4 else (V_L16B, 0)
                st["pi"] = e(f"buffer_load_dwordx4 v[{r}:{r+3}], v{va}, {srd(SWS)}, s{S_PI} offen offset:{off} sc1")

        def part_check():
            for i in range(5):
                for k in range(4):
                    r = ACC1 + 16 * i + 8 + k
                    if i + k == 0:
                        e(f"v_xor_b32 v{V_T+1}, s{S_TG}, v{r}")
                    else:
                        e(f"v_bitop3_b32 v{V_T+1}, v{V_T+1}, v{r}, s{S_TG+k} bitop3:0xf6")
            e(f"v_and_b32 v{V_T+1}, v{V_T}, v{V_T+1}")
            e(f"v_cmp_ne_u32 vcc, 0, v{V_T+1}")
            e("s_cbranch_vccnz K2_SLOW")

        def first_tile_done():
            for x in tile_to_lds(ACC1):
                q(x)
                lag(opt.get("k2_wlag", 2))
            lag(opt.get("k2_blag", 4))
            q(barrier)
            for i in range(5):
                for wv in range(4):
                    r = ACC1 + 16 * i + 4 * wv
                    q(lambda i=i, r=r, wv=wv: st.__setitem__(("rd", i), e(
                        f"ds_read_b128 v[{r}:{r+3}], v{V_LA+i} offset:{wv*21504}")))
            for i in range(5):
                r = ACC1 + 16 * i
                q(lambda i=i: p.wait(st["rd", i]))
                for k in range(4):
                    q(f"v_add_f32 v{r+k}, v{r+k}, v{r+4+k}", f"v_add_f32 v{r+8+k}, v{r+8+k}, v{r+12+k}")
                q(*[f"v_add_f32 v{r+k}, v{r+k}, v{r+8+k}" for k in range(4)])
                q(*[f"v_bfi_b32 v{r+k}, v{V_T}, s{S_TG+k}, v{r+k}" for k in range(4)])
                va, off = (V_L16, 1024 * i) if i < 4 else (V_L16B, 0)
                q(f"buffer_store_dwordx4 v[{r}:{r+3}], v{va}, {srd(SWS)}, s{S_PO} offen offset:{off} sc1")
            q("s_barrier")
            for i in range(5):
                r = ACC1 + 16 * i + 4
                q(lambda i=i, r=r: st.__setitem__("pk", e(f"ds_read_b128 v[{r}:{r+3}], v{V_PK} offset:{1024*i}")))
            fill.append((lambda: cnt["m"] >= opt.get("k2_pollm", 440),))
            q(part_loads)

        def mfma(g, cb, rb):
            t, i = steps[g]
            acc = ACC2 if t else ACC1
            w = WMAP[5 * i + cb]
            c = f"v[{acc+(cb*4+rb)*4}:{acc+(cb*4+rb)*4+3}]"
            start = p.slots
            e(f"v_mfma_f32_16x16x32_bf16 {c}, a[{w}:{w+3}], {slot(g, rb)}, {c if i else 0}")
            cnt["m"] += 1
            if cnt["m"] % 4 == 2 and ld:
                ld.pop(0)()
            elif cnt["m"] % 4 == 0 and wrest:
                wrest.pop(0)()
            return start

        p.label("K2_START")
        if not opt.get("split", 0) and not opt.get("fast", 0):
            e(f"s_cmp_lg_u32 s{S_W}, 0")
            e("s_cbranch_scc1 K2_GO")
            e("s_mov_b64 exec, 0xffff")
            p.label("K2_RETRY")
            e(f"buffer_load_dword v15, v2, {srd(SWS)}, s{S_DN} offen sc1")
            e(f"s_add_u32 s{S_SPIN}, s{S_SPIN}, 1")
            e("s_waitcnt vmcnt(0)")
            e(f"v_cmp_ne_u32 vcc, s{S_EPOCH}, v15")
            e("s_cbranch_vccz K2_SEEN")
            if opt.get("backoff"):
                e(f"s_bcnt1_i32_b64 s{S_T0}, vcc")
                e(f"s_cmp_lt_u32 s{S_T0}, {opt.get('backoff_n', 12)}")
                e("s_cbranch_scc1 K2_SHORT")
                e(f"s_sleep {opt['backoff']}")
                p.label("K2_SHORT")
            e(f"s_sleep {opt.get('done_sleep', 3)}")
            e(f"s_cmp_lt_u32 s{S_SPIN}, 100000")
            e("s_cbranch_scc1 K2_RETRY")
            p.label("K2_SEEN")
            e("s_mov_b64 exec, -1")
            p.label("K2_GO")
            e("s_barrier")
            assert not MIXED
            if opt.get("a_pref"):
                e(f"buffer_load_dword v8, v6, {srd(SWS)}, s{S_DIV+2} offen sc1")
                e("s_mov_b64 exec, 0x3fffffff")
                e(f"buffer_load_dword v9, v7, {srd(SWS)}, s{S_DIV+2} offen sc1")
                e("s_mov_b64 exec, -1")
            for g in range(4):
                for f in range(4):
                    self.a_load(g, 0, g, f)
        p.vq, p.vdone, p.lq, p.ldone = (17 if opt.get("split") == 4 else 16), 0, 5, 0
        for g in range(4):
            tok[g] = ("v", 4 * g + 4)
        self.stamp(10)
        if opt.get("stamp"):
            e(f"s_mov_b32 s{S_WB+2}, s{S_SPIN}")
        e(f"s_mov_b32 s{S_SPIN}, 0")
        e(f"s_mov_b32 s{S_WB+1}, 0")
        wrest = list(self.w_rest)
        for g in range(24 - F):
            cur["g"] = g
            if g + PD + opt.get("k2_dlead", 2) == GL + HOLD and opt.get("split", 0):
                done_load()
            if g == G1:
                self.stamp(11)
                first_tile_done()
            p.wait(tok[g])
            if g + PD == GL + HOLD and opt.get("split", 0):
                p.wait(st["dn"])
                done_check()
                p.label("K2_LATE_OK")
                for g2 in range(GL, GL + HOLD):
                    for f in loads(g2):
                        f()
            if g + PD < 24 and not (GL <= g + PD < GL + HOLD):
                ld.extend(loads(g + PD))
            for cb in range(5):
                for rb in range(4):
                    start = mfma(g, cb, rb)
                    pull(opt.get("k2_b2", 4) - (p.slots - start))
            while ld:
                ld.pop(0)()
        cur["g"] = 98
        wr, tl = [], tile_to_lds(ACC2)
        for cb in range(5):
            n = 0
            for g in range(24 - F, 24):
                p.wait(tok[g])
                for rb in range(4):
                    start = mfma(g, cb, rb)
                    n += 1
                    if wr and n > 2 and (n - 3) % max(1, F - 1) == 0:
                        e(wr.pop(0))
                    pull(opt.get("k2_b2", 4) - (p.slots - start))
            for x in wr:
                e(x)
            wr = tl[4 * cb:4 * cb + 4]
        cur["g"] = 99
        self.stamp(12)
        pull(10000)
        assert not fill
        for x in wr:
            e(x)
        p.wait(st["pi"], st["pk"])
        part_check()
        p.label("K2_OK")
        e(f"s_mov_b32 s{S_DIV}, 0xffffff00")
        for i in range(5):
            s = ACC1 + 16 * i
            for k in range(4):
                e(f"v_and_b32 v{s+8+k}, s{S_DIV}, v{s+8+k}")
            for k in range(0, 4, 2):
                e(f"v_pk_add_f32 v[{s+k}:{s+k+1}], v[{s+4+k}:{s+5+k}], v[{s+8+k}:{s+9+k}]")
        barrier()
        rd = {}
        for i in range(5):
            for wv in range(4):
                r = ACC2 + 16 * i + 4 * wv
                rd[i] = e(f"ds_read_b128 v[{r}:{r+3}], v{V_LA+i} offset:{wv*21504}")
        for i in range(5):
            r, s = ACC2 + 16 * i, ACC1 + 16 * i
            p.wait(rd[i])
            for k in range(0, 4, 2):
                e(f"v_pk_add_f32 v[{r+k}:{r+k+1}], v[{r+k}:{r+k+1}], v[{r+4+k}:{r+5+k}]")
                e(f"v_pk_add_f32 v[{r+8+k}:{r+9+k}], v[{r+8+k}:{r+9+k}], v[{r+12+k}:{r+13+k}]")
                e(f"v_pk_add_f32 v[{s+k}:{s+k+1}], v[{s+k}:{s+k+1}], v[{r+k}:{r+k+1}]")
            for k in range(0, 4, 2):
                e(f"v_pk_add_f32 v[{s+k}:{s+k+1}], v[{s+k}:{s+k+1}], v[{r+8+k}:{r+9+k}]")
            e(f"buffer_store_dwordx4 v[{s}:{s+3}], v{V_OA+i}, {srd(SO)}, s{S_OO} offen{opt.get('owt', ' sc1')}")
        e(f"s_or_b32 s{S_T0}, s2, s{S_W}")
        e(f"s_cmp_eq_u32 s{S_T0}, 0")
        e(f"s_cselect_b32 s{S_T0}, {EPOCH_OFF}, s{S_OOB}")
        e(f"v_mov_b32 v{V_T}, s{S_EPOCH}")
        e("s_mov_b64 exec, 1")
        e(f"buffer_store_dword v{V_T}, off, {srd(SWS)}, s{S_T0} sc1")
        e("s_mov_b64 exec, -1")
        if opt.get("stamp"):
            tm = "s_memrealtime" if opt.get("rt") else "s_memtime"
            e(f"{tm} s[{SA1}:{SA1+1}]")
            p.wait_all()
            e(f"{tm} s[{SA1+2}:{SA1+3}]")
            e(f"s_memrealtime s[{S_M2}:{S_M2+1}]")
            e(f"s_lshl_b32 s{S_T0}, s2, 2"); e(f"s_add_u32 s{S_T0}, s{S_T0}, s{S_W}")
            e(f"s_lshl_b32 s{S_T0}, s{S_T0}, 7"); e(f"s_add_u32 s{S_T0}, s{S_T0}, {STAMP1_OFF}")
            e("s_waitcnt lgkmcnt(0)")
            e(f"s_getreg_b32 s{S_T2}, hwreg(HW_REG_XCC_ID)")
            e(f"s_getreg_b32 s{S_T3}, hwreg(HW_REG_HW_ID)")
            for k, r in enumerate(STAMP_REGS + [SA1, SA1 + 2, 94, S_M2, S_WB + 2, S_SPIN, S_WB + 1, S_T2, S_T3]):
                e(f"v_mov_b32 v6, s{r}")
                e(f"buffer_store_dword v6, off, {srd(SWS)}, s{S_T0} offset:{4*k}")
        p.label("K1_END")
        e("s_endpgm")
        if not opt.get("split", 0):
            p.label("K2_LATE_OK")
        p.label("K2_LATE_SLOW")
        e(f"s_sleep {opt.get('done_sleep', 8)}")
        e(f"s_add_u32 s{S_WB+1}, s{S_WB+1}, 1")
        e(f"s_cmp_gt_u32 s{S_WB+1}, 100000")
        e("s_cbranch_scc1 K2_LATE_OK")
        done_load()
        e("s_waitcnt vmcnt(0)")
        done_check()
        e("s_branch K2_LATE_OK")
        p.label("K2_SLOW")
        e("s_sleep 2")
        e(f"s_add_u32 s{S_SPIN}, s{S_SPIN}, 1")
        e(f"s_cmp_gt_u32 s{S_SPIN}, 100000")
        e("s_cbranch_scc1 K2_OK")
        part_loads()
        e("s_waitcnt vmcnt(0)")
        part_check()
        e("s_branch K2_OK")

    def build_dsd(self):
        p, e, o = self.p, self.p.e, self.opt
        global MIXED
        MIXED = bool(o.get("split"))
        self.JA = V_PRE
        self.prologue()
        e(f"s_cmp_eq_u32 s{S_TYPE}, 2")
        e("s_cbranch_scc1 K1_TYPE_C")
        snap0 = self.snapshot()
        self.prologue2("F", o.get("npre", 2))
        self.a_job_setup("AB")
        e(f"s_cmp_eq_u32 s{S_TYPE}, 1")
        e("s_cbranch_scc1 K1_TYPE_B")
        snap = self.snapshot()
        g1, g2 = o.get("lb_issue", 345), o.get("lb_check", 365)
        jf = lambda tmp: self.flag_later(tmp, None, lambda: self.job_store, JF_OFF, S_CG, S_MT)
        head = [("F", i, S_D1) for i in range(10)] + [("S", i, 0) for i in range(5)]
        for typ in "AB":
            if typ == "B":
                p.label("K1_TYPE_B")
                self.restore(snap)
            m0 = self.mf
            self.norm_every = 2
            fb = self.fork_job(typ, m0, 188, 48)

            def s0():
                self.stamp(4)
                self.epi_done = False
                self.ffn_epilogue(192, S_KD1, 48)
                self.fill.append(lambda: setattr(self, "epi_done", True))
                if MIXED:
                    self.fill.append(lambda: self.flag_later(66, None, lambda t=self.last_store: t, DONE1_OFF, S_MT, S_CG))

            def wstart():
                assert self.epi_done
                self.jf_check(64, "A", 240, 4)

            def d0(typ=typ, m0=m0):
                self.stamp(5)
                rest, self.fill = self.fill, []
                self.ssm_reduce(0, ACC_S, 188, False, 56)
                k = next(i for i, x in enumerate(self.fill) if isinstance(x, tuple) and x[0] == "bar")
                self.fill = self.fill[:k] + rest + self.fill[k:] if o.get("rest_mid", 1) else self.fill + rest
                self.ssm_finish(0, ACC_S, 188, lambda: self.mf - m0 >= g1, lambda: self.mf - m0 >= g2, typ)
            hooks = {fb: lambda: jf(210), 156: self.stats_to_lds, 161: s0}
            frags = self.d_frags(0, 192, "a") + self.s_frags(10, ACC_S)
            if typ == "A":
                j1 = o.get("jf_at", 250)
                hooks.update({241: d0, j1 - 23: lambda: self.jf_load(64), j1: wstart})
                self.run(head + [("F", i, S_D2) for i in range(10)], frags + self.d_frags(15, ACC_D2), hooks)
                self.stamp(6)
                self.mf += 1000
                tw = o.get("tail_w", 3)
                if o.get("tail_first", 1):
                    self.ffn_tail(ACC_D2, S_KD2, {(0, 0): lambda: self.w_some(tw), (0, 1): lambda: self.w_some(tw)}, 64)
                    self.flush()
                else:
                    self.flush()
                    self.ffn_tail(ACC_D2, S_KD2, {(0, 0): lambda: self.w_some(tw), (0, 1): lambda: self.w_some(tw)}, 64)
            else:
                self.run(head, frags, hooks)
                self.mf += 1000
                self.flush()
                self.fire_timers()
                self.stamp(5)
                self.ssm_reduce(0, ACC_S, 188)
                self.flush()
                self.stamp(6)
                self.jf_load(64)
                self.p.e("s_sleep 32")
                self.jf_check(64, "B", 0, 1)
                self.w_some(o.get("b_w", 30))
                self.ssm_finish(0, ACC_S, 188, None, None, "B")
                self.flush()
            self.stamp(7)
            self.phase2_head(8, typ)
        p.label("K1_TYPE_C")
        self.restore(snap0)
        self.is_c = True
        self.norm_every = 1
        self.prologue2("S", 8)
        self.a_job_setup("C")
        self.path_c(jf, None)
        self.slow_paths()
        self.poll_paths()
        self.phase2()
        p.fix_hazards()
        return p

    def sd_frags(self, accs):
        d = self.d_frags(0, 192, "a")
        out, win = [], 0
        for s in range(40):
            i = s // 8
            ns, nf = 3 * i + 1, 3 * i + (2 if s % 8 >= 4 else 0)
            for mat in range(2):
                c = f"v[{accs[mat]}:{accs[mat]+15}]"
                fr = dict(stage=ns, reads=[f"ds_read_b128 a[{{f0}}:{{f3}}], v{self.AS + s % 8} offset:{(ns % 4)*16384 + mat*8192}"],
                          mfma=f"v_mfma_f32_32x32x16_bf16 {c}, a[{XN+4*s}:{XN+4*s+3}], a[{{f0}}:{{f3}}], {c if s else 0}")
                if s % 8 == 0 and mat == 0:
                    fr["also"] = [nf]
                    if (ns % 8) // 4 != win:
                        win ^= 1
                        fr["pre"] = [f"v_xor_b32 v{self.AS+k}, 0x10000, v{self.AS+k}" for k in range(8)]
                out.append(fr)
            for k in range(4):
                j, mat = k // 2, k % 2
                a = V_TR + 2 * ((nf % 8) // 4) + j
                off = (nf % 4) * 16384 + mat * 8192 + (s % 4) * 2048
                out.append(dict(stage=nf, mfma=d[4 * s + k]["mfma"], reads=[
                    f"ds_read_b64_tr_b16 a[{{f0}}:{{f1}}], v{a} offset:{off}",
                    f"ds_read_b64_tr_b16 a[{{f2}}:{{f3}}], v{a} offset:{off+512}"]))
        return out

    def build_sd(self):
        p, e, o = self.p, self.p.e, self.opt
        self.JA = V_PRE
        self.prologue()
        e(f"s_cmp_eq_u32 s{S_TYPE}, 2")
        e("s_cbranch_scc1 K1_TYPE_C")
        snap0 = self.snapshot()
        self.AS, self.AX = 204, 216
        accs = (188, 216)
        head = []
        for i in range(5):
            head += [("F", 2 * i, S_D1), ("S", i, 0), ("F", 2 * i + 1, S_D1)]
        self.prologue2("SD", o.get("npre", 2), head)
        self.a_job_setup("AB")
        e(f"s_cmp_eq_u32 s{S_TYPE}, 1")
        e("s_cbranch_scc1 K1_TYPE_B")
        snap = self.snapshot()
        g1, g2 = o.get("lb_issue", 345), o.get("lb_check", 365)
        jf = lambda tmp: self.flag_later(tmp, None, lambda: self.job_store, JF_OFF, S_CG, S_MT)
        for typ in "AB":
            if typ == "B":
                p.label("K1_TYPE_B")
                self.restore(snap)
            m0 = self.mf
            fb = self.fork_job(typ, m0, 16, 40)
            stages = head + ([("F", i, S_D2) for i in range(10)] if typ == "A" else [])
            self.auto = dict(next=o.get("sd_first", 7), stages=stages)
            for n in range(5, self.auto["next"]):
                self.issue_stage(n, *stages[n])
                if n == 5:
                    self.dq.extend(self.job_ld)

            def d0(typ=typ, m0=m0):
                self.stamp(5)
                self.ssm_reduce(0, accs, 48, False, 72)
                tail = []
                if o.get("epi_mid", 1):
                    k = next(i for i, x in enumerate(self.fill) if isinstance(x, tuple) and x[0] == "bar")
                    self.fill, tail = self.fill[:k], self.fill[k:]
                n0 = len(self.fill)
                self.epi_done = False
                self.ffn_epilogue(192, S_KD1, 64)
                self.fill.append(lambda: setattr(self, "epi_done", True))
                cut = n0 + o.get("epi_cut", 42)
                self.fill = self.fill[:cut] + tail + self.fill[cut:]
                if typ == "A":
                    pos = len(self.fill)
                    self.ssm_finish(0, accs, 76, None, lambda: self.mf - m0 >= g2, typ)
                    k = next(i for i in range(pos, len(self.fill)) if isinstance(self.fill[i], tuple))
                    lb, self.fill = self.fill[pos:k], self.fill[:pos] + self.fill[k:]
                    at = max(cut + len(tail), pos - o.get("lb_lead", 84))
                    self.fill = self.fill[:at] + [("t", lambda: self.mf - m0 >= g1)] + lb + self.fill[at:]

            def wstart():
                self.jf_check(60, "A", 240, 4)
                self.wskip = 16
            hooks = {fb: lambda: jf(V_PRE + 5), 60: lambda: self.stamp(4), 234: self.stats_to_lds}
            frags = self.sd_frags(accs)
            if typ == "A":
                j1 = o.get("jf_at", 250)
                hooks.update({241: d0, j1 - 23: lambda: self.jf_load(60), j1: wstart})
                self.gemm(frags + self.d_frags(15, ACC_D2), {}, hooks)
                self.stamp(6)
                self.mf += 1000
                tw = o.get("tail_w", 3)
                self.flush()
                self.ffn_tail(ACC_D2, S_KD2, {(0, 0): lambda: self.w_some(tw), (0, 1): lambda: self.w_some(tw)})
            else:
                self.gemm(frags, {}, hooks)
                self.mf += 1000
                d0()
                self.flush()
                self.fire_timers()
                self.stamp(6)
                self.jf_load(60)
                self.p.e("s_sleep 32")
                self.jf_check(60, "B", 0, 1)
                self.w_some(o.get("b_w", 30))
                self.ssm_finish(0, accs, 76, None, None, "B")
                self.flush()
            self.auto = None
            self.wskip = 0
            self.stamp(7)
            self.phase2_head(8, typ)
        p.label("K1_TYPE_C")
        self.restore(snap0)
        self.AS, self.AX = V_AS, V_AS + 8
        self.is_c = True
        self.prologue2("S", 8)
        self.a_job_setup("C")
        self.path_c(jf, None)
        self.slow_paths()
        self.poll_paths()
        self.phase2()
        p.fix_hazards()
        return p

    def build(self):
        p, e, o = self.p, self.p.e, self.opt
        if o.get("order") == "SD":
            global WMAP
            WMAP = [4 * k for k in range(40)] + [192 + 4 * k for k in range(16)] + [160 + 4 * k for k in range(4)]
            return self.build_sd()
        if o.get("order") == "DSD":
            return self.build_dsd()
        global MIXED
        MIXED = o.get("split") == 4
        if o.get("job_mode") == "dma":
            self.JA = V_PRE
        self.prologue()
        if o.get("job_mode") == "dma":
            self.a_job_setup()
        e(f"s_cmp_eq_u32 s{S_TYPE}, 2")
        e("s_cbranch_scc1 K1_TYPE_C")
        e(f"s_cmp_eq_u32 s{S_TYPE}, 1")
        e("s_cbranch_scc1 K1_TYPE_B")
        snap = self.snapshot()
        g1, g2 = o.get("lb_issue", 200), o.get("lb_check", 225)
        fa = o.get("fork_at", 65)
        late = o.get("job_late")
        pre = bool(o.get("pre", 0))
        split = o.get("split", 0)
        jf = lambda tmp: self.flag_later(tmp, o.get("jf_delay"), lambda: self.job_store, JF_OFF, S_CG, S_MT)
        d1 = lambda tmp, dl: self.flag_later(tmp, dl, lambda t=self.last_store: t, DONE1_OFF, S_MT, S_CG)
        head = [("S", i, 0) for i in range(5)] + [("F", i, S_D1) for i in range(10)]
        for typ in "AB":
            if typ == "B":
                p.label("K1_TYPE_B")
                self.restore(snap)
            m0 = self.mf
            fb = self.fork_job(typ, m0, 188, RAW + 132 if fa >= 65 else 48)

            def a1():
                self.stamp(4)
                if fa == 65:
                    self.stats_to_lds()
                self.ssm_reduce(0, ACC_S, 188, pre)

            def a1b(typ=typ, m0=m0):
                if fa == 65:
                    a1()
                self.q_done = not pre
                if pre:
                    self.ssm_pre(0, ACC_S, ACC_D2)
                self.ssm_finish(0, ACC_S, 188, lambda: self.mf - m0 >= g1, lambda: self.mf - m0 >= g2, typ,
                                ACC_D2 if pre else None)

            def a2():
                while not self.q_done:
                    it = self.fill.pop(0)
                    if not isinstance(it, tuple):
                        it()
                self.stamp(5)
                rest = []
                if split == 4:
                    rest, self.fill = self.fill, []
                self.ffn_epilogue(ACC_D1, S_KD1)
                if split:
                    self.fill.append(lambda: d1(226, o.get("d1_delay")))
                self.fill += rest
            hooks = {fb: lambda a1b=a1b: (jf(224), a1b())}
            if o.get("job_spread"):
                self.JD = 112
                hooks = {fb: lambda: self.job_stores(112, lambda: jf(224)), fb + 1: a1b}
            if fb < 70:
                hooks = {fb: lambda: jf(V_PRE + 5), 81: lambda a1=a1, a1b=a1b: (a1(), a1b()), 70: self.stats_to_lds}
            elif fa != 65:
                hooks[81] = a1
                hooks[70] = self.stats_to_lds
            if late:
                for q5, at in enumerate(late):
                    hooks[at] = self.job_ld[q5]
            frags = self.s_frags(0, ACC_S) + self.d_frags(5, ACC_D1)
            if typ == "A":
                j1 = o.get("jf_at", 240)
                for at, skip, lines in o.get("ct", []):
                    hooks[at] = lambda at=at, skip=skip, lines=lines: self.code_touch(f"A{at}", None, skip, lines, 230)
                if o.get("ct2"):
                    hooks[o["ct2"]] = lambda: self.code_touch("K2", "K2_START", 0, 64, 230)
                hooks.update({240: a2, j1 - 23: lambda: self.jf_load(224), j1 + 1: lambda: self.jf_check(224, "A", 240, 4)})
                self.run(head + [("F", i, S_D2) for i in range(10)], frags + self.d_frags(15, ACC_D2), hooks)
                self.stamp(6)
                if split == 4:
                    self.fire_timers()
                self.flush()
                if o.get("d1_at_end", 1):
                    self.fire_timers()
                if split == 4:
                    self.head_a("A")
                tw = o.get("tail_w", 3)
                self.ffn_tail(ACC_D2, S_KD2, {(0, 0): lambda: self.w_some(tw), (0, 1): lambda: self.w_some(tw),
                                              (1, 0): self.fire_timers,
                                              (1, o.get("early_mid", 0) - 1): lambda: self.h.__setitem__("t_early", self.early_load())})
            else:
                self.run(head, frags, hooks)
                self.stamp(5)
                self.mf += 1000
                self.fire_timers()
                self.flush()
                self.stamp(6)
                self.jf_load(224)
                self.ffn_tail(ACC_D1, S_KD1)
                if split == 4:
                    d1(226, None)
                    self.fire_timers()
                self.jf_check(224, "B", 0, 1)
            self.stamp(7)
            self.phase2_head(8, typ)
        p.label("K1_TYPE_C")
        self.restore(snap)
        self.path_c(jf, d1)
        self.slow_paths()
        self.poll_paths()
        self.phase2()
        p.fix_hazards()
        return p

    def path_c(self, jf, d1):
        p, e, o = self.p, self.p.e, self.opt
        late, split = o.get("job_late"), o.get("split", 0) and not MIXED
        stages = [("S", i % 5, i // 5) for i in range(15)]
        m0 = self.mf
        self.opt = dict(o, fork_at=o.get("fork_at_c", 65))
        fb = self.fork_job("C", m0, 112, 144 if o.get("job_spread") else 136)
        self.JD = 124
        if o.get("job_spread"):
            fb0, fb = fb, 81

        def c1():
            self.stamp(4)
            self.stats_to_lds()
            if not o.get("job_spread"):
                jf(168)
            self.ssm_reduce(0, 16, 152)
            for b in (1, 2):
                self.q(*self.ssm_consts(b, V_C + 12 * b + 6, 112))
                self.zero_row(b, 112)

        def c2():
            self.stamp(5)
            self.ssm_reduce(1, 48, 152)
            self.ssm_finish(0, 16, 112, None, lambda: self.mf - m0 >= 215, "C0")
        hooks = {fb: c1, 161: c2, 215: lambda: self.jf_load(168)}
        if o.get("job_spread"):
            hooks[fb0] = lambda: self.job_stores(124, lambda: jf(168))
        if late:
            for q5 in range(5):
                hooks[4 + 10 * q5] = self.job_ld[q5]
        self.run(stages, self.s_frags(0, 16) + self.s_frags(5, 48) + self.s_frags(10, 80), hooks)
        self.stamp(6)
        self.jf_check(168, "C", 0, 1)
        self.mf += 1000
        we = o.get("c_wevery", 16)
        self.flush(we)
        self.ssm_reduce(2, 80, 152)
        self.ssm_finish(1, 48, 112, None, None, "C1")
        self.flush(we)
        self.stamp(7)
        if split:
            d1(168, 0)
        self.ssm_finish(2, 80, 112, None, None, "C2")
        if split:
            self.fill.insert(o.get("c_d1_at", 60), self.fire_timers)
        self.flush(o.get("c_wevery2", 0))
        self.phase2_head(8, "C")


DESC = K1_DESC.replace("proj_kernel", NAME)
```

```python
import re

TRANS = ("v_exp_f32", "v_log_f32", "v_rcp_f32", "v_rsq_f32", "v_sqrt_f32", "v_sin_f32", "v_cos_f32")
_REG = re.compile(r"^-?\|?(?:abs\()?([vas])(?:(\d+)|\[(\d+):(\d+)\])\)?\|?$")


def regs_of(tok):
    tok = tok.strip()
    if tok in ("vcc", "vcc_lo", "vcc_hi"):
        return {("s", 106), ("s", 107)}
    if tok == "m0":
        return {("s", 124)}
    if tok in ("exec", "exec_lo", "exec_hi"):
        return {("s", 126), ("s", 127)}
    m = _REG.match(tok)
    if not m:
        return set()
    f = m.group(1)
    if m.group(2) is not None:
        return {(f, int(m.group(2)))}
    return {(f, i) for i in range(int(m.group(3)), int(m.group(4)) + 1)}


def split_ops(s):
    out, depth, cur = [], 0, ""
    for ch in s:
        if ch in "[(":
            depth += 1
        if ch in "])":
            depth -= 1
        if ch == "," and depth == 0:
            out.append(cur.strip()); cur = ""
        else:
            cur += ch
    if cur.strip():
        out.append(cur.strip())
    return out


class Ins:
    def __init__(self, text):
        self.text = text
        t = text.split(";")[0].strip()
        self.is_label = t.endswith(":")
        self.is_dir = t.startswith(".")
        self.mn = "" if (self.is_label or self.is_dir or not t) else t.split()[0]
        self.w, self.r = set(), set()
        self.srcc = set()
        self.ab = set()
        if not self.mn:
            return
        rest = t[len(self.mn):].strip()
        ops = split_ops(rest)
        if ops:
            for k, o in enumerate(ops):
                if " op_sel" in o or " neg_" in o:
                    ops = ops[:k] + [o]
                    break
            last = ops[-1].split()
            ops[-1] = last[0]
            self.mods = last[1:]
        else:
            self.mods = []
        self.ops = ops
        mn = self.mn
        R = [regs_of(o) for o in ops]
        self.valu = mn.startswith("v_") and not mn.startswith("v_mfma")
        self.mfma = mn.startswith("v_mfma")
        self.trans = mn.replace("_e32", "").replace("_e64", "") in TRANS
        self.vmem = mn.startswith(("buffer_", "global_"))
        self.ds = mn.startswith("ds_")
        self.salu = mn.startswith("s_")
        self.lds_dma = self.vmem and ("lds" in self.mods or "_lds_" in mn)
        self.dpp = any(m.startswith(("row_", "quad_perm", "wave_")) for m in self.mods)
        if self.mfma:
            self.w = R[0]; self.ab = R[1] | R[2]; self.srcc = R[3] if len(R) > 3 else set()
            self.r = self.ab | self.srcc
            self.passes = 8 if "32x32x16" in mn else 4
        elif self.valu:
            if mn.startswith("v_permlane") and "swap" in mn:
                self.w = R[0] | R[1]; self.r = R[0] | R[1]
            elif mn.startswith("v_cmp"):
                self.w = R[0]; self.r = set().union(*R[1:])
            elif mn.startswith(("v_add_co", "v_sub_co", "v_addc_co")):
                self.w = R[0] | R[1]; self.r = set().union(*R[2:])
            else:
                self.w = R[0]; self.r = set().union(*R[1:]) if len(R) > 1 else set()
                if mn.startswith(("v_fmac", "v_dot2c", "v_mov_b32_dpp")) or self.dpp:
                    self.r |= R[0]
                if mn.startswith("v_cndmask") and len(ops) == 3:
                    self.r |= regs_of("vcc")
        elif self.ds:
            if mn.startswith("ds_read"):
                self.w = R[0]; self.r = set().union(*R[1:])
            else:
                self.r = set().union(*R)
        elif self.vmem:
            if mn.startswith(("buffer_wbl2", "buffer_inv")):
                pass
            elif self.lds_dma:
                self.r = set().union(*R) | regs_of("m0")
            elif "store" in mn:
                self.r = set().union(*R)
                self.store_data = R[0] if mn.startswith("buffer_") else R[1]
            elif "atomic" in mn:
                self.r = set().union(*R)
                if "sc0" in self.mods:
                    self.w = R[0]
            else:
                self.w = R[0]; self.r = set().union(*R[1:])
        elif self.salu:
            if mn.startswith(("s_cmp", "s_cbranch", "s_branch", "s_waitcnt", "s_barrier", "s_nop", "s_endpgm",
                              "s_setprio", "s_sleep", "s_bitcmp")):
                self.r = set().union(*R) if R else set()
            else:
                self.w = R[0]; self.r = set().union(*R[1:]) if len(R) > 1 else set()

    def states(self):
        if not self.mn:
            return 0
        if self.mn == "s_nop":
            return int(self.ops[0]) + 1
        return 1


def need(prod, cons):
    n = 0
    pv = {x for x in prod.w if x[0] in "va"}
    ps = {x for x in prod.w if x[0] == "s"}
    if prod.valu:
        if cons.mfma and pv & cons.r:
            n = max(n, 2)
        if prod.trans and cons.valu and not cons.trans and pv & cons.r:
            n = max(n, 1)
        if prod.trans and cons.valu and cons.trans and pv & cons.r:
            n = max(n, 1)
        if cons.valu and cons.mn.startswith("v_permlane") and pv & cons.r:
            n = max(n, 2)
        if cons.valu and cons.mn.startswith(("v_readlane", "v_readfirstlane")) and pv & cons.r:
            n = max(n, 1)
        if cons.valu and cons.dpp and pv & cons.r:
            n = max(n, 2)
        if ps:
            if cons.valu and ps & cons.r:
                n = max(n, 2)
            if cons.vmem and ps & cons.r:
                n = max(n, 5)
            if cons.salu and ps & cons.r:
                n = max(n, 2)
            if cons.mn.startswith("s_cbranch_vcc") and ("s", 106) in ps:
                n = max(n, 2)
    if prod.valu and prod.mn.startswith("v_dot2") and cons.mn.split("_e")[0] != prod.mn.split("_e")[0]:
        if pv & (cons.r | cons.w):
            n = max(n, 3)
    if prod.mfma:
        big = {8: 12, 4: 8}[prod.passes]
        ovl = {8: 10, 4: 6}[prod.passes]
        war = {8: 7, 4: 3}[prod.passes]
        if cons.mfma:
            if prod.w & cons.ab:
                n = max(n, big)
            if prod.w & cons.srcc and not (prod.w == cons.srcc and prod.passes == cons.passes):
                n = max(n, ovl)
            if prod.w & cons.w and not (prod.w == cons.srcc):
                n = max(n, big)
        else:
            if prod.w & (cons.r | cons.w):
                n = max(n, big)
            if cons.valu and prod.srcc & cons.w:
                n = max(n, war)
    if prod.salu and ("s", 124) in prod.w and cons.vmem and cons.lds_dma:
        n = max(n, 1)
    if prod.vmem and hasattr(prod, "store_data") and ("x4" in prod.mn or "x3" in prod.mn):
        if prod.store_data & cons.w:
            n = max(n, 2)
    if prod.ds and prod.mn.startswith(("ds_write_b128", "ds_write_b96")) and cons.valu:
        if regs_of(prod.ops[1]) & cons.w:
            n = max(n, 2)
    return n


def cost_of(text):
    mn = text.split()[0]
    if mn.replace("_e32", "").replace("_e64", "") in TRANS or mn.startswith("v_mfma"):
        return 2
    if mn.startswith(("buffer_", "global_")):
        return 2
    return 1


class Prog:
    def __init__(self):
        self.ins = []
        self.vq = 0
        self.vdone = 0
        self.lq = 0
        self.ldone = 0
        self.slots = 0

    def raw(self, text):
        self.ins.append(Ins(text))

    def e(self, text):
        i = Ins(text)
        self.ins.append(i)
        if i.mn:
            self.slots += cost_of(text)
        if i.mn:
            if i.vmem and not i.mn.startswith(("buffer_wbl2", "buffer_inv")):
                self.vq += 1
                return ("v", self.vq)
            if i.ds:
                self.lq += 1
                return ("l", self.lq)
        return None

    def label(self, name):
        self.ins.append(Ins(name + ":"))

    def wait(self, *toks):
        vn = max([t[1] for t in toks if t and t[0] == "v"], default=0)
        ln = max([t[1] for t in toks if t and t[0] == "l"], default=0)
        parts = []
        if vn > self.vdone:
            c = self.vq - vn
            assert c <= 63, c
            parts.append(f"vmcnt({c})"); self.vdone = vn
        if ln > self.ldone:
            c = self.lq - ln
            if c > 15:
                c = 15; ln = self.lq - 15
            parts.append(f"lgkmcnt({c})"); self.ldone = max(self.ldone, ln)
        if parts:
            self.e("s_waitcnt " + " ".join(parts))

    def wait_all(self, vm=True, lgkm=True):
        parts = []
        if vm:
            parts.append("vmcnt(0)"); self.vdone = self.vq
        if lgkm:
            parts.append("lgkmcnt(0)"); self.ldone = self.lq
        self.e("s_waitcnt " + " ".join(parts))

    def fix_hazards(self):
        out = []
        added = 0
        for c in self.ins:
            if c.mn:
                req, dist = 0, 0
                for p in reversed(out):
                    if p.is_label and getattr(p, "barrier", False):
                        break
                    if p.mn:
                        k = need(p, c)
                        if k > dist:
                            req = max(req, k - dist)
                        dist += p.states()
                        if dist >= 20:
                            break
                while req > 0:
                    k = min(req, 16)
                    out.append(Ins(f"s_nop {k-1}")); req -= k; added += 1
            out.append(c)
        self.ins = out
        return added

    def text(self):
        lines = []
        for i in self.ins:
            lines.append(i.text if (i.is_label or i.is_dir) else "    " + i.text)
        return "\n".join(lines) + "\n"


def align_pass(text):
    import subprocess, tempfile, os
    d = tempfile.mkdtemp()
    src, obj = os.path.join(d, "a.s"), os.path.join(d, "a.o")
    open(src, "w").write(text)
    subprocess.run(["clang", "-x", "assembler", "-target", "amdgcn-amd-amdhsa", "-mcpu=gfx950",
                    "-c", src, "-o", obj], check=True)
    dis = subprocess.run(["llvm-objdump", "-d", "--mcpu=gfx950", obj], capture_output=True,
                         text=True).stdout
    enc = []
    for l in dis.splitlines():
        m = re.search(r"^\s+(\S+).*//\s*([0-9A-F]{12}):((?: [0-9A-F]{8})+)", l)
        if m:
            enc.append((m.group(1), int(m.group(2), 16), 4 * len(m.group(3).split())))
    lines = text.split("\n")
    idx = []
    in_text = True
    for n, l in enumerate(lines):
        t = l.split(";")[0].strip()
        if t.startswith(".section"):
            in_text = False
        if in_text and t and not t.startswith(".") and not t.endswith(":"):
            idx.append(n)
    sizes, k = [], 0
    for n in idx:
        mn = lines[n].split()[0]
        while not enc[k][0].startswith(mn.replace("_e32", "").replace("_e64", "")):
            k += 1
        sizes.append(enc[k]); k += 1
    NOFLEX = ("v_readfirstlane", "v_dot2c", "v_permlane", "v_nop", "v_cmp")
    FMA = re.compile(r"^\s*v_fma_f32 (v\d+), ([vs]\d+), (v\d+), (v\d+)\s*$")
    FMA2 = re.compile(r"^\s*v_fma_f32 (v\d+), (v\d+), (s\d+), (v\d+)\s*$")
    PAD = 7
    opts = []
    resets = set()
    prev = -1
    for j, n in enumerate(idx):
        if any(lines[x].strip().startswith(".p2align") for x in range(prev + 1, n)):
            resets.add(j)
        prev = n
        name, _, sz = sizes[j]
        l = lines[n]
        mn = l.split()[0]
        o = [(sz, l, 0)]
        if sz == 4 and name.endswith("_e32") and not name.startswith(NOFLEX):
            o.append((8, l.replace(mn, mn + "_e64", 1), 0))
        elif sz == 4:
            o.append((8, l + "\n    s_nop 0", PAD))
        m = FMA.match(l)
        if m and m.group(1) == m.group(4):
            o.append((4, f"    v_fmac_f32 {m.group(1)}, {m.group(2)}, {m.group(3)}", 0))
        opts.append(o)
    INF = 10 ** 9
    best = [0, INF]
    back = []
    for j, o in enumerate(opts):
        if j in resets:
            st = 0 if best[0] <= best[1] else 1
            forced = st
            best = [min(best), INF]
        else:
            forced = None
        nb, bk = [INF, INF], [None, None]
        for ph in (0, 1):
            if best[ph] >= INF:
                continue
            for k, (sz, l, extra) in enumerate(o):
                glued = "s_nop" in l and sz == 8 and extra
                c = best[ph] + extra + (1 if (sz >= 8 and ph == 1 and not glued) else 0)
                np_ = (ph + sz // 4) % 2
                if c < nb[np_] or (c == nb[np_] and k == 0):
                    nb[np_], bk[np_] = c, (ph, k, forced)
        best = nb
        back.append(bk)
    ph = 0 if best[0] <= best[1] else 1
    for j in range(len(opts) - 1, -1, -1):
        pph, k, forced = back[j][ph]
        lines[idx[j]] = opts[j][k][1]
        ph = forced if forced is not None else pph
    return "\n".join(lines)
```

```python
from k1 import *

NAME = "parallel_sum__ssm_conv_s5__glu_gated_geglu__prompt_kernel"
S_WB = 28
S_D2X, S_R2 = 100, 101
S_A, S_OOB, S_XO, S_OO, S_PO, S_PI, S_N, S_A0, S_TG, S_DN, S_DIV = 68, 69, 70, 71, 72, 73, 74, 75, 76, 80, 81
S_A1 = 82
SD, SO = SS, SF
V_L16, V_L16B, V_WA, V_PK = 3, 4, 5, 13
ACC1, ACC2, RING = 16, 96, 176
V_OA, V_LA, V_T = 240, 245, 250
WMAP = [192 + 4 * k for k in range(16)] + [4 * k for k in range(40)] + [160 + 4 * k for k in range(4)]
SLOT5 = 176
S_TB, S_WB0 = 24, 27
ORDERS = {"k0": [0, 1, 4, 5, 8, 9, 2, 3, 6, 7, 10, 11], "w0": [1, 2, 7, 8, 9, 10, 11, 0, 3, 4, 5, 6],
          "nat": list(range(12)), "w3": [0, 1, 2, 5, 6, 7, 8, 3, 4, 9, 10, 11]}


def nib(name, half):
    return sum(v << (4 * k) for k, v in enumerate(ORDERS[name][8 * half:8 * half + 8]))


MIXED = False


def rel(dst, i):
    if MIXED:
        return f"s_bfe_u32 s{dst}, s{S_TB + i // 4}, {(8 << 16) | (8 * (i % 4)):#x}"
    return f"s_bfe_u32 s{dst}, s{S_TB + i // 8}, {(4 << 16) | (4 * (i % 8)):#x}"


def mixed_lists():
    out = {}
    for kh in range(2):
        ffn = list(range(27 * kh, 27 * kh + 27))
        early = [k for k in ffn if k % 4 < 2]
        late = [k for k in ffn if k % 4 >= 2] + list(range(54 + 20 * kh, 74 + 20 * kh))
        assert len(early) == 14
        rest = early[12:] + late
        for w in range(4):
            n = 9 if w < 3 else 8
            out[kh, w] = early[3 * w:3 * w + 3] + rest[:n] + ([0] if w == 3 else [])
            rest = rest[n:]
        assert not rest
    return out


def slot(g, f):
    k = g % 5
    return f"v[{RING+16*k+4*f}:{RING+16*k+4*f+3}]" if k < 4 else f"a[{SLOT5+4*f}:{SLOT5+3+4*f}]"


STEPS_MIXED = [(0, i) for i in range(3)] + [(1, i) for i in range(3)] + [(0, i) for i in range(3, 12)] + \
              [(1, i) for i in range(3, 12)]


class Fused(K1):
    def __init__(self, opt):
        super().__init__(opt)
        self.name = NAME
        self.fused = True
        self.polls = []
        self.heads = []
        self.JA = RAW + 140

    def stats_to_lds(self):
        e = self.p.e
        e(f"ds_write2_b32 v0, v{V_X+8}, v{V_X+10} offset1:1")
        e(f"v_add_u32 v0, 0x1000, v{V_TW+2}")
        T = {"DSD": 206, "SD": 60}.get(self.opt.get("order"), V_X) if not getattr(self, "is_c", False) else V_X
        for x in (f"v_mov_b32 v{T+4}, 0", f"v_min_u32 v{T+5}, 6, v{V_SEG}", f"v_sub_u32 v{T+5}, v{T+5}, v{V_SEG}",
                  f"v_lshl_add_u32 v{T+5}, v{T+5}, 3, v{V_XR}", f"ds_write2_b32 v{T+5}, v{T+4}, v{T+4} offset1:1"):
            e(x)

    def flag_store(self, tmp, base, hi, lo):
        t = S_T1
        return [[f"s_lshl_b32 s{t}, s{hi}, 4", f"s_add_u32 s{t}, s{t}, s{lo}", f"s_lshl_b32 s{t}, s{t}, 7",
                 f"s_add_u32 s{t}, s{t}, {base}", f"s_cmp_eq_u32 s{S_W}, 0", f"s_cselect_b32 s{t}, s{t}, {OOB}"],
                f"v_mov_b32 v{tmp}, s{S_EPOCH}",
                ["s_mov_b64 exec, 1", f"buffer_store_dword v{tmp}, off, {srd(SWS)}, s{t} sc1", "s_mov_b64 exec, -1"]]

    def flag_later(self, tmp, delay, tok, base, hi, lo):
        def raise_flag():
            for x in self.flag_store(tmp, base, hi, lo):
                for y in (x if isinstance(x, list) else [x]):
                    self.p.e(y)

        def arm():
            self.pre_barrier.append(tok())
            self.on_barrier.append(raise_flag)
        if delay is None:
            self.lazy.append((tok(), raise_flag))
        else:
            self.timers.append((self.mf + delay, arm))

    def a_job_setup(self, tag=""):
        e, o = self.p.e, self.opt
        u, t, t2, ct = S_R, S_T2, S_T3, S_T1
        A = self.JA
        e(f"s_lshl_b32 s{u}, s{S_MT}, 2"); e(f"s_add_u32 s{u}, s{u}, s{S_W}")
        e(f"s_and_b32 s{ct}, s{S_CG}, 7")
        if MIXED:
            e(f"s_mov_b32 s{t}, 27"); e(f"s_mov_b32 s{S_JOB}, 52")
            e(f"s_cmp_ge_u32 s{S_CG}, 8"); e(f"s_cselect_b32 s{t2}, 27, 0")
        else:
            e(f"s_cmp_ge_u32 s{S_CG}, 8"); e(f"s_cselect_b32 s{t}, 7, 64"); e(f"s_cselect_b32 s{t2}, 47, 0")
            e(f"s_cselect_b32 s{S_JOB}, 57, 47")
        e(f"s_cmp_lt_u32 s{u}, s{S_JOB}"); e(f"s_cselect_b32 s{S_D2X}, 0, {OOB}")
        e(f"s_cmp_ge_u32 s{u}, s{t}"); e(f"s_cselect_b32 s{S_J2}, 1, 0")
        e(f"s_cbranch_scc1 JOB_C{tag}")
        for x in self.mk_srd(SA1, K_WD, FF_BYTES) + self.mk_srd(SA2, K_WD, FF_BYTES):
            e(x)
        e(f"s_add_u32 s{u}, s{u}, s{t2}")
        e(f"s_mul_i32 s{S_R2}, s{u}, {32*1280}"); e(f"s_mul_i32 s{t}, s{ct}, 160")
        e(f"s_add_u32 s{S_R2}, s{S_R2}, s{t}")
        e(f"s_mul_i32 s{S_JOB}, s{ct}, 94"); e(f"s_add_u32 s{S_JOB}, s{S_JOB}, s{u}")
        e(f"s_mul_i32 s{S_JOB}, s{S_JOB}, 5120")
        e(f"s_mov_b32 s{t}, 0xcccd")
        for q in range(5):
            e(f"v_add_u32 v{A+5}, {64*q}, v{V_LANE}"); e(f"v_mul_lo_u32 v{A+q}, v{A+5}, s{t}")
            e(f"v_lshrrev_b32 v{A+q}, 19, v{A+q}"); e(f"v_mul_u32_u24 v{A+q}, 1120, v{A+q}")
            e(f"v_lshl_add_u32 v{A+q}, v{A+5}, 4, v{A+q}")
        e(f"s_branch JOB_LD{tag}")
        self.p.label(f"JOB_C{tag}")
        for x in self.mk_srd(SA1, K_CRE, SQ_BYTES) + self.mk_srd(SA2, K_CIM, SQ_BYTES):
            e(x)
        if MIXED:
            e(f"s_sub_u32 s{u}, s{u}, 27")
            e(f"s_mul_hi_u32 s{t}, s{u}, 0x33333334"); e(f"s_mul_i32 s{t2}, s{t}, 5"); e(f"s_sub_u32 s{u}, s{u}, s{t2}")
            e(f"s_lshr_b32 s{t2}, s{S_CG}, 3"); e(f"s_mul_i32 s{t2}, s{t2}, 5"); e(f"s_add_u32 s{u}, s{u}, s{t2}")
        else:
            e(f"s_sub_u32 s{u}, s{u}, 7")
            e(f"s_mul_hi_u32 s{t}, s{u}, 0x1999999a"); e(f"s_mul_i32 s{t2}, s{t}, 10"); e(f"s_sub_u32 s{u}, s{u}, s{t2}")
        e(f"s_mul_i32 s{t2}, s{ct}, 5"); e(f"s_add_u32 s{t2}, s{t2}, s{t}")
        e(f"s_mul_i32 s{S_R2}, s{t2}, {16*1280}"); e(f"s_lshl_b32 s{t2}, s{u}, 7")
        e(f"s_add_u32 s{S_R2}, s{S_R2}, s{t2}")
        e(f"s_mul_i32 s{S_JOB}, s{ct}, 94"); e(f"s_lshl_b32 s{u}, s{u}, 2"); e(f"s_add_u32 s{S_JOB}, s{S_JOB}, s{u}")
        e(f"s_add_u32 s{S_JOB}, s{S_JOB}, 54"); e(f"s_mul_i32 s{S_JOB}, s{S_JOB}, 5")
        e(f"s_add_u32 s{S_JOB}, s{S_JOB}, s{t}"); e(f"s_lshl_b32 s{S_JOB}, s{S_JOB}, 10")
        e(f"v_lshrrev_b32 v{A}, 3, v{V_LANE}"); e(f"v_mul_u32_u24 v{A}, 1280, v{A}")
        e(f"v_lshrrev_b32 v{A+2}, 3, v{V_LANE}"); e(f"v_xor_b32 v{A+1}, v{A+2}, v{V_LANE}")
        e(f"v_and_b32 v{A+1}, 7, v{A+1}"); e(f"v_lshl_add_u32 v{A}, v{A+1}, 4, v{A}")
        e(f"v_add_u32 v{A+1}, {8*1280}, v{A}"); e(f"v_mov_b32 v{A+2}, v{A}"); e(f"v_mov_b32 v{A+3}, v{A+1}")
        e(f"v_mov_b32 v{A+4}, {OOB}")
        self.p.label(f"JOB_LD{tag}")
        e(f"s_add_u32 s{S_JOB}, s{S_JOB}, {W2F_OFF}")
        e(f"s_or_b32 s{S_JOB}, s{S_JOB}, s{S_D2X}"); e(f"s_or_b32 s{S_R}, s{S_R2}, s{S_D2X}")
        if o.get("job_mode") == "dma":
            def piece(q):
                e(f"s_add_u32 m0, s{S_J1}, {1024*q}")
                self.job_tok = e(f"buffer_load_dwordx4 v{A+q}, {srd(SA1 if q < 2 else SA2)}, s{S_R} offen{o.get('ntjob', '')} lds")
            self.job_ld = [lambda q=q: piece(q) for q in range(5)]
            return
        self.job_ld = [lambda q=q: setattr(self, "job_tok", e(
            f"buffer_load_dwordx4 a[{192+4*q}:{195+4*q}], v{A+q}, {srd(SA1 if q < 2 else SA2)}, s{S_R} offen"))
            for q in range(5)]
        if o.get("job_dq"):
            self.dq.extend(self.job_ld)
        elif not o.get("job_late"):
            for f in self.job_ld:
                f()

    def a_job(self, is_c, m0, R, L):
        p, q = self.p, self.q
        st = {}
        D = R + 2 if not self.opt.get("job_spread") else self.JD

        def at(k):
            self.fill.append(("t", lambda: self.mf - m0 >= k + self.opt.get("fork_at", 65)))
        if is_c:
            q(f"v_and_b32 v{R}, 15, v{V_LANE}", f"v_lshlrev_b32 v{R}, 7, v{R}",
              f"v_lshrrev_b32 v{R+1}, 5, v{V_LANE}", f"v_xor_b32 v{R+1}, v{R+1}, v{V_LANE}", f"v_and_b32 v{R+1}, 7, v{R+1}",
              f"v_lshl_add_u32 v{R}, v{R+1}, 4, v{R}", f"v_bfe_u32 v{R+1}, v{V_LANE}, 4, 1",
              f"v_lshl_add_u32 v{R}, v{R+1}, 3, v{R}")
        else:
            q(f"v_lshrrev_b32 v{R}, 5, v{V_LANE}", f"v_lshlrev_b32 v{R}, 4, v{R}",
              f"v_bfe_u32 v{R+1}, v{V_LANE}, 2, 3", f"v_add_u32 v{R}, v{R}, v{R+1}",
              f"v_mul_u32_u24 v{R}, 160, v{R}", f"v_and_b32 v{R+1}, 3, v{V_LANE}",
              f"v_lshl_add_u32 v{R}, v{R+1}, 3, v{R}")
        q(f"v_add_u32 v{R}, s{S_J1}, v{R}")
        if self.opt.get("job_mode") != "dma":
            q(f"v_add_u32 v{R+1}, s{S_J1}, v{V_TW+2}")
        at(2)
        dma = self.opt.get("job_mode") == "dma"
        if dma:
            st["w"] = self.job_tok
        else:
            self.fill.append(lambda: p.wait(self.job_tok))
        for f in range(0 if dma else 5):
            at(2 + f // 2)
            self.fill.append(lambda f=f: st.__setitem__("w", p.e(
                f"ds_write_b128 v{R+1}, a[{192+4*f}:{195+4*f}] offset:{1024*f}")))
        land = [(L if is_c else D) + 4 * f for f in range(5)]
        for f in range(5):
            at((3 if dma else 7) + f // 2)

            def rd(f=f):
                p.wait(st["w"])
                op, o2 = ("ds_read_b64", 2048) if is_c else ("ds_read_b64_tr_b16", 1280)
                va, o1 = R, 32 * f
                if is_c:
                    va, o1 = (R + 1 if f % 4 else R), 0
                    if f % 4:
                        p.e(f"v_xor_b32 v{R+1}, {32*f}, v{R}")
                p.e(f"{op} v[{land[f]}:{land[f]+1}], v{va} offset:{o1}")
                st[f] = p.e(f"{op} v[{land[f]+2}:{land[f]+3}], v{va} offset:{o1 + o2}")
            rd.cost = 2
            self.fill.append(rd)
        if is_c:
            q(f"s_mov_b32 s{S_T2}, 0x05040100", f"s_mov_b32 s{S_T3}, 0x07060302")
        at(8 if dma else 12)
        self.fill.append(lambda: p.wait(st[4]))
        for f in range(5):
            if is_c and f < 4:
                re, im = land[f], land[f] + 2
                for k in range(2):
                    q(f"v_perm_b32 v{D+4*f+2*k}, v{im+k}, v{re+k}, s{S_T2}",
                      f"v_perm_b32 v{D+4*f+2*k+1}, v{im+k}, v{re+k}, s{S_T3}")
            if self.opt.get("job_spread"):
                continue
            at((10 if dma else 14) + 2 * f)
            self.fill.append(lambda f=f: setattr(self, "job_store", p.e(
                f"buffer_store_dwordx4 v[{D+4*f}:{D+4*f+3}], v{V_TW+2}, {srd(SWS)}, s{S_JOB} offen{self.wt}")))
            if f < 4:
                q(f"s_add_u32 s{S_JOB}, s{S_JOB}, {(5120 if f < 3 else OOB) if is_c else 1024}")
        if self.opt.get("job_spread"):
            q(f"s_mov_b32 s{S_R}, {5120 if is_c else 1024}", f"s_mov_b32 s{S_XB}, {OOB if is_c else 1024}")

    def job_stores(self, D, then):
        e, n = self.p.e, self.opt["job_spread"]

        def one(f):
            self.job_store = e(f"buffer_store_dwordx4 v[{D+4*f}:{D+4*f+3}], v{V_TW+2}, {srd(SWS)}, s{S_JOB} offen{self.wt}")
            if f < 4:
                e(f"s_add_u32 s{S_JOB}, s{S_JOB}, s{S_R if f < 3 else S_XB}")
            else:
                then()
        for f in range(5):
            self.timers.append((self.mf + 2 + n * f, lambda f=f: one(f)))

    def fork_job(self, tag, m0, R, L):
        e, fa = self.p.e, self.opt.get("fork_at", 65)
        n = 20 if self.opt.get("job_mode") == "dma" else 24
        if self.opt.get("job_spread"):
            n = 15
        self.fork = (fa, fa + n, lambda: (e(f"s_cmp_eq_u32 s{S_J2}, 1"), e(f"s_cbranch_scc1 FORK_ALT_{tag}")),
                     lambda: self.a_job(False, m0, R, L), lambda: self.a_job(True, m0, R, L), tag)
        return fa + n

    def jf_load(self, R):
        e = self.p.e
        e(f"s_lshl_b32 s{S_WB+1}, s{S_CG}, 11")
        e(f"s_add_u32 s{S_WB+1}, s{S_WB+1}, {JF_OFF}")
        e(f"v_and_b32 v{R+1}, 15, v{V_LANE}")
        e(f"v_lshlrev_b32 v{R+1}, 7, v{R+1}")
        self.jf_tok = self.flag_load(R)

    def flag_load(self, R):
        e = self.p.e
        e(f"v_mov_b32 v{R}, s{S_EPOCH}")
        e("s_mov_b64 exec, 0xffff")
        t = e(f"buffer_load_dword v{R}, v{R+1}, {srd(SWS)}, s{S_WB+1} offen sc1")
        e("s_mov_b64 exec, -1")
        return t

    def all_equal(self, R, n, label):
        e = self.p.e
        e(f"v_xor_b32 v{R}, s{S_EPOCH}, v{R}")
        for k in range(1, n):
            e(f"v_bitop3_b32 v{R}, v{R}, v{R+k}, s{S_EPOCH} bitop3:0xf6")
        e(f"v_cmp_ne_u32 vcc, 0, v{R}")
        e(f"s_cbranch_vccnz {label}")

    def jf_check(self, R, tag, first, per):
        p, e = self.p, self.p.e
        e(f"s_mov_b32 s{S_WB+2}, 0")
        p.wait(self.jf_tok)
        e(f"v_cmp_ne_u32 vcc, s{S_EPOCH}, v{R}")
        e(f"s_cbranch_vccnz JF_SLOW_{tag}")
        p.label(f"JF_OK_{tag}")
        self.polls.append((tag, R))
        e(f"s_lshr_b32 s{S_WB}, s{S_CG}, 3")
        e(f"s_mul_i32 s{S_WB}, s{S_WB}, 47")
        e(f"s_mul_i32 s{S_WB+1}, s{S_W}, 12")
        e(f"s_add_u32 s{S_WB+3}, s{S_WB}, s{S_WB+1}")
        if MIXED:
            e(f"s_mov_b32 s{S_WB+3}, 0")
        e(f"s_and_b32 s{S_WB}, s{S_CG}, 7")
        e(f"s_mul_i32 s{S_WB}, s{S_WB}, 94")
        e(f"s_add_u32 s{S_WB}, s{S_WB}, s{S_WB+3}")
        e(f"s_mul_i32 s{S_WB}, s{S_WB}, 5120")
        e(f"s_add_u32 s{S_WB0}, s{S_WB}, {W2F_OFF}")
        if MIXED:
            L = mixed_lists()
            e(f"s_lshr_b32 s{S_WB+1}, s{S_CG}, 3"); e(f"s_lshl_b32 s{S_WB+1}, s{S_WB+1}, 2")
            e(f"s_add_u32 s{S_WB+1}, s{S_WB+1}, s{S_W}")
            for c in range(8):
                words = [sum(v << (8 * k) for k, v in enumerate(L[c // 4, c % 4][4 * h:4 * h + 4])) for h in range(3)]
                if c:
                    e(f"s_cmp_eq_u32 s{S_WB+1}, {c}")
                for h in range(3):
                    e(f"s_cselect_b32 s{S_TB+h}, {words[h]:#x}, s{S_TB+h}" if c else f"s_mov_b32 s{S_TB+h}, {words[h]:#x}")
        else:
            for h in range(2):
                e(f"s_mov_b32 s{S_TB+h}, {nib('nat', h):#x}")
            for cond, name in ((f"s_cmp_eq_u32 s{S_W}, 0", "w0"), (f"s_cmp_eq_u32 s{S_W}, 3", "w3"), (f"s_cmp_lt_u32 s{S_CG}, 8", "k0")):
                e(cond)
                for h in range(2):
                    e(f"s_cselect_b32 s{S_TB+h}, {nib(name, h):#x}, s{S_TB+h}")

        def ld(n):
            i, cb = divmod(n, 5)
            if cb == 0:
                e(rel(S_WB, i))
                e(f"s_mul_i32 s{S_WB}, s{S_WB}, 5120")
                e(f"s_add_u32 s{S_WB}, s{S_WB}, s{S_WB0}")
                if i == 11:
                    e(f"s_cmp_eq_u32 s{S_W}, 3")
                    e(f"s_cselect_b32 s{S_WB}, {OOB}, s{S_WB}")
            va, off = ((V_L16 if n >= 60 - self.opt.get("w_keep", 12) else V_TW + 2), 1024 * cb) if cb < 4 else (0, 0)
            e(f"buffer_load_dwordx4 a[{WMAP[n]}:{WMAP[n]+3}], v{va}, {srd(SWS)}, s{S_WB} offen offset:{off} sc1")
        self.wq = [lambda n=n: ld(n) for n in range(60)]
        self.wfrom, self.wper = first, per

    def code_touch(self, tag, start, skip, lines, tmp):
        e = self.p.e
        b, per = S_M2, lines // 4
        e(f"s_getpc_b64 s[{b}:{b+1}]")
        self.p.label(f"CT_{tag}")
        if start is not None:
            e(f"s_add_u32 s{b}, s{b}, {start}-CT_{tag}")
            e(f"s_addc_u32 s{b+1}, s{b+1}, 0")
        e(f"s_mul_i32 s{S_T1}, s{S_W}, {per*128}")
        e(f"s_add_u32 s{S_T1}, s{S_T1}, {skip}")
        e(f"v_lshl_add_u32 v{tmp}, v{V_LANE}, 7, s{S_T1}")
        e(f"v_min_u32 v{tmp}, TEXT_END-{start or 'CT_' + tag}-4, v{tmp}")
        e(f"s_mov_b64 exec, {(1 << per) - 1:#x}")
        e(f"global_load_dword v{tmp+1}, v{tmp}, s[{b}:{b+1}]")
        e("s_mov_b64 exec, -1")

    def fire_timers(self):
        for tm in self.timers:
            tm[1]()
        self.timers = []
        for tok, f in self.lazy:
            self.pre_barrier.append(tok)
            self.on_barrier.append(f)
        self.lazy = []
        if self.on_barrier:
            self.barrier()

    def poll_paths(self):
        p, e = self.p, self.p.e
        for tag in self.heads:
            p.label(f"K2_EARLY_SLOW_{tag}")
            e(f"s_sleep {self.opt.get('done_sleep', 8)}")
            e(f"s_add_u32 s{S_SPIN}, s{S_SPIN}, 1")
            e(f"s_cmp_gt_u32 s{S_SPIN}, 100000")
            e(f"s_cbranch_scc1 K2_EARLY_OK_{tag}")
            self.early_load()
            e("s_waitcnt vmcnt(0)")
            e(f"v_cmp_ne_u32 vcc, s{S_EPOCH}, v15")
            e(f"s_cbranch_vccnz K2_EARLY_SLOW_{tag}")
            e(f"s_branch K2_EARLY_OK_{tag}")
        for tag, R in self.polls:
            p.label(f"JF_SLOW_{tag}")
            e("s_sleep 6")
            e(f"s_add_u32 s{S_WB+2}, s{S_WB+2}, 1")
            e(f"s_cmp_gt_u32 s{S_WB+2}, 20000")
            e(f"s_cbranch_scc1 JF_OK_{tag}")
            self.flag_load(R)
            e("s_waitcnt vmcnt(0)")
            e(f"v_cmp_ne_u32 vcc, s{S_EPOCH}, v{R}")
            e(f"s_cbranch_vccnz JF_SLOW_{tag}")
            e(f"s_branch JF_OK_{tag}")

    def w_some(self, n):
        while n > 0 and len(self.wq) > self.opt.get("w_keep", 12):
            self.wq.pop(0)()
            n -= 1

    def a_load(self, g, t, i, f):
        e = self.p.e
        if f == 0:
            e(rel(S_A, i))
            e(f"s_lshl_b32 s{S_A}, s{S_A}, 12")
            e(f"s_add_u32 s{S_A}, s{S_A}, s{S_A0 if t else S_A1}")
            if i == 11:
                e(f"s_cmp_eq_u32 s{S_W}, 3")
                e(f"s_cselect_b32 s{S_A}, s{S_OOB}, s{S_A}")
        return e(f"buffer_load_dwordx4 {slot(g, f)}, v{V_L16}, {srd(SWS)}, s{S_A} offen offset:{1024*f} sc1")

    def early_load(self):
        e = self.p.e
        e(f"v_mov_b32 v15, s{S_EPOCH}")
        if self.opt.get("fast"):
            e(f"s_mov_b64 exec, s[{S_M2}:{S_M2+1}]")
        else:
            e("s_mov_b64 exec, 0x7f7f" if MIXED else "s_mov_b64 exec, 0xbfff")
        t = e(f"buffer_load_dword v15, v2, {srd(SWS)}, s{S_DIV+2} offen sc1")
        e("s_mov_b64 exec, -1")
        return t

    def head_a(self, tag):
        p, e = self.p, self.p.e
        e(f"s_lshl_b32 s{S_DN}, s{S_MT}, 11"); e(f"s_add_u32 s{S_DN}, s{S_DN}, {DONE_OFF}")
        e(f"s_add_u32 s{S_DIV+2}, s{S_DN}, {DONE1_OFF - DONE_OFF}")
        e(f"v_and_b32 v2, 15, v{V_LANE}"); e("v_lshlrev_b32 v2, 7, v2")
        e(f"s_mov_b32 s{S_SPIN}, 0")
        split = self.opt.get("split", 0)
        fast = self.opt.get("fast", 0)
        if fast:
            e(f"s_mov_b32 s{S_DIV+2}, s{S_DN}")
            e(f"s_lshl_b32 s{S_M2}, 1, s{S_CG}"); e(f"s_andn2_b32 s{S_M2}, 0xffff, s{S_M2}"); e(f"s_mov_b32 s{S_M2+1}, 0")
        if (tag != "B") and split in (1, 4) and not (tag == "A" and self.opt.get("early_mid")):
            t_early = self.early_load()
        self.w_some(self.opt.get("head_w", 4))
        for x in self.mk_srd(SD, K_DSK, 1280) + self.mk_srd(SO, K_OUT, OUT_BYTES):
            e(x)
        e(f"v_mov_b32 v{V_L16}, v{V_TW+2}"); e(f"v_mov_b32 v{V_L16B}, v0")
        e(f"s_mov_b32 s{S_N}, s{S_WB+3}")
        e(f"s_lshr_b32 s{S_T2}, s{S_CG}, 3")
        e(f"s_lshl_b32 s{S_T3}, s{S_MT}, 1")
        e(f"s_add_u32 s{S_T3}, s{S_T3}, s{S_T2}")
        e(f"s_mul_i32 s{S_A0}, s{S_T3}, 94"); e(f"s_add_u32 s{S_A0}, s{S_A0}, s{S_N}"); e(f"s_lshl_b32 s{S_A0}, s{S_A0}, 12")
        e(f"s_xor_b32 s{S_A1}, s{S_T3}, 1")
        e(f"s_mul_i32 s{S_A1}, s{S_A1}, 94"); e(f"s_add_u32 s{S_A1}, s{S_A1}, s{S_N}"); e(f"s_lshl_b32 s{S_A1}, s{S_A1}, 12")
        e(f"s_lshl_b32 s{S_T3}, s{S_T3}, 6"); e(f"s_lshl_b32 s{S_T0}, s{S_W}, 4"); e(f"s_add_u32 s{S_T3}, s{S_T3}, s{S_T0}")
        e(f"s_and_b32 s{S_T1}, s{S_CG}, 7"); e(f"s_mul_i32 s{S_T1}, s{S_T1}, 160")
        e(f"s_mul_i32 s{S_XO}, s{S_T3}, 1280"); e(f"s_add_u32 s{S_XO}, s{S_XO}, s{S_T1}")
        e(f"s_lshl_b32 s{S_OO}, s{S_XO}, 1")
        e(f"s_mov_b32 s{S_DIV}, 0xcccd"); e(f"s_mov_b32 m0, s{S_J1}")
        for j in range(3):
            e(f"v_add_u32 v6, {64*j}, v{V_LANE}"); e(f"v_mul_lo_u32 v7, v6, s{S_DIV}"); e("v_lshrrev_b32 v7, 19, v7")
            e("v_mul_u32_u24 v8, 1120, v7"); e("v_lshl_add_u32 v8, v6, 4, v8")
            if j:
                e(f"v_add_u32 v8, {-1024*j & 0xffffffff:#x}, v8")
            if j == 2:
                e("s_mov_b32 exec_hi, 0")
            e(f"buffer_load_dwordx4 v8, {srd(SX)}, s{S_XO} offen offset:{1024*j} lds")
        e(f"s_add_u32 m0, s{S_J1}, 3072"); e("s_mov_b32 exec_lo, 0x3ff")
        t_res = e(f"buffer_load_dwordx4 v{V_L16}, {srd(SD)}, s{S_T1} offen lds")
        e("s_mov_b64 exec, -1")
        self.h = dict(t_res=t_res, t_early=locals().get("t_early"))

    def phase2_head(self, k, tag):
        p, e = self.p, self.p.e
        self.stamp(k)
        split, fast = self.opt.get("split", 0), self.opt.get("fast", 0)
        if not getattr(self, "h", None):
            self.head_a(tag)
        t_res, t_early = self.h["t_res"], self.h["t_early"]
        self.h = None
        def raise_done():
            e(f"s_lshl_b32 s{S_T0}, s{S_CG}, 7"); e(f"s_add_u32 s{S_T0}, s{S_T0}, s{S_DN}")
            e(f"s_cmp_eq_u32 s{S_W}, 0"); e(f"s_cselect_b32 s{S_T0}, s{S_T0}, {OOB}")
            e(f"v_mov_b32 v14, s{S_EPOCH}")
            self.barrier(self.last_store)
            if tag != "B" and (split == 2 or fast):
                st["early"] = self.early_load()
            e("s_mov_b64 exec, 1")
            e(f"buffer_store_dword v14, off, {srd(SWS)}, s{S_T0} sc1")
            e("s_mov_b64 exec, -1")
            self.stamp(k + 1)

        def go():
            p.wait(st["early"])
            e(f"v_cmp_ne_u32 vcc, s{S_EPOCH}, v15")
            e(f"s_cbranch_vccnz K2_EARLY_SLOW_{tag}")
            p.label(f"K2_EARLY_OK_{tag}")
            self.heads.append(tag)
            p.wait(t_res)
            for g in range(4):
                for f in range(4):
                    self.a_load(g, *(STEPS_MIXED[g] if MIXED else (0, g)), f)
        st = {"early": t_early}
        e(f"s_mov_b32 s{S_OOB}, {OOB}")
        late_done = split == 4 and tag == "A"
        if not late_done:
            raise_done()
        self.w_some(60)
        if tag == "B" and (split or fast):
            st["early"] = self.early_load()
        if split in (1, 4) or fast == 1:
            go()
        if split == 4 and not late_done:
            e(f"buffer_store_dword v14, off, {srd(SWS)}, s{S_OOB} sc1")
        self.w_rest = list(self.wq)
        e(f"s_and_b32 s{S_T3}, s{S_T3}, 127"); e(f"s_lshl_b32 s{S_T3}, s{S_T3}, 3"); e(f"s_add_u32 s{S_T3}, s{S_T3}, {STL}")
        e(f"s_mul_i32 s{S_T2}, s{S_W}, 5376")
        e(f"v_lshlrev_b32 v10, 3, v{V_LANE}"); e(f"v_add_u32 v10, s{S_J1}, v10")
        XR, DR, SR, T = ACC2, ACC2 + 10, ACC2 + 20, ACC2 + 32
        AD = ACC2 + 60
        for i in range(5):
            e(f"v_add_u32 v6, {64*i}, v{V_LANE}"); e(f"v_mul_lo_u32 v7, v6, s{S_DIV}"); e("v_lshrrev_b32 v7, 20, v7")
            e("v_mul_u32_u24 v8, 20, v7"); e("v_sub_u32 v8, v6, v8")
            e("v_mul_u32_u24 v9, 2560, v7"); e(f"v_lshl_add_u32 v{V_OA+i}, v8, 4, v9")
            e("v_mul_u32_u24 v12, 336, v7"); e("v_lshl_add_u32 v12, v8, 4, v12")
            e(f"v_add_u32 v{V_LA+i}, s{S_T2}, v12")
            e(f"v_lshl_add_u32 v{AD+i}, v8, 3, s{S_J1}"); e(f"v_lshl_add_u32 v11, v7, 3, s{S_T3}")
            e(f"ds_read_b64 v[{SR+2*i}:{SR+2*i+1}], v11")
        e(f"v_and_b32 v{V_WA}, 15, v{V_LANE}"); e(f"v_mul_u32_u24 v{V_WA}, 336, v{V_WA}")
        e(f"v_lshrrev_b32 v6, 4, v{V_LANE}"); e(f"v_lshl_add_u32 v{V_WA}, v6, 4, v{V_WA}")
        e(f"s_mul_i32 s{S_T2}, s{S_W}, 21504"); e(f"v_add_u32 v{V_WA}, s{S_T2}, v{V_WA}")
        e(f"v_add_u32 v{V_PK}, s{S_J1}, v{V_L16}")
        e("s_lshl_b32 s3, s2, 2"); e(f"s_add_u32 s3, s3, s{S_W}")
        e(f"s_mul_i32 s{S_PO}, s3, 5120"); e(f"s_add_u32 s{S_PO}, s{S_PO}, {PART_OFF}")
        e("s_xor_b32 s3, s3, 4")
        e(f"s_mul_i32 s{S_PI}, s3, 5120"); e(f"s_add_u32 s{S_PI}, s{S_PI}, {PART_OFF}")
        if self.opt.get("a_pref"):
            e(f"s_and_b32 s{S_T0}, s{S_CG}, 7"); e(f"s_lshl_b32 s{S_T0}, s{S_T0}, 2"); e(f"s_add_u32 s{S_T0}, s{S_T0}, s{S_W}")
            e(f"s_mul_i32 s{S_T0}, s{S_T0}, 94")
            e(f"s_mov_b32 s{S_T1}, {94*4096 - 1504*128}")
            for j, r in ((0, 6), (1, 7)):
                e(f"v_add_u32 v{r}, s{S_T0}, v{V_LANE}")
                if j:
                    e(f"v_add_u32 v{r}, 64, v{r}")
                e(f"v_cmp_lt_u32 vcc, 1503, v{r}")
                e(f"v_lshlrev_b32 v{r}, 7, v{r}")
                e(f"v_add_u32 v8, s{S_T1}, v{r}")
                e(f"v_cndmask_b32 v{r}, v{r}, v8, vcc")
            e(f"s_lshr_b32 s{S_T0}, s{S_CG}, 3"); e(f"s_mul_i32 s{S_T0}, s{S_T0}, 47")
            e(f"s_mul_i32 s{S_T1}, s{S_MT}, 188"); e(f"s_add_u32 s{S_T0}, s{S_T0}, s{S_T1}")
            e(f"s_lshl_b32 s{S_DIV+2}, s{S_T0}, 12")
        e(f"v_mov_b32 v{V_T}, 0xff")
        e(f"s_mov_b32 s{S_TG}, s{S_EPOCH}")
        for j in range(1, 4):
            e(f"s_lshr_b32 s{S_TG+j}, s{S_TG}, {8*j}"); e(f"s_add_u32 s{S_TG+j}, s{S_TG+j}, s{S_TG}")
        t = None
        if fast == 2:
            go()
        p.wait(t_res)
        for i in range(5):
            e(f"ds_read_b64 v[{XR+2*i}:{XR+2*i+1}], v10 offset:{512*i}")
            t = e(f"ds_read_b64 v[{DR+2*i}:{DR+2*i+1}], v{AD+i} offset:3072")
        p.wait(t)
        M = f"s{S_MASK}"
        for i in range(5):
            if split == 2 and i == self.opt.get("go_at", 0):
                go()
            x0, d0, s0 = XR + 2 * i, DR + 2 * i, SR + 2 * i
            for j, r in enumerate((x0, x0 + 1, d0, d0 + 1)):
                e(f"v_lshlrev_b32 v{T+2*j}, 16, v{r}"); e(f"v_and_b32 v{T+2*j+1}, {M}, v{r}")
            for j in range(4):
                e(f"v_fma_f32 v{T+8+j}, v{T+j}, v{s0}, v{s0+1}")
            for rnd in range(2):
                e(f"v_cvt_pk_bf16_f32 v{T+12}, v{T+8}, v{T+9}"); e(f"v_cvt_pk_bf16_f32 v{T+13}, v{T+10}, v{T+11}")
                e(f"v_lshlrev_b32 v{T+8}, 16, v{T+12}"); e(f"v_and_b32 v{T+9}, {M}, v{T+12}")
                e(f"v_lshlrev_b32 v{T+10}, 16, v{T+13}"); e(f"v_and_b32 v{T+11}, {M}, v{T+13}")
                if rnd == 0:
                    for j in (0, 2):
                        e(f"v_pk_mul_f32 v[{T+8+j}:{T+9+j}], v[{T+8+j}:{T+9+j}], v[{T+4+j}:{T+5+j}]")
            o = T + 16 + 4 * (i % 2)
            for j in (0, 2):
                e(f"v_pk_add_f32 v[{o+j}:{o+j+1}], v[{T+j}:{T+j+1}], v[{T+8+j}:{T+9+j}]")
            e(f"ds_write_b128 v{V_PK}, v[{o}:{o+3}] offset:{1024*i}")
        if self.opt.get("a_pref") == 2:
            e(f"buffer_load_dword v8, v6, {srd(SWS)}, s{S_DIV+2} offen sc1")
            e("s_mov_b64 exec, 0x3fffffff")
            e(f"buffer_load_dword v9, v7, {srd(SWS)}, s{S_DIV+2} offen sc1")
            e("s_mov_b64 exec, -1")
        if late_done:
            raise_done()
        e("s_branch K2_START")

    def phase2(self):
        p, e, opt = self.p, self.p.e, self.opt
        fill, tok, st, ld = [], {}, {}, []
        cur, cnt = {"g": 0}, {"m": 0}
        NS, F = 5, opt.get("k2_fuse", 3)
        PD = NS - 1

        def q(*texts):
            for t in texts:
                fill.append(t if callable(t) else (lambda t=t: e(t)))

        def pull(budget):
            start = p.slots
            while fill and p.slots - start < budget:
                it = fill[0]
                if isinstance(it, tuple):
                    if not it[0]():
                        return
                    fill.pop(0)
                    continue
                fill.pop(0)
                it()

        def lag(n):
            mark = {}
            q(lambda: mark.__setitem__("m", cnt["m"]))
            fill.append((lambda: cnt["m"] >= mark["m"] + n or cur["g"] > 98,))

        J = opt.get("k2_j", 2 if opt.get("split", 0) else 0)
        steps = [(0, i) for i in range(6)] + [(1, i) for i in range(J)] + [(0, i) for i in range(6, 12)] + \
                [(1, i) for i in range(J, 12)]
        G1 = 12 + J
        GL = 6 + J
        if MIXED:
            steps = STEPS_MIXED
            G1, GL = 15, 6
        HOLD = opt.get("k2_hold", 2) if MIXED else 0

        def loads(g):
            t, i = steps[g]

            return [lambda f=f: tok.__setitem__(g, self.a_load(g, t, i, f)) for f in range(4)]

        def done_load():
            e(f"v_mov_b32 v15, s{S_EPOCH}")
            e("s_mov_b64 exec, 0xffff")
            st["dn"] = e(f"buffer_load_dword v15, v2, {srd(SWS)}, s{S_DN} offen sc1")
            e("s_mov_b64 exec, -1")

        def done_check():
            e(f"v_cmp_ne_u32 vcc, s{S_EPOCH}, v15")
            e("s_cbranch_vccnz K2_LATE_SLOW")

        def tile_to_lds(acc):
            return [f"ds_write_b128 v{V_WA}, v[{acc+(cb*4+rb)*4}:{acc+(cb*4+rb)*4+3}] offset:{rb*5376 + cb*64}"
                    for cb in range(5) for rb in range(4)]

        def barrier():
            p.wait_all(vm=False)
            e("s_barrier")

        def part_loads():
            for i in range(5):
                r = ACC1 + 16 * i + 8
                va, off = (V_L16, 1024 * i) if i < 4 else (V_L16B, 0)
                st["pi"] = e(f"buffer_load_dwordx4 v[{r}:{r+3}], v{va}, {srd(SWS)}, s{S_PI} offen offset:{off} sc1")

        def part_check():
            for i in range(5):
                for k in range(4):
                    r = ACC1 + 16 * i + 8 + k
                    if i + k == 0:
                        e(f"v_xor_b32 v{V_T+1}, s{S_TG}, v{r}")
                    else:
                        e(f"v_bitop3_b32 v{V_T+1}, v{V_T+1}, v{r}, s{S_TG+k} bitop3:0xf6")
            e(f"v_and_b32 v{V_T+1}, v{V_T}, v{V_T+1}")
            e(f"v_cmp_ne_u32 vcc, 0, v{V_T+1}")
            e("s_cbranch_vccnz K2_SLOW")

        def first_tile_done():
            for x in tile_to_lds(ACC1):
                q(x)
                lag(opt.get("k2_wlag", 2))
            lag(opt.get("k2_blag", 4))
            q(barrier)
            for i in range(5):
                for wv in range(4):
                    r = ACC1 + 16 * i + 4 * wv
                    q(lambda i=i, r=r, wv=wv: st.__setitem__(("rd", i), e(
                        f"ds_read_b128 v[{r}:{r+3}], v{V_LA+i} offset:{wv*21504}")))
            for i in range(5):
                r = ACC1 + 16 * i
                q(lambda i=i: p.wait(st["rd", i]))
                for k in range(4):
                    q(f"v_add_f32 v{r+k}, v{r+k}, v{r+4+k}", f"v_add_f32 v{r+8+k}, v{r+8+k}, v{r+12+k}")
                q(*[f"v_add_f32 v{r+k}, v{r+k}, v{r+8+k}" for k in range(4)])
                q(*[f"v_bfi_b32 v{r+k}, v{V_T}, s{S_TG+k}, v{r+k}" for k in range(4)])
                va, off = (V_L16, 1024 * i) if i < 4 else (V_L16B, 0)
                q(f"buffer_store_dwordx4 v[{r}:{r+3}], v{va}, {srd(SWS)}, s{S_PO} offen offset:{off} sc1")
            q("s_barrier")
            for i in range(5):
                r = ACC1 + 16 * i + 4
                q(lambda i=i, r=r: st.__setitem__("pk", e(f"ds_read_b128 v[{r}:{r+3}], v{V_PK} offset:{1024*i}")))
            fill.append((lambda: cnt["m"] >= opt.get("k2_pollm", 440),))
            q(part_loads)

        def mfma(g, cb, rb):
            t, i = steps[g]
            acc = ACC2 if t else ACC1
            w = WMAP[5 * i + cb]
            c = f"v[{acc+(cb*4+rb)*4}:{acc+(cb*4+rb)*4+3}]"
            start = p.slots
            e(f"v_mfma_f32_16x16x32_bf16 {c}, a[{w}:{w+3}], {slot(g, rb)}, {c if i else 0}")
            cnt["m"] += 1
            if cnt["m"] % 4 == 2 and ld:
                ld.pop(0)()
            elif cnt["m"] % 4 == 0 and wrest:
                wrest.pop(0)()
            return start

        p.label("K2_START")
        if not opt.get("split", 0) and not opt.get("fast", 0):
            e(f"s_cmp_lg_u32 s{S_W}, 0")
            e("s_cbranch_scc1 K2_GO")
            e("s_mov_b64 exec, 0xffff")
            p.label("K2_RETRY")
            e(f"buffer_load_dword v15, v2, {srd(SWS)}, s{S_DN} offen sc1")
            e(f"s_add_u32 s{S_SPIN}, s{S_SPIN}, 1")
            e("s_waitcnt vmcnt(0)")
            e(f"v_cmp_ne_u32 vcc, s{S_EPOCH}, v15")
            e("s_cbranch_vccz K2_SEEN")
            if opt.get("backoff"):
                e(f"s_bcnt1_i32_b64 s{S_T0}, vcc")
                e(f"s_cmp_lt_u32 s{S_T0}, {opt.get('backoff_n', 12)}")
                e("s_cbranch_scc1 K2_SHORT")
                e(f"s_sleep {opt['backoff']}")
                p.label("K2_SHORT")
            e(f"s_sleep {opt.get('done_sleep', 3)}")
            e(f"s_cmp_lt_u32 s{S_SPIN}, 100000")
            e("s_cbranch_scc1 K2_RETRY")
            p.label("K2_SEEN")
            e("s_mov_b64 exec, -1")
            p.label("K2_GO")
            e("s_barrier")
            assert not MIXED
            if opt.get("a_pref"):
                e(f"buffer_load_dword v8, v6, {srd(SWS)}, s{S_DIV+2} offen sc1")
                e("s_mov_b64 exec, 0x3fffffff")
                e(f"buffer_load_dword v9, v7, {srd(SWS)}, s{S_DIV+2} offen sc1")
                e("s_mov_b64 exec, -1")
            for g in range(4):
                for f in range(4):
                    self.a_load(g, 0, g, f)
        p.vq, p.vdone, p.lq, p.ldone = (17 if opt.get("split") == 4 else 16), 0, 5, 0
        for g in range(4):
            tok[g] = ("v", 4 * g + 4)
        self.stamp(10)
        if opt.get("stamp"):
            e(f"s_mov_b32 s{S_WB+2}, s{S_SPIN}")
        e(f"s_mov_b32 s{S_SPIN}, 0")
        e(f"s_mov_b32 s{S_WB+1}, 0")
        wrest = list(self.w_rest)
        for g in range(24 - F):
            cur["g"] = g
            if g + PD + opt.get("k2_dlead", 2) == GL + HOLD and opt.get("split", 0):
                done_load()
            if g == G1:
                self.stamp(11)
                first_tile_done()
            p.wait(tok[g])
            if g + PD == GL + HOLD and opt.get("split", 0):
                p.wait(st["dn"])
                done_check()
                p.label("K2_LATE_OK")
                for g2 in range(GL, GL + HOLD):
                    for f in loads(g2):
                        f()
            if g + PD < 24 and not (GL <= g + PD < GL + HOLD):
                ld.extend(loads(g + PD))
            for cb in range(5):
                for rb in range(4):
                    start = mfma(g, cb, rb)
                    pull(opt.get("k2_b2", 4) - (p.slots - start))
            while ld:
                ld.pop(0)()
        cur["g"] = 98
        wr, tl = [], tile_to_lds(ACC2)
        for cb in range(5):
            n = 0
            for g in range(24 - F, 24):
                p.wait(tok[g])
                for rb in range(4):
                    start = mfma(g, cb, rb)
                    n += 1
                    if wr and n > 2 and (n - 3) % max(1, F - 1) == 0:
                        e(wr.pop(0))
                    pull(opt.get("k2_b2", 4) - (p.slots - start))
            for x in wr:
                e(x)
            wr = tl[4 * cb:4 * cb + 4]
        cur["g"] = 99
        self.stamp(12)
        pull(10000)
        assert not fill
        for x in wr:
            e(x)
        p.wait(st["pi"], st["pk"])
        part_check()
        p.label("K2_OK")
        e(f"s_mov_b32 s{S_DIV}, 0xffffff00")
        for i in range(5):
            s = ACC1 + 16 * i
            for k in range(4):
                e(f"v_and_b32 v{s+8+k}, s{S_DIV}, v{s+8+k}")
            for k in range(0, 4, 2):
                e(f"v_pk_add_f32 v[{s+k}:{s+k+1}], v[{s+4+k}:{s+5+k}], v[{s+8+k}:{s+9+k}]")
        barrier()
        rd = {}
        for i in range(5):
            for wv in range(4):
                r = ACC2 + 16 * i + 4 * wv
                rd[i] = e(f"ds_read_b128 v[{r}:{r+3}], v{V_LA+i} offset:{wv*21504}")
        for i in range(5):
            r, s = ACC2 + 16 * i, ACC1 + 16 * i
            p.wait(rd[i])
            for k in range(0, 4, 2):
                e(f"v_pk_add_f32 v[{r+k}:{r+k+1}], v[{r+k}:{r+k+1}], v[{r+4+k}:{r+5+k}]")
                e(f"v_pk_add_f32 v[{r+8+k}:{r+9+k}], v[{r+8+k}:{r+9+k}], v[{r+12+k}:{r+13+k}]")
                e(f"v_pk_add_f32 v[{s+k}:{s+k+1}], v[{s+k}:{s+k+1}], v[{r+k}:{r+k+1}]")
            for k in range(0, 4, 2):
                e(f"v_pk_add_f32 v[{s+k}:{s+k+1}], v[{s+k}:{s+k+1}], v[{r+8+k}:{r+9+k}]")
            e(f"buffer_store_dwordx4 v[{s}:{s+3}], v{V_OA+i}, {srd(SO)}, s{S_OO} offen{opt.get('owt', ' sc1')}")
        e(f"s_or_b32 s{S_T0}, s2, s{S_W}")
        e(f"s_cmp_eq_u32 s{S_T0}, 0")
        e(f"s_cselect_b32 s{S_T0}, {EPOCH_OFF}, s{S_OOB}")
        e(f"v_mov_b32 v{V_T}, s{S_EPOCH}")
        e("s_mov_b64 exec, 1")
        e(f"buffer_store_dword v{V_T}, off, {srd(SWS)}, s{S_T0} sc1")
        e("s_mov_b64 exec, -1")
        if opt.get("stamp"):
            tm = "s_memrealtime" if opt.get("rt") else "s_memtime"
            e(f"{tm} s[{SA1}:{SA1+1}]")
            p.wait_all()
            e(f"{tm} s[{SA1+2}:{SA1+3}]")
            e(f"s_memrealtime s[{S_M2}:{S_M2+1}]")
            e(f"s_lshl_b32 s{S_T0}, s2, 2"); e(f"s_add_u32 s{S_T0}, s{S_T0}, s{S_W}")
            e(f"s_lshl_b32 s{S_T0}, s{S_T0}, 7"); e(f"s_add_u32 s{S_T0}, s{S_T0}, {STAMP1_OFF}")
            e("s_waitcnt lgkmcnt(0)")
            e(f"s_getreg_b32 s{S_T2}, hwreg(HW_REG_XCC_ID)")
            e(f"s_getreg_b32 s{S_T3}, hwreg(HW_REG_HW_ID)")
            for k, r in enumerate(STAMP_REGS + [SA1, SA1 + 2, 94, S_M2, S_WB + 2, S_SPIN, S_WB + 1, S_T2, S_T3]):
                e(f"v_mov_b32 v6, s{r}")
                e(f"buffer_store_dword v6, off, {srd(SWS)}, s{S_T0} offset:{4*k}")
        p.label("K1_END")
        e("s_endpgm")
        if not opt.get("split", 0):
            p.label("K2_LATE_OK")
        p.label("K2_LATE_SLOW")
        e(f"s_sleep {opt.get('done_sleep', 8)}")
        e(f"s_add_u32 s{S_WB+1}, s{S_WB+1}, 1")
        e(f"s_cmp_gt_u32 s{S_WB+1}, 100000")
        e("s_cbranch_scc1 K2_LATE_OK")
        done_load()
        e("s_waitcnt vmcnt(0)")
        done_check()
        e("s_branch K2_LATE_OK")
        p.label("K2_SLOW")
        e("s_sleep 2")
        e(f"s_add_u32 s{S_SPIN}, s{S_SPIN}, 1")
        e(f"s_cmp_gt_u32 s{S_SPIN}, 100000")
        e("s_cbranch_scc1 K2_OK")
        part_loads()
        e("s_waitcnt vmcnt(0)")
        part_check()
        e("s_branch K2_OK")

    def build_dsd(self):
        p, e, o = self.p, self.p.e, self.opt
        global MIXED
        MIXED = bool(o.get("split"))
        self.JA = V_PRE
        self.prologue()
        e(f"s_cmp_eq_u32 s{S_TYPE}, 2")
        e("s_cbranch_scc1 K1_TYPE_C")
        snap0 = self.snapshot()
        self.prologue2("F", o.get("npre", 2))
        self.a_job_setup("AB")
        e(f"s_cmp_eq_u32 s{S_TYPE}, 1")
        e("s_cbranch_scc1 K1_TYPE_B")
        snap = self.snapshot()
        g1, g2 = o.get("lb_issue", 345), o.get("lb_check", 365)
        jf = lambda tmp: self.flag_later(tmp, None, lambda: self.job_store, JF_OFF, S_CG, S_MT)
        head = [("F", i, S_D1) for i in range(10)] + [("S", i, 0) for i in range(5)]
        for typ in "AB":
            if typ == "B":
                p.label("K1_TYPE_B")
                self.restore(snap)
            m0 = self.mf
            self.norm_every = 2
            fb = self.fork_job(typ, m0, 188, 48)

            def s0():
                self.stamp(4)
                self.epi_done = False
                self.ffn_epilogue(192, S_KD1, 48)
                self.fill.append(lambda: setattr(self, "epi_done", True))
                if MIXED:
                    self.fill.append(lambda: self.flag_later(66, None, lambda t=self.last_store: t, DONE1_OFF, S_MT, S_CG))

            def wstart():
                assert self.epi_done
                self.jf_check(64, "A", 240, 4)

            def d0(typ=typ, m0=m0):
                self.stamp(5)
                rest, self.fill = self.fill, []
                self.ssm_reduce(0, ACC_S, 188, False, 56)
                k = next(i for i, x in enumerate(self.fill) if isinstance(x, tuple) and x[0] == "bar")
                self.fill = self.fill[:k] + rest + self.fill[k:] if o.get("rest_mid", 1) else self.fill + rest
                self.ssm_finish(0, ACC_S, 188, lambda: self.mf - m0 >= g1, lambda: self.mf - m0 >= g2, typ)
            hooks = {fb: lambda: jf(210), 156: self.stats_to_lds, 161: s0}
            frags = self.d_frags(0, 192, "a") + self.s_frags(10, ACC_S)
            if typ == "A":
                j1 = o.get("jf_at", 250)
                hooks.update({241: d0, j1 - 23: lambda: self.jf_load(64), j1: wstart})
                self.run(head + [("F", i, S_D2) for i in range(10)], frags + self.d_frags(15, ACC_D2), hooks)
                self.stamp(6)
                self.mf += 1000
                tw = o.get("tail_w", 3)
                if o.get("tail_first", 1):
                    self.ffn_tail(ACC_D2, S_KD2, {(0, 0): lambda: self.w_some(tw), (0, 1): lambda: self.w_some(tw)}, 64)
                    self.flush()
                else:
                    self.flush()
                    self.ffn_tail(ACC_D2, S_KD2, {(0, 0): lambda: self.w_some(tw), (0, 1): lambda: self.w_some(tw)}, 64)
            else:
                self.run(head, frags, hooks)
                self.mf += 1000
                self.flush()
                self.fire_timers()
                self.stamp(5)
                self.ssm_reduce(0, ACC_S, 188)
                self.flush()
                self.stamp(6)
                self.jf_load(64)
                self.p.e("s_sleep 32")
                self.jf_check(64, "B", 0, 1)
                self.w_some(o.get("b_w", 30))
                self.ssm_finish(0, ACC_S, 188, None, None, "B")
                self.flush()
            self.stamp(7)
            self.phase2_head(8, typ)
        p.label("K1_TYPE_C")
        self.restore(snap0)
        self.is_c = True
        self.norm_every = 1
        self.prologue2("S", 8)
        self.a_job_setup("C")
        self.path_c(jf, None)
        self.slow_paths()
        self.poll_paths()
        self.phase2()
        p.fix_hazards()
        return p

    def sd_frags(self, accs):
        d = self.d_frags(0, 192, "a")
        out, win = [], 0
        for s in range(40):
            i = s // 8
            ns, nf = 3 * i + 1, 3 * i + (2 if s % 8 >= 4 else 0)
            for mat in range(2):
                c = f"v[{accs[mat]}:{accs[mat]+15}]"
                fr = dict(stage=ns, reads=[f"ds_read_b128 a[{{f0}}:{{f3}}], v{self.AS + s % 8} offset:{(ns % 4)*16384 + mat*8192}"],
                          mfma=f"v_mfma_f32_32x32x16_bf16 {c}, a[{XN+4*s}:{XN+4*s+3}], a[{{f0}}:{{f3}}], {c if s else 0}")
                if s % 8 == 0 and mat == 0:
                    fr["also"] = [nf]
                    if (ns % 8) // 4 != win:
                        win ^= 1
                        fr["pre"] = [f"v_xor_b32 v{self.AS+k}, 0x10000, v{self.AS+k}" for k in range(8)]
                out.append(fr)
            for k in range(4):
                j, mat = k // 2, k % 2
                a = V_TR + 2 * ((nf % 8) // 4) + j
                off = (nf % 4) * 16384 + mat * 8192 + (s % 4) * 2048
                out.append(dict(stage=nf, mfma=d[4 * s + k]["mfma"], reads=[
                    f"ds_read_b64_tr_b16 a[{{f0}}:{{f1}}], v{a} offset:{off}",
                    f"ds_read_b64_tr_b16 a[{{f2}}:{{f3}}], v{a} offset:{off+512}"]))
        return out

    def build_sd(self):
        p, e, o = self.p, self.p.e, self.opt
        self.JA = V_PRE
        self.prologue()
        e(f"s_cmp_eq_u32 s{S_TYPE}, 2")
        e("s_cbranch_scc1 K1_TYPE_C")
        snap0 = self.snapshot()
        self.AS, self.AX = 204, 216
        accs = (188, 216)
        head = []
        for i in range(5):
            head += [("F", 2 * i, S_D1), ("S", i, 0), ("F", 2 * i + 1, S_D1)]
        self.prologue2("SD", o.get("npre", 2), head)
        self.a_job_setup("AB")
        e(f"s_cmp_eq_u32 s{S_TYPE}, 1")
        e("s_cbranch_scc1 K1_TYPE_B")
        snap = self.snapshot()
        g1, g2 = o.get("lb_issue", 345), o.get("lb_check", 365)
        jf = lambda tmp: self.flag_later(tmp, None, lambda: self.job_store, JF_OFF, S_CG, S_MT)
        for typ in "AB":
            if typ == "B":
                p.label("K1_TYPE_B")
                self.restore(snap)
            m0 = self.mf
            fb = self.fork_job(typ, m0, 16, 40)
            stages = head + ([("F", i, S_D2) for i in range(10)] if typ == "A" else [])
            self.auto = dict(next=o.get("sd_first", 7), stages=stages)
            for n in range(5, self.auto["next"]):
                self.issue_stage(n, *stages[n])
                if n == 5:
                    self.dq.extend(self.job_ld)

            def d0(typ=typ, m0=m0):
                self.stamp(5)
                self.ssm_reduce(0, accs, 48, False, 72)
                tail = []
                if o.get("epi_mid", 1):
                    k = next(i for i, x in enumerate(self.fill) if isinstance(x, tuple) and x[0] == "bar")
                    self.fill, tail = self.fill[:k], self.fill[k:]
                n0 = len(self.fill)
                self.epi_done = False
                self.ffn_epilogue(192, S_KD1, 64)
                self.fill.append(lambda: setattr(self, "epi_done", True))
                cut = n0 + o.get("epi_cut", 42)
                self.fill = self.fill[:cut] + tail + self.fill[cut:]
                if typ == "A":
                    pos = len(self.fill)
                    self.ssm_finish(0, accs, 76, None, lambda: self.mf - m0 >= g2, typ)
                    k = next(i for i in range(pos, len(self.fill)) if isinstance(self.fill[i], tuple))
                    lb, self.fill = self.fill[pos:k], self.fill[:pos] + self.fill[k:]
                    at = max(cut + len(tail), pos - o.get("lb_lead", 84))
                    self.fill = self.fill[:at] + [("t", lambda: self.mf - m0 >= g1)] + lb + self.fill[at:]

            def wstart():
                self.jf_check(60, "A", 240, 4)
                self.wskip = 16
            hooks = {fb: lambda: jf(V_PRE + 5), 60: lambda: self.stamp(4), 234: self.stats_to_lds}
            frags = self.sd_frags(accs)
            if typ == "A":
                j1 = o.get("jf_at", 250)
                hooks.update({241: d0, j1 - 23: lambda: self.jf_load(60), j1: wstart})
                self.gemm(frags + self.d_frags(15, ACC_D2), {}, hooks)
                self.stamp(6)
                self.mf += 1000
                tw = o.get("tail_w", 3)
                self.flush()
                self.ffn_tail(ACC_D2, S_KD2, {(0, 0): lambda: self.w_some(tw), (0, 1): lambda: self.w_some(tw)})
            else:
                self.gemm(frags, {}, hooks)
                self.mf += 1000
                d0()
                self.flush()
                self.fire_timers()
                self.stamp(6)
                self.jf_load(60)
                self.p.e("s_sleep 32")
                self.jf_check(60, "B", 0, 1)
                self.w_some(o.get("b_w", 30))
                self.ssm_finish(0, accs, 76, None, None, "B")
                self.flush()
            self.auto = None
            self.wskip = 0
            self.stamp(7)
            self.phase2_head(8, typ)
        p.label("K1_TYPE_C")
        self.restore(snap0)
        self.AS, self.AX = V_AS, V_AS + 8
        self.is_c = True
        self.prologue2("S", 8)
        self.a_job_setup("C")
        self.path_c(jf, None)
        self.slow_paths()
        self.poll_paths()
        self.phase2()
        p.fix_hazards()
        return p

    def build(self):
        p, e, o = self.p, self.p.e, self.opt
        if o.get("order") == "SD":
            global WMAP
            WMAP = [4 * k for k in range(40)] + [192 + 4 * k for k in range(16)] + [160 + 4 * k for k in range(4)]
            return self.build_sd()
        if o.get("order") == "DSD":
            return self.build_dsd()
        global MIXED
        MIXED = o.get("split") == 4
        if o.get("job_mode") == "dma":
            self.JA = V_PRE
        self.prologue()
        if o.get("job_mode") == "dma":
            self.a_job_setup()
        e(f"s_cmp_eq_u32 s{S_TYPE}, 2")
        e("s_cbranch_scc1 K1_TYPE_C")
        e(f"s_cmp_eq_u32 s{S_TYPE}, 1")
        e("s_cbranch_scc1 K1_TYPE_B")
        snap = self.snapshot()
        g1, g2 = o.get("lb_issue", 200), o.get("lb_check", 225)
        fa = o.get("fork_at", 65)
        late = o.get("job_late")
        pre = bool(o.get("pre", 0))
        split = o.get("split", 0)
        jf = lambda tmp: self.flag_later(tmp, o.get("jf_delay"), lambda: self.job_store, JF_OFF, S_CG, S_MT)
        d1 = lambda tmp, dl: self.flag_later(tmp, dl, lambda t=self.last_store: t, DONE1_OFF, S_MT, S_CG)
        head = [("S", i, 0) for i in range(5)] + [("F", i, S_D1) for i in range(10)]
        for typ in "AB":
            if typ == "B":
                p.label("K1_TYPE_B")
                self.restore(snap)
            m0 = self.mf
            fb = self.fork_job(typ, m0, 188, RAW + 132 if fa >= 65 else 48)

            def a1():
                self.stamp(4)
                if fa == 65:
                    self.stats_to_lds()
                self.ssm_reduce(0, ACC_S, 188, pre)

            def a1b(typ=typ, m0=m0):
                if fa == 65:
                    a1()
                self.q_done = not pre
                if pre:
                    self.ssm_pre(0, ACC_S, ACC_D2)
                self.ssm_finish(0, ACC_S, 188, lambda: self.mf - m0 >= g1, lambda: self.mf - m0 >= g2, typ,
                                ACC_D2 if pre else None)

            def a2():
                while not self.q_done:
                    it = self.fill.pop(0)
                    if not isinstance(it, tuple):
                        it()
                self.stamp(5)
                rest = []
                if split == 4:
                    rest, self.fill = self.fill, []
                self.ffn_epilogue(ACC_D1, S_KD1)
                if split:
                    self.fill.append(lambda: d1(226, o.get("d1_delay")))
                self.fill += rest
            hooks = {fb: lambda a1b=a1b: (jf(224), a1b())}
            if o.get("job_spread"):
                self.JD = 112
                hooks = {fb: lambda: self.job_stores(112, lambda: jf(224)), fb + 1: a1b}
            if fb < 70:
                hooks = {fb: lambda: jf(V_PRE + 5), 81: lambda a1=a1, a1b=a1b: (a1(), a1b()), 70: self.stats_to_lds}
            elif fa != 65:
                hooks[81] = a1
                hooks[70] = self.stats_to_lds
            if late:
                for q5, at in enumerate(late):
                    hooks[at] = self.job_ld[q5]
            frags = self.s_frags(0, ACC_S) + self.d_frags(5, ACC_D1)
            if typ == "A":
                j1 = o.get("jf_at", 240)
                for at, skip, lines in o.get("ct", []):
                    hooks[at] = lambda at=at, skip=skip, lines=lines: self.code_touch(f"A{at}", None, skip, lines, 230)
                if o.get("ct2"):
                    hooks[o["ct2"]] = lambda: self.code_touch("K2", "K2_START", 0, 64, 230)
                hooks.update({240: a2, j1 - 23: lambda: self.jf_load(224), j1 + 1: lambda: self.jf_check(224, "A", 240, 4)})
                self.run(head + [("F", i, S_D2) for i in range(10)], frags + self.d_frags(15, ACC_D2), hooks)
                self.stamp(6)
                if split == 4:
                    self.fire_timers()
                self.flush()
                if o.get("d1_at_end", 1):
                    self.fire_timers()
                if split == 4:
                    self.head_a("A")
                tw = o.get("tail_w", 3)
                self.ffn_tail(ACC_D2, S_KD2, {(0, 0): lambda: self.w_some(tw), (0, 1): lambda: self.w_some(tw),
                                              (1, 0): self.fire_timers,
                                              (1, o.get("early_mid", 0) - 1): lambda: self.h.__setitem__("t_early", self.early_load())})
            else:
                self.run(head, frags, hooks)
                self.stamp(5)
                self.mf += 1000
                self.fire_timers()
                self.flush()
                self.stamp(6)
                self.jf_load(224)
                self.ffn_tail(ACC_D1, S_KD1)
                if split == 4:
                    d1(226, None)
                    self.fire_timers()
                self.jf_check(224, "B", 0, 1)
            self.stamp(7)
            self.phase2_head(8, typ)
        p.label("K1_TYPE_C")
        self.restore(snap)
        self.path_c(jf, d1)
        self.slow_paths()
        self.poll_paths()
        self.phase2()
        p.fix_hazards()
        return p

    def path_c(self, jf, d1):
        p, e, o = self.p, self.p.e, self.opt
        late, split = o.get("job_late"), o.get("split", 0) and not MIXED
        stages = [("S", i % 5, i // 5) for i in range(15)]
        m0 = self.mf
        self.opt = dict(o, fork_at=o.get("fork_at_c", 65), boost=o.get("boost_c", []))
        fb = self.fork_job("C", m0, 112, 144 if o.get("job_spread") else 136)
        self.JD = 124
        if o.get("job_spread"):
            fb0, fb = fb, 81

        def c1():
            self.stamp(4)
            self.stats_to_lds()
            if not o.get("job_spread"):
                jf(168)
            self.ssm_reduce(0, 16, 152)
            for b in (1, 2):
                self.q(*self.ssm_consts(b, V_C + 12 * b + 6, 112))
                self.zero_row(b, 112)

        def c2():
            self.stamp(5)
            self.ssm_reduce(1, 48, 152)
            self.ssm_finish(0, 16, 112, None, lambda: self.mf - m0 >= 215, "C0")
        hooks = {fb: c1, 161: c2, 215: lambda: self.jf_load(168)}
        if o.get("job_spread"):
            hooks[fb0] = lambda: self.job_stores(124, lambda: jf(168))
        if late:
            for q5 in range(5):
                hooks[4 + 10 * q5] = self.job_ld[q5]
        self.run(stages, self.s_frags(0, 16) + self.s_frags(5, 48) + self.s_frags(10, 80), hooks)
        self.stamp(6)
        self.jf_check(168, "C", 0, 1)
        self.mf += 1000
        we = o.get("c_wevery", 16)
        cpk = bool(o.get("c_pk", 0))
        if o.get("c_first"):
            rest, self.fill = self.fill, []
            self.ssm_reduce(2, 80, 152)
            self.fill += rest
        else:
            self.flush(we)
            self.ssm_reduce(2, 80, 152)
        self.ssm_finish(1, 48, 112, None, None, "C1", pk=cpk)
        self.flush(we)
        self.stamp(7)
        if split:
            d1(168, 0)
        self.ssm_finish(2, 80, 112, None, None, "C2", pk=cpk)
        if split:
            self.fill.insert(o.get("c_d1_at", 60), self.fire_timers)
        self.flush(o.get("c_wevery2", 0))
        self.phase2_head(8, "C")


DESC = K1_DESC.replace("proj_kernel", NAME)
```

```python
import struct
from asmlib import Prog, cost_of
from layout import *

S_W, S_MT, S_CG, S_R = 4, 5, 6, 7
SX, SS, SF, SWS, SA1, SA2 = 8, 12, 16, 20, 24, 28
S_T0, S_T1, S_T2, S_T3 = 32, 33, 34, 35
K_X, K_LRE, K_LIM, K_BRE, K_BIM, K_CRE, K_CIM, K_LDT = 36, 38, 40, 42, 44, 46, 48, 50
K_DSK, K_BX, K_WG, K_WU, K_WD, K_OUT, K_DBG, K_WS = 52, 54, 56, 58, 60, 62, 64, 66
S_KS = 68
S_KF = 73
S_W4K, S_XB, S_SB, S_SBROW, S_D1, S_D2, S_TYPE, S_EPOCH, S_MASK = 78, 79, 80, 81, 82, 83, 84, 85, 86
S_A2ROW, S_GK2, S_JOB, S_KD1, S_KD2, S_SPIN, S_J1 = 87, 88, 89, 90, 91, 92, 93
S_J2 = 3
STAMP_REGS = [96, 54, 64, 36, 38, 40, 50, 66, 42, 44, 56, 58, 46]
S_HM = 98
S_M2 = 100

V_LANE, V_OF, V_TR, V_STA, V_GK1, V_SEG, V_PUB, V_XW, V_XR = 1, 2, 6, 10, 11, 12, 13, 14, 15
RAW = 16
ACC_S, ACC_D1, ACC_D2 = 16, 48, 112
V_C = 176
V_OS = 212
V_AS = 216
V_JC = 228
V_JW = 208
V_LBO = 232
V_TW = 234
V_PRE = 237
V_STAMP = 243
V_X = 244
XN = 0
FR = 160

LDS_SCR = 131072
SCR_W = 8192
XCH = LDS_SCR + 6144
STL = LDS_SCR + 3 * SCR_W + 6144
K1_LDS = 163840

LOG2E = 1.4426950408889634
GK1 = -2.0 * 0.7978845608028654 * LOG2E
GK2 = GK1 * 0.044715


def fx(x):
    return "0x%08x" % struct.unpack("<I", struct.pack("<f", x))[0]


def srd(n):
    return f"s[{n}:{n+3}]"


class K1:
    def __init__(self, opt):
        self.opt = opt
        self.p = Prog()
        self.fill = []
        self.dq = []
        self.norm = []
        self.stage_tok = {}
        self.pre_barrier = []
        self.nbar = 0
        self.mf = 0
        self.seen = set()
        self.slow = []
        self.refused = []
        self.after_first_barrier = None
        self.wt = opt.get("wt", " sc1")
        self.name = "proj_kernel"
        self.fused = False
        self.wq = []
        self.last_store = None
        self.vgap = 0
        self.on_barrier = []
        self.timers = []
        self.lazy = []
        self.in_fork = False
        self.norm_every = 1
        self.AS, self.AX = V_AS, V_AS + 8
        self.jit = []
        self.wskip = 0
        self.auto = None
        self.fork = None
        self.vjc = V_JC

    def stamp(self, k, x=False):
        if not self.opt.get("stamp") or (k >= 10 and not x and self.opt.get("xstamps")):
            return
        r = STAMP_REGS[k]
        ins = "s_memrealtime" if self.opt.get("rt") else "s_memtime"
        self.p.e(f"{ins} s[{r}:{r+1}]")
        if self.opt.get("verbose"):
            print("stamp", k, "slots", self.p.slots, "fill left", len(self.fill))

    def stamp_out(self, n):
        if not self.opt.get("stamp"):
            return
        p, e = self.p, self.p.e
        self.stamp(n)
        p.wait_all()
        self.stamp(n + 1)
        e(f"s_memrealtime s[{S_M2}:{S_M2+1}]")
        e(f"s_lshl_b32 s{S_T0}, s2, 2"); e(f"s_add_u32 s{S_T0}, s{S_T0}, s{S_W}")
        e(f"s_lshl_b32 s{S_T0}, s{S_T0}, 6"); e(f"s_add_u32 s{S_T0}, s{S_T0}, {STAMP1_OFF}")
        e("s_waitcnt lgkmcnt(0)")
        for k, r in enumerate(STAMP_REGS[:13]):
            e(f"v_mov_b32 v{V_STAMP}, s{r}")
            e(f"buffer_store_dword v{V_STAMP}, off, {srd(SWS)}, s{S_T0} offset:{4*k}")
        for k, r in ((13, S_SPIN), (14, 94), (15, S_M2)):
            e(f"v_mov_b32 v{V_STAMP}, s{r}")
            e(f"buffer_store_dword v{V_STAMP}, off, {srd(SWS)}, s{S_T0} offset:{4*k}")

    def issue_stage(self, n, kind, i, arg):
        e = self.p.e
        slot = n % 8

        def piece(q):
            if q == 0:
                e(f"s_mov_b32 m0, s{S_J1}" if kind in "WJ" else f"s_add_u32 m0, s{S_W4K}, {slot*16384}")
                if kind == "S":
                    e(f"s_add_u32 s{S_T0}, s{S_SBROW}, s{S_KS+i}")
                    if arg:
                        e(f"s_add_u32 s{S_T0}, s{S_T0}, {arg*32*1280}")
                elif kind == "F":
                    e(f"s_add_u32 s{S_T0}, s{arg}, s{S_KF+(i>>1)}")
                    if i & 1:
                        e(f"s_add_u32 s{S_T0}, s{S_T0}, {64*3456}")
                elif kind == "J":
                    e(f"s_mov_b32 s{S_T0}, s{S_JOB}")
                else:
                    self.job_source(kind, i)
            vo, d, off = {"S": (V_OS + q, SS, q), "F": (V_OF + q, SF, q), "W": (V_JW + q, SA1, q),
                          "C": (self.vjc + q % 2, SA1 if q < 2 else SA2, q % 2),
                          "J": (self.vjc + q % 2, SA1 if q < 2 else SA2, q % 2)}[kind]
            if kind in "CJ" and q == 2:
                e("s_add_u32 m0, m0, 2048")
                if kind == "J":
                    e(f"s_add_u32 s{S_T0}, s{S_T0}, s{S_XB}")
            t = e(f"buffer_load_dwordx4 v{vo}, {srd(d)}, s{S_T0} offen offset:{1024*off}{self.opt.get('nt' + kind, '')} lds")
            if q == 3:
                self.stage_tok[n] = t
        for q in range(4):
            self.dq.append(lambda q=q: piece(q))

    def dma(self):
        if self.dq:
            self.dq.pop(0)()

    def barrier(self, *toks):
        p = self.p
        p.wait(*toks, *self.pre_barrier)
        self.pre_barrier = []
        for it in [x for x in self.lazy if x[0][1] <= p.vdone]:
            self.lazy.remove(it)
            self.on_barrier.append(it[1])
        p.e("s_barrier")
        self.nbar += 1
        cbs, self.on_barrier = self.on_barrier, []
        for f in cbs:
            f()
        if self.after_first_barrier:
            f, self.after_first_barrier = self.after_first_barrier, None
            f()

    def pull(self, budget):
        p = self.p
        start = p.slots
        while self.fill and p.slots - start < budget:
            it = self.fill[0]
            if isinstance(it, tuple):
                if not it[1]():
                    return
                self.fill.pop(0)
                continue
            if p.slots - start + getattr(it, "cost", 1) > budget and not (it in self.refused):
                self.refused.append(it)
                return
            self.fill.pop(0)
            it()

    def flush(self, wevery=0):
        mark = self.p.slots
        while self.fill:
            if wevery and len(self.wq) > self.opt.get("w_keep", 12) and self.p.slots - mark >= wevery:
                self.wq.pop(0)()
                mark = self.p.slots
            it = self.fill.pop(0)
            if isinstance(it, tuple):
                if it[0] == "bar" and not it[1]():
                    self.barrier()
                continue
            it()

    def gemm(self, frags, plan, hooks=None):
        p, o = self.p, self.opt
        LA = 7
        toks = {}
        n = len(frags)
        last = {}
        for i_, fr_ in enumerate(frags):
            last[fr_["stage"]] = i_

        def read(idx):
            fr = frags[idx]
            st = fr["stage"]
            if st not in self.seen:
                grpst = [st] + fr.get("also", [])
                self.seen.update(grpst)
                while any(x not in self.stage_tok for x in grpst):
                    self.dma()
                self.barrier(*[self.stage_tok[x] for x in grpst])
                if self.auto:
                    a = self.auto
                    while a["next"] < len(a["stages"]) and last.get(a["next"] - 8, -99) <= idx - LA:
                        self.issue_stage(a["next"], *a["stages"][a["next"]])
                        a["next"] += 1
                elif st in plan:
                    plan[st]()
            for x in fr.get("pre", []):
                p.e(x)
            r = FR + 4 * (idx % 8)
            for txt in fr["reads"]:
                toks[idx] = p.e(txt.format(f0=r, f1=r + 1, f2=r + 2, f3=r + 3))
        for idx in range(LA):
            read(idx)
        grp = o.get("wgrp", 4)
        def step(idx):
            if hooks and idx in hooks:
                hooks[idx]()
            for tm in [t for t in self.timers if t[0] <= self.mf]:
                self.timers.remove(tm)
                tm[1]()
            if idx in o.get("xstamps", []):
                self.stamp(10 + o["xstamps"].index(idx), True)
            if idx % grp == 0:
                p.wait(toks[min(idx + grp - 1, n - 1)])
            start = p.slots
            r = FR + 4 * (idx % 8)
            p.e(frags[idx]["mfma"].format(f0=r, f3=r + 3))
            self.mf += 1
            if idx + LA < n:
                read(idx + LA)
            dper = o.get("dper", 4)
            if self.dq and (idx % dper == 1 or (len(self.dq) > 4 and idx % 2 == 1)):
                self.dma()
                self.vgap = idx
            elif len(self.wq) > o.get("w_keep", 12) and idx - self.vgap >= (o.get("wpace1", 2) if self.dq else o.get("wpace2", 3)):
                n_w = 60 - len(self.wq)
                if n_w < 16 - self.wskip + (idx + 1 - self.wfrom) // self.wper:
                    self.wq.pop(0)()
                    self.vgap = idx
            if self.jit:
                for _ in range(o.get("jit_rate", 4)):
                    if self.jit:
                        p.e(self.jit.pop(0))
                if self.in_fork:
                    self.pull(o.get("fork_bud", 3))
            elif self.norm and idx % self.norm_every == 0:
                if self.in_fork:
                    self.pull(o.get("fork_bud", 4))
                for x in self.norm.pop(0):
                    p.e(x)
            elif o.get("interleave", 1):
                bud = o.get("budget", 8)
                for lo, hi, v in o.get("boost", []):
                    if lo <= idx < hi:
                        bud = v
                self.pull(bud - (p.slots - start) - (1 if (idx + 1) % grp == 0 else 0))


        idx = 0
        while idx < n:
            if self.fork and idx == self.fork[0]:
                a, b, pre, var1, var2, tag = self.fork
                self.fork = None
                pre()
                assert not self.fill
                snap, tk = self.snapshot(), dict(toks)
                self.in_fork = True
                var1()
                for i in range(a, b):
                    step(i)
                assert not self.fill
                p.e(f"s_branch FORK_JOIN_{tag}")
                end1, tk1 = self.snapshot(), dict(toks)
                p.label(f"FORK_ALT_{tag}")
                self.restore(snap)
                toks.clear(); toks.update(tk)
                var2()
                for i in range(a, b):
                    step(i)
                assert not self.fill
                end2 = self.snapshot()
                assert end1[:5] == end2[:5] and all(tk1[k] == toks[k] for k in toks if k >= b)
                p.label(f"FORK_JOIN_{tag}")
                self.in_fork = False
                idx = b
            else:
                step(idx)
                idx += 1

    def s_frags(self, st0, acc):
        out = []
        for s in range(40):
            st = st0 + s // 8
            slot = st % 8
            for mat in range(2):
                a = V_AS + 8 * (slot // 4) + (s % 8)
                off = (slot % 4) * 16384 + mat * 8192
                c = f"v[{acc+16*mat}:{acc+16*mat+15}]"
                cin = c if s else "0"
                out.append(dict(stage=st, reads=[f"ds_read_b128 a[{{f0}}:{{f3}}], v{a} offset:{off}"],
                                mfma=f"v_mfma_f32_32x32x16_bf16 {c}, a[{XN+4*s}:{XN+4*s+3}], a[{{f0}}:{{f3}}], {cin}"))
        return out

    def d_frags(self, st0, acc, f="v"):
        out = []
        for s in range(40):
            st = st0 + s // 4
            slot = st % 8
            for j in range(2):
                for mat in range(2):
                    a = V_TR + 2 * (slot // 4) + j
                    off = (slot % 4) * 16384 + mat * 8192 + (s % 4) * 2048
                    r = acc + 32 * j + 16 * mat
                    c = f"{f}[{r}:{r+15}]"
                    cin = c if s else "0"
                    out.append(dict(stage=st, reads=[
                        f"ds_read_b64_tr_b16 a[{{f0}}:{{f1}}], v{a} offset:{off}",
                        f"ds_read_b64_tr_b16 a[{{f2}}:{{f3}}], v{a} offset:{off+512}"],
                        mfma=f"v_mfma_f32_32x32x16_bf16 {c}, a[{{f0}}:{{f3}}], a[{XN+4*s}:{XN+4*s+3}], {cin}"))
        return out

    def q(self, *texts):
        for t in texts:
            if isinstance(t, list):
                f = lambda t=t: [self.p.e(x) for x in t]
                f.cost = len(t)
            else:
                f = lambda t=t: self.p.e(t)
                f.cost = cost_of(t)
            self.fill.append(f)

    def lag(self, n):
        st = {}
        self.fill.append(lambda: st.__setitem__("m", self.mf))
        self.fill.append(("t", lambda: self.mf >= st["m"] + n))

    def ffn_tail(self, acc, s_k, mid=None, K=ACC_S):
        e = self.p.e
        T = V_X
        e(f"v_mov_b32 v{K}, v{V_GK1}"); e(f"v_mov_b32 v{K+1}, v{V_GK1}")
        e(f"v_mov_b32 v{K+2}, s{S_GK2}"); e(f"v_mov_b32 v{K+3}, s{S_GK2}")
        e(f"v_mov_b32 v{K+4}, 1.0"); e(f"v_mov_b32 v{K+5}, 1.0")
        for j in range(2):
            g0, u0 = acc + 32 * j, acc + 32 * j + 16
            for half in range(2):
                prs = [(g0 + 8 * half + 2 * k, u0 + 8 * half + 2 * k, K + 6 + 2 * k) for k in range(4)]
                pr = lambda r: f"v[{r}:{r+1}]"
                for g, u, t in prs:
                    e(f"v_pk_mul_f32 {pr(t)}, {pr(g)}, {pr(g)}")
                for g, u, t in prs:
                    e(f"v_pk_fma_f32 {pr(t)}, {pr(t)}, {pr(K+2)}, {pr(K)}")
                for g, u, t in prs:
                    e(f"v_pk_mul_f32 {pr(t)}, {pr(t)}, {pr(g)}")
                for g, u, t in prs:
                    e(f"v_exp_f32 v{t}, v{t}")
                    e(f"v_pk_mul_f32 {pr(u)}, {pr(u)}, {pr(g)}")
                    e(f"v_exp_f32 v{t+1}, v{t+1}")
                for g, u, t in prs:
                    e(f"v_pk_add_f32 {pr(t)}, {pr(t)}, {pr(K+4)}")
                d = T + 4 + 4 * half
                for k, (g, u, t) in enumerate(prs):
                    e(f"v_rcp_f32 v{t}, v{t}")
                    if k:
                        g1, u1, t1 = prs[k - 1]
                        e(f"v_pk_mul_f32 {pr(u1)}, {pr(u1)}, {pr(t1)}")
                    e(f"v_rcp_f32 v{t+1}, v{t+1}")
                    if k:
                        e(f"v_cvt_pk_bf16_f32 v{d+k-1}, v{u1}, v{u1+1}")
                if j == 1 and half == 0:
                    e(f"s_add_u32 s{s_k}, s{s_k}, 4096")
                if mid and (j, half) in mid:
                    mid[j, half]()
                g1, u1, t1 = prs[3]
                e(f"v_pk_mul_f32 {pr(u1)}, {pr(u1)}, {pr(t1)}")
                e(f"v_cvt_pk_bf16_f32 v{d+3}, v{u1}, v{u1+1}")
                self.last_store = e(f"buffer_store_dwordx4 v[{d}:{d+3}], v{V_STA}, {srd(SWS)}, s{s_k} offen offset:{512*half}{self.wt}")

    def ffn_epilogue(self, acc, s_k, via=None):
        T = V_X
        for j in range(2):
            g0, u0 = acc + 32 * j, acc + 32 * j + 16
            for half in range(2):
                for pair in range(4):
                    i = 8 * half + 2 * pair
                    ga, gb, ua, ub = g0 + i, g0 + i + 1, u0 + i, u0 + i + 1
                    ta, tb = T + 2 * (pair % 2), T + 2 * (pair % 2) + 1
                    d = T + 4 + 4 * half + pair
                    if via is not None:
                        x = via + 4 * (pair % 2)
                        self.q(*[f"v_accvgpr_read_b32 v{x+k}, a{r}" for k, r in enumerate((ga, gb, ua, ub))])
                        ga, gb, ua, ub = x, x + 1, x + 2, x + 3
                    self.q(f"v_mul_f32 v{ta}, v{ga}, v{ga}", f"v_mul_f32 v{tb}, v{gb}, v{gb}",
                           f"v_fma_f32 v{ta}, v{ta}, s{S_GK2}, v{V_GK1}", f"v_fma_f32 v{tb}, v{tb}, s{S_GK2}, v{V_GK1}",
                           f"v_mul_f32 v{ta}, v{ta}, v{ga}", f"v_mul_f32 v{tb}, v{tb}, v{gb}",
                           f"v_exp_f32 v{ta}, v{ta}", f"v_exp_f32 v{tb}, v{tb}",
                           f"v_mul_f32 v{ua}, v{ua}, v{ga}", f"v_mul_f32 v{ub}, v{ub}, v{gb}",
                           f"v_add_f32 v{ta}, 1.0, v{ta}", f"v_add_f32 v{tb}, 1.0, v{tb}",
                           f"v_rcp_f32 v{ta}, v{ta}", f"v_rcp_f32 v{tb}, v{tb}",
                           f"v_mul_f32 v{ua}, v{ua}, v{ta}", f"v_mul_f32 v{ub}, v{ub}, v{tb}",
                           f"v_cvt_pk_bf16_f32 v{d}, v{ua}, v{ub}")
                d = T + 4 + 4 * half
                if j == 1 and half == 0:
                    self.q(f"s_add_u32 s{s_k}, s{s_k}, 4096")
                f = lambda d=d, half=half: setattr(self, "last_store", self.p.e(
                    f"buffer_store_dwordx4 v[{d}:{d+3}], v{V_STA}, {srd(SWS)}, s{s_k} offen offset:{512*half}{self.wt}"))
                f.cost = 2
                self.fill.append(f)

    @staticmethod
    def cmul(dr, di, ar, ai, br, bi):
        return [f"v_mul_f32 v{dr}, v{ar}, v{br}", f"v_mul_f32 v{di}, v{ar}, v{bi}",
                f"v_fma_f32 v{dr}, -v{ai}, v{bi}, v{dr}", f"v_fma_f32 v{di}, v{ai}, v{br}, v{di}"]

    def ssm_consts(self, b, praw, u):
        c = V_C + 12 * b
        lr, li, dt = praw, praw + 1, praw + 2
        L = [f"v_lshlrev_b32 v{lr}, 16, v{lr}", f"v_lshlrev_b32 v{li}, 16, v{li}", f"v_lshlrev_b32 v{dt}, 16, v{dt}",
             f"v_mul_f32 v{dt}, {fx(LOG2E)}, v{dt}", f"v_exp_f32 v{dt}, v{dt}",
             f"v_cvt_pk_bf16_f32 v{dt}, v{dt}, v{dt}", f"v_lshlrev_b32 v{dt}, 16, v{dt}",
             f"v_mul_f32 v{u}, v{dt}, v{lr}", f"v_mul_f32 v{u+1}, v{dt}, v{li}",
             f"v_mul_f32 v{u}, {fx(LOG2E)}, v{u}", f"v_mul_f32 v{u+1}, 0.15915494, v{u+1}",
             f"v_exp_f32 v{u}, v{u}", f"v_fract_f32 v{u+1}, v{u+1}",
             f"v_cos_f32 v{u+2}, v{u+1}", f"v_sin_f32 v{u+3}, v{u+1}",
             f"v_mul_f32 v{c}, v{u}, v{u+2}", f"v_mul_f32 v{c+1}, v{u}, v{u+3}",
             f"v_add_f32 v{u}, -1.0, v{c}",
             f"v_mul_f32 v{u+1}, v{lr}, v{lr}", f"v_fma_f32 v{u+1}, v{li}, v{li}, v{u+1}",
             f"v_rcp_f32 v{u+1}, v{u+1}",
             f"v_mul_f32 v{u+2}, v{u}, v{lr}", f"v_fma_f32 v{u+2}, v{c+1}, v{li}, v{u+2}",
             f"v_mul_f32 v{u+3}, v{c+1}, v{lr}", f"v_fma_f32 v{u+3}, -v{u}, v{li}, v{u+3}",
             f"v_add_f32 v{u+1}, v{u+1}, v{u+1}",
             f"v_mul_f32 v{c+2}, v{u+2}, v{u+1}", f"v_mul_f32 v{c+3}, v{u+3}, v{u+1}"]
        L += self.cmul(u, u + 1, c, c + 1, c, c + 1)
        L += self.cmul(u + 2, u + 3, u, u + 1, u, u + 1)
        L += self.cmul(u, u + 1, u + 2, u + 3, u + 2, u + 3)
        L += self.cmul(c + 4, c + 5, u, u + 1, u, u + 1)
        L += self.cmul(u, u + 1, c + 4, c + 5, c + 4, c + 5)
        L += self.cmul(u + 2, u + 3, u, u + 1, u, u + 1)
        L += self.cmul(c + 8, c + 9, u + 2, u + 3, u + 2, u + 3)
        L += self.cmul(c + 10, c + 11, c + 8, c + 9, c + 8, c + 9)
        hm, m2 = f"s[{S_HM}:{S_HM+1}]", f"s[{S_M2}:{S_M2+1}]"
        L += [f"v_cndmask_b32 v{u+4}, 1.0, v{c+4}, {hm}", f"v_cndmask_b32 v{u+5}, 0, v{c+5}, {hm}",
              [f"s_bitcmp1_b32 s{S_W}, 0", f"s_cselect_b64 {m2}, -1, 0"],
              f"v_cndmask_b32 v{u}, 1.0, v{u}, {m2}", f"v_cndmask_b32 v{u+1}, 0, v{u+1}, {m2}"]
        L += self.cmul(u + 6, u + 7, u + 4, u + 5, u, u + 1)
        L += [[f"s_bitcmp1_b32 s{S_W}, 1", f"s_cselect_b64 {m2}, -1, 0"],
              f"v_cndmask_b32 v{u+2}, 1.0, v{u+2}, {m2}", f"v_cndmask_b32 v{u+3}, 0, v{u+3}, {m2}"]
        L += self.cmul(c + 6, c + 7, u + 6, u + 7, u + 2, u + 3)
        return L

    def ex_base(self, sreg, b):
        return [f"s_add_u32 s{sreg}, s{S_SB}, {b}", f"s_mul_i32 s{sreg}, s{sreg}, {EX_BLK}",
                f"s_add_u32 s{sreg}, s{sreg}, {EX_OFF}"]

    def ssm_reduce(self, b, acc, X, keep=False, T=V_X):
        p = self.p
        c = V_C + 12 * b
        re, im = acc if isinstance(acc, tuple) else (acc, acc + 16)
        cur = (re, im)
        if b == 0 and not self.fused:
            self.q(f"v_mov_b32 v{T+4}, 0", f"v_min_u32 v{T+5}, 6, v{V_SEG}", f"v_sub_u32 v{T+5}, v{T+5}, v{V_SEG}",
                   f"v_lshl_add_u32 v{T+5}, v{T+5}, 3, v{V_XR}", f"ds_write2_b32 v{T+5}, v{T+4}, v{T+4} offset1:1")
        for t in range(1, 16):
            d = (re + t, im + t) if keep else ((T, T + 1) if t % 2 else (T + 2, T + 3))
            self.q(f"v_fma_f32 v{d[0]}, -v{c+1}, v{cur[1]}, v{re+t}", f"v_fma_f32 v{d[1]}, v{c+1}, v{cur[0]}, v{im+t}",
                   f"v_fma_f32 v{d[0]}, v{c}, v{cur[0]}, v{d[0]}", f"v_fma_f32 v{d[1]}, v{c}, v{cur[1]}, v{d[1]}")
            cur = d
        hr, hi = cur
        st = {}

        def wr():
            st["wr"] = p.e(f"ds_write2_b32 v{V_XR}, v{hr}, v{hi} offset0:14 offset1:15")
        self.fill.append(wr)
        self.lag(self.opt.get("xlag", 3))

        def arm():
            self.pre_barrier.append(st["wr"])
            st["bar"] = self.nbar
        self.fill.append(arm)
        self.fill.append(("bar", lambda: self.nbar > st["bar"]))
        E = X
        pr, pi = V_PRE + 2 * b, V_PRE + 2 * b + 1

        def rd():
            for k in range(3):
                p.e(f"ds_read2_b64 v[{E+4*k}:{E+4*k+3}], v{V_XR} offset0:{2*k} offset1:{2*k+1}")
            st["t"] = p.e(f"ds_read_b64 v[{E+12}:{E+13}], v{V_XR} offset:48")
        rd.cost = 4
        self.fill.append(rd)
        g = T + 4
        self.q(f"v_mov_b32 v{g+1}, s{S_EPOCH}", f"v_mov_b32 v{g+3}, s{S_EPOCH}", *self.ex_base(S_T2, b))
        self.lag(4)
        self.fill.append(lambda: p.wait(st["t"]))
        cur = (E, E + 1)
        for j in range(1, 7):
            er, ei = E + 2 * j, E + 2 * j + 1
            d = (pr, pi) if j == 6 else (er, ei)
            self.q(f"v_fma_f32 v{er}, -v{c+5}, v{cur[1]}, v{er}", f"v_fma_f32 v{ei}, v{c+5}, v{cur[0]}, v{ei}",
                   f"v_fma_f32 v{d[0]}, v{c+4}, v{cur[0]}, v{er}", f"v_fma_f32 v{d[1]}, v{c+4}, v{cur[1]}, v{ei}")
            cur = d
        self.q(f"v_fma_f32 v{g}, -v{c+5}, v{pi}, v{hr}", f"v_fma_f32 v{g+2}, v{c+5}, v{pr}, v{hi}",
               f"v_fma_f32 v{g}, v{c+4}, v{pr}, v{g}", f"v_fma_f32 v{g+2}, v{c+4}, v{pi}, v{g+2}",
               f"buffer_store_dwordx4 v[{g}:{g+3}], v{V_PUB}, {srd(SWS)}, s{S_T2} offen sc1")

    def ssm_pre(self, b, acc, Q):
        c = V_C + 12 * b
        T = V_X
        re, im = acc if isinstance(acc, tuple) else (acc, acc + 16)
        self.q(*self.cmul(Q, Q + 16, c + 2, c + 3, c, c + 1))
        for t in range(16):
            o = T + 2 * (t % 2)
            self.q(f"v_mul_f32 v{o}, v{c+3}, v{im+t}", f"v_mul_f32 v{o+1}, v{c+3}, v{re+t}",
                   f"v_fma_f32 v{re+t}, v{c+2}, v{re+t}, -v{o}", f"v_fma_f32 v{im+t}, v{c+2}, v{im+t}, v{o+1}")
            if t < 15:
                self.q(*self.cmul(Q + t + 1, Q + 17 + t, Q + t, Q + 16 + t, c, c + 1))

    def lb_issue(self, i, LB, A):
        p = self.p
        p.e(f"v_add_u32 v{A}, {-1024*i & 0xffffffff:#x}, v{V_LBO}" if i else f"v_mov_b32 v{A}, v{V_LBO}")
        p.e(f"v_max_i32 v{A}, v{A}, v{V_LBO+1}")
        if self.opt.get("dbg_nolb"):
            p.e(f"v_mov_b32 v{A}, v{V_LBO+1}")
        return p.e(f"buffer_load_dwordx4 v[{LB+4*i}:{LB+4*i+3}], v{A}, {srd(SWS)}, s{S_T3} offen sc1")

    def lb_mix(self, LB, A):
        L = [f"v_mov_b32 v{A+1}, s{S_EPOCH}"]
        for i in range(8):
            d = A if i == 0 else A + 2 + i % 2
            L.append(f"v_bitop3_b32 v{d}, v{LB+4*i+1}, v{LB+4*i+3}, v{A+1} bitop3:0x7e")
            if i and i % 2 == 0:
                L.append(f"v_or3_b32 v{A}, v{A}, v{A+2}, v{A+3}")
        L.append(f"v_or_b32 v{A}, v{A}, v{A+3}")
        return L

    def lb_check(self, LB, A, tag):
        p = self.p
        for x in self.lb_mix(LB, A):
            p.e(x)
        p.e(f"v_cmp_ne_u32 vcc, 0, v{A}")
        p.e(f"s_cbranch_vccnz LB_SLOW_{tag}")

    def ssm_finish(self, b, acc, LB, gate_issue, gate_check, tag, Q=None, between=None, pk=False):
        p = self.p
        c = V_C + 12 * b
        PRE = V_PRE + 2 * b
        st = {}
        if gate_issue is not None:
            self.fill.append(("t", gate_issue))
        A = LB + 32
        self.q(*self.ex_base(S_T3, b), f"s_mov_b32 s{S_SPIN}, 0")
        for i in range(8):
            def f(i=i):
                st["t"] = self.lb_issue(i, LB, A)
            self.fill.append(f)
        if between:
            between()
        if gate_check is not None:
            self.fill.append(("t", gate_check))

        self.fill.append(lambda: p.wait(st["t"]))
        self.q(*self.lb_mix(LB, A))

        def check():
            p.e(f"v_cmp_ne_u32 vcc, 0, v{A}")
            p.e(f"s_cbranch_vccnz LB_SLOW_{tag}")
            p.label(f"LB_OK_{tag}")
            self.slow.append((tag, LB, A))
        self.fill.append(check)
        pr, pi = A, A + 1
        self.q(f"v_mov_b32 v{pr}, v{LB+28}", f"v_mov_b32 v{pi}, v{LB+30}")
        for i in range(6, -1, -1):
            er, ei = LB + 4 * i, LB + 4 * i + 2
            self.q(f"v_fma_f32 v{er}, -v{c+11}, v{pi}, v{er}", f"v_fma_f32 v{ei}, v{c+11}, v{pr}, v{ei}",
                   f"v_fma_f32 v{pr}, v{c+10}, v{pr}, v{er}", f"v_fma_f32 v{pi}, v{c+10}, v{pi}, v{ei}")
        r0, i0, r1, i1 = LB, LB + 1, LB + 2, LB + 3
        self.q(f"v_mov_b32 v{r0}, v{pr}", f"v_mov_b32 v{r1}, v{pr}", f"v_mov_b32 v{i0}, v{pi}", f"v_mov_b32 v{i1}, v{pi}",
               f"v_permlane32_swap_b32 v{r0}, v{r1}", f"v_permlane32_swap_b32 v{i0}, v{i1}",
               f"v_fma_f32 v{r0}, -v{c+9}, v{i1}, v{r0}", f"v_fma_f32 v{i0}, v{c+9}, v{r1}, v{i0}",
               f"v_fma_f32 v{r0}, v{c+8}, v{r1}, v{r0}", f"v_fma_f32 v{i0}, v{c+8}, v{i1}, v{i0}",
               f"v_fma_f32 v{PRE}, -v{c+7}, v{i0}, v{PRE}", f"v_fma_f32 v{PRE+1}, v{c+7}, v{r0}, v{PRE+1}",
               f"v_fma_f32 v{PRE}, v{c+6}, v{r0}, v{PRE}", f"v_fma_f32 v{PRE+1}, v{c+6}, v{i0}, v{PRE+1}")
        re, im = acc if isinstance(acc, tuple) else (acc, acc + 16)
        cur = (PRE, PRE + 1)
        for t in range(16):
            o = LB + 4 + 4 * (t % 2)
            if Q is not None:
                qr, qi = Q + t, Q + 16 + t
                self.q(f"v_fma_f32 v{re+t}, v{qr}, v{PRE}, v{re+t}", f"v_fma_f32 v{im+t}, v{qr}, v{PRE+1}, v{im+t}",
                       f"v_fma_f32 v{re+t}, -v{qi}, v{PRE+1}, v{re+t}", f"v_fma_f32 v{im+t}, v{qi}, v{PRE}, v{im+t}",
                       f"v_cvt_pk_bf16_f32 v{o+2}, v{re+t}, -v{im+t}")
                if t == 15:
                    self.fill.append(lambda: setattr(self, "q_done", True))
            else:
                self.q(f"v_fma_f32 v{re+t}, -v{c+1}, v{cur[1]}, v{re+t}", f"v_fma_f32 v{im+t}, v{c+1}, v{cur[0]}, v{im+t}",
                       f"v_fma_f32 v{re+t}, v{c}, v{cur[0]}, v{re+t}", f"v_fma_f32 v{im+t}, v{c}, v{cur[1]}, v{im+t}")
                cur = (re + t, im + t)
                if pk:
                    if t % 2 == 0:
                        continue
                    a, b2, sc = LB + 4, LB + 6, f"v[{c+2}:{c+3}]"
                    rp, ip = f"v[{re+t-1}:{re+t}]", f"v[{im+t-1}:{im+t}]"
                    self.q(f"v_pk_mul_f32 v[{a}:{a+1}], {ip}, {sc} op_sel:[0,1] op_sel_hi:[1,1]",
                           f"v_pk_mul_f32 v[{b2}:{b2+1}], {rp}, {sc} op_sel:[0,1] op_sel_hi:[1,1]",
                           f"v_pk_fma_f32 v[{a}:{a+1}], {rp}, {sc}, v[{a}:{a+1}] op_sel_hi:[1,0,1] neg_lo:[0,0,1] neg_hi:[0,0,1]",
                           f"v_pk_fma_f32 v[{b2}:{b2+1}], {ip}, {sc}, v[{b2}:{b2+1}] op_sel_hi:[1,0,1]",
                           f"v_cvt_pk_bf16_f32 v{LB+8}, v{a}, -v{b2}", f"v_cvt_pk_bf16_f32 v{o+2}, v{a+1}, -v{b2+1}",
                           f"ds_write_b32 v{V_TW}, v{LB+8} offset:{144*(t-1)}")
                else:
                    self.q(f"v_mul_f32 v{o}, v{c+2}, v{re+t}", f"v_mul_f32 v{o+1}, v{c+2}, v{im+t}",
                           f"v_fma_f32 v{o}, -v{c+3}, v{im+t}, v{o}", f"v_fma_f32 v{o+1}, v{c+3}, v{re+t}, v{o+1}",
                           f"v_cvt_pk_bf16_f32 v{o+2}, v{o}, -v{o+1}")

            def w(t=t, o=o):
                st["w"] = p.e(f"ds_write_b32 v{V_TW}, v{o+2} offset:{144*t}")
            self.fill.append(w)
        O = LB + 12
        self.lag(4)

        def rd():
            p.wait(st["w"])
            st["r"] = [p.e(f"ds_read_b128 v[{O+4*f}:{O+4*f+3}], v{V_TW+1} offset:{(f>>1)*2304 + (f&1)*64}")
                       for f in range(4)]
        self.fill.append(rd)
        self.q(f"s_add_u32 s{S_T3}, s{S_SB}, {b}", f"s_lshl_b32 s{S_T3}, s{S_T3}, 13",
               f"s_add_u32 s{S_T3}, s{S_T3}, s{S_A2ROW}", f"s_add_u32 s{S_T3}, s{S_T3}, {54*4096}",
               f"s_add_u32 s{S_T2}, s{S_T3}, 4096")
        self.lag(5)
        for f in range(4):
            def stf(f=f):
                p.wait(st["r"][f])
                so = S_T2 if f & 1 else S_T3
                self.last_store = p.e(f"buffer_store_dwordx4 v[{O+4*f}:{O+4*f+3}], v{V_TW+2}, {srd(SWS)}, s{so} offen offset:{1024*(f>>1)}{self.wt}")
            self.fill.append(stf)
            if f < 3 and self.opt.get("st_lag"):
                self.lag(self.opt["st_lag"])

    def slow_paths(self):
        p = self.p
        for tag, LB, A in self.slow:
            p.label(f"LB_SLOW_{tag}")
            p.e("s_sleep 2")
            p.e(f"s_add_u32 s{S_SPIN}, s{S_SPIN}, 1")
            p.e(f"s_cmp_gt_u32 s{S_SPIN}, 100000")
            p.e(f"s_cbranch_scc1 LB_OK_{tag}")
            for i in range(8):
                self.lb_issue(i, LB, A)
            p.e("s_waitcnt vmcnt(0)")
            self.lb_check(LB, A, tag)
            p.e(f"s_branch LB_OK_{tag}")

    def mk_srd(self, d, ptr, nbytes):
        return [f"s_mov_b32 s{d}, s{ptr}", f"s_mov_b32 s{d+1}, s{ptr+1}",
                f"s_mov_b32 s{d+2}, {nbytes}", f"s_mov_b32 s{d+3}, 0x20000"]

    def prologue(self):
        p, e, q, o = self.p, self.p.e, self.q, self.opt
        hm = f"s[{S_HM}:{S_HM+1}]"
        p.raw(".p2align 8")
        p.label(self.name)
        e("s_cmp_ge_u32 s2, 256")
        e("s_cbranch_scc1 K1_END")
        if o.get("badmap"):
            e("s_lshr_b32 s3, s2, 5")
            e("s_and_b32 s2, s2, 31")
            e("s_lshl_b32 s2, s2, 3")
            e("s_or_b32 s2, s2, s3")
        if o.get("stamp"):
            e("s_memrealtime s[94:95]")
            self.stamp(0)
        e("s_load_dwordx16 s[36:51], s[0:1], 0")
        e("s_load_dwordx16 s[52:67], s[0:1], 64")
        e(f"s_getpc_b64 s[{S_T0}:{S_T1}]")
        p.label("K1_PC")
        e("v_lshrrev_b32 v2, 6, v0")
        e(f"v_and_b32 v{V_LANE}, 63, v0")
        e(f"v_readfirstlane_b32 s{S_W}, v2")
        e("s_lshr_b32 s3, s2, 3")
        e(f"s_lshl_b32 s{S_T2}, s3, 2")
        e(f"s_add_u32 s{S_T2}, s{S_T2}, s{S_W}")
        e(f"s_mul_i32 s{S_T2}, s{S_T2}, 768")
        e(f"v_lshlrev_b32 v2, 7, v{V_LANE}")
        e(f"v_add_u32 v2, s{S_T2}, v2")
        e("v_min_u32 v2, TEXT_END-K1_PC-4, v2")
        e(f"s_mov_b64 exec, {o.get('cp_mask', 63)}")
        e(f"global_load_dword v{V_PRE+5}, v2, s[{S_T0}:{S_T1}]")
        e("s_mov_b64 exec, -1")
        if o.get("cp_near"):
            e(f"v_lshlrev_b32 v2, 7, v0")
            e(f"v_and_b32 v2, {o['cp_near']*128 - 1:#x}, v2")
            e(f"s_mov_b64 exec, {(1 << min(16, o['cp_near'] // 4)) - 1}")
            e(f"v_lshlrev_b32 v3, 7, v{V_LANE}")
            e(f"s_mul_i32 s{S_T2}, s{S_W}, {o['cp_near'] // 4 * 128}")
            e(f"v_add_u32 v3, s{S_T2}, v3")
            e(f"global_load_dword v{V_PRE+4}, v3, s[{S_T0}:{S_T1}]")
            e("s_mov_b64 exec, -1")
        e(f"s_and_b32 s{S_T2}, s2, 7")
        e(f"s_lshr_b32 s{S_MT}, s{S_T2}, 1")
        e(f"s_lshl_b32 s{S_MT}, s{S_MT}, 2")
        e(f"s_and_b32 s{S_T3}, s3, 3")
        e(f"s_add_u32 s{S_MT}, s{S_MT}, s{S_T3}")
        e(f"s_and_b32 s{S_CG}, s{S_T2}, 1")
        e(f"s_lshl_b32 s{S_CG}, s{S_CG}, 3")
        e("s_lshr_b32 s3, s3, 2")
        e(f"s_add_u32 s{S_CG}, s{S_CG}, s3")
        e(f"s_add_u32 s{S_R}, s3, s{S_T3}")
        if o.get("rot_x"):
            e(f"s_lshr_b32 s{S_T2}, s{S_MT}, 2")
            e(f"s_add_u32 s{S_R}, s{S_R}, s{S_T2}")
        for _ in range(3 if o.get("rot_x") else 2):
            e(f"s_sub_u32 s{S_T2}, s{S_R}, 5")
            e(f"s_cmp_ge_u32 s{S_R}, 5")
            e(f"s_cselect_b32 s{S_R}, s{S_T2}, s{S_R}")
        if o.get("norot"):
            e(f"s_mov_b32 s{S_R}, 0")
        e(f"s_lshl_b32 s{S_KS}, s{S_R}, 8")
        for i in range(1, 5):
            e(f"s_add_u32 s{S_KS+i}, s{S_KS+i-1}, 256")
            e(f"s_cmp_eq_u32 s{S_KS+i}, 1280")
            e(f"s_cselect_b32 s{S_KS+i}, 0, s{S_KS+i}")
        e(f"s_lshl_b32 s{S_W4K}, s{S_W}, 12")
        e(f"s_lshl_b32 s{S_XB}, s{S_MT}, 2")
        e(f"s_add_u32 s{S_XB}, s{S_XB}, s{S_W}")
        e(f"s_mul_i32 s{S_XB}, s{S_XB}, {32*1280}")
        a, xr = V_X + 4, V_X + 5
        e(f"v_lshrrev_b32 v{a}, 4, v{V_LANE}")
        e(f"v_and_b32 v{xr}, 15, v{V_LANE}")
        e(f"v_xor_b32 v{xr}, v{xr}, v{a}")
        e(f"v_lshlrev_b32 v{xr}, 4, v{xr}")
        e(f"v_mul_u32_u24 v{a}, 1280, v{a}")
        for k in range(4):
            e(f"v_xor_b32 v{V_OS+k}, {64*k}, v{xr}")
            e(f"v_add_u32 v{V_OS+k}, v{V_OS+k}, v{a}")
            e(f"v_add_u32 v{V_X+k}, {(16*(k&1) + 4*(k>>1))*1280 - 1024*k}, v{V_OS+k}")
        e(f"s_cmp_ge_u32 s{S_CG}, 8")
        e(f"s_cselect_b32 s{S_T2}, 1, 0")
        e(f"s_sub_u32 s{S_SB}, s{S_CG}, s{S_T2}")
        e(f"s_lshl_b32 s{S_D1}, s{S_SB}, 1")
        e(f"s_mov_b32 s{S_TYPE}, 0")
        e(f"s_cmp_eq_u32 s{S_CG}, 14")
        e(f"s_cselect_b32 s{S_TYPE}, 1, s{S_TYPE}")
        e(f"s_cmp_eq_u32 s{S_CG}, 7")
        e(f"s_cselect_b32 s{S_TYPE}, 2, s{S_TYPE}")
        e(f"s_cselect_b32 s{S_SB}, 14, s{S_SB}")
        e(f"s_cmp_eq_u32 s{S_CG}, 15")
        e(f"s_cselect_b32 s{S_TYPE}, 2, s{S_TYPE}")
        e(f"s_cselect_b32 s{S_SB}, 17, s{S_SB}")
        e(f"v_and_b32 v{V_SEG}, 31, v{V_LANE}")
        e(f"s_lshl_b32 s{S_T2}, s{S_SB}, 6")
        e(f"v_lshl_add_u32 v{V_PUB}, v{V_SEG}, 1, s{S_T2}")
        e(f"v_min_u32 v{V_XR}, {1278 - 128}, v{V_PUB}")
        e(f"v_mov_b32 v{V_XW}, {EPOCH_OFF}")
        e(f"s_lshl_b32 s{S_J1}, s{S_W}, 13")
        e(f"s_add_u32 s{S_J1}, s{S_J1}, {LDS_SCR}")
        e("s_waitcnt lgkmcnt(0)")
        for x in self.mk_srd(SX, K_X, X_BYTES):
            e(x)
        xt = {}
        cnt = {"n": 0}

        def x_piece(i, u):
            if u % 4 == 0:
                hh = u // 4
                if i < 4:
                    e(f"s_add_u32 m0, s{S_W4K}, {(i + 4*hh)*16384}")
                elif hh:
                    e(f"s_add_u32 m0, s{S_J1}, 4096")
                else:
                    e(f"s_mov_b32 m0, s{S_J1}")
                e(f"s_add_u32 s{S_T0}, s{S_XB}, s{S_KS+i}")
                if hh:
                    e(f"s_add_u32 s{S_T0}, s{S_T0}, 10240")
            xt[i, u] = e(f"buffer_load_dwordx4 v{V_X+u%4}, {srd(SX)}, s{S_T0} offen offset:{1024*(u%4)}{o.get('ntx', '')} lds")
            cnt["n"] += 1
        xq = [(i, u) for i in range(5) for u in range(8)]
        for _ in range(o.get("x_first", 4)):
            x_piece(*xq.pop(0))
        if o.get("ws_base"):
            e(f"s_add_u32 s{K_WS}, s{K_WS}, {o['ws_base']}")
            e(f"s_addc_u32 s{K_WS+1}, s{K_WS+1}, 0")
        for x in self.mk_srd(SWS, K_WS, WS_USED):
            e(x)
        EP = V_PRE + 4
        e(f"s_mov_b32 s{S_T2}, 0" if self.fused else f"s_lshl_b32 s{S_T2}, s{S_CG}, 7")
        e(f"buffer_load_dword v{EP}, v{V_XW}, {srd(SWS)}, s{S_T2} offen sc1")
        t_par = None
        for b in range(1 if o.get("order") == "SD" else 3):
            for k, ptr in enumerate((K_LRE, K_LIM, K_LDT)):
                va = V_XR if b else V_PUB
                t_par = e(f"global_load_ushort v{V_C+12*b+6+k}, v{va}, s[{ptr}:{ptr+1}] offset:{64*b}")
        if self.fused:
            for _ in range(o.get("job_after", 4)):
                x_piece(*xq.pop(0))
            if o.get("job_dq") != 2 and o.get("job_mode") != "dma":
                self.a_job_setup()
        if o.get("wpre", 1) >= 2:
            n2 = o.get("wpre_after", 0)
            for _ in range(n2):
                x_piece(*xq.pop(0))
            self.w_prefetch_early()
        for _ in range(o.get("x_second", 4) - o.get("wpre_after", 0) - (o.get("job_after", 4) if self.fused else 0)):
            x_piece(*xq.pop(0))
        if o.get("touch", 1) == 2:
            e(f"s_cmp_lg_u32 s{S_W}, 3")
            e("s_cbranch_scc1 K1_NOTOUCH")
            e(f"s_lshl_b32 s{S_T2}, s2, 7")
            e(f"s_add_u32 s{S_T3}, s{S_T2}, {1 << 21}")
            for ptr, both in ((K_BRE, 0), (K_BIM, 0), (K_WG, 1), (K_WU, 1), (K_WD, 1), (K_CRE, 0), (K_CIM, 0), (K_OUT, 1)):
                e(f"s_load_dword s95, s[{ptr}:{ptr+1}], s{S_T2}")
                if both:
                    e(f"s_load_dword s95, s[{ptr}:{ptr+1}], s{S_T3}")
            p.label("K1_NOTOUCH")
            e(f"s_cmp_lg_u32 s{S_W}, 2")
            e("s_cbranch_scc1 K1_NOTOUCH2")
            e(f"s_lshl_b32 s{S_T2}, s2, 7")
            for pg in range(12):
                e(f"s_load_dword s95, s[{K_WS}:{K_WS+1}], s{S_T2}")
                e(f"s_add_u32 s{S_T2}, s{S_T2}, {1 << 21}")
            e(f"s_load_dword s95, s[{K_DSK}:{K_DSK+1}], 0")
            e(f"s_mov_b32 s{S_T2}, {1 << 22}")
            e(f"s_load_dword s95, s[{K_OUT}:{K_OUT+1}], s{S_T2}")
            p.label("K1_NOTOUCH2")
        if o.get("touch", 1) == 1:
            for ptr, offs in ((K_BRE, [0]), (K_BIM, [0]), (K_WG, [0, 1 << 21]), (K_WU, [0, 1 << 21]), (K_WD, [0, 1 << 21]),
                              (K_CRE, [0]), (K_CIM, [0]), (K_X, [1 << 21])):
                for off in offs:
                    if off:
                        e(f"s_mov_b32 s{S_T2}, {off}")
                    e(f"s_load_dword s95, s[{ptr}:{ptr+1}], " + (f"s{S_T2}" if off else "0"))
        self.stamp(1)
        self.pro = dict(xq=xq, xt=xt, cnt=cnt, x_piece=x_piece, t_par=t_par, EP=EP)
        if o.get("order") not in ("DSD", "SD"):
            self.prologue2("S", o.get("npre", 8))

    def prologue2(self, kind, npre, stages=None):
        p, e, q, o = self.p, self.p.e, self.q, self.opt
        hm = f"s[{S_HM}:{S_HM+1}]"
        xq, xt, cnt = list(self.pro["xq"]), self.pro["xt"], self.pro["cnt"]
        x_piece, t_par, EP = self.pro["x_piece"], self.pro["t_par"], self.pro["EP"]
        cnt["n"] = 40 - len(xq)
        arg = 0 if kind == "S" else S_D1
        first = stages or [(kind, i, arg) for i in range(5)]
        if o.get("order") == "SD" and kind == "S":
            for b in (1, 2):
                for k, ptr in enumerate((K_LRE, K_LIM, K_LDT)):
                    t_par = e(f"global_load_ushort v{V_C+12*b+6+k}, v{V_XR}, s[{ptr}:{ptr+1}] offset:{64*b}")
        for k in range(1, 4):
            q(f"v_add_u32 v{V_OS+k}, {4*k*1280 - 1024*k}, v{V_OS+k}")
        h, c, t0, t1 = V_X + 4, V_SEG, V_X + 5, V_X + 6
        q(f"s_mov_b32 s{S_HM}, 0", f"s_mov_b32 s{S_HM+1}, -1", f"s_mov_b32 s{S_MASK}, 0xffff0000",
          f"v_lshrrev_b32 v{h}, 5, v{V_LANE}")
        q(f"v_and_b32 v{t0}, 15, v{V_LANE}", f"v_xor_b32 v{t1}, v{t0}, v{h}", f"v_lshlrev_b32 v{t1}, 4, v{t1}",
          f"v_lshl_add_u32 v{t1}, v{t0}, 8, v{t1}", f"v_bfe_u32 v{t0}, v{V_LANE}, 4, 1",
          f"v_lshlrev_b32 v{V_X+8}, 16, v{t0}", f"v_add_u32 v{V_X+8}, s{S_W4K}, v{V_X+8}",
          f"v_lshlrev_b32 v{t0}, 12, v{t0}")
        for s in range(8):
            q(f"v_xor_b32 v{self.AS+s}, {32*s}, v{t1}", f"v_add_u32 v{self.AX+s}, v{self.AS+s}, v{V_X+8}",
              f"v_add_u32 v{self.AS+s}, v{self.AS+s}, v{t0}")
        sm, sq = V_PRE, V_PRE + 1
        q(f"v_mov_b32 v{sm}, 0", f"v_mov_b32 v{sq}, 0", f"s_mov_b32 s{S_SPIN}, 0x3f803f80")
        q([f"s_cmp_ge_u32 s{S_W}, 2",
           f"s_cselect_b32 s{SS}, s{K_BIM}, s{K_BRE}", f"s_cselect_b32 s{SS+1}, s{K_BIM+1}, s{K_BRE+1}",
           f"s_cselect_b32 s{SF}, s{K_WU}, s{K_WG}", f"s_cselect_b32 s{SF+1}, s{K_WU+1}, s{K_WG+1}"],
          f"s_mov_b32 s{SS+2}, {SQ_BYTES}", f"s_mov_b32 s{SS+3}, 0x20000",
          f"s_mov_b32 s{SF+2}, {FF_BYTES}", f"s_mov_b32 s{SF+3}, 0x20000")
        for i in range(5):
            q(f"s_mul_i32 s{S_KF+i}, s{S_KS+i}, {128*3456//256}")
        q(f"s_and_b32 s{S_T2}, s{S_W}, 1",
          f"s_lshl_b32 s{S_SBROW}, s{S_SB}, 1", f"s_add_u32 s{S_SBROW}, s{S_SBROW}, s{S_T2}",
          f"s_mul_i32 s{S_SBROW}, s{S_SBROW}, {16*1280}",
          f"s_lshr_b32 s{S_T3}, s{S_W}, 1",
          f"s_lshl_b32 s{S_A2ROW}, s{S_MT}, 1", f"s_add_u32 s{S_A2ROW}, s{S_A2ROW}, s{S_T3}",
          f"s_mul_i32 s{S_A2ROW}, s{S_A2ROW}, {94*4096}",
          f"s_lshl_b32 s{S_T3}, s{S_T2}, 11", f"s_add_u32 s{S_A2ROW}, s{S_A2ROW}, s{S_T3}",
          f"s_lshl_b32 s{S_KD1}, s{S_D1}, 13", f"s_add_u32 s{S_KD1}, s{S_KD1}, s{S_A2ROW}",
          f"s_add_u32 s{S_KD2}, s{S_KD1}, 8192",
          f"s_lshl_b32 s{S_D1}, s{S_D1}, 7", f"s_mul_i32 s{S_T3}, s{S_T2}, {32*3456}",
          f"s_add_u32 s{S_D1}, s{S_D1}, s{S_T3}", f"s_add_u32 s{S_D2}, s{S_D1}, 128",
          f"s_mov_b32 s{S_GK2}, {fx(GK2)}", f"v_mov_b32 v{V_GK1}, {fx(GK1)}")
        if o.get("touch", 1) == 1:
            ws, out = f"s[{K_WS}:{K_WS+1}]", f"s[{K_OUT}:{K_OUT+1}]"
            q(f"s_mul_i32 s{S_T2}, s{S_MT}, {2*94*4096}", f"s_load_dword s95, {ws}, s{S_T2}",
              f"s_add_u32 s{S_T2}, s{S_T2}, {2*94*4096 - 4}", f"s_load_dword s95, {ws}, s{S_T2}")
            for off in (W2F_OFF, W2F_OFF + (1 << 21)):
                q(f"s_mov_b32 s{S_T2}, {off}", f"s_load_dword s95, {ws}, s{S_T2}")
            q(f"s_mul_i32 s{S_T2}, s2, {4*5120}", f"s_add_u32 s{S_T2}, s{S_T2}, {PART_OFF}", f"s_load_dword s95, {ws}, s{S_T2}",
              f"s_mul_i32 s{S_T2}, s{S_MT}, {128*2560}", f"s_load_dword s95, {out}, s{S_T2}",
              f"s_add_u32 s{S_T2}, s{S_T2}, {128*2560 - 4}", f"s_load_dword s95, {out}, s{S_T2}",
              f"s_load_dword s95, s[{K_DSK}:{K_DSK+1}], 0")
        q(f"v_lshrrev_b32 v{t0}, 3, v{V_LANE}", f"v_mul_u32_u24 v{t0}, 3456, v{t0}",
          f"v_bfe_u32 v{t1}, v{V_LANE}, 4, 1", f"v_lshlrev_b32 v{t1}, 2, v{t1}",
          f"v_and_b32 v{V_OF}, 7, v{V_LANE}", f"v_xor_b32 v{V_OF}, v{V_OF}, v{t1}",
          f"v_lshl_add_u32 v{V_OF}, v{V_OF}, 4, v{t0}")
        for k in range(1, 4):
            q(f"v_add_u32 v{V_OF+k}, {k*(8*3456 - 1024)}, v{V_OF}")
        q(f"v_bfe_u32 v{t0}, v{V_LANE}, 2, 2", f"v_lshl_add_u32 v{t1}, v{h}, 3, v{t0}",
          f"v_lshlrev_b32 v{V_TR}, 7, v{t1}", f"v_lshrrev_b32 v{t0}, 1, v{t0}",
          f"v_lshl_add_u32 v{V_TR}, v{t0}, 6, v{V_TR}", f"v_bfe_u32 v{t0}, v{V_LANE}, 4, 1",
          f"v_lshl_add_u32 v{V_TR}, v{t0}, 5, v{V_TR}", f"v_and_b32 v{t0}, 3, v{V_LANE}",
          f"v_lshl_add_u32 v{V_TR}, v{t0}, 3, v{V_TR}", f"v_xor_b32 v{V_TR+1}, 64, v{V_TR}",
          f"v_add_u32 v{V_TR+2}, 0x10000, v{V_TR}", f"v_add_u32 v{V_TR+3}, 0x10000, v{V_TR+1}")
        q(f"v_lshrrev_b32 v{t1}, 3, v{c}", f"v_lshl_add_u32 v{t1}, v{t1}, 2, v{t0}",
          f"v_lshl_add_u32 v{V_STA}, v{h}, 4, v{t1}", f"v_lshlrev_b32 v{V_STA}, 4, v{V_STA}",
          f"v_bfe_u32 v{t0}, v{c}, 2, 1", f"v_lshl_add_u32 v{V_STA}, v{t0}, 10, v{V_STA}",
          f"v_lshl_add_u32 v{V_X+7}, v{t0}, 4, v{t1}", f"v_lshlrev_b32 v{V_X+7}, 3, v{V_X+7}",
          f"v_cndmask_b32 v{V_X+7}, v{V_X+7}, v{V_XW}, {hm}" if not self.fused else
          [f"s_lshl_b32 s{S_T2}, s{S_W}, 8", f"s_add_u32 s{S_T2}, s{S_T2}, {STL}", f"v_add_u32 v0, s{S_T2}, v{V_X+7}"])
        q(f"v_lshlrev_b32 v{V_LBO+1}, 4, v{c}", f"v_sub_u32 v{t0}, s{S_MT}, v{h}",
          f"v_lshl_add_u32 v{V_LBO}, v{t0}, 9, v{V_LBO+1}",
          f"s_add_u32 s{S_T2}, s{S_MT}, 1", f"s_lshl_b32 s{S_T2}, s{S_T2}, 9",
          [f"s_cmp_eq_u32 s{S_W}, 3", f"s_cselect_b32 s{S_T2}, s{S_T2}, {OOB}"], f"v_add_u32 v{t0}, s{S_T2}, v{V_LBO+1}",
          f"v_mov_b32 v{t1}, {OOB}", f"v_cndmask_b32 v{V_PUB}, v{t1}, v{t0}, {hm}",
          f"v_and_b32 v{V_XR}, 15, v{c}", f"v_mul_u32_u24 v{V_XR}, 120, v{V_XR}", f"v_lshrrev_b32 v{t0}, 4, v{c}",
          f"v_lshl_add_u32 v{V_XR}, v{t0}, 13, v{V_XR}", f"v_add_u32 v{V_XR}, {XCH}, v{V_XR}",
          f"v_mul_u32_u24 v{V_TW}, {16*144}, v{h}", f"v_lshl_add_u32 v{V_TW}, v{c}, 2, v{V_TW}",
          f"v_add_u32 v{V_TW}, s{S_J1}, v{V_TW}",
          f"v_and_b32 v{t0}, 15, v{V_LANE}", f"v_mul_u32_u24 v{t0}, 144, v{t0}",
          f"v_lshrrev_b32 v{t1}, 4, v{V_LANE}", f"v_lshl_add_u32 v{V_TW+1}, v{t1}, 4, v{t0}",
          f"v_add_u32 v{V_TW+1}, s{S_J1}, v{V_TW+1}", f"v_lshlrev_b32 v{V_TW+2}, 4, v{V_LANE}",
          f"s_lshl_b32 s{S_T2}, s{S_W}, 1", f"v_add_u32 v{V_SEG}, s{S_T2}, v{h}",
          f"v_lshl_add_u32 v{V_XR}, v{V_SEG}, 3, v{V_XR}")
        self.fill.append(lambda: p.wait(t_par))
        U = RAW + 152
        q(f"v_readfirstlane_b32 s{S_EPOCH}, v{EP}")
        if o.get("job_dq") == 2 or o.get("job_early"):
            self.fill.append(self.a_job_setup)
        q(*self.ssm_consts(0, V_C + 6, U))
        q(f"s_add_u32 s{S_EPOCH}, s{S_EPOCH}, 1")
        self.zero_row(0, U)
        rd = {}

        def x_read(i, half):
            def f():
                p.wait(xt[i, 7])
                for s in range(4 * half, 4 * half + 4):
                    r = RAW + 32 * i + 4 * s
                    rd[i, s] = e(f"ds_read_b128 v[{r}:{r+3}], v{self.AX+s} offset:{i*16384 if i < 4 else 0}")
            return f
        lag = o.get("x_lag", 9)
        for i in range(5):
            self.fill.append(("t", lambda i=i: cnt["n"] >= min(40, 8 * i + 8 + lag)))
            if i == 4:
                if o.get("job_dq"):
                    self.fill.append(("t", lambda: hasattr(self, "job_tok") and not any(f in self.dq for f in self.job_ld)))
                for s in range(8):
                    q(f"v_add_u32 v{self.AX+s}, s{S_J1}, v{self.AS+s}")
            self.fill.append(x_read(i, 0))
            self.fill.append(x_read(i, 1))
            for s in range(8):
                self.fill.append(lambda i=i, s=s: p.wait(rd[i, s]))
                for k in range(4 if (i == 4 or not o.get("dbg_nostats")) else 1):
                    r = RAW + 32 * i + 4 * s + k
                    q(f"v_dot2c_f32_bf16 v{sm}, s{S_SPIN}, v{r}", f"v_dot2c_f32_bf16 v{sq}, v{r}, v{r}")
            if i < 4:
                self.fill.append(lambda i=i: self.issue_stage(i, *first[i]))
            if i == 3:
                self.fill.append(lambda: self.issue_stage(4, *first[4]))
        if o.get("dbg_xonly"):
            while xq:
                x_piece(*xq.pop(0))
            p.wait_all(lgkm=False)
            self.stamp(1)
        self.pull(o.get("pre_slots", 150))
        while xq:
            x_piece(*xq.pop(0))
            self.pull(o.get("x_gap", 14))
        left = o.get("pro_dma", 99)
        while self.fill:
            if left > 0 and self.dq:
                self.dma()
                left -= 1
            self.pull(o.get("x_gap2", o.get("x_gap", 14)))
        self.stamp(2)
        u = V_X + 8
        e(f"v_mov_b32 v{u}, v{sm}"); e(f"v_mov_b32 v{u+1}, v{sq}")
        e(f"v_permlane32_swap_b32 v{sm}, v{u}"); e(f"v_permlane32_swap_b32 v{sq}, v{u+1}")
        e(f"v_add_f32 v{sm}, v{sm}, v{u}"); e(f"v_add_f32 v{sq}, v{sq}, v{u+1}")
        e(f"v_mul_f32 v{sm}, {fx(1/640)}, v{sm}"); e(f"v_mul_f32 v{sq}, {fx(1/640)}, v{sq}")
        e(f"v_fma_f32 v{sq}, -v{sm}, v{sm}, v{sq}")
        e(f"v_max_f32 v{sq}, 0, v{sq}")
        e(f"v_cvt_pk_bf16_f32 v{u}, v{sq}, v{sm}")
        e(f"v_lshlrev_b32 v{sq}, 16, v{u}"); e(f"v_and_b32 v{sm}, s{S_MASK}, v{u}")
        e(f"v_add_f32 v{sq}, {fx(1e-5)}, v{sq}")
        e(f"v_cvt_pk_bf16_f32 v{sq}, v{sq}, v{sq}"); e(f"v_lshlrev_b32 v{sq}, 16, v{sq}")
        e(f"v_sqrt_f32 v{sq}, v{sq}")
        e(f"s_lshl_b32 s{S_T2}, s{S_MT}, 2"); e(f"s_add_u32 s{S_T2}, s{S_T2}, s{S_W}")
        e(f"v_cvt_pk_bf16_f32 v{sq}, v{sq}, v{sq}"); e(f"v_lshlrev_b32 v{sq}, 16, v{sq}")
        e(f"v_rcp_f32 v{u}, v{sq}")
        e(f"s_lshl_b32 s{S_T2}, s{S_T2}, 8"); e(f"s_add_u32 s{S_T2}, s{S_T2}, {STATS_OFF}")
        e(f"v_mul_f32 v{u+2}, -v{sm}, v{u}")
        e(f"v_mov_b32 v{u+1}, v{u}")
        e(f"v_mov_b32 v{u+3}, v{u+2}")
        e(f"s_cmp_eq_u32 s{S_CG}, 0"); e(f"s_cselect_b32 s{S_T2}, s{S_T2}, {OOB}")
        if not self.fused:
            e(f"v_mov_b32 v{V_X+4}, v{u}"); e(f"v_mov_b32 v{V_X+5}, v{u+2}")
            e(f"buffer_store_dwordx2 v[{V_X+4}:{V_X+5}], v{V_X+7}, {srd(SWS)}, s{S_T2} offen{self.wt}")
        for k in range(4 * npre):
            r = RAW + k
            t = V_X + 2 * (k % 2)
            e(f"v_lshlrev_b32 v{t}, 16, v{r}"); e(f"v_and_b32 v{t+1}, s{S_MASK}, v{r}")
            e(f"v_pk_fma_f32 v[{t}:{t+1}], v[{t}:{t+1}], v[{u}:{u+1}], v[{u+2}:{u+3}]")
            e(f"v_cvt_pk_bf16_f32 v{r}, v{t}, v{t+1}")
            e(f"v_accvgpr_write_b32 a{XN+k}, v{r}")
            if k % o.get("pre_dma", 4) == o.get("pre_dma", 4) - 1:
                self.dma()
        done = []
        for k in range(4 * npre, 160 if kind == "SD" else 0):
            r, t = RAW + k, V_X + 2 * (k % 2)
            self.jit += [f"v_lshlrev_b32 v{t}, 16, v{r}", f"v_and_b32 v{t+1}, s{S_MASK}, v{r}",
                         f"v_fma_f32 v{t}, v{t}, v{u}, v{u+2}", f"v_fma_f32 v{t+1}, v{t+1}, v{u}, v{u+2}",
                         f"v_cvt_pk_bf16_f32 v{r}, v{t}, v{t+1}", f"v_accvgpr_write_b32 a{XN+k}, v{r}"]
        for k in range(4 * npre, 0 if kind == "SD" else 160, 2):
            t = V_X + 4 * ((k // 2) % 2)
            grp = done
            for i in range(2):
                grp = grp + [f"v_lshlrev_b32 v{t+2*i}, 16, v{RAW+k+i}", f"v_and_b32 v{t+2*i+1}, s{S_MASK}, v{RAW+k+i}"]
            for i in range(2):
                grp.append(f"v_pk_fma_f32 v[{t+2*i}:{t+2*i+1}], v[{t+2*i}:{t+2*i+1}], v[{u}:{u+1}], v[{u+2}:{u+3}]")
            self.norm.append(grp)
            done = [f"v_cvt_pk_bf16_f32 v{RAW+k+i}, v{t+2*i}, v{t+2*i+1}" for i in range(2)]
            done += [f"v_accvgpr_write_b32 a{XN+k+i}, v{RAW+k+i}" for i in range(2)]
        if done:
            self.norm.append(done)
        if kind != "SD":
            for s in range(8):
                e(f"v_add_u32 v{V_AS+8+s}, 0x10000, v{V_AS+s}")
        self.stamp(3)

    def zero_row(self, b, z):
        self.q(f"v_mov_b32 v{z}, 0", f"v_mov_b32 v{z+1}, s{S_EPOCH}", f"v_mov_b32 v{z+2}, 0", f"v_mov_b32 v{z+3}, s{S_EPOCH}",
               *self.ex_base(S_T2, b),
               f"buffer_store_dwordx4 v[{z}:{z+3}], v{V_LBO+1}, {srd(SWS)}, s{S_T2} offen sc1")

    def job_setup(self, kind):
        def q(*texts):
            for t in texts:
                self.p.e(t)
        vo = V_JW if kind == "W" else self.vjc
        q(f"v_lshrrev_b32 v{vo}, 3, v{V_LANE}", f"v_mul_u32_u24 v{vo}, 1280, v{vo}",
          f"v_and_b32 v{vo+1}, 7, v{V_LANE}", f"v_lshl_add_u32 v{vo}, v{vo+1}, 4, v{vo}")
        if kind == "W":
            for k in range(1, 4):
                q(f"v_add_u32 v{vo+k}, {k*(8*1280 - 1024)}, v{vo}")
            q(*self.mk_srd(SA1, K_WD, FF_BYTES),
              f"s_lshl_b32 s{S_JOB}, s{S_SB}, 4", f"s_add_u32 s{S_JOB}, s{S_JOB}, s{S_MT}")
        else:
            q(f"v_add_u32 v{vo+1}, {8*1280 - 1024}, v{vo}")
            q(*self.mk_srd(SA1, K_CRE, SQ_BYTES), *self.mk_srd(SA2, K_CIM, SQ_BYTES),
              f"s_mov_b32 s{S_JOB}, s{S_MT}")
        q(f"s_lshl_b32 s{S_JOB}, s{S_JOB}, 2", f"s_add_u32 s{S_JOB}, s{S_JOB}, s{S_W}")

    def job_index(self, kind, i):
        e = self.p.e
        e(f"s_add_u32 s{S_J2}, s{S_JOB}, {64 * i + (292 if self.fused else 0)}")
        e(f"s_mul_hi_u32 s{S_T1}, s{S_J2}, 0x1999999a")
        e(f"s_mul_i32 s{S_R}, s{S_T1}, 10")
        e(f"s_sub_u32 s{S_R}, s{S_J2}, s{S_R}")

    def job_source(self, kind, i):
        e = self.p.e
        self.job_index(kind, i)
        e(f"s_mul_i32 s{S_T0}, s{S_T1}, {(32 if kind == 'W' else 16) * 1280}")
        e(f"s_lshl_b32 s{S_XB}, s{S_R}, 7")
        e(f"s_add_u32 s{S_T0}, s{S_T0}, s{S_XB}")
        e(f"s_cmp_lt_u32 s{S_J2}, {540 if kind == 'W' else 400}")
        e(f"s_cselect_b32 s{S_T0}, s{S_T0}, {OOB}")

    def w_job(self, R):
        p, q = self.p, self.q
        st = {}
        D = R + 4
        q(f"v_lshrrev_b32 v{R}, 5, v{V_LANE}", f"v_lshlrev_b32 v{R}, 4, v{R}",
          f"v_bfe_u32 v{R+1}, v{V_LANE}, 2, 3", f"v_add_u32 v{R}, v{R}, v{R+1}",
          f"v_lshlrev_b32 v{R}, 7, v{R}", f"v_and_b32 v{R+1}, 3, v{V_LANE}",
          f"v_lshl_add_u32 v{R}, v{R+1}, 3, v{R}", f"v_add_u32 v{R}, s{S_J1}, v{R}")
        ad, cb = S_JOB, S_R
        q(f"s_lshl_b32 s{cb}, s{cb}, 2", f"s_mul_hi_u32 s{ad}, s{cb}, 0x33333334", f"s_mul_i32 s{S_XB}, s{ad}, 5",
          f"s_sub_u32 s{cb}, s{cb}, s{S_XB}", f"s_mul_i32 s{ad}, s{ad}, 94", f"s_add_u32 s{ad}, s{ad}, s{S_T1}",
          f"s_mul_i32 s{ad}, s{ad}, 5", f"s_add_u32 s{ad}, s{ad}, s{cb}", f"s_lshl_b32 s{ad}, s{ad}, 10",
          f"s_add_u32 s{ad}, s{ad}, {W2F_OFF}",
          [f"s_cmp_lt_u32 s{S_J2}, 540", f"s_cselect_b32 s{ad}, s{ad}, {OOB}"])
        self.fill.append(("t", lambda: 100 in self.stage_tok and p.vdone >= self.stage_tok[100][1]))
        for f in range(4):
            def rd(f=f):
                p.wait(self.stage_tok[100])
                p.e(f"ds_read_b64_tr_b16 v[{D+4*f}:{D+4*f+1}], v{R} offset:{32*f}")
                st[f] = p.e(f"ds_read_b64_tr_b16 v[{D+4*f+2}:{D+4*f+3}], v{R} offset:{32*f + 1024}")
            rd.cost = 2
            self.fill.append(rd)
        self.lag(5)
        for f in range(4):
            self.fill.append(lambda f=f: p.wait(st[f]))
            self.fill.append(lambda f=f: setattr(self, "job_store", p.e(
                f"buffer_store_dwordx4 v[{D+4*f}:{D+4*f+3}], v{V_TW+2}, {srd(SWS)}, s{ad} offen{self.wt}")))
            if f < 3:
                q([f"s_cmp_eq_u32 s{cb}, {4 - f}", f"s_cselect_b32 s{S_XB}, {93*5120}, 0"],
                  f"s_add_u32 s{ad}, s{ad}, s{S_XB}", f"s_add_u32 s{ad}, s{ad}, 1024")

    def w2f_addr(self, dst, b16, kstep):
        e = self.p.e
        e(f"s_mul_hi_u32 s{S_D1}, s{b16}, 0x33333334")
        e(f"s_mul_i32 s{S_D2}, s{S_D1}, 5")
        e(f"s_sub_u32 s{S_D2}, s{b16}, s{S_D2}")
        e(f"s_mul_i32 s{S_D1}, s{S_D1}, 94")
        e(f"s_add_u32 s{S_D1}, s{S_D1}, s{kstep}")
        e(f"s_mul_i32 s{S_D1}, s{S_D1}, 5")
        e(f"s_add_u32 s{S_D1}, s{S_D1}, s{S_D2}")
        e(f"s_lshl_b32 s{dst}, s{S_D1}, 10")
        e(f"s_add_u32 s{dst}, s{dst}, {W2F_OFF}")

    def job_finish(self, kind, rounds, R):
        p, e = self.p, self.p.e
        while self.dq:
            self.dma()
        if kind == "W":
            e(f"v_lshrrev_b32 v{R}, 5, v{V_LANE}"); e(f"v_lshlrev_b32 v{R}, 4, v{R}")
            e(f"v_bfe_u32 v{R+1}, v{V_LANE}, 2, 3"); e(f"v_add_u32 v{R}, v{R}, v{R+1}")
            e(f"v_lshlrev_b32 v{R}, 7, v{R}"); e(f"v_and_b32 v{R+1}, 3, v{V_LANE}")
            e(f"v_lshl_add_u32 v{R}, v{R+1}, 3, v{R}")
        else:
            e(f"v_and_b32 v{R}, 15, v{V_LANE}"); e(f"v_lshlrev_b32 v{R}, 7, v{R}")
            e(f"v_lshrrev_b32 v{R+1}, 4, v{V_LANE}"); e(f"v_lshl_add_u32 v{R}, v{R+1}, 3, v{R}")
            e(f"s_mov_b32 s{S_KS}, 0x05040100"); e(f"s_mov_b32 s{S_KS+1}, 0x07060302")
        e(f"v_add_u32 v{R}, s{S_W4K}, v{R}")
        e(f"v_add_u32 v{R+1}, 0x10000, v{R}")
        for i in range(rounds):
            n = 15 + i
            slot = n % 8
            va, off = R + slot // 4, (slot % 4) * 16384
            D = R + 4 + 32 * (i % 2)
            p.wait(self.stage_tok[n])
            tk = []
            for f in range(4):
                if kind == "W":
                    e(f"ds_read_b64_tr_b16 v[{D+4*f}:{D+4*f+1}], v{va} offset:{off + 32*f}")
                    tk.append(e(f"ds_read_b64_tr_b16 v[{D+4*f+2}:{D+4*f+3}], v{va} offset:{off + 32*f + 1024}"))
                else:
                    e(f"ds_read_b64 v[{D+16+4*f}:{D+16+4*f+1}], v{va} offset:{off + 32*f}")
                    tk.append(e(f"ds_read_b64 v[{D+16+4*f+2}:{D+16+4*f+3}], v{va} offset:{off + 32*f + 2048}"))
            self.job_index(kind, i)
            e(f"s_lshl_b32 s{S_R}, s{S_R}, 2")
            if kind == "C":
                e(f"s_add_u32 s{S_R}, s{S_R}, 54")
                self.w2f_addr(S_T0, S_T1, S_R)
                e(f"s_cmp_lt_u32 s{S_J2}, 400")
                e(f"s_cselect_b32 s{S_T0}, s{S_T0}, {OOB}")
            for f in range(4):
                if kind == "W":
                    self.w2f_addr(S_T0, S_KD2, S_T1)
                    e(f"s_cmp_lt_u32 s{S_J2}, 540")
                    e(f"s_cselect_b32 s{S_T0}, s{S_T0}, {OOB}")
                    e(f"s_add_u32 s{S_KD2}, s{S_KD2}, 1")
                    p.wait(tk[f])
                else:
                    p.wait(tk[f])
                    re, im = D + 16 + 4 * f, D + 16 + 4 * f + 2
                    for k in range(2):
                        e(f"v_perm_b32 v{D+4*f+2*k}, v{im+k}, v{re+k}, s{S_KS}")
                        e(f"v_perm_b32 v{D+4*f+2*k+1}, v{im+k}, v{re+k}, s{S_KS+1}")
                e(f"buffer_store_dwordx4 v[{D+4*f}:{D+4*f+3}], v{V_TW+2}, {srd(SWS)}, s{S_T0} offen{self.wt}")
                if kind == "C" and f < 3:
                    e(f"s_add_u32 s{S_T0}, s{S_T0}, 5120")

    def w_prefetch(self):
        e = self.p.e
        t = V_PRE + 2
        e(f"v_lshrrev_b32 v{t}, 1, v{V_LANE}")
        e(f"v_mul_u32_u24 v{t}, 3456, v{t}")
        e(f"v_and_b32 v{t+1}, 1, v{V_LANE}")
        e(f"v_lshl_add_u32 v{t}, v{t+1}, 7, v{t}")
        e(f"s_and_b32 s{S_T2}, s{S_W}, 1")
        e(f"s_mul_i32 s{S_T2}, s{S_T2}, {-12*3456 & 0xffffffff:#x}")
        e(f"s_mul_i32 s{S_T3}, s{S_MT}, {40*3456}")
        e(f"s_add_u32 s{S_T2}, s{S_T2}, s{S_T3}")
        e(f"s_add_u32 s{S_T2}, s{S_T2}, s{S_D1}")
        e("s_mov_b32 exec_hi, 0xff")
        e(f"buffer_load_dword v{t+1}, v{t}, {srd(SF)}, s{S_T2} offen")
        e("s_mov_b64 exec, -1")

    def w_prefetch_early(self):
        e = self.p.e
        b = S_M2
        e(f"s_cmp_ge_u32 s{S_W}, 2")
        e(f"s_cselect_b32 s{b}, s{K_WU}, s{K_WG}"); e(f"s_cselect_b32 s{b+1}, s{K_WU+1}, s{K_WG+1}")
        e(f"s_and_b32 s{S_T2}, s{S_W}, 1")
        e(f"s_lshl_b32 s{S_T3}, s{S_MT}, 1")
        e(f"s_add_u32 s{S_T2}, s{S_T2}, s{S_T3}")
        e(f"s_mul_i32 s{S_T2}, s{S_T2}, {20*3456}")
        e(f"s_min_u32 s{S_T3}, s{S_D1}, 25")
        e(f"s_lshl_b32 s{S_T3}, s{S_T3}, 7")
        e(f"s_add_u32 s{S_T2}, s{S_T2}, s{S_T3}")
        e(f"s_add_u32 s{b}, s{b}, s{S_T2}"); e(f"s_addc_u32 s{b+1}, s{b+1}, 0")
        if self.opt["wpre"] == 2:
            t = V_PRE + 2
            e(f"v_lshrrev_b32 v{t}, 1, v{V_LANE}")
            e(f"v_mul_u32_u24 v{t}, 3456, v{t}")
            e(f"v_and_b32 v{t+1}, 1, v{V_LANE}")
            e(f"v_lshl_add_u32 v{t}, v{t+1}, 7, v{t}")
            e("s_mov_b32 exec_hi, 0xff")
            e(f"global_load_dword v{t+1}, v{t}, s[{b}:{b+1}]")
            e("s_mov_b64 exec, -1")
        else:
            for k in range(self.opt.get("wpre_n", 20)):
                e(f"s_load_dword s{S_SPIN}, s[{b}:{b+1}], {3456*(k % 20) + 128*(k // 20)}")

    def warm_k2(self):
        if not self.opt.get("warm_k2", 1):
            return
        e = self.p.e
        e(f"s_getpc_b64 s[{S_T0}:{S_T1}]")
        self.p.label("K1_PC2")
        e(f"s_add_u32 s{S_T0}, s{S_T0}, gemm2_kernel-K1_PC2")
        e(f"s_addc_u32 s{S_T1}, s{S_T1}, 0")
        e(f"s_lshr_b32 s{S_T2}, s2, 3")
        e(f"s_lshl_b32 s{S_T2}, s{S_T2}, 2")
        e(f"s_add_u32 s{S_T2}, s{S_T2}, s{S_W}")
        e(f"s_lshl_b32 s{S_T2}, s{S_T2}, 7")
        e(f"s_min_u32 s{S_T3}, s{S_T2}, TEXT_END-gemm2_kernel-4")
        e(f"s_min_u32 s{S_T2}, s{S_T2}, 1276")
        e(f"v_mov_b32 v{V_PRE}, s{S_T3}")
        e(f"v_mov_b32 v{V_PRE+1}, s{S_T2}")
        e("s_mov_b64 exec, 1")
        e(f"global_load_dword v{V_PRE+2}, v{V_PRE}, s[{S_T0}:{S_T1}]")
        e(f"global_load_dword v{V_PRE+3}, v{V_PRE+1}, s[{K_DSK}:{K_DSK+1}]")
        e("s_mov_b64 exec, -1")

    def finish(self, k):
        p, e = self.p, self.p.e
        e(f"s_lshl_b32 s{S_T2}, s{S_CG}, 7")
        e(f"s_add_u32 s{S_T2}, s{S_T2}, {EPOCH_OFF}")
        e(f"s_cmp_eq_u32 s{S_MT}, 15")
        e(f"s_cselect_b32 s{S_T2}, s{S_T2}, {OOB}")
        e(f"v_mov_b32 v0, s{S_EPOCH}")
        e(f"buffer_store_dword v0, off, {srd(SWS)}, s{S_T2} sc1")
        self.spin_out = True
        self.stamp_out(k)
        e("s_endpgm")

    def snapshot(self):
        p = self.p
        return (p.vq, p.vdone, p.lq, p.ldone, dict(self.stage_tok), list(self.pre_barrier), self.nbar, self.mf,
                set(self.seen), list(self.fill), list(self.dq), list(self.norm), self.vgap, list(self.jit),
                dict(self.auto) if self.auto else None)

    def restore(self, s):
        p = self.p
        (p.vq, p.vdone, p.lq, p.ldone, st, pb, self.nbar, self.mf, seen, fill, dq, norm, self.vgap, jit, auto) = s
        self.jit, self.auto = list(jit), (dict(auto) if auto else None)
        self.stage_tok, self.pre_barrier, self.seen = dict(st), list(pb), set(seen)
        self.fill, self.dq, self.norm = list(fill), list(dq), list(norm)

    def run(self, stages, frags, hooks, wjob=False):
        plan = {n: (lambda n=n: self.issue_stage(n + 6, *stages[n + 6])) for n in range(len(stages) - 6)}
        if stages[5][0] == "F" and self.opt.get("wpre", 1) == 1:
            self.dq.append(self.w_prefetch)
        self.issue_stage(5, *stages[5])
        if self.fused and self.opt.get("job_mode") == "dma":
            self.dq.extend(self.job_ld)
        if wjob and not self.fused:
            self.job_setup("W")
            self.issue_stage(100, "W", 0, 0)
        self.gemm(frags, plan, hooks)
        return plan

    def build(self):
        p, e, o = self.p, self.p.e, self.opt
        self.prologue()
        e(f"s_cmp_eq_u32 s{S_TYPE}, 2")
        e("s_cbranch_scc1 K1_TYPE_C")
        e(f"s_cmp_eq_u32 s{S_TYPE}, 1")
        e("s_cbranch_scc1 K1_TYPE_B")
        snap = self.snapshot()
        g1, g2 = o.get("lb_issue", 80 + 80), o.get("lb_check", 80 + 100)
        head = [("S", i, 0) for i in range(5)] + [("F", i, S_D1) for i in range(10)]
        for typ in "AB":
            if typ == "B":
                p.label("K1_TYPE_B")
                self.restore(snap)
            m0 = self.mf

            def start_ssm(typ=typ, m0=m0):
                self.stamp(4)
                if typ == "B":
                    self.job_setup("C")
                self.ssm_reduce(0, ACC_S, 188)
                if typ == "A":
                    self.w_job(188)
                self.ssm_finish(0, ACC_S, 188, lambda: self.mf - m0 >= g1, lambda: self.mf - m0 >= g2, typ)

            def at_d2():
                self.stamp(5)
                self.ffn_epilogue(ACC_D1, S_KD1)
            frags = self.s_frags(0, ACC_S) + self.d_frags(5, ACC_D1)
            if typ == "A":
                self.run(head + [("F", i, S_D2) for i in range(10)], frags + self.d_frags(15, ACC_D2),
                         {81: start_ssm, 240: at_d2}, True)
                self.stamp(6)
                self.flush()
                self.warm_k2()
                self.ffn_tail(ACC_D2, S_KD2)
                self.stamp(7)
            else:
                stages = head + [("C", i, 0) for i in range(7)]
                self.run(stages[:21], frags, {81: start_ssm})
                self.stamp(5)
                self.mf += 1000
                self.barrier()
                self.issue_stage(21, *stages[21])
                while self.dq:
                    self.dma()
                self.flush()
                self.ffn_tail(ACC_D1, S_KD1)
                self.stamp(6)
                self.job_finish("C", 7, ACC_D2 - 4)
                self.stamp(7)
            self.finish(8)
        p.label("K1_TYPE_C")
        self.restore(snap)
        stages = [("S", i % 5, i // 5) for i in range(15)]
        frags = self.s_frags(0, 16) + self.s_frags(5, 48) + self.s_frags(10, 80)
        m0 = self.mf

        def c1():
            self.stamp(4)
            self.ssm_reduce(0, 16, 152)
            for b in (1, 2):
                self.q(*self.ssm_consts(b, V_C + 12 * b + 6, 112))
                self.zero_row(b, 112)

        def c2():
            self.stamp(5)
            self.ssm_reduce(1, 48, 152)
            self.ssm_finish(0, 16, 112, None, lambda: self.mf - m0 >= 215, "C0")
        self.run(stages, frags, {81: c1, 161: c2})
        self.stamp(6)
        self.mf += 1000
        self.flush()
        self.ssm_reduce(2, 80, 152)
        self.ssm_finish(1, 48, 112, None, None, "C1")
        self.flush()
        self.stamp(7)
        self.ssm_finish(2, 80, 112, None, None, "C2")
        self.flush()
        self.finish(8)
        self.slow_paths()
        p.label("K1_END")
        e("s_endpgm")
        p.fix_hazards()
        return p


K1_DESC = """
.amdhsa_kernel proj_kernel
  .amdhsa_next_free_vgpr 512
  .amdhsa_next_free_sgpr 102
  .amdhsa_accum_offset 256
  .amdhsa_group_segment_fixed_size 0
  .amdhsa_kernarg_size 128
  .amdhsa_user_sgpr_count 2
  .amdhsa_user_sgpr_kernarg_segment_ptr 1
  .amdhsa_system_sgpr_workgroup_id_x 1
  .amdhsa_float_denorm_mode_32 3
.end_amdhsa_kernel
"""
```

```python
from k1 import *

NAME = "parallel_sum__ssm_conv_s5__glu_gated_geglu__prompt_kernel"
S_WB = 28
S_D2X, S_R2 = 100, 101
S_A, S_OOB, S_XO, S_OO, S_PO, S_PI, S_N, S_A0, S_TG, S_DN, S_DIV = 68, 69, 70, 71, 72, 73, 74, 75, 76, 80, 81
S_A1 = 82
SD, SO = SS, SF
V_L16, V_L16B, V_WA, V_PK = 3, 4, 5, 13
ACC1, ACC2, RING = 16, 96, 176
V_OA, V_LA, V_T = 240, 245, 250
WMAP = [192 + 4 * k for k in range(16)] + [4 * k for k in range(40)] + [160 + 4 * k for k in range(4)]
SLOT5 = 176
S_TB, S_WB0 = 24, 27
ORDERS = {"k0": [0, 1, 4, 5, 8, 9, 2, 3, 6, 7, 10, 11], "w0": [1, 2, 7, 8, 9, 10, 11, 0, 3, 4, 5, 6],
          "nat": list(range(12)), "w3": [0, 1, 2, 5, 6, 7, 8, 3, 4, 9, 10, 11]}


def nib(name, half):
    return sum(v << (4 * k) for k, v in enumerate(ORDERS[name][8 * half:8 * half + 8]))


MIXED = False


def rel(dst, i):
    if MIXED:
        return f"s_bfe_u32 s{dst}, s{S_TB + i // 4}, {(8 << 16) | (8 * (i % 4)):#x}"
    return f"s_bfe_u32 s{dst}, s{S_TB + i // 8}, {(4 << 16) | (4 * (i % 8)):#x}"


def mixed_lists():
    out = {}
    for kh in range(2):
        ffn = list(range(27 * kh, 27 * kh + 27))
        early = [k for k in ffn if k % 4 < 2]
        late = [k for k in ffn if k % 4 >= 2] + list(range(54 + 20 * kh, 74 + 20 * kh))
        assert len(early) == 14
        rest = early[12:] + late
        for w in range(4):
            n = 9 if w < 3 else 8
            out[kh, w] = early[3 * w:3 * w + 3] + rest[:n] + ([0] if w == 3 else [])
            rest = rest[n:]
        assert not rest
    return out


def slot(g, f):
    k = g % 5
    return f"v[{RING+16*k+4*f}:{RING+16*k+4*f+3}]" if k < 4 else f"a[{SLOT5+4*f}:{SLOT5+3+4*f}]"


STEPS_MIXED = [(0, i) for i in range(3)] + [(1, i) for i in range(3)] + [(0, i) for i in range(3, 12)] + \
              [(1, i) for i in range(3, 12)]


class Fused(K1):
    def __init__(self, opt):
        super().__init__(opt)
        self.name = NAME
        self.fused = True
        self.polls = []
        self.heads = []
        self.JA = RAW + 140

    def stats_to_lds(self):
        e = self.p.e
        e(f"ds_write2_b32 v0, v{V_X+8}, v{V_X+10} offset1:1")
        e(f"v_add_u32 v0, 0x1000, v{V_TW+2}")
        T = {"DSD": 206, "SD": 60}.get(self.opt.get("order"), V_X) if not getattr(self, "is_c", False) else V_X
        for x in (f"v_mov_b32 v{T+4}, 0", f"v_min_u32 v{T+5}, 6, v{V_SEG}", f"v_sub_u32 v{T+5}, v{T+5}, v{V_SEG}",
                  f"v_lshl_add_u32 v{T+5}, v{T+5}, 3, v{V_XR}", f"ds_write2_b32 v{T+5}, v{T+4}, v{T+4} offset1:1"):
            e(x)

    def flag_store(self, tmp, base, hi, lo):
        t = S_T1
        return [[f"s_lshl_b32 s{t}, s{hi}, 4", f"s_add_u32 s{t}, s{t}, s{lo}", f"s_lshl_b32 s{t}, s{t}, 7",
                 f"s_add_u32 s{t}, s{t}, {base}", f"s_cmp_eq_u32 s{S_W}, 0", f"s_cselect_b32 s{t}, s{t}, {OOB}"],
                f"v_mov_b32 v{tmp}, s{S_EPOCH}",
                ["s_mov_b64 exec, 1", f"buffer_store_dword v{tmp}, off, {srd(SWS)}, s{t} sc1", "s_mov_b64 exec, -1"]]

    def flag_later(self, tmp, delay, tok, base, hi, lo):
        def raise_flag():
            for x in self.flag_store(tmp, base, hi, lo):
                for y in (x if isinstance(x, list) else [x]):
                    self.p.e(y)

        def arm():
            self.pre_barrier.append(tok())
            self.on_barrier.append(raise_flag)
        if delay is None:
            self.lazy.append((tok(), raise_flag))
        else:
            self.timers.append((self.mf + delay, arm))

    def a_job_setup(self, tag=""):
        e, o = self.p.e, self.opt
        u, t, t2, ct = S_R, S_T2, S_T3, S_T1
        A = self.JA
        e(f"s_lshl_b32 s{u}, s{S_MT}, 2"); e(f"s_add_u32 s{u}, s{u}, s{S_W}")
        e(f"s_and_b32 s{ct}, s{S_CG}, 7")
        if MIXED:
            e(f"s_mov_b32 s{t}, 27"); e(f"s_mov_b32 s{S_JOB}, 52")
            e(f"s_cmp_ge_u32 s{S_CG}, 8"); e(f"s_cselect_b32 s{t2}, 27, 0")
        else:
            e(f"s_cmp_ge_u32 s{S_CG}, 8"); e(f"s_cselect_b32 s{t}, 7, 64"); e(f"s_cselect_b32 s{t2}, 47, 0")
            e(f"s_cselect_b32 s{S_JOB}, 57, 47")
        e(f"s_cmp_lt_u32 s{u}, s{S_JOB}"); e(f"s_cselect_b32 s{S_D2X}, 0, {OOB}")
        e(f"s_cmp_ge_u32 s{u}, s{t}"); e(f"s_cselect_b32 s{S_J2}, 1, 0")
        e(f"s_cbranch_scc1 JOB_C{tag}")
        for x in self.mk_srd(SA1, K_WD, FF_BYTES) + self.mk_srd(SA2, K_WD, FF_BYTES):
            e(x)
        e(f"s_add_u32 s{u}, s{u}, s{t2}")
        e(f"s_mul_i32 s{S_R2}, s{u}, {32*1280}"); e(f"s_mul_i32 s{t}, s{ct}, 160")
        e(f"s_add_u32 s{S_R2}, s{S_R2}, s{t}")
        e(f"s_mul_i32 s{S_JOB}, s{ct}, 94"); e(f"s_add_u32 s{S_JOB}, s{S_JOB}, s{u}")
        e(f"s_mul_i32 s{S_JOB}, s{S_JOB}, 5120")
        e(f"s_mov_b32 s{t}, 0xcccd")
        for q in range(5):
            e(f"v_add_u32 v{A+5}, {64*q}, v{V_LANE}"); e(f"v_mul_lo_u32 v{A+q}, v{A+5}, s{t}")
            e(f"v_lshrrev_b32 v{A+q}, 19, v{A+q}"); e(f"v_mul_u32_u24 v{A+q}, 1120, v{A+q}")
            e(f"v_lshl_add_u32 v{A+q}, v{A+5}, 4, v{A+q}")
        e(f"s_branch JOB_LD{tag}")
        self.p.label(f"JOB_C{tag}")
        for x in self.mk_srd(SA1, K_CRE, SQ_BYTES) + self.mk_srd(SA2, K_CIM, SQ_BYTES):
            e(x)
        if MIXED:
            e(f"s_sub_u32 s{u}, s{u}, 27")
            e(f"s_mul_hi_u32 s{t}, s{u}, 0x33333334"); e(f"s_mul_i32 s{t2}, s{t}, 5"); e(f"s_sub_u32 s{u}, s{u}, s{t2}")
            e(f"s_lshr_b32 s{t2}, s{S_CG}, 3"); e(f"s_mul_i32 s{t2}, s{t2}, 5"); e(f"s_add_u32 s{u}, s{u}, s{t2}")
        else:
            e(f"s_sub_u32 s{u}, s{u}, 7")
            e(f"s_mul_hi_u32 s{t}, s{u}, 0x1999999a"); e(f"s_mul_i32 s{t2}, s{t}, 10"); e(f"s_sub_u32 s{u}, s{u}, s{t2}")
        e(f"s_mul_i32 s{t2}, s{ct}, 5"); e(f"s_add_u32 s{t2}, s{t2}, s{t}")
        e(f"s_mul_i32 s{S_R2}, s{t2}, {16*1280}"); e(f"s_lshl_b32 s{t2}, s{u}, 7")
        e(f"s_add_u32 s{S_R2}, s{S_R2}, s{t2}")
        e(f"s_mul_i32 s{S_JOB}, s{ct}, 94"); e(f"s_lshl_b32 s{u}, s{u}, 2"); e(f"s_add_u32 s{S_JOB}, s{S_JOB}, s{u}")
        e(f"s_add_u32 s{S_JOB}, s{S_JOB}, 54"); e(f"s_mul_i32 s{S_JOB}, s{S_JOB}, 5")
        e(f"s_add_u32 s{S_JOB}, s{S_JOB}, s{t}"); e(f"s_lshl_b32 s{S_JOB}, s{S_JOB}, 10")
        e(f"v_lshrrev_b32 v{A}, 3, v{V_LANE}"); e(f"v_mul_u32_u24 v{A}, 1280, v{A}")
        e(f"v_lshrrev_b32 v{A+2}, 3, v{V_LANE}"); e(f"v_xor_b32 v{A+1}, v{A+2}, v{V_LANE}")
        e(f"v_and_b32 v{A+1}, 7, v{A+1}"); e(f"v_lshl_add_u32 v{A}, v{A+1}, 4, v{A}")
        e(f"v_add_u32 v{A+1}, {8*1280}, v{A}"); e(f"v_mov_b32 v{A+2}, v{A}"); e(f"v_mov_b32 v{A+3}, v{A+1}")
        e(f"v_mov_b32 v{A+4}, {OOB}")
        self.p.label(f"JOB_LD{tag}")
        e(f"s_add_u32 s{S_JOB}, s{S_JOB}, {W2F_OFF}")
        e(f"s_or_b32 s{S_JOB}, s{S_JOB}, s{S_D2X}"); e(f"s_or_b32 s{S_R}, s{S_R2}, s{S_D2X}")
        if o.get("job_mode") == "dma":
            def piece(q):
                e(f"s_add_u32 m0, s{S_J1}, {1024*q}")
                self.job_tok = e(f"buffer_load_dwordx4 v{A+q}, {srd(SA1 if q < 2 else SA2)}, s{S_R} offen{o.get('ntjob', '')} lds")
            self.job_ld = [lambda q=q: piece(q) for q in range(5)]
            return
        self.job_ld = [lambda q=q: setattr(self, "job_tok", e(
            f"buffer_load_dwordx4 a[{192+4*q}:{195+4*q}], v{A+q}, {srd(SA1 if q < 2 else SA2)}, s{S_R} offen"))
            for q in range(5)]
        if o.get("job_dq"):
            self.dq.extend(self.job_ld)
        elif not o.get("job_late"):
            for f in self.job_ld:
                f()

    def a_job(self, is_c, m0, R, L):
        p, q = self.p, self.q
        st = {}
        D = R + 2 if not self.opt.get("job_spread") else self.JD

        def at(k):
            self.fill.append(("t", lambda: self.mf - m0 >= k + self.opt.get("fork_at", 65)))
        if is_c:
            q(f"v_and_b32 v{R}, 15, v{V_LANE}", f"v_lshlrev_b32 v{R}, 7, v{R}",
              f"v_lshrrev_b32 v{R+1}, 5, v{V_LANE}", f"v_xor_b32 v{R+1}, v{R+1}, v{V_LANE}", f"v_and_b32 v{R+1}, 7, v{R+1}",
              f"v_lshl_add_u32 v{R}, v{R+1}, 4, v{R}", f"v_bfe_u32 v{R+1}, v{V_LANE}, 4, 1",
              f"v_lshl_add_u32 v{R}, v{R+1}, 3, v{R}")
        else:
            q(f"v_lshrrev_b32 v{R}, 5, v{V_LANE}", f"v_lshlrev_b32 v{R}, 4, v{R}",
              f"v_bfe_u32 v{R+1}, v{V_LANE}, 2, 3", f"v_add_u32 v{R}, v{R}, v{R+1}",
              f"v_mul_u32_u24 v{R}, 160, v{R}", f"v_and_b32 v{R+1}, 3, v{V_LANE}",
              f"v_lshl_add_u32 v{R}, v{R+1}, 3, v{R}")
        q(f"v_add_u32 v{R}, s{S_J1}, v{R}")
        if self.opt.get("job_mode") != "dma":
            q(f"v_add_u32 v{R+1}, s{S_J1}, v{V_TW+2}")
        at(2)
        dma = self.opt.get("job_mode") == "dma"
        if dma:
            st["w"] = self.job_tok
        else:
            self.fill.append(lambda: p.wait(self.job_tok))
        for f in range(0 if dma else 5):
            at(2 + f // 2)
            self.fill.append(lambda f=f: st.__setitem__("w", p.e(
                f"ds_write_b128 v{R+1}, a[{192+4*f}:{195+4*f}] offset:{1024*f}")))
        land = [(L if is_c else D) + 4 * f for f in range(5)]
        for f in range(5):
            at((3 if dma else 7) + f // 2)

            def rd(f=f):
                p.wait(st["w"])
                op, o2 = ("ds_read_b64", 2048) if is_c else ("ds_read_b64_tr_b16", 1280)
                va, o1 = R, 32 * f
                if is_c:
                    va, o1 = (R + 1 if f % 4 else R), 0
                    if f % 4:
                        p.e(f"v_xor_b32 v{R+1}, {32*f}, v{R}")
                p.e(f"{op} v[{land[f]}:{land[f]+1}], v{va} offset:{o1}")
                st[f] = p.e(f"{op} v[{land[f]+2}:{land[f]+3}], v{va} offset:{o1 + o2}")
            rd.cost = 2
            self.fill.append(rd)
        if is_c:
            q(f"s_mov_b32 s{S_T2}, 0x05040100", f"s_mov_b32 s{S_T3}, 0x07060302")
        at(8 if dma else 12)
        self.fill.append(lambda: p.wait(st[4]))
        for f in range(5):
            if is_c and f < 4:
                re, im = land[f], land[f] + 2
                for k in range(2):
                    q(f"v_perm_b32 v{D+4*f+2*k}, v{im+k}, v{re+k}, s{S_T2}",
                      f"v_perm_b32 v{D+4*f+2*k+1}, v{im+k}, v{re+k}, s{S_T3}")
            if self.opt.get("job_spread"):
                continue
            at((10 if dma else 14) + 2 * f)
            self.fill.append(lambda f=f: setattr(self, "job_store", p.e(
                f"buffer_store_dwordx4 v[{D+4*f}:{D+4*f+3}], v{V_TW+2}, {srd(SWS)}, s{S_JOB} offen{self.wt}")))
            if f < 4:
                q(f"s_add_u32 s{S_JOB}, s{S_JOB}, {(5120 if f < 3 else OOB) if is_c else 1024}")
        if self.opt.get("job_spread"):
            q(f"s_mov_b32 s{S_R}, {5120 if is_c else 1024}", f"s_mov_b32 s{S_XB}, {OOB if is_c else 1024}")

    def job_stores(self, D, then):
        e, n = self.p.e, self.opt["job_spread"]

        def one(f):
            self.job_store = e(f"buffer_store_dwordx4 v[{D+4*f}:{D+4*f+3}], v{V_TW+2}, {srd(SWS)}, s{S_JOB} offen{self.wt}")
            if f < 4:
                e(f"s_add_u32 s{S_JOB}, s{S_JOB}, s{S_R if f < 3 else S_XB}")
            else:
                then()
        for f in range(5):
            self.timers.append((self.mf + 2 + n * f, lambda f=f: one(f)))

    def fork_job(self, tag, m0, R, L):
        e, fa = self.p.e, self.opt.get("fork_at", 65)
        n = 20 if self.opt.get("job_mode") == "dma" else 24
        if self.opt.get("job_spread"):
            n = 15
        self.fork = (fa, fa + n, lambda: (e(f"s_cmp_eq_u32 s{S_J2}, 1"), e(f"s_cbranch_scc1 FORK_ALT_{tag}")),
                     lambda: self.a_job(False, m0, R, L), lambda: self.a_job(True, m0, R, L), tag)
        return fa + n

    def jf_load(self, R):
        e = self.p.e
        e(f"s_lshl_b32 s{S_WB+1}, s{S_CG}, 11")
        e(f"s_add_u32 s{S_WB+1}, s{S_WB+1}, {JF_OFF}")
        e(f"v_and_b32 v{R+1}, 15, v{V_LANE}")
        e(f"v_lshlrev_b32 v{R+1}, 7, v{R+1}")
        self.jf_tok = self.flag_load(R)

    def flag_load(self, R):
        e = self.p.e
        e(f"v_mov_b32 v{R}, s{S_EPOCH}")
        e("s_mov_b64 exec, 0xffff")
        t = e(f"buffer_load_dword v{R}, v{R+1}, {srd(SWS)}, s{S_WB+1} offen sc1")
        e("s_mov_b64 exec, -1")
        return t

    def all_equal(self, R, n, label):
        e = self.p.e
        e(f"v_xor_b32 v{R}, s{S_EPOCH}, v{R}")
        for k in range(1, n):
            e(f"v_bitop3_b32 v{R}, v{R}, v{R+k}, s{S_EPOCH} bitop3:0xf6")
        e(f"v_cmp_ne_u32 vcc, 0, v{R}")
        e(f"s_cbranch_vccnz {label}")

    def jf_check(self, R, tag, first, per):
        p, e = self.p, self.p.e
        e(f"s_mov_b32 s{S_WB+2}, 0")
        p.wait(self.jf_tok)
        e(f"v_cmp_ne_u32 vcc, s{S_EPOCH}, v{R}")
        e(f"s_cbranch_vccnz JF_SLOW_{tag}")
        p.label(f"JF_OK_{tag}")
        self.polls.append((tag, R))
        e(f"s_lshr_b32 s{S_WB}, s{S_CG}, 3")
        e(f"s_mul_i32 s{S_WB}, s{S_WB}, 47")
        e(f"s_mul_i32 s{S_WB+1}, s{S_W}, 12")
        e(f"s_add_u32 s{S_WB+3}, s{S_WB}, s{S_WB+1}")
        if MIXED:
            e(f"s_mov_b32 s{S_WB+3}, 0")
        e(f"s_and_b32 s{S_WB}, s{S_CG}, 7")
        e(f"s_mul_i32 s{S_WB}, s{S_WB}, 94")
        e(f"s_add_u32 s{S_WB}, s{S_WB}, s{S_WB+3}")
        e(f"s_mul_i32 s{S_WB}, s{S_WB}, 5120")
        e(f"s_add_u32 s{S_WB0}, s{S_WB}, {W2F_OFF}")
        if MIXED:
            L = mixed_lists()
            e(f"s_lshr_b32 s{S_WB+1}, s{S_CG}, 3"); e(f"s_lshl_b32 s{S_WB+1}, s{S_WB+1}, 2")
            e(f"s_add_u32 s{S_WB+1}, s{S_WB+1}, s{S_W}")
            for c in range(8):
                words = [sum(v << (8 * k) for k, v in enumerate(L[c // 4, c % 4][4 * h:4 * h + 4])) for h in range(3)]
                if c:
                    e(f"s_cmp_eq_u32 s{S_WB+1}, {c}")
                for h in range(3):
                    e(f"s_cselect_b32 s{S_TB+h}, {words[h]:#x}, s{S_TB+h}" if c else f"s_mov_b32 s{S_TB+h}, {words[h]:#x}")
        else:
            for h in range(2):
                e(f"s_mov_b32 s{S_TB+h}, {nib('nat', h):#x}")
            for cond, name in ((f"s_cmp_eq_u32 s{S_W}, 0", "w0"), (f"s_cmp_eq_u32 s{S_W}, 3", "w3"), (f"s_cmp_lt_u32 s{S_CG}, 8", "k0")):
                e(cond)
                for h in range(2):
                    e(f"s_cselect_b32 s{S_TB+h}, {nib(name, h):#x}, s{S_TB+h}")

        def ld(n):
            i, cb = divmod(n, 5)
            if cb == 0:
                e(rel(S_WB, i))
                e(f"s_mul_i32 s{S_WB}, s{S_WB}, 5120")
                e(f"s_add_u32 s{S_WB}, s{S_WB}, s{S_WB0}")
                if i == 11:
                    e(f"s_cmp_eq_u32 s{S_W}, 3")
                    e(f"s_cselect_b32 s{S_WB}, {OOB}, s{S_WB}")
            va, off = ((V_L16 if n >= 60 - self.opt.get("w_keep", 12) else V_TW + 2), 1024 * cb) if cb < 4 else (0, 0)
            e(f"buffer_load_dwordx4 a[{WMAP[n]}:{WMAP[n]+3}], v{va}, {srd(SWS)}, s{S_WB} offen offset:{off} sc1")
        self.wq = [lambda n=n: ld(n) for n in range(60)]
        self.wfrom, self.wper = first, per

    def code_touch(self, tag, start, skip, lines, tmp):
        e = self.p.e
        b, per = S_M2, lines // 4
        e(f"s_getpc_b64 s[{b}:{b+1}]")
        self.p.label(f"CT_{tag}")
        if start is not None:
            e(f"s_add_u32 s{b}, s{b}, {start}-CT_{tag}")
            e(f"s_addc_u32 s{b+1}, s{b+1}, 0")
        e(f"s_mul_i32 s{S_T1}, s{S_W}, {per*128}")
        e(f"s_add_u32 s{S_T1}, s{S_T1}, {skip}")
        e(f"v_lshl_add_u32 v{tmp}, v{V_LANE}, 7, s{S_T1}")
        e(f"v_min_u32 v{tmp}, TEXT_END-{start or 'CT_' + tag}-4, v{tmp}")
        e(f"s_mov_b64 exec, {(1 << per) - 1:#x}")
        e(f"global_load_dword v{tmp+1}, v{tmp}, s[{b}:{b+1}]")
        e("s_mov_b64 exec, -1")

    def fire_timers(self):
        for tm in self.timers:
            tm[1]()
        self.timers = []
        for tok, f in self.lazy:
            self.pre_barrier.append(tok)
            self.on_barrier.append(f)
        self.lazy = []
        if self.on_barrier:
            self.barrier()

    def poll_paths(self):
        p, e = self.p, self.p.e
        for tag in self.heads:
            p.label(f"K2_EARLY_SLOW_{tag}")
            e(f"s_sleep {self.opt.get('done_sleep', 8)}")
            e(f"s_add_u32 s{S_SPIN}, s{S_SPIN}, 1")
            e(f"s_cmp_gt_u32 s{S_SPIN}, 100000")
            e(f"s_cbranch_scc1 K2_EARLY_OK_{tag}")
            self.early_load()
            e("s_waitcnt vmcnt(0)")
            e(f"v_cmp_ne_u32 vcc, s{S_EPOCH}, v15")
            e(f"s_cbranch_vccnz K2_EARLY_SLOW_{tag}")
            e(f"s_branch K2_EARLY_OK_{tag}")
        for tag, R in self.polls:
            p.label(f"JF_SLOW_{tag}")
            e("s_sleep 6")
            e(f"s_add_u32 s{S_WB+2}, s{S_WB+2}, 1")
            e(f"s_cmp_gt_u32 s{S_WB+2}, 20000")
            e(f"s_cbranch_scc1 JF_OK_{tag}")
            self.flag_load(R)
            e("s_waitcnt vmcnt(0)")
            e(f"v_cmp_ne_u32 vcc, s{S_EPOCH}, v{R}")
            e(f"s_cbranch_vccnz JF_SLOW_{tag}")
            e(f"s_branch JF_OK_{tag}")

    def w_some(self, n):
        while n > 0 and len(self.wq) > self.opt.get("w_keep", 12):
            self.wq.pop(0)()
            n -= 1

    def a_load(self, g, t, i, f):
        e = self.p.e
        if f == 0:
            e(rel(S_A, i))
            e(f"s_lshl_b32 s{S_A}, s{S_A}, 12")
            e(f"s_add_u32 s{S_A}, s{S_A}, s{S_A0 if t else S_A1}")
            if i == 11:
                e(f"s_cmp_eq_u32 s{S_W}, 3")
                e(f"s_cselect_b32 s{S_A}, s{S_OOB}, s{S_A}")
        return e(f"buffer_load_dwordx4 {slot(g, f)}, v{V_L16}, {srd(SWS)}, s{S_A} offen offset:{1024*f} sc1")

    def early_load(self):
        e = self.p.e
        e(f"v_mov_b32 v15, s{S_EPOCH}")
        if self.opt.get("fast"):
            e(f"s_mov_b64 exec, s[{S_M2}:{S_M2+1}]")
        else:
            e("s_mov_b64 exec, 0x7f7f" if MIXED else "s_mov_b64 exec, 0xbfff")
        t = e(f"buffer_load_dword v15, v2, {srd(SWS)}, s{S_DIV+2} offen sc1")
        e("s_mov_b64 exec, -1")
        return t

    def head_a(self, tag):
        p, e = self.p, self.p.e
        e(f"s_lshl_b32 s{S_DN}, s{S_MT}, 11"); e(f"s_add_u32 s{S_DN}, s{S_DN}, {DONE_OFF}")
        e(f"s_add_u32 s{S_DIV+2}, s{S_DN}, {DONE1_OFF - DONE_OFF}")
        e(f"v_and_b32 v2, 15, v{V_LANE}"); e("v_lshlrev_b32 v2, 7, v2")
        e(f"s_mov_b32 s{S_SPIN}, 0")
        split = self.opt.get("split", 0)
        fast = self.opt.get("fast", 0)
        if fast:
            e(f"s_mov_b32 s{S_DIV+2}, s{S_DN}")
            e(f"s_lshl_b32 s{S_M2}, 1, s{S_CG}"); e(f"s_andn2_b32 s{S_M2}, 0xffff, s{S_M2}"); e(f"s_mov_b32 s{S_M2+1}, 0")
        if (tag != "B") and split in (1, 4) and not (tag == "A" and self.opt.get("early_mid")):
            t_early = self.early_load()
        self.w_some(self.opt.get("head_w", 4))
        for x in self.mk_srd(SD, K_DSK, 1280) + self.mk_srd(SO, K_OUT, OUT_BYTES):
            e(x)
        e(f"v_mov_b32 v{V_L16}, v{V_TW+2}"); e(f"v_mov_b32 v{V_L16B}, v0")
        e(f"s_mov_b32 s{S_N}, s{S_WB+3}")
        e(f"s_lshr_b32 s{S_T2}, s{S_CG}, 3")
        e(f"s_lshl_b32 s{S_T3}, s{S_MT}, 1")
        e(f"s_add_u32 s{S_T3}, s{S_T3}, s{S_T2}")
        e(f"s_mul_i32 s{S_A0}, s{S_T3}, 94"); e(f"s_add_u32 s{S_A0}, s{S_A0}, s{S_N}"); e(f"s_lshl_b32 s{S_A0}, s{S_A0}, 12")
        e(f"s_xor_b32 s{S_A1}, s{S_T3}, 1")
        e(f"s_mul_i32 s{S_A1}, s{S_A1}, 94"); e(f"s_add_u32 s{S_A1}, s{S_A1}, s{S_N}"); e(f"s_lshl_b32 s{S_A1}, s{S_A1}, 12")
        e(f"s_lshl_b32 s{S_T3}, s{S_T3}, 6"); e(f"s_lshl_b32 s{S_T0}, s{S_W}, 4"); e(f"s_add_u32 s{S_T3}, s{S_T3}, s{S_T0}")
        e(f"s_and_b32 s{S_T1}, s{S_CG}, 7"); e(f"s_mul_i32 s{S_T1}, s{S_T1}, 160")
        e(f"s_mul_i32 s{S_XO}, s{S_T3}, 1280"); e(f"s_add_u32 s{S_XO}, s{S_XO}, s{S_T1}")
        e(f"s_lshl_b32 s{S_OO}, s{S_XO}, 1")
        e(f"s_mov_b32 s{S_DIV}, 0xcccd"); e(f"s_mov_b32 m0, s{S_J1}")
        for j in range(3):
            e(f"v_add_u32 v6, {64*j}, v{V_LANE}"); e(f"v_mul_lo_u32 v7, v6, s{S_DIV}"); e("v_lshrrev_b32 v7, 19, v7")
            e("v_mul_u32_u24 v8, 1120, v7"); e("v_lshl_add_u32 v8, v6, 4, v8")
            if j:
                e(f"v_add_u32 v8, {-1024*j & 0xffffffff:#x}, v8")
            if j == 2:
                e("s_mov_b32 exec_hi, 0")
            e(f"buffer_load_dwordx4 v8, {srd(SX)}, s{S_XO} offen offset:{1024*j} lds")
        e(f"s_add_u32 m0, s{S_J1}, 3072"); e("s_mov_b32 exec_lo, 0x3ff")
        t_res = e(f"buffer_load_dwordx4 v{V_L16}, {srd(SD)}, s{S_T1} offen lds")
        e("s_mov_b64 exec, -1")
        self.h = dict(t_res=t_res, t_early=locals().get("t_early"))

    def phase2_head(self, k, tag):
        p, e = self.p, self.p.e
        self.stamp(k)
        split, fast = self.opt.get("split", 0), self.opt.get("fast", 0)
        if not getattr(self, "h", None):
            self.head_a(tag)
        t_res, t_early = self.h["t_res"], self.h["t_early"]
        self.h = None
        def raise_done():
            e(f"s_lshl_b32 s{S_T0}, s{S_CG}, 7"); e(f"s_add_u32 s{S_T0}, s{S_T0}, s{S_DN}")
            e(f"s_cmp_eq_u32 s{S_W}, 0"); e(f"s_cselect_b32 s{S_T0}, s{S_T0}, {OOB}")
            e(f"v_mov_b32 v14, s{S_EPOCH}")
            self.barrier(self.last_store)
            if tag != "B" and (split == 2 or fast):
                st["early"] = self.early_load()
            e("s_mov_b64 exec, 1")
            if self.opt.get("atomic_flag"):
                e(f"buffer_atomic_swap v14, off, {srd(SWS)}, s{S_T0} sc1")
            else:
                e(f"buffer_store_dword v14, off, {srd(SWS)}, s{S_T0} {self.opt.get('flag_mod', 'sc1')}")
            e("s_mov_b64 exec, -1")
            self.stamp(k + 1)

        def go():
            p.wait(st["early"])
            e(f"v_cmp_ne_u32 vcc, s{S_EPOCH}, v15")
            e(f"s_cbranch_vccnz K2_EARLY_SLOW_{tag}")
            p.label(f"K2_EARLY_OK_{tag}")
            self.heads.append(tag)
            p.wait(t_res)
            for g in range(4):
                for f in range(4):
                    self.a_load(g, *(STEPS_MIXED[g] if MIXED else (0, g)), f)
        st = {"early": t_early}
        e(f"s_mov_b32 s{S_OOB}, {OOB}")
        late_done = split == 4 and tag == "A"
        if not late_done:
            raise_done()
        self.w_some(60)
        if tag == "B" and (split or fast):
            st["early"] = self.early_load()
        if split in (1, 4) or fast == 1:
            go()
        if split == 4 and not late_done:
            e(f"buffer_store_dword v14, off, {srd(SWS)}, s{S_OOB} sc1")
        self.w_rest = list(self.wq)
        e(f"s_and_b32 s{S_T3}, s{S_T3}, 127"); e(f"s_lshl_b32 s{S_T3}, s{S_T3}, 3"); e(f"s_add_u32 s{S_T3}, s{S_T3}, {STL}")
        e(f"s_mul_i32 s{S_T2}, s{S_W}, 5376")
        XR, DR, SR, T = ACC2, ACC2 + 10, ACC2 + 20, ACC2 + 32
        AD = ACC2 + 60
        cbw = self.opt.get("cbw", 0)
        if cbw:
            e(f"v_lshrrev_b32 v7, 2, v{V_LANE}"); e(f"v_and_b32 v8, 3, v{V_LANE}")
            e("v_mul_u32_u24 v9, 2560, v7"); e(f"v_lshl_add_u32 v{V_OA}, v8, 4, v9")
            e("v_mul_u32_u24 v12, 336, v7"); e("v_lshl_add_u32 v12, v8, 4, v12"); e(f"v_add_u32 v{V_LA}, s{S_T2}, v12")
            e(f"v_lshl_add_u32 v{AD}, v8, 3, s{S_J1}"); e("v_mul_u32_u24 v10, 160, v7"); e(f"v_add_u32 v10, v10, v{AD}")
            e(f"v_lshl_add_u32 v11, v7, 3, s{S_T3}")
            e(f"ds_read_b64 v[{SR}:{SR+1}], v11")
        else:
            e(f"v_lshlrev_b32 v10, 3, v{V_LANE}"); e(f"v_add_u32 v10, s{S_J1}, v10")
            for i in range(5):
                e(f"v_add_u32 v6, {64*i}, v{V_LANE}"); e(f"v_mul_lo_u32 v7, v6, s{S_DIV}"); e("v_lshrrev_b32 v7, 20, v7")
                e("v_mul_u32_u24 v8, 20, v7"); e("v_sub_u32 v8, v6, v8")
                e("v_mul_u32_u24 v9, 2560, v7"); e(f"v_lshl_add_u32 v{V_OA+i}, v8, 4, v9")
                e("v_mul_u32_u24 v12, 336, v7"); e("v_lshl_add_u32 v12, v8, 4, v12")
                e(f"v_add_u32 v{V_LA+i}, s{S_T2}, v12")
                e(f"v_lshl_add_u32 v{AD+i}, v8, 3, s{S_J1}"); e(f"v_lshl_add_u32 v11, v7, 3, s{S_T3}")
                e(f"ds_read_b64 v[{SR+2*i}:{SR+2*i+1}], v11")
        e(f"v_and_b32 v{V_WA}, 15, v{V_LANE}"); e(f"v_mul_u32_u24 v{V_WA}, 336, v{V_WA}")
        e(f"v_lshrrev_b32 v6, 4, v{V_LANE}"); e(f"v_lshl_add_u32 v{V_WA}, v6, 4, v{V_WA}")
        e(f"s_mul_i32 s{S_T2}, s{S_W}, 21504"); e(f"v_add_u32 v{V_WA}, s{S_T2}, v{V_WA}")
        e(f"v_add_u32 v{V_PK}, s{S_J1}, v{V_L16}")
        e("s_lshl_b32 s3, s2, 2"); e(f"s_add_u32 s3, s3, s{S_W}")
        e(f"s_mul_i32 s{S_PO}, s3, 5120"); e(f"s_add_u32 s{S_PO}, s{S_PO}, {PART_OFF}")
        e("s_xor_b32 s3, s3, 4")
        e(f"s_mul_i32 s{S_PI}, s3, 5120"); e(f"s_add_u32 s{S_PI}, s{S_PI}, {PART_OFF}")
        if self.opt.get("a_pref"):
            e(f"s_and_b32 s{S_T0}, s{S_CG}, 7"); e(f"s_lshl_b32 s{S_T0}, s{S_T0}, 2"); e(f"s_add_u32 s{S_T0}, s{S_T0}, s{S_W}")
            e(f"s_mul_i32 s{S_T0}, s{S_T0}, 94")
            e(f"s_mov_b32 s{S_T1}, {94*4096 - 1504*128}")
            for j, r in ((0, 6), (1, 7)):
                e(f"v_add_u32 v{r}, s{S_T0}, v{V_LANE}")
                if j:
                    e(f"v_add_u32 v{r}, 64, v{r}")
                e(f"v_cmp_lt_u32 vcc, 1503, v{r}")
                e(f"v_lshlrev_b32 v{r}, 7, v{r}")
                e(f"v_add_u32 v8, s{S_T1}, v{r}")
                e(f"v_cndmask_b32 v{r}, v{r}, v8, vcc")
            e(f"s_lshr_b32 s{S_T0}, s{S_CG}, 3"); e(f"s_mul_i32 s{S_T0}, s{S_T0}, 47")
            e(f"s_mul_i32 s{S_T1}, s{S_MT}, 188"); e(f"s_add_u32 s{S_T0}, s{S_T0}, s{S_T1}")
            e(f"s_lshl_b32 s{S_DIV+2}, s{S_T0}, 12")
        e(f"v_mov_b32 v{V_T}, 0xff")
        e(f"s_mov_b32 s{S_TG}, s{S_EPOCH}")
        for j in range(1, 4):
            e(f"s_lshr_b32 s{S_TG+j}, s{S_TG}, {8*j}"); e(f"s_add_u32 s{S_TG+j}, s{S_TG+j}, s{S_TG}")
        t = None
        if fast == 2:
            go()
        p.wait(t_res)
        for i in range(5):
            e(f"ds_read_b64 v[{XR+2*i}:{XR+2*i+1}], v10 offset:{(32 if cbw else 512)*i}")
            t = e(f"ds_read_b64 v[{DR+2*i}:{DR+2*i+1}], v{AD} offset:{3072 + 32*i}" if cbw else
                  f"ds_read_b64 v[{DR+2*i}:{DR+2*i+1}], v{AD+i} offset:3072")
        p.wait(t)
        M = f"s{S_MASK}"
        for i in range(5):
            if split == 2 and i == self.opt.get("go_at", 0):
                go()
            x0, d0, s0 = XR + 2 * i, DR + 2 * i, (SR if cbw else SR + 2 * i)
            for j, r in enumerate((x0, x0 + 1, d0, d0 + 1)):
                e(f"v_lshlrev_b32 v{T+2*j}, 16, v{r}"); e(f"v_and_b32 v{T+2*j+1}, {M}, v{r}")
            for j in range(4):
                e(f"v_fma_f32 v{T+8+j}, v{T+j}, v{s0}, v{s0+1}")
            for rnd in range(2):
                e(f"v_cvt_pk_bf16_f32 v{T+12}, v{T+8}, v{T+9}"); e(f"v_cvt_pk_bf16_f32 v{T+13}, v{T+10}, v{T+11}")
                e(f"v_lshlrev_b32 v{T+8}, 16, v{T+12}"); e(f"v_and_b32 v{T+9}, {M}, v{T+12}")
                e(f"v_lshlrev_b32 v{T+10}, 16, v{T+13}"); e(f"v_and_b32 v{T+11}, {M}, v{T+13}")
                if rnd == 0:
                    for j in (0, 2):
                        e(f"v_pk_mul_f32 v[{T+8+j}:{T+9+j}], v[{T+8+j}:{T+9+j}], v[{T+4+j}:{T+5+j}]")
            o = T + 16 + 4 * (i % 2)
            for j in (0, 2):
                e(f"v_pk_add_f32 v[{o+j}:{o+j+1}], v[{T+j}:{T+j+1}], v[{T+8+j}:{T+9+j}]")
            e(f"ds_write_b128 v{V_PK}, v[{o}:{o+3}] offset:{1024*i}")
        if self.opt.get("a_pref") == 2:
            e(f"buffer_load_dword v8, v6, {srd(SWS)}, s{S_DIV+2} offen sc1")
            e("s_mov_b64 exec, 0x3fffffff")
            e(f"buffer_load_dword v9, v7, {srd(SWS)}, s{S_DIV+2} offen sc1")
            e("s_mov_b64 exec, -1")
        if late_done:
            raise_done()
        e("s_branch K2_START")

    def phase2(self):
        p, e, opt = self.p, self.p.e, self.opt
        fill, tok, st, ld = [], {}, {}, []
        cur, cnt = {"g": 0}, {"m": 0}
        NS, F = 5, opt.get("k2_fuse", 3)
        PD = NS - 1

        def q(*texts):
            for t in texts:
                fill.append(t if callable(t) else (lambda t=t: e(t)))

        def pull(budget):
            start = p.slots
            while fill and p.slots - start < budget:
                it = fill[0]
                if isinstance(it, tuple):
                    if not it[0]():
                        return
                    fill.pop(0)
                    continue
                fill.pop(0)
                it()

        def lag(n):
            mark = {}
            q(lambda: mark.__setitem__("m", cnt["m"]))
            fill.append((lambda: cnt["m"] >= mark["m"] + n or cur["g"] > 98,))

        J = opt.get("k2_j", 2 if opt.get("split", 0) else 0)
        steps = [(0, i) for i in range(6)] + [(1, i) for i in range(J)] + [(0, i) for i in range(6, 12)] + \
                [(1, i) for i in range(J, 12)]
        G1 = 12 + J
        GL = 6 + J
        if MIXED:
            steps = STEPS_MIXED
            G1, GL = 15, 6
        HOLD = opt.get("k2_hold", 2) if MIXED else 0

        def loads(g):
            t, i = steps[g]

            return [lambda f=f: tok.__setitem__(g, self.a_load(g, t, i, f)) for f in range(4)]

        def done_load():
            e(f"v_mov_b32 v15, s{S_EPOCH}")
            e("s_mov_b64 exec, 0xffff")
            st["dn"] = e(f"buffer_load_dword v15, v2, {srd(SWS)}, s{S_DN} offen sc1")
            e("s_mov_b64 exec, -1")

        def done_check():
            e(f"v_cmp_ne_u32 vcc, s{S_EPOCH}, v15")
            e("s_cbranch_vccnz K2_LATE_SLOW")

        cbw = opt.get("cbw", 0)

        def red_read(r, i, wv):
            a = f"v{V_LA} offset:{wv*21504 + 64*i}" if cbw else f"v{V_LA+i} offset:{wv*21504}"
            return f"ds_read_b128 v[{r}:{r+3}], {a}"

        def tile_to_lds(acc):
            return [f"ds_write_b128 v{V_WA}, v[{acc+(cb*4+rb)*4}:{acc+(cb*4+rb)*4+3}] offset:{rb*5376 + cb*64}"
                    for cb in range(5) for rb in range(4)]

        def barrier():
            p.wait_all(vm=False)
            e("s_barrier")

        def part_loads():
            for i in range(5):
                r = ACC1 + 16 * i + 8
                va, off = (V_L16, 1024 * i) if i < 4 else (V_L16B, 0)
                st["pi"] = e(f"buffer_load_dwordx4 v[{r}:{r+3}], v{va}, {srd(SWS)}, s{S_PI} offen offset:{off} sc1")

        def part_check():
            for i in range(5):
                for k in range(4):
                    r = ACC1 + 16 * i + 8 + k
                    if i + k == 0:
                        e(f"v_xor_b32 v{V_T+1}, s{S_TG}, v{r}")
                    else:
                        e(f"v_bitop3_b32 v{V_T+1}, v{V_T+1}, v{r}, s{S_TG+k} bitop3:0xf6")
            e(f"v_and_b32 v{V_T+1}, v{V_T}, v{V_T+1}")
            e(f"v_cmp_ne_u32 vcc, 0, v{V_T+1}")
            e("s_cbranch_vccnz K2_SLOW")

        def first_tile_done():
            for x in tile_to_lds(ACC1):
                q(x)
                lag(opt.get("k2_wlag", 2))
            lag(opt.get("k2_blag", 4))
            q(barrier)
            for i in range(5):
                for wv in range(4):
                    r = ACC1 + 16 * i + 4 * wv
                    q(lambda i=i, r=r, wv=wv: st.__setitem__(("rd", i), e(red_read(r, i, wv))))
            for i in range(5):
                r = ACC1 + 16 * i
                q(lambda i=i: p.wait(st["rd", i]))
                for k in range(4):
                    q(f"v_add_f32 v{r+k}, v{r+k}, v{r+4+k}", f"v_add_f32 v{r+8+k}, v{r+8+k}, v{r+12+k}")
                q(*[f"v_add_f32 v{r+k}, v{r+k}, v{r+8+k}" for k in range(4)])
                q(*[f"v_bfi_b32 v{r+k}, v{V_T}, s{S_TG+k}, v{r+k}" for k in range(4)])
                va, off = (V_L16, 1024 * i) if i < 4 else (V_L16B, 0)
                q(f"buffer_store_dwordx4 v[{r}:{r+3}], v{va}, {srd(SWS)}, s{S_PO} offen offset:{off} sc1")
            q("s_barrier")
            for i in range(5):
                r = ACC1 + 16 * i + 4
                q(lambda i=i, r=r: st.__setitem__("pk", e(f"ds_read_b128 v[{r}:{r+3}], v{V_PK} offset:{1024*i}")))
            fill.append((lambda: cnt["m"] >= opt.get("k2_pollm", 440),))
            q(part_loads)

        def mfma(g, cb, rb):
            t, i = steps[g]
            acc = ACC2 if t else ACC1
            w = WMAP[5 * i + cb]
            c = f"v[{acc+(cb*4+rb)*4}:{acc+(cb*4+rb)*4+3}]"
            start = p.slots
            e(f"v_mfma_f32_16x16x32_bf16 {c}, a[{w}:{w+3}], {slot(g, rb)}, {c if i else 0}")
            cnt["m"] += 1
            if cnt["m"] % 4 == 2 and ld:
                ld.pop(0)()
            elif cnt["m"] % 4 == 0 and wrest:
                wrest.pop(0)()
            return start

        p.label("K2_START")
        if not opt.get("split", 0) and not opt.get("fast", 0):
            e(f"s_cmp_lg_u32 s{S_W}, 0")
            e("s_cbranch_scc1 K2_GO")
            e("s_mov_b64 exec, 0xffff")
            p.label("K2_RETRY")
            if opt.get("atomic_poll"):
                e("v_mov_b32 v15, 0")
                e(f"buffer_atomic_add v15, v2, {srd(SWS)}, s{S_DN} offen sc0 sc1")
            else:
                e(f"buffer_load_dword v15, v2, {srd(SWS)}, s{S_DN} offen {opt.get('poll_mod', 'sc1')}")
            e(f"s_add_u32 s{S_SPIN}, s{S_SPIN}, 1")
            e("s_waitcnt vmcnt(0)")
            e(f"v_cmp_ne_u32 vcc, s{S_EPOCH}, v15")
            e("s_cbranch_vccz K2_SEEN")
            if opt.get("backoff"):
                e(f"s_bcnt1_i32_b64 s{S_T0}, vcc")
                e(f"s_cmp_lt_u32 s{S_T0}, {opt.get('backoff_n', 12)}")
                e("s_cbranch_scc1 K2_SHORT")
                e(f"s_sleep {opt['backoff']}")
                p.label("K2_SHORT")
            e(f"s_sleep {opt.get('done_sleep', 3)}")
            e(f"s_cmp_lt_u32 s{S_SPIN}, 100000")
            e("s_cbranch_scc1 K2_RETRY")
            p.label("K2_SEEN")
            e("s_mov_b64 exec, -1")
            p.label("K2_GO")
            e("s_barrier")
            assert not MIXED
            if opt.get("a_pref"):
                e(f"buffer_load_dword v8, v6, {srd(SWS)}, s{S_DIV+2} offen sc1")
                e("s_mov_b64 exec, 0x3fffffff")
                e(f"buffer_load_dword v9, v7, {srd(SWS)}, s{S_DIV+2} offen sc1")
                e("s_mov_b64 exec, -1")
            for g in range(4):
                for f in range(4):
                    self.a_load(g, 0, g, f)
        p.vq, p.vdone, p.lq, p.ldone = (17 if opt.get("split") == 4 else 16), 0, 5, 0
        for g in range(4):
            tok[g] = ("v", 4 * g + 4)
        self.stamp(10)
        if opt.get("stamp"):
            e(f"s_mov_b32 s{S_WB+2}, s{S_SPIN}")
        e(f"s_mov_b32 s{S_SPIN}, 0")
        e(f"s_mov_b32 s{S_WB+1}, 0")
        wrest = list(self.w_rest)
        for g in range(24 - F):
            cur["g"] = g
            if g + PD + opt.get("k2_dlead", 2) == GL + HOLD and opt.get("split", 0):
                done_load()
            if g == G1:
                self.stamp(11)
                first_tile_done()
            p.wait(tok[g])
            if g + PD == GL + HOLD and opt.get("split", 0):
                p.wait(st["dn"])
                done_check()
                p.label("K2_LATE_OK")
                for g2 in range(GL, GL + HOLD):
                    for f in loads(g2):
                        f()
            if g + PD < 24 and not (GL <= g + PD < GL + HOLD):
                ld.extend(loads(g + PD))
            for cb in range(5):
                for rb in range(4):
                    start = mfma(g, cb, rb)
                    pull(opt.get("k2_b2", 4) - (p.slots - start))
            while ld:
                ld.pop(0)()
        cur["g"] = 98
        if cbw:
            tl = tile_to_lds(ACC2)
            rd = {}

            def gather(cb):
                barrier()
                for wv in range(4):
                    rd[cb] = e(red_read(ACC2 + 16 * cb + 4 * wv, cb, wv))

            def sums(cb, packed):
                r, s = ACC2 + 16 * cb, ACC1 + 16 * cb + 4
                out = [lambda: p.wait(rd[cb], st["pk"])]
                if packed:
                    for k in (0, 2):
                        out += [f"v_pk_add_f32 v[{r+k}:{r+k+1}], v[{r+k}:{r+k+1}], v[{r+4+k}:{r+5+k}]",
                                f"v_pk_add_f32 v[{r+8+k}:{r+9+k}], v[{r+8+k}:{r+9+k}], v[{r+12+k}:{r+13+k}]",
                                f"v_pk_add_f32 v[{s+k}:{s+k+1}], v[{s+k}:{s+k+1}], v[{r+k}:{r+k+1}]"]
                    out += [f"v_pk_add_f32 v[{s+k}:{s+k+1}], v[{s+k}:{s+k+1}], v[{r+8+k}:{r+9+k}]" for k in (0, 2)]
                else:
                    for j in range(4):
                        out += [f"v_add_f32 v{s+k}, v{s+k}, v{r+4*j+k}" for k in range(4)]
                return out
            side = []
            for cb in range(5):
                wr = tl[4 * cb - 4:4 * cb] if cb else []
                n = 0
                for g in range(24 - F, 24):
                    p.wait(tok[g])
                    for rb in range(4):
                        start = mfma(g, cb, rb)
                        n += 1
                        if wr and n > 1 and n % 2 == 0:
                            e(wr.pop(0))
                        else:
                            for _ in range(2):
                                if side:
                                    it = side.pop(0)
                                    it() if callable(it) else e(it)
                        pull(opt.get("k2_b2", 4) - (p.slots - start))
                assert not wr
                while side:
                    it = side.pop(0)
                    it() if callable(it) else e(it)
                if cb:
                    assert "pk" in st
                    gather(cb - 1)
                    side = sums(cb - 1, cb == 4)
            cur["g"] = 99
            self.stamp(12)
            pull(10000)
            assert not fill
            for x in tl[16:]:
                e(x)
            for it in side:
                it() if callable(it) else e(it)
            p.wait(st["pi"])
            part_check()
            p.label("K2_OK")
            gather(4)
            e(f"s_mov_b32 s{S_DIV}, 0xffffff00")
            for i in range(5):
                s = ACC1 + 16 * i
                for k in range(4):
                    e(f"v_and_b32 v{s+8+k}, s{S_DIV}, v{s+8+k}")
                if i == 4:
                    for it in sums(4, True):
                        it() if callable(it) else e(it)
                for k in (0, 2):
                    e(f"v_pk_add_f32 v[{s+k}:{s+k+1}], v[{s+4+k}:{s+5+k}], v[{s+8+k}:{s+9+k}]")
                e(f"buffer_store_dwordx4 v[{s}:{s+3}], v{V_OA}, {srd(SO)}, s{S_OO} offen offset:{64*i}{opt.get('owt', ' sc1')}")
        else:
            wr, tl = [], tile_to_lds(ACC2)
            for cb in range(5):
                n = 0
                for g in range(24 - F, 24):
                    p.wait(tok[g])
                    for rb in range(4):
                        start = mfma(g, cb, rb)
                        n += 1
                        if wr and n > 2 and (n - 3) % max(1, F - 1) == 0:
                            e(wr.pop(0))
                        pull(opt.get("k2_b2", 4) - (p.slots - start))
                for x in wr:
                    e(x)
                wr = tl[4 * cb:4 * cb + 4]
            cur["g"] = 99
            self.stamp(12)
            pull(10000)
            assert not fill
            for x in wr:
                e(x)
            p.wait(st["pi"], st["pk"])
            part_check()
            p.label("K2_OK")
            e(f"s_mov_b32 s{S_DIV}, 0xffffff00")
            for i in range(5):
                s = ACC1 + 16 * i
                for k in range(4):
                    e(f"v_and_b32 v{s+8+k}, s{S_DIV}, v{s+8+k}")
                for k in range(0, 4, 2):
                    e(f"v_pk_add_f32 v[{s+k}:{s+k+1}], v[{s+4+k}:{s+5+k}], v[{s+8+k}:{s+9+k}]")
            barrier()
            rd = {}
            for i in range(5):
                for wv in range(4):
                    r = ACC2 + 16 * i + 4 * wv
                    rd[i] = e(f"ds_read_b128 v[{r}:{r+3}], v{V_LA+i} offset:{wv*21504}")
            for i in range(5):
                r, s = ACC2 + 16 * i, ACC1 + 16 * i
                p.wait(rd[i])
                for k in range(0, 4, 2):
                    e(f"v_pk_add_f32 v[{r+k}:{r+k+1}], v[{r+k}:{r+k+1}], v[{r+4+k}:{r+5+k}]")
                    e(f"v_pk_add_f32 v[{r+8+k}:{r+9+k}], v[{r+8+k}:{r+9+k}], v[{r+12+k}:{r+13+k}]")
                    e(f"v_pk_add_f32 v[{s+k}:{s+k+1}], v[{s+k}:{s+k+1}], v[{r+k}:{r+k+1}]")
                for k in range(0, 4, 2):
                    e(f"v_pk_add_f32 v[{s+k}:{s+k+1}], v[{s+k}:{s+k+1}], v[{r+8+k}:{r+9+k}]")
                e(f"buffer_store_dwordx4 v[{s}:{s+3}], v{V_OA+i}, {srd(SO)}, s{S_OOB if opt.get('dbg_noout') else S_OO} offen{opt.get('owt', ' sc1')}")
        e(f"s_or_b32 s{S_T0}, s2, s{S_W}")
        e(f"s_cmp_eq_u32 s{S_T0}, 0")
        e(f"s_cselect_b32 s{S_T0}, {EPOCH_OFF}, s{S_OOB}")
        e(f"v_mov_b32 v{V_T}, s{S_EPOCH}")
        e("s_mov_b64 exec, 1")
        e(f"buffer_store_dword v{V_T}, off, {srd(SWS)}, s{S_T0} sc1")
        e("s_mov_b64 exec, -1")
        if opt.get("stamp"):
            tm = "s_memrealtime" if opt.get("rt") else "s_memtime"
            e(f"{tm} s[{SA1}:{SA1+1}]")
            p.wait_all()
            e(f"{tm} s[{SA1+2}:{SA1+3}]")
            e(f"s_memrealtime s[{S_M2}:{S_M2+1}]")
            e(f"s_lshl_b32 s{S_T0}, s2, 2"); e(f"s_add_u32 s{S_T0}, s{S_T0}, s{S_W}")
            e(f"s_lshl_b32 s{S_T0}, s{S_T0}, 7"); e(f"s_add_u32 s{S_T0}, s{S_T0}, {STAMP1_OFF}")
            e("s_waitcnt lgkmcnt(0)")
            e(f"s_getreg_b32 s{S_T2}, hwreg(HW_REG_XCC_ID)")
            e(f"s_getreg_b32 s{S_T3}, hwreg(HW_REG_HW_ID)")
            for k, r in enumerate(STAMP_REGS + [SA1, SA1 + 2, 94, S_M2, S_WB + 2, S_SPIN, S_WB + 1, S_T2, S_T3]):
                e(f"v_mov_b32 v6, s{r}")
                e(f"buffer_store_dword v6, off, {srd(SWS)}, s{S_T0} offset:{4*k}")
        p.label("K1_END")
        e("s_endpgm")
        if opt.get("split", 0):
            p.label("K2_LATE_SLOW")
            e(f"s_sleep {opt.get('done_sleep', 8)}")
            e(f"s_add_u32 s{S_WB+1}, s{S_WB+1}, 1")
            e(f"s_cmp_gt_u32 s{S_WB+1}, 100000")
            e("s_cbranch_scc1 K2_LATE_OK")
            done_load()
            e("s_waitcnt vmcnt(0)")
            done_check()
            e("s_branch K2_LATE_OK")
        p.label("K2_SLOW")
        e("s_sleep 2")
        e(f"s_add_u32 s{S_SPIN}, s{S_SPIN}, 1")
        e(f"s_cmp_gt_u32 s{S_SPIN}, 100000")
        e("s_cbranch_scc1 K2_OK")
        part_loads()
        e("s_waitcnt vmcnt(0)")
        part_check()
        e("s_branch K2_OK")

    def build_dsd(self):
        p, e, o = self.p, self.p.e, self.opt
        global MIXED
        MIXED = bool(o.get("split"))
        self.JA = V_PRE
        self.prologue()
        e(f"s_cmp_eq_u32 s{S_TYPE}, 2")
        e("s_cbranch_scc1 K1_TYPE_C")
        snap0 = self.snapshot()
        self.prologue2("F", o.get("npre", 2))
        self.a_job_setup("AB")
        e(f"s_cmp_eq_u32 s{S_TYPE}, 1")
        e("s_cbranch_scc1 K1_TYPE_B")
        snap = self.snapshot()
        g1, g2 = o.get("lb_issue", 345), o.get("lb_check", 365)
        jf = lambda tmp: self.flag_later(tmp, None, lambda: self.job_store, JF_OFF, S_CG, S_MT)
        head = [("F", i, S_D1) for i in range(10)] + [("S", i, 0) for i in range(5)]
        for typ in "AB":
            if typ == "B":
                p.label("K1_TYPE_B")
                self.restore(snap)
            m0 = self.mf
            self.norm_every = 2
            fb = self.fork_job(typ, m0, 188, 48)

            def s0():
                self.stamp(4)
                self.epi_done = False
                self.ffn_epilogue(192, S_KD1, 48)
                self.fill.append(lambda: setattr(self, "epi_done", True))
                if MIXED:
                    self.fill.append(lambda: self.flag_later(66, None, lambda t=self.last_store: t, DONE1_OFF, S_MT, S_CG))

            def wstart():
                assert self.epi_done
                self.jf_check(64, "A", 240, 4)

            def d0(typ=typ, m0=m0):
                self.stamp(5)
                rest, self.fill = self.fill, []
                self.ssm_reduce(0, ACC_S, 188, False, 56)
                k = next(i for i, x in enumerate(self.fill) if isinstance(x, tuple) and x[0] == "bar")
                self.fill = self.fill[:k] + rest + self.fill[k:] if o.get("rest_mid", 1) else self.fill + rest
                self.ssm_finish(0, ACC_S, 188, lambda: self.mf - m0 >= g1, lambda: self.mf - m0 >= g2, typ)
            hooks = {fb: lambda: jf(210), 156: self.stats_to_lds, 161: s0}
            frags = self.d_frags(0, 192, "a") + self.s_frags(10, ACC_S)
            if typ == "A":
                j1 = o.get("jf_at", 250)
                hooks.update({241: d0, j1 - 23: lambda: self.jf_load(64), j1: wstart})
                self.run(head + [("F", i, S_D2) for i in range(10)], frags + self.d_frags(15, ACC_D2), hooks)
                self.stamp(6)
                self.mf += 1000
                tw = o.get("tail_w", 3)
                if o.get("tail_first", 1):
                    self.ffn_tail(ACC_D2, S_KD2, {(0, 0): lambda: self.w_some(tw), (0, 1): lambda: self.w_some(tw)}, 64)
                    self.flush()
                else:
                    self.flush()
                    self.ffn_tail(ACC_D2, S_KD2, {(0, 0): lambda: self.w_some(tw), (0, 1): lambda: self.w_some(tw)}, 64)
            else:
                self.run(head, frags, hooks)
                self.mf += 1000
                self.flush()
                self.fire_timers()
                self.stamp(5)
                self.ssm_reduce(0, ACC_S, 188)
                self.flush()
                self.stamp(6)
                self.jf_load(64)
                self.p.e("s_sleep 32")
                self.jf_check(64, "B", 0, 1)
                self.w_some(o.get("b_w", 30))
                self.ssm_finish(0, ACC_S, 188, None, None, "B")
                self.flush()
            self.stamp(7)
            self.phase2_head(8, typ)
        p.label("K1_TYPE_C")
        self.restore(snap0)
        self.is_c = True
        self.norm_every = 1
        self.prologue2("S", 8)
        self.a_job_setup("C")
        self.path_c(jf, None)
        self.slow_paths()
        self.poll_paths()
        self.phase2()
        p.fix_hazards()
        return p

    def sd_frags(self, accs):
        d = self.d_frags(0, 192, "a")
        out, win = [], 0
        for s in range(40):
            i = s // 8
            ns, nf = 3 * i + 1, 3 * i + (2 if s % 8 >= 4 else 0)
            for mat in range(2):
                c = f"v[{accs[mat]}:{accs[mat]+15}]"
                fr = dict(stage=ns, reads=[f"ds_read_b128 a[{{f0}}:{{f3}}], v{self.AS + s % 8} offset:{(ns % 4)*16384 + mat*8192}"],
                          mfma=f"v_mfma_f32_32x32x16_bf16 {c}, a[{XN+4*s}:{XN+4*s+3}], a[{{f0}}:{{f3}}], {c if s else 0}")
                if s % 8 == 0 and mat == 0:
                    fr["also"] = [nf]
                    if (ns % 8) // 4 != win:
                        win ^= 1
                        fr["pre"] = [f"v_xor_b32 v{self.AS+k}, 0x10000, v{self.AS+k}" for k in range(8)]
                out.append(fr)
            for k in range(4):
                j, mat = k // 2, k % 2
                a = V_TR + 2 * ((nf % 8) // 4) + j
                off = (nf % 4) * 16384 + mat * 8192 + (s % 4) * 2048
                out.append(dict(stage=nf, mfma=d[4 * s + k]["mfma"], reads=[
                    f"ds_read_b64_tr_b16 a[{{f0}}:{{f1}}], v{a} offset:{off}",
                    f"ds_read_b64_tr_b16 a[{{f2}}:{{f3}}], v{a} offset:{off+512}"]))
        return out

    def build_sd(self):
        p, e, o = self.p, self.p.e, self.opt
        self.JA = V_PRE
        self.prologue()
        e(f"s_cmp_eq_u32 s{S_TYPE}, 2")
        e("s_cbranch_scc1 K1_TYPE_C")
        snap0 = self.snapshot()
        self.AS, self.AX = 204, 216
        accs = (188, 216)
        head = []
        for i in range(5):
            head += [("F", 2 * i, S_D1), ("S", i, 0), ("F", 2 * i + 1, S_D1)]
        self.prologue2("SD", o.get("npre", 2), head)
        self.a_job_setup("AB")
        e(f"s_cmp_eq_u32 s{S_TYPE}, 1")
        e("s_cbranch_scc1 K1_TYPE_B")
        snap = self.snapshot()
        g1, g2 = o.get("lb_issue", 345), o.get("lb_check", 365)
        jf = lambda tmp: self.flag_later(tmp, None, lambda: self.job_store, JF_OFF, S_CG, S_MT)
        for typ in "AB":
            if typ == "B":
                p.label("K1_TYPE_B")
                self.restore(snap)
            m0 = self.mf
            fb = self.fork_job(typ, m0, 16, 40)
            stages = head + ([("F", i, S_D2) for i in range(10)] if typ == "A" else [])
            self.auto = dict(next=o.get("sd_first", 7), stages=stages)
            for n in range(5, self.auto["next"]):
                self.issue_stage(n, *stages[n])
                if n == 5:
                    self.dq.extend(self.job_ld)

            def d0(typ=typ, m0=m0):
                self.stamp(5)
                self.ssm_reduce(0, accs, 48, False, 72)
                tail = []
                if o.get("epi_mid", 1):
                    k = next(i for i, x in enumerate(self.fill) if isinstance(x, tuple) and x[0] == "bar")
                    self.fill, tail = self.fill[:k], self.fill[k:]
                n0 = len(self.fill)
                self.epi_done = False
                self.ffn_epilogue(192, S_KD1, 64)
                self.fill.append(lambda: setattr(self, "epi_done", True))
                cut = n0 + o.get("epi_cut", 42)
                self.fill = self.fill[:cut] + tail + self.fill[cut:]
                if typ == "A":
                    pos = len(self.fill)
                    self.ssm_finish(0, accs, 76, None, lambda: self.mf - m0 >= g2, typ)
                    k = next(i for i in range(pos, len(self.fill)) if isinstance(self.fill[i], tuple))
                    lb, self.fill = self.fill[pos:k], self.fill[:pos] + self.fill[k:]
                    at = max(cut + len(tail), pos - o.get("lb_lead", 84))
                    self.fill = self.fill[:at] + [("t", lambda: self.mf - m0 >= g1)] + lb + self.fill[at:]

            def wstart():
                self.jf_check(60, "A", 240, 4)
                self.wskip = 16
            hooks = {fb: lambda: jf(V_PRE + 5), 60: lambda: self.stamp(4), 234: self.stats_to_lds}
            frags = self.sd_frags(accs)
            if typ == "A":
                j1 = o.get("jf_at", 250)
                hooks.update({241: d0, j1 - 23: lambda: self.jf_load(60), j1: wstart})
                self.gemm(frags + self.d_frags(15, ACC_D2), {}, hooks)
                self.stamp(6)
                self.mf += 1000
                tw = o.get("tail_w", 3)
                self.flush()
                self.ffn_tail(ACC_D2, S_KD2, {(0, 0): lambda: self.w_some(tw), (0, 1): lambda: self.w_some(tw)})
            else:
                self.gemm(frags, {}, hooks)
                self.mf += 1000
                d0()
                self.flush()
                self.fire_timers()
                self.stamp(6)
                self.jf_load(60)
                self.p.e("s_sleep 32")
                self.jf_check(60, "B", 0, 1)
                self.w_some(o.get("b_w", 30))
                self.ssm_finish(0, accs, 76, None, None, "B")
                self.flush()
            self.auto = None
            self.wskip = 0
            self.stamp(7)
            self.phase2_head(8, typ)
        p.label("K1_TYPE_C")
        self.restore(snap0)
        self.AS, self.AX = V_AS, V_AS + 8
        self.is_c = True
        self.prologue2("S", 8)
        self.a_job_setup("C")
        self.path_c(jf, None)
        self.slow_paths()
        self.poll_paths()
        self.phase2()
        p.fix_hazards()
        return p

    def build(self):
        p, e, o = self.p, self.p.e, self.opt
        if o.get("order") == "SD":
            global WMAP
            WMAP = [4 * k for k in range(40)] + [192 + 4 * k for k in range(16)] + [160 + 4 * k for k in range(4)]
            return self.build_sd()
        if o.get("order") == "DSD":
            return self.build_dsd()
        global MIXED
        MIXED = o.get("split") == 4
        if o.get("job_mode") == "dma":
            self.JA = 188 if o.get("job_early") else V_PRE
        self.prologue()
        if o.get("job_mode") == "dma" and not o.get("job_early"):
            self.a_job_setup()
        e(f"s_cmp_eq_u32 s{S_TYPE}, 2")
        e("s_cbranch_scc1 K1_TYPE_C")
        e(f"s_cmp_eq_u32 s{S_TYPE}, 1")
        e("s_cbranch_scc1 K1_TYPE_B")
        snap = self.snapshot()
        g1, g2 = o.get("lb_issue", 200), o.get("lb_check", 225)
        fa = o.get("fork_at", 65)
        late = o.get("job_late")
        pre = bool(o.get("pre", 0))
        split = o.get("split", 0)
        jf = lambda tmp: self.flag_later(tmp, o.get("jf_delay"), lambda: self.job_store, JF_OFF, S_CG, S_MT)
        d1 = lambda tmp, dl: self.flag_later(tmp, dl, lambda t=self.last_store: t, DONE1_OFF, S_MT, S_CG)
        head = [("S", i, 0) for i in range(5)] + [("F", i, S_D1) for i in range(10)]
        for typ in "AB":
            if typ == "B":
                p.label("K1_TYPE_B")
                self.restore(snap)
            m0 = self.mf
            fb = self.fork_job(typ, m0, 188, RAW + 132 if fa >= 65 else 48)

            def a1():
                self.stamp(4)
                if fa == 65:
                    self.stats_to_lds()
                self.ssm_reduce(0, ACC_S, 188, pre)

            def a1b(typ=typ, m0=m0):
                if fa == 65:
                    a1()
                self.q_done = not pre
                if pre:
                    self.ssm_pre(0, ACC_S, ACC_D2)
                self.ssm_finish(0, ACC_S, 188, lambda: self.mf - m0 >= g1, lambda: self.mf - m0 >= g2, typ,
                                ACC_D2 if pre else None)

            def a2():
                while not self.q_done:
                    it = self.fill.pop(0)
                    if not isinstance(it, tuple):
                        it()
                self.stamp(5)
                rest = []
                if split == 4:
                    rest, self.fill = self.fill, []
                self.ffn_epilogue(ACC_D1, S_KD1)
                if split:
                    self.fill.append(lambda: d1(226, o.get("d1_delay")))
                self.fill += rest
            hooks = {fb: lambda a1b=a1b: (jf(224), a1b())}
            if o.get("job_spread"):
                self.JD = 112
                hooks = {fb: lambda: self.job_stores(112, lambda: jf(224)), fb + 1: a1b}
            if fb < 70:
                hooks = {fb: lambda: jf(V_PRE + 5), 81: lambda a1=a1, a1b=a1b: (a1(), a1b()), 70: self.stats_to_lds}
            elif fa != 65:
                hooks[81] = a1
                hooks[70] = self.stats_to_lds
            if late:
                for q5, at in enumerate(late):
                    hooks[at] = self.job_ld[q5]
            frags = self.s_frags(0, ACC_S) + self.d_frags(5, ACC_D1)
            if typ == "A":
                j1 = o.get("jf_at", 240)
                for at, skip, lines in o.get("ct", []):
                    hooks[at] = lambda at=at, skip=skip, lines=lines: self.code_touch(f"A{at}", None, skip, lines, 230)
                if o.get("ct2"):
                    hooks[o["ct2"]] = lambda: self.code_touch("K2", "K2_START", 0, 64, 230)
                hooks.update({240: a2, j1 - 23: lambda: self.jf_load(224), j1 + 1: lambda: self.jf_check(224, "A", 240, 4)})
                self.run(head + [("F", i, S_D2) for i in range(10)], frags + self.d_frags(15, ACC_D2), hooks)
                self.stamp(6)
                if split == 4:
                    self.fire_timers()
                self.flush()
                if o.get("d1_at_end", 1):
                    self.fire_timers()
                if split == 4:
                    self.head_a("A")
                tw = o.get("tail_w", 3)
                self.ffn_tail(ACC_D2, S_KD2, {(0, 0): lambda: self.w_some(tw), (0, 1): lambda: self.w_some(tw),
                                              (1, 0): self.fire_timers,
                                              (1, o.get("early_mid", 0) - 1): lambda: self.h.__setitem__("t_early", self.early_load())})
            else:
                self.run(head, frags, hooks)
                self.stamp(5)
                self.mf += 1000
                self.fire_timers()
                self.flush()
                self.stamp(6)
                self.jf_load(224)
                self.ffn_tail(ACC_D1, S_KD1)
                if split == 4:
                    d1(226, None)
                    self.fire_timers()
                self.jf_check(224, "B", 0, 1)
            self.stamp(7)
            self.phase2_head(8, typ)
        p.label("K1_TYPE_C")
        self.restore(snap)
        self.path_c(jf, d1)
        self.slow_paths()
        self.poll_paths()
        self.phase2()
        p.fix_hazards()
        return p

    def path_c(self, jf, d1):
        p, e, o = self.p, self.p.e, self.opt
        late, split = o.get("job_late"), o.get("split", 0) and not MIXED
        stages = [("S", i % 5, i // 5) for i in range(15)]
        m0 = self.mf
        self.opt = dict(o, fork_at=o.get("fork_at_c", 65), boost=o.get("boost_c", []))
        fb = self.fork_job("C", m0, 112, 144 if o.get("job_spread") else 136)
        self.JD = 124
        if o.get("job_spread"):
            fb0, fb = fb, 81

        def c1():
            self.stamp(4)
            self.stats_to_lds()
            if not o.get("job_spread"):
                jf(168)
            self.ssm_reduce(0, 16, 152)
            for b in (1, 2):
                self.q(*self.ssm_consts(b, V_C + 12 * b + 6, 112))
                self.zero_row(b, 112)

        def c2():
            self.stamp(5)
            self.ssm_reduce(1, 48, 152)
            self.ssm_finish(0, 16, 112, None, lambda: self.mf - m0 >= 215, "C0")
        hooks = {fb: c1, 161: c2, 215: lambda: self.jf_load(168)}
        if o.get("job_spread"):
            hooks[fb0] = lambda: self.job_stores(124, lambda: jf(168))
        if late:
            for q5 in range(5):
                hooks[4 + 10 * q5] = self.job_ld[q5]
        self.run(stages, self.s_frags(0, 16) + self.s_frags(5, 48) + self.s_frags(10, 80), hooks)
        self.stamp(6)
        self.jf_check(168, "C", 0, 1)
        self.mf += 1000
        we = o.get("c_wevery", 16)
        cpk = bool(o.get("c_pk", 0))
        if o.get("c_first"):
            rest, self.fill = self.fill, []
            self.ssm_reduce(2, 80, 152)
            self.fill += rest
        else:
            self.flush(we)
            self.ssm_reduce(2, 80, 152)
        self.ssm_finish(1, 48, 112, None, None, "C1", pk=cpk)
        self.flush(we)
        self.stamp(7)
        if split:
            d1(168, 0)
        self.ssm_finish(2, 80, 112, None, None, "C2", pk=cpk)
        if split:
            self.fill.insert(o.get("c_d1_at", 60), self.fire_timers)
        self.flush(o.get("c_wevery2", 0))
        self.phase2_head(8, "C")


DESC = K1_DESC.replace("proj_kernel", NAME)
```

```python
import sys, json
from asmlib import align_pass
from k1 import K1, K1_DESC, K1_LDS
from k2 import gen_k2, K2_DESC, K2_LDS

NAME = "parallel_sum__ssm_conv_s5__glu_gated_geglu__prompt"


ABOUT = """;
;   64..128 hidden columns, GELU gate, chunked scan (segment scan per lane, segment prefix through LDS, carry from earlier
"""


def build_fused(opt):
    from fused import Fused, DESC, NAME as KN
    ref = open(f"cdna_kernels/{NAME}.s.ref").read().splitlines()
    head = [l for l in ref if l.startswith(";") and "@launch" not in l and "Override launch" not in l
            and "grid=ceil" not in l]
    out = "\n".join(head[:17]) + "\n"
    out += f"; @launch grid=(256,1,1) block=(256,1,1) lds={K1_LDS}\n"
    out += ABOUT
    out += '.amdgcn_target "amdgcn-amd-amdhsa--gfx950"\n.text\n'
    out += f".globl {KN}\n.type {KN},@function\n"
    out += Fused(opt).build().text()
    out += "TEXT_END:\n"
    out += '.section .rodata,"a"\n.p2align 6' + DESC
    return align_pass(out) if opt.get("align", 1) else out


def build(opt):
    if opt.get("fused"):
        return build_fused(opt)
    ref = open(f"cdna_kernels/{NAME}.s.ref").read().splitlines()
    head = [l for l in ref if l.startswith(";") and "@launch" not in l and "Override launch" not in l
            and "grid=ceil" not in l]
    out = "\n".join(head[:17]) + "\n"
    if opt.get("dummy") == "pre":
        out += "; @launch kernel=dummy_kernel grid=(256,1,1) block=(256,1,1) lds=0\n"
    out += f"; @launch kernel=proj_kernel grid=(256,1,1) block=(256,1,1) lds={K1_LDS}\n"
    out += f"; @launch kernel=gemm2_kernel grid=(256,1,1) block=(256,1,1) lds={K2_LDS}\n"
    if opt.get("dummy") == "post":
        out += "; @launch kernel=dummy_kernel grid=(256,1,1) block=(256,1,1) lds=0\n"
    out += '.amdgcn_target "amdgcn-amd-amdhsa--gfx950"\n.text\n'
    out += ".globl proj_kernel\n.type proj_kernel,@function\n.globl gemm2_kernel\n.type gemm2_kernel,@function\n"
    out += K1(opt).build().text()
    out += gen_k2(opt).text()
    if opt.get("dummy"):
        out += ".p2align 8\n.globl dummy_kernel\n.type dummy_kernel,@function\ndummy_kernel:\n    s_endpgm\n"
    out += "TEXT_END:\n"
    out += '.section .rodata,"a"\n.p2align 6' + K1_DESC + ".p2align 6" + K2_DESC
    if opt.get("dummy"):
        out += ".p2align 6" + K2_DESC.replace("gemm2_kernel", "dummy_kernel").replace("vgpr 280", "vgpr 8").replace("offset 200", "offset 8")
    if opt.get('align', 1):
        out = align_pass(out)
    return out


if __name__ == "__main__":
    path = sys.argv[1]
    opt = json.loads(sys.argv[2]) if len(sys.argv) > 2 else {}
    open(path, "w").write(build(opt))
    print("wrote", path)
```

```python
from k1 import *

NAME = "parallel_sum__ssm_conv_s5__glu_gated_geglu__prompt_kernel"
S_WB = 28
S_D2X, S_R2 = 100, 101
S_A, S_OOB, S_XO, S_OO, S_PO, S_PI, S_N, S_A0, S_TG, S_DN, S_DIV = 68, 69, 70, 71, 72, 73, 74, 75, 76, 80, 81
S_A1 = 82
SD, SO = SS, SF
V_L16, V_L16B, V_WA, V_PK = 3, 4, 5, 13
ACC1, ACC2, RING = 16, 96, 176
V_OA, V_LA, V_T = 240, 245, 250
WMAP = [192 + 4 * k for k in range(16)] + [4 * k for k in range(40)] + [160 + 4 * k for k in range(4)]
SLOT5 = 176
S_TB, S_WB0 = 24, 27
ORDERS = {"k0": [0, 1, 4, 5, 8, 9, 2, 3, 6, 7, 10, 11], "w0": [1, 2, 7, 8, 9, 10, 11, 0, 3, 4, 5, 6],
          "nat": list(range(12)), "w3": [0, 1, 2, 5, 6, 7, 8, 3, 4, 9, 10, 11]}


def nib(name, half):
    return sum(v << (4 * k) for k, v in enumerate(ORDERS[name][8 * half:8 * half + 8]))


MIXED = False


def rel(dst, i):
    if MIXED:
        return f"s_bfe_u32 s{dst}, s{S_TB + i // 4}, {(8 << 16) | (8 * (i % 4)):#x}"
    return f"s_bfe_u32 s{dst}, s{S_TB + i // 8}, {(4 << 16) | (4 * (i % 8)):#x}"


def mixed_lists():
    out = {}
    for kh in range(2):
        ffn = list(range(27 * kh, 27 * kh + 27))
        early = [k for k in ffn if k % 4 < 2]
        late = [k for k in ffn if k % 4 >= 2] + list(range(54 + 20 * kh, 74 + 20 * kh))
        assert len(early) == 14
        rest = early[12:] + late
        for w in range(4):
            n = 9 if w < 3 else 8
            out[kh, w] = early[3 * w:3 * w + 3] + rest[:n] + ([0] if w == 3 else [])
            rest = rest[n:]
        assert not rest
    return out


def slot(g, f):
    k = g % 5
    return f"v[{RING+16*k+4*f}:{RING+16*k+4*f+3}]" if k < 4 else f"a[{SLOT5+4*f}:{SLOT5+3+4*f}]"


STEPS_MIXED = [(0, i) for i in range(3)] + [(1, i) for i in range(3)] + [(0, i) for i in range(3, 12)] + \
              [(1, i) for i in range(3, 12)]


class Fused(K1):
    def __init__(self, opt):
        super().__init__(opt)
        self.name = NAME
        self.fused = True
        self.polls = []
        self.heads = []
        self.JA = RAW + 140

    def stats_to_lds(self):
        e = self.p.e
        e(f"ds_write2_b32 v0, v{V_X+8}, v{V_X+10} offset1:1")
        e(f"v_add_u32 v0, 0x1000, v{V_TW+2}")
        T = {"DSD": 206, "SD": 60}.get(self.opt.get("order"), V_X) if not getattr(self, "is_c", False) else V_X
        for x in (f"v_mov_b32 v{T+4}, 0", f"v_min_u32 v{T+5}, 6, v{V_SEG}", f"v_sub_u32 v{T+5}, v{T+5}, v{V_SEG}",
                  f"v_lshl_add_u32 v{T+5}, v{T+5}, 3, v{V_XR}", f"ds_write2_b32 v{T+5}, v{T+4}, v{T+4} offset1:1"):
            e(x)

    def flag_store(self, tmp, base, hi, lo):
        t = S_T1
        return [[f"s_lshl_b32 s{t}, s{hi}, 4", f"s_add_u32 s{t}, s{t}, s{lo}", f"s_lshl_b32 s{t}, s{t}, 7",
                 f"s_add_u32 s{t}, s{t}, {base}", f"s_cmp_eq_u32 s{S_W}, 0", f"s_cselect_b32 s{t}, s{t}, {OOB}"],
                f"v_mov_b32 v{tmp}, s{S_EPOCH}",
                ["s_mov_b64 exec, 1", f"buffer_store_dword v{tmp}, off, {srd(SWS)}, s{t} sc1", "s_mov_b64 exec, -1"]]

    def flag_later(self, tmp, delay, tok, base, hi, lo):
        def raise_flag():
            for x in self.flag_store(tmp, base, hi, lo):
                for y in (x if isinstance(x, list) else [x]):
                    self.p.e(y)

        def arm():
            self.pre_barrier.append(tok())
            self.on_barrier.append(raise_flag)
        if delay is None:
            self.lazy.append((tok(), raise_flag))
        else:
            self.timers.append((self.mf + delay, arm))

    def a_job_setup(self, tag=""):
        e, o = self.p.e, self.opt
        u, t, t2, ct = S_R, S_T2, S_T3, S_T1
        A = self.JA
        e(f"s_lshl_b32 s{u}, s{S_MT}, 2"); e(f"s_add_u32 s{u}, s{u}, s{S_W}")
        e(f"s_and_b32 s{ct}, s{S_CG}, 7")
        if MIXED:
            e(f"s_mov_b32 s{t}, 27"); e(f"s_mov_b32 s{S_JOB}, 52")
            e(f"s_cmp_ge_u32 s{S_CG}, 8"); e(f"s_cselect_b32 s{t2}, 27, 0")
        else:
            e(f"s_cmp_ge_u32 s{S_CG}, 8"); e(f"s_cselect_b32 s{t}, 7, 64"); e(f"s_cselect_b32 s{t2}, 47, 0")
            e(f"s_cselect_b32 s{S_JOB}, 57, 47")
        e(f"s_cmp_lt_u32 s{u}, s{S_JOB}"); e(f"s_cselect_b32 s{S_D2X}, 0, {OOB}")
        e(f"s_cmp_ge_u32 s{u}, s{t}"); e(f"s_cselect_b32 s{S_J2}, 1, 0")
        e(f"s_cbranch_scc1 JOB_C{tag}")
        for x in self.mk_srd(SA1, K_WD, FF_BYTES) + self.mk_srd(SA2, K_WD, FF_BYTES):
            e(x)
        e(f"s_add_u32 s{u}, s{u}, s{t2}")
        e(f"s_mul_i32 s{S_R2}, s{u}, {32*1280}"); e(f"s_mul_i32 s{t}, s{ct}, 160")
        e(f"s_add_u32 s{S_R2}, s{S_R2}, s{t}")
        e(f"s_mul_i32 s{S_JOB}, s{ct}, 94"); e(f"s_add_u32 s{S_JOB}, s{S_JOB}, s{u}")
        e(f"s_mul_i32 s{S_JOB}, s{S_JOB}, 5120")
        e(f"s_mov_b32 s{t}, 0xcccd")
        for q in range(5):
            e(f"v_add_u32 v{A+5}, {64*q}, v{V_LANE}"); e(f"v_mul_lo_u32 v{A+q}, v{A+5}, s{t}")
            e(f"v_lshrrev_b32 v{A+q}, 19, v{A+q}"); e(f"v_mul_u32_u24 v{A+q}, 1120, v{A+q}")
            e(f"v_lshl_add_u32 v{A+q}, v{A+5}, 4, v{A+q}")
        e(f"s_branch JOB_LD{tag}")
        self.p.label(f"JOB_C{tag}")
        for x in self.mk_srd(SA1, K_CRE, SQ_BYTES) + self.mk_srd(SA2, K_CIM, SQ_BYTES):
            e(x)
        if MIXED:
            e(f"s_sub_u32 s{u}, s{u}, 27")
            e(f"s_mul_hi_u32 s{t}, s{u}, 0x33333334"); e(f"s_mul_i32 s{t2}, s{t}, 5"); e(f"s_sub_u32 s{u}, s{u}, s{t2}")
            e(f"s_lshr_b32 s{t2}, s{S_CG}, 3"); e(f"s_mul_i32 s{t2}, s{t2}, 5"); e(f"s_add_u32 s{u}, s{u}, s{t2}")
        else:
            e(f"s_sub_u32 s{u}, s{u}, 7")
            e(f"s_mul_hi_u32 s{t}, s{u}, 0x1999999a"); e(f"s_mul_i32 s{t2}, s{t}, 10"); e(f"s_sub_u32 s{u}, s{u}, s{t2}")
        e(f"s_mul_i32 s{t2}, s{ct}, 5"); e(f"s_add_u32 s{t2}, s{t2}, s{t}")
        e(f"s_mul_i32 s{S_R2}, s{t2}, {16*1280}"); e(f"s_lshl_b32 s{t2}, s{u}, 7")
        e(f"s_add_u32 s{S_R2}, s{S_R2}, s{t2}")
        e(f"s_mul_i32 s{S_JOB}, s{ct}, 94"); e(f"s_lshl_b32 s{u}, s{u}, 2"); e(f"s_add_u32 s{S_JOB}, s{S_JOB}, s{u}")
        e(f"s_add_u32 s{S_JOB}, s{S_JOB}, 54"); e(f"s_mul_i32 s{S_JOB}, s{S_JOB}, 5")
        e(f"s_add_u32 s{S_JOB}, s{S_JOB}, s{t}"); e(f"s_lshl_b32 s{S_JOB}, s{S_JOB}, 10")
        e(f"v_lshrrev_b32 v{A}, 3, v{V_LANE}"); e(f"v_mul_u32_u24 v{A}, 1280, v{A}")
        e(f"v_lshrrev_b32 v{A+2}, 3, v{V_LANE}"); e(f"v_xor_b32 v{A+1}, v{A+2}, v{V_LANE}")
        e(f"v_and_b32 v{A+1}, 7, v{A+1}"); e(f"v_lshl_add_u32 v{A}, v{A+1}, 4, v{A}")
        e(f"v_add_u32 v{A+1}, {8*1280}, v{A}"); e(f"v_mov_b32 v{A+2}, v{A}"); e(f"v_mov_b32 v{A+3}, v{A+1}")
        e(f"v_mov_b32 v{A+4}, {OOB}")
        self.p.label(f"JOB_LD{tag}")
        e(f"s_add_u32 s{S_JOB}, s{S_JOB}, {W2F_OFF}")
        e(f"s_or_b32 s{S_JOB}, s{S_JOB}, s{S_D2X}"); e(f"s_or_b32 s{S_R}, s{S_R2}, s{S_D2X}")
        if o.get("job_mode") == "dma":
            def piece(q):
                e(f"s_add_u32 m0, s{S_J1}, {1024*q}")
                self.job_tok = e(f"buffer_load_dwordx4 v{A+q}, {srd(SA1 if q < 2 else SA2)}, s{S_R} offen{o.get('ntjob', '')} lds")
            self.job_ld = [lambda q=q: piece(q) for q in range(5)]
            return
        self.job_ld = [lambda q=q: setattr(self, "job_tok", e(
            f"buffer_load_dwordx4 a[{192+4*q}:{195+4*q}], v{A+q}, {srd(SA1 if q < 2 else SA2)}, s{S_R} offen"))
            for q in range(5)]
        if o.get("job_dq"):
            self.dq.extend(self.job_ld)
        elif not o.get("job_late"):
            for f in self.job_ld:
                f()

    def a_job(self, is_c, m0, R, L):
        p, q = self.p, self.q
        st = {}
        D = R + 2 if not self.opt.get("job_spread") else self.JD

        def at(k):
            self.fill.append(("t", lambda: self.mf - m0 >= k + self.opt.get("fork_at", 65)))
        if is_c:
            q(f"v_and_b32 v{R}, 15, v{V_LANE}", f"v_lshlrev_b32 v{R}, 7, v{R}",
              f"v_lshrrev_b32 v{R+1}, 5, v{V_LANE}", f"v_xor_b32 v{R+1}, v{R+1}, v{V_LANE}", f"v_and_b32 v{R+1}, 7, v{R+1}",
              f"v_lshl_add_u32 v{R}, v{R+1}, 4, v{R}", f"v_bfe_u32 v{R+1}, v{V_LANE}, 4, 1",
              f"v_lshl_add_u32 v{R}, v{R+1}, 3, v{R}")
        else:
            q(f"v_lshrrev_b32 v{R}, 5, v{V_LANE}", f"v_lshlrev_b32 v{R}, 4, v{R}",
              f"v_bfe_u32 v{R+1}, v{V_LANE}, 2, 3", f"v_add_u32 v{R}, v{R}, v{R+1}",
              f"v_mul_u32_u24 v{R}, 160, v{R}", f"v_and_b32 v{R+1}, 3, v{V_LANE}",
              f"v_lshl_add_u32 v{R}, v{R+1}, 3, v{R}")
        q(f"v_add_u32 v{R}, s{S_J1}, v{R}")
        if self.opt.get("job_mode") != "dma":
            q(f"v_add_u32 v{R+1}, s{S_J1}, v{V_TW+2}")
        at(2)
        dma = self.opt.get("job_mode") == "dma"
        if dma:
            st["w"] = self.job_tok
        else:
            self.fill.append(lambda: p.wait(self.job_tok))
        for f in range(0 if dma else 5):
            at(2 + f // 2)
            self.fill.append(lambda f=f: st.__setitem__("w", p.e(
                f"ds_write_b128 v{R+1}, a[{192+4*f}:{195+4*f}] offset:{1024*f}")))
        land = [(L if is_c else D) + 4 * f for f in range(5)]
        for f in range(5):
            at((3 if dma else 7) + f // 2)

            def rd(f=f):
                p.wait(st["w"])
                op, o2 = ("ds_read_b64", 2048) if is_c else ("ds_read_b64_tr_b16", 1280)
                va, o1 = R, 32 * f
                if is_c:
                    va, o1 = (R + 1 if f % 4 else R), 0
                    if f % 4:
                        p.e(f"v_xor_b32 v{R+1}, {32*f}, v{R}")
                p.e(f"{op} v[{land[f]}:{land[f]+1}], v{va} offset:{o1}")
                st[f] = p.e(f"{op} v[{land[f]+2}:{land[f]+3}], v{va} offset:{o1 + o2}")
            rd.cost = 2
            self.fill.append(rd)
        if is_c:
            q(f"s_mov_b32 s{S_T2}, 0x05040100", f"s_mov_b32 s{S_T3}, 0x07060302")
        at(8 if dma else 12)
        self.fill.append(lambda: p.wait(st[4]))
        for f in range(5):
            if is_c and f < 4:
                re, im = land[f], land[f] + 2
                for k in range(2):
                    q(f"v_perm_b32 v{D+4*f+2*k}, v{im+k}, v{re+k}, s{S_T2}",
                      f"v_perm_b32 v{D+4*f+2*k+1}, v{im+k}, v{re+k}, s{S_T3}")
            if self.opt.get("job_spread"):
                continue
            at((10 if dma else 14) + 2 * f)
            self.fill.append(lambda f=f: setattr(self, "job_store", p.e(
                f"buffer_store_dwordx4 v[{D+4*f}:{D+4*f+3}], v{V_TW+2}, {srd(SWS)}, s{S_JOB} offen{self.wt}")))
            if f < 4:
                q(f"s_add_u32 s{S_JOB}, s{S_JOB}, {(5120 if f < 3 else OOB) if is_c else 1024}")
        if self.opt.get("job_spread"):
            q(f"s_mov_b32 s{S_R}, {5120 if is_c else 1024}", f"s_mov_b32 s{S_XB}, {OOB if is_c else 1024}")

    def job_stores(self, D, then):
        e, n = self.p.e, self.opt["job_spread"]

        def one(f):
            self.job_store = e(f"buffer_store_dwordx4 v[{D+4*f}:{D+4*f+3}], v{V_TW+2}, {srd(SWS)}, s{S_JOB} offen{self.wt}")
            if f < 4:
                e(f"s_add_u32 s{S_JOB}, s{S_JOB}, s{S_R if f < 3 else S_XB}")
            else:
                then()
        for f in range(5):
            self.timers.append((self.mf + 2 + n * f, lambda f=f: one(f)))

    def fork_job(self, tag, m0, R, L):
        e, fa = self.p.e, self.opt.get("fork_at", 65)
        n = 20 if self.opt.get("job_mode") == "dma" else 24
        if self.opt.get("job_spread"):
            n = 15
        self.fork = (fa, fa + n, lambda: (e(f"s_cmp_eq_u32 s{S_J2}, 1"), e(f"s_cbranch_scc1 FORK_ALT_{tag}")),
                     lambda: self.a_job(False, m0, R, L), lambda: self.a_job(True, m0, R, L), tag)
        return fa + n

    def jf_load(self, R):
        e = self.p.e
        e(f"s_lshl_b32 s{S_WB+1}, s{S_CG}, 11")
        e(f"s_add_u32 s{S_WB+1}, s{S_WB+1}, {JF_OFF}")
        e(f"v_and_b32 v{R+1}, 15, v{V_LANE}")
        e(f"v_lshlrev_b32 v{R+1}, 7, v{R+1}")
        self.jf_tok = self.flag_load(R)

    def flag_load(self, R):
        e = self.p.e
        e(f"v_mov_b32 v{R}, s{S_EPOCH}")
        e("s_mov_b64 exec, 0xffff")
        t = e(f"buffer_load_dword v{R}, v{R+1}, {srd(SWS)}, s{S_WB+1} offen sc1")
        e("s_mov_b64 exec, -1")
        return t

    def all_equal(self, R, n, label):
        e = self.p.e
        e(f"v_xor_b32 v{R}, s{S_EPOCH}, v{R}")
        for k in range(1, n):
            e(f"v_bitop3_b32 v{R}, v{R}, v{R+k}, s{S_EPOCH} bitop3:0xf6")
        e(f"v_cmp_ne_u32 vcc, 0, v{R}")
        e(f"s_cbranch_vccnz {label}")

    def jf_check(self, R, tag, first, per):
        p, e = self.p, self.p.e
        e(f"s_mov_b32 s{S_WB+2}, 0")
        p.wait(self.jf_tok)
        e(f"v_cmp_ne_u32 vcc, s{S_EPOCH}, v{R}")
        e(f"s_cbranch_vccnz JF_SLOW_{tag}")
        p.label(f"JF_OK_{tag}")
        self.polls.append((tag, R))
        e(f"s_lshr_b32 s{S_WB}, s{S_CG}, 3")
        e(f"s_mul_i32 s{S_WB}, s{S_WB}, 47")
        e(f"s_mul_i32 s{S_WB+1}, s{S_W}, 12")
        e(f"s_add_u32 s{S_WB+3}, s{S_WB}, s{S_WB+1}")
        if MIXED:
            e(f"s_mov_b32 s{S_WB+3}, 0")
        e(f"s_and_b32 s{S_WB}, s{S_CG}, 7")
        e(f"s_mul_i32 s{S_WB}, s{S_WB}, 94")
        e(f"s_add_u32 s{S_WB}, s{S_WB}, s{S_WB+3}")
        e(f"s_mul_i32 s{S_WB}, s{S_WB}, 5120")
        e(f"s_add_u32 s{S_WB0}, s{S_WB}, {W2F_OFF}")
        if MIXED:
            L = mixed_lists()
            e(f"s_lshr_b32 s{S_WB+1}, s{S_CG}, 3"); e(f"s_lshl_b32 s{S_WB+1}, s{S_WB+1}, 2")
            e(f"s_add_u32 s{S_WB+1}, s{S_WB+1}, s{S_W}")
            for c in range(8):
                words = [sum(v << (8 * k) for k, v in enumerate(L[c // 4, c % 4][4 * h:4 * h + 4])) for h in range(3)]
                if c:
                    e(f"s_cmp_eq_u32 s{S_WB+1}, {c}")
                for h in range(3):
                    e(f"s_cselect_b32 s{S_TB+h}, {words[h]:#x}, s{S_TB+h}" if c else f"s_mov_b32 s{S_TB+h}, {words[h]:#x}")
        else:
            for h in range(2):
                e(f"s_mov_b32 s{S_TB+h}, {nib('nat', h):#x}")
            for cond, name in ((f"s_cmp_eq_u32 s{S_W}, 0", "w0"), (f"s_cmp_eq_u32 s{S_W}, 3", "w3"), (f"s_cmp_lt_u32 s{S_CG}, 8", "k0")):
                e(cond)
                for h in range(2):
                    e(f"s_cselect_b32 s{S_TB+h}, {nib(name, h):#x}, s{S_TB+h}")

        def ld(n):
            i, cb = divmod(n, 5)
            if cb == 0:
                e(rel(S_WB, i))
                e(f"s_mul_i32 s{S_WB}, s{S_WB}, 5120")
                e(f"s_add_u32 s{S_WB}, s{S_WB}, s{S_WB0}")
                if i == 11:
                    e(f"s_cmp_eq_u32 s{S_W}, 3")
                    e(f"s_cselect_b32 s{S_WB}, {OOB}, s{S_WB}")
            va, off = ((V_L16 if n >= 60 - self.opt.get("w_keep", 12) else V_TW + 2), 1024 * cb) if cb < 4 else (0, 0)
            e(f"buffer_load_dwordx4 a[{WMAP[n]}:{WMAP[n]+3}], v{va}, {srd(SWS)}, s{S_WB} offen offset:{off} sc1")
        self.wq = [lambda n=n: ld(n) for n in range(60)]
        self.wfrom, self.wper = first, per

    def code_touch(self, tag, start, skip, lines, tmp):
        e = self.p.e
        b, per = S_M2, lines // 4
        e(f"s_getpc_b64 s[{b}:{b+1}]")
        self.p.label(f"CT_{tag}")
        if start is not None:
            e(f"s_add_u32 s{b}, s{b}, {start}-CT_{tag}")
            e(f"s_addc_u32 s{b+1}, s{b+1}, 0")
        e(f"s_mul_i32 s{S_T1}, s{S_W}, {per*128}")
        e(f"s_add_u32 s{S_T1}, s{S_T1}, {skip}")
        e(f"v_lshl_add_u32 v{tmp}, v{V_LANE}, 7, s{S_T1}")
        e(f"v_min_u32 v{tmp}, TEXT_END-{start or 'CT_' + tag}-4, v{tmp}")
        e(f"s_mov_b64 exec, {(1 << per) - 1:#x}")
        e(f"global_load_dword v{tmp+1}, v{tmp}, s[{b}:{b+1}]")
        e("s_mov_b64 exec, -1")

    def touch_phase2(self, tag, tmp):
        self.code_touch("K2" + tag, "K2_START", 0, 64, tmp)

    def fire_timers(self):
        for tm in self.timers:
            tm[1]()
        self.timers = []
        for tok, f in self.lazy:
            self.pre_barrier.append(tok)
            self.on_barrier.append(f)
        self.lazy = []
        if self.on_barrier:
            self.barrier()

    def poll_paths(self):
        p, e = self.p, self.p.e
        for tag in self.heads:
            p.label(f"K2_EARLY_SLOW_{tag}")
            e(f"s_sleep {self.opt.get('done_sleep', 8)}")
            e(f"s_add_u32 s{S_SPIN}, s{S_SPIN}, 1")
            e(f"s_cmp_gt_u32 s{S_SPIN}, 100000")
            e(f"s_cbranch_scc1 K2_EARLY_OK_{tag}")
            self.early_load()
            e("s_waitcnt vmcnt(0)")
            e(f"v_cmp_ne_u32 vcc, s{S_EPOCH}, v15")
            e(f"s_cbranch_vccnz K2_EARLY_SLOW_{tag}")
            e(f"s_branch K2_EARLY_OK_{tag}")
        for tag, R in self.polls:
            p.label(f"JF_SLOW_{tag}")
            e("s_sleep 6")
            e(f"s_add_u32 s{S_WB+2}, s{S_WB+2}, 1")
            e(f"s_cmp_gt_u32 s{S_WB+2}, 20000")
            e(f"s_cbranch_scc1 JF_OK_{tag}")
            self.flag_load(R)
            e("s_waitcnt vmcnt(0)")
            e(f"v_cmp_ne_u32 vcc, s{S_EPOCH}, v{R}")
            e(f"s_cbranch_vccnz JF_SLOW_{tag}")
            e(f"s_branch JF_OK_{tag}")

    def w_some(self, n):
        while n > 0 and len(self.wq) > self.opt.get("w_keep", 12):
            self.wq.pop(0)()
            n -= 1

    def a_load(self, g, t, i, f):
        e = self.p.e
        if f == 0:
            e(rel(S_A, i))
            e(f"s_lshl_b32 s{S_A}, s{S_A}, 12")
            e(f"s_add_u32 s{S_A}, s{S_A}, s{S_A0 if t else S_A1}")
            if i == 11:
                e(f"s_cmp_eq_u32 s{S_W}, 3")
                e(f"s_cselect_b32 s{S_A}, s{S_OOB}, s{S_A}")
        return e(f"buffer_load_dwordx4 {slot(g, f)}, v{V_L16}, {srd(SWS)}, s{S_A} offen offset:{1024*f} sc1")

    def early_load(self):
        e = self.p.e
        e(f"v_mov_b32 v15, s{S_EPOCH}")
        if self.opt.get("fast"):
            e(f"s_mov_b64 exec, s[{S_M2}:{S_M2+1}]")
        else:
            e("s_mov_b64 exec, 0x7f7f" if MIXED else "s_mov_b64 exec, 0xbfff")
        t = e(f"buffer_load_dword v15, v2, {srd(SWS)}, s{S_DIV+2} offen sc1")
        e("s_mov_b64 exec, -1")
        return t

    def head_a(self, tag):
        p, e = self.p, self.p.e
        e(f"s_lshl_b32 s{S_DN}, s{S_MT}, 11"); e(f"s_add_u32 s{S_DN}, s{S_DN}, {DONE_OFF}")
        e(f"s_add_u32 s{S_DIV+2}, s{S_DN}, {DONE1_OFF - DONE_OFF}")
        e(f"v_and_b32 v2, 15, v{V_LANE}"); e("v_lshlrev_b32 v2, 7, v2")
        e(f"s_mov_b32 s{S_SPIN}, 0")
        split = self.opt.get("split", 0)
        fast = self.opt.get("fast", 0)
        if fast:
            e(f"s_mov_b32 s{S_DIV+2}, s{S_DN}")
            e(f"s_lshl_b32 s{S_M2}, 1, s{S_CG}"); e(f"s_andn2_b32 s{S_M2}, 0xffff, s{S_M2}"); e(f"s_mov_b32 s{S_M2+1}, 0")
        if (tag != "B") and split in (1, 4) and not (tag == "A" and self.opt.get("early_mid")):
            t_early = self.early_load()
        self.w_some(self.opt.get("head_w", 4))
        for x in self.mk_srd(SD, K_DSK, 1280) + self.mk_srd(SO, K_OUT, OUT_BYTES):
            e(x)
        e(f"v_mov_b32 v{V_L16}, v{V_TW+2}"); e(f"v_mov_b32 v{V_L16B}, v0")
        e(f"s_mov_b32 s{S_N}, s{S_WB+3}")
        e(f"s_lshr_b32 s{S_T2}, s{S_CG}, 3")
        e(f"s_lshl_b32 s{S_T3}, s{S_MT}, 1")
        e(f"s_add_u32 s{S_T3}, s{S_T3}, s{S_T2}")
        e(f"s_mul_i32 s{S_A0}, s{S_T3}, 94"); e(f"s_add_u32 s{S_A0}, s{S_A0}, s{S_N}"); e(f"s_lshl_b32 s{S_A0}, s{S_A0}, 12")
        e(f"s_xor_b32 s{S_A1}, s{S_T3}, 1")
        e(f"s_mul_i32 s{S_A1}, s{S_A1}, 94"); e(f"s_add_u32 s{S_A1}, s{S_A1}, s{S_N}"); e(f"s_lshl_b32 s{S_A1}, s{S_A1}, 12")
        e(f"s_lshl_b32 s{S_T3}, s{S_T3}, 6"); e(f"s_lshl_b32 s{S_T0}, s{S_W}, 4"); e(f"s_add_u32 s{S_T3}, s{S_T3}, s{S_T0}")
        e(f"s_and_b32 s{S_T1}, s{S_CG}, 7"); e(f"s_mul_i32 s{S_T1}, s{S_T1}, 160")
        e(f"s_mul_i32 s{S_XO}, s{S_T3}, 1280"); e(f"s_add_u32 s{S_XO}, s{S_XO}, s{S_T1}")
        e(f"s_lshl_b32 s{S_OO}, s{S_XO}, 1")
        e(f"s_mov_b32 s{S_DIV}, 0xcccd"); e(f"s_mov_b32 m0, s{S_J1}")
        for j in range(3):
            e(f"v_add_u32 v6, {64*j}, v{V_LANE}"); e(f"v_mul_lo_u32 v7, v6, s{S_DIV}"); e("v_lshrrev_b32 v7, 19, v7")
            e("v_mul_u32_u24 v8, 1120, v7"); e("v_lshl_add_u32 v8, v6, 4, v8")
            if j:
                e(f"v_add_u32 v8, {-1024*j & 0xffffffff:#x}, v8")
            if j == 2:
                e("s_mov_b32 exec_hi, 0")
            e(f"buffer_load_dwordx4 v8, {srd(SX)}, s{S_XO} offen offset:{1024*j} lds")
        e(f"s_add_u32 m0, s{S_J1}, 3072"); e("s_mov_b32 exec_lo, 0x3ff")
        t_res = e(f"buffer_load_dwordx4 v{V_L16}, {srd(SD)}, s{S_T1} offen lds")
        e("s_mov_b64 exec, -1")
        self.h = dict(t_res=t_res, t_early=locals().get("t_early"))

    def phase2_head(self, k, tag):
        p, e = self.p, self.p.e
        self.stamp(k)
        split, fast = self.opt.get("split", 0), self.opt.get("fast", 0)
        if not getattr(self, "h", None):
            self.head_a(tag)
        t_res, t_early = self.h["t_res"], self.h["t_early"]
        self.h = None
        def raise_done():
            e(f"s_lshl_b32 s{S_T0}, s{S_CG}, 7"); e(f"s_add_u32 s{S_T0}, s{S_T0}, s{S_DN}")
            e(f"s_cmp_eq_u32 s{S_W}, 0"); e(f"s_cselect_b32 s{S_T0}, s{S_T0}, {OOB}")
            e(f"v_mov_b32 v14, s{S_EPOCH}")
            self.barrier(self.last_store)
            if tag != "B" and (split == 2 or fast):
                st["early"] = self.early_load()
            e("s_mov_b64 exec, 1")
            if self.opt.get("atomic_flag"):
                e(f"buffer_atomic_swap v14, off, {srd(SWS)}, s{S_T0} sc1")
            else:
                e(f"buffer_store_dword v14, off, {srd(SWS)}, s{S_T0} {self.opt.get('flag_mod', 'sc1')}")
            e("s_mov_b64 exec, -1")
            self.stamp(k + 1)

        def go():
            p.wait(st["early"])
            e(f"v_cmp_ne_u32 vcc, s{S_EPOCH}, v15")
            e(f"s_cbranch_vccnz K2_EARLY_SLOW_{tag}")
            p.label(f"K2_EARLY_OK_{tag}")
            self.heads.append(tag)
            p.wait(t_res)
            for g in range(4):
                for f in range(4):
                    self.a_load(g, *(STEPS_MIXED[g] if MIXED else (0, g)), f)
        st = {"early": t_early}
        e(f"s_mov_b32 s{S_OOB}, {OOB}")
        late_done = split == 4 and tag == "A"
        if not late_done:
            raise_done()
        self.w_some(64)
        if tag == "B" and (split or fast):
            st["early"] = self.early_load()
        if split in (1, 4) or fast == 1:
            go()
        if split == 4 and not late_done:
            e(f"buffer_store_dword v14, off, {srd(SWS)}, s{S_OOB} sc1")
        self.w_rest = list(self.wq)
        e(f"s_and_b32 s{S_T3}, s{S_T3}, 127"); e(f"s_lshl_b32 s{S_T3}, s{S_T3}, 3"); e(f"s_add_u32 s{S_T3}, s{S_T3}, {STL}")
        e(f"s_mul_i32 s{S_T2}, s{S_W}, 5376")
        XR, DR, SR, T = ACC2, ACC2 + 10, ACC2 + 20, ACC2 + 32
        AD = ACC2 + 60
        cbw = self.opt.get("cbw", 0)
        if cbw:
            e(f"v_lshrrev_b32 v7, 2, v{V_LANE}"); e(f"v_and_b32 v8, 3, v{V_LANE}")
            e("v_mul_u32_u24 v9, 2560, v7"); e(f"v_lshl_add_u32 v{V_OA}, v8, 4, v9")
            e("v_mul_u32_u24 v12, 336, v7"); e("v_lshl_add_u32 v12, v8, 4, v12"); e(f"v_add_u32 v{V_LA}, s{S_T2}, v12")
            e(f"v_lshl_add_u32 v{AD}, v8, 3, s{S_J1}"); e("v_mul_u32_u24 v10, 160, v7"); e(f"v_add_u32 v10, v10, v{AD}")
            e(f"v_lshl_add_u32 v11, v7, 3, s{S_T3}")
            e(f"ds_read_b64 v[{SR}:{SR+1}], v11")
        else:
            e(f"v_lshlrev_b32 v10, 3, v{V_LANE}"); e(f"v_add_u32 v10, s{S_J1}, v10")
            for i in range(5):
                e(f"v_add_u32 v6, {64*i}, v{V_LANE}"); e(f"v_mul_lo_u32 v7, v6, s{S_DIV}"); e("v_lshrrev_b32 v7, 20, v7")
                e("v_mul_u32_u24 v8, 20, v7"); e("v_sub_u32 v8, v6, v8")
                e("v_mul_u32_u24 v9, 2560, v7"); e(f"v_lshl_add_u32 v{V_OA+i}, v8, 4, v9")
                e("v_mul_u32_u24 v12, 336, v7"); e("v_lshl_add_u32 v12, v8, 4, v12")
                e(f"v_add_u32 v{V_LA+i}, s{S_T2}, v12")
                e(f"v_lshl_add_u32 v{AD+i}, v8, 3, s{S_J1}"); e(f"v_lshl_add_u32 v11, v7, 3, s{S_T3}")
                e(f"ds_read_b64 v[{SR+2*i}:{SR+2*i+1}], v11")
        e(f"v_and_b32 v{V_WA}, 15, v{V_LANE}"); e(f"v_mul_u32_u24 v{V_WA}, 336, v{V_WA}")
        e(f"v_lshrrev_b32 v6, 4, v{V_LANE}"); e(f"v_lshl_add_u32 v{V_WA}, v6, 4, v{V_WA}")
        e(f"s_mul_i32 s{S_T2}, s{S_W}, 21504"); e(f"v_add_u32 v{V_WA}, s{S_T2}, v{V_WA}")
        e(f"v_add_u32 v{V_PK}, s{S_J1}, v{V_L16}")
        e("s_lshl_b32 s3, s2, 2"); e(f"s_add_u32 s3, s3, s{S_W}")
        e(f"s_mul_i32 s{S_PO}, s3, 5120"); e(f"s_add_u32 s{S_PO}, s{S_PO}, {PART_OFF}")
        e("s_xor_b32 s3, s3, 4")
        e(f"s_mul_i32 s{S_PI}, s3, 5120"); e(f"s_add_u32 s{S_PI}, s{S_PI}, {PART_OFF}")
        if self.opt.get("a_pref"):
            e(f"s_and_b32 s{S_T0}, s{S_CG}, 7"); e(f"s_lshl_b32 s{S_T0}, s{S_T0}, 2"); e(f"s_add_u32 s{S_T0}, s{S_T0}, s{S_W}")
            e(f"s_mul_i32 s{S_T0}, s{S_T0}, 94")
            e(f"s_mov_b32 s{S_T1}, {94*4096 - 1504*128}")
            for j, r in ((0, 6), (1, 7)):
                e(f"v_add_u32 v{r}, s{S_T0}, v{V_LANE}")
                if j:
                    e(f"v_add_u32 v{r}, 64, v{r}")
                e(f"v_cmp_lt_u32 vcc, 1503, v{r}")
                e(f"v_lshlrev_b32 v{r}, 7, v{r}")
                e(f"v_add_u32 v8, s{S_T1}, v{r}")
                e(f"v_cndmask_b32 v{r}, v{r}, v8, vcc")
            e(f"s_lshr_b32 s{S_T0}, s{S_CG}, 3"); e(f"s_mul_i32 s{S_T0}, s{S_T0}, 47")
            e(f"s_mul_i32 s{S_T1}, s{S_MT}, 188"); e(f"s_add_u32 s{S_T0}, s{S_T0}, s{S_T1}")
            e(f"s_lshl_b32 s{S_DIV+2}, s{S_T0}, 12")
        e(f"v_mov_b32 v{V_T}, 0xff")
        e(f"s_mov_b32 s{S_TG}, s{S_EPOCH}")
        for j in range(1, 4):
            e(f"s_lshr_b32 s{S_TG+j}, s{S_TG}, {8*j}"); e(f"s_add_u32 s{S_TG+j}, s{S_TG+j}, s{S_TG}")
        t = None
        if fast == 2:
            go()
        p.wait(t_res)
        for i in range(5):
            e(f"ds_read_b64 v[{XR+2*i}:{XR+2*i+1}], v10 offset:{(32 if cbw else 512)*i}")
            t = e(f"ds_read_b64 v[{DR+2*i}:{DR+2*i+1}], v{AD} offset:{3072 + 32*i}" if cbw else
                  f"ds_read_b64 v[{DR+2*i}:{DR+2*i+1}], v{AD+i} offset:3072")
        p.wait(t)
        M = f"s{S_MASK}"
        for i in range(5):
            if split == 2 and i == self.opt.get("go_at", 0):
                go()
            x0, d0, s0 = XR + 2 * i, DR + 2 * i, (SR if cbw else SR + 2 * i)
            for j, r in enumerate((x0, x0 + 1, d0, d0 + 1)):
                e(f"v_lshlrev_b32 v{T+2*j}, 16, v{r}"); e(f"v_and_b32 v{T+2*j+1}, {M}, v{r}")
            for j in range(4):
                e(f"v_fma_f32 v{T+8+j}, v{T+j}, v{s0}, v{s0+1}")
            for rnd in range(2):
                e(f"v_cvt_pk_bf16_f32 v{T+12}, v{T+8}, v{T+9}"); e(f"v_cvt_pk_bf16_f32 v{T+13}, v{T+10}, v{T+11}")
                e(f"v_lshlrev_b32 v{T+8}, 16, v{T+12}"); e(f"v_and_b32 v{T+9}, {M}, v{T+12}")
                e(f"v_lshlrev_b32 v{T+10}, 16, v{T+13}"); e(f"v_and_b32 v{T+11}, {M}, v{T+13}")
                if rnd == 0:
                    for j in (0, 2):
                        e(f"v_pk_mul_f32 v[{T+8+j}:{T+9+j}], v[{T+8+j}:{T+9+j}], v[{T+4+j}:{T+5+j}]")
            o = T + 16 + 4 * (i % 2)
            for j in (0, 2):
                e(f"v_pk_add_f32 v[{o+j}:{o+j+1}], v[{T+j}:{T+j+1}], v[{T+8+j}:{T+9+j}]")
            e(f"ds_write_b128 v{V_PK}, v[{o}:{o+3}] offset:{1024*i}")
        if self.opt.get("a_pref") == 2:
            e(f"buffer_load_dword v8, v6, {srd(SWS)}, s{S_DIV+2} offen sc1")
            e("s_mov_b64 exec, 0x3fffffff")
            e(f"buffer_load_dword v9, v7, {srd(SWS)}, s{S_DIV+2} offen sc1")
            e("s_mov_b64 exec, -1")
        if late_done:
            raise_done()
        e("s_branch K2_START")

    def phase2(self):
        p, e, opt = self.p, self.p.e, self.opt
        fill, tok, st, ld = [], {}, {}, []
        cur, cnt = {"g": 0}, {"m": 0}
        NS, F = 5, opt.get("k2_fuse", 3)
        PD = NS - 1

        def q(*texts):
            for t in texts:
                fill.append(t if callable(t) else (lambda t=t: e(t)))

        def pull(budget):
            start = p.slots
            while fill and p.slots - start < budget:
                it = fill[0]
                if isinstance(it, tuple):
                    if not it[0]():
                        return
                    fill.pop(0)
                    continue
                fill.pop(0)
                it()

        def lag(n):
            mark = {}
            q(lambda: mark.__setitem__("m", cnt["m"]))
            fill.append((lambda: cnt["m"] >= mark["m"] + n or cur["g"] > 98,))

        J = opt.get("k2_j", 2 if opt.get("split", 0) else 0)
        steps = [(0, i) for i in range(6)] + [(1, i) for i in range(J)] + [(0, i) for i in range(6, 12)] + \
                [(1, i) for i in range(J, 12)]
        G1 = 12 + J
        GL = 6 + J
        if MIXED:
            steps = STEPS_MIXED
            G1, GL = 15, 6
        HOLD = opt.get("k2_hold", 2) if MIXED else 0

        def loads(g):
            t, i = steps[g]

            return [lambda f=f: tok.__setitem__(g, self.a_load(g, t, i, f)) for f in range(4)]

        def done_load():
            e(f"v_mov_b32 v15, s{S_EPOCH}")
            e("s_mov_b64 exec, 0xffff")
            st["dn"] = e(f"buffer_load_dword v15, v2, {srd(SWS)}, s{S_DN} offen sc1")
            e("s_mov_b64 exec, -1")

        def done_check():
            e(f"v_cmp_ne_u32 vcc, s{S_EPOCH}, v15")
            e("s_cbranch_vccnz K2_LATE_SLOW")

        cbw = opt.get("cbw", 0)

        def red_read(r, i, wv):
            a = f"v{V_LA} offset:{wv*21504 + 64*i}" if cbw else f"v{V_LA+i} offset:{wv*21504}"
            return f"ds_read_b128 v[{r}:{r+3}], {a}"

        def tile_to_lds(acc):
            return [f"ds_write_b128 v{V_WA}, v[{acc+(cb*4+rb)*4}:{acc+(cb*4+rb)*4+3}] offset:{rb*5376 + cb*64}"
                    for cb in range(5) for rb in range(4)]

        def barrier():
            p.wait_all(vm=False)
            e("s_barrier")

        def part_loads():
            for i in range(5):
                r = ACC1 + 16 * i + 8
                va, off = (V_L16, 1024 * i) if i < 4 else (V_L16B, 0)
                st["pi"] = e(f"buffer_load_dwordx4 v[{r}:{r+3}], v{va}, {srd(SWS)}, s{S_PI} offen offset:{off} sc1")

        def part_check():
            for i in range(5):
                for k in range(4):
                    r = ACC1 + 16 * i + 8 + k
                    if i + k == 0:
                        e(f"v_xor_b32 v{V_T+1}, s{S_TG}, v{r}")
                    else:
                        e(f"v_bitop3_b32 v{V_T+1}, v{V_T+1}, v{r}, s{S_TG+k} bitop3:0xf6")
            e(f"v_and_b32 v{V_T+1}, v{V_T}, v{V_T+1}")
            e(f"v_cmp_ne_u32 vcc, 0, v{V_T+1}")
            e("s_cbranch_vccnz K2_SLOW")

        def first_tile_done():
            for x in tile_to_lds(ACC1):
                q(x)
                lag(opt.get("k2_wlag", 2))
            lag(opt.get("k2_blag", 4))
            q(barrier)
            for i in range(5):
                for wv in range(4):
                    r = ACC1 + 16 * i + 4 * wv
                    q(lambda i=i, r=r, wv=wv: st.__setitem__(("rd", i), e(red_read(r, i, wv))))
            for i in range(5):
                r = ACC1 + 16 * i
                q(lambda i=i: p.wait(st["rd", i]))
                for k in range(4):
                    q(f"v_add_f32 v{r+k}, v{r+k}, v{r+4+k}", f"v_add_f32 v{r+8+k}, v{r+8+k}, v{r+12+k}")
                q(*[f"v_add_f32 v{r+k}, v{r+k}, v{r+8+k}" for k in range(4)])
                q(*[f"v_bfi_b32 v{r+k}, v{V_T}, s{S_TG+k}, v{r+k}" for k in range(4)])
                va, off = (V_L16, 1024 * i) if i < 4 else (V_L16B, 0)
                q(f"buffer_store_dwordx4 v[{r}:{r+3}], v{va}, {srd(SWS)}, s{S_PO} offen offset:{off} sc1")
            q("s_barrier")
            for i in range(5):
                r = ACC1 + 16 * i + 4
                q(lambda i=i, r=r: st.__setitem__("pk", e(f"ds_read_b128 v[{r}:{r+3}], v{V_PK} offset:{1024*i}")))
            fill.append((lambda: cnt["m"] >= opt.get("k2_pollm", 440),))
            q(part_loads)

        def mfma(g, cb, rb):
            t, i = steps[g]
            acc = ACC2 if t else ACC1
            w = WMAP[5 * i + cb]
            c = f"v[{acc+(cb*4+rb)*4}:{acc+(cb*4+rb)*4+3}]"
            start = p.slots
            e(f"v_mfma_f32_16x16x32_bf16 {c}, a[{w}:{w+3}], {slot(g, rb)}, {c if i else 0}")
            cnt["m"] += 1
            if cnt["m"] % 4 == 2 and ld:
                ld.pop(0)()
            elif cnt["m"] % 4 == 0 and wrest:
                wrest.pop(0)()
            return start

        p.label("K2_START")
        if not opt.get("split", 0) and not opt.get("fast", 0):
            e(f"s_cmp_lg_u32 s{S_W}, 0")
            e("s_cbranch_scc1 K2_GO")
            e("s_mov_b64 exec, 0xffff")
            p.label("K2_RETRY")
            if opt.get("atomic_poll"):
                e("v_mov_b32 v15, 0")
                e(f"buffer_atomic_add v15, v2, {srd(SWS)}, s{S_DN} offen sc0 sc1")
            else:
                e(f"buffer_load_dword v15, v2, {srd(SWS)}, s{S_DN} offen {opt.get('poll_mod', 'sc1')}")
            e(f"s_add_u32 s{S_SPIN}, s{S_SPIN}, 1")
            e("s_waitcnt vmcnt(0)")
            e(f"v_cmp_ne_u32 vcc, s{S_EPOCH}, v15")
            e("s_cbranch_vccz K2_SEEN")
            if opt.get("backoff"):
                e(f"s_bcnt1_i32_b64 s{S_T0}, vcc")
                e(f"s_cmp_lt_u32 s{S_T0}, {opt.get('backoff_n', 12)}")
                e("s_cbranch_scc1 K2_SHORT")
                e(f"s_sleep {opt['backoff']}")
                p.label("K2_SHORT")
            e(f"s_sleep {opt.get('done_sleep', 3)}")
            e(f"s_cmp_lt_u32 s{S_SPIN}, 100000")
            e("s_cbranch_scc1 K2_RETRY")
            p.label("K2_SEEN")
            e("s_mov_b64 exec, -1")
            p.label("K2_GO")
            e("s_barrier")
            assert not MIXED
            if opt.get("a_pref"):
                e(f"buffer_load_dword v8, v6, {srd(SWS)}, s{S_DIV+2} offen sc1")
                e("s_mov_b64 exec, 0x3fffffff")
                e(f"buffer_load_dword v9, v7, {srd(SWS)}, s{S_DIV+2} offen sc1")
                e("s_mov_b64 exec, -1")
            for g in range(4):
                for f in range(4):
                    self.a_load(g, 0, g, f)
        p.vq, p.vdone, p.lq, p.ldone = (17 if opt.get("split") == 4 else 16), 0, 5, 0
        for g in range(4):
            tok[g] = ("v", 4 * g + 4)
        self.stamp(10)
        if opt.get("stamp"):
            e(f"s_mov_b32 s{S_WB+2}, s{S_SPIN}")
        e(f"s_mov_b32 s{S_SPIN}, 0")
        e(f"s_mov_b32 s{S_WB+1}, 0")
        wrest = list(self.w_rest)
        for g in range(24 - F):
            cur["g"] = g
            if g + PD + opt.get("k2_dlead", 2) == GL + HOLD and opt.get("split", 0):
                done_load()
            if g == G1:
                self.stamp(11)
                first_tile_done()
            p.wait(tok[g])
            if g + PD == GL + HOLD and opt.get("split", 0):
                p.wait(st["dn"])
                done_check()
                p.label("K2_LATE_OK")
                for g2 in range(GL, GL + HOLD):
                    for f in loads(g2):
                        f()
            if g + PD < 24 and not (GL <= g + PD < GL + HOLD):
                ld.extend(loads(g + PD))
            for cb in range(5):
                for rb in range(4):
                    start = mfma(g, cb, rb)
                    pull(opt.get("k2_b2", 4) - (p.slots - start))
            while ld:
                ld.pop(0)()
        cur["g"] = 98
        if cbw:
            tl = tile_to_lds(ACC2)
            rd = {}

            def gather(cb):
                barrier()
                for wv in range(4):
                    rd[cb] = e(red_read(ACC2 + 16 * cb + 4 * wv, cb, wv))

            def sums(cb, packed):
                r, s = ACC2 + 16 * cb, ACC1 + 16 * cb + 4
                out = [lambda: p.wait(rd[cb], st["pk"])]
                if packed:
                    for k in (0, 2):
                        out += [f"v_pk_add_f32 v[{r+k}:{r+k+1}], v[{r+k}:{r+k+1}], v[{r+4+k}:{r+5+k}]",
                                f"v_pk_add_f32 v[{r+8+k}:{r+9+k}], v[{r+8+k}:{r+9+k}], v[{r+12+k}:{r+13+k}]",
                                f"v_pk_add_f32 v[{s+k}:{s+k+1}], v[{s+k}:{s+k+1}], v[{r+k}:{r+k+1}]"]
                    out += [f"v_pk_add_f32 v[{s+k}:{s+k+1}], v[{s+k}:{s+k+1}], v[{r+8+k}:{r+9+k}]" for k in (0, 2)]
                else:
                    for j in range(4):
                        out += [f"v_add_f32 v{s+k}, v{s+k}, v{r+4*j+k}" for k in range(4)]
                return out
            side = []
            for cb in range(5):
                wr = tl[4 * cb - 4:4 * cb] if cb else []
                n = 0
                for g in range(24 - F, 24):
                    p.wait(tok[g])
                    for rb in range(4):
                        start = mfma(g, cb, rb)
                        n += 1
                        if wr and n > 1 and n % 2 == 0:
                            e(wr.pop(0))
                        else:
                            for _ in range(2):
                                if side:
                                    it = side.pop(0)
                                    it() if callable(it) else e(it)
                        pull(opt.get("k2_b2", 4) - (p.slots - start))
                assert not wr
                while side:
                    it = side.pop(0)
                    it() if callable(it) else e(it)
                if cb:
                    assert "pk" in st
                    gather(cb - 1)
                    side = sums(cb - 1, cb == 4)
            cur["g"] = 99
            self.stamp(12)
            pull(10000)
            assert not fill
            for x in tl[16:]:
                e(x)
            for it in side:
                it() if callable(it) else e(it)
            p.wait(st["pi"])
            part_check()
            p.label("K2_OK")
            gather(4)
            e(f"s_mov_b32 s{S_DIV}, 0xffffff00")
            for i in range(5):
                s = ACC1 + 16 * i
                for k in range(4):
                    e(f"v_and_b32 v{s+8+k}, s{S_DIV}, v{s+8+k}")
                if i == 4:
                    for it in sums(4, True):
                        it() if callable(it) else e(it)
                for k in (0, 2):
                    e(f"v_pk_add_f32 v[{s+k}:{s+k+1}], v[{s+4+k}:{s+5+k}], v[{s+8+k}:{s+9+k}]")
                e(f"buffer_store_dwordx4 v[{s}:{s+3}], v{V_OA}, {srd(SO)}, s{S_OO} offen offset:{64*i}{opt.get('owt', ' sc1')}")
        else:
            wr, tl = [], tile_to_lds(ACC2)
            for cb in range(5):
                n = 0
                for g in range(24 - F, 24):
                    p.wait(tok[g])
                    for rb in range(4):
                        start = mfma(g, cb, rb)
                        n += 1
                        if wr and n > 2 and (n - 3) % max(1, F - 1) == 0:
                            e(wr.pop(0))
                        pull(opt.get("k2_b2", 4) - (p.slots - start))
                for x in wr:
                    e(x)
                wr = tl[4 * cb:4 * cb + 4]
            cur["g"] = 99
            self.stamp(12)
            pull(10000)
            assert not fill
            for x in wr:
                e(x)
            p.wait(st["pi"], st["pk"])
            part_check()
            p.label("K2_OK")
            e(f"s_mov_b32 s{S_DIV}, 0xffffff00")
            for i in range(5):
                s = ACC1 + 16 * i
                for k in range(4):
                    e(f"v_and_b32 v{s+8+k}, s{S_DIV}, v{s+8+k}")
                for k in range(0, 4, 2):
                    e(f"v_pk_add_f32 v[{s+k}:{s+k+1}], v[{s+4+k}:{s+5+k}], v[{s+8+k}:{s+9+k}]")
            barrier()
            rd = {}
            for i in range(5):
                for wv in range(4):
                    r = ACC2 + 16 * i + 4 * wv
                    rd[i] = e(f"ds_read_b128 v[{r}:{r+3}], v{V_LA+i} offset:{wv*21504}")
            for i in range(5):
                r, s = ACC2 + 16 * i, ACC1 + 16 * i
                p.wait(rd[i])
                for k in range(0, 4, 2):
                    e(f"v_pk_add_f32 v[{r+k}:{r+k+1}], v[{r+k}:{r+k+1}], v[{r+4+k}:{r+5+k}]")
                    e(f"v_pk_add_f32 v[{r+8+k}:{r+9+k}], v[{r+8+k}:{r+9+k}], v[{r+12+k}:{r+13+k}]")
                    e(f"v_pk_add_f32 v[{s+k}:{s+k+1}], v[{s+k}:{s+k+1}], v[{r+k}:{r+k+1}]")
                for k in range(0, 4, 2):
                    e(f"v_pk_add_f32 v[{s+k}:{s+k+1}], v[{s+k}:{s+k+1}], v[{r+8+k}:{r+9+k}]")
                e(f"buffer_store_dwordx4 v[{s}:{s+3}], v{V_OA+i}, {srd(SO)}, s{S_OOB if opt.get('dbg_noout') else S_OO} offen{opt.get('owt', ' sc1')}")
        e(f"s_or_b32 s{S_T0}, s2, s{S_W}")
        e(f"s_cmp_eq_u32 s{S_T0}, 0")
        e(f"s_cselect_b32 s{S_T0}, {EPOCH_OFF}, s{S_OOB}")
        e(f"v_mov_b32 v{V_T}, s{S_EPOCH}")
        e("s_mov_b64 exec, 1")
        e(f"buffer_store_dword v{V_T}, off, {srd(SWS)}, s{S_T0} sc1")
        e("s_mov_b64 exec, -1")
        if opt.get("stamp"):
            tm = "s_memrealtime" if opt.get("rt") else "s_memtime"
            e(f"{tm} s[{SA1}:{SA1+1}]")
            p.wait_all()
            e(f"{tm} s[{SA1+2}:{SA1+3}]")
            e(f"s_memrealtime s[{S_M2}:{S_M2+1}]")
            e(f"s_lshl_b32 s{S_T0}, s2, 2"); e(f"s_add_u32 s{S_T0}, s{S_T0}, s{S_W}")
            e(f"s_lshl_b32 s{S_T0}, s{S_T0}, 7"); e(f"s_add_u32 s{S_T0}, s{S_T0}, {STAMP1_OFF}")
            e("s_waitcnt lgkmcnt(0)")
            e(f"s_getreg_b32 s{S_T2}, hwreg(HW_REG_XCC_ID)")
            e(f"s_getreg_b32 s{S_T3}, hwreg(HW_REG_HW_ID)")
            for k, r in enumerate(STAMP_REGS + [SA1, SA1 + 2, 94, S_M2, S_WB + 2, S_SPIN, S_WB + 1, S_T2, S_T3]):
                e(f"v_mov_b32 v6, s{r}")
                e(f"buffer_store_dword v6, off, {srd(SWS)}, s{S_T0} offset:{4*k}")
        p.label("K1_END")
        e("s_endpgm")
        if opt.get("split", 0):
            p.label("K2_LATE_SLOW")
            e(f"s_sleep {opt.get('done_sleep', 8)}")
            e(f"s_add_u32 s{S_WB+1}, s{S_WB+1}, 1")
            e(f"s_cmp_gt_u32 s{S_WB+1}, 100000")
            e("s_cbranch_scc1 K2_LATE_OK")
            done_load()
            e("s_waitcnt vmcnt(0)")
            done_check()
            e("s_branch K2_LATE_OK")
        p.label("K2_SLOW")
        e("s_sleep 2")
        e(f"s_add_u32 s{S_SPIN}, s{S_SPIN}, 1")
        e(f"s_cmp_gt_u32 s{S_SPIN}, 100000")
        e("s_cbranch_scc1 K2_OK")
        part_loads()
        e("s_waitcnt vmcnt(0)")
        part_check()
        e("s_branch K2_OK")

    def build_dsd(self):
        p, e, o = self.p, self.p.e, self.opt
        global MIXED
        MIXED = bool(o.get("split"))
        self.JA = V_PRE
        self.prologue()
        e(f"s_cmp_eq_u32 s{S_TYPE}, 2")
        e("s_cbranch_scc1 K1_TYPE_C")
        snap0 = self.snapshot()
        self.prologue2("F", o.get("npre", 2))
        self.a_job_setup("AB")
        e(f"s_cmp_eq_u32 s{S_TYPE}, 1")
        e("s_cbranch_scc1 K1_TYPE_B")
        snap = self.snapshot()
        g1, g2 = o.get("lb_issue", 345), o.get("lb_check", 365)
        jf = lambda tmp: self.flag_later(tmp, None, lambda: self.job_store, JF_OFF, S_CG, S_MT)
        head = [("F", i, S_D1) for i in range(10)] + [("S", i, 0) for i in range(5)]
        for typ in "AB":
            if typ == "B":
                p.label("K1_TYPE_B")
                self.restore(snap)
            m0 = self.mf
            self.norm_every = 2
            fb = self.fork_job(typ, m0, 188, 48)

            def s0():
                self.stamp(4)
                self.epi_done = False
                self.ffn_epilogue(192, S_KD1, 48)
                self.fill.append(lambda: setattr(self, "epi_done", True))
                if MIXED:
                    self.fill.append(lambda: self.flag_later(66, None, lambda t=self.last_store: t, DONE1_OFF, S_MT, S_CG))

            def wstart():
                assert self.epi_done
                self.jf_check(64, "A", 240, 4)

            def d0(typ=typ, m0=m0):
                self.stamp(5)
                rest, self.fill = self.fill, []
                self.ssm_reduce(0, ACC_S, 188, False, 56)
                k = next(i for i, x in enumerate(self.fill) if isinstance(x, tuple) and x[0] == "bar")
                self.fill = self.fill[:k] + rest + self.fill[k:] if o.get("rest_mid", 1) else self.fill + rest
                self.ssm_finish(0, ACC_S, 188, lambda: self.mf - m0 >= g1, lambda: self.mf - m0 >= g2, typ)
            hooks = {fb: lambda: jf(210), 156: self.stats_to_lds, 161: s0}
            frags = self.d_frags(0, 192, "a") + self.s_frags(10, ACC_S)
            if typ == "A":
                j1 = o.get("jf_at", 250)
                hooks.update({241: d0, j1 - 23: lambda: self.jf_load(64), j1: wstart})
                self.run(head + [("F", i, S_D2) for i in range(10)], frags + self.d_frags(15, ACC_D2), hooks)
                self.stamp(6)
                self.mf += 1000
                tw = o.get("tail_w", 3)
                if o.get("tail_first", 1):
                    self.ffn_tail(ACC_D2, S_KD2, {(0, 0): lambda: self.w_some(tw), (0, 1): lambda: self.w_some(tw)}, 64)
                    self.flush()
                else:
                    self.flush()
                    self.ffn_tail(ACC_D2, S_KD2, {(0, 0): lambda: self.w_some(tw), (0, 1): lambda: self.w_some(tw)}, 64)
            else:
                self.run(head, frags, hooks)
                self.mf += 1000
                self.flush()
                self.fire_timers()
                self.stamp(5)
                self.ssm_reduce(0, ACC_S, 188)
                self.flush()
                self.stamp(6)
                self.jf_load(64)
                self.p.e("s_sleep 32")
                self.jf_check(64, "B", 0, 1)
                self.w_some(o.get("b_w", 30))
                self.ssm_finish(0, ACC_S, 188, None, None, "B")
                self.flush()
            self.stamp(7)
            self.phase2_head(8, typ)
        p.label("K1_TYPE_C")
        self.restore(snap0)
        self.is_c = True
        self.norm_every = 1
        self.prologue2("S", 8)
        self.a_job_setup("C")
        self.path_c(jf, None)
        self.slow_paths()
        self.poll_paths()
        self.phase2()
        p.fix_hazards()
        return p

    def sd_frags(self, accs):
        d = self.d_frags(0, 192, "a")
        out, win = [], 0
        for s in range(40):
            i = s // 8
            ns, nf = 3 * i + 1, 3 * i + (2 if s % 8 >= 4 else 0)
            for mat in range(2):
                c = f"v[{accs[mat]}:{accs[mat]+15}]"
                fr = dict(stage=ns, reads=[f"ds_read_b128 a[{{f0}}:{{f3}}], v{self.AS + s % 8} offset:{(ns % 4)*16384 + mat*8192}"],
                          mfma=f"v_mfma_f32_32x32x16_bf16 {c}, a[{XN+4*s}:{XN+4*s+3}], a[{{f0}}:{{f3}}], {c if s else 0}")
                if s % 8 == 0 and mat == 0:
                    fr["also"] = [nf]
                    if (ns % 8) // 4 != win:
                        win ^= 1
                        fr["pre"] = [f"v_xor_b32 v{self.AS+k}, 0x10000, v{self.AS+k}" for k in range(8)]
                out.append(fr)
            for k in range(4):
                j, mat = k // 2, k % 2
                a = V_TR + 2 * ((nf % 8) // 4) + j
                off = (nf % 4) * 16384 + mat * 8192 + (s % 4) * 2048
                out.append(dict(stage=nf, mfma=d[4 * s + k]["mfma"], reads=[
                    f"ds_read_b64_tr_b16 a[{{f0}}:{{f1}}], v{a} offset:{off}",
                    f"ds_read_b64_tr_b16 a[{{f2}}:{{f3}}], v{a} offset:{off+512}"]))
        return out

    def build_sd(self):
        p, e, o = self.p, self.p.e, self.opt
        self.JA = V_PRE
        self.prologue()
        e(f"s_cmp_eq_u32 s{S_TYPE}, 2")
        e("s_cbranch_scc1 K1_TYPE_C")
        snap0 = self.snapshot()
        self.AS, self.AX = 204, 216
        accs = (188, 216)
        head = []
        for i in range(5):
            head += [("F", 2 * i, S_D1), ("S", i, 0), ("F", 2 * i + 1, S_D1)]
        self.prologue2("SD", o.get("npre", 2), head)
        self.a_job_setup("AB")
        e(f"s_cmp_eq_u32 s{S_TYPE}, 1")
        e("s_cbranch_scc1 K1_TYPE_B")
        snap = self.snapshot()
        g1, g2 = o.get("lb_issue", 345), o.get("lb_check", 365)
        jf = lambda tmp: self.flag_later(tmp, None, lambda: self.job_store, JF_OFF, S_CG, S_MT)
        for typ in "AB":
            if typ == "B":
                p.label("K1_TYPE_B")
                self.restore(snap)
            m0 = self.mf
            fb = self.fork_job(typ, m0, 16, 40)
            stages = head + ([("F", i, S_D2) for i in range(10)] if typ == "A" else [])
            self.auto = dict(next=o.get("sd_first", 7), stages=stages)
            for n in range(5, self.auto["next"]):
                self.issue_stage(n, *stages[n])
                if n == 5:
                    self.dq.extend(self.job_ld)

            def d0(typ=typ, m0=m0):
                self.stamp(5)
                self.ssm_reduce(0, accs, 48, False, 72)
                tail = []
                if o.get("epi_mid", 1):
                    k = next(i for i, x in enumerate(self.fill) if isinstance(x, tuple) and x[0] == "bar")
                    self.fill, tail = self.fill[:k], self.fill[k:]
                n0 = len(self.fill)
                self.epi_done = False
                self.ffn_epilogue(192, S_KD1, 64)
                self.fill.append(lambda: setattr(self, "epi_done", True))
                cut = n0 + o.get("epi_cut", 42)
                self.fill = self.fill[:cut] + tail + self.fill[cut:]
                if typ == "A":
                    pos = len(self.fill)
                    self.ssm_finish(0, accs, 76, None, lambda: self.mf - m0 >= g2, typ)
                    k = next(i for i in range(pos, len(self.fill)) if isinstance(self.fill[i], tuple))
                    lb, self.fill = self.fill[pos:k], self.fill[:pos] + self.fill[k:]
                    at = max(cut + len(tail), pos - o.get("lb_lead", 84))
                    self.fill = self.fill[:at] + [("t", lambda: self.mf - m0 >= g1)] + lb + self.fill[at:]

            def wstart():
                self.jf_check(60, "A", 240, 4)
                self.wskip = 16
            hooks = {fb: lambda: jf(V_PRE + 5), 60: lambda: self.stamp(4), 234: self.stats_to_lds}
            frags = self.sd_frags(accs)
            if typ == "A":
                j1 = o.get("jf_at", 250)
                hooks.update({241: d0, j1 - 23: lambda: self.jf_load(60), j1: wstart})
                self.gemm(frags + self.d_frags(15, ACC_D2), {}, hooks)
                self.stamp(6)
                self.mf += 1000
                tw = o.get("tail_w", 3)
                self.flush()
                self.ffn_tail(ACC_D2, S_KD2, {(0, 0): lambda: self.w_some(tw), (0, 1): lambda: self.w_some(tw)})
            else:
                self.gemm(frags, {}, hooks)
                self.mf += 1000
                d0()
                self.flush()
                self.fire_timers()
                self.stamp(6)
                self.jf_load(60)
                self.p.e("s_sleep 32")
                self.jf_check(60, "B", 0, 1)
                self.w_some(o.get("b_w", 30))
                self.ssm_finish(0, accs, 76, None, None, "B")
                self.flush()
            self.auto = None
            self.wskip = 0
            self.stamp(7)
            self.phase2_head(8, typ)
        p.label("K1_TYPE_C")
        self.restore(snap0)
        self.AS, self.AX = V_AS, V_AS + 8
        self.is_c = True
        self.prologue2("S", 8)
        self.a_job_setup("C")
        self.path_c(jf, None)
        self.slow_paths()
        self.poll_paths()
        self.phase2()
        p.fix_hazards()
        return p

    def build(self):
        p, e, o = self.p, self.p.e, self.opt
        if o.get("order") == "SD":
            global WMAP
            WMAP = [4 * k for k in range(40)] + [192 + 4 * k for k in range(16)] + [160 + 4 * k for k in range(4)]
            return self.build_sd()
        if o.get("order") == "DSD":
            return self.build_dsd()
        global MIXED
        MIXED = o.get("split") == 4
        if o.get("job_mode") == "dma":
            self.JA = 188 if o.get("job_early") else V_PRE
        self.prologue()
        if o.get("job_mode") == "dma" and not o.get("job_early"):
            self.a_job_setup()
        e(f"s_cmp_eq_u32 s{S_TYPE}, 2")
        e("s_cbranch_scc1 K1_TYPE_C")
        e(f"s_cmp_eq_u32 s{S_TYPE}, 1")
        e("s_cbranch_scc1 K1_TYPE_B")
        snap = self.snapshot()
        g1, g2 = o.get("lb_issue", 200), o.get("lb_check", 225)
        fa = o.get("fork_at", 65)
        late = o.get("job_late")
        pre = bool(o.get("pre", 0))
        split = o.get("split", 0)
        jf = lambda tmp: self.flag_later(tmp, o.get("jf_delay"), lambda: self.job_store, JF_OFF, S_CG, S_MT)
        d1 = lambda tmp, dl: self.flag_later(tmp, dl, lambda t=self.last_store: t, DONE1_OFF, S_MT, S_CG)
        head = [("S", i, 0) for i in range(5)] + [("F", i, S_D1) for i in range(10)]
        for typ in "AB":
            if typ == "B":
                p.label("K1_TYPE_B")
                self.restore(snap)
            m0 = self.mf
            fb = self.fork_job(typ, m0, 188, RAW + 132 if fa >= 65 else 48)

            def a1():
                self.stamp(4)
                if fa == 65:
                    self.stats_to_lds()
                self.ssm_reduce(0, ACC_S, 188, pre)

            def a1b(typ=typ, m0=m0):
                if fa == 65:
                    a1()
                self.q_done = not pre
                if pre:
                    self.ssm_pre(0, ACC_S, ACC_D2)
                self.ssm_finish(0, ACC_S, 188, lambda: self.mf - m0 >= g1, lambda: self.mf - m0 >= g2, typ,
                                ACC_D2 if pre else None)

            def a2():
                while not self.q_done:
                    it = self.fill.pop(0)
                    if not isinstance(it, tuple):
                        it()
                self.stamp(5)
                rest = []
                if split == 4:
                    rest, self.fill = self.fill, []
                self.ffn_epilogue(ACC_D1, S_KD1)
                if split:
                    self.fill.append(lambda: d1(226, o.get("d1_delay")))
                self.fill += rest
            hooks = {fb: lambda a1b=a1b: (jf(224), a1b())}
            if o.get("job_spread"):
                self.JD = 112
                hooks = {fb: lambda: self.job_stores(112, lambda: jf(224)), fb + 1: a1b}
            if fb < 70:
                hooks = {fb: lambda: jf(V_PRE + 5), 81: lambda a1=a1, a1b=a1b: (a1(), a1b()), 70: self.stats_to_lds}
            elif fa != 65:
                hooks[81] = a1
                hooks[70] = self.stats_to_lds
            if late:
                for q5, at in enumerate(late):
                    hooks[at] = self.job_ld[q5]
            frags = self.s_frags(0, ACC_S) + self.d_frags(5, ACC_D1)
            if typ == "A":
                j1 = o.get("jf_at", 240)
                for at, skip, lines in o.get("ct", []):
                    hooks[at] = lambda at=at, skip=skip, lines=lines: self.code_touch(f"A{at}", None, skip, lines, 230)
                if o.get("ct2"):
                    hooks[o["ct2"]] = lambda: self.touch_phase2("A", 230)
                hooks.update({240: a2, j1 - o.get("jf_lead", 23): lambda: self.jf_load(224), j1 + 1: lambda: self.jf_check(224, "A", 240, 4)})
                self.run(head + [("F", i, S_D2) for i in range(10)], frags + self.d_frags(15, ACC_D2), hooks)
                self.stamp(6)
                if split == 4:
                    self.fire_timers()
                self.flush()
                if o.get("d1_at_end", 1):
                    self.fire_timers()
                if split == 4:
                    self.head_a("A")
                tw = o.get("tail_w", 3)
                self.ffn_tail(ACC_D2, S_KD2, {(0, 0): lambda: self.w_some(tw), (0, 1): lambda: self.w_some(tw),
                                              (1, 0): self.fire_timers,
                                              (1, o.get("early_mid", 0) - 1): lambda: self.h.__setitem__("t_early", self.early_load())})
            else:
                self.run(head, frags, hooks)
                self.stamp(5)
                self.mf += 1000
                self.fire_timers()
                self.flush()
                self.stamp(6)
                self.jf_load(224)
                if o.get("ct2"):
                    self.touch_phase2("B", 230)
                self.ffn_tail(ACC_D1, S_KD1)
                if split == 4:
                    d1(226, None)
                    self.fire_timers()
                self.jf_check(224, "B", 0, 1)
            self.stamp(7)
            self.phase2_head(8, typ)
        p.label("K1_TYPE_C")
        self.restore(snap)
        self.path_c(jf, d1)
        self.slow_paths()
        self.poll_paths()
        self.phase2()
        p.fix_hazards()
        return p

    def path_c(self, jf, d1):
        p, e, o = self.p, self.p.e, self.opt
        late, split = o.get("job_late"), o.get("split", 0) and not MIXED
        stages = [("S", i % 5, i // 5) for i in range(15)]
        m0 = self.mf
        self.opt = dict(o, fork_at=o.get("fork_at_c", 65), boost=o.get("boost_c", []))
        fb = self.fork_job("C", m0, 112, 144 if o.get("job_spread") else 136)
        self.JD = 124
        if o.get("job_spread"):
            fb0, fb = fb, 81

        def c1():
            self.stamp(4)
            self.stats_to_lds()
            if not o.get("job_spread"):
                jf(168)
            self.ssm_reduce(0, 16, 152)
            for b in (1, 2):
                self.q(*self.ssm_consts(b, V_C + 12 * b + 6, 112))
                self.zero_row(b, 112)

        def c2():
            self.stamp(5)
            self.ssm_reduce(1, 48, 152)
            self.ssm_finish(0, 16, 112, None, lambda: self.mf - m0 >= 215, "C0")
        hooks = {fb: c1, 161: c2, 215: lambda: self.jf_load(168)}
        if o.get("job_spread"):
            hooks[fb0] = lambda: self.job_stores(124, lambda: jf(168))
        if late:
            for q5 in range(5):
                hooks[4 + 10 * q5] = self.job_ld[q5]
        self.run(stages, self.s_frags(0, 16) + self.s_frags(5, 48) + self.s_frags(10, 80), hooks)
        self.stamp(6)
        self.jf_check(168, "C", 0, 1)
        self.mf += 1000
        we = o.get("c_wevery", 16)
        cpk = bool(o.get("c_pk", 0))
        if o.get("c_first"):
            rest, self.fill = self.fill, []
            self.ssm_reduce(2, 80, 152)
            self.fill += rest
        else:
            self.flush(we)
            self.ssm_reduce(2, 80, 152)
        self.ssm_finish(1, 48, 112, None, None, "C1", pk=cpk)
        self.flush(we)
        self.stamp(7)
        if o.get("ct2"):
            self.touch_phase2("C", 170)
        if split:
            d1(168, 0)
        self.ssm_finish(2, 80, 112, None, None, "C2", pk=cpk)
        if split:
            self.fill.insert(o.get("c_d1_at", 60), self.fire_timers)
        self.flush(o.get("c_wevery2", 0))
        self.phase2_head(8, "C")


DESC = K1_DESC.replace("proj_kernel", NAME)
```

```python
from fused import *
import fused as F

S_J3, S_J4 = 97, 95
K0, NK, RB0, NRB = (0, 32, 62), (32, 30, 32), (0, 3, 6), (3, 3, 2)
WMAP3 = [192 + 4 * k for k in range(16)] + [4 * k for k in range(40)] + [160 + 4 * k for k in range(8)]
S_AB, S_CT3, S_KT3, S_XS, S_P0, S_P1, S_PIN = 70, 72, 73, 74, 75, 82, 71
ACC, PIN, RNG, RES, RAWX = 16, 80, 128, 176, 200
V_XO, V_OO, V_RA, V_RB, V_TWA, V_TRA = 5, 6, 7, 8, 9, 12


class Fused3(Fused):
    def __init__(self, opt):
        super().__init__(opt)
        self.NW = 64
        self.ws_used = WS_USED3

    def ctkt(self, ct, kt):
        e = self.p.e
        e(f"s_mul_i32 s{kt}, s{S_CG}, 52"); e(f"s_lshr_b32 s{kt}, s{kt}, 8")
        e(f"s_mul_i32 s{ct}, s{kt}, 5"); e(f"s_sub_u32 s{ct}, s{S_CG}, s{ct}")

    def a_job_setup(self, tag=""):
        e, o = self.p.e, self.opt
        u, t, ct, kt, A = S_R, S_T2, S_T1, S_T3, self.JA
        self.ctkt(ct, kt)
        e(f"s_lshl_b32 s{u}, s{S_MT}, 2"); e(f"s_add_u32 s{u}, s{u}, s{S_W}")
        e(f"s_cmp_eq_u32 s{kt}, 1"); e(f"s_cselect_b32 s{t}, 60, 64"); e(f"s_cselect_b32 s{S_JOB}, 44, 64")
        e(f"s_cmp_ge_u32 s{kt}, 2"); e(f"s_cselect_b32 s{S_JOB}, 0, s{S_JOB}")
        e(f"s_cmp_eq_u32 s{kt}, 3"); e(f"s_cselect_b32 s{t}, 0, s{t}")
        e(f"s_cmp_lt_u32 s{u}, s{t}"); e(f"s_cselect_b32 s{S_D2X}, 0, {OOB}")
        e(f"v_lshrrev_b32 v{A+1}, 3, v{V_LANE}"); e(f"v_mul_u32_u24 v{A}, 1280, v{A+1}")
        e(f"s_cmp_ge_u32 s{u}, s{S_JOB}"); e(f"s_cselect_b32 s{S_J2}, 1, 0")
        e(f"s_cbranch_scc1 JOB_C{tag}")
        for x in self.mk_srd(SA1, K_WD, FF_BYTES) + self.mk_srd(SA2, K_WD, FF_BYTES):
            e(x)
        e(f"v_and_b32 v{A+1}, 7, v{V_LANE}")
        e(f"s_lshl_b32 s{kt}, s{kt}, 5"); e(f"s_lshr_b32 s{t}, s{u}, 1"); e(f"s_add_u32 s{kt}, s{kt}, s{t}")
        e(f"s_and_b32 s{u}, s{u}, 1")
        e(f"s_mul_i32 s{S_R2}, s{kt}, {32*1280}"); e(f"s_lshl_b32 s{t}, s{ct}, 1"); e(f"s_add_u32 s{t}, s{t}, s{u}")
        e(f"s_lshl_b32 s{t}, s{t}, 7"); e(f"s_add_u32 s{S_R2}, s{S_R2}, s{t}")
        e(f"s_mul_i32 s{S_JOB}, s{ct}, 94"); e(f"s_add_u32 s{S_JOB}, s{S_JOB}, s{kt}"); e(f"s_lshl_b32 s{S_JOB}, s{S_JOB}, 1")
        e(f"s_add_u32 s{S_JOB}, s{S_JOB}, s{u}"); e(f"s_lshl_b32 s{S_JOB}, s{S_JOB}, 12")
        e(f"s_mov_b32 s{S_J3}, {16*1280}"); e(f"s_mov_b32 s{S_J4}, 1024")
        e(f"s_branch JOB_LD{tag}")
        self.p.label(f"JOB_C{tag}")
        for x in self.mk_srd(SA1, K_CRE, SQ_BYTES) + self.mk_srd(SA2, K_CIM, SQ_BYTES):
            e(x)
        e(f"v_xor_b32 v{A+1}, v{A+1}, v{V_LANE}"); e(f"v_and_b32 v{A+1}, 7, v{A+1}")
        e(f"s_sub_u32 s{u}, s{u}, s{S_JOB}"); e(f"s_and_b32 s{kt}, s{kt}, 2"); e(f"s_lshr_b32 s{t}, s{u}, 3")
        e(f"s_add_u32 s{kt}, s{kt}, s{t}"); e(f"s_and_b32 s{u}, s{u}, 7")
        e(f"s_lshl_b32 s{t}, s{ct}, 3"); e(f"s_add_u32 s{t}, s{t}, s{u}"); e(f"s_mul_i32 s{S_R2}, s{t}, {16*1280}")
        e(f"s_lshl_b32 s{t}, s{kt}, 7"); e(f"s_add_u32 s{S_R2}, s{S_R2}, s{t}")
        e(f"s_mul_i32 s{S_JOB}, s{ct}, 94"); e(f"s_lshl_b32 s{kt}, s{kt}, 2"); e(f"s_add_u32 s{S_JOB}, s{S_JOB}, s{kt}")
        e(f"s_add_u32 s{S_JOB}, s{S_JOB}, 54"); e(f"s_lshl_b32 s{S_JOB}, s{S_JOB}, 3")
        e(f"s_add_u32 s{S_JOB}, s{S_JOB}, s{u}"); e(f"s_lshl_b32 s{S_JOB}, s{S_JOB}, 10")
        e(f"s_mov_b32 s{S_J3}, 0"); e(f"s_mov_b32 s{S_J4}, 8192")
        self.p.label(f"JOB_LD{tag}")
        e(f"v_lshl_add_u32 v{A}, v{A+1}, 4, v{A}"); e(f"v_add_u32 v{A+1}, {8*1280}, v{A}")
        e(f"s_add_u32 s{S_JOB}, s{S_JOB}, {W2F_OFF}")
        e(f"s_or_b32 s{S_JOB}, s{S_JOB}, s{S_D2X}"); e(f"s_or_b32 s{S_R}, s{S_R2}, s{S_D2X}")
        e(f"s_add_u32 s{S_J3}, s{S_J3}, s{S_R}")

        def piece(q):
            e(f"s_add_u32 m0, s{S_J1}, {1024*q}")
            self.job_tok = e(f"buffer_load_dwordx4 v{A + q % 2}, {srd(SA1 if q < 2 else SA2)}, s{S_R if q < 2 else S_J3} offen{o.get('ntjob', '')} lds")
        self.job_ld = [lambda q=q: piece(q) for q in range(4)]

    def a_job(self, is_c, m0, R, L):
        p, q = self.p, self.q
        st, D = {}, R + 2

        def at(k):
            self.fill.append(("t", lambda: self.mf - m0 >= k + self.opt.get("fork_at", 65)))
        if is_c:
            q(f"v_and_b32 v{R}, 15, v{V_LANE}", f"v_lshlrev_b32 v{R}, 7, v{R}",
              f"v_lshrrev_b32 v{R+1}, 5, v{V_LANE}", f"v_xor_b32 v{R+1}, v{R+1}, v{V_LANE}", f"v_and_b32 v{R+1}, 7, v{R+1}",
              f"v_lshl_add_u32 v{R}, v{R+1}, 4, v{R}", f"v_bfe_u32 v{R+1}, v{V_LANE}, 4, 1",
              f"v_lshl_add_u32 v{R}, v{R+1}, 3, v{R}")
        else:
            q(f"v_lshrrev_b32 v{R}, 5, v{V_LANE}", f"v_lshlrev_b32 v{R}, 4, v{R}",
              f"v_bfe_u32 v{R+1}, v{V_LANE}, 2, 3", f"v_add_u32 v{R}, v{R}, v{R+1}",
              f"v_lshlrev_b32 v{R}, 7, v{R}", f"v_and_b32 v{R+1}, 3, v{V_LANE}",
              f"v_lshl_add_u32 v{R}, v{R+1}, 3, v{R}")
        q(f"v_add_u32 v{R}, s{S_J1}, v{R}")
        land = [(L if is_c else D) + 4 * f for f in range(4)]
        for f in range(4):
            at(3 + f // 2)

            def rd(f=f):
                p.wait(self.job_tok)
                op, o2 = ("ds_read_b64", 2048) if is_c else ("ds_read_b64_tr_b16", 1024)
                va, o1 = R, 32 * f
                if is_c:
                    va, o1 = (R + 1 if f else R), 0
                    if f:
                        p.e(f"v_xor_b32 v{R+1}, {32*f}, v{R}")
                p.e(f"{op} v[{land[f]}:{land[f]+1}], v{va} offset:{o1}")
                st[f] = p.e(f"{op} v[{land[f]+2}:{land[f]+3}], v{va} offset:{o1 + o2}")
            rd.cost = 2
            self.fill.append(rd)
        if is_c:
            q(f"s_mov_b32 s{S_T2}, 0x05040100", f"s_mov_b32 s{S_T3}, 0x07060302")
        at(8)
        self.fill.append(lambda: p.wait(st[3]))
        for f in range(4):
            if is_c:
                re, im = land[f], land[f] + 2
                for k in range(2):
                    q(f"v_perm_b32 v{D+4*f+2*k}, v{im+k}, v{re+k}, s{S_T2}",
                      f"v_perm_b32 v{D+4*f+2*k+1}, v{im+k}, v{re+k}, s{S_T3}")
            at(10 + 2 * f)
            self.fill.append(lambda f=f: setattr(self, "job_store", p.e(
                f"buffer_store_dwordx4 v[{D+4*f}:{D+4*f+3}], v{V_TW+2}, {srd(SWS)}, s{S_JOB} offen{self.wt}")))
            if f < 3:
                q(f"s_add_u32 s{S_JOB}, s{S_JOB}, s{S_J4}")

    def jf_check(self, R, tag, first, per):
        p, e = self.p, self.p.e
        e(f"s_mov_b32 s{S_WB+2}, 0")
        p.wait(self.jf_tok)
        e(f"v_cmp_ne_u32 vcc, s{S_EPOCH}, v{R}")
        e(f"s_cbranch_vccnz JF_SLOW_{tag}")
        p.label(f"JF_OK_{tag}")
        self.polls.append((tag, R))
        ct, kt = S_WB + 1, S_WB + 3
        self.ctkt(ct, kt)
        e(f"s_mul_i32 s{S_WB0}, s{ct}, 94"); e(f"s_mul_i32 s{S_WB}, s{kt}, 31"); e(f"s_add_u32 s{S_WB0}, s{S_WB0}, s{S_WB}")
        e(f"s_and_b32 s{S_WB}, s{kt}, 1"); e(f"s_add_u32 s{S_WB0}, s{S_WB0}, s{S_WB}")
        e(f"s_lshl_b32 s{S_WB0}, s{S_WB0}, 2"); e(f"s_add_u32 s{S_WB0}, s{S_WB0}, s{S_W}"); e(f"s_lshl_b32 s{S_WB0}, s{S_WB0}, 11")
        e(f"s_add_u32 s{S_WB0}, s{S_WB0}, {W2F_OFF}")
        e(f"s_cmp_eq_u32 s{kt}, 3"); e(f"s_cselect_b32 s{S_WB0}, {OOB}, s{S_WB0}")

        def ld(n):
            i, c = divmod(n, 2)
            if c == 0:
                e(f"s_add_u32 s{S_WB}, s{S_WB0}, {8192*i}")
                if i >= 30:
                    e(f"s_cmp_eq_u32 s{kt}, 1")
                    e(f"s_cselect_b32 s{S_WB}, {OOB}, s{S_WB}")
            va = V_L16 if n >= 64 - self.opt.get("w_keep", 12) else V_TW + 2
            self.w_tok = e(f"buffer_load_dwordx4 a[{WMAP3[n]}:{WMAP3[n]+3}], v{va}, {srd(SWS)}, s{S_WB} offen offset:{1024*c} sc1")
        self.wq = [lambda n=n: ld(n) for n in range(64)]
        self.wfrom, self.wper = first, per

    def touch_phase2(self, tag, tmp):
        e = self.p.e
        b = S_M2
        e(f"s_getpc_b64 s[{b}:{b+1}]")
        self.p.label(f"CT3_{tag}")
        e(f"s_mov_b32 s{S_T1}, K3_V0-CT3_{tag}")
        e(f"s_cmp_ge_u32 s{S_CG}, 5"); e(f"s_cselect_b32 s{S_T1}, K3_V1-CT3_{tag}, s{S_T1}")
        e(f"s_cmp_ge_u32 s{S_CG}, 10"); e(f"s_cselect_b32 s{S_T1}, K3_V2-CT3_{tag}, s{S_T1}")
        e(f"v_lshl_add_u32 v{tmp}, v{V_LANE}, 7, s{S_T1}")
        e(f"s_mul_i32 s{S_T1}, s{S_W}, {18*128}")
        e(f"v_add_u32 v{tmp}, s{S_T1}, v{tmp}")
        e(f"v_min_u32 v{tmp}, TEXT_END-CT3_{tag}-4, v{tmp}")
        e(f"s_mov_b64 exec, {(1 << 18) - 1:#x}")
        e(f"global_load_dword v{tmp+1}, v{tmp}, s[{b}:{b+1}]")
        e("s_mov_b64 exec, -1")

    def phase2_head(self, k, tag):
        p, e = self.p, self.p.e
        self.stamp(k)
        e(f"s_lshl_b32 s{S_DN}, s{S_MT}, 11"); e(f"s_add_u32 s{S_DN}, s{S_DN}, {DONE_OFF}")
        e(f"v_and_b32 v2, 15, v{V_LANE}"); e("v_lshlrev_b32 v2, 7, v2")
        e(f"s_mov_b32 s{S_SPIN}, 0"); e(f"s_mov_b32 s{S_OOB}, {OOB}")
        self.w_some(self.opt.get("head_w", 4))
        for x in self.mk_srd(SD, K_DSK, 1280) + self.mk_srd(SO, K_OUT, OUT_BYTES):
            e(x)
        e(f"v_mov_b32 v{V_L16}, v{V_TW+2}")
        self.ctkt(S_CT3, S_KT3)
        e(f"v_lshrrev_b32 v10, 3, v{V_LANE}"); e(f"v_and_b32 v11, 7, v{V_LANE}")
        e(f"v_lshlrev_b32 v4, 3, v11"); e(f"v_mul_u32_u24 v{V_XO}, 1280, v10"); e(f"v_add_u32 v{V_XO}, v{V_XO}, v4")
        e(f"v_lshlrev_b32 v{V_OO}, 1, v{V_XO}")
        e(f"s_mul_i32 s{S_T3}, s{S_KT3}, 48")
        e(f"s_lshl_b32 s{S_T0}, s{S_MT}, 7"); e(f"s_add_u32 s{S_T0}, s{S_T0}, s{S_T3}"); e(f"s_mul_i32 s{S_XS}, s{S_T0}, 1280")
        e(f"s_lshl_b32 s{S_T1}, s{S_CT3}, 2"); e(f"s_add_u32 s{S_T1}, s{S_T1}, s{S_W}"); e(f"s_lshl_b32 s{S_T1}, s{S_T1}, 6")
        e(f"s_add_u32 s{S_XS}, s{S_XS}, s{S_T1}")
        e(f"buffer_load_dwordx2 v[{RAWX+12}:{RAWX+13}], v4, {srd(SD)}, s{S_T1} offen")
        t_res = None
        for j in range(6):
            e(f"s_add_u32 s{S_T2}, s{S_XS}, {10240*j}")
            t_res = e(f"buffer_load_dwordx2 v[{RAWX+2*j}:{RAWX+2*j+1}], v{V_XO}, {srd(SX)}, s{S_T2} offen")
        e(f"s_lshl_b32 s{S_T0}, s{S_CG}, 7"); e(f"s_add_u32 s{S_T0}, s{S_T0}, s{S_DN}")
        e(f"s_cmp_eq_u32 s{S_W}, 0"); e(f"s_cselect_b32 s{S_T0}, s{S_T0}, {OOB}")
        e(f"v_mov_b32 v14, s{S_EPOCH}")
        self.barrier(self.last_store)
        e("s_mov_b64 exec, 1")
        e(f"buffer_store_dword v14, off, {srd(SWS)}, s{S_T0} sc1")
        e("s_mov_b64 exec, -1")
        self.stamp(k + 1)
        e(f"s_cmp_eq_u32 s{S_CG}, 15")
        e("s_cbranch_scc1 K2_FIN")
        self.w_some(64)
        self.w_rest = list(self.wq)
        SR, T = RAWX + 16, ACC
        e(f"s_lshl_b32 s{S_T3}, s{S_T3}, 3"); e(f"s_add_u32 s{S_T3}, s{S_T3}, {STL}")
        e(f"v_lshl_add_u32 v13, v10, 3, s{S_T3}")
        t = None
        for j in range(6):
            t = e(f"ds_read_b64 v[{SR+2*j}:{SR+2*j+1}], v13 offset:{64*j}")
        e(f"v_add_u32 v{V_RB}, 61440, v{V_L16}")
        e(f"v_mul_u32_u24 v{V_TRA}, 144, v10"); e(f"v_lshl_add_u32 v{V_TRA}, v11, 4, v{V_TRA}"); e(f"v_add_u32 v{V_TRA}, s{S_J1}, v{V_TRA}")
        e(f"v_and_b32 v{V_TWA}, 15, v{V_LANE}"); e(f"v_mul_u32_u24 v{V_TWA}, 144, v{V_TWA}"); e(f"v_lshrrev_b32 v10, 4, v{V_LANE}")
        e(f"v_lshl_add_u32 v{V_TWA}, v10, 4, v{V_TWA}"); e(f"v_add_u32 v{V_TWA}, s{S_J1}, v{V_TWA}")
        e(f"s_mul_i32 s{S_AB}, s{S_KT3}, 31"); e(f"s_and_b32 s{S_T0}, s{S_KT3}, 1"); e(f"s_add_u32 s{S_AB}, s{S_AB}, s{S_T0}")
        e(f"s_add_u32 s{S_AB}, s{S_AB}, s{S_W}"); e(f"s_mul_i32 s{S_T0}, s{S_MT}, 188"); e(f"s_add_u32 s{S_AB}, s{S_AB}, s{S_T0}")
        e(f"s_lshl_b32 s{S_AB}, s{S_AB}, 12")
        e(f"s_mul_i32 s{S_PIN}, s{S_MT}, 15"); e(f"s_add_u32 s{S_PIN}, s{S_PIN}, s{S_CT3}"); e(f"s_mul_i32 s{S_PIN}, s{S_PIN}, 49152")
        e(f"s_mul_i32 s{S_T0}, s{S_W}, 6144"); e(f"s_add_u32 s{S_PIN}, s{S_PIN}, s{S_T0}"); e(f"s_add_u32 s{S_PIN}, s{S_PIN}, {PART3_OFF}")
        e(f"s_mul_i32 s{S_W4K}, s{S_W}, 3072")
        e(f"v_mov_b32 v{V_T}, 0xff"); e(f"v_add_u32 v4, 0x1000, v{V_L16}")
        e(f"s_mov_b32 s{S_TG3}, s{S_EPOCH}")
        for j in range(1, 4):
            e(f"s_lshr_b32 s{S_TG3+j}, s{S_TG3}, {8*j}"); e(f"s_add_u32 s{S_TG3+j}, s{S_TG3+j}, s{S_TG3}")
        p.wait(t_res, t)
        M = f"s{S_MASK}"
        for j, r in enumerate((RAWX + 12, RAWX + 13)):
            e(f"v_lshlrev_b32 v{T+4+2*j}, 16, v{r}"); e(f"v_and_b32 v{T+5+2*j}, {M}, v{r}")
        for i in range(6):
            x0, s0 = RAWX + 2 * i, SR + 2 * i
            for j, r in enumerate((x0, x0 + 1)):
                e(f"v_lshlrev_b32 v{T+2*j}, 16, v{r}"); e(f"v_and_b32 v{T+2*j+1}, {M}, v{r}")
            for j in range(4):
                e(f"v_fma_f32 v{T+8+j}, v{T+j}, v{s0}, v{s0+1}")
            for rnd in range(2):
                e(f"v_cvt_pk_bf16_f32 v{T+12}, v{T+8}, v{T+9}"); e(f"v_cvt_pk_bf16_f32 v{T+13}, v{T+10}, v{T+11}")
                e(f"v_lshlrev_b32 v{T+8}, 16, v{T+12}"); e(f"v_and_b32 v{T+9}, {M}, v{T+12}")
                e(f"v_lshlrev_b32 v{T+10}, 16, v{T+13}"); e(f"v_and_b32 v{T+11}, {M}, v{T+13}")
                if rnd == 0:
                    for j in (0, 2):
                        e(f"v_pk_mul_f32 v[{T+8+j}:{T+9+j}], v[{T+8+j}:{T+9+j}], v[{T+4+j}:{T+5+j}]")
            for j in (0, 2):
                e(f"v_pk_add_f32 v[{RES+4*i+j}:{RES+4*i+j+1}], v[{T+j}:{T+j+1}], v[{T+8+j}:{T+9+j}]")
        e("s_branch K2_START")

    def variant(self, kt):
        p, e, opt = self.p, self.p.e, self.opt
        order = [(kt + 1) % 3, (kt + 2) % 3, kt]
        LA, NR = 8, 12
        KS = opt.get("p3_ks", 4)
        SPP = 32 // KS
        NSL = 8 if KS == 4 else 5
        SB = KS * 3072
        fill, dq, stok, toks, st = [], [], {}, {}, {}
        cnt = {"m": 0}
        wrest = list(self.w_rest)
        accb, b = [], ACC
        for o in order:
            accb.append(b)
            b += 8 * NRB[o]

        def q(*texts):
            for t in texts:
                fill.append(t if callable(t) else (lambda t=t: e(t)))

        def pull(budget):
            start = p.slots
            while fill and p.slots - start < budget:
                it = fill[0]
                if isinstance(it, tuple):
                    if not it[0]():
                        return
                    fill.pop(0)
                    continue
                fill.pop(0)
                it()

        def lag(n):
            mark = {}
            q(lambda: mark.__setitem__("m", cnt["m"]))
            fill.append((lambda: cnt["m"] >= mark["m"] + n or st.get("end"),))

        def stage(s):
            o, j = order[s // SPP], s % SPP
            prev = {}

            def piece(h, r):
                rb = RB0[o] + r
                c = (rb >> 2) * 94 * 4096 + (rb & 3) * 1024 + (j * KS + 4 * h) * 4096 - r * 1024
                if r == 0:
                    e(f"s_add_u32 m0, s{S_W4K}, {SB * (s % NSL) + 12288 * h}")
                if prev.get("c") != c:
                    e(f"s_add_u32 s{S_A}, s{S_AB}, {c}")
                    prev["c"] = c
                t = e(f"buffer_load_dwordx4 v{V_L16}, {srd(SWS)}, s{S_A} offen offset:{1024*r} sc1 lds")
                if r == NRB[o] - 1 and h == KS // 4 - 1:
                    stok[s] = t
            for h in range(KS // 4):
                for r in range(NRB[o]):
                    dq.append(lambda h=h, r=r: piece(h, r))

        frags = []
        for ps, o in enumerate(order):
            for i in range(32):
                for r in range(NRB[o]):
                    frags.append((SPP * ps + i // KS, ps, i, r))
        seen = set()

        def read(n):
            s, ps, i, r = frags[n]
            if s not in seen:
                seen.add(s)
                while s not in stok:
                    dq.pop(0)()
                p.wait(stok[s])
                e("s_barrier")
                if s + NSL - 2 < 3 * SPP:
                    stage(s + NSL - 2)
            off = SB * (s % NSL) + 3072 * (i % KS) + 1024 * r
            va, off = (V_L16, off) if off < 61440 else (V_RB, off - 61440)
            x = RNG + 4 * (n % NR)
            toks[n] = e(f"ds_read_b128 v[{x}:{x+3}], v{va} offset:{off}")

        def tile_addr(t):
            return (V_L16, 1024 * t) if t < 4 else (4, 1024 * (t - 4))

        def publish(ps):
            o = order[ps]
            so = S_P0 if ps == 0 else S_P1
            lag(4)
            q(f"s_add_u32 s{so}, s{S_PIN}, {(5 * o * 2 + ps) * 24576}")
            for t in range(2 * NRB[o]):
                r = accb[ps] + 4 * t
                q(*[f"v_bfi_b32 v{r+k}, v{V_T}, s{S_TG3+k}, v{r+k}" for k in range(4)])
                va, off = tile_addr(t)
                q(f"buffer_store_dwordx4 v[{r}:{r+3}], v{va}, {srd(SWS)}, s{so} offen offset:{off} sc1")
                lag(opt.get("p3_slag", 6))

        nown = 2 * NRB[kt]

        init0 = opt.get("p3_init", 0)

        def part_loads(slots=(0, 1)):
            for sl in slots:
                e(f"s_add_u32 s{S_T0}, s{S_PIN}, {(5 * kt * 2 + sl) * 24576}")
                for t in range(nown):
                    r = PIN + 24 * sl + 4 * t
                    va, off = tile_addr(t)
                    st["pi"] = e(f"buffer_load_dwordx4 v[{r}:{r+3}], v{va}, {srd(SWS)}, s{S_T0} offen offset:{off} sc1")

        def part_check(slots=(0, 1), lab="SLOW"):
            first = True
            for sl in slots:
                for t in range(nown):
                    for k in range(4):
                        r = PIN + 24 * sl + 4 * t + k
                        e(f"v_xor_b32 v{V_T+1}, s{S_TG3}, v{r}" if first else
                          f"v_bitop3_b32 v{V_T+1}, v{V_T+1}, v{r}, s{S_TG3+k} bitop3:0xf6")
                        first = False
            e(f"v_and_b32 v{V_T+1}, v{V_T}, v{V_T+1}")
            e(f"v_cmp_ne_u32 vcc, 0, v{V_T+1}")
            e(f"s_cbranch_vccnz K3_{lab}_{kt}")

        late = (1,) if init0 else (0, 1)
        p.label(f"K3_V{kt}")
        p.vq = p.vdone = p.lq = p.ldone = 0
        for s in range(NSL - 2):
            stage(s)
        for _ in range(opt.get("p3_first", 9)):
            dq.pop(0)()
        n = len(frags)
        for k in range(LA):
            read(k)
        total = 2 * n
        for k in range(n):
            s, ps, i, r = frags[k]
            if i == 0 and r == 0 and ps:
                if not opt.get("p3x"):
                    self.stamp(10 + ps)
                elif ps == 2:
                    self.stamp(11)
                if ps == 2 and init0:
                    st["end"] = True
                    pull(10000)
                    st["end"] = False
                    p.wait(st["pi"])
                    part_check((0,), "SLOW0")
                    p.label(f"K3_OK0_{kt}")
                    e(f"s_mov_b32 s{S_T1}, 0xffffff00")
                    for t in range(4 * nown):
                        e(f"v_and_b32 v{accb[2]+t}, s{S_T1}, v{PIN+t}")
                publish(ps - 1)
                if ps == 1 and init0:
                    first2 = 2 * sum(32 * NRB[o] for o in order[:2])
                    fill.append((lambda first2=first2: cnt["m"] >= first2 - opt.get("p3_poll0", 50) or st.get("end"),))
                    q(lambda: part_loads((0,)))
                if ps == 2:
                    fill.append((lambda: cnt["m"] >= total - opt.get("p3_poll", 50),))
                    q(lambda: part_loads(late))
            if ps == 0 and r == 0 and self.w_rest and i == (64 - len(self.w_rest)) // 2:
                assert not wrest
                p.wait(self.w_tok)
            if r == 0:
                p.wait(toks[k + NRB[order[ps]] - 1])
            x = RNG + 4 * (k % NR)
            for c in range(2):
                a = accb[ps] + 8 * r + 4 * c
                w = WMAP3[2 * i + c]
                start = p.slots
                e(f"v_mfma_f32_16x16x32_bf16 v[{a}:{a+3}], a[{w}:{w+3}], v[{x}:{x+3}], {f'v[{a}:{a+3}]' if (i or (init0 and ps == 2)) else 0}")
                cnt["m"] += 1
                if c == 0:
                    if k + LA < n:
                        read(k + LA)
                elif dq and (k % 2 == 0 or len(dq) > 3):
                    dq.pop(0)()
                elif wrest:
                    wrest.pop(0)()
                pull(opt.get("p3_b", 4) - (p.slots - start))
        if opt.get("p3x"):
            self.stamp(12)
        st["end"] = True
        cnt["m"] = 10 ** 6
        pull(10000)
        assert not fill and not wrest and not dq
        p.wait(st["pi"])
        part_check(late)
        p.label(f"K3_OK_{kt}")
        e(f"s_mov_b32 s{S_T1}, 0xffffff00")
        tw = None
        for t in range(nown):
            a = accb[2] + 4 * t
            for sl in late:
                r = PIN + 24 * sl + 4 * t
                for k in range(4):
                    e(f"v_and_b32 v{r+k}, s{S_T1}, v{r+k}")
                for k in (0, 2):
                    e(f"v_pk_add_f32 v[{a+k}:{a+k+1}], v[{a+k}:{a+k+1}], v[{r+k}:{r+k+1}]")
            tw = e(f"ds_write_b128 v{V_TWA}, v[{a}:{a+3}] offset:{(t // 2) * 2304 + (t % 2) * 64}")
        p.wait(tw)
        rd = [e(f"ds_read_b128 v[{RNG+4*j}:{RNG+4*j+3}], v{V_TRA} offset:{1152*j}") for j in range(nown)]
        e(f"s_lshl_b32 s{S_XS}, s{S_XS}, 1")
        for j in range(nown):
            p.wait(rd[j])
            for k in (0, 2):
                e(f"v_pk_add_f32 v[{RNG+4*j+k}:{RNG+4*j+k+1}], v[{RNG+4*j+k}:{RNG+4*j+k+1}], v[{RES+4*j+k}:{RES+4*j+k+1}]")
            e(f"buffer_store_dwordx4 v[{RNG+4*j}:{RNG+4*j+3}], v{V_OO}, {srd(SO)}, s{S_XS} offen{opt.get('owt', ' sc1')}")
            if j < nown - 1:
                e(f"s_add_u32 s{S_XS}, s{S_XS}, 20480")
        e("s_branch K2_FIN")
        for lab, ok, slots in (("SLOW", "OK", late),) + ((("SLOW0", "OK0", (0,)),) if init0 else ()):
            p.label(f"K3_{lab}_{kt}")
            e("s_sleep 2")
            e(f"s_add_u32 s{S_SPIN}, s{S_SPIN}, 1")
            e(f"s_cmp_gt_u32 s{S_SPIN}, 100000")
            e(f"s_cbranch_scc1 K3_{ok}_{kt}")
            part_loads(slots)
            e("s_waitcnt vmcnt(0)")
            part_check(slots, lab)
            e(f"s_branch K3_{ok}_{kt}")

    def phase2(self):
        p, e, opt = self.p, self.p.e, self.opt
        p.label("K2_START")
        e(f"s_cmp_lg_u32 s{S_W}, 0")
        e("s_cbranch_scc1 K2_GO")
        e("s_mov_b64 exec, 0xffff")
        p.label("K2_RETRY")
        e(f"buffer_load_dword v15, v2, {srd(SWS)}, s{S_DN} offen sc1")
        e(f"s_add_u32 s{S_SPIN}, s{S_SPIN}, 1")
        e("s_waitcnt vmcnt(0)")
        e(f"v_cmp_ne_u32 vcc, s{S_EPOCH}, v15")
        e("s_cbranch_vccz K2_SEEN")
        e(f"s_sleep {opt.get('done_sleep', 3)}")
        e(f"s_cmp_lt_u32 s{S_SPIN}, 100000")
        e("s_cbranch_scc1 K2_RETRY")
        p.label("K2_SEEN")
        e("s_mov_b64 exec, -1")
        p.label("K2_GO")
        e("s_barrier")
        self.stamp(10)
        if opt.get("stamp"):
            e(f"s_mov_b32 s{S_WB+2}, s{S_SPIN}")
        e(f"s_mov_b32 s{S_SPIN}, 0")
        e(f"s_cmp_eq_u32 s{S_KT3}, 1")
        e("s_cbranch_scc1 K3_V1")
        e(f"s_cmp_eq_u32 s{S_KT3}, 2")
        e("s_cbranch_scc1 K3_V2")
        for kt in range(3):
            self.variant(kt)
        p.label("K2_FIN")
        e(f"s_or_b32 s{S_T0}, s2, s{S_W}")
        e(f"s_cmp_eq_u32 s{S_T0}, 0")
        e(f"s_cselect_b32 s{S_T0}, {EPOCH_OFF}, s{S_OOB}")
        e(f"v_mov_b32 v{V_T}, s{S_EPOCH}")
        e("s_mov_b64 exec, 1")
        e(f"buffer_store_dword v{V_T}, off, {srd(SWS)}, s{S_T0} sc1")
        e("s_mov_b64 exec, -1")
        if opt.get("stamp"):
            tm = "s_memrealtime" if opt.get("rt") else "s_memtime"
            e(f"{tm} s[{SA1}:{SA1+1}]")
            p.wait_all()
            e(f"{tm} s[{SA1+2}:{SA1+3}]")
            e(f"s_memrealtime s[{S_M2}:{S_M2+1}]")
            e(f"s_lshl_b32 s{S_T0}, s2, 2"); e(f"s_add_u32 s{S_T0}, s{S_T0}, s{S_W}")
            e(f"s_lshl_b32 s{S_T0}, s{S_T0}, 7"); e(f"s_add_u32 s{S_T0}, s{S_T0}, {STAMP1_OFF}")
            e("s_waitcnt lgkmcnt(0)")
            for k, r in enumerate(STAMP_REGS + [SA1, SA1 + 2, 94, S_M2, S_WB + 2, S_SPIN, S_SPIN]):
                e(f"v_mov_b32 v10, s{r}")
                e(f"buffer_store_dword v10, off, {srd(SWS)}, s{S_T0} offset:{4*k}")
        p.label("K1_END")
        e("s_endpgm")


S_TG3 = 87
```

```python
import struct
from asmlib import Prog, cost_of
from layout import *

S_W, S_MT, S_CG, S_R = 4, 5, 6, 7
SX, SS, SF, SWS, SA1, SA2 = 8, 12, 16, 20, 24, 28
S_T0, S_T1, S_T2, S_T3 = 32, 33, 34, 35
K_X, K_LRE, K_LIM, K_BRE, K_BIM, K_CRE, K_CIM, K_LDT = 36, 38, 40, 42, 44, 46, 48, 50
K_DSK, K_BX, K_WG, K_WU, K_WD, K_OUT, K_DBG, K_WS = 52, 54, 56, 58, 60, 62, 64, 66
S_KS = 68
S_KF = 73
S_W4K, S_XB, S_SB, S_SBROW, S_D1, S_D2, S_TYPE, S_EPOCH, S_MASK = 78, 79, 80, 81, 82, 83, 84, 85, 86
S_A2ROW, S_GK2, S_JOB, S_KD1, S_KD2, S_SPIN, S_J1 = 87, 88, 89, 90, 91, 92, 93
S_J2 = 3
STAMP_REGS = [96, 54, 64, 36, 38, 40, 50, 66, 42, 44, 56, 58, 46]
S_HM = 98
S_M2 = 100

V_LANE, V_OF, V_TR, V_STA, V_GK1, V_SEG, V_PUB, V_XW, V_XR = 1, 2, 6, 10, 11, 12, 13, 14, 15
RAW = 16
ACC_S, ACC_D1, ACC_D2 = 16, 48, 112
V_C = 176
V_OS = 212
V_AS = 216
V_JC = 228
V_JW = 208
V_LBO = 232
V_TW = 234
V_PRE = 237
V_STAMP = 243
V_X = 244
XN = 0
FR = 160

LDS_SCR = 131072
SCR_W = 8192
XCH = LDS_SCR + 6144
STL = LDS_SCR + 3 * SCR_W + 6144
K1_LDS = 163840

LOG2E = 1.4426950408889634
GK1 = -2.0 * 0.7978845608028654 * LOG2E
GK2 = GK1 * 0.044715


def fx(x):
    return "0x%08x" % struct.unpack("<I", struct.pack("<f", x))[0]


def srd(n):
    return f"s[{n}:{n+3}]"


class K1:
    def __init__(self, opt):
        self.opt = opt
        self.p = Prog()
        self.fill = []
        self.dq = []
        self.norm = []
        self.stage_tok = {}
        self.pre_barrier = []
        self.nbar = 0
        self.mf = 0
        self.seen = set()
        self.slow = []
        self.refused = []
        self.after_first_barrier = None
        self.wt = opt.get("wt", " sc1")
        self.name = "proj_kernel"
        self.fused = False
        self.wq = []
        self.last_store = None
        self.vgap = 0
        self.on_barrier = []
        self.timers = []
        self.lazy = []
        self.in_fork = False
        self.norm_every = 1
        self.AS, self.AX = V_AS, V_AS + 8
        self.jit = []
        self.wskip = 0
        self.NW = 60
        self.ws_used = WS_USED
        self.auto = None
        self.fork = None
        self.vjc = V_JC

    def stamp(self, k, x=False):
        if not self.opt.get("stamp") or (k >= 10 and not x and self.opt.get("xstamps")):
            return
        r = STAMP_REGS[k]
        ins = "s_memrealtime" if self.opt.get("rt") else "s_memtime"
        self.p.e(f"{ins} s[{r}:{r+1}]")
        if self.opt.get("verbose"):
            print("stamp", k, "slots", self.p.slots, "fill left", len(self.fill))

    def stamp_out(self, n):
        if not self.opt.get("stamp"):
            return
        p, e = self.p, self.p.e
        self.stamp(n)
        p.wait_all()
        self.stamp(n + 1)
        e(f"s_memrealtime s[{S_M2}:{S_M2+1}]")
        e(f"s_lshl_b32 s{S_T0}, s2, 2"); e(f"s_add_u32 s{S_T0}, s{S_T0}, s{S_W}")
        e(f"s_lshl_b32 s{S_T0}, s{S_T0}, 6"); e(f"s_add_u32 s{S_T0}, s{S_T0}, {STAMP1_OFF}")
        e("s_waitcnt lgkmcnt(0)")
        for k, r in enumerate(STAMP_REGS[:13]):
            e(f"v_mov_b32 v{V_STAMP}, s{r}")
            e(f"buffer_store_dword v{V_STAMP}, off, {srd(SWS)}, s{S_T0} offset:{4*k}")
        for k, r in ((13, S_SPIN), (14, 94), (15, S_M2)):
            e(f"v_mov_b32 v{V_STAMP}, s{r}")
            e(f"buffer_store_dword v{V_STAMP}, off, {srd(SWS)}, s{S_T0} offset:{4*k}")

    def issue_stage(self, n, kind, i, arg):
        e = self.p.e
        slot = n % 8

        def piece(q):
            if q == 0:
                e(f"s_mov_b32 m0, s{S_J1}" if kind in "WJ" else f"s_add_u32 m0, s{S_W4K}, {slot*16384}")
                if kind == "S":
                    e(f"s_add_u32 s{S_T0}, s{S_SBROW}, s{S_KS+i}")
                    if arg:
                        e(f"s_add_u32 s{S_T0}, s{S_T0}, {arg*32*1280}")
                elif kind == "F":
                    e(f"s_add_u32 s{S_T0}, s{arg}, s{S_KF+(i>>1)}")
                    if i & 1:
                        e(f"s_add_u32 s{S_T0}, s{S_T0}, {64*3456}")
                elif kind == "J":
                    e(f"s_mov_b32 s{S_T0}, s{S_JOB}")
                else:
                    self.job_source(kind, i)
            vo, d, off = {"S": (V_OS + q, SS, q), "F": (V_OF + q, SF, q), "W": (V_JW + q, SA1, q),
                          "C": (self.vjc + q % 2, SA1 if q < 2 else SA2, q % 2),
                          "J": (self.vjc + q % 2, SA1 if q < 2 else SA2, q % 2)}[kind]
            if kind in "CJ" and q == 2:
                e("s_add_u32 m0, m0, 2048")
                if kind == "J":
                    e(f"s_add_u32 s{S_T0}, s{S_T0}, s{S_XB}")
            t = e(f"buffer_load_dwordx4 v{vo}, {srd(d)}, s{S_T0} offen offset:{1024*off}{self.opt.get('nt' + kind, '')} lds")
            if q == 3:
                self.stage_tok[n] = t
        for q in range(4):
            self.dq.append(lambda q=q: piece(q))

    def dma(self):
        if self.dq:
            self.dq.pop(0)()

    def barrier(self, *toks):
        p = self.p
        p.wait(*toks, *self.pre_barrier)
        self.pre_barrier = []
        for it in [x for x in self.lazy if x[0][1] <= p.vdone]:
            self.lazy.remove(it)
            self.on_barrier.append(it[1])
        p.e("s_barrier")
        self.nbar += 1
        cbs, self.on_barrier = self.on_barrier, []
        for f in cbs:
            f()
        if self.after_first_barrier:
            f, self.after_first_barrier = self.after_first_barrier, None
            f()

    def pull(self, budget):
        p = self.p
        start = p.slots
        while self.fill and p.slots - start < budget:
            it = self.fill[0]
            if isinstance(it, tuple):
                if not it[1]():
                    return
                self.fill.pop(0)
                continue
            if p.slots - start + getattr(it, "cost", 1) > budget and not (it in self.refused):
                self.refused.append(it)
                return
            self.fill.pop(0)
            it()

    def flush(self, wevery=0):
        mark = self.p.slots
        while self.fill:
            if wevery and len(self.wq) > self.opt.get("w_keep", 12) and self.p.slots - mark >= wevery:
                self.wq.pop(0)()
                mark = self.p.slots
            it = self.fill.pop(0)
            if isinstance(it, tuple):
                if it[0] == "bar" and not it[1]():
                    self.barrier()
                continue
            it()

    def gemm(self, frags, plan, hooks=None):
        p, o = self.p, self.opt
        LA = 7
        toks = {}
        n = len(frags)
        last = {}
        for i_, fr_ in enumerate(frags):
            last[fr_["stage"]] = i_

        def read(idx):
            fr = frags[idx]
            st = fr["stage"]
            if st not in self.seen:
                grpst = [st] + fr.get("also", [])
                self.seen.update(grpst)
                while any(x not in self.stage_tok for x in grpst):
                    self.dma()
                self.barrier(*[self.stage_tok[x] for x in grpst])
                if self.auto:
                    a = self.auto
                    while a["next"] < len(a["stages"]) and last.get(a["next"] - 8, -99) <= idx - LA:
                        self.issue_stage(a["next"], *a["stages"][a["next"]])
                        a["next"] += 1
                elif st in plan:
                    plan[st]()
            for x in fr.get("pre", []):
                p.e(x)
            r = FR + 4 * (idx % 8)
            for txt in fr["reads"]:
                toks[idx] = p.e(txt.format(f0=r, f1=r + 1, f2=r + 2, f3=r + 3))
        for idx in range(LA):
            read(idx)
        grp = o.get("wgrp", 4)
        def step(idx):
            if hooks and idx in hooks:
                hooks[idx]()
            for tm in [t for t in self.timers if t[0] <= self.mf]:
                self.timers.remove(tm)
                tm[1]()
            if idx in o.get("xstamps", []):
                self.stamp(10 + o["xstamps"].index(idx), True)
            if idx % grp == 0:
                p.wait(toks[min(idx + grp - 1, n - 1)])
            start = p.slots
            r = FR + 4 * (idx % 8)
            p.e(frags[idx]["mfma"].format(f0=r, f3=r + 3))
            self.mf += 1
            if idx + LA < n:
                read(idx + LA)
            dper = o.get("dper", 4)
            if self.dq and (idx % dper == 1 or (len(self.dq) > 4 and idx % 2 == 1)):
                self.dma()
                self.vgap = idx
            elif len(self.wq) > o.get("w_keep", 12) and idx - self.vgap >= (o.get("wpace1", 2) if self.dq else o.get("wpace2", 3)):
                n_w = self.NW - len(self.wq)
                if n_w < 16 - self.wskip + (idx + 1 - self.wfrom) // self.wper:
                    self.wq.pop(0)()
                    self.vgap = idx
            if self.jit:
                for _ in range(o.get("jit_rate", 4)):
                    if self.jit:
                        p.e(self.jit.pop(0))
                if self.in_fork:
                    self.pull(o.get("fork_bud", 3))
            elif self.norm and idx % self.norm_every == 0:
                if self.in_fork:
                    self.pull(o.get("fork_bud", 4))
                for x in self.norm.pop(0):
                    p.e(x)
            elif o.get("interleave", 1):
                bud = o.get("budget", 8)
                for lo, hi, v in o.get("boost", []):
                    if lo <= idx < hi:
                        bud = v
                self.pull(bud - (p.slots - start) - (1 if (idx + 1) % grp == 0 else 0))


        idx = 0
        while idx < n:
            if self.fork and idx == self.fork[0]:
                a, b, pre, var1, var2, tag = self.fork
                self.fork = None
                pre()
                assert not self.fill
                snap, tk = self.snapshot(), dict(toks)
                self.in_fork = True
                var1()
                for i in range(a, b):
                    step(i)
                assert not self.fill
                p.e(f"s_branch FORK_JOIN_{tag}")
                end1, tk1 = self.snapshot(), dict(toks)
                p.label(f"FORK_ALT_{tag}")
                self.restore(snap)
                toks.clear(); toks.update(tk)
                var2()
                for i in range(a, b):
                    step(i)
                assert not self.fill
                end2 = self.snapshot()
                assert end1[:5] == end2[:5] and all(tk1[k] == toks[k] for k in toks if k >= b)
                p.label(f"FORK_JOIN_{tag}")
                self.in_fork = False
                idx = b
            else:
                step(idx)
                idx += 1

    def s_frags(self, st0, acc):
        out = []
        for s in range(40):
            st = st0 + s // 8
            slot = st % 8
            for mat in range(2):
                a = V_AS + 8 * (slot // 4) + (s % 8)
                off = (slot % 4) * 16384 + mat * 8192
                c = f"v[{acc+16*mat}:{acc+16*mat+15}]"
                cin = c if s else "0"
                out.append(dict(stage=st, reads=[f"ds_read_b128 a[{{f0}}:{{f3}}], v{a} offset:{off}"],
                                mfma=f"v_mfma_f32_32x32x16_bf16 {c}, a[{XN+4*s}:{XN+4*s+3}], a[{{f0}}:{{f3}}], {cin}"))
        return out

    def d_frags(self, st0, acc, f="v"):
        out = []
        for s in range(40):
            st = st0 + s // 4
            slot = st % 8
            for j in range(2):
                for mat in range(2):
                    a = V_TR + 2 * (slot // 4) + j
                    off = (slot % 4) * 16384 + mat * 8192 + (s % 4) * 2048
                    r = acc + 32 * j + 16 * mat
                    c = f"{f}[{r}:{r+15}]"
                    cin = c if s else "0"
                    out.append(dict(stage=st, reads=[
                        f"ds_read_b64_tr_b16 a[{{f0}}:{{f1}}], v{a} offset:{off}",
                        f"ds_read_b64_tr_b16 a[{{f2}}:{{f3}}], v{a} offset:{off+512}"],
                        mfma=f"v_mfma_f32_32x32x16_bf16 {c}, a[{{f0}}:{{f3}}], a[{XN+4*s}:{XN+4*s+3}], {cin}"))
        return out

    def q(self, *texts):
        for t in texts:
            if isinstance(t, list):
                f = lambda t=t: [self.p.e(x) for x in t]
                f.cost = len(t)
            else:
                f = lambda t=t: self.p.e(t)
                f.cost = cost_of(t)
            self.fill.append(f)

    def lag(self, n):
        st = {}
        self.fill.append(lambda: st.__setitem__("m", self.mf))
        self.fill.append(("t", lambda: self.mf >= st["m"] + n))

    def ffn_tail(self, acc, s_k, mid=None, K=ACC_S):
        e = self.p.e
        T = V_X
        e(f"v_mov_b32 v{K}, v{V_GK1}"); e(f"v_mov_b32 v{K+1}, v{V_GK1}")
        e(f"v_mov_b32 v{K+2}, s{S_GK2}"); e(f"v_mov_b32 v{K+3}, s{S_GK2}")
        e(f"v_mov_b32 v{K+4}, 1.0"); e(f"v_mov_b32 v{K+5}, 1.0")
        for j in range(2):
            g0, u0 = acc + 32 * j, acc + 32 * j + 16
            for half in range(2):
                prs = [(g0 + 8 * half + 2 * k, u0 + 8 * half + 2 * k, K + 6 + 2 * k) for k in range(4)]
                pr = lambda r: f"v[{r}:{r+1}]"
                for g, u, t in prs:
                    e(f"v_pk_mul_f32 {pr(t)}, {pr(g)}, {pr(g)}")
                for g, u, t in prs:
                    e(f"v_pk_fma_f32 {pr(t)}, {pr(t)}, {pr(K+2)}, {pr(K)}")
                for g, u, t in prs:
                    e(f"v_pk_mul_f32 {pr(t)}, {pr(t)}, {pr(g)}")
                for g, u, t in prs:
                    e(f"v_exp_f32 v{t}, v{t}")
                    e(f"v_pk_mul_f32 {pr(u)}, {pr(u)}, {pr(g)}")
                    e(f"v_exp_f32 v{t+1}, v{t+1}")
                for g, u, t in prs:
                    e(f"v_pk_add_f32 {pr(t)}, {pr(t)}, {pr(K+4)}")
                d = T + 4 + 4 * half
                for k, (g, u, t) in enumerate(prs):
                    e(f"v_rcp_f32 v{t}, v{t}")
                    if k:
                        g1, u1, t1 = prs[k - 1]
                        e(f"v_pk_mul_f32 {pr(u1)}, {pr(u1)}, {pr(t1)}")
                    e(f"v_rcp_f32 v{t+1}, v{t+1}")
                    if k:
                        e(f"v_cvt_pk_bf16_f32 v{d+k-1}, v{u1}, v{u1+1}")
                if j == 1 and half == 0:
                    e(f"s_add_u32 s{s_k}, s{s_k}, 4096")
                if mid and (j, half) in mid:
                    mid[j, half]()
                g1, u1, t1 = prs[3]
                e(f"v_pk_mul_f32 {pr(u1)}, {pr(u1)}, {pr(t1)}")
                e(f"v_cvt_pk_bf16_f32 v{d+3}, v{u1}, v{u1+1}")
                self.last_store = e(f"buffer_store_dwordx4 v[{d}:{d+3}], v{V_STA}, {srd(SWS)}, s{s_k} offen offset:{512*half}{self.wt}")

    def ffn_epilogue(self, acc, s_k, via=None):
        T = V_X
        for j in range(2):
            g0, u0 = acc + 32 * j, acc + 32 * j + 16
            for half in range(2):
                for pair in range(4):
                    i = 8 * half + 2 * pair
                    ga, gb, ua, ub = g0 + i, g0 + i + 1, u0 + i, u0 + i + 1
                    ta, tb = T + 2 * (pair % 2), T + 2 * (pair % 2) + 1
                    d = T + 4 + 4 * half + pair
                    if via is not None:
                        x = via + 4 * (pair % 2)
                        self.q(*[f"v_accvgpr_read_b32 v{x+k}, a{r}" for k, r in enumerate((ga, gb, ua, ub))])
                        ga, gb, ua, ub = x, x + 1, x + 2, x + 3
                    self.q(f"v_mul_f32 v{ta}, v{ga}, v{ga}", f"v_mul_f32 v{tb}, v{gb}, v{gb}",
                           f"v_fma_f32 v{ta}, v{ta}, s{S_GK2}, v{V_GK1}", f"v_fma_f32 v{tb}, v{tb}, s{S_GK2}, v{V_GK1}",
                           f"v_mul_f32 v{ta}, v{ta}, v{ga}", f"v_mul_f32 v{tb}, v{tb}, v{gb}",
                           f"v_exp_f32 v{ta}, v{ta}", f"v_exp_f32 v{tb}, v{tb}",
                           f"v_mul_f32 v{ua}, v{ua}, v{ga}", f"v_mul_f32 v{ub}, v{ub}, v{gb}",
                           f"v_add_f32 v{ta}, 1.0, v{ta}", f"v_add_f32 v{tb}, 1.0, v{tb}",
                           f"v_rcp_f32 v{ta}, v{ta}", f"v_rcp_f32 v{tb}, v{tb}",
                           f"v_mul_f32 v{ua}, v{ua}, v{ta}", f"v_mul_f32 v{ub}, v{ub}, v{tb}",
                           f"v_cvt_pk_bf16_f32 v{d}, v{ua}, v{ub}")
                d = T + 4 + 4 * half
                if j == 1 and half == 0:
                    self.q(f"s_add_u32 s{s_k}, s{s_k}, 4096")
                f = lambda d=d, half=half: setattr(self, "last_store", self.p.e(
                    f"buffer_store_dwordx4 v[{d}:{d+3}], v{V_STA}, {srd(SWS)}, s{s_k} offen offset:{512*half}{self.wt}"))
                f.cost = 2
                self.fill.append(f)

    @staticmethod
    def cmul(dr, di, ar, ai, br, bi):
        return [f"v_mul_f32 v{dr}, v{ar}, v{br}", f"v_mul_f32 v{di}, v{ar}, v{bi}",
                f"v_fma_f32 v{dr}, -v{ai}, v{bi}, v{dr}", f"v_fma_f32 v{di}, v{ai}, v{br}, v{di}"]

    def ssm_consts(self, b, praw, u):
        c = V_C + 12 * b
        lr, li, dt = praw, praw + 1, praw + 2
        L = [f"v_lshlrev_b32 v{lr}, 16, v{lr}", f"v_lshlrev_b32 v{li}, 16, v{li}", f"v_lshlrev_b32 v{dt}, 16, v{dt}",
             f"v_mul_f32 v{dt}, {fx(LOG2E)}, v{dt}", f"v_exp_f32 v{dt}, v{dt}",
             f"v_cvt_pk_bf16_f32 v{dt}, v{dt}, v{dt}", f"v_lshlrev_b32 v{dt}, 16, v{dt}",
             f"v_mul_f32 v{u}, v{dt}, v{lr}", f"v_mul_f32 v{u+1}, v{dt}, v{li}",
             f"v_mul_f32 v{u}, {fx(LOG2E)}, v{u}", f"v_mul_f32 v{u+1}, 0.15915494, v{u+1}",
             f"v_exp_f32 v{u}, v{u}", f"v_fract_f32 v{u+1}, v{u+1}",
             f"v_cos_f32 v{u+2}, v{u+1}", f"v_sin_f32 v{u+3}, v{u+1}",
             f"v_mul_f32 v{c}, v{u}, v{u+2}", f"v_mul_f32 v{c+1}, v{u}, v{u+3}",
             f"v_add_f32 v{u}, -1.0, v{c}",
             f"v_mul_f32 v{u+1}, v{lr}, v{lr}", f"v_fma_f32 v{u+1}, v{li}, v{li}, v{u+1}",
             f"v_rcp_f32 v{u+1}, v{u+1}",
             f"v_mul_f32 v{u+2}, v{u}, v{lr}", f"v_fma_f32 v{u+2}, v{c+1}, v{li}, v{u+2}",
             f"v_mul_f32 v{u+3}, v{c+1}, v{lr}", f"v_fma_f32 v{u+3}, -v{u}, v{li}, v{u+3}",
             f"v_add_f32 v{u+1}, v{u+1}, v{u+1}",
             f"v_mul_f32 v{c+2}, v{u+2}, v{u+1}", f"v_mul_f32 v{c+3}, v{u+3}, v{u+1}"]
        L += self.cmul(u, u + 1, c, c + 1, c, c + 1)
        L += self.cmul(u + 2, u + 3, u, u + 1, u, u + 1)
        L += self.cmul(u, u + 1, u + 2, u + 3, u + 2, u + 3)
        L += self.cmul(c + 4, c + 5, u, u + 1, u, u + 1)
        L += self.cmul(u, u + 1, c + 4, c + 5, c + 4, c + 5)
        L += self.cmul(u + 2, u + 3, u, u + 1, u, u + 1)
        L += self.cmul(c + 8, c + 9, u + 2, u + 3, u + 2, u + 3)
        L += self.cmul(c + 10, c + 11, c + 8, c + 9, c + 8, c + 9)
        hm, m2 = f"s[{S_HM}:{S_HM+1}]", f"s[{S_M2}:{S_M2+1}]"
        L += [f"v_cndmask_b32 v{u+4}, 1.0, v{c+4}, {hm}", f"v_cndmask_b32 v{u+5}, 0, v{c+5}, {hm}",
              [f"s_bitcmp1_b32 s{S_W}, 0", f"s_cselect_b64 {m2}, -1, 0"],
              f"v_cndmask_b32 v{u}, 1.0, v{u}, {m2}", f"v_cndmask_b32 v{u+1}, 0, v{u+1}, {m2}"]
        L += self.cmul(u + 6, u + 7, u + 4, u + 5, u, u + 1)
        L += [[f"s_bitcmp1_b32 s{S_W}, 1", f"s_cselect_b64 {m2}, -1, 0"],
              f"v_cndmask_b32 v{u+2}, 1.0, v{u+2}, {m2}", f"v_cndmask_b32 v{u+3}, 0, v{u+3}, {m2}"]
        L += self.cmul(c + 6, c + 7, u + 6, u + 7, u + 2, u + 3)
        return L

    def ex_base(self, sreg, b):
        return [f"s_add_u32 s{sreg}, s{S_SB}, {b}", f"s_mul_i32 s{sreg}, s{sreg}, {EX_BLK}",
                f"s_add_u32 s{sreg}, s{sreg}, {EX_OFF}"]

    def ssm_reduce(self, b, acc, X, keep=False, T=V_X):
        p = self.p
        c = V_C + 12 * b
        re, im = acc if isinstance(acc, tuple) else (acc, acc + 16)
        cur = (re, im)
        if b == 0 and not self.fused:
            self.q(f"v_mov_b32 v{T+4}, 0", f"v_min_u32 v{T+5}, 6, v{V_SEG}", f"v_sub_u32 v{T+5}, v{T+5}, v{V_SEG}",
                   f"v_lshl_add_u32 v{T+5}, v{T+5}, 3, v{V_XR}", f"ds_write2_b32 v{T+5}, v{T+4}, v{T+4} offset1:1")
        for t in range(1, 16):
            d = (re + t, im + t) if keep else ((T, T + 1) if t % 2 else (T + 2, T + 3))
            self.q(f"v_fma_f32 v{d[0]}, -v{c+1}, v{cur[1]}, v{re+t}", f"v_fma_f32 v{d[1]}, v{c+1}, v{cur[0]}, v{im+t}",
                   f"v_fma_f32 v{d[0]}, v{c}, v{cur[0]}, v{d[0]}", f"v_fma_f32 v{d[1]}, v{c}, v{cur[1]}, v{d[1]}")
            cur = d
        hr, hi = cur
        st = {}

        def wr():
            st["wr"] = p.e(f"ds_write2_b32 v{V_XR}, v{hr}, v{hi} offset0:14 offset1:15")
        self.fill.append(wr)
        self.lag(self.opt.get("xlag", 3))

        def arm():
            self.pre_barrier.append(st["wr"])
            st["bar"] = self.nbar
        self.fill.append(arm)
        self.fill.append(("bar", lambda: self.nbar > st["bar"]))
        E = X
        pr, pi = V_PRE + 2 * b, V_PRE + 2 * b + 1

        def rd():
            for k in range(3):
                p.e(f"ds_read2_b64 v[{E+4*k}:{E+4*k+3}], v{V_XR} offset0:{2*k} offset1:{2*k+1}")
            st["t"] = p.e(f"ds_read_b64 v[{E+12}:{E+13}], v{V_XR} offset:48")
        rd.cost = 4
        self.fill.append(rd)
        g = T + 4
        self.q(f"v_mov_b32 v{g+1}, s{S_EPOCH}", f"v_mov_b32 v{g+3}, s{S_EPOCH}", *self.ex_base(S_T2, b))
        self.lag(4)
        self.fill.append(lambda: p.wait(st["t"]))
        cur = (E, E + 1)
        for j in range(1, 7):
            er, ei = E + 2 * j, E + 2 * j + 1
            d = (pr, pi) if j == 6 else (er, ei)
            self.q(f"v_fma_f32 v{er}, -v{c+5}, v{cur[1]}, v{er}", f"v_fma_f32 v{ei}, v{c+5}, v{cur[0]}, v{ei}",
                   f"v_fma_f32 v{d[0]}, v{c+4}, v{cur[0]}, v{er}", f"v_fma_f32 v{d[1]}, v{c+4}, v{cur[1]}, v{ei}")
            cur = d
        self.q(f"v_fma_f32 v{g}, -v{c+5}, v{pi}, v{hr}", f"v_fma_f32 v{g+2}, v{c+5}, v{pr}, v{hi}",
               f"v_fma_f32 v{g}, v{c+4}, v{pr}, v{g}", f"v_fma_f32 v{g+2}, v{c+4}, v{pi}, v{g+2}",
               f"buffer_store_dwordx4 v[{g}:{g+3}], v{V_PUB}, {srd(SWS)}, s{S_T2} offen sc1")

    def ssm_pre(self, b, acc, Q):
        c = V_C + 12 * b
        T = V_X
        re, im = acc if isinstance(acc, tuple) else (acc, acc + 16)
        self.q(*self.cmul(Q, Q + 16, c + 2, c + 3, c, c + 1))
        for t in range(16):
            o = T + 2 * (t % 2)
            self.q(f"v_mul_f32 v{o}, v{c+3}, v{im+t}", f"v_mul_f32 v{o+1}, v{c+3}, v{re+t}",
                   f"v_fma_f32 v{re+t}, v{c+2}, v{re+t}, -v{o}", f"v_fma_f32 v{im+t}, v{c+2}, v{im+t}, v{o+1}")
            if t < 15:
                self.q(*self.cmul(Q + t + 1, Q + 17 + t, Q + t, Q + 16 + t, c, c + 1))

    def lb_issue(self, i, LB, A):
        p = self.p
        p.e(f"v_add_u32 v{A}, {-1024*i & 0xffffffff:#x}, v{V_LBO}" if i else f"v_mov_b32 v{A}, v{V_LBO}")
        p.e(f"v_max_i32 v{A}, v{A}, v{V_LBO+1}")
        if self.opt.get("dbg_nolb"):
            p.e(f"v_mov_b32 v{A}, v{V_LBO+1}")
        return p.e(f"buffer_load_dwordx4 v[{LB+4*i}:{LB+4*i+3}], v{A}, {srd(SWS)}, s{S_T3} offen sc1")

    def lb_mix(self, LB, A):
        L = [f"v_mov_b32 v{A+1}, s{S_EPOCH}"]
        for i in range(8):
            d = A if i == 0 else A + 2 + i % 2
            L.append(f"v_bitop3_b32 v{d}, v{LB+4*i+1}, v{LB+4*i+3}, v{A+1} bitop3:0x7e")
            if i and i % 2 == 0:
                L.append(f"v_or3_b32 v{A}, v{A}, v{A+2}, v{A+3}")
        L.append(f"v_or_b32 v{A}, v{A}, v{A+3}")
        return L

    def lb_check(self, LB, A, tag):
        p = self.p
        for x in self.lb_mix(LB, A):
            p.e(x)
        p.e(f"v_cmp_ne_u32 vcc, 0, v{A}")
        p.e(f"s_cbranch_vccnz LB_SLOW_{tag}")

    def ssm_finish(self, b, acc, LB, gate_issue, gate_check, tag, Q=None, between=None, pk=False):
        p = self.p
        c = V_C + 12 * b
        PRE = V_PRE + 2 * b
        st = {}
        if gate_issue is not None:
            self.fill.append(("t", gate_issue))
        A = LB + 32
        self.q(*self.ex_base(S_T3, b), f"s_mov_b32 s{S_SPIN}, 0")
        for i in range(8):
            def f(i=i):
                st["t"] = self.lb_issue(i, LB, A)
            self.fill.append(f)
        if between:
            between()
        if gate_check is not None:
            self.fill.append(("t", gate_check))

        self.fill.append(lambda: p.wait(st["t"]))
        self.q(*self.lb_mix(LB, A))

        def check():
            p.e(f"v_cmp_ne_u32 vcc, 0, v{A}")
            p.e(f"s_cbranch_vccnz LB_SLOW_{tag}")
            p.label(f"LB_OK_{tag}")
            self.slow.append((tag, LB, A))
        self.fill.append(check)
        pr, pi = A, A + 1
        self.q(f"v_mov_b32 v{pr}, v{LB+28}", f"v_mov_b32 v{pi}, v{LB+30}")
        for i in range(6, -1, -1):
            er, ei = LB + 4 * i, LB + 4 * i + 2
            self.q(f"v_fma_f32 v{er}, -v{c+11}, v{pi}, v{er}", f"v_fma_f32 v{ei}, v{c+11}, v{pr}, v{ei}",
                   f"v_fma_f32 v{pr}, v{c+10}, v{pr}, v{er}", f"v_fma_f32 v{pi}, v{c+10}, v{pi}, v{ei}")
        r0, i0, r1, i1 = LB, LB + 1, LB + 2, LB + 3
        self.q(f"v_mov_b32 v{r0}, v{pr}", f"v_mov_b32 v{r1}, v{pr}", f"v_mov_b32 v{i0}, v{pi}", f"v_mov_b32 v{i1}, v{pi}",
               f"v_permlane32_swap_b32 v{r0}, v{r1}", f"v_permlane32_swap_b32 v{i0}, v{i1}",
               f"v_fma_f32 v{r0}, -v{c+9}, v{i1}, v{r0}", f"v_fma_f32 v{i0}, v{c+9}, v{r1}, v{i0}",
               f"v_fma_f32 v{r0}, v{c+8}, v{r1}, v{r0}", f"v_fma_f32 v{i0}, v{c+8}, v{i1}, v{i0}",
               f"v_fma_f32 v{PRE}, -v{c+7}, v{i0}, v{PRE}", f"v_fma_f32 v{PRE+1}, v{c+7}, v{r0}, v{PRE+1}",
               f"v_fma_f32 v{PRE}, v{c+6}, v{r0}, v{PRE}", f"v_fma_f32 v{PRE+1}, v{c+6}, v{i0}, v{PRE+1}")
        re, im = acc if isinstance(acc, tuple) else (acc, acc + 16)
        cur = (PRE, PRE + 1)
        for t in range(16):
            o = LB + 4 + 4 * (t % 2)
            if Q is not None:
                qr, qi = Q + t, Q + 16 + t
                self.q(f"v_fma_f32 v{re+t}, v{qr}, v{PRE}, v{re+t}", f"v_fma_f32 v{im+t}, v{qr}, v{PRE+1}, v{im+t}",
                       f"v_fma_f32 v{re+t}, -v{qi}, v{PRE+1}, v{re+t}", f"v_fma_f32 v{im+t}, v{qi}, v{PRE}, v{im+t}",
                       f"v_cvt_pk_bf16_f32 v{o+2}, v{re+t}, -v{im+t}")
                if t == 15:
                    self.fill.append(lambda: setattr(self, "q_done", True))
            else:
                self.q(f"v_fma_f32 v{re+t}, -v{c+1}, v{cur[1]}, v{re+t}", f"v_fma_f32 v{im+t}, v{c+1}, v{cur[0]}, v{im+t}",
                       f"v_fma_f32 v{re+t}, v{c}, v{cur[0]}, v{re+t}", f"v_fma_f32 v{im+t}, v{c}, v{cur[1]}, v{im+t}")
                cur = (re + t, im + t)
                if pk:
                    if t % 2 == 0:
                        continue
                    a, b2, sc = LB + 4, LB + 6, f"v[{c+2}:{c+3}]"
                    rp, ip = f"v[{re+t-1}:{re+t}]", f"v[{im+t-1}:{im+t}]"
                    self.q(f"v_pk_mul_f32 v[{a}:{a+1}], {ip}, {sc} op_sel:[0,1] op_sel_hi:[1,1]",
                           f"v_pk_mul_f32 v[{b2}:{b2+1}], {rp}, {sc} op_sel:[0,1] op_sel_hi:[1,1]",
                           f"v_pk_fma_f32 v[{a}:{a+1}], {rp}, {sc}, v[{a}:{a+1}] op_sel_hi:[1,0,1] neg_lo:[0,0,1] neg_hi:[0,0,1]",
                           f"v_pk_fma_f32 v[{b2}:{b2+1}], {ip}, {sc}, v[{b2}:{b2+1}] op_sel_hi:[1,0,1]",
                           f"v_cvt_pk_bf16_f32 v{LB+8}, v{a}, -v{b2}", f"v_cvt_pk_bf16_f32 v{o+2}, v{a+1}, -v{b2+1}",
                           f"ds_write_b32 v{V_TW}, v{LB+8} offset:{144*(t-1)}")
                else:
                    self.q(f"v_mul_f32 v{o}, v{c+2}, v{re+t}", f"v_mul_f32 v{o+1}, v{c+2}, v{im+t}",
                           f"v_fma_f32 v{o}, -v{c+3}, v{im+t}, v{o}", f"v_fma_f32 v{o+1}, v{c+3}, v{re+t}, v{o+1}",
                           f"v_cvt_pk_bf16_f32 v{o+2}, v{o}, -v{o+1}")

            def w(t=t, o=o):
                st["w"] = p.e(f"ds_write_b32 v{V_TW}, v{o+2} offset:{144*t}")
            self.fill.append(w)
        O = LB + 12
        self.lag(4)

        def rd():
            p.wait(st["w"])
            st["r"] = [p.e(f"ds_read_b128 v[{O+4*f}:{O+4*f+3}], v{V_TW+1} offset:{(f>>1)*2304 + (f&1)*64}")
                       for f in range(4)]
        self.fill.append(rd)
        self.q(f"s_add_u32 s{S_T3}, s{S_SB}, {b}", f"s_lshl_b32 s{S_T3}, s{S_T3}, 13",
               f"s_add_u32 s{S_T3}, s{S_T3}, s{S_A2ROW}", f"s_add_u32 s{S_T3}, s{S_T3}, {54*4096}",
               f"s_add_u32 s{S_T2}, s{S_T3}, 4096")
        self.lag(5)
        for f in range(4):
            def stf(f=f):
                p.wait(st["r"][f])
                so = S_T2 if f & 1 else S_T3
                self.last_store = p.e(f"buffer_store_dwordx4 v[{O+4*f}:{O+4*f+3}], v{V_TW+2}, {srd(SWS)}, s{so} offen offset:{1024*(f>>1)}{self.wt}")
            self.fill.append(stf)
            if f < 3 and self.opt.get("st_lag"):
                self.lag(self.opt["st_lag"])

    def slow_paths(self):
        p = self.p
        for tag, LB, A in self.slow:
            p.label(f"LB_SLOW_{tag}")
            p.e("s_sleep 2")
            p.e(f"s_add_u32 s{S_SPIN}, s{S_SPIN}, 1")
            p.e(f"s_cmp_gt_u32 s{S_SPIN}, 100000")
            p.e(f"s_cbranch_scc1 LB_OK_{tag}")
            for i in range(8):
                self.lb_issue(i, LB, A)
            p.e("s_waitcnt vmcnt(0)")
            self.lb_check(LB, A, tag)
            p.e(f"s_branch LB_OK_{tag}")

    def mk_srd(self, d, ptr, nbytes):
        return [f"s_mov_b32 s{d}, s{ptr}", f"s_mov_b32 s{d+1}, s{ptr+1}",
                f"s_mov_b32 s{d+2}, {nbytes}", f"s_mov_b32 s{d+3}, 0x20000"]

    def prologue(self):
        p, e, q, o = self.p, self.p.e, self.q, self.opt
        hm = f"s[{S_HM}:{S_HM+1}]"
        p.raw(".p2align 8")
        p.label(self.name)
        e("s_cmp_ge_u32 s2, 256")
        e("s_cbranch_scc1 K1_END")
        if o.get("badmap"):
            e("s_lshr_b32 s3, s2, 5")
            e("s_and_b32 s2, s2, 31")
            e("s_lshl_b32 s2, s2, 3")
            e("s_or_b32 s2, s2, s3")
        if o.get("stamp"):
            e("s_memrealtime s[94:95]")
            self.stamp(0)
        e("s_load_dwordx16 s[36:51], s[0:1], 0")
        e("s_load_dwordx16 s[52:67], s[0:1], 64")
        e(f"s_getpc_b64 s[{S_T0}:{S_T1}]")
        p.label("K1_PC")
        e("v_lshrrev_b32 v2, 6, v0")
        e(f"v_and_b32 v{V_LANE}, 63, v0")
        e(f"v_readfirstlane_b32 s{S_W}, v2")
        e("s_lshr_b32 s3, s2, 3")
        e(f"s_lshl_b32 s{S_T2}, s3, 2")
        e(f"s_add_u32 s{S_T2}, s{S_T2}, s{S_W}")
        e(f"s_mul_i32 s{S_T2}, s{S_T2}, {128*o.get('cp_lines', 6)}")
        e(f"v_lshlrev_b32 v2, 7, v{V_LANE}")
        e(f"v_add_u32 v2, s{S_T2}, v2")
        e("v_min_u32 v2, TEXT_END-K1_PC-4, v2")
        e(f"s_mov_b64 exec, {o.get('cp_mask', (1 << o.get('cp_lines', 6)) - 1)}")
        e(f"global_load_dword v{V_PRE+5}, v2, s[{S_T0}:{S_T1}]")
        e("s_mov_b64 exec, -1")
        if o.get("cp_near"):
            e(f"v_lshlrev_b32 v2, 7, v0")
            e(f"v_and_b32 v2, {o['cp_near']*128 - 1:#x}, v2")
            e(f"s_mov_b64 exec, {(1 << min(16, o['cp_near'] // 4)) - 1}")
            e(f"v_lshlrev_b32 v3, 7, v{V_LANE}")
            e(f"s_mul_i32 s{S_T2}, s{S_W}, {o['cp_near'] // 4 * 128}")
            e(f"v_add_u32 v3, s{S_T2}, v3")
            e(f"global_load_dword v{V_PRE+4}, v3, s[{S_T0}:{S_T1}]")
            e("s_mov_b64 exec, -1")
        e(f"s_and_b32 s{S_T2}, s2, 7")
        e(f"s_lshr_b32 s{S_MT}, s{S_T2}, 1")
        e(f"s_lshl_b32 s{S_MT}, s{S_MT}, 2")
        e(f"s_and_b32 s{S_T3}, s3, 3")
        e(f"s_add_u32 s{S_MT}, s{S_MT}, s{S_T3}")
        e(f"s_and_b32 s{S_CG}, s{S_T2}, 1")
        e(f"s_lshl_b32 s{S_CG}, s{S_CG}, 3")
        e("s_lshr_b32 s3, s3, 2")
        e(f"s_add_u32 s{S_CG}, s{S_CG}, s3")
        e(f"s_add_u32 s{S_R}, s3, s{S_T3}")
        if o.get("rot_x"):
            e(f"s_lshr_b32 s{S_T2}, s{S_MT}, 2")
            e(f"s_add_u32 s{S_R}, s{S_R}, s{S_T2}")
        for _ in range(3 if o.get("rot_x") else 2):
            e(f"s_sub_u32 s{S_T2}, s{S_R}, 5")
            e(f"s_cmp_ge_u32 s{S_R}, 5")
            e(f"s_cselect_b32 s{S_R}, s{S_T2}, s{S_R}")
        if o.get("norot"):
            e(f"s_mov_b32 s{S_R}, 0")
        e(f"s_lshl_b32 s{S_KS}, s{S_R}, 8")
        for i in range(1, 5):
            e(f"s_add_u32 s{S_KS+i}, s{S_KS+i-1}, 256")
            e(f"s_cmp_eq_u32 s{S_KS+i}, 1280")
            e(f"s_cselect_b32 s{S_KS+i}, 0, s{S_KS+i}")
        e(f"s_lshl_b32 s{S_W4K}, s{S_W}, 12")
        e(f"s_lshl_b32 s{S_XB}, s{S_MT}, 2")
        e(f"s_add_u32 s{S_XB}, s{S_XB}, s{S_W}")
        e(f"s_mul_i32 s{S_XB}, s{S_XB}, {32*1280}")
        a, xr = V_X + 4, V_X + 5
        e(f"v_lshrrev_b32 v{a}, 4, v{V_LANE}")
        e(f"v_and_b32 v{xr}, 15, v{V_LANE}")
        e(f"v_xor_b32 v{xr}, v{xr}, v{a}")
        e(f"v_lshlrev_b32 v{xr}, 4, v{xr}")
        e(f"v_mul_u32_u24 v{a}, 1280, v{a}")
        for k in range(4):
            e(f"v_xor_b32 v{V_OS+k}, {64*k}, v{xr}")
            e(f"v_add_u32 v{V_OS+k}, v{V_OS+k}, v{a}")
            e(f"v_add_u32 v{V_X+k}, {(16*(k&1) + 4*(k>>1))*1280 - 1024*k}, v{V_OS+k}")
        e(f"s_cmp_ge_u32 s{S_CG}, 8")
        e(f"s_cselect_b32 s{S_T2}, 1, 0")
        e(f"s_sub_u32 s{S_SB}, s{S_CG}, s{S_T2}")
        e(f"s_lshl_b32 s{S_D1}, s{S_SB}, 1")
        e(f"s_mov_b32 s{S_TYPE}, 0")
        e(f"s_cmp_eq_u32 s{S_CG}, 14")
        e(f"s_cselect_b32 s{S_TYPE}, 1, s{S_TYPE}")
        e(f"s_cmp_eq_u32 s{S_CG}, 7")
        e(f"s_cselect_b32 s{S_TYPE}, 2, s{S_TYPE}")
        e(f"s_cselect_b32 s{S_SB}, 14, s{S_SB}")
        e(f"s_cmp_eq_u32 s{S_CG}, 15")
        e(f"s_cselect_b32 s{S_TYPE}, 2, s{S_TYPE}")
        e(f"s_cselect_b32 s{S_SB}, 17, s{S_SB}")
        e(f"v_and_b32 v{V_SEG}, 31, v{V_LANE}")
        e(f"s_lshl_b32 s{S_T2}, s{S_SB}, 6")
        e(f"v_lshl_add_u32 v{V_PUB}, v{V_SEG}, 1, s{S_T2}")
        e(f"v_min_u32 v{V_XR}, {1278 - 128}, v{V_PUB}")
        e(f"v_mov_b32 v{V_XW}, {EPOCH_OFF}")
        e(f"s_lshl_b32 s{S_J1}, s{S_W}, 13")
        e(f"s_add_u32 s{S_J1}, s{S_J1}, {LDS_SCR}")
        e("s_waitcnt lgkmcnt(0)")
        for x in self.mk_srd(SX, K_X, X_BYTES):
            e(x)
        xt = {}
        cnt = {"n": 0}

        def x_piece(i, u):
            if u % 4 == 0:
                hh = u // 4
                if i < 4:
                    e(f"s_add_u32 m0, s{S_W4K}, {(i + 4*hh)*16384}")
                elif hh:
                    e(f"s_add_u32 m0, s{S_J1}, 4096")
                else:
                    e(f"s_mov_b32 m0, s{S_J1}")
                e(f"s_add_u32 s{S_T0}, s{S_XB}, s{S_KS+i}")
                if hh:
                    e(f"s_add_u32 s{S_T0}, s{S_T0}, 10240")
            xt[i, u] = e(f"buffer_load_dwordx4 v{V_X+u%4}, {srd(SX)}, s{S_T0} offen offset:{1024*(u%4)}{o.get('ntx', '')} lds")
            cnt["n"] += 1
        xq = [(i, u) for i in range(5) for u in range(8)]
        for _ in range(o.get("x_first", 4)):
            x_piece(*xq.pop(0))
        if o.get("ws_base"):
            e(f"s_add_u32 s{K_WS}, s{K_WS}, {o['ws_base']}")
            e(f"s_addc_u32 s{K_WS+1}, s{K_WS+1}, 0")
        for x in self.mk_srd(SWS, K_WS, self.ws_used):
            e(x)
        EP = V_PRE + 4
        e(f"s_mov_b32 s{S_T2}, 0" if self.fused else f"s_lshl_b32 s{S_T2}, s{S_CG}, 7")
        e(f"buffer_load_dword v{EP}, v{V_XW}, {srd(SWS)}, s{S_T2} offen sc1")
        t_par = None
        for b in range(1 if o.get("order") == "SD" else 3):
            for k, ptr in enumerate((K_LRE, K_LIM, K_LDT)):
                va = V_XR if b else V_PUB
                t_par = e(f"global_load_ushort v{V_C+12*b+6+k}, v{va}, s[{ptr}:{ptr+1}] offset:{64*b}")
        if self.fused:
            for _ in range(o.get("job_after", 4)):
                x_piece(*xq.pop(0))
            if o.get("job_dq") != 2 and o.get("job_mode") != "dma":
                self.a_job_setup()
        if o.get("wpre", 1) >= 2:
            n2 = o.get("wpre_after", 0)
            for _ in range(n2):
                x_piece(*xq.pop(0))
            self.w_prefetch_early()
        for _ in range(o.get("x_second", 4) - o.get("wpre_after", 0) - (o.get("job_after", 4) if self.fused else 0)):
            x_piece(*xq.pop(0))
        if o.get("touch", 1) == 2:
            e(f"s_cmp_lg_u32 s{S_W}, 3")
            e("s_cbranch_scc1 K1_NOTOUCH")
            e(f"s_lshl_b32 s{S_T2}, s2, 7")
            e(f"s_add_u32 s{S_T3}, s{S_T2}, {1 << 21}")
            for ptr, both in ((K_BRE, 0), (K_BIM, 0), (K_WG, 1), (K_WU, 1), (K_WD, 1), (K_CRE, 0), (K_CIM, 0), (K_OUT, 1)):
                e(f"s_load_dword s95, s[{ptr}:{ptr+1}], s{S_T2}")
                if both:
                    e(f"s_load_dword s95, s[{ptr}:{ptr+1}], s{S_T3}")
            p.label("K1_NOTOUCH")
            e(f"s_cmp_lg_u32 s{S_W}, 2")
            e("s_cbranch_scc1 K1_NOTOUCH2")
            e(f"s_lshl_b32 s{S_T2}, s2, 7")
            for pg in range(12):
                e(f"s_load_dword s95, s[{K_WS}:{K_WS+1}], s{S_T2}")
                e(f"s_add_u32 s{S_T2}, s{S_T2}, {1 << 21}")
            e(f"s_load_dword s95, s[{K_DSK}:{K_DSK+1}], 0")
            e(f"s_mov_b32 s{S_T2}, {1 << 22}")
            e(f"s_load_dword s95, s[{K_OUT}:{K_OUT+1}], s{S_T2}")
            p.label("K1_NOTOUCH2")
        if o.get("touch", 1) == 1:
            for ptr, offs in ((K_BRE, [0]), (K_BIM, [0]), (K_WG, [0, 1 << 21]), (K_WU, [0, 1 << 21]), (K_WD, [0, 1 << 21]),
                              (K_CRE, [0]), (K_CIM, [0]), (K_X, [1 << 21])):
                for off in offs:
                    if off:
                        e(f"s_mov_b32 s{S_T2}, {off}")
                    e(f"s_load_dword s95, s[{ptr}:{ptr+1}], " + (f"s{S_T2}" if off else "0"))
        self.stamp(1)
        self.pro = dict(xq=xq, xt=xt, cnt=cnt, x_piece=x_piece, t_par=t_par, EP=EP)
        if o.get("order") not in ("DSD", "SD"):
            self.prologue2("S", o.get("npre", 8))

    def prologue2(self, kind, npre, stages=None):
        p, e, q, o = self.p, self.p.e, self.q, self.opt
        hm = f"s[{S_HM}:{S_HM+1}]"
        xq, xt, cnt = list(self.pro["xq"]), self.pro["xt"], self.pro["cnt"]
        x_piece, t_par, EP = self.pro["x_piece"], self.pro["t_par"], self.pro["EP"]
        cnt["n"] = 40 - len(xq)
        arg = 0 if kind == "S" else S_D1
        first = stages or [(kind, i, arg) for i in range(5)]
        if o.get("order") == "SD" and kind == "S":
            for b in (1, 2):
                for k, ptr in enumerate((K_LRE, K_LIM, K_LDT)):
                    t_par = e(f"global_load_ushort v{V_C+12*b+6+k}, v{V_XR}, s[{ptr}:{ptr+1}] offset:{64*b}")
        for k in range(1, 4):
            q(f"v_add_u32 v{V_OS+k}, {4*k*1280 - 1024*k}, v{V_OS+k}")
        h, c, t0, t1 = V_X + 4, V_SEG, V_X + 5, V_X + 6
        q(f"s_mov_b32 s{S_HM}, 0", f"s_mov_b32 s{S_HM+1}, -1", f"s_mov_b32 s{S_MASK}, 0xffff0000",
          f"v_lshrrev_b32 v{h}, 5, v{V_LANE}")
        q(f"v_and_b32 v{t0}, 15, v{V_LANE}", f"v_xor_b32 v{t1}, v{t0}, v{h}", f"v_lshlrev_b32 v{t1}, 4, v{t1}",
          f"v_lshl_add_u32 v{t1}, v{t0}, 8, v{t1}", f"v_bfe_u32 v{t0}, v{V_LANE}, 4, 1",
          f"v_lshlrev_b32 v{V_X+8}, 16, v{t0}", f"v_add_u32 v{V_X+8}, s{S_W4K}, v{V_X+8}",
          f"v_lshlrev_b32 v{t0}, 12, v{t0}")
        for s in range(8):
            q(f"v_xor_b32 v{self.AS+s}, {32*s}, v{t1}", f"v_add_u32 v{self.AX+s}, v{self.AS+s}, v{V_X+8}",
              f"v_add_u32 v{self.AS+s}, v{self.AS+s}, v{t0}")
        sm, sq = V_PRE, V_PRE + 1
        q(f"v_mov_b32 v{sm}, 0", f"v_mov_b32 v{sq}, 0", f"s_mov_b32 s{S_SPIN}, 0x3f803f80")
        q([f"s_cmp_ge_u32 s{S_W}, 2",
           f"s_cselect_b32 s{SS}, s{K_BIM}, s{K_BRE}", f"s_cselect_b32 s{SS+1}, s{K_BIM+1}, s{K_BRE+1}",
           f"s_cselect_b32 s{SF}, s{K_WU}, s{K_WG}", f"s_cselect_b32 s{SF+1}, s{K_WU+1}, s{K_WG+1}"],
          f"s_mov_b32 s{SS+2}, {SQ_BYTES}", f"s_mov_b32 s{SS+3}, 0x20000",
          f"s_mov_b32 s{SF+2}, {FF_BYTES}", f"s_mov_b32 s{SF+3}, 0x20000")
        for i in range(5):
            q(f"s_mul_i32 s{S_KF+i}, s{S_KS+i}, {128*3456//256}")
        q(f"s_and_b32 s{S_T2}, s{S_W}, 1",
          f"s_lshl_b32 s{S_SBROW}, s{S_SB}, 1", f"s_add_u32 s{S_SBROW}, s{S_SBROW}, s{S_T2}",
          f"s_mul_i32 s{S_SBROW}, s{S_SBROW}, {16*1280}",
          f"s_lshr_b32 s{S_T3}, s{S_W}, 1",
          f"s_lshl_b32 s{S_A2ROW}, s{S_MT}, 1", f"s_add_u32 s{S_A2ROW}, s{S_A2ROW}, s{S_T3}",
          f"s_mul_i32 s{S_A2ROW}, s{S_A2ROW}, {94*4096}",
          f"s_lshl_b32 s{S_T3}, s{S_T2}, 11", f"s_add_u32 s{S_A2ROW}, s{S_A2ROW}, s{S_T3}",
          f"s_lshl_b32 s{S_KD1}, s{S_D1}, 13", f"s_add_u32 s{S_KD1}, s{S_KD1}, s{S_A2ROW}",
          f"s_add_u32 s{S_KD2}, s{S_KD1}, 8192",
          f"s_lshl_b32 s{S_D1}, s{S_D1}, 7", f"s_mul_i32 s{S_T3}, s{S_T2}, {32*3456}",
          f"s_add_u32 s{S_D1}, s{S_D1}, s{S_T3}", f"s_add_u32 s{S_D2}, s{S_D1}, 128",
          f"s_mov_b32 s{S_GK2}, {fx(GK2)}", f"v_mov_b32 v{V_GK1}, {fx(GK1)}")
        if o.get("touch", 1) == 1:
            ws, out = f"s[{K_WS}:{K_WS+1}]", f"s[{K_OUT}:{K_OUT+1}]"
            q(f"s_mul_i32 s{S_T2}, s{S_MT}, {2*94*4096}", f"s_load_dword s95, {ws}, s{S_T2}",
              f"s_add_u32 s{S_T2}, s{S_T2}, {2*94*4096 - 4}", f"s_load_dword s95, {ws}, s{S_T2}")
            for off in (W2F_OFF, W2F_OFF + (1 << 21)):
                q(f"s_mov_b32 s{S_T2}, {off}", f"s_load_dword s95, {ws}, s{S_T2}")
            q(f"s_mul_i32 s{S_T2}, s2, {4*5120}", f"s_add_u32 s{S_T2}, s{S_T2}, {PART_OFF}", f"s_load_dword s95, {ws}, s{S_T2}",
              f"s_mul_i32 s{S_T2}, s{S_MT}, {128*2560}", f"s_load_dword s95, {out}, s{S_T2}",
              f"s_add_u32 s{S_T2}, s{S_T2}, {128*2560 - 4}", f"s_load_dword s95, {out}, s{S_T2}",
              f"s_load_dword s95, s[{K_DSK}:{K_DSK+1}], 0")
        q(f"v_lshrrev_b32 v{t0}, 3, v{V_LANE}", f"v_mul_u32_u24 v{t0}, 3456, v{t0}",
          f"v_bfe_u32 v{t1}, v{V_LANE}, 4, 1", f"v_lshlrev_b32 v{t1}, 2, v{t1}",
          f"v_and_b32 v{V_OF}, 7, v{V_LANE}", f"v_xor_b32 v{V_OF}, v{V_OF}, v{t1}",
          f"v_lshl_add_u32 v{V_OF}, v{V_OF}, 4, v{t0}")
        for k in range(1, 4):
            q(f"v_add_u32 v{V_OF+k}, {k*(8*3456 - 1024)}, v{V_OF}")
        q(f"v_bfe_u32 v{t0}, v{V_LANE}, 2, 2", f"v_lshl_add_u32 v{t1}, v{h}, 3, v{t0}",
          f"v_lshlrev_b32 v{V_TR}, 7, v{t1}", f"v_lshrrev_b32 v{t0}, 1, v{t0}",
          f"v_lshl_add_u32 v{V_TR}, v{t0}, 6, v{V_TR}", f"v_bfe_u32 v{t0}, v{V_LANE}, 4, 1",
          f"v_lshl_add_u32 v{V_TR}, v{t0}, 5, v{V_TR}", f"v_and_b32 v{t0}, 3, v{V_LANE}",
          f"v_lshl_add_u32 v{V_TR}, v{t0}, 3, v{V_TR}", f"v_xor_b32 v{V_TR+1}, 64, v{V_TR}",
          f"v_add_u32 v{V_TR+2}, 0x10000, v{V_TR}", f"v_add_u32 v{V_TR+3}, 0x10000, v{V_TR+1}")
        q(f"v_lshrrev_b32 v{t1}, 3, v{c}", f"v_lshl_add_u32 v{t1}, v{t1}, 2, v{t0}",
          f"v_lshl_add_u32 v{V_STA}, v{h}, 4, v{t1}", f"v_lshlrev_b32 v{V_STA}, 4, v{V_STA}",
          f"v_bfe_u32 v{t0}, v{c}, 2, 1", f"v_lshl_add_u32 v{V_STA}, v{t0}, 10, v{V_STA}",
          f"v_lshl_add_u32 v{V_X+7}, v{t0}, 4, v{t1}", f"v_lshlrev_b32 v{V_X+7}, 3, v{V_X+7}",
          f"v_cndmask_b32 v{V_X+7}, v{V_X+7}, v{V_XW}, {hm}" if not self.fused else
          [f"s_lshl_b32 s{S_T2}, s{S_W}, 8", f"s_add_u32 s{S_T2}, s{S_T2}, {STL}", f"v_add_u32 v0, s{S_T2}, v{V_X+7}"])
        q(f"v_lshlrev_b32 v{V_LBO+1}, 4, v{c}", f"v_sub_u32 v{t0}, s{S_MT}, v{h}",
          f"v_lshl_add_u32 v{V_LBO}, v{t0}, 9, v{V_LBO+1}",
          f"s_add_u32 s{S_T2}, s{S_MT}, 1", f"s_lshl_b32 s{S_T2}, s{S_T2}, 9",
          [f"s_cmp_eq_u32 s{S_W}, 3", f"s_cselect_b32 s{S_T2}, s{S_T2}, {OOB}"], f"v_add_u32 v{t0}, s{S_T2}, v{V_LBO+1}",
          f"v_mov_b32 v{t1}, {OOB}", f"v_cndmask_b32 v{V_PUB}, v{t1}, v{t0}, {hm}",
          f"v_and_b32 v{V_XR}, 15, v{c}", f"v_mul_u32_u24 v{V_XR}, 120, v{V_XR}", f"v_lshrrev_b32 v{t0}, 4, v{c}",
          f"v_lshl_add_u32 v{V_XR}, v{t0}, 13, v{V_XR}", f"v_add_u32 v{V_XR}, {XCH}, v{V_XR}",
          f"v_mul_u32_u24 v{V_TW}, {16*144}, v{h}", f"v_lshl_add_u32 v{V_TW}, v{c}, 2, v{V_TW}",
          f"v_add_u32 v{V_TW}, s{S_J1}, v{V_TW}",
          f"v_and_b32 v{t0}, 15, v{V_LANE}", f"v_mul_u32_u24 v{t0}, 144, v{t0}",
          f"v_lshrrev_b32 v{t1}, 4, v{V_LANE}", f"v_lshl_add_u32 v{V_TW+1}, v{t1}, 4, v{t0}",
          f"v_add_u32 v{V_TW+1}, s{S_J1}, v{V_TW+1}", f"v_lshlrev_b32 v{V_TW+2}, 4, v{V_LANE}",
          f"s_lshl_b32 s{S_T2}, s{S_W}, 1", f"v_add_u32 v{V_SEG}, s{S_T2}, v{h}",
          f"v_lshl_add_u32 v{V_XR}, v{V_SEG}, 3, v{V_XR}")
        self.fill.append(lambda: p.wait(t_par))
        U = RAW + 152
        q(f"v_readfirstlane_b32 s{S_EPOCH}, v{EP}")
        if o.get("job_dq") == 2 or o.get("job_early"):
            self.fill.append(self.a_job_setup)
        q(*self.ssm_consts(0, V_C + 6, U))
        q(f"s_add_u32 s{S_EPOCH}, s{S_EPOCH}, 1")
        self.zero_row(0, U)
        rd = {}

        def x_read(i, half):
            def f():
                p.wait(xt[i, 7])
                for s in range(4 * half, 4 * half + 4):
                    r = RAW + 32 * i + 4 * s
                    rd[i, s] = e(f"ds_read_b128 v[{r}:{r+3}], v{self.AX+s} offset:{i*16384 if i < 4 else 0}")
            return f
        lag = o.get("x_lag", 9)
        for i in range(5):
            self.fill.append(("t", lambda i=i: cnt["n"] >= min(40, 8 * i + 8 + lag)))
            if i == 4:
                if o.get("job_dq"):
                    self.fill.append(("t", lambda: hasattr(self, "job_tok") and not any(f in self.dq for f in self.job_ld)))
                for s in range(8):
                    q(f"v_add_u32 v{self.AX+s}, s{S_J1}, v{self.AS+s}")
            self.fill.append(x_read(i, 0))
            self.fill.append(x_read(i, 1))
            for s in range(8):
                self.fill.append(lambda i=i, s=s: p.wait(rd[i, s]))
                for k in range(4 if (i == 4 or not o.get("dbg_nostats")) else 1):
                    r = RAW + 32 * i + 4 * s + k
                    q(f"v_dot2c_f32_bf16 v{sm}, s{S_SPIN}, v{r}", f"v_dot2c_f32_bf16 v{sq}, v{r}, v{r}")
            if i < 4:
                self.fill.append(lambda i=i: self.issue_stage(i, *first[i]))
            if i == 3:
                self.fill.append(lambda: self.issue_stage(4, *first[4]))
        if o.get("dbg_xonly"):
            while xq:
                x_piece(*xq.pop(0))
            p.wait_all(lgkm=False)
            self.stamp(1)
        self.pull(o.get("pre_slots", 150))
        while xq:
            x_piece(*xq.pop(0))
            self.pull(o.get("x_gap", 14))
        left = o.get("pro_dma", 99)
        while self.fill:
            if left > 0 and self.dq:
                self.dma()
                left -= 1
            self.pull(o.get("x_gap2", o.get("x_gap", 14)))
        self.stamp(2)
        u = V_X + 8
        e(f"v_mov_b32 v{u}, v{sm}"); e(f"v_mov_b32 v{u+1}, v{sq}")
        e(f"v_permlane32_swap_b32 v{sm}, v{u}"); e(f"v_permlane32_swap_b32 v{sq}, v{u+1}")
        e(f"v_add_f32 v{sm}, v{sm}, v{u}"); e(f"v_add_f32 v{sq}, v{sq}, v{u+1}")
        e(f"v_mul_f32 v{sm}, {fx(1/640)}, v{sm}"); e(f"v_mul_f32 v{sq}, {fx(1/640)}, v{sq}")
        e(f"v_fma_f32 v{sq}, -v{sm}, v{sm}, v{sq}")
        e(f"v_max_f32 v{sq}, 0, v{sq}")
        e(f"v_cvt_pk_bf16_f32 v{u}, v{sq}, v{sm}")
        e(f"v_lshlrev_b32 v{sq}, 16, v{u}"); e(f"v_and_b32 v{sm}, s{S_MASK}, v{u}")
        e(f"v_add_f32 v{sq}, {fx(1e-5)}, v{sq}")
        e(f"v_cvt_pk_bf16_f32 v{sq}, v{sq}, v{sq}"); e(f"v_lshlrev_b32 v{sq}, 16, v{sq}")
        e(f"v_sqrt_f32 v{sq}, v{sq}")
        e(f"s_lshl_b32 s{S_T2}, s{S_MT}, 2"); e(f"s_add_u32 s{S_T2}, s{S_T2}, s{S_W}")
        e(f"v_cvt_pk_bf16_f32 v{sq}, v{sq}, v{sq}"); e(f"v_lshlrev_b32 v{sq}, 16, v{sq}")
        e(f"v_rcp_f32 v{u}, v{sq}")
        e(f"s_lshl_b32 s{S_T2}, s{S_T2}, 8"); e(f"s_add_u32 s{S_T2}, s{S_T2}, {STATS_OFF}")
        e(f"v_mul_f32 v{u+2}, -v{sm}, v{u}")
        e(f"v_mov_b32 v{u+1}, v{u}")
        e(f"v_mov_b32 v{u+3}, v{u+2}")
        e(f"s_cmp_eq_u32 s{S_CG}, 0"); e(f"s_cselect_b32 s{S_T2}, s{S_T2}, {OOB}")
        if not self.fused:
            e(f"v_mov_b32 v{V_X+4}, v{u}"); e(f"v_mov_b32 v{V_X+5}, v{u+2}")
            e(f"buffer_store_dwordx2 v[{V_X+4}:{V_X+5}], v{V_X+7}, {srd(SWS)}, s{S_T2} offen{self.wt}")
        for k in range(4 * npre):
            r = RAW + k
            t = V_X + 2 * (k % 2)
            e(f"v_lshlrev_b32 v{t}, 16, v{r}"); e(f"v_and_b32 v{t+1}, s{S_MASK}, v{r}")
            e(f"v_pk_fma_f32 v[{t}:{t+1}], v[{t}:{t+1}], v[{u}:{u+1}], v[{u+2}:{u+3}]")
            e(f"v_cvt_pk_bf16_f32 v{r}, v{t}, v{t+1}")
            e(f"v_accvgpr_write_b32 a{XN+k}, v{r}")
            if k % o.get("pre_dma", 4) == o.get("pre_dma", 4) - 1:
                self.dma()
        done = []
        for k in range(4 * npre, 160 if kind == "SD" else 0):
            r, t = RAW + k, V_X + 2 * (k % 2)
            self.jit += [f"v_lshlrev_b32 v{t}, 16, v{r}", f"v_and_b32 v{t+1}, s{S_MASK}, v{r}",
                         f"v_fma_f32 v{t}, v{t}, v{u}, v{u+2}", f"v_fma_f32 v{t+1}, v{t+1}, v{u}, v{u+2}",
                         f"v_cvt_pk_bf16_f32 v{r}, v{t}, v{t+1}", f"v_accvgpr_write_b32 a{XN+k}, v{r}"]
        for k in range(4 * npre, 0 if kind == "SD" else 160, 2):
            t = V_X + 4 * ((k // 2) % 2)
            grp = done
            for i in range(2):
                grp = grp + [f"v_lshlrev_b32 v{t+2*i}, 16, v{RAW+k+i}", f"v_and_b32 v{t+2*i+1}, s{S_MASK}, v{RAW+k+i}"]
            for i in range(2):
                grp.append(f"v_pk_fma_f32 v[{t+2*i}:{t+2*i+1}], v[{t+2*i}:{t+2*i+1}], v[{u}:{u+1}], v[{u+2}:{u+3}]")
            self.norm.append(grp)
            done = [f"v_cvt_pk_bf16_f32 v{RAW+k+i}, v{t+2*i}, v{t+2*i+1}" for i in range(2)]
            done += [f"v_accvgpr_write_b32 a{XN+k+i}, v{RAW+k+i}" for i in range(2)]
        if done:
            self.norm.append(done)
        if kind != "SD":
            for s in range(8):
                e(f"v_add_u32 v{V_AS+8+s}, 0x10000, v{V_AS+s}")
        self.stamp(3)

    def zero_row(self, b, z):
        self.q(f"v_mov_b32 v{z}, 0", f"v_mov_b32 v{z+1}, s{S_EPOCH}", f"v_mov_b32 v{z+2}, 0", f"v_mov_b32 v{z+3}, s{S_EPOCH}",
               *self.ex_base(S_T2, b),
               f"buffer_store_dwordx4 v[{z}:{z+3}], v{V_LBO+1}, {srd(SWS)}, s{S_T2} offen sc1")

    def job_setup(self, kind):
        def q(*texts):
            for t in texts:
                self.p.e(t)
        vo = V_JW if kind == "W" else self.vjc
        q(f"v_lshrrev_b32 v{vo}, 3, v{V_LANE}", f"v_mul_u32_u24 v{vo}, 1280, v{vo}",
          f"v_and_b32 v{vo+1}, 7, v{V_LANE}", f"v_lshl_add_u32 v{vo}, v{vo+1}, 4, v{vo}")
        if kind == "W":
            for k in range(1, 4):
                q(f"v_add_u32 v{vo+k}, {k*(8*1280 - 1024)}, v{vo}")
            q(*self.mk_srd(SA1, K_WD, FF_BYTES),
              f"s_lshl_b32 s{S_JOB}, s{S_SB}, 4", f"s_add_u32 s{S_JOB}, s{S_JOB}, s{S_MT}")
        else:
            q(f"v_add_u32 v{vo+1}, {8*1280 - 1024}, v{vo}")
            q(*self.mk_srd(SA1, K_CRE, SQ_BYTES), *self.mk_srd(SA2, K_CIM, SQ_BYTES),
              f"s_mov_b32 s{S_JOB}, s{S_MT}")
        q(f"s_lshl_b32 s{S_JOB}, s{S_JOB}, 2", f"s_add_u32 s{S_JOB}, s{S_JOB}, s{S_W}")

    def job_index(self, kind, i):
        e = self.p.e
        e(f"s_add_u32 s{S_J2}, s{S_JOB}, {64 * i + (292 if self.fused else 0)}")
        e(f"s_mul_hi_u32 s{S_T1}, s{S_J2}, 0x1999999a")
        e(f"s_mul_i32 s{S_R}, s{S_T1}, 10")
        e(f"s_sub_u32 s{S_R}, s{S_J2}, s{S_R}")

    def job_source(self, kind, i):
        e = self.p.e
        self.job_index(kind, i)
        e(f"s_mul_i32 s{S_T0}, s{S_T1}, {(32 if kind == 'W' else 16) * 1280}")
        e(f"s_lshl_b32 s{S_XB}, s{S_R}, 7")
        e(f"s_add_u32 s{S_T0}, s{S_T0}, s{S_XB}")
        e(f"s_cmp_lt_u32 s{S_J2}, {540 if kind == 'W' else 400}")
        e(f"s_cselect_b32 s{S_T0}, s{S_T0}, {OOB}")

    def w_job(self, R):
        p, q = self.p, self.q
        st = {}
        D = R + 4
        q(f"v_lshrrev_b32 v{R}, 5, v{V_LANE}", f"v_lshlrev_b32 v{R}, 4, v{R}",
          f"v_bfe_u32 v{R+1}, v{V_LANE}, 2, 3", f"v_add_u32 v{R}, v{R}, v{R+1}",
          f"v_lshlrev_b32 v{R}, 7, v{R}", f"v_and_b32 v{R+1}, 3, v{V_LANE}",
          f"v_lshl_add_u32 v{R}, v{R+1}, 3, v{R}", f"v_add_u32 v{R}, s{S_J1}, v{R}")
        ad, cb = S_JOB, S_R
        q(f"s_lshl_b32 s{cb}, s{cb}, 2", f"s_mul_hi_u32 s{ad}, s{cb}, 0x33333334", f"s_mul_i32 s{S_XB}, s{ad}, 5",
          f"s_sub_u32 s{cb}, s{cb}, s{S_XB}", f"s_mul_i32 s{ad}, s{ad}, 94", f"s_add_u32 s{ad}, s{ad}, s{S_T1}",
          f"s_mul_i32 s{ad}, s{ad}, 5", f"s_add_u32 s{ad}, s{ad}, s{cb}", f"s_lshl_b32 s{ad}, s{ad}, 10",
          f"s_add_u32 s{ad}, s{ad}, {W2F_OFF}",
          [f"s_cmp_lt_u32 s{S_J2}, 540", f"s_cselect_b32 s{ad}, s{ad}, {OOB}"])
        self.fill.append(("t", lambda: 100 in self.stage_tok and p.vdone >= self.stage_tok[100][1]))
        for f in range(4):
            def rd(f=f):
                p.wait(self.stage_tok[100])
                p.e(f"ds_read_b64_tr_b16 v[{D+4*f}:{D+4*f+1}], v{R} offset:{32*f}")
                st[f] = p.e(f"ds_read_b64_tr_b16 v[{D+4*f+2}:{D+4*f+3}], v{R} offset:{32*f + 1024}")
            rd.cost = 2
            self.fill.append(rd)
        self.lag(5)
        for f in range(4):
            self.fill.append(lambda f=f: p.wait(st[f]))
            self.fill.append(lambda f=f: setattr(self, "job_store", p.e(
                f"buffer_store_dwordx4 v[{D+4*f}:{D+4*f+3}], v{V_TW+2}, {srd(SWS)}, s{ad} offen{self.wt}")))
            if f < 3:
                q([f"s_cmp_eq_u32 s{cb}, {4 - f}", f"s_cselect_b32 s{S_XB}, {93*5120}, 0"],
                  f"s_add_u32 s{ad}, s{ad}, s{S_XB}", f"s_add_u32 s{ad}, s{ad}, 1024")

    def w2f_addr(self, dst, b16, kstep):
        e = self.p.e
        e(f"s_mul_hi_u32 s{S_D1}, s{b16}, 0x33333334")
        e(f"s_mul_i32 s{S_D2}, s{S_D1}, 5")
        e(f"s_sub_u32 s{S_D2}, s{b16}, s{S_D2}")
        e(f"s_mul_i32 s{S_D1}, s{S_D1}, 94")
        e(f"s_add_u32 s{S_D1}, s{S_D1}, s{kstep}")
        e(f"s_mul_i32 s{S_D1}, s{S_D1}, 5")
        e(f"s_add_u32 s{S_D1}, s{S_D1}, s{S_D2}")
        e(f"s_lshl_b32 s{dst}, s{S_D1}, 10")
        e(f"s_add_u32 s{dst}, s{dst}, {W2F_OFF}")

    def job_finish(self, kind, rounds, R):
        p, e = self.p, self.p.e
        while self.dq:
            self.dma()
        if kind == "W":
            e(f"v_lshrrev_b32 v{R}, 5, v{V_LANE}"); e(f"v_lshlrev_b32 v{R}, 4, v{R}")
            e(f"v_bfe_u32 v{R+1}, v{V_LANE}, 2, 3"); e(f"v_add_u32 v{R}, v{R}, v{R+1}")
            e(f"v_lshlrev_b32 v{R}, 7, v{R}"); e(f"v_and_b32 v{R+1}, 3, v{V_LANE}")
            e(f"v_lshl_add_u32 v{R}, v{R+1}, 3, v{R}")
        else:
            e(f"v_and_b32 v{R}, 15, v{V_LANE}"); e(f"v_lshlrev_b32 v{R}, 7, v{R}")
            e(f"v_lshrrev_b32 v{R+1}, 4, v{V_LANE}"); e(f"v_lshl_add_u32 v{R}, v{R+1}, 3, v{R}")
            e(f"s_mov_b32 s{S_KS}, 0x05040100"); e(f"s_mov_b32 s{S_KS+1}, 0x07060302")
        e(f"v_add_u32 v{R}, s{S_W4K}, v{R}")
        e(f"v_add_u32 v{R+1}, 0x10000, v{R}")
        for i in range(rounds):
            n = 15 + i
            slot = n % 8
            va, off = R + slot // 4, (slot % 4) * 16384
            D = R + 4 + 32 * (i % 2)
            p.wait(self.stage_tok[n])
            tk = []
            for f in range(4):
                if kind == "W":
                    e(f"ds_read_b64_tr_b16 v[{D+4*f}:{D+4*f+1}], v{va} offset:{off + 32*f}")
                    tk.append(e(f"ds_read_b64_tr_b16 v[{D+4*f+2}:{D+4*f+3}], v{va} offset:{off + 32*f + 1024}"))
                else:
                    e(f"ds_read_b64 v[{D+16+4*f}:{D+16+4*f+1}], v{va} offset:{off + 32*f}")
                    tk.append(e(f"ds_read_b64 v[{D+16+4*f+2}:{D+16+4*f+3}], v{va} offset:{off + 32*f + 2048}"))
            self.job_index(kind, i)
            e(f"s_lshl_b32 s{S_R}, s{S_R}, 2")
            if kind == "C":
                e(f"s_add_u32 s{S_R}, s{S_R}, 54")
                self.w2f_addr(S_T0, S_T1, S_R)
                e(f"s_cmp_lt_u32 s{S_J2}, 400")
                e(f"s_cselect_b32 s{S_T0}, s{S_T0}, {OOB}")
            for f in range(4):
                if kind == "W":
                    self.w2f_addr(S_T0, S_KD2, S_T1)
                    e(f"s_cmp_lt_u32 s{S_J2}, 540")
                    e(f"s_cselect_b32 s{S_T0}, s{S_T0}, {OOB}")
                    e(f"s_add_u32 s{S_KD2}, s{S_KD2}, 1")
                    p.wait(tk[f])
                else:
                    p.wait(tk[f])
                    re, im = D + 16 + 4 * f, D + 16 + 4 * f + 2
                    for k in range(2):
                        e(f"v_perm_b32 v{D+4*f+2*k}, v{im+k}, v{re+k}, s{S_KS}")
                        e(f"v_perm_b32 v{D+4*f+2*k+1}, v{im+k}, v{re+k}, s{S_KS+1}")
                e(f"buffer_store_dwordx4 v[{D+4*f}:{D+4*f+3}], v{V_TW+2}, {srd(SWS)}, s{S_T0} offen{self.wt}")
                if kind == "C" and f < 3:
                    e(f"s_add_u32 s{S_T0}, s{S_T0}, 5120")

    def w_prefetch(self):
        e = self.p.e
        t = V_PRE + 2
        e(f"v_lshrrev_b32 v{t}, 1, v{V_LANE}")
        e(f"v_mul_u32_u24 v{t}, 3456, v{t}")
        e(f"v_and_b32 v{t+1}, 1, v{V_LANE}")
        e(f"v_lshl_add_u32 v{t}, v{t+1}, 7, v{t}")
        e(f"s_and_b32 s{S_T2}, s{S_W}, 1")
        e(f"s_mul_i32 s{S_T2}, s{S_T2}, {-12*3456 & 0xffffffff:#x}")
        e(f"s_mul_i32 s{S_T3}, s{S_MT}, {40*3456}")
        e(f"s_add_u32 s{S_T2}, s{S_T2}, s{S_T3}")
        e(f"s_add_u32 s{S_T2}, s{S_T2}, s{S_D1}")
        e("s_mov_b32 exec_hi, 0xff")
        e(f"buffer_load_dword v{t+1}, v{t}, {srd(SF)}, s{S_T2} offen")
        e("s_mov_b64 exec, -1")

    def w_prefetch_early(self):
        e = self.p.e
        b = S_M2
        e(f"s_cmp_ge_u32 s{S_W}, 2")
        e(f"s_cselect_b32 s{b}, s{K_WU}, s{K_WG}"); e(f"s_cselect_b32 s{b+1}, s{K_WU+1}, s{K_WG+1}")
        e(f"s_and_b32 s{S_T2}, s{S_W}, 1")
        e(f"s_lshl_b32 s{S_T3}, s{S_MT}, 1")
        e(f"s_add_u32 s{S_T2}, s{S_T2}, s{S_T3}")
        e(f"s_mul_i32 s{S_T2}, s{S_T2}, {20*3456}")
        e(f"s_min_u32 s{S_T3}, s{S_D1}, 25")
        e(f"s_lshl_b32 s{S_T3}, s{S_T3}, 7")
        e(f"s_add_u32 s{S_T2}, s{S_T2}, s{S_T3}")
        e(f"s_add_u32 s{b}, s{b}, s{S_T2}"); e(f"s_addc_u32 s{b+1}, s{b+1}, 0")
        if self.opt["wpre"] == 2:
            t = V_PRE + 2
            e(f"v_lshrrev_b32 v{t}, 1, v{V_LANE}")
            e(f"v_mul_u32_u24 v{t}, 3456, v{t}")
            e(f"v_and_b32 v{t+1}, 1, v{V_LANE}")
            e(f"v_lshl_add_u32 v{t}, v{t+1}, 7, v{t}")
            e("s_mov_b32 exec_hi, 0xff")
            e(f"global_load_dword v{t+1}, v{t}, s[{b}:{b+1}]")
            e("s_mov_b64 exec, -1")
        else:
            for k in range(self.opt.get("wpre_n", 20)):
                e(f"s_load_dword s{S_SPIN}, s[{b}:{b+1}], {3456*(k % 20) + 128*(k // 20)}")

    def warm_k2(self):
        if not self.opt.get("warm_k2", 1):
            return
        e = self.p.e
        e(f"s_getpc_b64 s[{S_T0}:{S_T1}]")
        self.p.label("K1_PC2")
        e(f"s_add_u32 s{S_T0}, s{S_T0}, gemm2_kernel-K1_PC2")
        e(f"s_addc_u32 s{S_T1}, s{S_T1}, 0")
        e(f"s_lshr_b32 s{S_T2}, s2, 3")
        e(f"s_lshl_b32 s{S_T2}, s{S_T2}, 2")
        e(f"s_add_u32 s{S_T2}, s{S_T2}, s{S_W}")
        e(f"s_lshl_b32 s{S_T2}, s{S_T2}, 7")
        e(f"s_min_u32 s{S_T3}, s{S_T2}, TEXT_END-gemm2_kernel-4")
        e(f"s_min_u32 s{S_T2}, s{S_T2}, 1276")
        e(f"v_mov_b32 v{V_PRE}, s{S_T3}")
        e(f"v_mov_b32 v{V_PRE+1}, s{S_T2}")
        e("s_mov_b64 exec, 1")
        e(f"global_load_dword v{V_PRE+2}, v{V_PRE}, s[{S_T0}:{S_T1}]")
        e(f"global_load_dword v{V_PRE+3}, v{V_PRE+1}, s[{K_DSK}:{K_DSK+1}]")
        e("s_mov_b64 exec, -1")

    def finish(self, k):
        p, e = self.p, self.p.e
        e(f"s_lshl_b32 s{S_T2}, s{S_CG}, 7")
        e(f"s_add_u32 s{S_T2}, s{S_T2}, {EPOCH_OFF}")
        e(f"s_cmp_eq_u32 s{S_MT}, 15")
        e(f"s_cselect_b32 s{S_T2}, s{S_T2}, {OOB}")
        e(f"v_mov_b32 v0, s{S_EPOCH}")
        e(f"buffer_store_dword v0, off, {srd(SWS)}, s{S_T2} sc1")
        self.spin_out = True
        self.stamp_out(k)
        e("s_endpgm")

    def snapshot(self):
        p = self.p
        return (p.vq, p.vdone, p.lq, p.ldone, dict(self.stage_tok), list(self.pre_barrier), self.nbar, self.mf,
                set(self.seen), list(self.fill), list(self.dq), list(self.norm), self.vgap, list(self.jit),
                dict(self.auto) if self.auto else None)

    def restore(self, s):
        p = self.p
        (p.vq, p.vdone, p.lq, p.ldone, st, pb, self.nbar, self.mf, seen, fill, dq, norm, self.vgap, jit, auto) = s
        self.jit, self.auto = list(jit), (dict(auto) if auto else None)
        self.stage_tok, self.pre_barrier, self.seen = dict(st), list(pb), set(seen)
        self.fill, self.dq, self.norm = list(fill), list(dq), list(norm)

    def run(self, stages, frags, hooks, wjob=False):
        plan = {n: (lambda n=n: self.issue_stage(n + 6, *stages[n + 6])) for n in range(len(stages) - 6)}
        if stages[5][0] == "F" and self.opt.get("wpre", 1) == 1:
            self.dq.append(self.w_prefetch)
        self.issue_stage(5, *stages[5])
        if self.fused and self.opt.get("job_mode") == "dma":
            self.dq.extend(self.job_ld)
        if wjob and not self.fused:
            self.job_setup("W")
            self.issue_stage(100, "W", 0, 0)
        self.gemm(frags, plan, hooks)
        return plan

    def build(self):
        p, e, o = self.p, self.p.e, self.opt
        self.prologue()
        e(f"s_cmp_eq_u32 s{S_TYPE}, 2")
        e("s_cbranch_scc1 K1_TYPE_C")
        e(f"s_cmp_eq_u32 s{S_TYPE}, 1")
        e("s_cbranch_scc1 K1_TYPE_B")
        snap = self.snapshot()
        g1, g2 = o.get("lb_issue", 80 + 80), o.get("lb_check", 80 + 100)
        head = [("S", i, 0) for i in range(5)] + [("F", i, S_D1) for i in range(10)]
        for typ in "AB":
            if typ == "B":
                p.label("K1_TYPE_B")
                self.restore(snap)
            m0 = self.mf

            def start_ssm(typ=typ, m0=m0):
                self.stamp(4)
                if typ == "B":
                    self.job_setup("C")
                self.ssm_reduce(0, ACC_S, 188)
                if typ == "A":
                    self.w_job(188)
                self.ssm_finish(0, ACC_S, 188, lambda: self.mf - m0 >= g1, lambda: self.mf - m0 >= g2, typ)

            def at_d2():
                self.stamp(5)
                self.ffn_epilogue(ACC_D1, S_KD1)
            frags = self.s_frags(0, ACC_S) + self.d_frags(5, ACC_D1)
            if typ == "A":
                self.run(head + [("F", i, S_D2) for i in range(10)], frags + self.d_frags(15, ACC_D2),
                         {81: start_ssm, 240: at_d2}, True)
                self.stamp(6)
                self.flush()
                self.warm_k2()
                self.ffn_tail(ACC_D2, S_KD2)
                self.stamp(7)
            else:
                stages = head + [("C", i, 0) for i in range(7)]
                self.run(stages[:21], frags, {81: start_ssm})
                self.stamp(5)
                self.mf += 1000
                self.barrier()
                self.issue_stage(21, *stages[21])
                while self.dq:
                    self.dma()
                self.flush()
                self.ffn_tail(ACC_D1, S_KD1)
                self.stamp(6)
                self.job_finish("C", 7, ACC_D2 - 4)
                self.stamp(7)
            self.finish(8)
        p.label("K1_TYPE_C")
        self.restore(snap)
        stages = [("S", i % 5, i // 5) for i in range(15)]
        frags = self.s_frags(0, 16) + self.s_frags(5, 48) + self.s_frags(10, 80)
        m0 = self.mf

        def c1():
            self.stamp(4)
            self.ssm_reduce(0, 16, 152)
            for b in (1, 2):
                self.q(*self.ssm_consts(b, V_C + 12 * b + 6, 112))
                self.zero_row(b, 112)

        def c2():
            self.stamp(5)
            self.ssm_reduce(1, 48, 152)
            self.ssm_finish(0, 16, 112, None, lambda: self.mf - m0 >= 215, "C0")
        self.run(stages, frags, {81: c1, 161: c2})
        self.stamp(6)
        self.mf += 1000
        self.flush()
        self.ssm_reduce(2, 80, 152)
        self.ssm_finish(1, 48, 112, None, None, "C1")
        self.flush()
        self.stamp(7)
        self.ssm_finish(2, 80, 112, None, None, "C2")
        self.flush()
        self.finish(8)
        self.slow_paths()
        p.label("K1_END")
        e("s_endpgm")
        p.fix_hazards()
        return p


K1_DESC = """
.amdhsa_kernel proj_kernel
  .amdhsa_next_free_vgpr 512
  .amdhsa_next_free_sgpr 102
  .amdhsa_accum_offset 256
  .amdhsa_group_segment_fixed_size 0
  .amdhsa_kernarg_size 128
  .amdhsa_user_sgpr_count 2
  .amdhsa_user_sgpr_kernarg_segment_ptr 1
  .amdhsa_system_sgpr_workgroup_id_x 1
  .amdhsa_float_denorm_mode_32 3
.end_amdhsa_kernel
"""
```

```python
import sys, json
from asmlib import align_pass
from k1 import K1, K1_DESC, K1_LDS
from k2 import gen_k2, K2_DESC, K2_LDS

NAME = "parallel_sum__ssm_conv_s5__glu_gated_geglu__prompt"


ABOUT = """;
;   64..128 hidden columns, GELU gate, chunked scan (segment scan per lane, segment prefix through LDS, carry from earlier
"""


def build_fused(opt):
    from fused import Fused, DESC, NAME as KN
    ref = open(f"cdna_kernels/{NAME}.s.ref").read().splitlines()
    head = [l for l in ref if l.startswith(";") and "@launch" not in l and "Override launch" not in l
            and "grid=ceil" not in l]
    out = "\n".join(head[:17]) + "\n"
    out += f"; @launch grid=(256,1,1) block=(256,1,1) lds={K1_LDS}\n"
    out += ABOUT
    out += '.amdgcn_target "amdgcn-amd-amdhsa--gfx950"\n.text\n'
    out += f".globl {KN}\n.type {KN},@function\n"
    if opt.get("p3"):
        from fused3 import Fused3 as Fused
    out += Fused(opt).build().text()
    if opt.get("pad_end"):
        out += f".fill {opt['pad_end'] // 4}, 4, 0xbf800000\n"
    out += "TEXT_END:\n"
    out += '.section .rodata,"a"\n.p2align 6' + DESC
    return align_pass(out) if opt.get("align", 1) else out


def build(opt):
    import asmlib
    asmlib.COST.update(opt.get("cost", {}))
    if opt.get("fused"):
        return build_fused(opt)
    ref = open(f"cdna_kernels/{NAME}.s.ref").read().splitlines()
    head = [l for l in ref if l.startswith(";") and "@launch" not in l and "Override launch" not in l
            and "grid=ceil" not in l]
    out = "\n".join(head[:17]) + "\n"
    if opt.get("dummy") == "pre":
        out += "; @launch kernel=dummy_kernel grid=(256,1,1) block=(256,1,1) lds=0\n"
    out += f"; @launch kernel=proj_kernel grid=(256,1,1) block=(256,1,1) lds={K1_LDS}\n"
    out += f"; @launch kernel=gemm2_kernel grid=(256,1,1) block=(256,1,1) lds={K2_LDS}\n"
    if opt.get("dummy") == "post":
        out += "; @launch kernel=dummy_kernel grid=(256,1,1) block=(256,1,1) lds=0\n"
    out += '.amdgcn_target "amdgcn-amd-amdhsa--gfx950"\n.text\n'
    out += ".globl proj_kernel\n.type proj_kernel,@function\n.globl gemm2_kernel\n.type gemm2_kernel,@function\n"
    out += K1(opt).build().text()
    out += gen_k2(opt).text()
    if opt.get("dummy"):
        out += ".p2align 8\n.globl dummy_kernel\n.type dummy_kernel,@function\ndummy_kernel:\n    s_endpgm\n"
    out += "TEXT_END:\n"
    out += '.section .rodata,"a"\n.p2align 6' + K1_DESC + ".p2align 6" + K2_DESC
    if opt.get("dummy"):
        out += ".p2align 6" + K2_DESC.replace("gemm2_kernel", "dummy_kernel").replace("vgpr 280", "vgpr 8").replace("offset 200", "offset 8")
    if opt.get('align', 1):
        out = align_pass(out)
    return out


if __name__ == "__main__":
    path = sys.argv[1]
    opt = json.loads(sys.argv[2]) if len(sys.argv) > 2 else {}
    open(path, "w").write(build(opt))
    print("wrote", path)
```

```python
import re

TRANS = ("v_exp_f32", "v_log_f32", "v_rcp_f32", "v_rsq_f32", "v_sqrt_f32", "v_sin_f32", "v_cos_f32")
_REG = re.compile(r"^-?\|?(?:abs\()?([vas])(?:(\d+)|\[(\d+):(\d+)\])\)?\|?$")


def regs_of(tok):
    tok = tok.strip()
    if tok in ("vcc", "vcc_lo", "vcc_hi"):
        return {("s", 106), ("s", 107)}
    if tok == "m0":
        return {("s", 124)}
    if tok in ("exec", "exec_lo", "exec_hi"):
        return {("s", 126), ("s", 127)}
    m = _REG.match(tok)
    if not m:
        return set()
    f = m.group(1)
    if m.group(2) is not None:
        return {(f, int(m.group(2)))}
    return {(f, i) for i in range(int(m.group(3)), int(m.group(4)) + 1)}


def split_ops(s):
    out, depth, cur = [], 0, ""
    for ch in s:
        if ch in "[(":
            depth += 1
        if ch in "])":
            depth -= 1
        if ch == "," and depth == 0:
            out.append(cur.strip()); cur = ""
        else:
            cur += ch
    if cur.strip():
        out.append(cur.strip())
    return out


class Ins:
    def __init__(self, text):
        self.text = text
        t = text.split(";")[0].strip()
        self.is_label = t.endswith(":")
        self.is_dir = t.startswith(".")
        self.mn = "" if (self.is_label or self.is_dir or not t) else t.split()[0]
        self.w, self.r = set(), set()
        self.srcc = set()
        self.ab = set()
        if not self.mn:
            return
        rest = t[len(self.mn):].strip()
        ops = split_ops(rest)
        if ops:
            for k, o in enumerate(ops):
                if " op_sel" in o or " neg_" in o:
                    ops = ops[:k] + [o]
                    break
            last = ops[-1].split()
            ops[-1] = last[0]
            self.mods = last[1:]
        else:
            self.mods = []
        self.ops = ops
        mn = self.mn
        R = [regs_of(o) for o in ops]
        self.valu = mn.startswith("v_") and not mn.startswith("v_mfma")
        self.mfma = mn.startswith("v_mfma")
        self.trans = mn.replace("_e32", "").replace("_e64", "") in TRANS
        self.vmem = mn.startswith(("buffer_", "global_"))
        self.ds = mn.startswith("ds_")
        self.salu = mn.startswith("s_")
        self.lds_dma = self.vmem and ("lds" in self.mods or "_lds_" in mn)
        self.dpp = any(m.startswith(("row_", "quad_perm", "wave_")) for m in self.mods)
        if self.mfma:
            self.w = R[0]; self.ab = R[1] | R[2]; self.srcc = R[3] if len(R) > 3 else set()
            self.r = self.ab | self.srcc
            self.passes = 8 if "32x32x16" in mn else 4
        elif self.valu:
            if mn.startswith("v_permlane") and "swap" in mn:
                self.w = R[0] | R[1]; self.r = R[0] | R[1]
            elif mn.startswith("v_cmp"):
                self.w = R[0]; self.r = set().union(*R[1:])
            elif mn.startswith(("v_add_co", "v_sub_co", "v_addc_co")):
                self.w = R[0] | R[1]; self.r = set().union(*R[2:])
            else:
                self.w = R[0]; self.r = set().union(*R[1:]) if len(R) > 1 else set()
                if mn.startswith(("v_fmac", "v_dot2c", "v_mov_b32_dpp")) or self.dpp:
                    self.r |= R[0]
                if mn.startswith("v_cndmask") and len(ops) == 3:
                    self.r |= regs_of("vcc")
        elif self.ds:
            if mn.startswith("ds_read"):
                self.w = R[0]; self.r = set().union(*R[1:])
            else:
                self.r = set().union(*R)
        elif self.vmem:
            if mn.startswith(("buffer_wbl2", "buffer_inv")):
                pass
            elif self.lds_dma:
                self.r = set().union(*R) | regs_of("m0")
            elif "store" in mn:
                self.r = set().union(*R)
                self.store_data = R[0] if mn.startswith("buffer_") else R[1]
            elif "atomic" in mn:
                self.r = set().union(*R)
                if "sc0" in self.mods:
                    self.w = R[0]
            else:
                self.w = R[0]; self.r = set().union(*R[1:])
        elif self.salu:
            if mn.startswith(("s_cmp", "s_cbranch", "s_branch", "s_waitcnt", "s_barrier", "s_nop", "s_endpgm",
                              "s_setprio", "s_sleep", "s_bitcmp")):
                self.r = set().union(*R) if R else set()
            else:
                self.w = R[0]; self.r = set().union(*R[1:]) if len(R) > 1 else set()

    def states(self):
        if not self.mn:
            return 0
        if self.mn == "s_nop":
            return int(self.ops[0]) + 1
        return 1


def need(prod, cons):
    n = 0
    pv = {x for x in prod.w if x[0] in "va"}
    ps = {x for x in prod.w if x[0] == "s"}
    if prod.valu:
        if cons.mfma and pv & cons.r:
            n = max(n, 2)
        if prod.trans and cons.valu and not cons.trans and pv & cons.r:
            n = max(n, 1)
        if prod.trans and cons.valu and cons.trans and pv & cons.r:
            n = max(n, 1)
        if cons.valu and cons.mn.startswith("v_permlane") and pv & cons.r:
            n = max(n, 2)
        if cons.valu and cons.mn.startswith(("v_readlane", "v_readfirstlane")) and pv & cons.r:
            n = max(n, 1)
        if cons.valu and cons.dpp and pv & cons.r:
            n = max(n, 2)
        if ps:
            if cons.valu and ps & cons.r:
                n = max(n, 2)
            if cons.vmem and ps & cons.r:
                n = max(n, 5)
            if cons.salu and ps & cons.r:
                n = max(n, 2)
            if cons.mn.startswith("s_cbranch_vcc") and ("s", 106) in ps:
                n = max(n, 2)
    if prod.valu and prod.mn.startswith("v_dot2") and cons.mn.split("_e")[0] != prod.mn.split("_e")[0]:
        if pv & (cons.r | cons.w):
            n = max(n, 3)
    if prod.mfma:
        big = {8: 12, 4: 8}[prod.passes]
        ovl = {8: 10, 4: 6}[prod.passes]
        war = {8: 7, 4: 3}[prod.passes]
        if cons.mfma:
            if prod.w & cons.ab:
                n = max(n, big)
            if prod.w & cons.srcc and not (prod.w == cons.srcc and prod.passes == cons.passes):
                n = max(n, ovl)
            if prod.w & cons.w and not (prod.w == cons.srcc):
                n = max(n, big)
        else:
            if prod.w & (cons.r | cons.w):
                n = max(n, big)
            if cons.valu and prod.srcc & cons.w:
                n = max(n, war)
    if prod.salu and ("s", 124) in prod.w and cons.vmem and cons.lds_dma:
        n = max(n, 1)
    if prod.vmem and hasattr(prod, "store_data") and ("x4" in prod.mn or "x3" in prod.mn):
        if prod.store_data & cons.w:
            n = max(n, 2)
    if prod.ds and prod.mn.startswith(("ds_write_b128", "ds_write_b96")) and cons.valu:
        if regs_of(prod.ops[1]) & cons.w:
            n = max(n, 2)
    return n


COST = {'vmem': 2, 'bar': 1}


def cost_of(text):
    mn = text.split()[0]
    if mn.replace("_e32", "").replace("_e64", "") in TRANS or mn.startswith("v_mfma"):
        return 2
    if mn.startswith(("buffer_", "global_")):
        return COST["vmem"]
    if mn == "s_barrier":
        return COST["bar"]
    return 1


class Prog:
    def __init__(self):
        self.ins = []
        self.vq = 0
        self.vdone = 0
        self.lq = 0
        self.ldone = 0
        self.slots = 0

    def raw(self, text):
        self.ins.append(Ins(text))

    def e(self, text):
        i = Ins(text)
        self.ins.append(i)
        if i.mn:
            self.slots += cost_of(text)
        if i.mn:
            if i.vmem and not i.mn.startswith(("buffer_wbl2", "buffer_inv")):
                self.vq += 1
                return ("v", self.vq)
            if i.ds:
                self.lq += 1
                return ("l", self.lq)
        return None

    def label(self, name):
        self.ins.append(Ins(name + ":"))

    def wait(self, *toks):
        vn = max([t[1] for t in toks if t and t[0] == "v"], default=0)
        ln = max([t[1] for t in toks if t and t[0] == "l"], default=0)
        parts = []
        if vn > self.vdone:
            c = self.vq - vn
            assert c <= 63, c
            parts.append(f"vmcnt({c})"); self.vdone = vn
        if ln > self.ldone:
            c = self.lq - ln
            if c > 15:
                c = 15; ln = self.lq - 15
            parts.append(f"lgkmcnt({c})"); self.ldone = max(self.ldone, ln)
        if parts:
            self.e("s_waitcnt " + " ".join(parts))

    def wait_all(self, vm=True, lgkm=True):
        parts = []
        if vm:
            parts.append("vmcnt(0)"); self.vdone = self.vq
        if lgkm:
            parts.append("lgkmcnt(0)"); self.ldone = self.lq
        self.e("s_waitcnt " + " ".join(parts))

    def fix_hazards(self):
        out = []
        added = 0
        for c in self.ins:
            if c.mn:
                req, dist = 0, 0
                for p in reversed(out):
                    if p.is_label and getattr(p, "barrier", False):
                        break
                    if p.mn:
                        k = need(p, c)
                        if k > dist:
                            req = max(req, k - dist)
                        dist += p.states()
                        if dist >= 20:
                            break
                while req > 0:
                    k = min(req, 16)
                    out.append(Ins(f"s_nop {k-1}")); req -= k; added += 1
            out.append(c)
        self.ins = out
        return added

    def text(self):
        lines = []
        for i in self.ins:
            lines.append(i.text if (i.is_label or i.is_dir) else "    " + i.text)
        return "\n".join(lines) + "\n"


def align_pass(text):
    import subprocess, tempfile, os
    d = tempfile.mkdtemp()
    src, obj = os.path.join(d, "a.s"), os.path.join(d, "a.o")
    open(src, "w").write(text)
    subprocess.run(["clang", "-x", "assembler", "-target", "amdgcn-amd-amdhsa", "-mcpu=gfx950",
                    "-c", src, "-o", obj], check=True)
    dis = subprocess.run(["llvm-objdump", "-d", "--mcpu=gfx950", obj], capture_output=True,
                         text=True).stdout
    enc = []
    for l in dis.splitlines():
        m = re.search(r"^\s+(\S+).*//\s*([0-9A-F]{12}):((?: [0-9A-F]{8})+)", l)
        if m:
            enc.append((m.group(1), int(m.group(2), 16), 4 * len(m.group(3).split())))
    lines = text.split("\n")
    idx = []
    in_text = True
    for n, l in enumerate(lines):
        t = l.split(";")[0].strip()
        if t.startswith(".section"):
            in_text = False
        if in_text and t and not t.startswith(".") and not t.endswith(":"):
            idx.append(n)
    sizes, k = [], 0
    for n in idx:
        mn = lines[n].split()[0]
        while not enc[k][0].startswith(mn.replace("_e32", "").replace("_e64", "")):
            k += 1
        sizes.append(enc[k]); k += 1
    NOFLEX = ("v_readfirstlane", "v_dot2c", "v_permlane", "v_nop", "v_cmp")
    FMA = re.compile(r"^\s*v_fma_f32 (v\d+), ([vs]\d+), (v\d+), (v\d+)\s*$")
    FMA2 = re.compile(r"^\s*v_fma_f32 (v\d+), (v\d+), (s\d+), (v\d+)\s*$")
    PAD = 7
    opts = []
    resets = set()
    prev = -1
    for j, n in enumerate(idx):
        if any(lines[x].strip().startswith(".p2align") for x in range(prev + 1, n)):
            resets.add(j)
        prev = n
        name, _, sz = sizes[j]
        l = lines[n]
        mn = l.split()[0]
        o = [(sz, l, 0)]
        if sz == 4 and name.endswith("_e32") and not name.startswith(NOFLEX):
            o.append((8, l.replace(mn, mn + "_e64", 1), 0))
        elif sz == 4:
            o.append((8, l + "\n    s_nop 0", PAD))
        m = FMA.match(l)
        if m and m.group(1) == m.group(4):
            o.append((4, f"    v_fmac_f32 {m.group(1)}, {m.group(2)}, {m.group(3)}", 0))
        opts.append(o)
    INF = 10 ** 9
    best = [0, INF]
    back = []
    for j, o in enumerate(opts):
        if j in resets:
            st = 0 if best[0] <= best[1] else 1
            forced = st
            best = [min(best), INF]
        else:
            forced = None
        nb, bk = [INF, INF], [None, None]
        for ph in (0, 1):
            if best[ph] >= INF:
                continue
            for k, (sz, l, extra) in enumerate(o):
                glued = "s_nop" in l and sz == 8 and extra
                c = best[ph] + extra + (1 if (sz >= 8 and ph == 1 and not glued) else 0)
                np_ = (ph + sz // 4) % 2
                if c < nb[np_] or (c == nb[np_] and k == 0):
                    nb[np_], bk[np_] = c, (ph, k, forced)
        best = nb
        back.append(bk)
    ph = 0 if best[0] <= best[1] else 1
    for j in range(len(opts) - 1, -1, -1):
        pph, k, forced = back[j][ph]
        lines[idx[j]] = opts[j][k][1]
        ph = forced if forced is not None else pph
    return "\n".join(lines)
```
